```python
import torch

def _softmax(x, axis=-1):
    return torch.softmax(x, dim=axis)
def _gelu(x):
    return torch.nn.functional.gelu(x, approximate="tanh")
def _silu(x):
    return torch.nn.functional.silu(x)
def _sigmoid(x):
    return torch.sigmoid(x)
def _layernorm(x, axis=-1, eps=1e-5):
    m = x.mean(dim=axis, keepdim=True)
    v = x.var(dim=axis, keepdim=True, unbiased=False)
    return (x - m) / torch.sqrt(v + eps)
def _scatter_add(tgt, idx, src, axis=0):
    return tgt.clone().index_add_(axis, idx, src)
def _segment_sum(src, seg, n):
    out = torch.zeros((n,) + src.shape[1:], dtype=src.dtype)
    return out.index_add_(0, seg, src)
def _pad(x, pw):
    flat = tuple(v for pair in reversed(pw) for v in pair)
    return torch.nn.functional.pad(x, flat)

kernel_name = 'sequential_preLN__grouped_kv_mqa__glu_gated_reglu__prompt'

def setup_inputs():

    _w = (lambda a: (lambda t: t.to(torch.bfloat16) if t.is_floating_point() else t)(torch.as_tensor(a)))
    def _A_setup():
        B, S, D, H = 1, 2048, 512, 32
        Dh = D // H
        return {
            "x": _w((lambda *s: torch.randn(*s, dtype=torch.bfloat16) * 0.05)(B, S, D)),
            "wq": _w((lambda *s: torch.randn(*s, dtype=torch.bfloat16) * 0.05)(D, H * Dh)),
            "wk": _w((lambda *s: torch.randn(*s, dtype=torch.bfloat16) * 0.05)(D, Dh)),
            "wv": _w((lambda *s: torch.randn(*s, dtype=torch.bfloat16) * 0.05)(D, Dh)),
            "wo": _w((lambda *s: torch.randn(*s, dtype=torch.bfloat16) * 0.05)(H * Dh, D)),
        }
    _A_in = _A_setup()

    def _B_setup():
        B, S, D, F = 1, 2048, 512, 1792
        return {
            "x": _w((lambda *s: torch.randn(*s, dtype=torch.bfloat16) * 0.05)(B, S, D)),
            "W_gate": _w((lambda *s: torch.randn(*s, dtype=torch.bfloat16) * 0.4)(D, F) * (2.0 / D) ** 0.5),
            "W_up": _w((lambda *s: torch.randn(*s, dtype=torch.bfloat16) * 0.4)(D, F) * (2.0 / D) ** 0.5),
            "W_down": _w((lambda *s: torch.randn(*s, dtype=torch.bfloat16) * 0.4)(F, D) * (1.0 / F) ** 0.5),
        }
    _B_in = _B_setup()

    return {
        "A_x": _A_in["x"],
        "A_wq": _A_in["wq"],
        "A_wk": _A_in["wk"],
        "A_wv": _A_in["wv"],
        "A_wo": _A_in["wo"],
        "B_x": _B_in["x"],
        "B_W_gate": _B_in["W_gate"],
        "B_W_up": _B_in["W_up"],
        "B_W_down": _B_in["W_down"],
    }

def reference(A_x, A_wq, A_wk, A_wv, A_wo, B_x, B_W_gate, B_W_up, B_W_down):
    def _A_ref(x, wq, wk, wv, wo):
        B, S, D = x.shape
        H = 32
        Dh = D // H
        q = (lambda x, *d: x.permute(*d))((x @ wq).reshape(B, S, H, Dh), 0, 2, 1, 3)
        k = x @ wk
        v = x @ wv
        scores = torch.einsum("bhqd,bkd->bhqk", q, k) * (Dh ** -0.5)
        p = _softmax(scores, axis=-1)
        o = torch.einsum("bhqk,bkd->bhqd", p, v)
        return (lambda x, *d: x.permute(*d))(o, 0, 2, 1, 3).reshape(B, S, H * Dh) @ wo

    def _B_ref(x, W_gate, W_up, W_down):
        gate = torch.einsum("bsd,df->bsf", x, W_gate)
        up = torch.einsum("bsd,df->bsf", x, W_up)
        gate = gate * (lambda x, dt: x.to(dt))(gate > 0, gate.dtype)
        h = gate * up
        return torch.einsum("bsf,fd->bsd", h, W_down)

    x = A_x
    h = x + _A_ref(_layernorm(x, axis=-1), A_wq, A_wk, A_wv, A_wo)
    h2 = h + _B_ref(_layernorm(h, axis=-1), B_W_gate, B_W_up, B_W_down)
    return h2
```

```python
class Asm:
    def __init__(self):
        self.L = []
        self.uid = 0
        self.vmq = []
        self.lgq = []
    def __call__(self, s=""):
        for ln in s.split("\n"):
            ln = ln.strip()
            if ln:
                self.L.append("    " + ln)
    def c(self, s):
        self.L.append("    ; " + s)
    def label(self, n):
        self.L.append(n + ":")
    def newlabel(self, p="L"):
        self.uid += 1
        return f"{p}_{self.uid}"
    def raw(self, s):
        self.L.append(s)
    def vm(self, instr, tag=None):
        self(instr); self.vmq.append(tag)
    def vm_wait(self, tag):
        tags = tag if isinstance(tag, (set, list, tuple)) else [tag]
        last = -1
        for i, t in enumerate(self.vmq):
            if t in tags: last = i
        if last < 0: return
        n = len(self.vmq) - 1 - last
        assert n <= 63, n
        self(f"s_waitcnt vmcnt({n})")
        self.vmq = self.vmq[last + 1:]
    def vm_wait_all(self):
        self("s_waitcnt vmcnt(0)"); self.vmq = []
    def vm_reset(self): self.vmq = []
    def lg(self, instr, tag=None):
        self(instr); self.lgq.append(tag)
    def lg_wait(self, tag):
        tags = tag if isinstance(tag, (set, list, tuple)) else [tag]
        last = -1
        for i, t in enumerate(self.lgq):
            if t in tags: last = i
        if last < 0: return
        n = len(self.lgq) - 1 - last
        if n > 15:
            n = 15
            self(f"s_waitcnt lgkmcnt({n})")
            self.lgq = self.lgq[len(self.lgq) - n:]
            return
        self(f"s_waitcnt lgkmcnt({n})")
        self.lgq = self.lgq[last + 1:]
    def lg_wait_all(self):
        self("s_waitcnt lgkmcnt(0)"); self.lgq = []
    def text(self):
        return "\n".join(self.L) + "\n"

def vr(a, n=1):
    return f"v{a}" if n == 1 else f"v[{a}:{a+n-1}]"
def sr(a, n=1):
    return f"s{a}" if n == 1 else f"s[{a}:{a+n-1}]"
```

```python
from asmlib import Asm
import gen as G
from gen import (S_W, S_G, S_J, S_TBK, S_HQ, S_TQ, SRD_WS, SRD_A, SRD_B, SRD_C, SRD_D, mk_srd, f32hex,
                 dpp_sum16, xhalf, xrow16, QF, OF, HF, KF, VF, KMAX, HST, CSP, WOF, WDF, WGF, HHF,
                 P_X, P_OUT)
WS = f"s[{SRD_WS}:{SRD_WS+3}]"

A_Q, A_O, A_S, A_P = 4, 8, [24, 40], 56
A_K = [64, 68]
A_V = [[72, 76], [80, 84]]
A_VK, A_VV = 88, 89
A_NEG = 96
BOUND2 = 1600.0

def mfma(a, d, A, B, c):
    cs = "0" if c is None else f"v[{c}:{c+15}]"
    a(f"v_mfma_f32_32x32x16_bf16 v[{d}:{d+15}], v[{A}:{A+3}], v[{B}:{B+3}], {cs}")

def attn_tile(a, p):
    b = p & 1; nb = b ^ 1
    S = A_S[b]
    def ex(r): a(f"v_exp_f32 v{S+r}, v{S+r}")
    def cv(k): a(f"v_cvt_pk_bf16_f32 v{A_P+k}, v{S+2*k}, v{S+2*k+1}")
    a("s_waitcnt lgkmcnt(0)")
    mfma(a, A_S[nb], A_K[nb], A_Q, None)
    a(f"ds_read_b128 v[{A_K[b]}:{A_K[b]+3}], v{A_VK} offset:{(p+2)*1024}")
    ex(0); ex(1); ex(2); ex(3)
    cv(0)
    mfma(a, A_O, A_V[1][nb], A_P + 4, A_O)
    a("s_mov_b64 exec, s[70:71]")
    a(f"ds_read_b128 v[{A_V[0][nb]}:{A_V[0][nb]+3}], v{A_VV} offset:{(p+1)*1024}")
    a(f"ds_read_b128 v[{A_V[1][nb]}:{A_V[1][nb]+3}], v{A_VV} offset:{(p+1)*1024 + 512}")
    a("s_mov_b64 exec, -1")
    ex(4); cv(1); ex(5); ex(6); ex(7); cv(2); ex(8); cv(3)
    ex(9); ex(10); ex(11)
    mfma(a, A_O, A_V[0][b], A_P, A_O)
    cv(4); ex(12); cv(5); ex(13); ex(14); ex(15); cv(6)
    a("s_nop 0")
    cv(7)

def gen_k2(a, end):
    a("v_lshlrev_b32 v1, 4, v0")
    a.c("Q frag: QF + (tbk*32 + 8hq + w)*1024")
    a(f"s_lshl_b32 s55, s{S_TBK}, 5")
    a(f"s_lshl_b32 s56, s{S_HQ}, 3")
    a("s_add_u32 s55, s55, s56")
    a(f"s_add_u32 s55, s55, s{S_W}")
    a("s_lshl_b32 s54, s55, 10")
    a(f"s_add_u32 s55, s54, {QF}")
    a(f"buffer_load_dwordx4 v[{A_Q}:{A_Q+3}], v1, {WS}, s55 offen")
    a("v_lshlrev_b32 v2, 2, v0")
    a(f"s_mov_b32 s55, {KMAX}")
    a(f"buffer_load_dword v3, v2, {WS}, s55 offen")
    a.c("K/V DMA: stage st, wave w: tiles 16st+2w, +1")
    a(f"s_lshl_b32 s56, s{S_W}, 11")
    for st in range(4):
        a(f"s_add_u32 s57, s56, {st*16384}")
        a("s_mov_b32 m0, s57")
        a(f"s_add_u32 s58, s57, {KF}")
        a(f"buffer_load_dwordx4 v1, {WS}, s58 offen lds")
        a(f"buffer_load_dwordx4 v1, {WS}, s58 offen offset:1024 lds")
        a(f"s_add_u32 m0, s57, 65536")
        a(f"s_add_u32 s58, s57, {VF}")
        a(f"buffer_load_dwordx4 v1, {WS}, s58 offen lds")
        a(f"buffer_load_dwordx4 v1, {WS}, s58 offen offset:1024 lds")
    a("s_mov_b32 s70, 0x0000ffff")
    a("s_mov_b32 s71, 0x0000ffff")
    for r in range(16):
        a(f"v_mov_b32 v{A_O+r}, 0")
        a(f"v_mov_b32 v{72+r}, 0x3f803f80")
    for r in range(8):
        a(f"v_mov_b32 v{A_P+r}, 0")
    a(f"v_mov_b32 v{A_VK}, v1")
    a.c("vV = 65536 + (half*16 + (lane&15))*16")
    a("v_lshrrev_b32 v90, 5, v0")
    a("v_and_b32 v91, 15, v0")
    a("v_lshl_add_u32 v90, v90, 4, v91")
    a("v_lshlrev_b32 v90, 4, v90")
    a(f"v_add_u32 v{A_VV}, 65536, v90")
    a("s_waitcnt vmcnt(16)")
    a("v_mov_b32 v90, 0")
    for r in range(4):
        a(f"v_dot2_f32_bf16 v90, v{A_Q+r}, v{A_Q+r}, v90")
    dpp_sum16(a, 3, "v_max_f32")
    xrow16(a, 3, 91, "v_max_f32")
    xhalf(a, 3, 91, "v_max_f32")
    xhalf(a, 90, 91, "v_add_f32")
    a("v_mul_f32 v90, v90, v3")
    a(f"v_mov_b32 v91, {f32hex(BOUND2)}")
    a("v_cmp_gt_f32 vcc, v90, v91")
    lslow = a.newlabel("K2_slow"); lepi = a.newlabel("K2_epi")
    a("s_nop 4")
    a(f"s_cbranch_vccnz {lslow}")
    a("s_waitcnt vmcnt(12)")
    a("s_barrier")
    a(f"ds_read_b128 v[{A_K[0]}:{A_K[0]+3}], v{A_VK}")
    a(f"ds_read_b128 v[{A_K[1]}:{A_K[1]+3}], v{A_VK} offset:1024")
    a("s_mov_b64 exec, s[70:71]")
    a(f"ds_read_b128 v[{A_V[0][0]}:{A_V[0][0]+3}], v{A_VV}")
    a(f"ds_read_b128 v[{A_V[1][0]}:{A_V[1][0]+3}], v{A_VV} offset:512")
    a("s_mov_b64 exec, -1")
    a("s_waitcnt lgkmcnt(0)")
    mfma(a, A_S[0], A_K[0], A_Q, None)
    a("s_mov_b32 s72, 0")
    a("s_nop 15")
    lloop = a.newlabel("K2_loop")
    a.label(lloop)
    for p in range(16):
        if p == 14:
            w8 = a.newlabel("K2_w8"); w0 = a.newlabel("K2_w0"); wd = a.newlabel("K2_wd")
            a("s_cmp_lt_u32 s72, 2")
            a(f"s_cbranch_scc0 {w0}")
            a("s_cmp_eq_u32 s72, 0")
            a(f"s_cbranch_scc1 {w8}")
            a("s_waitcnt vmcnt(4)")
            a(f"s_branch {wd}")
            a.label(w8)
            a("s_waitcnt vmcnt(8)")
            a(f"s_branch {wd}")
            a.label(w0)
            a("s_waitcnt vmcnt(0)")
            a.label(wd)
            a("s_barrier")
        attn_tile(a, p)
    a(f"v_add_u32 v{A_VK}, 16384, v{A_VK}")
    a(f"v_add_u32 v{A_VV}, 16384, v{A_VV}")
    a("s_add_u32 s72, s72, 1")
    a("s_cmp_lt_u32 s72, 4")
    a(f"s_cbranch_scc1 {lloop}")
    a("s_nop 1")
    mfma(a, A_O, A_V[1][1], A_P + 4, A_O)
    a(f"s_branch {lepi}")
    a.label(lslow)
    a("s_waitcnt vmcnt(0)")
    for _ in range(5):
        a("s_barrier")
    a("v_mov_b32 v92, 0xff800000")
    a("s_mov_b32 s72, 0")
    l1 = a.newlabel("K2_s1")
    a.label(l1)
    a(f"ds_read_b128 v[{A_K[0]}:{A_K[0]+3}], v{A_VK}")
    a("s_waitcnt lgkmcnt(0)")
    mfma(a, A_S[0], A_K[0], A_Q, None)
    a("s_nop 15")
    for r in range(8):
        a(f"v_max3_f32 v92, v{A_S[0]+2*r}, v{A_S[0]+2*r+1}, v92")
    a(f"v_add_u32 v{A_VK}, 1024, v{A_VK}")
    a("s_add_u32 s72, s72, 1")
    a("s_cmp_lt_u32 s72, 64")
    a(f"s_cbranch_scc1 {l1}")
    xhalf(a, 92, 91, "v_max_f32")
    for r in range(16):
        a(f"v_sub_f32 v{A_NEG+r}, 0, v92")
    a(f"v_mov_b32 v{A_VK}, v1")
    a("s_mov_b32 s72, 0")
    l2 = a.newlabel("K2_s2")
    a.label(l2)
    a(f"ds_read_b128 v[{A_K[0]}:{A_K[0]+3}], v{A_VK}")
    a("s_mov_b64 exec, s[70:71]")
    a(f"ds_read_b128 v[{A_V[0][0]}:{A_V[0][0]+3}], v{A_VV}")
    a(f"ds_read_b128 v[{A_V[1][0]}:{A_V[1][0]+3}], v{A_VV} offset:512")
    a("s_mov_b64 exec, -1")
    a("s_waitcnt lgkmcnt(0)")
    mfma(a, A_S[0], A_K[0], A_Q, A_NEG)
    a("s_nop 15")
    for r in range(16):
        a(f"v_exp_f32 v{A_S[0]+r}, v{A_S[0]+r}")
    a("s_nop 0")
    for k in range(8):
        a(f"v_cvt_pk_bf16_f32 v{A_P+k}, v{A_S[0]+2*k}, v{A_S[0]+2*k+1}")
    a("s_nop 1")
    mfma(a, A_O, A_V[0][0], A_P, A_O)
    mfma(a, A_O, A_V[1][0], A_P + 4, A_O)
    a(f"v_add_u32 v{A_VK}, 1024, v{A_VK}")
    a(f"v_add_u32 v{A_VV}, 1024, v{A_VV}")
    a("s_add_u32 s72, s72, 1")
    a("s_cmp_lt_u32 s72, 64")
    a(f"s_cbranch_scc1 {l2}")
    a.label(lepi)
    a("s_nop 15")
    a(f"v_rcp_f32 v90, v{A_O+8}")
    a("s_nop 0")
    for r in range(8):
        a(f"v_mul_f32 v{A_O+r}, v{A_O+r}, v90")
    for k in range(4):
        a(f"v_cvt_pk_bf16_f32 v{A_P+k}, v{A_O+2*k}, v{A_O+2*k+1}")
    a(f"s_add_u32 s55, s54, {OF}")
    a(f"buffer_store_dwordx4 v[{A_P}:{A_P+3}], v1, {WS}, s55 offen")

KERNELS_REST = [
    ("k2_attn_kernel", gen_k2, 135168, 128),
]

def gen_k3(a, end):
    mk_srd(a, SRD_A, P_X, 2048 * 1024)
    a("v_lshlrev_b32 v1, 4, v0")
    a(f"s_and_b32 s54, s{S_W}, 3")
    a(f"s_lshr_b32 s55, s{S_W}, 2")
    a.c("A: WOF + ((4cq+ct)*32 + 16kh)*1024")
    a(f"s_lshl_b32 s56, s{S_HQ}, 2")
    a("s_add_u32 s56, s56, s54")
    a("s_lshl_b32 s56, s56, 5")
    a("s_lshl_b32 s57, s55, 4")
    a("s_add_u32 s56, s56, s57")
    a("s_lshl_b32 s56, s56, 10")
    a(f"s_add_u32 s56, s56, {WOF}")
    a.c("B: OF + (tbk*32 + 16kh)*1024")
    a(f"s_lshl_b32 s58, s{S_TBK}, 5")
    a("s_add_u32 s58, s58, s57")
    a("s_lshl_b32 s58, s58, 10")
    a(f"s_add_u32 s58, s58, {OF}")
    a.vm_reset()
    for q in range(4):
        for e in range(4):
            s = 4 * q + e
            a.vm(f"buffer_load_dwordx4 v[{64+4*s}:{67+4*s}], v1, {WS}, s56 offen offset:{e*1024}", ("A", s))
            a.vm(f"buffer_load_dwordx4 v[{128+4*s}:{131+4*s}], v1, {WS}, s58 offen offset:{e*1024}", ("B", s))
        if q < 3:
            a("s_add_u32 s56, s56, 4096")
            a("s_add_u32 s58, s58, 4096")
    a.c("x residual: (tbk*32+t)*1024 + (128cq + 32ct + 16kh + 8half)*2")
    a("v_and_b32 v2, 31, v0")
    a("v_lshrrev_b32 v3, 5, v0")
    a("v_lshlrev_b32 v4, 10, v2")
    a("v_lshl_add_u32 v4, v3, 4, v4")
    a(f"s_lshl_b32 s59, s{S_TBK}, 15")
    a(f"s_lshl_b32 s60, s{S_HQ}, 8")
    a("s_add_u32 s59, s59, s60")
    a("s_lshl_b32 s60, s54, 6")
    a("s_add_u32 s59, s59, s60")
    a("s_lshl_b32 s60, s55, 5")
    a("s_add_u32 s59, s59, s60")
    a.vm(f"buffer_load_dwordx4 v[24:27], v4, s[{SRD_A}:{SRD_A+3}], s59 offen", "x")
    for s in range(16):
        a.vm_wait([("B", s)])
        mfma(a, 8, 64 + 4 * s, 128 + 4 * s, None if s == 0 else 8)
    a("s_nop 15")
    a.c("exchange: EX[w][q][lane]")
    a(f"s_lshl_b32 s60, s{S_W}, 12")
    a("v_add_u32 v5, s60, v1")
    for q in range(4):
        a(f"ds_write_b128 v5, v[{8+4*q}:{11+4*q}] offset:{q*1024}")
    a("s_waitcnt lgkmcnt(0)")
    a("s_barrier")
    a("s_lshl_b32 s61, s55, 11")
    a("s_lshl_b32 s62, s54, 12")
    a("s_add_u32 s61, s61, s62")
    a("v_add_u32 v5, s61, v1")
    a("ds_read_b128 v[8:11], v5")
    a("ds_read_b128 v[12:15], v5 offset:1024")
    a("ds_read_b128 v[16:19], v5 offset:16384")
    a("ds_read_b128 v[20:23], v5 offset:17408")
    a.vm_wait("x")
    a("s_mov_b32 s61, 0xffff0000")
    for i in range(4):
        a(f"v_lshlrev_b32 v{32+2*i}, 16, v{24+i}")
        a(f"v_and_b32 v{33+2*i}, s61, v{24+i}")
    a("s_waitcnt lgkmcnt(0)")
    for i in range(4):
        a(f"v_pk_add_f32 v[{8+2*i}:{9+2*i}], v[{8+2*i}:{9+2*i}], v[{16+2*i}:{17+2*i}]")
    for i in range(4):
        a(f"v_pk_add_f32 v[{8+2*i}:{9+2*i}], v[{8+2*i}:{9+2*i}], v[{32+2*i}:{33+2*i}]")
    for i in range(4):
        a(f"v_cvt_pk_bf16_f32 v{40+i}, v{8+2*i}, v{9+2*i}")
    a.c("HF + (tbk*32 + 8cq + 2ct + kh)*1024")
    a(f"s_lshl_b32 s60, s{S_TBK}, 5")
    a(f"s_lshl_b32 s61, s{S_HQ}, 3")
    a("s_add_u32 s60, s60, s61")
    a("s_lshl_b32 s61, s54, 1")
    a("s_add_u32 s60, s60, s61")
    a("s_add_u32 s60, s60, s55")
    a("s_lshl_b32 s60, s60, 10")
    a(f"s_add_u32 s60, s60, {HF}")
    a(f"buffer_store_dwordx4 v[40:43], v1, {WS}, s60 offen")
    a("s_mov_b32 s61, 0x3f803f80")
    a("v_mov_b32 v44, 0")
    a("v_mov_b32 v45, 0")
    for i in range(4):
        a(f"v_dot2_f32_bf16 v44, v{40+i}, s61, v44")
        a(f"v_dot2_f32_bf16 v45, v{40+i}, v{40+i}, v45")
    a("s_nop 2")
    xhalf(a, 44, 46, "v_add_f32")
    xhalf(a, 45, 46, "v_add_f32")
    a.c("ST[w][token][2] at 32768")
    a(f"s_lshl_b32 s60, s{S_W}, 8")
    a("v_lshlrev_b32 v46, 3, v2")
    a("v_add_u32 v47, s60, v46")
    a("s_mov_b32 exec_hi, 0")
    a("ds_write_b64 v47, v[44:45] offset:32768")
    a("s_mov_b64 exec, -1")
    a("s_waitcnt lgkmcnt(0)")
    a("s_barrier")
    a(f"s_cmp_lg_u32 s{S_W}, 0")
    a(f"s_cbranch_scc1 {end}")
    for ww in range(8):
        a(f"ds_read_b64 v[{48+2*ww}:{49+2*ww}], v46 offset:{32768 + ww*256}")
    a("s_waitcnt lgkmcnt(0)")
    for ww in range(1, 8):
        a(f"v_pk_add_f32 v[48:49], v[48:49], v[{48+2*ww}:{49+2*ww}]")
    a.c("HST + ((tbk*32 + t)*4 + cq)*8")
    a("v_lshlrev_b32 v46, 5, v2")
    a(f"s_lshl_b32 s60, s{S_TBK}, 10")
    a(f"s_lshl_b32 s61, s{S_HQ}, 3")
    a("s_add_u32 s60, s60, s61")
    a(f"s_add_u32 s60, s60, {HST}")
    a("s_mov_b32 exec_hi, 0")
    a(f"buffer_store_dwordx2 v[48:49], v46, {WS}, s60 offen")
    a("s_mov_b64 exec, -1")

L4_ST = 131072
L4_CS = 131072 + 1024
def gen_k4(a, end):
    a("v_lshlrev_b32 v1, 4, v0")
    a.c("h DMA source base: HF + 4g*32768 + w*1024 ; LDS w*1024")
    a(f"s_lshl_b32 s54, s{S_G}, 17")
    a(f"s_lshl_b32 s55, s{S_W}, 10")
    a("s_add_u32 s54, s54, s55")
    a(f"s_add_u32 s54, s54, {HF}")
    def dma(st):
        for tb in range(4):
            off = tb * 32768 + st * 8192
            a(f"s_add_u32 m0, s55, {off}")
            a(f"s_add_u32 s56, s54, {off}")
            a.vm(f"buffer_load_dwordx4 v1, {WS}, s56 offen lds", ("H", st))
    lhelp = a.newlabel("K4_help")
    a(f"s_cmp_eq_u32 s{S_W}, 7")
    a(f"s_cbranch_scc1 {lhelp}")
    a(f"s_mul_i32 s57, s{S_J}, 7")
    a(f"s_add_u32 s57, s57, s{S_W}")
    a("s_lshl_b32 s58, s57, 15")
    a(f"s_add_u32 s58, s58, {WGF}")
    a.vm_reset()
    for st in range(4):
        for e in range(8):
            s = 8 * st + e
            if e == 4 or (e == 0 and st > 0):
                a("s_add_u32 s58, s58, 4096")
            a.vm(f"buffer_load_dwordx4 v[{128+4*s}:{131+4*s}], v1, {WS}, s58 offen offset:{(e&3)*1024}", ("A", s))
        dma(st)
    a("v_add_u32 v2, 65536, v1")
    BB = [[32 + 4 * t for t in range(4)], [48 + 4 * t for t in range(4)]]
    def breads(s):
        for tb in range(4):
            base = "v1" if tb < 2 else "v2"
            a.lg(f"ds_read_b128 v[{BB[s&1][tb]}:{BB[s&1][tb]+3}], {base} offset:{(tb&1)*32768 + s*1024}", s)
    a.lgq = []
    a.vm_wait(("H", 0))
    a("s_barrier")
    breads(0)
    for s in range(32):
        if s + 1 < 32:
            if (s + 1) % 8 == 0:
                a.vm_wait(("H", (s + 1) // 8))
                a("s_barrier")
            breads(s + 1)
        a.lg_wait(s)
        for tb in range(4):
            mfma(a, 64 + 16 * tb, 128 + 4 * s, BB[s & 1][tb], None if s == 0 else 64 + 16 * tb)
    a("s_barrier")
    a("v_and_b32 v3, 31, v0")
    a("v_lshlrev_b32 v3, 3, v3")
    a(f"v_add_u32 v3, {L4_ST}, v3")
    for tb in range(4):
        a(f"ds_read_b64 v[{4+2*tb}:{5+2*tb}], v3 offset:{tb*256}")
    a("v_lshrrev_b32 v12, 5, v0")
    a("v_lshlrev_b32 v12, 6, v12")
    a(f"s_lshl_b32 s59, s{S_W}, 7")
    a(f"s_add_u32 s59, s59, {L4_CS}")
    a("v_add_u32 v12, s59, v12")
    for q in range(4):
        a(f"ds_read_b128 v[{16+4*q}:{19+4*q}], v12 offset:{q*16}")
    a("s_nop 7")
    a("s_waitcnt lgkmcnt(0)")
    a("s_mul_i32 s58, s57, 1024")
    a(f"s_lshl_b32 s59, s{S_G}, 2")
    a("s_mul_i32 s59, s59, 114688")
    a("s_add_u32 s58, s58, s59")
    a(f"s_add_u32 s58, s58, {HHF}")
    for tb in range(4):
        A = 64 + 16 * tb
        mean, r2 = 4 + 2 * tb, 5 + 2 * tb
        a(f"v_sub_f32 v32, 0, v{mean}")
        a(f"v_mov_b32 v33, v32")
        a(f"v_mov_b32 v34, v{r2}")
        a(f"v_mov_b32 v35, v{r2}")
        for i in range(8):
            a(f"v_pk_fma_f32 v[{A+2*i}:{A+2*i+1}], v[{16+2*i}:{17+2*i}], v[32:33], v[{A+2*i}:{A+2*i+1}]")
        for r in range(8):
            a(f"v_max_f32 v{A+r}, 0, v{A+r}")
        for i in range(4):
            a(f"v_pk_mul_f32 v[{A+8+2*i}:{A+9+2*i}], v[{A+8+2*i}:{A+9+2*i}], v[34:35]")
        for i in range(4):
            a(f"v_pk_mul_f32 v[{A+2*i}:{A+2*i+1}], v[{A+2*i}:{A+2*i+1}], v[{A+8+2*i}:{A+9+2*i}]")
        for i in range(4):
            a(f"v_cvt_pk_bf16_f32 v{36+4*(tb&1)+i}, v{A+2*i}, v{A+2*i+1}")
        a(f"buffer_store_dwordx4 v[{36+4*(tb&1)}:{39+4*(tb&1)}], v1, {WS}, s58 offen")
        if tb < 3:
            a("s_add_u32 s58, s58, 114688")
    a(f"s_branch {end}")
    a.label(lhelp)
    a.vm_reset()
    for st in range(4):
        dma(st)
    a.c("stats: tokens lane and lane+64: HST + (128g + tok)*32")
    a("v_lshlrev_b32 v2, 5, v0")
    a(f"s_lshl_b32 s57, s{S_G}, 12")
    a(f"s_add_u32 s57, s57, {HST}")
    for i in range(2):
        a.vm(f"buffer_load_dwordx4 v[{8+8*i}:{11+8*i}], v2, {WS}, s57 offen offset:{i*2048}", "st")
        a.vm(f"buffer_load_dwordx4 v[{12+8*i}:{15+8*i}], v2, {WS}, s57 offen offset:{i*2048+16}", "st")
    a.c("CS elements e = lane + 64i (i<4, e<224): CSP + (kq*112 + 7j)*128 + e*4")
    a("v_lshlrev_b32 v3, 2, v0")
    a(f"s_mul_i32 s58, s{S_J}, 896")
    a(f"s_add_u32 s58, s58, {CSP}")
    for kq in range(4):
        for i in range(4):
            a.vm(f"buffer_load_dword v{32+4*kq+i}, v3, {WS}, s58 offen offset:{i*256}", "cs")
        if kq < 3:
            a("s_add_u32 s58, s58, 14336")
    n_after = 4 + 16
    for st in range(4):
        a(f"s_waitcnt vmcnt({n_after + 4*(3-st)})")
        a("s_barrier")
    a.vm_wait_all()
    for i in range(2):
        b = 8 + 8 * i
        a(f"v_add_f32 v{b}, v{b}, v{b+2}")
        a(f"v_add_f32 v{b+4}, v{b+4}, v{b+6}")
        a(f"v_add_f32 v{b+1}, v{b+1}, v{b+3}")
        a(f"v_add_f32 v{b+5}, v{b+5}, v{b+7}")
        a(f"v_add_f32 v{b}, v{b}, v{b+4}")
        a(f"v_add_f32 v{b+1}, v{b+1}, v{b+5}")
        a(f"v_mul_f32 v{b}, {f32hex(1.0/512)}, v{b}")
        a(f"v_mul_f32 v{b+2}, v{b}, v{b}")
        a(f"v_mov_b32 v{b+3}, {f32hex(1.0/512)}")
        a(f"v_fma_f32 v{b+1}, v{b+1}, v{b+3}, -v{b+2}")
        a(f"v_max_f32 v{b+1}, 0, v{b+1}")
        a(f"v_add_f32 v{b+1}, {f32hex(1e-5)}, v{b+1}")
        a(f"v_rcp_f32 v{b+1}, v{b+1}")
    a("v_lshlrev_b32 v4, 3, v0")
    a(f"v_add_u32 v4, {L4_ST}, v4")
    a("ds_write_b64 v4, v[8:9]")
    a("ds_write_b64 v4, v[16:17] offset:512")
    for i in range(4):
        a(f"v_add_f32 v{32+i}, v{32+i}, v{36+i}")
        a(f"v_add_f32 v{40+i}, v{40+i}, v{44+i}")
        a(f"v_add_f32 v{32+i}, v{32+i}, v{40+i}")
    a(f"v_add_u32 v3, {L4_CS}, v3")
    for i in range(3):
        a(f"ds_write_b32 v3, v{32+i} offset:{i*256}")
    a("s_mov_b32 exec_hi, 0")
    a("ds_write_b32 v3, v35 offset:768")
    a("s_mov_b64 exec, -1")
    a("s_waitcnt lgkmcnt(0)")
    a("s_barrier")

def gen_k5(a, end):
    mk_srd(a, SRD_A, P_OUT, 2048 * 1024)
    a("v_lshlrev_b32 v1, 4, v0")
    a(f"s_lshr_b32 s54, s{S_J}, 3")
    a(f"s_and_b32 s55, s{S_J}, 7")
    a(f"s_lshl_b32 s56, s{S_G}, 2")
    a("s_lshl_b32 s57, s54, 1")
    a("s_add_u32 s56, s56, s57")
    a(f"s_mul_i32 s57, s{S_W}, 14336")
    a.c("A: WDF + (2cg+ct)*112*1024 + 14w*1024 ; B: HHF + (tb0+tb)*112*1024 + 14w*1024")
    a("s_mul_i32 s58, s55, 229376")
    a("s_add_u32 s58, s58, s57")
    a(f"s_add_u32 s58, s58, {WDF}")
    a("s_add_u32 s59, s58, 114688")
    a("s_mul_i32 s60, s56, 114688")
    a("s_add_u32 s60, s60, s57")
    a(f"s_add_u32 s60, s60, {HHF}")
    a("s_add_u32 s61, s60, 114688")
    AREG, BREG, ACC = 144, 80, 16
    a.vm_reset()
    def ld(reg, sreg, s, tag):
        a.vm(f"buffer_load_dwordx4 v[{reg}:{reg+3}], v1, {WS}, s{sreg} offen offset:{(s&3)*1024}", tag)
    a("s_mov_b32 s62, s58"); a("s_mov_b32 s63, s59"); a("s_mov_b32 s64, s60"); a("s_mov_b32 s65, s61")
    def ldA(s):
        if s and (s & 3) == 0:
            a("s_add_u32 s62, s62, 4096"); a("s_add_u32 s63, s63, 4096")
        ld(AREG + (2 * s) * 4, 62, s, ("A", s)); ld(AREG + (2 * s + 1) * 4, 63, s, ("A", s))
    def ldB(s):
        if s and (s & 3) == 0:
            a("s_add_u32 s64, s64, 4096"); a("s_add_u32 s65, s65, 4096")
        ld(BREG + ((s % 8) * 2) * 4, 64, s, ("B", s)); ld(BREG + ((s % 8) * 2 + 1) * 4, 65, s, ("B", s))
    for s in range(8):
        ldA(s); ldB(s)
    for s in range(8, 14):
        ldA(s)
    a("v_lshrrev_b32 v2, 3, v0")
    a(f"s_lshl_b32 s66, s{S_W}, 3")
    a("v_add_u32 v2, s66, v2")
    a("v_and_b32 v3, 7, v0")
    a.c("HF + ((tb0 + (token>>5))*32 + 4cg + (c8>>1))*1024 + ((c8&1)*32 + (token&31))*16")
    a("v_lshrrev_b32 v4, 5, v2")
    a("v_lshlrev_b32 v4, 5, v4")
    a("v_lshrrev_b32 v5, 1, v3")
    a("v_add_u32 v4, v4, v5")
    a("v_lshlrev_b32 v4, 10, v4")
    a("v_and_b32 v5, 1, v3")
    a("v_lshlrev_b32 v5, 5, v5")
    a("v_and_b32 v6, 31, v2")
    a("v_add_u32 v5, v5, v6")
    a("v_lshl_add_u32 v4, v5, 4, v4")
    a("s_lshl_b32 s66, s56, 5")
    a("s_lshl_b32 s67, s55, 2")
    a("s_add_u32 s66, s66, s67")
    a("s_lshl_b32 s66, s66, 10")
    a(f"s_add_u32 s66, s66, {HF}")
    for s in range(14):
        a.vm_wait([("A", s), ("B", s)])
        for ct in range(2):
            for tb in range(2):
                d = ACC + (ct * 2 + tb) * 16
                mfma(a, d, AREG + (2 * s + ct) * 4, BREG + ((s % 8) * 2 + tb) * 4, None if s == 0 else d)
        if s + 8 < 14:
            ldB(s + 8)
        if s == 5:
            a.vm(f"buffer_load_dwordx4 v[8:11], v4, {WS}, s66 offen", "res")
    a.c("reduction write: addr = w*16384 + t*256 + ((X ^ (rg*4+q))*16), X = (half*2) ^ (t&7)")
    a("v_and_b32 v12, 31, v0")
    a("v_lshrrev_b32 v13, 5, v0")
    a("v_lshlrev_b32 v13, 1, v13")
    a("v_and_b32 v14, 7, v12")
    a("v_xor_b32 v13, v13, v14")
    a("v_lshlrev_b32 v12, 8, v12")
    a(f"s_lshl_b32 s67, s{S_W}, 14")
    a("v_add_u32 v12, s67, v12")
    for k, (rg, q) in enumerate([(0, 0), (0, 1), (1, 0), (1, 1)]):
        a(f"v_xor_b32 v{80+k}, {rg*4+q}, v13")
        a(f"v_lshl_add_u32 v{80+k}, v{80+k}, 4, v12")
    a("s_nop 7")
    for ct in range(2):
        for tb in range(2):
            d = ACC + (ct * 2 + tb) * 16
            for k, (rg, q) in enumerate([(0, 0), (0, 1), (1, 0), (1, 1)]):
                r = d + 8 * rg + 4 * q
                a(f"ds_write_b128 v{80+k}, v[{r}:{r+3}] offset:{ct*128 + tb*8192}")
    a("s_waitcnt lgkmcnt(0)")
    a("s_barrier")
    a.c("reader: token*256 + (((2c8+e) ^ (token&7))*16)")
    a("v_and_b32 v12, 7, v2")
    a("v_lshlrev_b32 v13, 1, v3")
    a("v_xor_b32 v14, v13, v12")
    a("v_or_b32 v13, 1, v13")
    a("v_xor_b32 v15, v13, v12")
    a("v_lshlrev_b32 v14, 4, v14")
    a("v_lshlrev_b32 v15, 4, v15")
    a("v_lshl_add_u32 v14, v2, 8, v14")
    a("v_lshl_add_u32 v15, v2, 8, v15")
    a("v_add_u32 v12, 65536, v14")
    a("v_add_u32 v13, 65536, v15")
    for src in range(8):
        b0, b1 = ("v14", "v15") if src < 4 else ("v12", "v13")
        a(f"ds_read_b128 v[{16+8*src}:{19+8*src}], {b0} offset:{(src&3)*16384}")
        a(f"ds_read_b128 v[{20+8*src}:{23+8*src}], {b1} offset:{(src&3)*16384}")
        if src == 3:
            pass
    a.vm_wait("res")
    a("s_mov_b32 s67, 0xffff0000")
    for i in range(4):
        a(f"v_lshlrev_b32 v{80+2*i}, 16, v{8+i}")
        a(f"v_and_b32 v{81+2*i}, s67, v{8+i}")
    a("s_waitcnt lgkmcnt(0)")
    for src in range(1, 8):
        for i in range(4):
            a(f"v_pk_add_f32 v[{16+2*i}:{17+2*i}], v[{16+2*i}:{17+2*i}], v[{16+8*src+2*i}:{17+8*src+2*i}]")
    for i in range(4):
        a(f"v_pk_add_f32 v[{16+2*i}:{17+2*i}], v[{16+2*i}:{17+2*i}], v[{80+2*i}:{81+2*i}]")
    for i in range(4):
        a(f"v_cvt_pk_bf16_f32 v{8+i}, v{16+2*i}, v{17+2*i}")
    a.c("out: (128g + 64th + token)*1024 + (64cg + 8c8)*2")
    a("v_lshlrev_b32 v4, 10, v2")
    a("v_lshl_add_u32 v4, v3, 4, v4")
    a(f"s_lshl_b32 s66, s{S_G}, 17")
    a("s_lshl_b32 s67, s54, 16")
    a("s_add_u32 s66, s66, s67")
    a("s_lshl_b32 s67, s55, 7")
    a("s_add_u32 s66, s66, s67")
    a(f"buffer_store_dwordx4 v[8:11], v4, s[{SRD_A}:{SRD_A+3}], s66 offen")

KERNELS_REST += [
    ("k3_wo_kernel", gen_k3, 36864, 256),
    ("k4_gu_kernel", gen_k4, 133120, 256),
    ("k5_down_kernel", gen_k5, 131072, 256),
]
```

```python
import sys
from asmlib import Asm, vr, sr

NAME = "sequential_preLN__grouped_kv_mqa__glu_gated_reglu__prompt"

QF   = 0x000000
OF   = 0x200000
HF   = 0x400000
KF   = 0x600000
VF   = 0x610000
KMAX = 0x620000
HST  = 0x630000
CSP  = 0x640000
WOF  = 0x680000
WDF  = 0x700000
WGF  = 0x900000
HHF  = 0xD00000
WS_USED = 0x1400000

QSCALE = 0.25 * 1.4426950408889634
SRD3 = "0x00020000"

def f32hex(x):
    import struct
    return "0x%08x" % struct.unpack("<I", struct.pack("<f", x))[0]

S_W, S_G, S_J, S_TBK = 4, 5, 6, 7
SRD_WS = 8
SRD_A = 12
P_X, P_WQ, P_WK, P_WV, P_WO, P_BX, P_WG, P_WU = 16, 18, 20, 22, 24, 26, 28, 30
P_WD, P_OUT, P_DBG, P_WS = 32, 34, 36, 38
SRD_B = 40
SRD_C = 44
SRD_D = 48
S_HQ, S_TQ = 52, 53

def mk_srd(a, q, p, nbytes):
    a(f"s_mov_b32 s{q}, s{p}")
    a(f"s_mov_b32 s{q+1}, s{p+1}")
    a(f"s_mov_b32 s{q+2}, {hex(nbytes)}")
    a(f"s_mov_b32 s{q+3}, {SRD3}")

def prologue(a, endlabel):
    a(f"s_cmp_ge_u32 s2, 256")
    a(f"s_cbranch_scc1 {endlabel}")
    a("s_load_dwordx16 s[16:31], s[0:1], 0")
    a("s_load_dwordx8 s[32:39], s[0:1], 64")
    a("v_lshrrev_b32 v1, 6, v0")
    a("v_and_b32 v0, 63, v0")
    a(f"v_readfirstlane_b32 s{S_W}, v1")
    a("s_and_b32 s3, s2, 7")
    a(f"s_lshr_b32 s{S_G}, s2, 3")
    a(f"s_and_b32 s{S_J}, s{S_G}, 15")
    a(f"s_lshr_b32 s{S_G}, s{S_G}, 4")
    a("s_lshl_b32 s3, s3, 1")
    a(f"s_add_u32 s{S_G}, s{S_G}, s3")
    a(f"s_lshr_b32 s{S_TQ}, s{S_J}, 2")
    a(f"s_and_b32 s{S_HQ}, s{S_J}, 3")
    a(f"s_lshl_b32 s{S_TBK}, s{S_G}, 2")
    a(f"s_add_u32 s{S_TBK}, s{S_TBK}, s{S_TQ}")
    a("s_waitcnt lgkmcnt(0)")
    mk_srd(a, SRD_WS, P_WS, WS_USED)

def dpp_sum16(a, v, op="v_add_f32"):
    for sh in (8, 4, 2, 1):
        a("s_nop 1")
        a(f"{op}_dpp v{v}, v{v}, v{v} row_ror:{sh} row_mask:0xf bank_mask:0xf")

def xhalf(a, v, t, op="v_add_f32"):
    a(f"v_mov_b32 v{t}, v{v}")
    a("s_nop 1")
    a(f"v_permlane32_swap_b32 v{v}, v{t}")
    a("s_nop 1")
    a(f"{op} v{v}, v{v}, v{t}")

def xrow16(a, v, t, op="v_max_f32"):
    a(f"v_mov_b32 v{t}, v{v}")
    a("s_nop 1")
    a(f"v_permlane16_swap_b32 v{v}, v{t}")
    a("s_nop 1")
    a(f"{op} v{v}, v{v}, v{t}")

L1_XN, L1_WQ, L1_WK, L1_WV = 0, 32768, 131072, 147456

def gen_k1(a, end):
    mk_srd(a, SRD_A, P_X, 2048 * 1024)
    mk_srd(a, SRD_B, P_WQ, 512 * 1024)
    a.c("x row offset: (tbk*32 + 4w + (lane>>4))*1024 + (lane&15)*16")
    a(f"s_lshl_b32 s54, s{S_TBK}, 5")
    a(f"s_lshl_b32 s55, s{S_W}, 2")
    a("s_add_u32 s54, s54, s55")
    a("v_lshrrev_b32 v2, 4, v0")
    a("v_and_b32 v3, 15, v0")
    a("v_add_u32 v4, s54, v2")
    a("v_lshlrev_b32 v4, 10, v4")
    a("v_lshl_add_u32 v4, v3, 4, v4")
    a.vm_reset()
    for i in range(4):
        a.vm(f"buffer_load_dwordx4 v[{16+4*i}:{19+4*i}], v4, s[{SRD_A}:{SRD_A+3}], 0 offen offset:{256*i}", "x")
    a.c("voffWQ = (lane>>4)*1024 + hq*256 + (((lane&15) ^ ((lane>>4)<<1))*16)")
    a("v_lshlrev_b32 v5, 1, v2")
    a("v_xor_b32 v5, v3, v5")
    a("v_lshlrev_b32 v5, 4, v5")
    a("v_lshl_add_u32 v5, v2, 10, v5")
    a(f"s_lshl_b32 s55, s{S_HQ}, 8")
    a("v_add_u32 v5, s55, v5")
    a(f"s_lshl_b32 s56, s{S_W}, 12")
    a(f"s_add_u32 s56, s56, {L1_WQ}")
    a(f"s_lshl_b32 s57, s{S_W}, 14")
    def wq_dma(q):
        for i in range(4):
            a(f"s_add_u32 m0, s56, {(q % 3) * 32768 + i * 1024}")
            a(f"s_add_u32 s58, s57, {(q * 128 + 4 * i) * 1024}")
            a.vm(f"buffer_load_dwordx4 v5, s[{SRD_B}:{SRD_B+3}], s58 offen lds", f"wq{q}")
    for q in range(3):
        wq_dma(q)
    a("v_lshlrev_b32 v6, 4, v0")
    lskip = a.newlabel("K1_nokv")
    a(f"s_cmp_lg_u32 s{S_HQ}, 0")
    a(f"s_cbranch_scc1 {lskip}")
    mk_srd(a, SRD_C, P_WK, 16384)
    mk_srd(a, SRD_D, P_WV, 16384)
    a(f"s_lshl_b32 s58, s{S_W}, 11")
    for i in range(2):
        a(f"s_add_u32 s59, s58, {i*1024}")
        a(f"s_add_u32 m0, s59, {L1_WK}")
        a("s_nop 0")
        a(f"buffer_load_dwordx4 v6, s[{SRD_C}:{SRD_C+3}], s59 offen lds")
        a(f"s_add_u32 m0, s59, {L1_WV}")
        a("s_nop 0")
        a(f"buffer_load_dwordx4 v6, s[{SRD_D}:{SRD_D+3}], s59 offen lds")
    a("s_waitcnt vmcnt(16)")
    lj = a.newlabel("K1_x")
    a(f"s_branch {lj}")
    a.label(lskip)
    a("s_waitcnt vmcnt(12)")
    a.label(lj)
    a("s_mov_b32 s60, 0x3f803f80")
    a("v_mov_b32 v32, 0")
    a("v_mov_b32 v33, 0")
    for i in range(16):
        a(f"v_dot2_f32_bf16 v{32 + (i & 1)}, v{16+i}, s60, v{32 + (i & 1)}")
    a("s_nop 2")
    a("v_add_f32 v32, v32, v33")
    dpp_sum16(a, 32)
    a(f"v_mul_f32 v34, {f32hex(-1.0/512)}, v32")
    a("v_mov_b32 v35, v34")
    a("s_mov_b32 s61, 0xffff0000")
    for i in range(16):
        a(f"v_lshlrev_b32 v{64+2*i}, 16, v{16+i}")
        a(f"v_and_b32 v{65+2*i}, s61, v{16+i}")
    for i in range(16):
        a(f"v_pk_add_f32 v[{64+2*i}:{65+2*i}], v[{64+2*i}:{65+2*i}], v[34:35]")
    a("v_pk_mul_f32 v[36:37], v[64:65], v[64:65]")
    a("v_pk_mul_f32 v[38:39], v[66:67], v[66:67]")
    for i in range(2, 16):
        r = 36 + 2 * (i & 1)
        a(f"v_pk_fma_f32 v[{r}:{r+1}], v[{64+2*i}:{65+2*i}], v[{64+2*i}:{65+2*i}], v[{r}:{r+1}]")
    a("v_pk_add_f32 v[36:37], v[36:37], v[38:39]")
    a("v_add_f32 v36, v36, v37")
    dpp_sum16(a, 36)
    a(f"v_mov_b32 v37, {f32hex(1e-5)}")
    a(f"v_fmac_f32 v37, {f32hex(1.0/512)}, v36")
    a("v_rsq_f32 v38, v37")
    a("s_nop 0")
    a("v_mov_b32 v39, v38")
    for i in range(16):
        a(f"v_pk_mul_f32 v[{64+2*i}:{65+2*i}], v[{64+2*i}:{65+2*i}], v[38:39]")
    for i in range(16):
        a(f"v_cvt_pk_bf16_f32 v{16+i}, v{64+2*i}, v{65+2*i}")
    a.c("XN write addr = (c>>1)*1024 + (c&1)*512 + ((tl ^ (c&7))*16) + i*8192 ; tl = 4w + (lane>>4)")
    a(f"s_lshl_b32 s55, s{S_W}, 2")
    a("v_add_u32 v7, s55, v2")
    a("v_and_b32 v8, 7, v3")
    a("v_xor_b32 v7, v7, v8")
    a("v_lshlrev_b32 v7, 4, v7")
    a("v_lshrrev_b32 v8, 1, v3")
    a("v_lshl_add_u32 v7, v8, 10, v7")
    a("v_and_b32 v8, 1, v3")
    a("v_lshl_add_u32 v7, v8, 9, v7")
    for i in range(4):
        a(f"ds_write_b128 v7, v[{16+4*i}:{19+4*i}] offset:{L1_XN + i*8192}")
    a.c("B-frag addresses xa[m] = half*512 + ((token ^ (2m+half))*16)")
    a("v_lshrrev_b32 v8, 5, v0")
    a("v_and_b32 v9, 31, v0")
    for m in range(4):
        a(f"v_add_u32 v10, {2*m}, v8")
        a("v_xor_b32 v10, v9, v10")
        a("v_lshlrev_b32 v10, 4, v10")
        a(f"v_lshl_add_u32 v{40+m}, v8, 9, v10")
    a.c("A-frag addresses")
    a("v_lshrrev_b32 v10, 2, v3")
    a("v_and_b32 v11, 3, v3")
    a("v_lshl_add_u32 v12, v8, 3, v10")
    a(f"s_lshl_b32 s55, s{S_W}, 1")
    a("v_lshrrev_b32 v13, 1, v11")
    a("v_add_u32 v13, s55, v13")
    a("v_lshlrev_b32 v14, 1, v10")
    a("v_xor_b32 v13, v13, v14")
    a("v_lshlrev_b32 v13, 4, v13")
    a("v_lshl_add_u32 v13, v12, 8, v13")
    a("v_and_b32 v14, 1, v11")
    a("v_lshl_add_u32 v13, v14, 3, v13")
    a(f"v_add_u32 v44, {L1_WQ}, v13")
    a("v_lshlrev_b32 v13, 5, v12")
    a("v_lshl_add_u32 v13, v11, 3, v13")
    a(f"s_mul_i32 s55, s{S_W}, {L1_WV - L1_WK}")
    a(f"s_add_u32 s55, s55, {L1_WK}")
    a("v_add_u32 v13, s55, v13")
    a(f"s_cmp_eq_u32 s{S_HQ}, 0")
    a("s_cselect_b32 s62, 1, 0")
    a(f"s_cmp_lt_u32 s{S_W}, 2")
    a("s_cselect_b32 s63, s62, 0")
    a("s_cmp_eq_u32 s63, 1")
    a("s_cselect_b32 s64, 0xffff0000, 0")
    a("s_mov_b32 s65, s64")
    a("v_cndmask_b32 v44, v44, v13, s[64:65]")
    a("v_mov_b32 v14, 1024")
    a("v_mov_b32 v15, 128")
    a("v_cndmask_b32 v14, v14, v15, s[64:65]")
    a("v_add_u32 v45, v44, v14")
    a("v_mov_b32 v14, 4096")
    a("v_mov_b32 v15, 512")
    a("v_cndmask_b32 v46, v14, v15, s[64:65]")
    a("v_mov_b32 v14, 98304")
    a("v_cndmask_b32 v47, v14, 0, s[64:65]")
    a("s_waitcnt vmcnt(0) lgkmcnt(0)")
    a.vm_reset()
    a("s_barrier")
    ACC = 96
    AB = [112, 116, 120]; BB = [124, 128, 132]
    def issue(s):
        A = AB[s % 3]; B = BB[s % 3]
        a.lg(f"ds_read_b64_tr_b16 v[{A}:{A+1}], v44", s)
        a.lg(f"ds_read_b64_tr_b16 v[{A+2}:{A+3}], v45", s)
        a.lg(f"ds_read_b128 v[{B}:{B+3}], v{40 + (s & 3)} offset:{L1_XN + s*1024}", s)
        if s == 23:
            a("v_add_u32 v44, v44, v46"); a("v_add_u32 v45, v45, v46")
            a("v_sub_u32 v44, v44, v47"); a("v_sub_u32 v45, v45, v47")
        else:
            a("v_add_u32 v44, v44, v46"); a("v_add_u32 v45, v45, v46")
    a.lgq = []
    issue(0); issue(1)
    for s in range(32):
        if s + 2 < 32:
            if s + 2 == 24:
                a("s_waitcnt vmcnt(0)")
                a.vm_reset()
                a("s_barrier")
            issue(s + 2)
        a.lg_wait(s)
        A = AB[s % 3]; B = BB[s % 3]
        c = "0" if s == 0 else f"v[{ACC}:{ACC+15}]"
        a(f"v_mfma_f32_32x32x16_bf16 v[{ACC}:{ACC+15}], v[{A}:{A+3}], v[{B}:{B+3}], {c}")
        if s == 7:
            a("s_barrier")
            wq_dma(3)
    a("s_nop 15")
    a(f"s_mov_b32 s55, {f32hex(QSCALE)}")
    for r in range(8):
        a(f"v_mul_f32 v{64+r}, s55, v{ACC+r}")
    for r in range(4):
        a(f"v_cvt_pk_bf16_f32 v{72+r}, v{64+2*r}, v{65+2*r}")
    a.c("QF + (tbk*32 + 8hq + w)*1024 + lane*16")
    a(f"s_lshl_b32 s55, s{S_TBK}, 5")
    a(f"s_lshl_b32 s56, s{S_HQ}, 3")
    a("s_add_u32 s55, s55, s56")
    a(f"s_add_u32 s55, s55, s{S_W}")
    a("s_lshl_b32 s55, s55, 10")
    a(f"s_add_u32 s55, s55, {QF}")
    a(f"buffer_store_dwordx4 v[72:75], v6, s[{SRD_WS}:{SRD_WS+3}], s55 offen")
    lkv = a.newlabel("K1_kvdone"); lv = a.newlabel("K1_v")
    a(f"s_cmp_lg_u32 s{S_HQ}, 0")
    a(f"s_cbranch_scc1 {lkv}")
    a(f"s_cmp_eq_u32 s{S_W}, 1")
    a(f"s_cbranch_scc1 {lv}")
    a(f"s_cmp_lg_u32 s{S_W}, 0")
    a(f"s_cbranch_scc1 {lkv}")
    for r in range(4):
        a(f"v_cvt_pk_bf16_f32 v{76+r}, v{ACC+8+2*r}, v{ACC+9+2*r}")
    a(f"s_lshl_b32 s55, s{S_TBK}, 10")
    a(f"s_add_u32 s55, s55, {KF}")
    a(f"buffer_store_dwordx4 v[76:79], v6, s[{SRD_WS}:{SRD_WS+3}], s55 offen")
    a("v_mov_b32 v80, 0")
    for r in range(4):
        a(f"v_dot2_f32_bf16 v80, v{76+r}, v{76+r}, v80")
    a("s_nop 2")
    xhalf(a, 80, 81, "v_add_f32")
    dpp_sum16(a, 80, "v_max_f32")
    xrow16(a, 80, 81, "v_max_f32")
    a(f"s_lshl_b32 s55, s{S_TBK}, 2")
    a(f"s_add_u32 s55, s55, {KMAX}")
    a("v_mov_b32 v82, 0")
    a("s_mov_b64 exec, 1")
    a(f"buffer_store_dword v80, v82, s[{SRD_WS}:{SRD_WS+3}], s55 offen")
    a("s_mov_b64 exec, -1")
    a(f"s_branch {lkv}")
    a.label(lv)
    for r in range(4):
        a(f"v_cvt_pk_bf16_f32 v{76+r}, v{ACC+8+2*r}, v{ACC+9+2*r}")
    a("v_lshlrev_b32 v80, 5, v9")
    a("v_lshl_add_u32 v80, v8, 3, v80")
    a(f"v_add_u32 v80, {L1_WV}, v80")
    a(f"ds_write_b64 v80, v[76:77]")
    a(f"ds_write_b64 v80, v[78:79] offset:16")
    a.c("tr read: token = 16c2 + 8rd + 4half + (i>>2), colgroup pi'(i&3)")
    a("v_lshl_add_u32 v81, v8, 2, v10")
    a("v_lshlrev_b32 v81, 5, v81")
    a("v_and_b32 v82, 1, v11")
    a("v_lshlrev_b32 v82, 1, v82")
    a("v_lshrrev_b32 v83, 1, v11")
    a("v_add_u32 v82, v82, v83")
    a("v_lshl_add_u32 v81, v82, 3, v81")
    a(f"v_add_u32 v81, {L1_WV}, v81")
    a("s_waitcnt lgkmcnt(0)")
    for c2 in range(2):
        for rd in range(2):
            d = 84 + 4 * c2 + 2 * rd
            a(f"ds_read_b64_tr_b16 v[{d}:{d+1}], v81 offset:{(16*c2 + 8*rd) * 32}")
    a.c("VF + (tbk*2 + c2)*512 + (half*16 + i)*16")
    a("v_lshl_add_u32 v82, v8, 4, v3")
    a("v_lshlrev_b32 v82, 4, v82")
    a(f"s_lshl_b32 s55, s{S_TBK}, 10")
    a(f"s_add_u32 s55, s55, {VF}")
    a("s_waitcnt lgkmcnt(0)")
    a("s_mov_b32 exec_lo, 0x0000ffff")
    a("s_mov_b32 exec_hi, 0x0000ffff")
    a(f"buffer_store_dwordx4 v[84:87], v82, s[{SRD_WS}:{SRD_WS+3}], s55 offen")
    a(f"buffer_store_dwordx4 v[88:91], v82, s[{SRD_WS}:{SRD_WS+3}], s55 offen offset:512")
    a("s_mov_b64 exec, -1")
    a.label(lkv)
    a("s_barrier")
    gen_wjobs(a, end)

def gen_wjobs(a, end):
    SC = 54
    a(f"s_lshl_b32 s{SC}, s{S_W}, 12")
    a.c("pi'(cg)*8 -> v60 ; blk -> v61")
    a("v_and_b32 v60, 1, v11")
    a("v_lshlrev_b32 v60, 1, v60")
    a("v_lshrrev_b32 v61, 1, v11")
    a("v_add_u32 v60, v60, v61")
    a("v_lshlrev_b32 v60, 3, v60")
    a("v_and_b32 v61, 1, v2")
    a("v_lshl_add_u32 v62, v8, 3, v10")
    lwo = a.newlabel("K1_wod")
    a("s_cmp_ge_u32 s2, 112")
    a(f"s_cbranch_scc1 {lwo}")
    a("s_lshr_b32 s55, s2, 2")
    a("s_and_b32 s56, s2, 3")
    a("s_lshl_b32 s57, s56, 3")
    a(f"s_add_u32 s57, s57, s{S_W}")
    mk_srd(a, SRD_B, P_WG, 512 * 3584)
    mk_srd(a, SRD_C, P_WU, 512 * 3584)
    a.c("voff = (lane>>3)*3584 + (lane&7)*16")
    a("v_lshrrev_b32 v63, 3, v0")
    a("s_mov_b32 s58, 3584")
    a("v_mul_lo_u32 v63, v63, s58")
    a("v_and_b32 v64, 7, v0")
    a("v_lshl_add_u32 v63, v64, 4, v63")
    a("s_mul_i32 s58, s57, 57344")
    a("s_lshl_b32 s59, s55, 7")
    a("s_add_u32 s58, s58, s59")
    for i in range(2):
        a(f"s_add_u32 m0, s{SC}, {i*1024}")
        a(f"s_add_u32 s59, s58, {i*8*3584}")
        a(f"buffer_load_dwordx4 v63, s[{SRD_B}:{SRD_B+3}], s59 offen lds")
        a(f"s_add_u32 m0, s{SC}, {2048 + i*1024}")
        a("s_nop 0")
        a(f"buffer_load_dwordx4 v63, s[{SRD_C}:{SRD_C+3}], s59 offen lds")
    a.c("tr addr = sc + blk*2048 + row*128 + pi'*8 ; rd -> +512 ; fbl -> +32")
    a("v_lshlrev_b32 v64, 7, v62")
    a("v_lshl_add_u32 v64, v61, 11, v64")
    a("v_add_u32 v64, v64, v60")
    a(f"v_add_u32 v64, s{SC}, v64")
    a("s_waitcnt vmcnt(0)")
    for fbl in range(4):
        d = 68 + 4 * fbl
        a(f"ds_read_b64_tr_b16 v[{d}:{d+1}], v64 offset:{fbl*32}")
        a(f"ds_read_b64_tr_b16 v[{d+2}:{d+3}], v64 offset:{fbl*32 + 512}")
    a.c("dest = WGF + ((4fq+fbl)*32 + s)*1024")
    a("s_lshl_b32 s58, s55, 7")
    a("s_add_u32 s58, s58, s57")
    a("s_lshl_b32 s58, s58, 10")
    a(f"s_add_u32 s58, s58, {WGF}")
    for r in range(4):
        a(f"v_mov_b32 v{84+r}, 0x3f803f80")
    a("s_waitcnt lgkmcnt(0)")
    for fbl in range(4):
        d = 68 + 4 * fbl
        a(f"s_add_u32 s59, s58, {fbl*32768}")
        a(f"buffer_store_dwordx4 v[{d}:{d+3}], v6, s[{SRD_WS}:{SRD_WS+3}], s59 offen")
    for fbl in range(4):
        d = 68 + 4 * fbl
        a(f"v_mfma_f32_32x32x16_bf16 v[{96+16*fbl}:{111+16*fbl}], v[{d}:{d+3}], v[84:87], 0")
    a("s_nop 15")
    a.c("column sums: lanes 0 and 32 write 16 regs per fbl: RED[w][fbl][half][16] at LDS 32768")
    a(f"s_lshl_b32 s59, s{S_W}, 9")
    a("v_lshlrev_b32 v65, 6, v8")
    a("v_add_u32 v65, s59, v65")
    a("s_mov_b32 exec_lo, 1")
    a("s_mov_b32 exec_hi, 1")
    for fbl in range(4):
        for q in range(4):
            r = 96 + 16 * fbl + 4 * q
            a(f"ds_write_b128 v65, v[{r}:{r+3}] offset:{32768 + fbl*128 + q*16}")
    a("s_mov_b64 exec, -1")
    a("s_waitcnt lgkmcnt(0)")
    a("s_barrier")
    ldone = a.newlabel("K1_csdone")
    a(f"s_cmp_ge_u32 s{S_W}, 2")
    a(f"s_cbranch_scc1 {end}")
    a.c("threads 0..127: e = w*64+lane ; sum over 8 waves")
    a(f"s_lshl_b32 s59, s{S_W}, 8")
    a("v_lshlrev_b32 v65, 2, v0")
    a("v_add_u32 v65, s59, v65")
    for ww in range(8):
        a(f"ds_read_b32 v{68+ww}, v65 offset:{32768 + ww*512}")
    a("s_waitcnt lgkmcnt(0)")
    for ww in range(1, 8):
        a(f"v_add_f32 v68, v68, v{68+ww}")
    a.c("CSP + (kq*112 + 4fq)*128 + e*4")
    a("s_mul_i32 s58, s56, 112")
    a("s_lshl_b32 s59, s55, 2")
    a("s_add_u32 s58, s58, s59")
    a("s_lshl_b32 s58, s58, 7")
    a(f"s_add_u32 s58, s58, {CSP}")
    a(f"buffer_store_dword v68, v65, s[{SRD_WS}:{SRD_WS+3}], s58 offen")
    a(f"s_branch {end}")
    a.label(lwo)
    a("s_cmp_ge_u32 s2, 184")
    a(f"s_cbranch_scc1 {end}")
    a("s_sub_u32 s55, s2, 112")
    a("s_lshl_b32 s55, s55, 3")
    a(f"s_add_u32 s55, s55, s{S_W}")
    lwd = a.newlabel("K1_wd"); lgo = a.newlabel("K1_go")
    a("s_cmp_ge_u32 s55, 128")
    a(f"s_cbranch_scc1 {lwd}")
    mk_srd(a, SRD_B, P_WO, 512 * 1024)
    a(f"s_mov_b32 s60, {WOF}")
    a("s_mov_b32 s61, 32")
    a(f"s_branch {lgo}")
    a.label(lwd)
    a("s_sub_u32 s55, s55, 128")
    mk_srd(a, SRD_B, P_WD, 1792 * 1024)
    a(f"s_mov_b32 s60, {WDF}")
    a("s_mov_b32 s61, 112")
    a.label(lgo)
    a("s_lshr_b32 s56, s55, 2")
    a("s_and_b32 s57, s55, 3")
    a.c("voff = (lane>>4)*1024 + (lane&15)*16")
    a("v_lshlrev_b32 v63, 10, v2")
    a("v_lshl_add_u32 v63, v3, 4, v63")
    a("s_lshl_b32 s58, s56, 14")
    a("s_lshl_b32 s59, s57, 8")
    a("s_add_u32 s58, s58, s59")
    for i in range(4):
        a(f"s_add_u32 m0, s{SC}, {i*1024}")
        a(f"s_add_u32 s59, s58, {i*4096}")
        a(f"buffer_load_dwordx4 v63, s[{SRD_B}:{SRD_B+3}], s59 offen lds")
    a.c("tr addr = sc + row*256 + blk*32 + pi'*8 ; rd -> +1024 ; ct -> +64")
    a("v_lshlrev_b32 v64, 8, v62")
    a("v_lshl_add_u32 v64, v61, 5, v64")
    a("v_add_u32 v64, v64, v60")
    a(f"v_add_u32 v64, s{SC}, v64")
    a("s_waitcnt vmcnt(0)")
    for ct in range(4):
        d = 68 + 4 * ct
        a(f"ds_read_b64_tr_b16 v[{d}:{d+1}], v64 offset:{ct*64}")
        a(f"ds_read_b64_tr_b16 v[{d+2}:{d+3}], v64 offset:{ct*64 + 1024}")
    a.c("dest = base + ((4cq4+ct)*nsteps + s)*1024")
    a("s_lshl_b32 s58, s57, 2")
    a("s_mul_i32 s58, s58, s61")
    a("s_add_u32 s58, s58, s56")
    a("s_lshl_b32 s58, s58, 10")
    a("s_add_u32 s58, s58, s60")
    a("s_lshl_b32 s62, s61, 10")
    a("s_waitcnt lgkmcnt(0)")
    for ct in range(4):
        d = 68 + 4 * ct
        a(f"buffer_store_dwordx4 v[{d}:{d+3}], v6, s[{SRD_WS}:{SRD_WS+3}], s58 offen")
        if ct < 3:
            a("s_add_u32 s58, s58, s62")

def kernel(a, label, body, vgpr=256, sgpr=96):
    a.raw(f".globl {label}")
    a.raw(".p2align 8")
    a.raw(f".type {label},@function")
    a.raw(f"{label}:")
    end = f"{label}_end"
    prologue(a, end)
    body(a, end)
    a.label(end)
    a("s_endpgm")

def descriptor(a, label, vgpr=256, sgpr=96):
    a.raw(f".amdhsa_kernel {label}")
    a.raw(f"  .amdhsa_next_free_vgpr {vgpr}")
    a.raw(f"  .amdhsa_next_free_sgpr {sgpr}")
    a.raw(f"  .amdhsa_accum_offset {min(256, (vgpr + 3) // 4 * 4)}")
    a.raw("  .amdhsa_group_segment_fixed_size 0")
    a.raw("  .amdhsa_kernarg_size 96")
    a.raw("  .amdhsa_user_sgpr_count 2")
    a.raw("  .amdhsa_user_sgpr_kernarg_segment_ptr 1")
    a.raw("  .amdhsa_system_sgpr_workgroup_id_x 1")
    a.raw("  .amdhsa_float_denorm_mode_32 3")
    a.raw(".end_amdhsa_kernel")

HEADER = open(__file__.replace("gen.py", "header.txt")).read()

def build(kernels):
    a = Asm()
    a.raw(HEADER.rstrip("\n"))
    for (label, body, lds, vg) in kernels:
        a.raw(f"; @launch kernel={label} grid=(256,1,1) block=(512,1,1) lds={lds}")
    a.raw('.amdgcn_target "amdgcn-amd-amdhsa--gfx950"')
    a.raw(".text")
    for (label, body, lds, vg) in kernels:
        kernel(a, label, body)
    a.raw('.section .rodata,"a"')
    for (label, body, lds, vg) in kernels:
        a.raw(".p2align 6")
        descriptor(a, label, vg)
    return a.text()

if __name__ == "__main__":
    from kernels2 import KERNELS_REST
    ks = [("k1_prep_kernel", gen_k1, 163840, 256)] + KERNELS_REST
    n = int(sys.argv[2]) if len(sys.argv) > 2 else len(ks)
    open(sys.argv[1], "w").write(build(ks[:n]))
```

```python
class Asm:
    def __init__(self):
        self.L = []
        self.uid = 0
        self.vmq = []
        self.lgq = []
    def __call__(self, s=""):
        for ln in s.split("\n"):
            ln = ln.strip()
            if ln:
                self.L.append("    " + ln)
    def c(self, s):
        self.L.append("    ; " + s)
    def label(self, n):
        self.L.append(n + ":")
    def newlabel(self, p="L"):
        self.uid += 1
        return f"{p}_{self.uid}"
    def raw(self, s):
        self.L.append(s)
    def vm(self, instr, tag=None):
        self(instr); self.vmq.append(tag)
    def vm_wait(self, tag):
        tags = tag if isinstance(tag, (set, list)) else [tag]
        last = -1
        for i, t in enumerate(self.vmq):
            if t in tags: last = i
        if last < 0:
            assert getattr(self, "allow_missing", False) or tag in getattr(self, "vm_done", set()), f"vm tag {tag} not outstanding"
            return
        if not hasattr(self, "vm_done"): self.vm_done = set()
        for t in self.vmq[:last + 1]:
            if t is not None: self.vm_done.add(t)
        n = len(self.vmq) - 1 - last
        assert n <= 63, n
        self(f"s_waitcnt vmcnt({n})")
        self.vmq = self.vmq[last + 1:]
    def vm_wait_all(self):
        self("s_waitcnt vmcnt(0)"); self.vmq = []
    def vm_reset(self): self.vmq = []
    def lg(self, instr, tag=None):
        self(instr); self.lgq.append(tag)
    def lg_wait(self, tag):
        tags = tag if isinstance(tag, (set, list)) else [tag]
        last = -1
        for i, t in enumerate(self.lgq):
            if t in tags: last = i
        if last < 0: return
        n = len(self.lgq) - 1 - last
        if n > 15:
            n = 15
            self(f"s_waitcnt lgkmcnt({n})")
            self.lgq = self.lgq[len(self.lgq) - n:]
            return
        self(f"s_waitcnt lgkmcnt({n})")
        self.lgq = self.lgq[last + 1:]
    def lg_wait_all(self):
        self("s_waitcnt lgkmcnt(0)"); self.lgq = []
    def text(self):
        return "\n".join(self.L) + "\n"

def vr(a, n=1):
    return f"v{a}" if n == 1 else f"v[{a}:{a+n-1}]"
def sr(a, n=1):
    return f"s{a}" if n == 1 else f"s[{a}:{a+n-1}]"
```

```python
import sys
from asmlib import Asm, vr, sr

NAME = "sequential_preLN__grouped_kv_mqa__glu_gated_reglu__prompt"

QF   = 0x000000
OF   = 0x200000
HF   = 0x400000
KF   = 0x600000
VF   = 0x610000
KMAX = 0x620000
HST  = 0x630000
CSP  = 0x640000
WOF  = 0x680000
WDF  = 0x700000
WGF  = 0x900000
HHF  = 0xD00000
WS_USED = 0x1400000

QSCALE = 0.25 * 1.4426950408889634
SRD3 = "0x00020000"

def f32hex(x):
    import struct
    return "0x%08x" % struct.unpack("<I", struct.pack("<f", x))[0]

S_W, S_G, S_J, S_TBK = 4, 5, 6, 7
SRD_WS = 8
SRD_A = 12
P_X, P_WQ, P_WK, P_WV, P_WO, P_BX, P_WG, P_WU = 16, 18, 20, 22, 24, 26, 28, 30
P_WD, P_OUT, P_DBG, P_WS = 32, 34, 36, 38
SRD_B = 40
SRD_C = 44
SRD_D = 48
S_HQ, S_TQ = 52, 53

import os
PROFILE = os.environ.get("PROFILE", "0") == "1"
PROF_WAVE = int(os.environ.get("PROF_WAVE", "0"))
NSTAMP = [0]
def stamp(a):
    if not PROFILE: return
    k = NSTAMP[0]; NSTAMP[0] += 1
    assert k < 7
    a("s_waitcnt lgkmcnt(0)")
    a(f"s_memtime s[{82+2*k}:{83+2*k}]")
    a("s_waitcnt lgkmcnt(0)")

def mk_srd(a, q, p, nbytes):
    a(f"s_mov_b32 s{q}, s{p}")
    a(f"s_mov_b32 s{q+1}, s{p+1}")
    a(f"s_mov_b32 s{q+2}, {hex(nbytes)}")
    a(f"s_mov_b32 s{q+3}, {SRD3}")

def prologue(a, endlabel):
    a(f"s_cmp_ge_u32 s2, 256")
    a(f"s_cbranch_scc1 {endlabel}")
    a("s_load_dwordx16 s[16:31], s[0:1], 0")
    a("s_load_dwordx8 s[32:39], s[0:1], 64")
    a("v_lshrrev_b32 v1, 6, v0")
    a("v_and_b32 v0, 63, v0")
    a(f"v_readfirstlane_b32 s{S_W}, v1")
    a("s_and_b32 s3, s2, 7")
    a(f"s_lshr_b32 s{S_G}, s2, 3")
    a(f"s_and_b32 s{S_J}, s{S_G}, 15")
    a(f"s_lshr_b32 s{S_G}, s{S_G}, 4")
    a("s_lshl_b32 s3, s3, 1")
    a(f"s_add_u32 s{S_G}, s{S_G}, s3")
    a(f"s_lshr_b32 s{S_TQ}, s{S_J}, 2")
    a(f"s_and_b32 s{S_HQ}, s{S_J}, 3")
    a(f"s_lshl_b32 s{S_TBK}, s{S_G}, 2")
    a(f"s_add_u32 s{S_TBK}, s{S_TBK}, s{S_TQ}")
    a("s_waitcnt lgkmcnt(0)")
    mk_srd(a, SRD_WS, P_WS, globals()['WS_USED'])

def dpp_sum16(a, v, op="v_add_f32"):
    for sh in (8, 4, 2, 1):
        a("s_nop 1")
        a(f"{op}_dpp v{v}, v{v}, v{v} row_ror:{sh} row_mask:0xf bank_mask:0xf")

def xhalf(a, v, t, op="v_add_f32"):
    a(f"v_mov_b32 v{t}, v{v}")
    a("s_nop 1")
    a(f"v_permlane32_swap_b32 v{v}, v{t}")
    a("s_nop 1")
    a(f"{op} v{v}, v{v}, v{t}")

def xrow16(a, v, t, op="v_max_f32"):
    a(f"v_mov_b32 v{t}, v{v}")
    a("s_nop 1")
    a(f"v_permlane16_swap_b32 v{v}, v{t}")
    a("s_nop 1")
    a(f"{op} v{v}, v{v}, v{t}")

L1_XN, L1_WQ, L1_WK, L1_WV = 0, 32768, 131072, 147456

def gen_k1(a, end):
    mk_srd(a, SRD_A, P_X, 2048 * 1024)
    mk_srd(a, SRD_B, P_WQ, 512 * 1024)
    a.c("x row offset: (tbk*32 + 4w + (lane>>4))*1024 + (lane&15)*16")
    a(f"s_lshl_b32 s54, s{S_TBK}, 5")
    a(f"s_lshl_b32 s55, s{S_W}, 2")
    a("s_add_u32 s54, s54, s55")
    a("v_lshrrev_b32 v2, 4, v0")
    a("v_and_b32 v3, 15, v0")
    a("v_add_u32 v4, s54, v2")
    a("v_lshlrev_b32 v4, 10, v4")
    a("v_lshl_add_u32 v4, v3, 4, v4")
    a.vm_reset()
    for i in range(4):
        a.vm(f"buffer_load_dwordx4 v[{16+4*i}:{19+4*i}], v4, s[{SRD_A}:{SRD_A+3}], 0 offen offset:{256*i}", "x")
    a.c("voffWQ = (lane>>4)*1024 + hq*256 + (((lane&15) ^ ((lane>>4)<<1))*16)")
    a("v_lshlrev_b32 v5, 1, v2")
    a("v_xor_b32 v5, v3, v5")
    a("v_lshlrev_b32 v5, 4, v5")
    a("v_lshl_add_u32 v5, v2, 10, v5")
    a(f"s_lshl_b32 s55, s{S_HQ}, 8")
    a("v_add_u32 v5, s55, v5")
    a(f"s_lshl_b32 s56, s{S_W}, 12")
    a(f"s_add_u32 s56, s56, {L1_WQ}")
    a(f"s_lshl_b32 s57, s{S_W}, 14")
    def wq_dma(q):
        for i in range(4):
            a(f"s_add_u32 m0, s56, {(q % 3) * 32768 + i * 1024}")
            a(f"s_add_u32 s58, s57, {(q * 128 + 4 * i) * 1024}")
            a.vm(f"buffer_load_dwordx4 v5, s[{SRD_B}:{SRD_B+3}], s58 offen lds", f"wq{q}")
    for q in range(3):
        wq_dma(q)
    a("v_lshlrev_b32 v6, 4, v0")
    lskip = a.newlabel("K1_nokv")
    a(f"s_cmp_lg_u32 s{S_HQ}, 0")
    a(f"s_cbranch_scc1 {lskip}")
    mk_srd(a, SRD_C, P_WK, 16384)
    mk_srd(a, SRD_D, P_WV, 16384)
    a(f"s_lshl_b32 s58, s{S_W}, 11")
    for i in range(2):
        a(f"s_add_u32 s59, s58, {i*1024}")
        a(f"s_add_u32 m0, s59, {L1_WK}")
        a("s_nop 0")
        a(f"buffer_load_dwordx4 v6, s[{SRD_C}:{SRD_C+3}], s59 offen lds")
        a(f"s_add_u32 m0, s59, {L1_WV}")
        a("s_nop 0")
        a(f"buffer_load_dwordx4 v6, s[{SRD_D}:{SRD_D+3}], s59 offen lds")
    a("s_waitcnt vmcnt(16)")
    lj = a.newlabel("K1_x")
    a(f"s_branch {lj}")
    a.label(lskip)
    a("s_waitcnt vmcnt(12)")
    a.label(lj)
    stamp(a)
    a("s_mov_b32 s60, 0x3f803f80")
    a("v_mov_b32 v32, 0")
    a("v_mov_b32 v33, 0")
    for i in range(16):
        a(f"v_dot2_f32_bf16 v{32 + (i & 1)}, v{16+i}, s60, v{32 + (i & 1)}")
    a("s_nop 2")
    a("v_add_f32 v32, v32, v33")
    dpp_sum16(a, 32)
    a(f"v_mul_f32 v34, {f32hex(-1.0/512)}, v32")
    a("v_mov_b32 v35, v34")
    a("s_mov_b32 s61, 0xffff0000")
    for i in range(16):
        a(f"v_lshlrev_b32 v{64+2*i}, 16, v{16+i}")
        a(f"v_and_b32 v{65+2*i}, s61, v{16+i}")
    for i in range(16):
        a(f"v_pk_add_f32 v[{64+2*i}:{65+2*i}], v[{64+2*i}:{65+2*i}], v[34:35]")
    a("v_pk_mul_f32 v[36:37], v[64:65], v[64:65]")
    a("v_pk_mul_f32 v[38:39], v[66:67], v[66:67]")
    for i in range(2, 16):
        r = 36 + 2 * (i & 1)
        a(f"v_pk_fma_f32 v[{r}:{r+1}], v[{64+2*i}:{65+2*i}], v[{64+2*i}:{65+2*i}], v[{r}:{r+1}]")
    a("v_pk_add_f32 v[36:37], v[36:37], v[38:39]")
    a("v_add_f32 v36, v36, v37")
    dpp_sum16(a, 36)
    a(f"v_mov_b32 v37, {f32hex(1e-5)}")
    a(f"v_fmac_f32 v37, {f32hex(1.0/512)}, v36")
    a("v_rsq_f32 v38, v37")
    a("s_nop 0")
    a("v_mov_b32 v39, v38")
    for i in range(16):
        a(f"v_pk_mul_f32 v[{64+2*i}:{65+2*i}], v[{64+2*i}:{65+2*i}], v[38:39]")
    for i in range(16):
        a(f"v_cvt_pk_bf16_f32 v{16+i}, v{64+2*i}, v{65+2*i}")
    a.c("XN write addr = (c>>1)*1024 + (c&1)*512 + ((tl ^ (c&7))*16) + i*8192 ; tl = 4w + (lane>>4)")
    a(f"s_lshl_b32 s55, s{S_W}, 2")
    a("v_add_u32 v7, s55, v2")
    a("v_and_b32 v8, 7, v3")
    a("v_xor_b32 v7, v7, v8")
    a("v_lshlrev_b32 v7, 4, v7")
    a("v_lshrrev_b32 v8, 1, v3")
    a("v_lshl_add_u32 v7, v8, 10, v7")
    a("v_and_b32 v8, 1, v3")
    a("v_lshl_add_u32 v7, v8, 9, v7")
    for i in range(4):
        a(f"ds_write_b128 v7, v[{16+4*i}:{19+4*i}] offset:{L1_XN + i*8192}")
    a.c("B-frag addresses xa[m] = half*512 + ((token ^ (2m+half))*16)")
    a("v_lshrrev_b32 v8, 5, v0")
    a("v_and_b32 v9, 31, v0")
    for m in range(4):
        a(f"v_add_u32 v10, {2*m}, v8")
        a("v_xor_b32 v10, v9, v10")
        a("v_lshlrev_b32 v10, 4, v10")
        a(f"v_lshl_add_u32 v{40+m}, v8, 9, v10")
    a.c("A-frag addresses")
    a("v_lshrrev_b32 v10, 2, v3")
    a("v_and_b32 v11, 3, v3")
    a("v_lshl_add_u32 v12, v8, 3, v10")
    a(f"s_lshl_b32 s55, s{S_W}, 1")
    a("v_lshrrev_b32 v13, 1, v11")
    a("v_add_u32 v13, s55, v13")
    a("v_lshlrev_b32 v14, 1, v10")
    a("v_xor_b32 v13, v13, v14")
    a("v_lshlrev_b32 v13, 4, v13")
    a("v_lshl_add_u32 v13, v12, 8, v13")
    a("v_and_b32 v14, 1, v11")
    a("v_lshl_add_u32 v13, v14, 3, v13")
    a(f"v_add_u32 v44, {L1_WQ}, v13")
    a("v_lshlrev_b32 v13, 5, v12")
    a("v_lshl_add_u32 v13, v11, 3, v13")
    a(f"s_mul_i32 s55, s{S_W}, {L1_WV - L1_WK}")
    a(f"s_add_u32 s55, s55, {L1_WK}")
    a("v_add_u32 v13, s55, v13")
    a(f"s_cmp_eq_u32 s{S_HQ}, 0")
    a("s_cselect_b32 s62, 1, 0")
    a(f"s_cmp_lt_u32 s{S_W}, 2")
    a("s_cselect_b32 s63, s62, 0")
    a("s_cmp_eq_u32 s63, 1")
    a("s_cselect_b32 s64, 0xffff0000, 0")
    a("s_mov_b32 s65, s64")
    a("v_cndmask_b32 v44, v44, v13, s[64:65]")
    a("v_mov_b32 v14, 1024")
    a("v_mov_b32 v15, 128")
    a("v_cndmask_b32 v14, v14, v15, s[64:65]")
    a("v_add_u32 v45, v44, v14")
    a("v_mov_b32 v14, 4096")
    a("v_mov_b32 v15, 512")
    a("v_cndmask_b32 v46, v14, v15, s[64:65]")
    a("v_mov_b32 v14, 98304")
    a("v_cndmask_b32 v47, v14, 0, s[64:65]")
    stamp(a)
    a("s_waitcnt vmcnt(0) lgkmcnt(0)")
    a.vm_reset()
    stamp(a)
    a("s_barrier")
    stamp(a)
    ACC = 96
    AB = [112, 116, 120]; BB = [124, 128, 132]
    def issue(s):
        A = AB[s % 3]; B = BB[s % 3]
        a.lg(f"ds_read_b64_tr_b16 v[{A}:{A+1}], v44", s)
        a.lg(f"ds_read_b64_tr_b16 v[{A+2}:{A+3}], v45", s)
        a.lg(f"ds_read_b128 v[{B}:{B+3}], v{40 + (s & 3)} offset:{L1_XN + s*1024}", s)
        if s == 23:
            a("v_add_u32 v44, v44, v46"); a("v_add_u32 v45, v45, v46")
            a("v_sub_u32 v44, v44, v47"); a("v_sub_u32 v45, v45, v47")
        else:
            a("v_add_u32 v44, v44, v46"); a("v_add_u32 v45, v45, v46")
    a.lgq = []
    issue(0); issue(1)
    for s in range(32):
        if s + 2 < 32:
            if s + 2 == 24:
                a("s_waitcnt vmcnt(0)")
                a.vm_reset()
                a("s_barrier")
            issue(s + 2)
        a.lg_wait(s)
        A = AB[s % 3]; B = BB[s % 3]
        c = "0" if s == 0 else f"v[{ACC}:{ACC+15}]"
        a(f"v_mfma_f32_32x32x16_bf16 v[{ACC}:{ACC+15}], v[{A}:{A+3}], v[{B}:{B+3}], {c}")
        if s == 7:
            a("s_barrier")
            wq_dma(3)
    stamp(a)
    a("s_nop 15")
    a(f"s_mov_b32 s55, {f32hex(QSCALE)}")
    for r in range(8):
        a(f"v_mul_f32 v{64+r}, s55, v{ACC+r}")
    for r in range(4):
        a(f"v_cvt_pk_bf16_f32 v{72+r}, v{64+2*r}, v{65+2*r}")
    a.c("QF + (tbk*32 + 8hq + w)*1024 + lane*16")
    a(f"s_lshl_b32 s55, s{S_TBK}, 5")
    a(f"s_lshl_b32 s56, s{S_HQ}, 3")
    a("s_add_u32 s55, s55, s56")
    a(f"s_add_u32 s55, s55, s{S_W}")
    a("s_lshl_b32 s55, s55, 10")
    a(f"s_add_u32 s55, s55, {QF}")
    a(f"buffer_store_dwordx4 v[72:75], v6, s[{SRD_WS}:{SRD_WS+3}], s55 offen")
    lkv = a.newlabel("K1_kvdone"); lv = a.newlabel("K1_v")
    a(f"s_cmp_lg_u32 s{S_HQ}, 0")
    a(f"s_cbranch_scc1 {lkv}")
    a(f"s_cmp_eq_u32 s{S_W}, 1")
    a(f"s_cbranch_scc1 {lv}")
    a(f"s_cmp_lg_u32 s{S_W}, 0")
    a(f"s_cbranch_scc1 {lkv}")
    for r in range(4):
        a(f"v_cvt_pk_bf16_f32 v{76+r}, v{ACC+8+2*r}, v{ACC+9+2*r}")
    a(f"s_lshl_b32 s55, s{S_TBK}, 10")
    a(f"s_add_u32 s55, s55, {KF}")
    a(f"buffer_store_dwordx4 v[76:79], v6, s[{SRD_WS}:{SRD_WS+3}], s55 offen")
    a("v_mov_b32 v80, 0")
    for r in range(4):
        a(f"v_dot2_f32_bf16 v80, v{76+r}, v{76+r}, v80")
    a("s_nop 2")
    xhalf(a, 80, 81, "v_add_f32")
    dpp_sum16(a, 80, "v_max_f32")
    xrow16(a, 80, 81, "v_max_f32")
    a(f"s_lshl_b32 s55, s{S_TBK}, 2")
    a(f"s_add_u32 s55, s55, {KMAX}")
    a("v_mov_b32 v82, 0")
    a("s_mov_b64 exec, 1")
    a(f"buffer_store_dword v80, v82, s[{SRD_WS}:{SRD_WS+3}], s55 offen")
    a("s_mov_b64 exec, -1")
    a(f"s_branch {lkv}")
    a.label(lv)
    for r in range(4):
        a(f"v_cvt_pk_bf16_f32 v{76+r}, v{ACC+8+2*r}, v{ACC+9+2*r}")
    a("v_lshlrev_b32 v80, 5, v9")
    a("v_lshl_add_u32 v80, v8, 3, v80")
    a(f"v_add_u32 v80, {L1_WV}, v80")
    a(f"ds_write_b64 v80, v[76:77]")
    a(f"ds_write_b64 v80, v[78:79] offset:16")
    a.c("tr read: token = 16c2 + 8rd + 4half + (i>>2), colgroup pi'(i&3)")
    a("v_lshl_add_u32 v81, v8, 2, v10")
    a("v_lshlrev_b32 v81, 5, v81")
    a("v_and_b32 v82, 1, v11")
    a("v_lshlrev_b32 v82, 1, v82")
    a("v_lshrrev_b32 v83, 1, v11")
    a("v_add_u32 v82, v82, v83")
    a("v_lshl_add_u32 v81, v82, 3, v81")
    a(f"v_add_u32 v81, {L1_WV}, v81")
    a("s_waitcnt lgkmcnt(0)")
    for c2 in range(2):
        for rd in range(2):
            d = 84 + 4 * c2 + 2 * rd
            a(f"ds_read_b64_tr_b16 v[{d}:{d+1}], v81 offset:{(16*c2 + 8*rd) * 32}")
    a.c("VF + (tbk*2 + c2)*512 + (half*16 + i)*16")
    a("v_lshl_add_u32 v82, v8, 4, v3")
    a("v_lshlrev_b32 v82, 4, v82")
    a(f"s_lshl_b32 s55, s{S_TBK}, 10")
    a(f"s_add_u32 s55, s55, {VF}")
    a("s_waitcnt lgkmcnt(0)")
    a("s_mov_b32 exec_lo, 0x0000ffff")
    a("s_mov_b32 exec_hi, 0x0000ffff")
    a(f"buffer_store_dwordx4 v[84:87], v82, s[{SRD_WS}:{SRD_WS+3}], s55 offen")
    a(f"buffer_store_dwordx4 v[88:91], v82, s[{SRD_WS}:{SRD_WS+3}], s55 offen offset:512")
    a("s_mov_b64 exec, -1")
    a.label(lkv)
    a("s_barrier")
    stamp(a)
    gen_wjobs(a, end)

def gen_wjobs(a, end):
    SC = 54
    a(f"s_lshl_b32 s{SC}, s{S_W}, 12")
    a.c("pi'(cg)*8 -> v60 ; blk -> v61")
    a("v_and_b32 v60, 1, v11")
    a("v_lshlrev_b32 v60, 1, v60")
    a("v_lshrrev_b32 v61, 1, v11")
    a("v_add_u32 v60, v60, v61")
    a("v_lshlrev_b32 v60, 3, v60")
    a("v_and_b32 v61, 1, v2")
    a("v_lshl_add_u32 v62, v8, 3, v10")
    lwo = a.newlabel("K1_wod")
    a("s_cmp_ge_u32 s2, 112")
    a(f"s_cbranch_scc1 {lwo}")
    a("s_lshr_b32 s55, s2, 2")
    a("s_and_b32 s56, s2, 3")
    a("s_lshl_b32 s57, s56, 3")
    a(f"s_add_u32 s57, s57, s{S_W}")
    mk_srd(a, SRD_B, P_WG, 512 * 3584)
    mk_srd(a, SRD_C, P_WU, 512 * 3584)
    a.c("voff = (lane>>3)*3584 + (lane&7)*16")
    a("v_lshrrev_b32 v63, 3, v0")
    a("s_mov_b32 s58, 3584")
    a("v_mul_lo_u32 v63, v63, s58")
    a("v_and_b32 v64, 7, v0")
    a("v_lshl_add_u32 v63, v64, 4, v63")
    a("s_mul_i32 s58, s57, 57344")
    a("s_lshl_b32 s59, s55, 7")
    a("s_add_u32 s58, s58, s59")
    for i in range(2):
        a(f"s_add_u32 m0, s{SC}, {i*1024}")
        a(f"s_add_u32 s59, s58, {i*8*3584}")
        a(f"buffer_load_dwordx4 v63, s[{SRD_B}:{SRD_B+3}], s59 offen lds")
        a(f"s_add_u32 m0, s{SC}, {2048 + i*1024}")
        a("s_nop 0")
        a(f"buffer_load_dwordx4 v63, s[{SRD_C}:{SRD_C+3}], s59 offen lds")
    a.c("tr addr = sc + blk*2048 + row*128 + pi'*8 ; rd -> +512 ; fbl -> +32")
    a("v_lshlrev_b32 v64, 7, v62")
    a("v_lshl_add_u32 v64, v61, 11, v64")
    a("v_add_u32 v64, v64, v60")
    a(f"v_add_u32 v64, s{SC}, v64")
    a("s_waitcnt vmcnt(0)")
    for fbl in range(4):
        d = 68 + 4 * fbl
        a(f"ds_read_b64_tr_b16 v[{d}:{d+1}], v64 offset:{fbl*32}")
        a(f"ds_read_b64_tr_b16 v[{d+2}:{d+3}], v64 offset:{fbl*32 + 512}")
    a.c("dest = WGF + ((4fq+fbl)*32 + s)*1024")
    a("s_lshl_b32 s58, s55, 7")
    a("s_add_u32 s58, s58, s57")
    a("s_lshl_b32 s58, s58, 10")
    a(f"s_add_u32 s58, s58, {WGF}")
    for r in range(4):
        a(f"v_mov_b32 v{84+r}, 0x3f803f80")
    a("s_waitcnt lgkmcnt(0)")
    for fbl in range(4):
        d = 68 + 4 * fbl
        a(f"s_add_u32 s59, s58, {fbl*32768}")
        a(f"buffer_store_dwordx4 v[{d}:{d+3}], v6, s[{SRD_WS}:{SRD_WS+3}], s59 offen")
    for fbl in range(4):
        d = 68 + 4 * fbl
        a(f"v_mfma_f32_32x32x16_bf16 v[{96+16*fbl}:{111+16*fbl}], v[{d}:{d+3}], v[84:87], 0")
    a("s_nop 15")
    a.c("column sums: lanes 0 and 32 write 16 regs per fbl: RED[w][fbl][half][16] at LDS 32768")
    a(f"s_lshl_b32 s59, s{S_W}, 9")
    a("v_lshlrev_b32 v65, 6, v8")
    a("v_add_u32 v65, s59, v65")
    a("s_mov_b32 exec_lo, 1")
    a("s_mov_b32 exec_hi, 1")
    for fbl in range(4):
        for q in range(4):
            r = 96 + 16 * fbl + 4 * q
            a(f"ds_write_b128 v65, v[{r}:{r+3}] offset:{32768 + fbl*128 + q*16}")
    a("s_mov_b64 exec, -1")
    a("s_waitcnt lgkmcnt(0)")
    a("s_barrier")
    ldone = a.newlabel("K1_csdone")
    a(f"s_cmp_ge_u32 s{S_W}, 2")
    a(f"s_cbranch_scc1 {end}")
    a.c("threads 0..127: e = w*64+lane ; sum over 8 waves")
    a(f"s_lshl_b32 s59, s{S_W}, 8")
    a("v_lshlrev_b32 v65, 2, v0")
    a("v_add_u32 v65, s59, v65")
    for ww in range(8):
        a(f"ds_read_b32 v{68+ww}, v65 offset:{32768 + ww*512}")
    a("s_waitcnt lgkmcnt(0)")
    for ww in range(1, 8):
        a(f"v_add_f32 v68, v68, v{68+ww}")
    a.c("CSP + (kq*112 + 4fq)*128 + e*4")
    a("s_mul_i32 s58, s56, 112")
    a("s_lshl_b32 s59, s55, 2")
    a("s_add_u32 s58, s58, s59")
    a("s_lshl_b32 s58, s58, 7")
    a(f"s_add_u32 s58, s58, {CSP}")
    a(f"buffer_store_dword v68, v65, s[{SRD_WS}:{SRD_WS+3}], s58 offen")
    a(f"s_branch {end}")
    a.label(lwo)
    a("s_cmp_ge_u32 s2, 184")
    a(f"s_cbranch_scc1 {end}")
    a("s_sub_u32 s55, s2, 112")
    a("s_lshl_b32 s55, s55, 3")
    a(f"s_add_u32 s55, s55, s{S_W}")
    lwd = a.newlabel("K1_wd"); lgo = a.newlabel("K1_go")
    a("s_cmp_ge_u32 s55, 128")
    a(f"s_cbranch_scc1 {lwd}")
    mk_srd(a, SRD_B, P_WO, 512 * 1024)
    a(f"s_mov_b32 s60, {WOF}")
    a("s_mov_b32 s61, 32")
    a(f"s_branch {lgo}")
    a.label(lwd)
    a("s_sub_u32 s55, s55, 128")
    mk_srd(a, SRD_B, P_WD, 1792 * 1024)
    a(f"s_mov_b32 s60, {WDF}")
    a("s_mov_b32 s61, 112")
    a.label(lgo)
    a("s_lshr_b32 s56, s55, 2")
    a("s_and_b32 s57, s55, 3")
    a.c("voff = (lane>>4)*1024 + (lane&15)*16")
    a("v_lshlrev_b32 v63, 10, v2")
    a("v_lshl_add_u32 v63, v3, 4, v63")
    a("s_lshl_b32 s58, s56, 14")
    a("s_lshl_b32 s59, s57, 8")
    a("s_add_u32 s58, s58, s59")
    for i in range(4):
        a(f"s_add_u32 m0, s{SC}, {i*1024}")
        a(f"s_add_u32 s59, s58, {i*4096}")
        a(f"buffer_load_dwordx4 v63, s[{SRD_B}:{SRD_B+3}], s59 offen lds")
    a.c("tr addr = sc + row*256 + blk*32 + pi'*8 ; rd -> +1024 ; ct -> +64")
    a("v_lshlrev_b32 v64, 8, v62")
    a("v_lshl_add_u32 v64, v61, 5, v64")
    a("v_add_u32 v64, v64, v60")
    a(f"v_add_u32 v64, s{SC}, v64")
    a("s_waitcnt vmcnt(0)")
    for ct in range(4):
        d = 68 + 4 * ct
        a(f"ds_read_b64_tr_b16 v[{d}:{d+1}], v64 offset:{ct*64}")
        a(f"ds_read_b64_tr_b16 v[{d+2}:{d+3}], v64 offset:{ct*64 + 1024}")
    a.c("dest = base + ((4cq4+ct)*nsteps + s)*1024")
    a("s_lshl_b32 s58, s57, 2")
    a("s_mul_i32 s58, s58, s61")
    a("s_add_u32 s58, s58, s56")
    a("s_lshl_b32 s58, s58, 10")
    a("s_add_u32 s58, s58, s60")
    a("s_lshl_b32 s62, s61, 10")
    a("s_waitcnt lgkmcnt(0)")
    for ct in range(4):
        d = 68 + 4 * ct
        a(f"buffer_store_dwordx4 v[{d}:{d+3}], v6, s[{SRD_WS}:{SRD_WS+3}], s58 offen")
        if ct < 3:
            a("s_add_u32 s58, s58, s62")

def kernel(a, label, body, vgpr=256, sgpr=96):
    a.raw(f".globl {label}")
    a.raw(".p2align 8")
    a.raw(f".type {label},@function")
    a.raw(f"{label}:")
    end = f"{label}_end"
    NSTAMP[0] = 0
    if PROFILE:
        a("s_memtime s[80:81]")
        a("s_memrealtime s[96:97]")
        for k in range(7):
            a(f"s_mov_b32 s{82+2*k}, 0")
    prologue(a, f"{label}_fin")
    body(a, end)
    a.label(end)
    if PROFILE:
        fin = f"{label}_fin"
        a("s_cmp_ge_u32 s2, 8")
        a(f"s_cbranch_scc1 {fin}")
        a(f"s_cmp_lg_u32 s{S_W}, {PROF_WAVE}")
        a(f"s_cbranch_scc1 {fin}")
        a("s_waitcnt vmcnt(0) lgkmcnt(0)")
        a("s_memtime s[98:99]")
        a("s_memrealtime s[100:101]")
        a("s_waitcnt lgkmcnt(0)")
        for k in range(6):
            a(f"s_sub_u32 s{82+2*k}, s{82+2*k}, s80")
            a(f"v_mov_b32 v{k}, s{82+2*k}")
        a("s_sub_u32 s98, s98, s80")
        a("s_sub_u32 s100, s100, s96")
        a("v_mov_b32 v6, s98")
        a("v_mov_b32 v7, s100")
        mk_srd(a, 76, P_DBG, 256)
        a("s_lshl_b32 s84, s2, 5")
        a("v_mov_b32 v8, s84")
        a("s_mov_b64 exec, 1")
        a("buffer_store_dwordx4 v[0:3], v8, s[76:79], 0 offen")
        a("buffer_store_dwordx4 v[4:7], v8, s[76:79], 0 offen offset:16")
    a.label(f"{label}_fin")
    a("s_endpgm")

def descriptor(a, label, vgpr=256, sgpr=102):
    a.raw(f".amdhsa_kernel {label}")
    a.raw(f"  .amdhsa_next_free_vgpr {vgpr}")
    a.raw(f"  .amdhsa_next_free_sgpr {sgpr}")
    a.raw(f"  .amdhsa_accum_offset {min(256, (vgpr + 3) // 4 * 4)}")
    a.raw("  .amdhsa_group_segment_fixed_size 0")
    a.raw("  .amdhsa_kernarg_size 96")
    a.raw("  .amdhsa_user_sgpr_count 2")
    a.raw("  .amdhsa_user_sgpr_kernarg_segment_ptr 1")
    a.raw("  .amdhsa_system_sgpr_workgroup_id_x 1")
    a.raw("  .amdhsa_float_denorm_mode_32 3")
    a.raw(".end_amdhsa_kernel")

HEADER = open(__file__.replace("gen.py", "header.txt")).read()

def build(kernels):
    a = Asm()
    a.raw(HEADER.rstrip("\n"))
    for (label, body, lds, vg) in kernels:
        a.raw(f"; @launch kernel={label} grid=(256,1,1) block=(512,1,1) lds={lds}")
    a.raw('.amdgcn_target "amdgcn-amd-amdhsa--gfx950"')
    a.raw(".text")
    for (label, body, lds, vg) in kernels:
        kernel(a, label, body)
    a.raw('.section .rodata,"a"')
    for (label, body, lds, vg) in kernels:
        a.raw(".p2align 6")
        descriptor(a, label, vg)
    return a.text()
```

```python
from asmlib import Asm
import gen as G
from gen import (S_W, S_G, S_J, S_TBK, S_HQ, S_TQ, SRD_WS, SRD_A, SRD_B, SRD_C, SRD_D, mk_srd, f32hex,
                 dpp_sum16, xhalf, xrow16, QF, OF, HF, KF, VF, KMAX, HST, CSP, WOF, WDF, WGF, HHF,
                 P_X, P_OUT, stamp)
WS = f"s[{SRD_WS}:{SRD_WS+3}]"

A_Q, A_O, A_S, A_P = 4, 8, [24, 40], 56
A_K = [64, 68]
A_V = [[72, 76], [80, 84]]
A_VK, A_VV = 88, 89
A_NEG = 96
BOUND2 = 1600.0

def mfma(a, d, A, B, c):
    cs = "0" if c is None else f"v[{c}:{c+15}]"
    a(f"v_mfma_f32_32x32x16_bf16 v[{d}:{d+15}], v[{A}:{A+3}], v[{B}:{B+3}], {cs}")

def attn_tile(a, p):
    b = p & 1; nb = b ^ 1
    S = A_S[b]
    def ex(r): a(f"v_exp_f32 v{S+r}, v{S+r}")
    def cv(k): a(f"v_cvt_pk_bf16_f32 v{A_P+k}, v{S+2*k}, v{S+2*k+1}")
    a("s_waitcnt lgkmcnt(0)")
    mfma(a, A_S[nb], A_K[nb], A_Q, None)
    a(f"ds_read_b128 v[{A_K[b]}:{A_K[b]+3}], v{A_VK} offset:{(p+2)*1024}")
    ex(0); ex(1); ex(2); ex(3)
    cv(0)
    mfma(a, A_O, A_V[1][nb], A_P + 4, A_O)
    a("s_mov_b64 exec, s[70:71]")
    a(f"ds_read_b128 v[{A_V[0][nb]}:{A_V[0][nb]+3}], v{A_VV} offset:{(p+1)*1024}")
    a(f"ds_read_b128 v[{A_V[1][nb]}:{A_V[1][nb]+3}], v{A_VV} offset:{(p+1)*1024 + 512}")
    a("s_mov_b64 exec, -1")
    ex(4); cv(1); ex(5); ex(6); ex(7); cv(2); ex(8); cv(3)
    ex(9); ex(10); ex(11)
    mfma(a, A_O, A_V[0][b], A_P, A_O)
    cv(4); ex(12); cv(5); ex(13); ex(14); ex(15); cv(6)
    a("s_nop 0")
    cv(7)

def gen_k2(a, end):
    a("v_lshlrev_b32 v1, 4, v0")
    a.c("Q frag: QF + (tbk*32 + 8hq + w)*1024")
    a(f"s_lshl_b32 s55, s{S_TBK}, 5")
    a(f"s_lshl_b32 s56, s{S_HQ}, 3")
    a("s_add_u32 s55, s55, s56")
    a(f"s_add_u32 s55, s55, s{S_W}")
    a("s_lshl_b32 s54, s55, 10")
    a(f"s_add_u32 s55, s54, {QF}")
    a(f"buffer_load_dwordx4 v[{A_Q}:{A_Q+3}], v1, {WS}, s55 offen")
    a("v_lshlrev_b32 v2, 2, v0")
    a(f"s_mov_b32 s55, {KMAX}")
    a(f"buffer_load_dword v3, v2, {WS}, s55 offen")
    a.c("K/V DMA: stage st, wave w: tiles 16st+2w, +1")
    a(f"s_lshl_b32 s56, s{S_W}, 11")
    for st in range(4):
        a(f"s_add_u32 s57, s56, {st*16384}")
        a("s_mov_b32 m0, s57")
        a(f"s_add_u32 s58, s57, {KF}")
        a(f"buffer_load_dwordx4 v1, {WS}, s58 offen lds")
        a(f"buffer_load_dwordx4 v1, {WS}, s58 offen offset:1024 lds")
        a(f"s_add_u32 m0, s57, 65536")
        a(f"s_add_u32 s58, s57, {VF}")
        a(f"buffer_load_dwordx4 v1, {WS}, s58 offen lds")
        a(f"buffer_load_dwordx4 v1, {WS}, s58 offen offset:1024 lds")
    a("s_mov_b32 s70, 0x0000ffff")
    a("s_mov_b32 s71, 0x0000ffff")
    for r in range(16):
        a(f"v_mov_b32 v{A_O+r}, 0")
        a(f"v_mov_b32 v{72+r}, 0x3f803f80")
    for r in range(8):
        a(f"v_mov_b32 v{A_P+r}, 0")
    a(f"v_mov_b32 v{A_VK}, v1")
    a.c("vV = 65536 + (half*16 + (lane&15))*16")
    a("v_lshrrev_b32 v90, 5, v0")
    a("v_and_b32 v91, 15, v0")
    a("v_lshl_add_u32 v90, v90, 4, v91")
    a("v_lshlrev_b32 v90, 4, v90")
    a(f"v_add_u32 v{A_VV}, 65536, v90")
    stamp(a)
    a("s_waitcnt vmcnt(16)")
    stamp(a)
    a("v_mov_b32 v90, 0")
    for r in range(4):
        a(f"v_dot2_f32_bf16 v90, v{A_Q+r}, v{A_Q+r}, v90")
    dpp_sum16(a, 3, "v_max_f32")
    xrow16(a, 3, 91, "v_max_f32")
    xhalf(a, 3, 91, "v_max_f32")
    xhalf(a, 90, 91, "v_add_f32")
    a("v_mul_f32 v90, v90, v3")
    a(f"v_mov_b32 v91, {f32hex(BOUND2)}")
    a("v_cmp_gt_f32 vcc, v90, v91")
    lslow = a.newlabel("K2_slow"); lepi = a.newlabel("K2_epi")
    a("s_nop 4")
    a(f"s_cbranch_vccnz {lslow}")
    a("s_waitcnt vmcnt(12)")
    stamp(a)
    a("s_barrier")
    stamp(a)
    a(f"ds_read_b128 v[{A_K[0]}:{A_K[0]+3}], v{A_VK}")
    a(f"ds_read_b128 v[{A_K[1]}:{A_K[1]+3}], v{A_VK} offset:1024")
    a("s_mov_b64 exec, s[70:71]")
    a(f"ds_read_b128 v[{A_V[0][0]}:{A_V[0][0]+3}], v{A_VV}")
    a(f"ds_read_b128 v[{A_V[1][0]}:{A_V[1][0]+3}], v{A_VV} offset:512")
    a("s_mov_b64 exec, -1")
    a("s_waitcnt lgkmcnt(0)")
    mfma(a, A_S[0], A_K[0], A_Q, None)
    a("s_mov_b32 s72, 0")
    a("s_nop 15")
    lloop = a.newlabel("K2_loop")
    a.label(lloop)
    for p in range(16):
        if p == 14:
            w8 = a.newlabel("K2_w8"); w0 = a.newlabel("K2_w0"); wd = a.newlabel("K2_wd")
            a("s_cmp_lt_u32 s72, 2")
            a(f"s_cbranch_scc0 {w0}")
            a("s_cmp_eq_u32 s72, 0")
            a(f"s_cbranch_scc1 {w8}")
            a("s_waitcnt vmcnt(4)")
            a(f"s_branch {wd}")
            a.label(w8)
            a("s_waitcnt vmcnt(8)")
            a(f"s_branch {wd}")
            a.label(w0)
            a("s_waitcnt vmcnt(0)")
            a.label(wd)
            a("s_barrier")
        attn_tile(a, p)
    a(f"v_add_u32 v{A_VK}, 16384, v{A_VK}")
    a(f"v_add_u32 v{A_VV}, 16384, v{A_VV}")
    a("s_add_u32 s72, s72, 1")
    a("s_cmp_lt_u32 s72, 4")
    a(f"s_cbranch_scc1 {lloop}")
    stamp(a)
    a("s_nop 1")
    mfma(a, A_O, A_V[1][1], A_P + 4, A_O)
    a(f"s_branch {lepi}")
    a.label(lslow)
    a("s_waitcnt vmcnt(0)")
    for _ in range(5):
        a("s_barrier")
    a("v_mov_b32 v92, 0xff800000")
    a("s_mov_b32 s72, 0")
    l1 = a.newlabel("K2_s1")
    a.label(l1)
    a(f"ds_read_b128 v[{A_K[0]}:{A_K[0]+3}], v{A_VK}")
    a("s_waitcnt lgkmcnt(0)")
    mfma(a, A_S[0], A_K[0], A_Q, None)
    a("s_nop 15")
    for r in range(8):
        a(f"v_max3_f32 v92, v{A_S[0]+2*r}, v{A_S[0]+2*r+1}, v92")
    a(f"v_add_u32 v{A_VK}, 1024, v{A_VK}")
    a("s_add_u32 s72, s72, 1")
    a("s_cmp_lt_u32 s72, 64")
    a(f"s_cbranch_scc1 {l1}")
    xhalf(a, 92, 91, "v_max_f32")
    for r in range(16):
        a(f"v_sub_f32 v{A_NEG+r}, 0, v92")
    a(f"v_mov_b32 v{A_VK}, v1")
    a("s_mov_b32 s72, 0")
    l2 = a.newlabel("K2_s2")
    a.label(l2)
    a(f"ds_read_b128 v[{A_K[0]}:{A_K[0]+3}], v{A_VK}")
    a("s_mov_b64 exec, s[70:71]")
    a(f"ds_read_b128 v[{A_V[0][0]}:{A_V[0][0]+3}], v{A_VV}")
    a(f"ds_read_b128 v[{A_V[1][0]}:{A_V[1][0]+3}], v{A_VV} offset:512")
    a("s_mov_b64 exec, -1")
    a("s_waitcnt lgkmcnt(0)")
    mfma(a, A_S[0], A_K[0], A_Q, A_NEG)
    a("s_nop 15")
    for r in range(16):
        a(f"v_exp_f32 v{A_S[0]+r}, v{A_S[0]+r}")
    a("s_nop 0")
    for k in range(8):
        a(f"v_cvt_pk_bf16_f32 v{A_P+k}, v{A_S[0]+2*k}, v{A_S[0]+2*k+1}")
    a("s_nop 1")
    mfma(a, A_O, A_V[0][0], A_P, A_O)
    mfma(a, A_O, A_V[1][0], A_P + 4, A_O)
    a(f"v_add_u32 v{A_VK}, 1024, v{A_VK}")
    a(f"v_add_u32 v{A_VV}, 1024, v{A_VV}")
    a("s_add_u32 s72, s72, 1")
    a("s_cmp_lt_u32 s72, 64")
    a(f"s_cbranch_scc1 {l2}")
    a.label(lepi)
    a("s_nop 15")
    a(f"v_rcp_f32 v90, v{A_O+8}")
    a("s_nop 0")
    for r in range(8):
        a(f"v_mul_f32 v{A_O+r}, v{A_O+r}, v90")
    for k in range(4):
        a(f"v_cvt_pk_bf16_f32 v{A_P+k}, v{A_O+2*k}, v{A_O+2*k+1}")
    a(f"s_add_u32 s55, s54, {OF}")
    a(f"buffer_store_dwordx4 v[{A_P}:{A_P+3}], v1, {WS}, s55 offen")

KERNELS_REST = [
    ("k2_attn_kernel", gen_k2, 135168, 128),
]

def gen_k3(a, end):
    mk_srd(a, SRD_A, P_X, 2048 * 1024)
    a("v_lshlrev_b32 v1, 4, v0")
    a(f"s_and_b32 s54, s{S_W}, 3")
    a(f"s_lshr_b32 s55, s{S_W}, 2")
    a.c("A: WOF + ((4cq+ct)*32 + 16kh)*1024")
    a(f"s_lshl_b32 s56, s{S_HQ}, 2")
    a("s_add_u32 s56, s56, s54")
    a("s_lshl_b32 s56, s56, 5")
    a("s_lshl_b32 s57, s55, 4")
    a("s_add_u32 s56, s56, s57")
    a("s_lshl_b32 s56, s56, 10")
    a(f"s_add_u32 s56, s56, {WOF}")
    a.c("B: OF + (tbk*32 + 16kh)*1024")
    a(f"s_lshl_b32 s58, s{S_TBK}, 5")
    a("s_add_u32 s58, s58, s57")
    a("s_lshl_b32 s58, s58, 10")
    a(f"s_add_u32 s58, s58, {OF}")
    a.vm_reset()
    for q in range(4):
        for e in range(4):
            s = 4 * q + e
            a.vm(f"buffer_load_dwordx4 v[{64+4*s}:{67+4*s}], v1, {WS}, s56 offen offset:{e*1024}", ("A", s))
            a.vm(f"buffer_load_dwordx4 v[{128+4*s}:{131+4*s}], v1, {WS}, s58 offen offset:{e*1024}", ("B", s))
        if q < 3:
            a("s_add_u32 s56, s56, 4096")
            a("s_add_u32 s58, s58, 4096")
    a.c("x residual: (tbk*32+t)*1024 + (128cq + 32ct + 16kh + 8half)*2")
    a("v_and_b32 v2, 31, v0")
    a("v_lshrrev_b32 v3, 5, v0")
    a("v_lshlrev_b32 v4, 10, v2")
    a("v_lshl_add_u32 v4, v3, 4, v4")
    a(f"s_lshl_b32 s59, s{S_TBK}, 15")
    a(f"s_lshl_b32 s60, s{S_HQ}, 8")
    a("s_add_u32 s59, s59, s60")
    a("s_lshl_b32 s60, s54, 6")
    a("s_add_u32 s59, s59, s60")
    a("s_lshl_b32 s60, s55, 5")
    a("s_add_u32 s59, s59, s60")
    a.vm(f"buffer_load_dwordx4 v[24:27], v4, s[{SRD_A}:{SRD_A+3}], s59 offen", "x")
    stamp(a)
    for s in range(16):
        a.vm_wait([("B", s)])
        if s == 0: stamp(a)
        mfma(a, 8, 64 + 4 * s, 128 + 4 * s, None if s == 0 else 8)
    stamp(a)
    a("s_nop 15")
    a.c("exchange: EX[w][q][lane]")
    a(f"s_lshl_b32 s60, s{S_W}, 12")
    a("v_add_u32 v5, s60, v1")
    for q in range(4):
        a(f"ds_write_b128 v5, v[{8+4*q}:{11+4*q}] offset:{q*1024}")
    a("s_waitcnt lgkmcnt(0)")
    a("s_barrier")
    a("s_lshl_b32 s61, s55, 11")
    a("s_lshl_b32 s62, s54, 12")
    a("s_add_u32 s61, s61, s62")
    a("v_add_u32 v5, s61, v1")
    a("ds_read_b128 v[8:11], v5")
    a("ds_read_b128 v[12:15], v5 offset:1024")
    a("ds_read_b128 v[16:19], v5 offset:16384")
    a("ds_read_b128 v[20:23], v5 offset:17408")
    a.vm_wait("x")
    a("s_mov_b32 s61, 0xffff0000")
    for i in range(4):
        a(f"v_lshlrev_b32 v{32+2*i}, 16, v{24+i}")
        a(f"v_and_b32 v{33+2*i}, s61, v{24+i}")
    a("s_waitcnt lgkmcnt(0)")
    for i in range(4):
        a(f"v_pk_add_f32 v[{8+2*i}:{9+2*i}], v[{8+2*i}:{9+2*i}], v[{16+2*i}:{17+2*i}]")
    for i in range(4):
        a(f"v_pk_add_f32 v[{8+2*i}:{9+2*i}], v[{8+2*i}:{9+2*i}], v[{32+2*i}:{33+2*i}]")
    for i in range(4):
        a(f"v_cvt_pk_bf16_f32 v{40+i}, v{8+2*i}, v{9+2*i}")
    a.c("HF + (tbk*32 + 8cq + 2ct + kh)*1024")
    a(f"s_lshl_b32 s60, s{S_TBK}, 5")
    a(f"s_lshl_b32 s61, s{S_HQ}, 3")
    a("s_add_u32 s60, s60, s61")
    a("s_lshl_b32 s61, s54, 1")
    a("s_add_u32 s60, s60, s61")
    a("s_add_u32 s60, s60, s55")
    a("s_lshl_b32 s60, s60, 10")
    a(f"s_add_u32 s60, s60, {HF}")
    a(f"buffer_store_dwordx4 v[40:43], v1, {WS}, s60 offen")
    a("s_mov_b32 s61, 0x3f803f80")
    a("v_mov_b32 v44, 0")
    a("v_mov_b32 v45, 0")
    for i in range(4):
        a(f"v_dot2_f32_bf16 v44, v{40+i}, s61, v44")
        a(f"v_dot2_f32_bf16 v45, v{40+i}, v{40+i}, v45")
    a("s_nop 2")
    xhalf(a, 44, 46, "v_add_f32")
    xhalf(a, 45, 46, "v_add_f32")
    a.c("ST[w][token][2] at 32768")
    a(f"s_lshl_b32 s60, s{S_W}, 8")
    a("v_lshlrev_b32 v46, 3, v2")
    a("v_add_u32 v47, s60, v46")
    a("s_mov_b32 exec_hi, 0")
    a("ds_write_b64 v47, v[44:45] offset:32768")
    a("s_mov_b64 exec, -1")
    a("s_waitcnt lgkmcnt(0)")
    a("s_barrier")
    a(f"s_cmp_lg_u32 s{S_W}, 0")
    a(f"s_cbranch_scc1 {end}")
    for ww in range(8):
        a(f"ds_read_b64 v[{48+2*ww}:{49+2*ww}], v46 offset:{32768 + ww*256}")
    a("s_waitcnt lgkmcnt(0)")
    for ww in range(1, 8):
        a(f"v_pk_add_f32 v[48:49], v[48:49], v[{48+2*ww}:{49+2*ww}]")
    a.c("HST + ((tbk*32 + t)*4 + cq)*8")
    a("v_lshlrev_b32 v46, 5, v2")
    a(f"s_lshl_b32 s60, s{S_TBK}, 10")
    a(f"s_lshl_b32 s61, s{S_HQ}, 3")
    a("s_add_u32 s60, s60, s61")
    a(f"s_add_u32 s60, s60, {HST}")
    a("s_mov_b32 exec_hi, 0")
    a(f"buffer_store_dwordx2 v[48:49], v46, {WS}, s60 offen")
    a("s_mov_b64 exec, -1")

L4_ST = 131072
L4_CS = 131072 + 1024
def gen_k4(a, end):
    a("v_lshlrev_b32 v1, 4, v0")
    a.c("h DMA source base: HF + 4g*32768 + w*1024 ; LDS w*1024")
    a(f"s_lshl_b32 s54, s{S_G}, 17")
    a(f"s_lshl_b32 s55, s{S_W}, 10")
    a("s_add_u32 s54, s54, s55")
    a(f"s_add_u32 s54, s54, {HF}")
    def dma(st):
        for tb in range(4):
            off = tb * 32768 + st * 8192
            a(f"s_add_u32 m0, s55, {off}")
            a(f"s_add_u32 s56, s54, {off}")
            a.vm(f"buffer_load_dwordx4 v1, {WS}, s56 offen lds", ("H", st))
    lhelp = a.newlabel("K4_help")
    a(f"s_cmp_eq_u32 s{S_W}, 7")
    a(f"s_cbranch_scc1 {lhelp}")
    a(f"s_mul_i32 s57, s{S_J}, 7")
    a(f"s_add_u32 s57, s57, s{S_W}")
    a("s_lshl_b32 s58, s57, 15")
    a(f"s_add_u32 s58, s58, {WGF}")
    a.vm_reset()
    for st in range(4):
        for e in range(8):
            s = 8 * st + e
            if e == 4 or (e == 0 and st > 0):
                a("s_add_u32 s58, s58, 4096")
            a.vm(f"buffer_load_dwordx4 v[{128+4*s}:{131+4*s}], v1, {WS}, s58 offen offset:{(e&3)*1024}", ("A", s))
        dma(st)
    a("v_add_u32 v2, 65536, v1")
    BB = [[32 + 4 * t for t in range(4)], [48 + 4 * t for t in range(4)]]
    def breads(s):
        for tb in range(4):
            base = "v1" if tb < 2 else "v2"
            a.lg(f"ds_read_b128 v[{BB[s&1][tb]}:{BB[s&1][tb]+3}], {base} offset:{(tb&1)*32768 + s*1024}", s)
    a.lgq = []
    stamp(a)
    a.vm_wait(("H", 0))
    stamp(a)
    a("s_barrier")
    stamp(a)
    breads(0)
    for s in range(32):
        if s + 1 < 32:
            if (s + 1) % 8 == 0:
                a.vm_wait(("H", (s + 1) // 8))
                a("s_barrier")
                if (s + 1) // 8 in (1, 3) and G.PROFILE:
                    stamp(a); a.lgq = []
            breads(s + 1)
        a.lg_wait(s)
        for tb in range(4):
            mfma(a, 64 + 16 * tb, 128 + 4 * s, BB[s & 1][tb], None if s == 0 else 64 + 16 * tb)
    stamp(a)
    a("s_barrier")
    a("v_and_b32 v3, 31, v0")
    a("v_lshlrev_b32 v3, 3, v3")
    a(f"v_add_u32 v3, {L4_ST}, v3")
    for tb in range(4):
        a(f"ds_read_b64 v[{4+2*tb}:{5+2*tb}], v3 offset:{tb*256}")
    a("v_lshrrev_b32 v12, 5, v0")
    a("v_lshlrev_b32 v12, 6, v12")
    a(f"s_lshl_b32 s59, s{S_W}, 7")
    a(f"s_add_u32 s59, s59, {L4_CS}")
    a("v_add_u32 v12, s59, v12")
    for q in range(4):
        a(f"ds_read_b128 v[{16+4*q}:{19+4*q}], v12 offset:{q*16}")
    a("s_nop 7")
    a("s_waitcnt lgkmcnt(0)")
    a("s_mul_i32 s58, s57, 1024")
    a(f"s_lshl_b32 s59, s{S_G}, 2")
    a("s_mul_i32 s59, s59, 114688")
    a("s_add_u32 s58, s58, s59")
    a(f"s_add_u32 s58, s58, {HHF}")
    for tb in range(4):
        A = 64 + 16 * tb
        mean, r2 = 4 + 2 * tb, 5 + 2 * tb
        a(f"v_sub_f32 v32, 0, v{mean}")
        a(f"v_mov_b32 v33, v32")
        a(f"v_mov_b32 v34, v{r2}")
        a(f"v_mov_b32 v35, v{r2}")
        for i in range(8):
            a(f"v_pk_fma_f32 v[{A+2*i}:{A+2*i+1}], v[{16+2*i}:{17+2*i}], v[32:33], v[{A+2*i}:{A+2*i+1}]")
        for r in range(8):
            a(f"v_max_f32 v{A+r}, 0, v{A+r}")
        for i in range(4):
            a(f"v_pk_mul_f32 v[{A+8+2*i}:{A+9+2*i}], v[{A+8+2*i}:{A+9+2*i}], v[34:35]")
        for i in range(4):
            a(f"v_pk_mul_f32 v[{A+2*i}:{A+2*i+1}], v[{A+2*i}:{A+2*i+1}], v[{A+8+2*i}:{A+9+2*i}]")
        for i in range(4):
            a(f"v_cvt_pk_bf16_f32 v{36+4*(tb&1)+i}, v{A+2*i}, v{A+2*i+1}")
        a(f"buffer_store_dwordx4 v[{36+4*(tb&1)}:{39+4*(tb&1)}], v1, {WS}, s58 offen")
        if tb < 3:
            a("s_add_u32 s58, s58, 114688")
    a(f"s_branch {end}")
    a.label(lhelp)
    a.vm_reset()
    for st in range(4):
        dma(st)
    a.c("stats: tokens lane and lane+64: HST + (128g + tok)*32")
    a("v_lshlrev_b32 v2, 5, v0")
    a(f"s_lshl_b32 s57, s{S_G}, 12")
    a(f"s_add_u32 s57, s57, {HST}")
    for i in range(2):
        a.vm(f"buffer_load_dwordx4 v[{8+8*i}:{11+8*i}], v2, {WS}, s57 offen offset:{i*2048}", "st")
        a.vm(f"buffer_load_dwordx4 v[{12+8*i}:{15+8*i}], v2, {WS}, s57 offen offset:{i*2048+16}", "st")
    a.c("CS elements e = lane + 64i (i<4, e<224): CSP + (kq*112 + 7j)*128 + e*4")
    a("v_lshlrev_b32 v3, 2, v0")
    a(f"s_mul_i32 s58, s{S_J}, 896")
    a(f"s_add_u32 s58, s58, {CSP}")
    for kq in range(4):
        for i in range(4):
            a.vm(f"buffer_load_dword v{32+4*kq+i}, v3, {WS}, s58 offen offset:{i*256}", "cs")
        if kq < 3:
            a("s_add_u32 s58, s58, 14336")
    n_after = 4 + 16
    for st in range(4):
        a(f"s_waitcnt vmcnt({n_after + 4*(3-st)})")
        a("s_barrier")
    a.vm_wait_all()
    for i in range(2):
        b = 8 + 8 * i
        a(f"v_add_f32 v{b}, v{b}, v{b+2}")
        a(f"v_add_f32 v{b+4}, v{b+4}, v{b+6}")
        a(f"v_add_f32 v{b+1}, v{b+1}, v{b+3}")
        a(f"v_add_f32 v{b+5}, v{b+5}, v{b+7}")
        a(f"v_add_f32 v{b}, v{b}, v{b+4}")
        a(f"v_add_f32 v{b+1}, v{b+1}, v{b+5}")
        a(f"v_mul_f32 v{b}, {f32hex(1.0/512)}, v{b}")
        a(f"v_mul_f32 v{b+2}, v{b}, v{b}")
        a(f"v_mov_b32 v{b+3}, {f32hex(1.0/512)}")
        a(f"v_fma_f32 v{b+1}, v{b+1}, v{b+3}, -v{b+2}")
        a(f"v_max_f32 v{b+1}, 0, v{b+1}")
        a(f"v_add_f32 v{b+1}, {f32hex(1e-5)}, v{b+1}")
        a(f"v_rcp_f32 v{b+1}, v{b+1}")
    a("v_lshlrev_b32 v4, 3, v0")
    a(f"v_add_u32 v4, {L4_ST}, v4")
    a("ds_write_b64 v4, v[8:9]")
    a("ds_write_b64 v4, v[16:17] offset:512")
    for i in range(4):
        a(f"v_add_f32 v{32+i}, v{32+i}, v{36+i}")
        a(f"v_add_f32 v{40+i}, v{40+i}, v{44+i}")
        a(f"v_add_f32 v{32+i}, v{32+i}, v{40+i}")
    a(f"v_add_u32 v3, {L4_CS}, v3")
    for i in range(3):
        a(f"ds_write_b32 v3, v{32+i} offset:{i*256}")
    a("s_mov_b32 exec_hi, 0")
    a("ds_write_b32 v3, v35 offset:768")
    a("s_mov_b64 exec, -1")
    a("s_waitcnt lgkmcnt(0)")
    a("s_barrier")

def gen_k5(a, end):
    mk_srd(a, SRD_A, P_OUT, 2048 * 1024)
    a("v_lshlrev_b32 v1, 4, v0")
    a(f"s_lshr_b32 s54, s{S_J}, 3")
    a(f"s_and_b32 s55, s{S_J}, 7")
    a(f"s_lshl_b32 s56, s{S_G}, 2")
    a("s_lshl_b32 s57, s54, 1")
    a("s_add_u32 s56, s56, s57")
    a(f"s_mul_i32 s57, s{S_W}, 14336")
    a.c("A: WDF + (2cg+ct)*112*1024 + 14w*1024 ; B: HHF + (tb0+tb)*112*1024 + 14w*1024")
    a("s_mul_i32 s58, s55, 229376")
    a("s_add_u32 s58, s58, s57")
    a(f"s_add_u32 s58, s58, {WDF}")
    a("s_add_u32 s59, s58, 114688")
    a("s_mul_i32 s60, s56, 114688")
    a("s_add_u32 s60, s60, s57")
    a(f"s_add_u32 s60, s60, {HHF}")
    a("s_add_u32 s61, s60, 114688")
    AREG, BREG, ACC = 144, 80, 16
    a.vm_reset()
    def ld(reg, sreg, s, tag):
        a.vm(f"buffer_load_dwordx4 v[{reg}:{reg+3}], v1, {WS}, s{sreg} offen offset:{(s&3)*1024}", tag)
    a("s_mov_b32 s62, s58"); a("s_mov_b32 s63, s59"); a("s_mov_b32 s64, s60"); a("s_mov_b32 s65, s61")
    def ldA(s):
        if s and (s & 3) == 0:
            a("s_add_u32 s62, s62, 4096"); a("s_add_u32 s63, s63, 4096")
        ld(AREG + (2 * s) * 4, 62, s, ("A", s)); ld(AREG + (2 * s + 1) * 4, 63, s, ("A", s))
    def ldB(s):
        if s and (s & 3) == 0:
            a("s_add_u32 s64, s64, 4096"); a("s_add_u32 s65, s65, 4096")
        ld(BREG + ((s % 8) * 2) * 4, 64, s, ("B", s)); ld(BREG + ((s % 8) * 2 + 1) * 4, 65, s, ("B", s))
    for s in range(8):
        ldA(s); ldB(s)
    for s in range(8, 14):
        ldA(s)
    a("v_lshrrev_b32 v2, 3, v0")
    a(f"s_lshl_b32 s66, s{S_W}, 3")
    a("v_add_u32 v2, s66, v2")
    a("v_and_b32 v3, 7, v0")
    a.c("HF + ((tb0 + (token>>5))*32 + 4cg + (c8>>1))*1024 + ((c8&1)*32 + (token&31))*16")
    a("v_lshrrev_b32 v4, 5, v2")
    a("v_lshlrev_b32 v4, 5, v4")
    a("v_lshrrev_b32 v5, 1, v3")
    a("v_add_u32 v4, v4, v5")
    a("v_lshlrev_b32 v4, 10, v4")
    a("v_and_b32 v5, 1, v3")
    a("v_lshlrev_b32 v5, 5, v5")
    a("v_and_b32 v6, 31, v2")
    a("v_add_u32 v5, v5, v6")
    a("v_lshl_add_u32 v4, v5, 4, v4")
    a("s_lshl_b32 s66, s56, 5")
    a("s_lshl_b32 s67, s55, 2")
    a("s_add_u32 s66, s66, s67")
    a("s_lshl_b32 s66, s66, 10")
    a(f"s_add_u32 s66, s66, {HF}")
    stamp(a)
    for s in range(14):
        a.vm_wait([("A", s), ("B", s)])
        if s in (0, 7): stamp(a)
        for ct in range(2):
            for tb in range(2):
                d = ACC + (ct * 2 + tb) * 16
                mfma(a, d, AREG + (2 * s + ct) * 4, BREG + ((s % 8) * 2 + tb) * 4, None if s == 0 else d)
        if s + 8 < 14:
            ldB(s + 8)
        if s == 5:
            a.vm(f"buffer_load_dwordx4 v[8:11], v4, {WS}, s66 offen", "res")
    stamp(a)
    a.c("reduction write: addr = w*16384 + t*256 + ((X ^ (rg*4+q))*16), X = (half*2) ^ (t&7)")
    a("v_and_b32 v12, 31, v0")
    a("v_lshrrev_b32 v13, 5, v0")
    a("v_lshlrev_b32 v13, 1, v13")
    a("v_and_b32 v14, 7, v12")
    a("v_xor_b32 v13, v13, v14")
    a("v_lshlrev_b32 v12, 8, v12")
    a(f"s_lshl_b32 s67, s{S_W}, 14")
    a("v_add_u32 v12, s67, v12")
    for k, (rg, q) in enumerate([(0, 0), (0, 1), (1, 0), (1, 1)]):
        a(f"v_xor_b32 v{80+k}, {rg*4+q}, v13")
        a(f"v_lshl_add_u32 v{80+k}, v{80+k}, 4, v12")
    a("s_nop 7")
    for ct in range(2):
        for tb in range(2):
            d = ACC + (ct * 2 + tb) * 16
            for k, (rg, q) in enumerate([(0, 0), (0, 1), (1, 0), (1, 1)]):
                r = d + 8 * rg + 4 * q
                a(f"ds_write_b128 v{80+k}, v[{r}:{r+3}] offset:{ct*128 + tb*8192}")
    a("s_waitcnt lgkmcnt(0)")
    a("s_barrier")
    stamp(a)
    a.c("reader: token*256 + (((2c8+e) ^ (token&7))*16)")
    a("v_and_b32 v12, 7, v2")
    a("v_lshlrev_b32 v13, 1, v3")
    a("v_xor_b32 v14, v13, v12")
    a("v_or_b32 v13, 1, v13")
    a("v_xor_b32 v15, v13, v12")
    a("v_lshlrev_b32 v14, 4, v14")
    a("v_lshlrev_b32 v15, 4, v15")
    a("v_lshl_add_u32 v14, v2, 8, v14")
    a("v_lshl_add_u32 v15, v2, 8, v15")
    a("v_add_u32 v12, 65536, v14")
    a("v_add_u32 v13, 65536, v15")
    for src in range(8):
        b0, b1 = ("v14", "v15") if src < 4 else ("v12", "v13")
        a(f"ds_read_b128 v[{16+8*src}:{19+8*src}], {b0} offset:{(src&3)*16384}")
        a(f"ds_read_b128 v[{20+8*src}:{23+8*src}], {b1} offset:{(src&3)*16384}")
        if src == 3:
            pass
    a.vm_wait("res")
    a("s_mov_b32 s67, 0xffff0000")
    for i in range(4):
        a(f"v_lshlrev_b32 v{80+2*i}, 16, v{8+i}")
        a(f"v_and_b32 v{81+2*i}, s67, v{8+i}")
    a("s_waitcnt lgkmcnt(0)")
    for src in range(1, 8):
        for i in range(4):
            a(f"v_pk_add_f32 v[{16+2*i}:{17+2*i}], v[{16+2*i}:{17+2*i}], v[{16+8*src+2*i}:{17+8*src+2*i}]")
    for i in range(4):
        a(f"v_pk_add_f32 v[{16+2*i}:{17+2*i}], v[{16+2*i}:{17+2*i}], v[{80+2*i}:{81+2*i}]")
    for i in range(4):
        a(f"v_cvt_pk_bf16_f32 v{8+i}, v{16+2*i}, v{17+2*i}")
    a.c("out: (128g + 64th + token)*1024 + (64cg + 8c8)*2")
    a("v_lshlrev_b32 v4, 10, v2")
    a("v_lshl_add_u32 v4, v3, 4, v4")
    a(f"s_lshl_b32 s66, s{S_G}, 17")
    a("s_lshl_b32 s67, s54, 16")
    a("s_add_u32 s66, s66, s67")
    a("s_lshl_b32 s67, s55, 7")
    a("s_add_u32 s66, s66, s67")
    a(f"buffer_store_dwordx4 v[8:11], v4, s[{SRD_A}:{SRD_A+3}], s66 offen")

KERNELS_REST += [
    ("k3_wo_kernel", gen_k3, 36864, 256),
    ("k4_gu_kernel", gen_k4, 133120, 256),
    ("k5_down_kernel", gen_k5, 131072, 256),
]
```

```python
import os, sys
from asmlib import Asm
import gen as G
from gen import (S_W, S_G, S_J, S_TBK, S_HQ, S_TQ, SRD_WS, SRD_A, SRD_B, SRD_C, SRD_D, mk_srd, f32hex,
                 dpp_sum16, xhalf, xrow16, OF, HF, KF, VF, HST, CSP, WOF, WDF, WGF, HHF, QSCALE,
                 P_X, P_WQ, P_WK, P_WV, P_WO, P_WG, P_WU, P_WD, P_OUT, P_DBG, P_WS)
from kernels2 import mfma
WS = f"s[{SRD_WS}:{SRD_WS+3}]"
FLG = 0x620000
PROF = 0x1400000
WS_USED = 0x1410000
SRD_DBG = 56
SPIN = 400000
PROFILE = G.PROFILE
PROF_WAVE = G.PROF_WAVE
NST = [0]
def stamp(a):
    if not PROFILE: return
    k = NST[0]; NST[0] += 1
    assert k < 16
    a("s_waitcnt lgkmcnt(0)")
    a("s_memtime s[96:97]")
    a("s_waitcnt lgkmcnt(0)")
    a(f"s_mov_b32 s{80+k}, s96")

def spin_begin(a, name):
    l = a.newlabel(name)
    a(f"s_mov_b32 s79, {SPIN}")
    a.label(l)
    return l
def spin_end(a, l, done):
    a("s_nop 4")
    a(f"s_cbranch_vccz {done}")
    a("s_sleep 1")
    a("s_sub_u32 s79, s79, 1")
    a("s_cmp_lg_u32 s79, 0")
    a(f"s_cbranch_scc1 {l}")
    a.label(done)

def poll_flags(a, soff_reg, nlanes, vtmp, voff):
    done = a.newlabel("pd")
    a(f"s_mov_b64 exec, {hex((1 << nlanes) - 1)}")
    l = spin_begin(a, "pl")
    a(f"buffer_load_dword v{vtmp}, v{voff}, {WS}, s{soff_reg} offen sc1")
    a("s_waitcnt vmcnt(0)")
    a(f"v_cmp_eq_u32 vcc, 0, v{vtmp}")
    spin_end(a, l, done)
    a("s_mov_b64 exec, -1")

def set_flag(a, soff_reg, vtmp):
    a(f"v_mov_b32 v{vtmp}, 1")
    a(f"v_mov_b32 v{vtmp+1}, 0")
    a("s_mov_b64 exec, 1")
    a(f"buffer_store_dword v{vtmp}, v{vtmp+1}, {WS}, s{soff_reg} offen sc1")
    a("s_mov_b64 exec, -1")

L_XN, L_WQ, L_WK, L_WV = 0, 32768, 131072, 147456
QSAVE = 250

def phase0(a):
    mk_srd(a, SRD_A, P_X, 2048 * 1024)
    mk_srd(a, SRD_B, P_WQ, 512 * 1024)
    a(f"s_lshl_b32 s54, s{S_TBK}, 5")
    a(f"s_lshl_b32 s55, s{S_W}, 2")
    a("s_add_u32 s54, s54, s55")
    a("v_lshrrev_b32 v2, 4, v0")
    a("v_and_b32 v3, 15, v0")
    a("v_add_u32 v4, s54, v2")
    a("v_lshlrev_b32 v4, 10, v4")
    a("v_lshl_add_u32 v4, v3, 4, v4")
    for i in range(4):
        a(f"buffer_load_dwordx4 v[{16+4*i}:{19+4*i}], v4, s[{SRD_A}:{SRD_A+3}], 0 offen offset:{256*i}")
    a("v_lshlrev_b32 v6, 4, v0")
    lskip = a.newlabel("nokv"); lj = a.newlabel("kvj")
    a(f"s_cmp_lg_u32 s{S_HQ}, 0")
    a(f"s_cbranch_scc1 {lskip}")
    mk_srd(a, SRD_C, P_WK, 16384)
    mk_srd(a, SRD_D, P_WV, 16384)
    a(f"s_lshl_b32 s60, s{S_W}, 11")
    for i in range(2):
        a(f"s_add_u32 s61, s60, {i*1024}")
        a(f"s_add_u32 m0, s61, {L_WK}")
        a("s_nop 0")
        a(f"buffer_load_dwordx4 v6, s[{SRD_C}:{SRD_C+3}], s61 offen lds")
        a(f"s_add_u32 m0, s61, {L_WV}")
        a("s_nop 0")
        a(f"buffer_load_dwordx4 v6, s[{SRD_D}:{SRD_D+3}], s61 offen lds")
    a.label(lskip)
    a("v_lshlrev_b32 v5, 1, v2")
    a("v_xor_b32 v5, v3, v5")
    a("v_lshlrev_b32 v5, 4, v5")
    a("v_lshl_add_u32 v5, v2, 10, v5")
    a(f"s_lshl_b32 s55, s{S_HQ}, 8")
    a("v_add_u32 v5, s55, v5")
    a(f"s_lshl_b32 s62, s{S_W}, 12")
    a(f"s_add_u32 s62, s62, {L_WQ}")
    a(f"s_lshl_b32 s63, s{S_W}, 14")
    def wq_dma(q):
        for i in range(4):
            a(f"s_add_u32 m0, s62, {(q % 3) * 32768 + i * 1024}")
            a(f"s_add_u32 s64, s63, {(q * 128 + 4 * i) * 1024}")
            a(f"buffer_load_dwordx4 v5, s[{SRD_B}:{SRD_B+3}], s64 offen lds")
    for q in range(3):
        wq_dma(q)
    a("s_waitcnt vmcnt(12)")
    stamp(a)
    a("s_mov_b32 s60, 0x3f803f80")
    a("v_mov_b32 v32, 0")
    a("v_mov_b32 v33, 0")
    for i in range(16):
        a(f"v_dot2_f32_bf16 v{32 + (i & 1)}, v{16+i}, s60, v{32 + (i & 1)}")
    a("s_mov_b32 s61, 0xffff0000")
    for i in range(16):
        a(f"v_lshlrev_b32 v{64+2*i}, 16, v{16+i}")
        a(f"v_and_b32 v{65+2*i}, s61, v{16+i}")
    a("v_add_f32 v32, v32, v33")
    dpp_sum16(a, 32)
    a(f"v_mul_f32 v34, {f32hex(-1.0/512)}, v32")
    a("v_mov_b32 v35, v34")
    for i in range(16):
        a(f"v_pk_add_f32 v[{64+2*i}:{65+2*i}], v[{64+2*i}:{65+2*i}], v[34:35]")
    a("v_pk_mul_f32 v[36:37], v[64:65], v[64:65]")
    a("v_pk_mul_f32 v[38:39], v[66:67], v[66:67]")
    for i in range(2, 16):
        r = 36 + 2 * (i & 1)
        a(f"v_pk_fma_f32 v[{r}:{r+1}], v[{64+2*i}:{65+2*i}], v[{64+2*i}:{65+2*i}], v[{r}:{r+1}]")
    a("v_pk_add_f32 v[36:37], v[36:37], v[38:39]")
    a("v_add_f32 v36, v36, v37")
    dpp_sum16(a, 36)
    a(f"v_mov_b32 v37, {f32hex(1e-5)}")
    a(f"v_fmac_f32 v37, {f32hex(1.0/512)}, v36")
    a("v_rsq_f32 v38, v37")
    a.c("XN write addr")
    a(f"s_lshl_b32 s55, s{S_W}, 2")
    a("v_add_u32 v7, s55, v2")
    a("v_mov_b32 v39, v38")
    for i in range(16):
        a(f"v_pk_mul_f32 v[{64+2*i}:{65+2*i}], v[{64+2*i}:{65+2*i}], v[38:39]")
    a("v_and_b32 v8, 7, v3")
    a("v_xor_b32 v7, v7, v8")
    a("v_lshlrev_b32 v7, 4, v7")
    a("v_lshrrev_b32 v8, 1, v3")
    a("v_lshl_add_u32 v7, v8, 10, v7")
    a("v_and_b32 v8, 1, v3")
    a("v_lshl_add_u32 v7, v8, 9, v7")
    for i in range(4):
        for e in range(4):
            a(f"v_cvt_pk_bf16_f32 v{16+4*i+e}, v{64+8*i+2*e}, v{65+8*i+2*e}")
        a(f"ds_write_b128 v7, v[{16+4*i}:{19+4*i}] offset:{L_XN + i*8192}")
    a("v_lshrrev_b32 v8, 5, v0")
    a("v_and_b32 v9, 31, v0")
    for m in range(4):
        a(f"v_add_u32 v10, {2*m}, v8")
        a("v_xor_b32 v10, v9, v10")
        a("v_lshlrev_b32 v10, 4, v10")
        a(f"v_lshl_add_u32 v{40+m}, v8, 9, v10")
    a("v_lshrrev_b32 v10, 2, v3")
    a("v_and_b32 v11, 3, v3")
    a("v_lshl_add_u32 v12, v8, 3, v10")
    a(f"s_lshl_b32 s55, s{S_W}, 1")
    a("v_lshrrev_b32 v13, 1, v11")
    a("v_add_u32 v13, s55, v13")
    a("v_lshlrev_b32 v14, 1, v10")
    a("v_xor_b32 v13, v13, v14")
    a("v_lshlrev_b32 v13, 4, v13")
    a("v_lshl_add_u32 v13, v12, 8, v13")
    a("v_and_b32 v14, 1, v11")
    a("v_lshl_add_u32 v13, v14, 3, v13")
    a(f"v_add_u32 v44, {L_WQ}, v13")
    a("s_waitcnt vmcnt(0) lgkmcnt(0)")
    a("s_barrier")
    stamp(a)
    lkvd = a.newlabel("kvdone")
    a(f"s_cmp_lg_u32 s{S_HQ}, 0")
    a(f"s_cbranch_scc1 {lkvd}")
    a.c("tr addr: blk0 -> WV, blk1 -> WK ; row (64w + 16e + 8khalf + 4rd + r4)*32 + cg*8")
    a("v_lshlrev_b32 v13, 5, v12")
    a("v_lshl_add_u32 v13, v11, 3, v13")
    a(f"s_lshl_b32 s55, s{S_W}, 11")
    a("v_add_u32 v13, s55, v13")
    a("v_and_b32 v14, 1, v2")
    a(f"v_mov_b32 v15, {L_WV}")
    a(f"v_mov_b32 v45, {L_WK}")
    a("v_cmp_eq_u32 vcc, 1, v14")
    a("s_nop 1")
    a("v_cndmask_b32 v15, v15, v45, vcc")
    a("v_add_u32 v13, v13, v15")
    a.c("xn frags for k-steps 4w..4w+3 : s&3 = e")
    a(f"s_lshl_b32 s55, s{S_W}, 12")
    for e in range(4):
        a(f"v_add_u32 v{46+e}, s55, v{40+e}")
    for e in range(4):
        a(f"ds_read_b64_tr_b16 v[{64+4*e}:{65+4*e}], v13 offset:{e*512}")
        a(f"ds_read_b64_tr_b16 v[{66+4*e}:{67+4*e}], v13 offset:{e*512+128}")
        a(f"ds_read_b128 v[{80+4*e}:{83+4*e}], v{46+e} offset:{L_XN + e*1024}")
    for e in range(4):
        a(f"s_waitcnt lgkmcnt({9-3*e})")
        mfma(a, 96, 64 + 4 * e, 80 + 4 * e, None if e == 0 else 96)
    a.c("RED: q=0,1 -> WK + w*2048 + q*1024 ; q=2,3 -> WV + w*2048 + (q-2)*1024  (own, already consumed rows)")
    a(f"s_lshl_b32 s55, s{S_W}, 11")
    a(f"s_add_u32 s55, s55, {L_WK}")
    a("v_add_u32 v14, s55, v6")
    a(f"v_add_u32 v15, {L_WV - L_WK}, v14")
    a("s_nop 10")
    a("ds_write_b128 v14, v[96:99]")
    a("ds_write_b128 v14, v[100:103] offset:1024")
    a("ds_write_b128 v15, v[104:107]")
    a("ds_write_b128 v15, v[108:111] offset:1024")
    a("s_waitcnt lgkmcnt(0)")
    a("s_barrier")
    lv = a.newlabel("kv_v"); lz = a.newlabel("kv_z")
    a(f"s_cmp_eq_u32 s{S_W}, 1")
    a(f"s_cbranch_scc1 {lv}")
    a(f"s_cmp_eq_u32 s{S_W}, 2")
    a(f"s_cbranch_scc1 {lz}")
    a(f"s_cmp_lg_u32 s{S_W}, 0")
    a(f"s_cbranch_scc1 {lkvd}")
    def red8(base):
        a(f"v_add_u32 v14, {base}, v6")
        for ww in range(8):
            a(f"ds_read_b128 v[{64+8*ww}:{67+8*ww}], v14 offset:{ww*2048}")
            a(f"ds_read_b128 v[{68+8*ww}:{71+8*ww}], v14 offset:{ww*2048+1024}")
            if ww == 3: a("s_waitcnt lgkmcnt(4)")
        a("s_waitcnt lgkmcnt(0)")
        for ww in range(1, 8):
            for i in range(4):
                a(f"v_pk_add_f32 v[{64+2*i}:{65+2*i}], v[{64+2*i}:{65+2*i}], v[{64+8*ww+2*i}:{65+8*ww+2*i}]")
        for r in range(4):
            a(f"v_cvt_pk_bf16_f32 v{76+r}, v{64+2*r}, v{65+2*r}")
    red8(L_WV)
    a(f"s_lshl_b32 s55, s{S_TBK}, 10")
    a(f"s_add_u32 s55, s55, {KF}")
    a(f"buffer_store_dwordx4 v[76:79], v6, {WS}, s55 offen sc1")
    a("v_mov_b32 v80, 0")
    for r in range(4):
        a(f"v_dot2_f32_bf16 v80, v{76+r}, v{76+r}, v80")
    a("s_nop 2")
    xhalf(a, 80, 81, "v_add_f32")
    dpp_sum16(a, 80, "v_max_f32")
    xrow16(a, 80, 81, "v_max_f32")
    a("v_lshrrev_b32 v80, 16, v80")
    a(f"v_add_u32 v{QSAVE+4}, 1, v80")
    a(f"s_branch {lkvd}")
    a.label(lv)
    red8(L_WK)
    a("v_lshlrev_b32 v80, 5, v9")
    a("v_lshl_add_u32 v80, v8, 3, v80")
    a(f"v_add_u32 v80, {L_WK}, v80")
    a("ds_write_b64 v80, v[76:77]")
    a("ds_write_b64 v80, v[78:79] offset:16")
    a("v_lshl_add_u32 v81, v8, 2, v10")
    a("v_lshlrev_b32 v81, 5, v81")
    a("v_and_b32 v82, 1, v11")
    a("v_lshlrev_b32 v82, 1, v82")
    a("v_lshrrev_b32 v83, 1, v11")
    a("v_add_u32 v82, v82, v83")
    a("v_lshl_add_u32 v81, v82, 3, v81")
    a(f"v_add_u32 v81, {L_WK}, v81")
    a("s_waitcnt lgkmcnt(0)")
    for c2 in range(2):
        for rd in range(2):
            d = 84 + 4 * c2 + 2 * rd
            a(f"ds_read_b64_tr_b16 v[{d}:{d+1}], v81 offset:{(16*c2 + 8*rd) * 32}")
    a("v_lshl_add_u32 v82, v8, 4, v3")
    a("v_lshlrev_b32 v82, 4, v82")
    a(f"s_lshl_b32 s55, s{S_TBK}, 10")
    a(f"s_add_u32 s55, s55, {VF}")
    a("s_waitcnt lgkmcnt(0)")
    a("s_mov_b32 exec_lo, 0x0000ffff")
    a("s_mov_b32 exec_hi, 0x0000ffff")
    a(f"buffer_store_dwordx4 v[84:87], v82, {WS}, s55 offen sc1")
    a(f"buffer_store_dwordx4 v[88:91], v82, {WS}, s55 offen offset:512 sc1")
    a("s_mov_b64 exec, -1")
    a(f"s_branch {lkvd}")
    a.label(lz)
    a(f"s_cmp_lg_u32 s{S_J}, 0")
    a(f"s_cbranch_scc1 {lkvd}")
    a("v_mov_b32 v80, 0")
    a("v_mov_b32 v81, 0")
    a("v_lshlrev_b32 v82, 3, v0")
    a(f"s_lshl_b32 s55, s{S_G}, 9")
    a(f"s_add_u32 s55, s55, {FLG}")
    a(f"buffer_store_dwordx2 v[80:81], v82, {WS}, s55 offen sc1")
    a.label(lkvd)
    a("v_add_u32 v45, 1024, v44")
    def publish_kv():
        lnf = a.newlabel("noflag")
        a(f"s_cmp_lg_u32 s{S_HQ}, 0")
        a(f"s_cbranch_scc1 {lnf}")
        a(f"s_cmp_lg_u32 s{S_W}, 0")
        a(f"s_cbranch_scc1 {lnf}")
        a(f"s_lshl_b32 s55, s{S_TBK}, 1")
        a("v_mov_b32 v80, 0")
        a("s_mov_b64 exec, 1")
        a(f"buffer_store_short v{QSAVE+4}, v80, s[{SRD_DBG}:{SRD_DBG+3}], s55 offen sc1")
        a("s_mov_b64 exec, -1")
        a.label(lnf)
    ACC = 96
    AB = [112, 116, 120]; BB = [124, 128, 132]
    def issue(s):
        A = AB[s % 3]; B = BB[s % 3]
        a.lg(f"ds_read_b64_tr_b16 v[{A}:{A+1}], v44", s)
        a.lg(f"ds_read_b64_tr_b16 v[{A+2}:{A+3}], v45", s)
        a.lg(f"ds_read_b128 v[{B}:{B+3}], v{40 + (s & 3)} offset:{L_XN + s*1024}", s)
        d = 4096 - (98304 if s == 23 else 0)
        a(f"v_add_u32 v44, {d & 0xffffffff:#x}, v44"); a(f"v_add_u32 v45, {d & 0xffffffff:#x}, v45")
    a.lgq = []
    issue(0); issue(1)
    for s in range(32):
        if s + 2 < 32:
            if s + 2 == 24:
                a("s_waitcnt vmcnt(0)")
                a("s_barrier")
            issue(s + 2)
        a.lg_wait(s)
        mfma(a, ACC, AB[s % 3], BB[s % 3], None if s == 0 else ACC)
        if s == 7:
            a("s_waitcnt vmcnt(0)")
            a("s_barrier")
            publish_kv()
            wq_dma(3)
    a("s_nop 15")
    a(f"s_mov_b32 s55, {f32hex(QSCALE)}")
    for r in range(8):
        a(f"v_mul_f32 v{64+r}, s55, v{ACC+r}")
    for r in range(4):
        a(f"v_cvt_pk_bf16_f32 v{QSAVE+r}, v{64+2*r}, v{65+2*r}")
    stamp(a)
    a("s_barrier")

def wjobs(a, done):
    SC = 54
    a(f"s_lshl_b32 s{SC}, s{S_W}, 12")
    a("v_and_b32 v60, 1, v11")
    a("v_lshlrev_b32 v60, 1, v60")
    a("v_lshrrev_b32 v61, 1, v11")
    a("v_add_u32 v60, v60, v61")
    a("v_lshlrev_b32 v60, 3, v60")
    a("v_and_b32 v61, 1, v2")
    a("v_lshl_add_u32 v62, v8, 3, v10")
    lwo = a.newlabel("wod"); lpub = a.newlabel("wpub")
    a("s_cmp_ge_u32 s2, 112")
    a(f"s_cbranch_scc1 {lwo}")
    a("s_lshr_b32 s55, s2, 2")
    a("s_and_b32 s60, s2, 3")
    a("s_lshl_b32 s61, s60, 3")
    a(f"s_add_u32 s61, s61, s{S_W}")
    mk_srd(a, SRD_B, P_WG, 512 * 3584)
    mk_srd(a, SRD_C, P_WU, 512 * 3584)
    a("v_lshrrev_b32 v63, 3, v0")
    a("s_mov_b32 s62, 3584")
    a("v_mul_lo_u32 v63, v63, s62")
    a("v_and_b32 v64, 7, v0")
    a("v_lshl_add_u32 v63, v64, 4, v63")
    a("s_mul_i32 s62, s61, 57344")
    a("s_lshl_b32 s63, s55, 7")
    a("s_add_u32 s62, s62, s63")
    for i in range(2):
        a(f"s_add_u32 m0, s{SC}, {i*1024}")
        a(f"s_add_u32 s63, s62, {i*8*3584}")
        a(f"buffer_load_dwordx4 v63, s[{SRD_B}:{SRD_B+3}], s63 offen lds")
        a(f"s_add_u32 m0, s{SC}, {2048 + i*1024}")
        a("s_nop 0")
        a(f"buffer_load_dwordx4 v63, s[{SRD_C}:{SRD_C+3}], s63 offen lds")
    a("v_lshlrev_b32 v64, 7, v62")
    a("v_lshl_add_u32 v64, v61, 11, v64")
    a("v_add_u32 v64, v64, v60")
    a(f"v_add_u32 v64, s{SC}, v64")
    a("s_waitcnt vmcnt(0)")
    for fbl in range(4):
        d = 68 + 4 * fbl
        a(f"ds_read_b64_tr_b16 v[{d}:{d+1}], v64 offset:{fbl*32}")
        a(f"ds_read_b64_tr_b16 v[{d+2}:{d+3}], v64 offset:{fbl*32 + 512}")
    a("s_lshl_b32 s62, s55, 7")
    a("s_add_u32 s62, s62, s61")
    a("s_lshl_b32 s62, s62, 10")
    a(f"s_add_u32 s62, s62, {WGF}")
    for r in range(4):
        a(f"v_mov_b32 v{84+r}, 0x3f803f80")
    a("s_waitcnt lgkmcnt(0)")
    for fbl in range(4):
        d = 68 + 4 * fbl
        a(f"s_add_u32 s63, s62, {fbl*32768}")
        a(f"buffer_store_dwordx4 v[{d}:{d+3}], v6, {WS}, s63 offen sc1")
    for fbl in range(4):
        mfma(a, 96 + 16 * fbl, 68 + 4 * fbl, 84, None)
    a("s_nop 15")
    a(f"s_lshl_b32 s63, s{S_W}, 9")
    a("v_lshlrev_b32 v65, 6, v8")
    a("v_add_u32 v65, s63, v65")
    a("s_mov_b32 exec_lo, 1")
    a("s_mov_b32 exec_hi, 1")
    for fbl in range(4):
        for q in range(4):
            r = 96 + 16 * fbl + 4 * q
            a(f"ds_write_b128 v65, v[{r}:{r+3}] offset:{32768 + fbl*128 + q*16}")
    a("s_mov_b64 exec, -1")
    a("s_waitcnt lgkmcnt(0)")
    a("s_barrier")
    a(f"s_cmp_ge_u32 s{S_W}, 2")
    a(f"s_cbranch_scc1 {lpub}")
    a(f"s_lshl_b32 s63, s{S_W}, 8")
    a("v_lshlrev_b32 v65, 2, v0")
    a("v_add_u32 v65, s63, v65")
    for ww in range(8):
        a(f"ds_read_b32 v{68+ww}, v65 offset:{32768 + ww*512}")
    a("s_waitcnt lgkmcnt(0)")
    for ww in range(1, 8):
        a(f"v_add_f32 v68, v68, v{68+ww}")
    a("s_mul_i32 s62, s60, 112")
    a("s_lshl_b32 s63, s55, 2")
    a("s_add_u32 s62, s62, s63")
    a("s_lshl_b32 s62, s62, 7")
    a(f"s_add_u32 s62, s62, {CSP}")
    a(f"buffer_store_dword v68, v65, {WS}, s62 offen sc1")
    a(f"s_branch {lpub}")
    a.label(lwo)
    a("s_cmp_ge_u32 s2, 184")
    a(f"s_cbranch_scc1 {done}")
    a("s_sub_u32 s55, s2, 112")
    a("s_lshl_b32 s55, s55, 3")
    a(f"s_add_u32 s55, s55, s{S_W}")
    lwd = a.newlabel("wd"); lgo = a.newlabel("wgo")
    a("s_cmp_ge_u32 s55, 128")
    a(f"s_cbranch_scc1 {lwd}")
    mk_srd(a, SRD_B, P_WO, 512 * 1024)
    a(f"s_mov_b32 s64, {WOF}")
    a("s_mov_b32 s65, 32")
    a(f"s_branch {lgo}")
    a.label(lwd)
    a("s_sub_u32 s55, s55, 128")
    mk_srd(a, SRD_B, P_WD, 1792 * 1024)
    a(f"s_mov_b32 s64, {WDF}")
    a("s_mov_b32 s65, 112")
    a.label(lgo)
    a("s_lshr_b32 s60, s55, 2")
    a("s_and_b32 s61, s55, 3")
    a("v_lshlrev_b32 v63, 10, v2")
    a("v_lshl_add_u32 v63, v3, 4, v63")
    a("s_lshl_b32 s62, s60, 14")
    a("s_lshl_b32 s63, s61, 8")
    a("s_add_u32 s62, s62, s63")
    for i in range(4):
        a(f"s_add_u32 m0, s{SC}, {i*1024}")
        a(f"s_add_u32 s63, s62, {i*4096}")
        a(f"buffer_load_dwordx4 v63, s[{SRD_B}:{SRD_B+3}], s63 offen lds")
    a("v_lshlrev_b32 v64, 8, v62")
    a("v_lshl_add_u32 v64, v61, 5, v64")
    a("v_add_u32 v64, v64, v60")
    a(f"v_add_u32 v64, s{SC}, v64")
    a("s_waitcnt vmcnt(0)")
    for ct in range(4):
        d = 68 + 4 * ct
        a(f"ds_read_b64_tr_b16 v[{d}:{d+1}], v64 offset:{ct*64}")
        a(f"ds_read_b64_tr_b16 v[{d+2}:{d+3}], v64 offset:{ct*64 + 1024}")
    a("s_lshl_b32 s62, s61, 2")
    a("s_mul_i32 s62, s62, s65")
    a("s_add_u32 s62, s62, s60")
    a("s_lshl_b32 s62, s62, 10")
    a("s_add_u32 s62, s62, s64")
    a("s_lshl_b32 s66, s65, 10")
    a("s_waitcnt lgkmcnt(0)")
    for ct in range(4):
        d = 68 + 4 * ct
        a(f"buffer_store_dwordx4 v[{d}:{d+3}], v6, {WS}, s62 offen sc1")
        if ct < 3:
            a("s_add_u32 s62, s62, s66")
    a.label(lpub)
    a("s_waitcnt vmcnt(0)")
    a("s_barrier")
    a(f"s_cmp_lg_u32 s{S_W}, 0")
    a(f"s_cbranch_scc1 {done}")
    a("v_mov_b32 v68, 1")
    a("v_mov_b32 v69, 192")
    a("s_mov_b64 exec, 1")
    a(f"buffer_atomic_add v68, v69, s[{SRD_DBG}:{SRD_DBG+3}], 0 offen sc1")
    a("s_mov_b64 exec, -1")

A_Q, A_O, A_S, A_P = 4, 8, [24, 40], 56
A_K = [64, 68]
A_V = [[72, 76], [80, 84]]
A_VK, A_VV = 88, 89
A_NEG = 96
WO_R = 92
WG_R = 128
XR = 60
BOUND2 = 1600.0

def attn_tile(a, p, extra=None):
    b = p & 1; nb = b ^ 1
    S = A_S[b]
    def ex(r): a(f"v_exp_f32 v{S+r}, v{S+r}")
    def cv(k): a(f"v_cvt_pk_bf16_f32 v{A_P+k}, v{S+2*k}, v{S+2*k+1}")
    a("s_waitcnt lgkmcnt(0)")
    mfma(a, A_S[nb], A_K[nb], A_Q, None)
    a(f"ds_read_b128 v[{A_K[b]}:{A_K[b]+3}], v{A_VK} offset:{(p+2)*1024}")
    ex(0); ex(1); ex(2); ex(3)
    cv(0)
    mfma(a, A_O, A_V[1][nb], A_P + 4, A_O)
    a("s_mov_b64 exec, s[70:71]")
    a(f"ds_read_b128 v[{A_V[0][nb]}:{A_V[0][nb]+3}], v{A_VV} offset:{(p+1)*1024}")
    a(f"ds_read_b128 v[{A_V[1][nb]}:{A_V[1][nb]+3}], v{A_VV} offset:{(p+1)*1024 + 512}")
    a("s_mov_b64 exec, -1")
    if extra: extra()
    ex(4); cv(1); ex(5); ex(6); ex(7); cv(2); ex(8); cv(3)
    ex(9); ex(10); ex(11)
    mfma(a, A_O, A_V[0][b], A_P, A_O)
    cv(4); ex(12); cv(5); ex(13); ex(14); ex(15); cv(6)
    cv(7)

def wave_consts(a):
    a(f"s_and_b32 s66, s{S_W}, 3")
    a(f"s_lshr_b32 s67, s{S_W}, 2")
    a.c("WOF + ((4cq+ct)*32 + 16kh)*1024 -> s68")
    a(f"s_lshl_b32 s68, s{S_HQ}, 2")
    a("s_add_u32 s68, s68, s66")
    a("s_lshl_b32 s68, s68, 5")
    a("s_lshl_b32 s69, s67, 4")
    a("s_add_u32 s68, s68, s69")
    a("s_lshl_b32 s68, s68, 10")
    a(f"s_add_u32 s68, s68, {WOF}")
    a.c("WGF + fb*32768 -> s73, fb = 7j + w (waves 0..6; wave 7 uses fb of wave 6, harmless duplicate)")
    a(f"s_min_u32 s73, s{S_W}, 6")
    a(f"s_mul_i32 s74, s{S_J}, 7")
    a("s_add_u32 s74, s74, s73")
    a("s_lshl_b32 s73, s74, 15")
    a(f"s_add_u32 s73, s73, {WGF}")

def ld_wg(a, s, tag="WG"):
    a(f"s_add_u32 s75, s73, {(s >> 2) * 4096}")
    a.vm(f"buffer_load_dwordx4 v[{WG_R+4*s}:{WG_R+4*s+3}], v1, {WS}, s75 offen offset:{(s&3)*1024} sc1", (tag, s))
def ld_wo(a, s):
    a(f"s_add_u32 s75, s68, {(s >> 2) * 4096}")
    a.vm(f"buffer_load_dwordx4 v[{WO_R+4*s}:{WO_R+4*s+3}], v1, {WS}, s75 offen offset:{(s&3)*1024} sc1", ("WO", s))

def prefetch_lists():
    it2 = [("g", s) for s in range(7, 32)]
    it3 = [("o", s) for s in range(16)]
    return it2, it3

def attention(a):
    a("v_lshlrev_b32 v1, 4, v0")
    for r in range(4):
        a(f"v_mov_b32 v{A_Q+r}, v{QSAVE+r}")
    a("s_mov_b32 s70, 0x0000ffff")
    a("s_mov_b32 s71, 0x0000ffff")
    for r in range(16):
        a(f"v_mov_b32 v{A_O+r}, 0")
        a(f"v_mov_b32 v{72+r}, 0x3f803f80")
    for r in range(8):
        a(f"v_mov_b32 v{A_P+r}, 0")
    a(f"v_mov_b32 v{A_VK}, v1")
    a("v_lshrrev_b32 v90, 5, v0")
    a("v_and_b32 v91, 15, v0")
    a("v_lshl_add_u32 v90, v90, 4, v91")
    a("v_lshlrev_b32 v90, 4, v90")
    a(f"v_add_u32 v{A_VV}, 65536, v90")
    wave_consts(a)
    a("v_mov_b32 v90, 0")
    for r in range(4):
        a(f"v_dot2_f32_bf16 v90, v{A_Q+r}, v{A_Q+r}, v90")
    a("v_lshlrev_b32 v2, 1, v0")
    done = a.newlabel("syncA")
    l = spin_begin(a, "pollA")
    a(f"buffer_load_ushort v3, v2, s[{SRD_DBG}:{SRD_DBG+3}], 0 offen sc1")
    a("s_waitcnt vmcnt(0)")
    a("v_cmp_eq_u32 vcc, 0, v3")
    spin_end(a, l, done)
    stamp(a)
    a("s_barrier")
    a(f"s_lshl_b32 s60, s{S_W}, 11")
    for st in range(4):
        a(f"s_add_u32 s61, s60, {st*16384}")
        a("s_mov_b32 m0, s61")
        a(f"s_add_u32 s62, s61, {KF}")
        a(f"buffer_load_dwordx4 v1, {WS}, s62 offen sc1 lds")
        a(f"buffer_load_dwordx4 v1, {WS}, s62 offen offset:1024 sc1 lds")
        a(f"s_add_u32 m0, s61, 65536")
        a(f"s_add_u32 s62, s61, {VF}")
        a(f"buffer_load_dwordx4 v1, {WS}, s62 offen sc1 lds")
        a(f"buffer_load_dwordx4 v1, {WS}, s62 offen offset:1024 sc1 lds")
    a("v_lshlrev_b32 v3, 16, v3")
    dpp_sum16(a, 3, "v_max_f32")
    xrow16(a, 3, 91, "v_max_f32")
    xhalf(a, 3, 91, "v_max_f32")
    xhalf(a, 90, 91, "v_add_f32")
    a("v_mul_f32 v90, v90, v3")
    a(f"v_mov_b32 v91, {f32hex(BOUND2)}")
    a("v_cmp_gt_f32 vcc, v90, v91")
    lslow = a.newlabel("slow"); lepi = a.newlabel("attn_epi")
    a("s_nop 4")
    a(f"s_cbranch_vccnz {lslow}")
    a("s_waitcnt vmcnt(12)")
    a("s_barrier")
    stamp(a)
    a(f"ds_read_b128 v[{A_K[0]}:{A_K[0]+3}], v{A_VK}")
    a(f"ds_read_b128 v[{A_K[1]}:{A_K[1]+3}], v{A_VK} offset:1024")
    a("s_mov_b64 exec, s[70:71]")
    a(f"ds_read_b128 v[{A_V[0][0]}:{A_V[0][0]+3}], v{A_VV}")
    a(f"ds_read_b128 v[{A_V[1][0]}:{A_V[1][0]+3}], v{A_VV} offset:512")
    a("s_mov_b64 exec, -1")
    a("s_waitcnt lgkmcnt(0)")
    mfma(a, A_S[0], A_K[0], A_Q, None)
    a("s_mov_b32 s72, 0")
    a("v_mov_b32 v2, 192")
    a("s_nop 15")
    def wready_check():
        dn = a.newlabel("wrd")
        a("v_cmp_gt_u32 vcc, 184, v3")
        a("s_nop 4")
        a(f"s_cbranch_vccz {dn}")
        l2 = spin_begin(a, "wrp")
        a(f"buffer_load_dword v3, v2, s[{SRD_DBG}:{SRD_DBG+3}], 0 offen sc1")
        a("s_waitcnt vmcnt(0)")
        a("v_cmp_gt_u32 vcc, 184, v3")
        spin_end(a, l2, dn)
    lloop = a.newlabel("attn_loop")
    a.label(lloop)
    for p in range(16):
        if p == 14:
            w1 = a.newlabel("w1"); wd = a.newlabel("wd")
            a("s_cmp_eq_u32 s72, 0")
            a(f"s_cbranch_scc0 {w1}")
            a("s_waitcnt vmcnt(8)")
            a("s_barrier")
            a(f"buffer_load_dword v3, v2, s[{SRD_DBG}:{SRD_DBG+3}], 0 offen sc1")
            a(f"s_branch {wd}")
            a.label(w1)
            a("s_waitcnt vmcnt(0)")
            a("s_barrier")
            wready_check()
            a.label(wd)
        attn_tile(a, p)
    a(f"v_add_u32 v{A_VK}, 16384, v{A_VK}")
    a(f"v_add_u32 v{A_VV}, 16384, v{A_VV}")
    a("s_add_u32 s72, s72, 1")
    a("s_cmp_lt_u32 s72, 2")
    a(f"s_cbranch_scc1 {lloop}")
    it2, it3 = prefetch_lists()
    a.vm_reset()
    def mk(items):
        def f():
            for k, s in items:
                (ld_wg if k == "g" else ld_wo)(a, s)
        return f
    for lst in (it2, it3):
        for p in range(16):
            part = lst[p * len(lst) // 14:(p + 1) * len(lst) // 14] if p < 14 else []
            attn_tile(a, p, mk(part))
        a(f"v_add_u32 v{A_VK}, 16384, v{A_VK}")
        a(f"v_add_u32 v{A_VV}, 16384, v{A_VV}")
    a("s_nop 1")
    mfma(a, A_O, A_V[1][1], A_P + 4, A_O)
    a(f"s_branch {lepi}")
    a.label(lslow)
    a("s_waitcnt vmcnt(0)")
    for _ in range(3):
        a("s_barrier")
    a("v_mov_b32 v92, 0xff800000")
    a("s_mov_b32 s72, 0")
    l1 = a.newlabel("s1")
    a.label(l1)
    a(f"ds_read_b128 v[{A_K[0]}:{A_K[0]+3}], v{A_VK}")
    a("s_waitcnt lgkmcnt(0)")
    mfma(a, A_S[0], A_K[0], A_Q, None)
    a("s_nop 15")
    for r in range(8):
        a(f"v_max3_f32 v92, v{A_S[0]+2*r}, v{A_S[0]+2*r+1}, v92")
    a(f"v_add_u32 v{A_VK}, 1024, v{A_VK}")
    a("s_add_u32 s72, s72, 1")
    a("s_cmp_lt_u32 s72, 64")
    a(f"s_cbranch_scc1 {l1}")
    xhalf(a, 92, 91, "v_max_f32")
    for r in range(16):
        a(f"v_sub_f32 v{A_NEG+r}, 0, v92")
    a(f"v_mov_b32 v{A_VK}, v1")
    a("s_mov_b32 s72, 0")
    l2 = a.newlabel("s2")
    a.label(l2)
    a(f"ds_read_b128 v[{A_K[0]}:{A_K[0]+3}], v{A_VK}")
    a("s_mov_b64 exec, s[70:71]")
    a(f"ds_read_b128 v[{A_V[0][0]}:{A_V[0][0]+3}], v{A_VV}")
    a(f"ds_read_b128 v[{A_V[1][0]}:{A_V[1][0]+3}], v{A_VV} offset:512")
    a("s_mov_b64 exec, -1")
    a("s_waitcnt lgkmcnt(0)")
    mfma(a, A_S[0], A_K[0], A_Q, A_NEG)
    a("s_nop 15")
    for r in range(16):
        a(f"v_exp_f32 v{A_S[0]+r}, v{A_S[0]+r}")
    a("s_nop 0")
    for k in range(8):
        a(f"v_cvt_pk_bf16_f32 v{A_P+k}, v{A_S[0]+2*k}, v{A_S[0]+2*k+1}")
    a("s_nop 1")
    mfma(a, A_O, A_V[0][0], A_P, A_O)
    mfma(a, A_O, A_V[1][0], A_P + 4, A_O)
    a(f"v_add_u32 v{A_VK}, 1024, v{A_VK}")
    a(f"v_add_u32 v{A_VV}, 1024, v{A_VV}")
    a("s_add_u32 s72, s72, 1")
    a("s_cmp_lt_u32 s72, 64")
    a(f"s_cbranch_scc1 {l2}")
    a("s_nop 15")
    a("v_mov_b32 v2, 192")
    a(f"buffer_load_dword v3, v2, s[{SRD_DBG}:{SRD_DBG+3}], 0 offen sc1")
    a("s_waitcnt vmcnt(0)")
    wready_check()
    sv = list(a.vmq)
    mk(it2)(); mk(it3)()
    a.vmq = sv
    a.label(lepi)
    stamp(a)
    a("s_nop 15")
    a(f"v_rcp_f32 v90, v{A_O+8}")
    a("s_nop 0")
    for r in range(8):
        a(f"v_mul_f32 v{A_O+r}, v{A_O+r}, v90")
    for k in range(4):
        a(f"v_cvt_pk_bf16_f32 v{A_P+k}, v{A_O+2*k}, v{A_O+2*k+1}")
    a.c("OF + (tbk*32 + 8hq + w)*1024")
    a(f"s_lshl_b32 s60, s{S_TBK}, 5")
    a(f"s_lshl_b32 s61, s{S_HQ}, 3")
    a("s_add_u32 s60, s60, s61")
    a(f"s_add_u32 s60, s60, s{S_W}")
    a("s_lshl_b32 s60, s60, 10")
    a(f"s_add_u32 s60, s60, {OF}")
    a(f"buffer_store_dwordx4 v[{A_P}:{A_P+3}], v1, {WS}, s60 offen sc1")

def group_flag_base(a, dst, which):
    a(f"s_lshl_b32 s{dst}, s{S_G}, 9")
    a(f"s_add_u32 s{dst}, s{dst}, {FLG + 128*which}")

def publish(a, which, vt):
    a("s_waitcnt vmcnt(0)")
    a("s_barrier")
    l = a.newlabel("pub")
    a(f"s_cmp_lg_u32 s{S_W}, 0")
    a(f"s_cbranch_scc1 {l}")
    group_flag_base(a, 60, which)
    a(f"s_lshl_b32 s61, s{S_J}, 2")
    a("s_add_u32 s60, s60, s61")
    set_flag(a, 60, vt)
    a.label(l)

def p3(a):
    mk_srd(a, SRD_A, P_X, 2048 * 1024)
    a.c("x residual: (tbk*32+t)*1024 + (128cq + 32ct + 16kh + 8half)*2 -> v[24:27]")
    a("v_and_b32 v2, 31, v0")
    a("v_lshrrev_b32 v3, 5, v0")
    a("v_lshlrev_b32 v4, 10, v2")
    a("v_lshl_add_u32 v4, v3, 4, v4")
    a(f"s_lshl_b32 s62, s{S_TBK}, 15")
    a(f"s_lshl_b32 s63, s{S_HQ}, 8")
    a("s_add_u32 s62, s62, s63")
    a("s_lshl_b32 s63, s66, 6")
    a("s_add_u32 s62, s62, s63")
    a("s_lshl_b32 s63, s67, 5")
    a("s_add_u32 s62, s62, s63")
    a(f"buffer_load_dwordx4 v[24:27], v4, s[{SRD_A}:{SRD_A+3}], s62 offen")
    publish(a, 0, 28)
    stamp(a)
    l = a.newlabel("sb")
    a(f"s_cmp_lg_u32 s{S_W}, 0")
    a(f"s_cbranch_scc1 {l}")
    group_flag_base(a, 60, 0)
    a(f"s_lshl_b32 s61, s{S_TQ}, 4")
    a("s_add_u32 s60, s60, s61")
    a("v_lshlrev_b32 v5, 2, v0")
    poll_flags(a, 60, 4, 28, 5)
    a.label(l)
    a("s_barrier")
    stamp(a)
    a.c("o fragments of this token block -> LDS [32][1024] ; wave w fetches heads 4w..4w+3")
    a(f"s_lshl_b32 s60, s{S_W}, 12")
    a("s_mov_b32 m0, s60")
    a(f"s_lshl_b32 s61, s{S_TBK}, 15")
    a("s_add_u32 s61, s61, s60")
    a(f"s_add_u32 s61, s61, {OF}")
    for e in range(4):
        a(f"buffer_load_dwordx4 v1, {WS}, s61 offen offset:{e*1024} sc1 lds")
    a("s_lshl_b32 s60, s67, 14")
    a("v_add_u32 v5, s60, v1")
    a("s_waitcnt vmcnt(0)")
    a("s_barrier")
    BBF = [32, 36, 40, 44]
    a.lgq = []
    for s in range(3):
        a.lg(f"ds_read_b128 v[{BBF[s&3]}:{BBF[s&3]+3}], v5 offset:{s*1024}", s)
    for s in range(16):
        if s + 3 < 16:
            a.lg(f"ds_read_b128 v[{BBF[(s+3)&3]}:{BBF[(s+3)&3]+3}], v5 offset:{(s+3)*1024}", s + 3)
        a.lg_wait(s)
        mfma(a, 8, WO_R + 4 * s, BBF[s & 3], None if s == 0 else 8)
    a.vm_reset()
    for s in range(7):
        ld_wg(a, s)
    a("s_nop 7")
    a.c("exchange EX[w][q][lane] at 32768")
    a(f"s_lshl_b32 s60, s{S_W}, 12")
    a("v_add_u32 v5, s60, v1")
    for q in range(4):
        a(f"ds_write_b128 v5, v[{8+4*q}:{11+4*q}] offset:{32768 + q*1024}")
    a("s_waitcnt lgkmcnt(0)")
    a("s_barrier")
    a("s_lshl_b32 s61, s67, 11")
    a("s_lshl_b32 s62, s66, 12")
    a("s_add_u32 s61, s61, s62")
    a(f"s_add_u32 s61, s61, 32768")
    a("v_add_u32 v5, s61, v1")
    a("ds_read_b128 v[8:11], v5")
    a("ds_read_b128 v[12:15], v5 offset:1024")
    a("ds_read_b128 v[16:19], v5 offset:16384")
    a("ds_read_b128 v[20:23], v5 offset:17408")
    a("s_mov_b32 s61, 0xffff0000")
    for i in range(4):
        a(f"v_lshlrev_b32 v{32+2*i}, 16, v{24+i}")
        a(f"v_and_b32 v{33+2*i}, s61, v{24+i}")
    a("s_waitcnt lgkmcnt(0)")
    for i in range(4):
        a(f"v_pk_add_f32 v[{8+2*i}:{9+2*i}], v[{8+2*i}:{9+2*i}], v[{16+2*i}:{17+2*i}]")
    for i in range(4):
        a(f"v_pk_add_f32 v[{8+2*i}:{9+2*i}], v[{8+2*i}:{9+2*i}], v[{32+2*i}:{33+2*i}]")
    for i in range(4):
        a(f"v_cvt_pk_bf16_f32 v{40+i}, v{8+2*i}, v{9+2*i}")
    a(f"s_lshl_b32 s60, s{S_TBK}, 5")
    a(f"s_lshl_b32 s61, s{S_HQ}, 3")
    a("s_add_u32 s60, s60, s61")
    a("s_lshl_b32 s61, s66, 1")
    a("s_add_u32 s60, s60, s61")
    a("s_add_u32 s60, s60, s67")
    a("s_lshl_b32 s60, s60, 10")
    a(f"s_add_u32 s60, s60, {HF}")
    a(f"buffer_store_dwordx4 v[40:43], v1, {WS}, s60 offen sc1")
    a("s_mov_b32 s61, 0x3f803f80")
    a("v_mov_b32 v44, 0")
    a("v_mov_b32 v45, 0")
    for i in range(4):
        a(f"v_dot2_f32_bf16 v44, v{40+i}, s61, v44")
        a(f"v_dot2_f32_bf16 v45, v{40+i}, v{40+i}, v45")
    a("s_nop 2")
    xhalf(a, 44, 46, "v_add_f32")
    xhalf(a, 45, 46, "v_add_f32")
    a(f"s_lshl_b32 s60, s{S_W}, 8")
    a("v_lshlrev_b32 v46, 3, v2")
    a("v_add_u32 v47, s60, v46")
    a("s_mov_b32 exec_hi, 0")
    a("ds_write_b64 v47, v[44:45] offset:0")
    a("s_mov_b64 exec, -1")
    a("s_waitcnt lgkmcnt(0)")
    a("s_barrier")
    l = a.newlabel("hst")
    a(f"s_cmp_lg_u32 s{S_W}, 0")
    a(f"s_cbranch_scc1 {l}")
    for ww in range(8):
        a(f"ds_read_b64 v[{48+2*ww}:{49+2*ww}], v46 offset:{ww*256}")
    a("s_waitcnt lgkmcnt(0)")
    for ww in range(1, 8):
        a(f"v_pk_add_f32 v[48:49], v[48:49], v[{48+2*ww}:{49+2*ww}]")
    a("v_lshlrev_b32 v46, 5, v2")
    a(f"s_lshl_b32 s60, s{S_TBK}, 10")
    a(f"s_lshl_b32 s61, s{S_HQ}, 3")
    a("s_add_u32 s60, s60, s61")
    a(f"s_add_u32 s60, s60, {HST}")
    a("s_mov_b32 exec_hi, 0")
    a(f"buffer_store_dwordx2 v[48:49], v46, {WS}, s60 offen sc1")
    a("s_mov_b64 exec, -1")
    a.label(l)
    publish(a, 1, 28)
    a.vm_reset()
    stamp(a)

L4_ST = 131072
L4_CS = 131072 + 1024
WD_R = 128
def ld_wd(a, u):
    s, ct = u >> 1, u & 1
    off = ct * 114688 + (s >> 2) * 4096
    a(f"s_add_u32 s75, s76, {off}")
    a.vm(f"buffer_load_dwordx4 v[{WD_R+4*u}:{WD_R+4*u+3}], v1, {WS}, s75 offen offset:{(s&3)*1024} sc1", ("WD", u))

def p4(a):
    a(f"s_and_b32 s77, s{S_J}, 7")
    a("s_mul_i32 s76, s77, 229376")
    a(f"s_mul_i32 s60, s{S_W}, 14336")
    a("s_add_u32 s76, s76, s60")
    a(f"s_add_u32 s76, s76, {WDF}")
    l = a.newlabel("sc")
    a(f"s_cmp_lg_u32 s{S_W}, 0")
    a(f"s_cbranch_scc1 {l}")
    group_flag_base(a, 60, 1)
    a("v_lshlrev_b32 v5, 2, v0")
    poll_flags(a, 60, 16, 28, 5)
    a.label(l)
    a("s_barrier")
    stamp(a)
    a(f"s_lshl_b32 s62, s{S_G}, 17")
    a(f"s_lshl_b32 s63, s{S_W}, 10")
    a("s_add_u32 s62, s62, s63")
    a(f"s_add_u32 s62, s62, {HF}")
    def dma(st):
        for tb in range(4):
            off = tb * 32768 + st * 8192
            a(f"s_add_u32 m0, s63, {off}")
            a(f"s_add_u32 s64, s62, {off}")
            a.vm(f"buffer_load_dwordx4 v1, {WS}, s64 offen sc1 lds", ("H", st))
    a.vm_reset()
    dma(0); dma(1)
    lhelp = a.newlabel("help"); ljoin = a.newlabel("p4join")
    a(f"s_cmp_eq_u32 s{S_W}, 7")
    a(f"s_cbranch_scc1 {lhelp}")
    sv = list(a.vmq)
    a("v_add_u32 v2, 65536, v1")
    BB = [[32 + 4 * t for t in range(4)], [48 + 4 * t for t in range(4)]]
    def breads(s):
        for tb in range(4):
            base = "v1" if tb < 2 else "v2"
            a.lg(f"ds_read_b128 v[{BB[s&1][tb]}:{BB[s&1][tb]+3}], {base} offset:{(tb&1)*32768 + s*1024}", s)
    a.lgq = []
    a.vm_wait(("H", 0))
    a("s_barrier")
    stamp(a)
    breads(0)
    for s in range(32):
        if s + 1 < 32:
            if (s + 1) % 8 == 0:
                a.vm_wait(("H", (s + 1) // 8))
                a("s_barrier")
            breads(s + 1)
        a.lg_wait(s)
        for tb in range(4):
            mfma(a, 64 + 16 * tb, WG_R + 4 * s, BB[s & 1][tb], None if s == 0 else 64 + 16 * tb)
        if s == 0: dma(2)
        if s == 4: dma(3)
        if s >= 1 and s - 1 < 28:
            ld_wd(a, s - 1)
    stamp(a)
    a("s_barrier")
    a("v_and_b32 v3, 31, v0")
    a("v_lshlrev_b32 v3, 3, v3")
    a(f"v_add_u32 v3, {L4_ST}, v3")
    for tb in range(4):
        a(f"ds_read_b64 v[{4+2*tb}:{5+2*tb}], v3 offset:{tb*256}")
    a("v_lshrrev_b32 v12, 5, v0")
    a("v_lshlrev_b32 v12, 6, v12")
    a(f"s_lshl_b32 s60, s{S_W}, 7")
    a(f"s_add_u32 s60, s60, {L4_CS}")
    a("v_add_u32 v12, s60, v12")
    for q in range(4):
        a(f"ds_read_b128 v[{16+4*q}:{19+4*q}], v12 offset:{q*16}")
    a("s_nop 7")
    a("s_waitcnt lgkmcnt(0)")
    a("s_mul_i32 s60, s74, 1024")
    a(f"s_lshl_b32 s61, s{S_G}, 2")
    a("s_mul_i32 s61, s61, 114688")
    a("s_add_u32 s60, s60, s61")
    a(f"s_add_u32 s60, s60, {HHF}")
    for tb in range(4):
        A = 64 + 16 * tb
        mean, r2 = 4 + 2 * tb, 5 + 2 * tb
        a(f"v_sub_f32 v32, 0, v{mean}")
        a(f"v_mov_b32 v33, v32")
        a(f"v_mov_b32 v34, v{r2}")
        a(f"v_mov_b32 v35, v{r2}")
        for i in range(8):
            a(f"v_pk_fma_f32 v[{A+2*i}:{A+2*i+1}], v[{16+2*i}:{17+2*i}], v[32:33], v[{A+2*i}:{A+2*i+1}]")
        for r in range(8):
            a(f"v_max_f32 v{A+r}, 0, v{A+r}")
        for i in range(4):
            a(f"v_pk_mul_f32 v[{A+8+2*i}:{A+9+2*i}], v[{A+8+2*i}:{A+9+2*i}], v[34:35]")
        for i in range(4):
            a(f"v_pk_mul_f32 v[{A+2*i}:{A+2*i+1}], v[{A+2*i}:{A+2*i+1}], v[{A+8+2*i}:{A+9+2*i}]")
        for i in range(4):
            a(f"v_cvt_pk_bf16_f32 v{36+4*(tb&1)+i}, v{A+2*i}, v{A+2*i+1}")
        a(f"buffer_store_dwordx4 v[{36+4*(tb&1)}:{39+4*(tb&1)}], v1, {WS}, s60 offen sc1")
        if tb < 3:
            a("s_add_u32 s60, s60, 114688")
    a(f"s_branch {ljoin}")
    a.label(lhelp)
    a.vmq = list(sv)
    dma(2); dma(3)
    a("v_lshlrev_b32 v2, 5, v0")
    a(f"s_lshl_b32 s60, s{S_G}, 12")
    a(f"s_add_u32 s60, s60, {HST}")
    for i in range(2):
        a.vm(f"buffer_load_dwordx4 v[{8+8*i}:{11+8*i}], v2, {WS}, s60 offen offset:{i*2048} sc1", "st")
        a.vm(f"buffer_load_dwordx4 v[{12+8*i}:{15+8*i}], v2, {WS}, s60 offen offset:{i*2048+16} sc1", "st")
    a("v_lshlrev_b32 v3, 2, v0")
    a(f"s_mul_i32 s60, s{S_J}, 896")
    a(f"s_add_u32 s60, s60, {CSP}")
    for kq in range(4):
        for i in range(4):
            a.vm(f"buffer_load_dword v{32+4*kq+i}, v3, {WS}, s60 offen offset:{i*256} sc1", "cs")
        if kq < 3:
            a("s_add_u32 s60, s60, 14336")
    for st in range(4):
        a.vm_wait(("H", st))
        a("s_barrier")
    a.vm_wait_all()
    for i in range(2):
        b = 8 + 8 * i
        a(f"v_add_f32 v{b}, v{b}, v{b+2}")
        a(f"v_add_f32 v{b+4}, v{b+4}, v{b+6}")
        a(f"v_add_f32 v{b+1}, v{b+1}, v{b+3}")
        a(f"v_add_f32 v{b+5}, v{b+5}, v{b+7}")
        a(f"v_add_f32 v{b}, v{b}, v{b+4}")
        a(f"v_add_f32 v{b+1}, v{b+1}, v{b+5}")
        a(f"v_mul_f32 v{b}, {f32hex(1.0/512)}, v{b}")
        a(f"v_mul_f32 v{b+2}, v{b}, v{b}")
        a(f"v_mov_b32 v{b+3}, {f32hex(1.0/512)}")
        a(f"v_fma_f32 v{b+1}, v{b+1}, v{b+3}, -v{b+2}")
        a(f"v_max_f32 v{b+1}, 0, v{b+1}")
        a(f"v_add_f32 v{b+1}, {f32hex(1e-5)}, v{b+1}")
        a(f"v_rcp_f32 v{b+1}, v{b+1}")
    a("v_lshlrev_b32 v4, 3, v0")
    a(f"v_add_u32 v4, {L4_ST}, v4")
    a("ds_write_b64 v4, v[8:9]")
    a("ds_write_b64 v4, v[16:17] offset:512")
    for i in range(4):
        a(f"v_add_f32 v{32+i}, v{32+i}, v{36+i}")
        a(f"v_add_f32 v{40+i}, v{40+i}, v{44+i}")
        a(f"v_add_f32 v{32+i}, v{32+i}, v{40+i}")
    a(f"v_add_u32 v3, {L4_CS}, v3")
    for i in range(3):
        a(f"ds_write_b32 v3, v{32+i} offset:{i*256}")
    a("s_mov_b32 exec_hi, 0")
    a("ds_write_b32 v3, v35 offset:768")
    a("s_mov_b64 exec, -1")
    for u in range(28):
        ld_wd(a, u)
    a("s_waitcnt lgkmcnt(0)")
    a("s_barrier")
    a.label(ljoin)
    publish(a, 2, 28)
    a.vm_reset()
    stamp(a)

def p5(a):
    mk_srd(a, SRD_A, P_OUT, 2048 * 1024)
    a(f"s_lshr_b32 s60, s{S_J}, 3")
    a(f"s_lshl_b32 s61, s{S_G}, 2")
    a("s_lshl_b32 s62, s60, 1")
    a("s_add_u32 s61, s61, s62")
    a(f"s_mul_i32 s62, s{S_W}, 14336")
    a("s_mul_i32 s64, s61, 114688")
    a("s_add_u32 s64, s64, s62")
    a(f"s_add_u32 s64, s64, {HHF}")
    a("s_add_u32 s65, s64, 114688")
    a("v_lshrrev_b32 v2, 3, v0")
    a(f"s_lshl_b32 s62, s{S_W}, 3")
    a("v_add_u32 v2, s62, v2")
    a("v_and_b32 v3, 7, v0")
    a("v_lshrrev_b32 v4, 5, v2")
    a("v_lshlrev_b32 v4, 5, v4")
    a("v_lshrrev_b32 v5, 1, v3")
    a("v_add_u32 v4, v4, v5")
    a("v_lshlrev_b32 v4, 10, v4")
    a("v_and_b32 v5, 1, v3")
    a("v_lshlrev_b32 v5, 5, v5")
    a("v_and_b32 v6, 31, v2")
    a("v_add_u32 v5, v5, v6")
    a("v_lshl_add_u32 v4, v5, 4, v4")
    a("s_lshl_b32 s62, s61, 5")
    a("s_lshl_b32 s63, s77, 2")
    a("s_add_u32 s62, s62, s63")
    a("s_lshl_b32 s62, s62, 10")
    a(f"s_add_u32 s62, s62, {HF}")
    a(f"buffer_load_dwordx4 v[8:11], v4, {WS}, s62 offen sc1")
    group_flag_base(a, 62, 2)
    a(f"s_lshl_b32 s63, s{S_W}, 3")
    a("s_add_u32 s62, s62, s63")
    a("v_lshlrev_b32 v5, 2, v0")
    poll_flags(a, 62, 2, 28, 5)
    stamp(a)
    BREG = [16, 24, 32, 40, 48, 56, 240, 248]
    ACC = 64
    a.vm_reset()
    def ldB(s):
        if s and (s & 3) == 0:
            a("s_add_u32 s64, s64, 4096"); a("s_add_u32 s65, s65, 4096")
        r = BREG[s % 8]
        a.vm(f"buffer_load_dwordx4 v[{r}:{r+3}], v1, {WS}, s64 offen offset:{(s&3)*1024} sc1", ("B", s))
        a.vm(f"buffer_load_dwordx4 v[{r+4}:{r+7}], v1, {WS}, s65 offen offset:{(s&3)*1024} sc1", ("B", s))
    for s in range(8):
        ldB(s)
    for s in range(14):
        a.vm_wait(("B", s))
        for ct in range(2):
            for tb in range(2):
                d = ACC + (ct * 2 + tb) * 16
                mfma(a, d, WD_R + (2 * s + ct) * 4, BREG[s % 8] + 4 * tb, None if s == 0 else d)
        if s + 8 < 14:
            ldB(s + 8)
    stamp(a)
    a("v_and_b32 v12, 31, v0")
    a("v_lshrrev_b32 v13, 5, v0")
    a("v_lshlrev_b32 v13, 1, v13")
    a("v_and_b32 v14, 7, v12")
    a("v_xor_b32 v13, v13, v14")
    a("v_lshlrev_b32 v12, 8, v12")
    a(f"s_lshl_b32 s62, s{S_W}, 14")
    a("v_add_u32 v12, s62, v12")
    for k, (rg, q) in enumerate([(0, 0), (0, 1), (1, 0), (1, 1)]):
        a(f"v_xor_b32 v{16+k}, {rg*4+q}, v13")
        a(f"v_lshl_add_u32 v{16+k}, v{16+k}, 4, v12")
    a("s_nop 3")
    for ct in range(2):
        for tb in range(2):
            d = ACC + (ct * 2 + tb) * 16
            for k, (rg, q) in enumerate([(0, 0), (0, 1), (1, 0), (1, 1)]):
                r = d + 8 * rg + 4 * q
                a(f"ds_write_b128 v{16+k}, v[{r}:{r+3}] offset:{ct*128 + tb*8192}")
    a("s_waitcnt lgkmcnt(0)")
    a("s_barrier")
    a("v_and_b32 v12, 7, v2")
    a("v_lshlrev_b32 v13, 1, v3")
    a("v_xor_b32 v14, v13, v12")
    a("v_or_b32 v13, 1, v13")
    a("v_xor_b32 v15, v13, v12")
    a("v_lshlrev_b32 v14, 4, v14")
    a("v_lshlrev_b32 v15, 4, v15")
    a("v_lshl_add_u32 v14, v2, 8, v14")
    a("v_lshl_add_u32 v15, v2, 8, v15")
    a("v_add_u32 v12, 65536, v14")
    a("v_add_u32 v13, 65536, v15")
    for src in range(8):
        b0, b1 = ("v14", "v15") if src < 4 else ("v12", "v13")
        a(f"ds_read_b128 v[{16+8*src}:{19+8*src}], {b0} offset:{(src&3)*16384}")
        a(f"ds_read_b128 v[{20+8*src}:{23+8*src}], {b1} offset:{(src&3)*16384}")
        if src == 3: a("s_waitcnt lgkmcnt(4)")
    a("s_mov_b32 s62, 0xffff0000")
    for i in range(4):
        a(f"v_lshlrev_b32 v{80+2*i}, 16, v{8+i}")
        a(f"v_and_b32 v{81+2*i}, s62, v{8+i}")
    a("s_waitcnt lgkmcnt(0)")
    for src in range(1, 8):
        for i in range(4):
            a(f"v_pk_add_f32 v[{16+2*i}:{17+2*i}], v[{16+2*i}:{17+2*i}], v[{16+8*src+2*i}:{17+8*src+2*i}]")
    for i in range(4):
        a(f"v_pk_add_f32 v[{16+2*i}:{17+2*i}], v[{16+2*i}:{17+2*i}], v[{80+2*i}:{81+2*i}]")
    for i in range(4):
        a(f"v_cvt_pk_bf16_f32 v{8+i}, v{16+2*i}, v{17+2*i}")
    a("v_lshlrev_b32 v4, 10, v2")
    a("v_lshl_add_u32 v4, v3, 4, v4")
    a(f"s_lshl_b32 s62, s{S_G}, 17")
    a("s_lshl_b32 s63, s60, 16")
    a("s_add_u32 s62, s62, s63")
    a("s_lshl_b32 s63, s77, 7")
    a("s_add_u32 s62, s62, s63")
    a(f"buffer_store_dwordx4 v[8:11], v4, s[{SRD_A}:{SRD_A+3}], s62 offen")

def build():
    a = Asm()
    label = G.NAME + "_kernel"
    a.raw(G.HEADER.rstrip("\n"))
    a.raw("; @launch grid=(256,1,1) block=(512,1,1) lds=163840")
    a.raw('.amdgcn_target "amdgcn-amd-amdhsa--gfx950"')
    a.raw(".text")
    a.raw(f".globl {label}")
    a.raw(".p2align 8")
    a.raw(f".type {label},@function")
    a.raw(f"{label}:")
    if PROFILE:
        a("s_memtime s[98:99]")
        a("s_memrealtime s[100:101]")
        for k in range(16): a(f"s_mov_b32 s{80+k}, 0")
    G.WS_USED = WS_USED
    G.prologue(a, "L_fin")
    mk_srd(a, SRD_DBG, P_DBG, 256)
    phase0(a)
    wdone = a.newlabel("wdone")
    wjobs(a, wdone)
    a.label(wdone)
    stamp(a)
    attention(a)
    p3(a)
    p4(a)
    p5(a)
    if PROFILE:
        a(f"s_cmp_lg_u32 s{S_W}, {PROF_WAVE}")
        a("s_cbranch_scc1 L_fin")
        a("s_waitcnt vmcnt(0) lgkmcnt(0)")
        a("s_memtime s[96:97]")
        a("s_memrealtime s[54:55]")
        a("s_waitcnt lgkmcnt(0)")
        for k in range(16):
            a(f"s_sub_u32 s{80+k}, s{80+k}, s98")
            a(f"v_mov_b32 v{k}, s{80+k}")
        a("s_sub_u32 s96, s96, s98")
        a("s_sub_u32 s54, s54, s100")
        a("v_mov_b32 v16, s96")
        a("v_mov_b32 v17, s54")
        a("v_mov_b32 v18, s100")
        a("v_mov_b32 v19, 0")
        a("s_mul_i32 s54, s2, 128")
        a(f"s_add_u32 s54, s54, {PROF}")
        a("v_mov_b32 v20, 0")
        a("s_mov_b64 exec, 1")
        for q in range(5):
            a(f"buffer_store_dwordx4 v[{4*q}:{4*q+3}], v20, {WS}, s54 offen offset:{16*q}")
    a.label("L_fin")
    a("s_endpgm")
    a.raw('.section .rodata,"a"')
    a.raw(".p2align 6")
    G.descriptor(a, label, 256)
    return a.text()

if __name__ == "__main__":
    open(sys.argv[1], "w").write(build())
```

```python
import os, sys
from asmlib import Asm
import gen as G
from gen import (S_W, S_G, S_J, S_TBK, S_HQ, S_TQ, SRD_WS, SRD_A, SRD_B, SRD_C, SRD_D, mk_srd, f32hex,
                 dpp_sum16, xhalf, xrow16, OF, HF, KF, VF, HST, CSP, WOF, WDF, WGF, HHF, QSCALE,
                 P_X, P_WQ, P_WK, P_WV, P_WO, P_WG, P_WU, P_WD, P_OUT, P_DBG, P_WS)
from kernels2 import mfma
WS = f"s[{SRD_WS}:{SRD_WS+3}]"
FLG = 0x1410000
FLG_A, FLG_W, FLG_B, FLG_C, FLG_D = FLG, FLG + 64*128, FLG + 256*128, FLG + 512*128, FLG + 768*128
NONCE = FLG + 1024*128
S_NONCE = 56
PROF = 0x1400000
WS_USED = 0x1440000
SPIN = 400000
PROFILE = G.PROFILE
PROF_WAVE = G.PROF_WAVE
PRIO = os.environ.get("PRIO", "1") == "1"
NST = [0]
STAMPSET = os.environ.get("STAMPSET", "main")
def stamp(a, kind="main"):
    if not PROFILE: return
    if kind != STAMPSET: return
    k = NST[0]; NST[0] += 1
    assert k < 16
    a("s_waitcnt lgkmcnt(0)")
    a("s_memtime s[96:97]")
    a("s_waitcnt lgkmcnt(0)")
    a(f"s_mov_b32 s{80+k}, s96")

def spin_begin(a, name):
    l = a.newlabel(name)
    a(f"s_mov_b32 s79, {SPIN}")
    a.label(l)
    return l
def spin_end(a, l, done, sleep=1):
    a("s_nop 4")
    a(f"s_cbranch_vccz {done}")
    a(f"s_sleep {sleep}")
    a("s_sub_u32 s79, s79, 1")
    a("s_cmp_lg_u32 s79, 0")
    a(f"s_cbranch_scc1 {l}")
    a.label(done)

def poll_flags(a, soff_reg, nlanes, vtmp, voff, sleep=1):
    done = a.newlabel("pd")
    a(f"v_lshlrev_b32 v{voff}, 7, v0")
    if nlanes < 64:
        a(f"s_mov_b64 exec, {hex((1 << nlanes) - 1)}")
    l = spin_begin(a, "pl")
    a(f"buffer_load_dword v{vtmp}, v{voff}, {WS}, s{soff_reg} offen sc1")
    a("s_waitcnt vmcnt(0)")
    a(f"v_cmp_ne_u32 vcc, s{S_NONCE}, v{vtmp}")
    spin_end(a, l, done, sleep)
    if nlanes < 64:
        a("s_mov_b64 exec, -1")

def set_flag(a, soff_reg, vtmp):
    a(f"v_mov_b32 v{vtmp}, s{S_NONCE}")
    a(f"v_mov_b32 v{vtmp+1}, 0")
    a("s_mov_b64 exec, 1")
    a(f"buffer_store_dword v{vtmp}, v{vtmp+1}, {WS}, s{soff_reg} offen sc1")
    a("s_mov_b64 exec, -1")

L_XN, L_WQ, L_WK, L_WV = 0, 32768, 131072, 147456
QSAVE = 250

def phase0(a):
    mk_srd(a, SRD_A, P_X, 2048 * 1024)
    mk_srd(a, SRD_B, P_WQ, 512 * 1024)
    a(f"s_lshl_b32 s54, s{S_TBK}, 5")
    a(f"s_lshl_b32 s55, s{S_W}, 2")
    a("s_add_u32 s54, s54, s55")
    a("v_lshrrev_b32 v2, 4, v0")
    a("v_and_b32 v3, 15, v0")
    a("v_add_u32 v4, s54, v2")
    a("v_lshlrev_b32 v4, 10, v4")
    a("v_lshl_add_u32 v4, v3, 4, v4")
    for i in range(4):
        a(f"buffer_load_dwordx4 v[{16+4*i}:{19+4*i}], v4, s[{SRD_A}:{SRD_A+3}], 0 offen offset:{256*i}")
    a("v_lshlrev_b32 v6, 4, v0")
    lskip = a.newlabel("nokv"); lj = a.newlabel("kvj")
    a(f"s_cmp_lg_u32 s{S_HQ}, 0")
    a(f"s_cbranch_scc1 {lskip}")
    mk_srd(a, SRD_C, P_WK, 16384)
    mk_srd(a, SRD_D, P_WV, 16384)
    a(f"s_lshl_b32 s60, s{S_W}, 11")
    for i in range(2):
        a(f"s_add_u32 s61, s60, {i*1024}")
        a(f"s_add_u32 m0, s61, {L_WK}")
        a("s_nop 0")
        a(f"buffer_load_dwordx4 v6, s[{SRD_C}:{SRD_C+3}], s61 offen lds")
        a(f"s_add_u32 m0, s61, {L_WV}")
        a("s_nop 0")
        a(f"buffer_load_dwordx4 v6, s[{SRD_D}:{SRD_D+3}], s61 offen lds")
    a.label(lskip)
    wj_setup(a)
    a("v_lshlrev_b32 v5, 1, v2")
    a("v_xor_b32 v5, v3, v5")
    a("v_lshlrev_b32 v5, 4, v5")
    a("v_lshl_add_u32 v5, v2, 10, v5")
    a(f"s_lshl_b32 s55, s{S_HQ}, 8")
    a("v_add_u32 v5, s55, v5")
    a(f"s_lshl_b32 s62, s{S_W}, 12")
    a(f"s_add_u32 s62, s62, {L_WQ}")
    a(f"s_lshl_b32 s63, s{S_W}, 14")
    def wq_dma(q):
        for i in range(4):
            a(f"s_add_u32 m0, s62, {(q % 3) * 32768 + i * 1024}")
            a(f"s_add_u32 s64, s63, {(q * 128 + 4 * i) * 1024}")
            a(f"buffer_load_dwordx4 v5, s[{SRD_B}:{SRD_B+3}], s64 offen lds")
    a("s_waitcnt vmcnt(0)")
    stamp(a)
    for q in range(3):
        wq_dma(q)
    a("s_mov_b32 s60, 0x3f803f80")
    a("v_mov_b32 v32, 0")
    a("v_mov_b32 v33, 0")
    for i in range(16):
        a(f"v_dot2_f32_bf16 v{32 + (i & 1)}, v{16+i}, s60, v{32 + (i & 1)}")
    a("s_mov_b32 s61, 0xffff0000")
    for i in range(16):
        a(f"v_lshlrev_b32 v{64+2*i}, 16, v{16+i}")
        a(f"v_and_b32 v{65+2*i}, s61, v{16+i}")
    a("v_add_f32 v32, v32, v33")
    dpp_sum16(a, 32)
    a(f"v_mul_f32 v34, {f32hex(-1.0/512)}, v32")
    a("v_mov_b32 v35, v34")
    for i in range(16):
        a(f"v_pk_add_f32 v[{64+2*i}:{65+2*i}], v[{64+2*i}:{65+2*i}], v[34:35]")
    a("v_pk_mul_f32 v[36:37], v[64:65], v[64:65]")
    a("v_pk_mul_f32 v[38:39], v[66:67], v[66:67]")
    for i in range(2, 16):
        r = 36 + 2 * (i & 1)
        a(f"v_pk_fma_f32 v[{r}:{r+1}], v[{64+2*i}:{65+2*i}], v[{64+2*i}:{65+2*i}], v[{r}:{r+1}]")
    a("v_pk_add_f32 v[36:37], v[36:37], v[38:39]")
    a("v_add_f32 v36, v36, v37")
    dpp_sum16(a, 36)
    a(f"v_mov_b32 v37, {f32hex(1e-5)}")
    a(f"v_fmac_f32 v37, {f32hex(1.0/512)}, v36")
    a("v_rsq_f32 v38, v37")
    a.c("XN write addr")
    a(f"s_lshl_b32 s55, s{S_W}, 2")
    a("v_add_u32 v7, s55, v2")
    a("v_mov_b32 v39, v38")
    for i in range(16):
        a(f"v_pk_mul_f32 v[{64+2*i}:{65+2*i}], v[{64+2*i}:{65+2*i}], v[38:39]")
    a("v_and_b32 v8, 7, v3")
    a("v_xor_b32 v7, v7, v8")
    a("v_lshlrev_b32 v7, 4, v7")
    a("v_lshrrev_b32 v8, 1, v3")
    a("v_lshl_add_u32 v7, v8, 10, v7")
    a("v_and_b32 v8, 1, v3")
    a("v_lshl_add_u32 v7, v8, 9, v7")
    for i in range(4):
        for e in range(4):
            a(f"v_cvt_pk_bf16_f32 v{16+4*i+e}, v{64+8*i+2*e}, v{65+8*i+2*e}")
        a(f"ds_write_b128 v7, v[{16+4*i}:{19+4*i}] offset:{L_XN + i*8192}")
    a("v_lshrrev_b32 v8, 5, v0")
    a("v_and_b32 v9, 31, v0")
    for m in range(4):
        a(f"v_add_u32 v10, {2*m}, v8")
        a("v_xor_b32 v10, v9, v10")
        a("v_lshlrev_b32 v10, 4, v10")
        a(f"v_lshl_add_u32 v{40+m}, v8, 9, v10")
    a("v_lshrrev_b32 v10, 2, v3")
    a("v_and_b32 v11, 3, v3")
    a("v_lshl_add_u32 v12, v8, 3, v10")
    a(f"s_lshl_b32 s55, s{S_W}, 1")
    a("v_lshrrev_b32 v13, 1, v11")
    a("v_add_u32 v13, s55, v13")
    a("v_lshlrev_b32 v14, 1, v10")
    a("v_xor_b32 v13, v13, v14")
    a("v_lshlrev_b32 v13, 4, v13")
    a("v_lshl_add_u32 v13, v12, 8, v13")
    a("v_and_b32 v14, 1, v11")
    a("v_lshl_add_u32 v13, v14, 3, v13")
    a(f"v_add_u32 v44, {L_WQ}, v13")
    a("s_waitcnt lgkmcnt(0)")
    a.c("launch tag: a fixed-point-free bijection of the tag the previous launch left (any value works)")
    a(f"s_mul_i32 s{S_NONCE}, s{S_NONCE}, 0x9E3779B1")
    a(f"s_add_u32 s{S_NONCE}, s{S_NONCE}, 0x7F4A7C15")
    a("s_barrier")
    stamp(a)
    lkvd = a.newlabel("kvdone"); lkv1 = a.newlabel("kv1")
    a(f"s_cmp_lg_u32 s{S_HQ}, 0")
    a(f"s_cbranch_scc1 {lkv1}")
    a.c("tr addr: blk0 -> WV, blk1 -> WK ; row (64w + 16e + 8khalf + 4rd + r4)*32 + cg*8")
    a("v_lshlrev_b32 v13, 5, v12")
    a("v_lshl_add_u32 v13, v11, 3, v13")
    a(f"s_lshl_b32 s55, s{S_W}, 11")
    a("v_add_u32 v13, s55, v13")
    a("v_and_b32 v14, 1, v2")
    a(f"v_mov_b32 v15, {L_WV}")
    a(f"v_mov_b32 v45, {L_WK}")
    a("v_cmp_eq_u32 vcc, 1, v14")
    a("s_nop 1")
    a("v_cndmask_b32 v15, v15, v45, vcc")
    a("v_add_u32 v13, v13, v15")
    a.c("xn frags for k-steps 4w..4w+3 : s&3 = e")
    a(f"s_lshl_b32 s55, s{S_W}, 12")
    for e in range(4):
        a(f"v_add_u32 v{46+e}, s55, v{40+e}")
    for e in range(4):
        a(f"ds_read_b64_tr_b16 v[{64+4*e}:{65+4*e}], v13 offset:{e*512}")
        a(f"ds_read_b64_tr_b16 v[{66+4*e}:{67+4*e}], v13 offset:{e*512+128}")
        a(f"ds_read_b128 v[{80+4*e}:{83+4*e}], v{46+e} offset:{L_XN + e*1024}")
    for e in range(4):
        a(f"s_waitcnt lgkmcnt({9-3*e})")
        mfma(a, 96, 64 + 4 * e, 80 + 4 * e, None if e == 0 else 96)
    a.c("RED: q=0,1 -> WK + w*2048 + q*1024 ; q=2,3 -> WV + w*2048 + (q-2)*1024  (own, already consumed rows)")
    a(f"s_lshl_b32 s55, s{S_W}, 11")
    a(f"s_add_u32 s55, s55, {L_WK}")
    a("v_add_u32 v14, s55, v6")
    a(f"v_add_u32 v15, {L_WV - L_WK}, v14")
    a("s_nop 10")
    a("ds_write_b128 v14, v[96:99]")
    a("ds_write_b128 v14, v[100:103] offset:1024")
    a("ds_write_b128 v15, v[104:107]")
    a("ds_write_b128 v15, v[108:111] offset:1024")
    a.label(lkv1)
    a("s_waitcnt vmcnt(0) lgkmcnt(0)")
    a("s_barrier")
    a(f"s_cmp_lg_u32 s{S_HQ}, 0")
    a(f"s_cbranch_scc1 {lkvd}")
    lv = a.newlabel("kv_v")
    a(f"s_cmp_eq_u32 s{S_W}, 1")
    a(f"s_cbranch_scc1 {lv}")
    a(f"s_cmp_lg_u32 s{S_W}, 0")
    a(f"s_cbranch_scc1 {lkvd}")
    def red8(base):
        a(f"v_add_u32 v14, {base}, v6")
        for ww in range(8):
            a(f"ds_read_b128 v[{64+8*ww}:{67+8*ww}], v14 offset:{ww*2048}")
            a(f"ds_read_b128 v[{68+8*ww}:{71+8*ww}], v14 offset:{ww*2048+1024}")
            if ww == 3: a("s_waitcnt lgkmcnt(4)")
        a("s_waitcnt lgkmcnt(0)")
        for ww in range(1, 8):
            for i in range(4):
                a(f"v_pk_add_f32 v[{64+2*i}:{65+2*i}], v[{64+2*i}:{65+2*i}], v[{64+8*ww+2*i}:{65+8*ww+2*i}]")
        for r in range(4):
            a(f"v_cvt_pk_bf16_f32 v{76+r}, v{64+2*r}, v{65+2*r}")
    red8(L_WV)
    a(f"s_lshl_b32 s55, s{S_TBK}, 10")
    a(f"s_add_u32 s55, s55, {KF}")
    a(f"buffer_store_dwordx4 v[76:79], v6, {WS}, s55 offen sc1")
    a("v_mov_b32 v80, 0")
    for r in range(4):
        a(f"v_dot2_f32_bf16 v80, v{76+r}, v{76+r}, v80")
    a("s_nop 2")
    xhalf(a, 80, 81, "v_add_f32")
    dpp_sum16(a, 80, "v_max_f32")
    xrow16(a, 80, 81, "v_max_f32")
    a(f"v_mov_b32 v{QSAVE+5}, v80")
    a(f"s_branch {lkvd}")
    a.label(lv)
    red8(L_WK)
    a("v_lshlrev_b32 v80, 5, v9")
    a("v_lshl_add_u32 v80, v8, 3, v80")
    a(f"v_add_u32 v80, {L_WK}, v80")
    a("ds_write_b64 v80, v[76:77]")
    a("ds_write_b64 v80, v[78:79] offset:16")
    a("v_lshl_add_u32 v81, v8, 2, v10")
    a("v_lshlrev_b32 v81, 5, v81")
    a("v_and_b32 v82, 1, v11")
    a("v_lshlrev_b32 v82, 1, v82")
    a("v_lshrrev_b32 v83, 1, v11")
    a("v_add_u32 v82, v82, v83")
    a("v_lshl_add_u32 v81, v82, 3, v81")
    a(f"v_add_u32 v81, {L_WK}, v81")
    a("s_waitcnt lgkmcnt(0)")
    for c2 in range(2):
        for rd in range(2):
            d = 84 + 4 * c2 + 2 * rd
            a(f"ds_read_b64_tr_b16 v[{d}:{d+1}], v81 offset:{(16*c2 + 8*rd) * 32}")
    a("v_lshl_add_u32 v82, v8, 4, v3")
    a("v_lshlrev_b32 v82, 4, v82")
    a(f"s_lshl_b32 s55, s{S_TBK}, 10")
    a(f"s_add_u32 s55, s55, {VF}")
    a("s_waitcnt lgkmcnt(0)")
    a("s_mov_b32 exec_lo, 0x0000ffff")
    a("s_mov_b32 exec_hi, 0x0000ffff")
    a(f"buffer_store_dwordx4 v[84:87], v82, {WS}, s55 offen sc1")
    a(f"buffer_store_dwordx4 v[88:91], v82, {WS}, s55 offen offset:512 sc1")
    a("s_mov_b64 exec, -1")
    a.label(lkvd)
    a("v_add_u32 v45, 1024, v44")
    def publish_kv():
        lnf = a.newlabel("noflag")
        a(f"s_cmp_lg_u32 s{S_HQ}, 0")
        a(f"s_cbranch_scc1 {lnf}")
        a(f"s_cmp_lg_u32 s{S_W}, 0")
        a(f"s_cbranch_scc1 {lnf}")
        a(f"s_lshl_b32 s55, s{S_TBK}, 7")
        a(f"s_add_u32 s55, s55, {FLG_A}")
        a("v_mov_b32 v80, 0")
        a(f"v_mov_b32 v{QSAVE+4}, s{S_NONCE}")
        a("s_mov_b64 exec, 1")
        a(f"buffer_store_dwordx2 v[{QSAVE+4}:{QSAVE+5}], v80, {WS}, s55 offen sc1")
        a("s_mov_b64 exec, -1")
        a.label(lnf)
    ACC = 96
    AB = [112, 116, 120]; BB = [124, 128, 132]
    def issue(s):
        A = AB[s % 3]; B = BB[s % 3]
        a.lg(f"ds_read_b64_tr_b16 v[{A}:{A+1}], v44", s)
        a.lg(f"ds_read_b64_tr_b16 v[{A+2}:{A+3}], v45", s)
        a.lg(f"ds_read_b128 v[{B}:{B+3}], v{40 + (s & 3)} offset:{L_XN + s*1024}", s)
        d = 4096 - (98304 if s == 23 else 0)
        a(f"v_add_u32 v44, {d & 0xffffffff:#x}, v44"); a(f"v_add_u32 v45, {d & 0xffffffff:#x}, v45")
    a.lgq = []
    issue(0); issue(1)
    for s in range(32):
        if s + 2 < 32:
            if s + 2 == 24:
                a("s_waitcnt vmcnt(0)")
                a("s_barrier")
            issue(s + 2)
        a.lg_wait(s)
        mfma(a, ACC, AB[s % 3], BB[s % 3], None if s == 0 else ACC)
        if s == 7:
            a("s_waitcnt vmcnt(0)")
            a("s_barrier")
            publish_kv()
            wq_dma(3)
    a("s_nop 15")
    a(f"s_mov_b32 s55, {f32hex(QSCALE)}")
    for r in range(8):
        a(f"v_mul_f32 v{64+r}, s55, v{ACC+r}")
    for r in range(4):
        a(f"v_cvt_pk_bf16_f32 v{QSAVE+r}, v{64+2*r}, v{65+2*r}")
    stamp(a)
    a("s_barrier")

L_SCR = 131072
S_JOB = 78
V_WJS, V_WJT, V_WJC = 140, 141, 142
SRD_J1, SRD_J2 = 20, 36
def wj_setup(a):
    a("v_lshrrev_b32 v143, 4, v0")
    a("v_and_b32 v144, 15, v0")
    a("v_lshrrev_b32 v145, 5, v0")
    a("v_lshrrev_b32 v146, 2, v144")
    a("v_and_b32 v147, 3, v144")
    a("v_and_b32 v148, 1, v147")
    a("v_lshlrev_b32 v148, 1, v148")
    a("v_lshrrev_b32 v149, 1, v147")
    a("v_add_u32 v148, v148, v149")
    a("v_lshlrev_b32 v148, 3, v148")
    a("v_and_b32 v149, 1, v143")
    a("v_lshl_add_u32 v150, v145, 3, v146")
    a(f"s_lshl_b32 s57, s{S_W}, 12")
    a(f"s_add_u32 s57, s57, {L_SCR}")
    a(f"s_mov_b32 s{S_JOB}, 0")
    lo = a.newlabel("wjo"); ld = a.newlabel("wjd")
    a("s_cmp_ge_u32 s2, 112")
    a(f"s_cbranch_scc1 {lo}")
    a(f"s_mov_b32 s{S_JOB}, 1")
    a("s_lshr_b32 s60, s2, 2")
    a("s_and_b32 s61, s2, 3")
    a("s_lshl_b32 s62, s61, 3")
    a(f"s_add_u32 s62, s62, s{S_W}")
    mk_srd(a, SRD_J1, P_WG, 512 * 3584)
    mk_srd(a, SRD_J2, P_WU, 512 * 3584)
    a("v_lshrrev_b32 v151, 3, v0")
    a("s_mov_b32 s63, 3584")
    a("v_mul_lo_u32 v151, v151, s63")
    a("v_and_b32 v152, 7, v0")
    a(f"v_lshl_add_u32 v{V_WJS}, v152, 4, v151")
    a("s_mul_i32 s58, s62, 57344")
    a("s_lshl_b32 s63, s60, 7")
    a("s_add_u32 s58, s58, s63")
    a("v_lshlrev_b32 v151, 7, v150")
    a("v_lshl_add_u32 v151, v149, 11, v151")
    a("v_add_u32 v151, v151, v148")
    a(f"v_add_u32 v{V_WJT}, s57, v151")
    a("s_lshl_b32 s59, s60, 7")
    a("s_add_u32 s59, s59, s62")
    a("s_lshl_b32 s59, s59, 10")
    a(f"s_add_u32 s59, s59, {WGF}")
    a("s_mul_i32 s72, s61, 112")
    a("s_lshl_b32 s63, s60, 2")
    a("s_add_u32 s72, s72, s63")
    a("s_lshl_b32 s72, s72, 7")
    a(f"s_add_u32 s72, s72, {CSP}")
    a("v_lshlrev_b32 v151, 6, v145")
    a(f"v_add_u32 v{V_WJC}, s57, v151")
    a.c("warm the L2 with the 16 source rows (one 128-byte line per row and matrix)")
    a("v_and_b32 v151, 15, v0")
    a("s_mov_b32 s63, 3584")
    a("v_mul_lo_u32 v151, v151, s63")
    a(f"buffer_load_dword v153, v151, s[{SRD_J1}:{SRD_J1+3}], s58 offen")
    a(f"buffer_load_dword v154, v151, s[{SRD_J2}:{SRD_J2+3}], s58 offen")
    a(f"s_branch {ld}")
    a.label(lo)
    a("s_cmp_ge_u32 s2, 184")
    a(f"s_cbranch_scc1 {ld}")
    a(f"s_mov_b32 s{S_JOB}, 2")
    a("s_sub_u32 s60, s2, 112")
    a("s_lshl_b32 s60, s60, 3")
    a(f"s_add_u32 s60, s60, s{S_W}")
    lwd = a.newlabel("wjwd"); lgo = a.newlabel("wjgo")
    a("s_cmp_ge_u32 s60, 128")
    a(f"s_cbranch_scc1 {lwd}")
    mk_srd(a, SRD_J1, P_WO, 512 * 1024)
    a(f"s_mov_b32 s63, {WOF}")
    a("s_mov_b32 s72, 32")
    a(f"s_branch {lgo}")
    a.label(lwd)
    a("s_sub_u32 s60, s60, 128")
    mk_srd(a, SRD_J1, P_WD, 1792 * 1024)
    a(f"s_mov_b32 s63, {WDF}")
    a("s_mov_b32 s72, 112")
    a.label(lgo)
    a("s_lshr_b32 s61, s60, 2")
    a("s_and_b32 s62, s60, 3")
    a("v_lshlrev_b32 v151, 10, v143")
    a(f"v_lshl_add_u32 v{V_WJS}, v144, 4, v151")
    a("s_lshl_b32 s58, s61, 14")
    a("s_lshl_b32 s60, s62, 8")
    a("s_add_u32 s58, s58, s60")
    a("v_lshlrev_b32 v151, 8, v150")
    a("v_lshl_add_u32 v151, v149, 5, v151")
    a("v_add_u32 v151, v151, v148")
    a(f"v_add_u32 v{V_WJT}, s57, v151")
    a("s_lshl_b32 s59, s62, 2")
    a("s_mul_i32 s59, s59, s72")
    a("s_add_u32 s59, s59, s61")
    a("s_lshl_b32 s59, s59, 10")
    a("s_add_u32 s59, s59, s63")
    a("s_lshl_b32 s72, s72, 10")
    a.label(ld)

def wj_branch(a, g_code, o_code):
    lo = a.newlabel("jo"); le = a.newlabel("je")
    a(f"s_cmp_eq_u32 s{S_JOB}, 1")
    a(f"s_cbranch_scc0 {lo}")
    if g_code: g_code()
    a(f"s_branch {le}")
    a.label(lo)
    if o_code:
        a(f"s_cmp_eq_u32 s{S_JOB}, 2")
        a(f"s_cbranch_scc0 {le}")
        o_code()
    a.label(le)

def wj_issue(a, part=None):
    def g():
        for i in ([0, 1] if part is None else [part]):
            a(f"s_add_u32 m0, s57, {i*1024}")
            a(f"s_add_u32 s63, s58, {i*8*3584}")
            a(f"buffer_load_dwordx4 v{V_WJS}, s[{SRD_J1}:{SRD_J1+3}], s63 offen lds")
            a(f"s_add_u32 m0, s57, {2048 + i*1024}")
            a("s_nop 0")
            a(f"buffer_load_dwordx4 v{V_WJS}, s[{SRD_J2}:{SRD_J2+3}], s63 offen lds")
    def o():
        for i in (range(4) if part is None else [2 * part, 2 * part + 1]):
            a(f"s_add_u32 m0, s57, {i*1024}")
            a(f"s_add_u32 s63, s58, {i*4096}")
            a(f"buffer_load_dwordx4 v{V_WJS}, s[{SRD_J1}:{SRD_J1+3}], s63 offen lds")
    wj_branch(a, g, o)

def wj_read(a, n_younger):
    def rd(st, rdoff):
        def f():
            a(f"s_waitcnt vmcnt({n_younger})")
            for q in range(4):
                d = 96 + 4 * q
                a(f"ds_read_b64_tr_b16 v[{d}:{d+1}], v{V_WJT} offset:{q*st}")
                a(f"ds_read_b64_tr_b16 v[{d+2}:{d+3}], v{V_WJT} offset:{q*st + rdoff}")
        return f
    wj_branch(a, rd(32, 512), rd(64, 1024))

def wj_store(a):
    def g():
        for r in range(4):
            a(f"v_mov_b32 v{112+r}, 0x3f803f80")
        for q in range(4):
            d = 96 + 4 * q
            a(f"s_add_u32 s63, s59, {q*32768}")
            a(f"buffer_store_dwordx4 v[{d}:{d+3}], v1, {WS}, s63 offen sc1")
        for q in range(4):
            mfma(a, 160 + 16 * q, 96 + 4 * q, 112, None)
    def o():
        a("s_mov_b32 s63, s59")
        for q in range(4):
            d = 96 + 4 * q
            a(f"buffer_store_dwordx4 v[{d}:{d+3}], v1, {WS}, s63 offen sc1")
            if q < 3: a("s_add_u32 s63, s63, s72")
    wj_branch(a, g, o)

def wj_cspart(a):
    def g():
        a("s_mov_b32 exec_lo, 1")
        a("s_mov_b32 exec_hi, 1")
        for q in range(4):
            for e in range(4):
                r = 160 + 16 * q + 4 * e
                a(f"ds_write_b128 v{V_WJC}, v[{r}:{r+3}] offset:{q*128 + e*16}")
        a("s_mov_b64 exec, -1")
    wj_branch(a, g, None)

def wj_csread(a):
    def g():
        l = a.newlabel("csr")
        a(f"s_cmp_ge_u32 s{S_W}, 2")
        a(f"s_cbranch_scc1 {l}")
        a(f"s_lshl_b32 s63, s{S_W}, 8")
        a("v_lshlrev_b32 v104, 2, v0")
        a("v_add_u32 v104, s63, v104")
        a(f"v_add_u32 v105, {L_SCR}, v104")
        for ww in range(8):
            a(f"ds_read_b32 v{96+ww}, v105 offset:{ww*4096}")
        a.label(l)
    wj_branch(a, g, None)

def wj_csstore(a):
    def g():
        l = a.newlabel("css")
        a(f"s_cmp_ge_u32 s{S_W}, 2")
        a(f"s_cbranch_scc1 {l}")
        for ww in range(1, 8):
            a(f"v_add_f32 v96, v96, v{96+ww}")
        a(f"buffer_store_dword v96, v104, {WS}, s72 offen sc1")
        a.label(l)
    wj_branch(a, g, None)

def wj_signal(a):
    l = a.newlabel("wsig")
    a(f"s_cmp_eq_u32 s{S_JOB}, 0")
    a(f"s_cbranch_scc1 {l}")
    a(f"s_cmp_lg_u32 s{S_W}, 0")
    a(f"s_cbranch_scc1 {l}")
    a("s_lshl_b32 s63, s2, 7")
    a(f"s_add_u32 s63, s63, {FLG_W}")
    set_flag(a, 63, 96)
    a.label(l)

A_Q, A_O, A_S, A_P = 4, 8, [24, 40], 56
A_K = [64, 68]
A_V = [[72, 76], [80, 84]]
A_VK, A_VV = 88, 89
A_NEG = 96
WO_R = 92
WG_R = 128
XR = 60
BOUND2 = 1600.0

def attn_tile(a, p, extra=None):
    b = p & 1; nb = b ^ 1
    S = A_S[b]
    def ex(r): a(f"v_exp_f32 v{S+r}, v{S+r}")
    def cv(k): a(f"v_cvt_pk_bf16_f32 v{A_P+k}, v{S+2*k}, v{S+2*k+1}")
    a("s_waitcnt lgkmcnt(0)")
    mfma(a, A_S[nb], A_K[nb], A_Q, None)
    a(f"ds_read_b128 v[{A_K[b]}:{A_K[b]+3}], v{A_VK} offset:{(p+2)*1024}")
    ex(0); ex(1); ex(2); ex(3)
    cv(0)
    mfma(a, A_O, A_V[1][nb], A_P + 4, A_O)
    a("s_mov_b64 exec, s[70:71]")
    a(f"ds_read_b128 v[{A_V[0][nb]}:{A_V[0][nb]+3}], v{A_VV} offset:{(p+1)*1024}")
    a(f"ds_read_b128 v[{A_V[1][nb]}:{A_V[1][nb]+3}], v{A_VV} offset:{(p+1)*1024 + 512}")
    a("s_mov_b64 exec, -1")
    if extra: extra()
    ex(4); cv(1); ex(5); ex(6); ex(7); cv(2); ex(8); cv(3)
    ex(9); ex(10); ex(11)
    mfma(a, A_O, A_V[0][b], A_P, A_O)
    cv(4); ex(12); cv(5); ex(13); ex(14); ex(15); cv(6)
    cv(7)

def wave_consts(a):
    a(f"s_and_b32 s66, s{S_W}, 3")
    a(f"s_lshr_b32 s67, s{S_W}, 2")
    a.c("WOF + ((4cq+ct)*32 + 16kh)*1024 -> s68")
    a(f"s_lshl_b32 s68, s{S_HQ}, 2")
    a("s_add_u32 s68, s68, s66")
    a("s_lshl_b32 s68, s68, 5")
    a("s_lshl_b32 s69, s67, 4")
    a("s_add_u32 s68, s68, s69")
    a("s_lshl_b32 s68, s68, 10")
    a(f"s_add_u32 s68, s68, {WOF}")
    a.c("WGF + fb*32768 -> s73, fb = 7j + w (waves 0..6; wave 7 uses fb of wave 6, harmless duplicate)")
    a(f"s_min_u32 s73, s{S_W}, 6")
    a(f"s_mul_i32 s74, s{S_J}, 7")
    a("s_add_u32 s74, s74, s73")
    a("s_lshl_b32 s73, s74, 15")
    a(f"s_add_u32 s73, s73, {WGF}")

def ld_wg(a, s, tag="WG"):
    a(f"s_add_u32 s75, s73, {(s >> 2) * 4096}")
    a.vm(f"buffer_load_dwordx4 v[{WG_R+4*s}:{WG_R+4*s+3}], v1, {WS}, s75 offen offset:{(s&3)*1024} sc1", (tag, s))
def ld_wo(a, s):
    a(f"s_add_u32 s75, s68, {(s >> 2) * 4096}")
    a.vm(f"buffer_load_dwordx4 v[{WO_R+4*s}:{WO_R+4*s+3}], v1, {WS}, s75 offen offset:{(s&3)*1024} sc1", ("WO", s))

def prefetch_lists():
    it2 = [("g", s) for s in range(7, 32)]
    it3 = [("o", s) for s in range(16)]
    return it2, it3

def kv_dma(a, st, part=None):
    if part in (None, 0):
        a(f"s_add_u32 m0, s60, {st*16384}")
        a(f"s_add_u32 s62, s60, {st*16384 + KF}")
        a(f"buffer_load_dwordx4 v1, {WS}, s62 offen sc1 lds")
        a(f"buffer_load_dwordx4 v1, {WS}, s62 offen offset:1024 sc1 lds")
    if part in (None, 1):
        a(f"s_add_u32 m0, s60, {st*16384 + 65536}")
        a(f"s_add_u32 s62, s60, {st*16384 + VF}")
        a(f"buffer_load_dwordx4 v1, {WS}, s62 offen sc1 lds")
        a(f"buffer_load_dwordx4 v1, {WS}, s62 offen offset:1024 sc1 lds")

def wready_poll(a):
    l = a.newlabel("wrq")
    a(f"s_cmp_lg_u32 s{S_W}, 0")
    a(f"s_cbranch_scc1 {l}")
    a("v_lshlrev_b32 v2, 7, v0")
    a("v_add_u32 v3, 128, v0")
    a("v_min_u32 v3, 183, v3")
    a("v_lshlrev_b32 v3, 7, v3")
    a(f"s_mov_b32 s63, {FLG_W}")
    a(f"buffer_load_dword v96, v2, {WS}, s63 offen sc1")
    a(f"s_mov_b32 s63, {FLG_W + 64*128}")
    a(f"buffer_load_dword v97, v2, {WS}, s63 offen sc1")
    a(f"s_mov_b32 s63, {FLG_W}")
    a(f"buffer_load_dword v98, v3, {WS}, s63 offen sc1")
    a.label(l)
def wready_check(a):
    l = a.newlabel("wrc"); dn = a.newlabel("wrd")
    a(f"s_cmp_lg_u32 s{S_W}, 0")
    a(f"s_cbranch_scc1 {l}")
    def test():
        a("s_waitcnt vmcnt(0)")
        a(f"v_cmp_ne_u32 vcc, s{S_NONCE}, v96")
        a(f"v_cmp_ne_u32 s[62:63], s{S_NONCE}, v97")
        a("s_nop 1")
        a("s_or_b64 s[62:63], s[62:63], vcc")
        a(f"v_cmp_ne_u32 vcc, s{S_NONCE}, v98")
        a("s_nop 4")
        a("s_or_b64 vcc, vcc, s[62:63]")
    test()
    a(f"s_cbranch_vccz {dn}")
    l2 = spin_begin(a, "wrp")
    a(f"s_mov_b32 s63, {FLG_W}")
    a(f"buffer_load_dword v96, v2, {WS}, s63 offen sc1")
    a(f"buffer_load_dword v98, v3, {WS}, s63 offen sc1")
    a(f"s_mov_b32 s63, {FLG_W + 64*128}")
    a(f"buffer_load_dword v97, v2, {WS}, s63 offen sc1")
    test()
    spin_end(a, l2, dn, 4)
    a.label(l)
    a("s_barrier")

def x_residual(a):
    mk_srd(a, SRD_A, P_X, 2048 * 1024)
    a("v_and_b32 v2, 31, v0")
    a("v_lshrrev_b32 v3, 5, v0")
    a("v_lshlrev_b32 v2, 10, v2")
    a("v_lshl_add_u32 v2, v3, 4, v2")
    a(f"s_lshl_b32 s62, s{S_TBK}, 15")
    a(f"s_lshl_b32 s63, s{S_HQ}, 8")
    a("s_add_u32 s62, s62, s63")
    a("s_lshl_b32 s63, s66, 6")
    a("s_add_u32 s62, s62, s63")
    a("s_lshl_b32 s63, s67, 5")
    a("s_add_u32 s62, s62, s63")
    a.vm(f"buffer_load_dwordx4 v[{XRES}:{XRES+3}], v2, s[{SRD_A}:{SRD_A+3}], s62 offen", "XR")
XRES = 4

def attention(a):
    a("v_lshlrev_b32 v1, 4, v0")
    for r in range(4):
        a(f"v_mov_b32 v{A_Q+r}, v{QSAVE+r}")
    a("s_mov_b32 s70, 0x0000ffff")
    a("s_mov_b32 s71, 0x0000ffff")
    for r in range(16):
        a(f"v_mov_b32 v{A_O+r}, 0")
        a(f"v_mov_b32 v{72+r}, 0x3f803f80")
    for r in range(8):
        a(f"v_mov_b32 v{A_P+r}, 0")
    a(f"v_mov_b32 v{A_VK}, v1")
    a("v_lshrrev_b32 v90, 5, v0")
    a("v_and_b32 v91, 15, v0")
    a("v_lshl_add_u32 v90, v90, 4, v91")
    a("v_lshlrev_b32 v90, 4, v90")
    a(f"v_add_u32 v{A_VV}, 65536, v90")
    wave_consts(a)
    a("v_mov_b32 v90, 0")
    for r in range(4):
        a(f"v_dot2_f32_bf16 v90, v{A_Q+r}, v{A_Q+r}, v90")
    a(f"s_lshl_b32 s60, s{S_W}, 11")
    a("s_nop 1")
    xhalf(a, 90, 91, "v_add_f32")
    la = a.newlabel("sa")
    a(f"s_cmp_lg_u32 s{S_W}, 0")
    a(f"s_cbranch_scc1 {la}")
    done = a.newlabel("syncA")
    a("v_lshlrev_b32 v2, 7, v0")
    a(f"s_mov_b32 s63, {FLG_A}")
    l = spin_begin(a, "pollA")
    a(f"buffer_load_dwordx2 v[96:97], v2, {WS}, s63 offen sc1")
    a("s_waitcnt vmcnt(0)")
    a(f"v_cmp_ne_u32 vcc, s{S_NONCE}, v96")
    spin_end(a, l, done, 2)
    dpp_sum16(a, 97, "v_max_f32")
    xrow16(a, 97, 91, "v_max_f32")
    xhalf(a, 97, 91, "v_max_f32")
    a(f"v_mov_b32 v91, {L_SCR + 4096 - 128}")
    a("s_mov_b64 exec, 1")
    a("ds_write_b32 v91, v97")
    a("s_mov_b64 exec, -1")
    a("s_waitcnt lgkmcnt(0)")
    a.label(la)
    a("s_barrier")
    stamp(a)
    kv_dma(a, 0)
    a(f"v_mov_b32 v91, {L_SCR + 4096 - 128}")
    a("ds_read_b32 v3, v91")
    a("s_waitcnt lgkmcnt(0)")
    a("v_mul_f32 v90, v90, v3")
    a(f"v_mov_b32 v91, {f32hex(BOUND2)}")
    a("v_cmp_gt_f32 vcc, v90, v91")
    a.c("workgroup-wide vote: any row that might leave the safe range sends the whole workgroup to the max-subtracting path")
    a("s_nop 4")
    a("s_cmp_lg_u64 vcc, 0")
    a("s_cselect_b32 s61, 1, 0")
    a("v_mov_b32 v90, s61")
    a(f"s_lshl_b32 s61, s{S_W}, 2")
    a(f"s_add_u32 s61, s61, {L_SCR + 4096 - 64}")
    a("v_mov_b32 v91, s61")
    a("s_mov_b64 exec, 1")
    a("ds_write_b32 v91, v90")
    a("s_mov_b64 exec, -1")
    a("s_waitcnt vmcnt(0) lgkmcnt(0)")
    a("s_barrier")
    a(f"v_mov_b32 v91, {L_SCR + 4096 - 64}")
    a("ds_read_b128 v[96:99], v91")
    a("ds_read_b128 v[100:103], v91 offset:16")
    a(f"ds_read_b128 v[{A_K[0]}:{A_K[0]+3}], v{A_VK}")
    a(f"ds_read_b128 v[{A_K[1]}:{A_K[1]+3}], v{A_VK} offset:1024")
    a("s_mov_b64 exec, s[70:71]")
    a(f"ds_read_b128 v[{A_V[0][0]}:{A_V[0][0]+3}], v{A_VV}")
    a(f"ds_read_b128 v[{A_V[1][0]}:{A_V[1][0]+3}], v{A_VV} offset:512")
    a("s_mov_b64 exec, -1")
    a("s_waitcnt lgkmcnt(0)")
    a("v_or3_b32 v96, v96, v97, v98")
    a("v_or3_b32 v100, v100, v101, v102")
    a("v_or3_b32 v96, v96, v99, v103")
    a("v_or_b32 v96, v96, v100")
    a("s_barrier")
    a("v_readfirstlane_b32 s61, v96")
    lslow = a.newlabel("slow"); lepi = a.newlabel("attn_epi")
    a("s_nop 3")
    a("s_cmp_lg_u32 s61, 0")
    a(f"s_cbranch_scc1 {lslow}")
    stamp(a)
    mfma(a, A_S[0], A_K[0], A_Q, None)
    it_pref = [("g", s) for s in range(7, 32)] + [("o", s) for s in range(16)]
    NPF0, NPF1 = 28, 62
    a("s_nop 15")
    a.vm_reset()
    def extra_for(t):
        def f():
            if t in (0, 1): kv_dma(a, 1, t)
            if t in (2, 3): wj_issue(a, t - 2)
            if t in (4, 5): kv_dma(a, 2, t - 4)
            if t in (6, 7): kv_dma(a, 3, t - 6)
            if t == 8: wj_read(a, 8)
            if t == 9: wj_store(a)
            if t == 10: wj_cspart(a)
            if t == 12: wj_csread(a)
            if t == 13: wj_csstore(a)
            if t == 24: wready_poll(a)
            if NPF0 <= t < NPF1:
                k0 = (t - NPF0) * len(it_pref) // (NPF1 - NPF0); k1 = (t + 1 - NPF0) * len(it_pref) // (NPF1 - NPF0)
                for k, s in it_pref[k0:k1]:
                    (ld_wg if k == "g" else ld_wo)(a, s)
            if t == 62: x_residual(a)
        return f
    for t in range(64):
        p = t & 15
        if t in (0, 4, 8, 12, 16, 20, 24, 28, 32, 36, 40, 48, 56, 63): stamp(a, "attn")
        if t > 0 and t % 4 == 0:
            if t == 12:
                a("s_waitcnt vmcnt(8) lgkmcnt(0)")
            if t == 16:
                a("s_waitcnt vmcnt(0)")
            if t == 28:
                wready_check(a)
            else:
                a("s_barrier")
            if t == 16:
                wj_signal(a)
        if PRIO:
            a(f"s_setprio {3 - (t & 3)}")
        attn_tile(a, p, extra_for(t))
        if p == 15 and t < 63:
            a(f"v_add_u32 v{A_VK}, 16384, v{A_VK}")
            a(f"v_add_u32 v{A_VV}, 16384, v{A_VV}")
    if PRIO: a("s_setprio 0")
    a("s_nop 1")
    mfma(a, A_O, A_V[1][1], A_P + 4, A_O)
    a(f"s_branch {lepi}")
    a.label(lslow)
    for st in range(1, 4):
        kv_dma(a, st)
    wj_issue(a)
    wj_read(a, 0)
    a("s_waitcnt lgkmcnt(0)")
    wj_store(a)
    a("s_nop 15")
    wj_cspart(a)
    a("s_waitcnt vmcnt(0) lgkmcnt(0)")
    a("s_barrier")
    wj_csread(a)
    a("s_waitcnt lgkmcnt(0)")
    wj_csstore(a)
    a("s_waitcnt vmcnt(0)")
    a("s_barrier")
    wj_signal(a)
    a("v_mov_b32 v92, 0xff800000")
    a("s_mov_b32 s55, 0")
    l1 = a.newlabel("s1")
    a.label(l1)
    a(f"ds_read_b128 v[{A_K[0]}:{A_K[0]+3}], v{A_VK}")
    a("s_waitcnt lgkmcnt(0)")
    mfma(a, A_S[0], A_K[0], A_Q, None)
    a("s_nop 15")
    for r in range(8):
        a(f"v_max3_f32 v92, v{A_S[0]+2*r}, v{A_S[0]+2*r+1}, v92")
    a(f"v_add_u32 v{A_VK}, 1024, v{A_VK}")
    a("s_add_u32 s55, s55, 1")
    a("s_cmp_lt_u32 s55, 64")
    a(f"s_cbranch_scc1 {l1}")
    xhalf(a, 92, 91, "v_max_f32")
    for r in range(16):
        a(f"v_sub_f32 v{A_NEG+r}, 0, v92")
    a(f"v_mov_b32 v{A_VK}, v1")
    a("s_mov_b32 s55, 0")
    l2 = a.newlabel("s2")
    a.label(l2)
    a(f"ds_read_b128 v[{A_K[0]}:{A_K[0]+3}], v{A_VK}")
    a("s_mov_b64 exec, s[70:71]")
    a(f"ds_read_b128 v[{A_V[0][0]}:{A_V[0][0]+3}], v{A_VV}")
    a(f"ds_read_b128 v[{A_V[1][0]}:{A_V[1][0]+3}], v{A_VV} offset:512")
    a("s_mov_b64 exec, -1")
    a("s_waitcnt lgkmcnt(0)")
    mfma(a, A_S[0], A_K[0], A_Q, A_NEG)
    a("s_nop 15")
    for r in range(16):
        a(f"v_exp_f32 v{A_S[0]+r}, v{A_S[0]+r}")
    a("s_nop 0")
    for k in range(8):
        a(f"v_cvt_pk_bf16_f32 v{A_P+k}, v{A_S[0]+2*k}, v{A_S[0]+2*k+1}")
    a("s_nop 1")
    mfma(a, A_O, A_V[0][0], A_P, A_O)
    mfma(a, A_O, A_V[1][0], A_P + 4, A_O)
    a(f"v_add_u32 v{A_VK}, 1024, v{A_VK}")
    a(f"v_add_u32 v{A_VV}, 1024, v{A_VV}")
    a("s_add_u32 s55, s55, 1")
    a("s_cmp_lt_u32 s55, 64")
    a(f"s_cbranch_scc1 {l2}")
    a("s_nop 15")
    wready_poll(a)
    wready_check(a)
    sv = list(a.vmq)
    for k, s in it_pref:
        (ld_wg if k == "g" else ld_wo)(a, s)
    x_residual(a)
    a.vmq = sv
    a.label(lepi)
    stamp(a)
    a("s_nop 15")
    a(f"v_rcp_f32 v90, v{A_O+8}")
    a("s_nop 0")
    for r in range(8):
        a(f"v_mul_f32 v{A_O+r}, v{A_O+r}, v90")
    for k in range(4):
        a(f"v_cvt_pk_bf16_f32 v{A_P+k}, v{A_O+2*k}, v{A_O+2*k+1}")
    a.c("OF + (tbk*32 + 8hq + w)*1024")
    a(f"s_lshl_b32 s60, s{S_TBK}, 5")
    a(f"s_lshl_b32 s61, s{S_HQ}, 3")
    a("s_add_u32 s60, s60, s61")
    a(f"s_add_u32 s60, s60, s{S_W}")
    a("s_lshl_b32 s60, s60, 10")
    a(f"s_add_u32 s60, s60, {OF}")
    a(f"buffer_store_dwordx4 v[{A_P}:{A_P+3}], v1, {WS}, s60 offen sc1")

def group_flag_base(a, dst, which):
    a(f"s_lshl_b32 s{dst}, s{S_G}, 11")
    a(f"s_add_u32 s{dst}, s{dst}, {[FLG_B, FLG_C, FLG_D][which]}")

def publish(a, which, vt):
    a("s_waitcnt vmcnt(0)")
    a("s_barrier")
    l = a.newlabel("pub")
    a(f"s_cmp_lg_u32 s{S_W}, 0")
    a(f"s_cbranch_scc1 {l}")
    group_flag_base(a, 60, which)
    a(f"s_lshl_b32 s61, s{S_J}, 7")
    a("s_add_u32 s60, s60, s61")
    set_flag(a, 60, vt)
    a.label(l)

def p3(a):
    a("v_and_b32 v2, 31, v0")
    publish(a, 0, 28)
    stamp(a)
    l = a.newlabel("sb")
    a(f"s_cmp_lg_u32 s{S_W}, 0")
    a(f"s_cbranch_scc1 {l}")
    group_flag_base(a, 60, 0)
    a(f"s_lshl_b32 s61, s{S_TQ}, 9")
    a("s_add_u32 s60, s60, s61")
    poll_flags(a, 60, 4, 28, 30)
    a.label(l)
    a("s_barrier")
    stamp(a)
    a.c("o fragments of this token block -> LDS [32][1024] ; wave w fetches heads 4w..4w+3")
    a(f"s_lshl_b32 s60, s{S_W}, 12")
    a("s_mov_b32 m0, s60")
    a(f"s_lshl_b32 s61, s{S_TBK}, 15")
    a("s_add_u32 s61, s61, s60")
    a(f"s_add_u32 s61, s61, {OF}")
    for e in range(4):
        a(f"buffer_load_dwordx4 v1, {WS}, s61 offen offset:{e*1024} sc1 lds")
    a("s_lshl_b32 s60, s67, 14")
    a("v_add_u32 v30, s60, v1")
    a("s_waitcnt vmcnt(0)")
    a("s_barrier")
    BBF = [32, 36, 40, 44]
    a.lgq = []
    for s in range(3):
        a.lg(f"ds_read_b128 v[{BBF[s&3]}:{BBF[s&3]+3}], v30 offset:{s*1024}", s)
    for s in range(16):
        if s + 3 < 16:
            a.lg(f"ds_read_b128 v[{BBF[(s+3)&3]}:{BBF[(s+3)&3]+3}], v30 offset:{(s+3)*1024}", s + 3)
        a.lg_wait(s)
        mfma(a, 8, WO_R + 4 * s, BBF[s & 3], None if s == 0 else 8)
    a.vm_reset()
    for s in range(7):
        ld_wg(a, s)
    a("s_nop 7")
    a.c("exchange EX[w][q][lane] at 32768")
    a(f"s_lshl_b32 s60, s{S_W}, 12")
    a("v_add_u32 v30, s60, v1")
    for q in range(4):
        a(f"ds_write_b128 v30, v[{8+4*q}:{11+4*q}] offset:{32768 + q*1024}")
    a("s_waitcnt lgkmcnt(0)")
    a("s_barrier")
    a("s_lshl_b32 s61, s67, 11")
    a("s_lshl_b32 s62, s66, 12")
    a("s_add_u32 s61, s61, s62")
    a(f"s_add_u32 s61, s61, 32768")
    a("v_add_u32 v30, s61, v1")
    a("ds_read_b128 v[8:11], v30")
    a("ds_read_b128 v[12:15], v30 offset:1024")
    a("ds_read_b128 v[16:19], v30 offset:16384")
    a("ds_read_b128 v[20:23], v30 offset:17408")
    a("s_mov_b32 s61, 0xffff0000")
    for i in range(4):
        a(f"v_lshlrev_b32 v{32+2*i}, 16, v{XRES+i}")
        a(f"v_and_b32 v{33+2*i}, s61, v{XRES+i}")
    a("s_waitcnt lgkmcnt(0)")
    for i in range(4):
        a(f"v_pk_add_f32 v[{8+2*i}:{9+2*i}], v[{8+2*i}:{9+2*i}], v[{16+2*i}:{17+2*i}]")
    for i in range(4):
        a(f"v_pk_add_f32 v[{8+2*i}:{9+2*i}], v[{8+2*i}:{9+2*i}], v[{32+2*i}:{33+2*i}]")
    for i in range(4):
        a(f"v_cvt_pk_bf16_f32 v{40+i}, v{8+2*i}, v{9+2*i}")
    a(f"s_lshl_b32 s60, s{S_TBK}, 5")
    a(f"s_lshl_b32 s61, s{S_HQ}, 3")
    a("s_add_u32 s60, s60, s61")
    a("s_lshl_b32 s61, s66, 1")
    a("s_add_u32 s60, s60, s61")
    a("s_add_u32 s60, s60, s67")
    a("s_lshl_b32 s60, s60, 10")
    a(f"s_add_u32 s60, s60, {HF}")
    a(f"buffer_store_dwordx4 v[40:43], v1, {WS}, s60 offen sc1")
    a("s_mov_b32 s61, 0x3f803f80")
    a("v_mov_b32 v44, 0")
    a("v_mov_b32 v45, 0")
    for i in range(4):
        a(f"v_dot2_f32_bf16 v44, v{40+i}, s61, v44")
        a(f"v_dot2_f32_bf16 v45, v{40+i}, v{40+i}, v45")
    a("s_nop 2")
    xhalf(a, 44, 46, "v_add_f32")
    xhalf(a, 45, 46, "v_add_f32")
    a(f"s_lshl_b32 s60, s{S_W}, 8")
    a("v_lshlrev_b32 v46, 3, v2")
    a("v_add_u32 v47, s60, v46")
    a("s_mov_b32 exec_hi, 0")
    a("ds_write_b64 v47, v[44:45] offset:0")
    a("s_mov_b64 exec, -1")
    a("s_waitcnt lgkmcnt(0)")
    a("s_barrier")
    l = a.newlabel("hst")
    a(f"s_cmp_lg_u32 s{S_W}, 0")
    a(f"s_cbranch_scc1 {l}")
    for ww in range(8):
        a(f"ds_read_b64 v[{48+2*ww}:{49+2*ww}], v46 offset:{ww*256}")
    a("s_waitcnt lgkmcnt(0)")
    for ww in range(1, 8):
        a(f"v_pk_add_f32 v[48:49], v[48:49], v[{48+2*ww}:{49+2*ww}]")
    a("v_lshlrev_b32 v46, 5, v2")
    a(f"s_lshl_b32 s60, s{S_TBK}, 10")
    a(f"s_lshl_b32 s61, s{S_HQ}, 3")
    a("s_add_u32 s60, s60, s61")
    a(f"s_add_u32 s60, s60, {HST}")
    a("s_mov_b32 exec_hi, 0")
    a(f"buffer_store_dwordx2 v[48:49], v46, {WS}, s60 offen sc1")
    a("s_mov_b64 exec, -1")
    a.label(l)
    publish(a, 1, 28)
    a.vm_reset()
    stamp(a)

L4_ST = 131072
L4_CS = 131072 + 1024
WD_R = 128
def ld_wd(a, u):
    s, ct = u >> 1, u & 1
    off = ct * 114688 + (s >> 2) * 4096
    a(f"s_add_u32 s75, s76, {off}")
    a.vm(f"buffer_load_dwordx4 v[{WD_R+4*u}:{WD_R+4*u+3}], v1, {WS}, s75 offen offset:{(s&3)*1024} sc1", ("WD", u))

def p4(a):
    a(f"s_and_b32 s77, s{S_J}, 7")
    a("s_mul_i32 s76, s77, 229376")
    a(f"s_mul_i32 s60, s{S_W}, 14336")
    a("s_add_u32 s76, s76, s60")
    a(f"s_add_u32 s76, s76, {WDF}")
    l = a.newlabel("sc")
    a(f"s_cmp_lg_u32 s{S_W}, 0")
    a(f"s_cbranch_scc1 {l}")
    group_flag_base(a, 60, 1)
    poll_flags(a, 60, 16, 28, 5)
    a.label(l)
    a("s_barrier")
    stamp(a)
    a(f"s_lshl_b32 s62, s{S_G}, 17")
    a(f"s_lshl_b32 s63, s{S_W}, 10")
    a("s_add_u32 s62, s62, s63")
    a(f"s_add_u32 s62, s62, {HF}")
    def dma(st):
        for tb in range(4):
            off = tb * 32768 + st * 8192
            a(f"s_add_u32 m0, s63, {off}")
            a(f"s_add_u32 s64, s62, {off}")
            a.vm(f"buffer_load_dwordx4 v1, {WS}, s64 offen sc1 lds", ("H", st))
    a.vm_reset()
    dma(0); dma(1)
    lhelp = a.newlabel("help"); ljoin = a.newlabel("p4join")
    a(f"s_cmp_eq_u32 s{S_W}, 7")
    a(f"s_cbranch_scc1 {lhelp}")
    sv = list(a.vmq)
    a("v_add_u32 v2, 65536, v1")
    BB = [[32 + 4 * t for t in range(4)], [48 + 4 * t for t in range(4)]]
    def breads(s):
        for tb in range(4):
            base = "v1" if tb < 2 else "v2"
            a.lg(f"ds_read_b128 v[{BB[s&1][tb]}:{BB[s&1][tb]+3}], {base} offset:{(tb&1)*32768 + s*1024}", s)
    a.lgq = []
    a.vm_wait(("H", 0))
    a("s_barrier")
    stamp(a)
    breads(0)
    for s in range(32):
        if s + 1 < 32:
            if (s + 1) % 8 == 0:
                a.vm_wait(("H", (s + 1) // 8))
                a("s_barrier")
            breads(s + 1)
        a.lg_wait(s)
        for tb in range(4):
            mfma(a, 64 + 16 * tb, WG_R + 4 * s, BB[s & 1][tb], None if s == 0 else 64 + 16 * tb)
        if s == 0: dma(2)
        if s == 4: dma(3)
        if s >= 1 and s - 1 < 28:
            ld_wd(a, s - 1)
    stamp(a)
    a("s_barrier")
    a("v_and_b32 v3, 31, v0")
    a("v_lshlrev_b32 v3, 3, v3")
    a(f"v_add_u32 v3, {L4_ST}, v3")
    for tb in range(4):
        a(f"ds_read_b64 v[{4+2*tb}:{5+2*tb}], v3 offset:{tb*256}")
    a("v_lshrrev_b32 v12, 5, v0")
    a("v_lshlrev_b32 v12, 6, v12")
    a(f"s_lshl_b32 s60, s{S_W}, 7")
    a(f"s_add_u32 s60, s60, {L4_CS}")
    a("v_add_u32 v12, s60, v12")
    for q in range(4):
        a(f"ds_read_b128 v[{16+4*q}:{19+4*q}], v12 offset:{q*16}")
    a("s_nop 7")
    a("s_waitcnt lgkmcnt(0)")
    a("s_mul_i32 s60, s74, 1024")
    a(f"s_lshl_b32 s61, s{S_G}, 2")
    a("s_mul_i32 s61, s61, 114688")
    a("s_add_u32 s60, s60, s61")
    a(f"s_add_u32 s60, s60, {HHF}")
    for tb in range(4):
        A = 64 + 16 * tb
        mean, r2 = 4 + 2 * tb, 5 + 2 * tb
        a(f"v_sub_f32 v32, 0, v{mean}")
        a(f"v_mov_b32 v33, v32")
        a(f"v_mov_b32 v34, v{r2}")
        a(f"v_mov_b32 v35, v{r2}")
        for i in range(8):
            a(f"v_pk_fma_f32 v[{A+2*i}:{A+2*i+1}], v[{16+2*i}:{17+2*i}], v[32:33], v[{A+2*i}:{A+2*i+1}]")
        for r in range(8):
            a(f"v_max_f32 v{A+r}, 0, v{A+r}")
        for i in range(4):
            a(f"v_pk_mul_f32 v[{A+8+2*i}:{A+9+2*i}], v[{A+8+2*i}:{A+9+2*i}], v[34:35]")
        for i in range(4):
            a(f"v_pk_mul_f32 v[{A+2*i}:{A+2*i+1}], v[{A+2*i}:{A+2*i+1}], v[{A+8+2*i}:{A+9+2*i}]")
        for i in range(4):
            a(f"v_cvt_pk_bf16_f32 v{36+4*(tb&1)+i}, v{A+2*i}, v{A+2*i+1}")
        a(f"buffer_store_dwordx4 v[{36+4*(tb&1)}:{39+4*(tb&1)}], v1, {WS}, s60 offen sc1")
        if tb < 3:
            a("s_add_u32 s60, s60, 114688")
    a(f"s_branch {ljoin}")
    a.label(lhelp)
    a.vmq = list(sv)
    dma(2); dma(3)
    a("v_lshlrev_b32 v2, 5, v0")
    a(f"s_lshl_b32 s60, s{S_G}, 12")
    a(f"s_add_u32 s60, s60, {HST}")
    for i in range(2):
        a.vm(f"buffer_load_dwordx4 v[{8+8*i}:{11+8*i}], v2, {WS}, s60 offen offset:{i*2048} sc1", "st")
        a.vm(f"buffer_load_dwordx4 v[{12+8*i}:{15+8*i}], v2, {WS}, s60 offen offset:{i*2048+16} sc1", "st")
    a("v_lshlrev_b32 v3, 2, v0")
    a(f"s_mul_i32 s60, s{S_J}, 896")
    a(f"s_add_u32 s60, s60, {CSP}")
    for kq in range(4):
        for i in range(4):
            a.vm(f"buffer_load_dword v{32+4*kq+i}, v3, {WS}, s60 offen offset:{i*256} sc1", "cs")
        if kq < 3:
            a("s_add_u32 s60, s60, 14336")
    for st in range(4):
        a.vm_wait(("H", st))
        a("s_barrier")
    a.vm_wait_all()
    for i in range(2):
        b = 8 + 8 * i
        a(f"v_add_f32 v{b}, v{b}, v{b+2}")
        a(f"v_add_f32 v{b+4}, v{b+4}, v{b+6}")
        a(f"v_add_f32 v{b+1}, v{b+1}, v{b+3}")
        a(f"v_add_f32 v{b+5}, v{b+5}, v{b+7}")
        a(f"v_add_f32 v{b}, v{b}, v{b+4}")
        a(f"v_add_f32 v{b+1}, v{b+1}, v{b+5}")
        a(f"v_mul_f32 v{b}, {f32hex(1.0/512)}, v{b}")
        a(f"v_mul_f32 v{b+2}, v{b}, v{b}")
        a(f"v_mov_b32 v{b+3}, {f32hex(1.0/512)}")
        a(f"v_fma_f32 v{b+1}, v{b+1}, v{b+3}, -v{b+2}")
        a(f"v_max_f32 v{b+1}, 0, v{b+1}")
        a(f"v_add_f32 v{b+1}, {f32hex(1e-5)}, v{b+1}")
        a(f"v_rcp_f32 v{b+1}, v{b+1}")
    a("v_lshlrev_b32 v4, 3, v0")
    a(f"v_add_u32 v4, {L4_ST}, v4")
    a("ds_write_b64 v4, v[8:9]")
    a("ds_write_b64 v4, v[16:17] offset:512")
    for i in range(4):
        a(f"v_add_f32 v{32+i}, v{32+i}, v{36+i}")
        a(f"v_add_f32 v{40+i}, v{40+i}, v{44+i}")
        a(f"v_add_f32 v{32+i}, v{32+i}, v{40+i}")
    a(f"v_add_u32 v3, {L4_CS}, v3")
    for i in range(3):
        a(f"ds_write_b32 v3, v{32+i} offset:{i*256}")
    a("s_mov_b32 exec_hi, 0")
    a("ds_write_b32 v3, v35 offset:768")
    a("s_mov_b64 exec, -1")
    for u in range(28):
        ld_wd(a, u)
    a("s_waitcnt lgkmcnt(0)")
    a("s_barrier")
    a.label(ljoin)
    publish(a, 2, 28)
    a.vm_reset()
    stamp(a)

def p5(a):
    mk_srd(a, SRD_A, P_OUT, 2048 * 1024)
    a(f"s_lshr_b32 s60, s{S_J}, 3")
    a(f"s_lshl_b32 s61, s{S_G}, 2")
    a("s_lshl_b32 s62, s60, 1")
    a("s_add_u32 s61, s61, s62")
    a(f"s_mul_i32 s62, s{S_W}, 14336")
    a("s_mul_i32 s64, s61, 114688")
    a("s_add_u32 s64, s64, s62")
    a(f"s_add_u32 s64, s64, {HHF}")
    a("s_add_u32 s65, s64, 114688")
    a("v_lshrrev_b32 v2, 3, v0")
    a(f"s_lshl_b32 s62, s{S_W}, 3")
    a("v_add_u32 v2, s62, v2")
    a("v_and_b32 v3, 7, v0")
    a("v_lshrrev_b32 v4, 5, v2")
    a("v_lshlrev_b32 v4, 5, v4")
    a("v_lshrrev_b32 v5, 1, v3")
    a("v_add_u32 v4, v4, v5")
    a("v_lshlrev_b32 v4, 10, v4")
    a("v_and_b32 v5, 1, v3")
    a("v_lshlrev_b32 v5, 5, v5")
    a("v_and_b32 v6, 31, v2")
    a("v_add_u32 v5, v5, v6")
    a("v_lshl_add_u32 v4, v5, 4, v4")
    a("s_lshl_b32 s62, s61, 5")
    a("s_lshl_b32 s63, s77, 2")
    a("s_add_u32 s62, s62, s63")
    a("s_lshl_b32 s62, s62, 10")
    a(f"s_add_u32 s62, s62, {HF}")
    a(f"buffer_load_dwordx4 v[8:11], v4, {WS}, s62 offen sc1")
    group_flag_base(a, 62, 2)
    a(f"s_lshl_b32 s63, s{S_W}, 8")
    a("s_add_u32 s62, s62, s63")
    poll_flags(a, 62, 2, 28, 5)
    stamp(a)
    BREG = [16, 24, 32, 40, 48, 56, 240, 248]
    ACC = 64
    a.vm_reset()
    def ldB(s):
        if s and (s & 3) == 0:
            a("s_add_u32 s64, s64, 4096"); a("s_add_u32 s65, s65, 4096")
        r = BREG[s % 8]
        a.vm(f"buffer_load_dwordx4 v[{r}:{r+3}], v1, {WS}, s64 offen offset:{(s&3)*1024} sc1", ("B", s))
        a.vm(f"buffer_load_dwordx4 v[{r+4}:{r+7}], v1, {WS}, s65 offen offset:{(s&3)*1024} sc1", ("B", s))
    for s in range(8):
        ldB(s)
    for s in range(14):
        a.vm_wait(("B", s))
        for ct in range(2):
            for tb in range(2):
                d = ACC + (ct * 2 + tb) * 16
                mfma(a, d, WD_R + (2 * s + ct) * 4, BREG[s % 8] + 4 * tb, None if s == 0 else d)
        if s + 8 < 14:
            ldB(s + 8)
    stamp(a)
    a("v_and_b32 v12, 31, v0")
    a("v_lshrrev_b32 v13, 5, v0")
    a("v_lshlrev_b32 v13, 1, v13")
    a("v_and_b32 v14, 7, v12")
    a("v_xor_b32 v13, v13, v14")
    a("v_lshlrev_b32 v12, 8, v12")
    a(f"s_lshl_b32 s62, s{S_W}, 14")
    a("v_add_u32 v12, s62, v12")
    for k, (rg, q) in enumerate([(0, 0), (0, 1), (1, 0), (1, 1)]):
        a(f"v_xor_b32 v{16+k}, {rg*4+q}, v13")
        a(f"v_lshl_add_u32 v{16+k}, v{16+k}, 4, v12")
    a("s_nop 3")
    for ct in range(2):
        for tb in range(2):
            d = ACC + (ct * 2 + tb) * 16
            for k, (rg, q) in enumerate([(0, 0), (0, 1), (1, 0), (1, 1)]):
                r = d + 8 * rg + 4 * q
                a(f"ds_write_b128 v{16+k}, v[{r}:{r+3}] offset:{ct*128 + tb*8192}")
    a("s_waitcnt lgkmcnt(0)")
    a("s_barrier")
    a("v_and_b32 v12, 7, v2")
    a("v_lshlrev_b32 v13, 1, v3")
    a("v_xor_b32 v14, v13, v12")
    a("v_or_b32 v13, 1, v13")
    a("v_xor_b32 v15, v13, v12")
    a("v_lshlrev_b32 v14, 4, v14")
    a("v_lshlrev_b32 v15, 4, v15")
    a("v_lshl_add_u32 v14, v2, 8, v14")
    a("v_lshl_add_u32 v15, v2, 8, v15")
    a("v_add_u32 v12, 65536, v14")
    a("v_add_u32 v13, 65536, v15")
    for src in range(8):
        b0, b1 = ("v14", "v15") if src < 4 else ("v12", "v13")
        a(f"ds_read_b128 v[{16+8*src}:{19+8*src}], {b0} offset:{(src&3)*16384}")
        a(f"ds_read_b128 v[{20+8*src}:{23+8*src}], {b1} offset:{(src&3)*16384}")
        if src == 3: a("s_waitcnt lgkmcnt(4)")
    a("s_mov_b32 s62, 0xffff0000")
    for i in range(4):
        a(f"v_lshlrev_b32 v{80+2*i}, 16, v{8+i}")
        a(f"v_and_b32 v{81+2*i}, s62, v{8+i}")
    a("s_waitcnt lgkmcnt(0)")
    for src in range(1, 8):
        for i in range(4):
            a(f"v_pk_add_f32 v[{16+2*i}:{17+2*i}], v[{16+2*i}:{17+2*i}], v[{16+8*src+2*i}:{17+8*src+2*i}]")
    for i in range(4):
        a(f"v_pk_add_f32 v[{16+2*i}:{17+2*i}], v[{16+2*i}:{17+2*i}], v[{80+2*i}:{81+2*i}]")
    for i in range(4):
        a(f"v_cvt_pk_bf16_f32 v{8+i}, v{16+2*i}, v{17+2*i}")
    a("v_lshlrev_b32 v4, 10, v2")
    a("v_lshl_add_u32 v4, v3, 4, v4")
    a(f"s_lshl_b32 s62, s{S_G}, 17")
    a("s_lshl_b32 s63, s60, 16")
    a("s_add_u32 s62, s62, s63")
    a("s_lshl_b32 s63, s77, 7")
    a("s_add_u32 s62, s62, s63")
    a(f"buffer_store_dwordx4 v[8:11], v4, s[{SRD_A}:{SRD_A+3}], s62 offen")

def build():
    a = Asm()
    label = G.NAME + "_kernel"
    a.raw(G.HEADER.rstrip("\n"))
    a.raw("; @launch grid=(256,1,1) block=(512,1,1) lds=163840")
    a.raw('.amdgcn_target "amdgcn-amd-amdhsa--gfx950"')
    a.raw(".text")
    a.raw(f".globl {label}")
    a.raw(".p2align 8")
    a.raw(f".type {label},@function")
    a.raw(f"{label}:")
    if PROFILE:
        a("s_memtime s[98:99]")
        a("s_memrealtime s[100:101]")
        for k in range(16): a(f"s_mov_b32 s{80+k}, 0")
    G.WS_USED = WS_USED
    G.prologue(a, "L_fin")
    a(f"s_add_u32 s60, s{P_WS}, {NONCE}")
    a(f"s_addc_u32 s61, s{P_WS+1}, 0")
    a(f"s_load_dword s{S_NONCE}, s[60:61], 0")
    phase0(a)
    attention(a)
    p3(a)
    p4(a)
    p5(a)
    lnn = a.newlabel("nn")
    a("s_cmp_lg_u32 s2, 0")
    a(f"s_cbranch_scc1 {lnn}")
    a(f"s_cmp_lg_u32 s{S_W}, 0")
    a(f"s_cbranch_scc1 {lnn}")
    a(f"s_mov_b32 s62, {NONCE}")
    set_flag(a, 62, 28)
    a.label(lnn)
    if PROFILE:
        a(f"s_cmp_lg_u32 s{S_W}, {PROF_WAVE}")
        a("s_cbranch_scc1 L_fin")
        a("s_waitcnt vmcnt(0) lgkmcnt(0)")
        a("s_memtime s[96:97]")
        a("s_memrealtime s[54:55]")
        a("s_waitcnt lgkmcnt(0)")
        for k in range(16):
            a(f"s_sub_u32 s{80+k}, s{80+k}, s98")
            a(f"v_mov_b32 v{k}, s{80+k}")
        a("s_sub_u32 s96, s96, s98")
        a("s_sub_u32 s54, s54, s100")
        a("v_mov_b32 v16, s96")
        a("v_mov_b32 v17, s54")
        a("v_mov_b32 v18, s100")
        a("v_mov_b32 v19, 0")
        a("s_mul_i32 s54, s2, 128")
        a(f"s_add_u32 s54, s54, {PROF}")
        a("v_mov_b32 v20, 0")
        a("s_mov_b64 exec, 1")
        for q in range(5):
            a(f"buffer_store_dwordx4 v[{4*q}:{4*q+3}], v20, {WS}, s54 offen offset:{16*q}")
    a.label("L_fin")
    a("s_endpgm")
    a.raw('.section .rodata,"a"')
    a.raw(".p2align 6")
    G.descriptor(a, label, 256)
    return a.text()

if __name__ == "__main__":
    open(sys.argv[1], "w").write(build())
```

```python
import os, sys
from asmlib import Asm
import gen as G
from gen import (S_W, S_G, S_J, S_TBK, S_HQ, S_TQ, SRD_WS, SRD_A, SRD_B, SRD_C, SRD_D, mk_srd, f32hex,
                 dpp_sum16, xhalf, xrow16, OF, HF, KF, VF, HST, CSP, WOF, WDF, WGF, HHF, QSCALE,
                 P_X, P_WQ, P_WK, P_WV, P_WO, P_WG, P_WU, P_WD, P_OUT, P_DBG, P_WS)
from kernels2 import mfma
WS = f"s[{SRD_WS}:{SRD_WS+3}]"
FLG = 0x1410000
FLG_A, FLG_W, FLG_E = FLG, FLG + 64*128, FLG + 320*128
FLG_B, FLG_C, FLG_D = FLG + 1024*128, FLG + 3072*128, FLG + 5120*128
NONCE = FLG + 7168*128
S_NONCE = 56
PROF = 0x1400000
WS_USED = 0x1500000
SPIN = 400000
FULL_LINE = os.environ.get('FULL_LINE', '1') == '1'
POLL_SLEEP = int(os.environ.get('POLL_SLEEP', '2'))
PROFILE = G.PROFILE
PROF_WAVE = G.PROF_WAVE
PRIO = os.environ.get("PRIO", "1") == "1"
NST = [0]
STAMPSET = os.environ.get("STAMPSET", "main")
def stamp(a, kind="main"):
    if not PROFILE: return
    if kind != STAMPSET: return
    k = NST[0]; NST[0] += 1
    assert k < 16
    a("s_waitcnt lgkmcnt(0)")
    a("s_memtime s[96:97]")
    a("s_waitcnt lgkmcnt(0)")
    a(f"s_mov_b32 s{80+k}, s96")

def spin_begin(a, name):
    l = a.newlabel(name)
    a(f"s_mov_b32 s79, {SPIN}")
    a.label(l)
    return l
def spin_end(a, l, done, sleep=1):
    a("s_nop 4")
    a(f"s_cbranch_vccz {done}")
    a(f"s_sleep {sleep}")
    a("s_sub_u32 s79, s79, 1")
    a("s_cmp_lg_u32 s79, 0")
    a(f"s_cbranch_scc1 {l}")
    a.label(done)

def poll_flags(a, soff_reg, nlanes, vtmp, voff, sleep=1, shift=7):
    done = a.newlabel("pd")
    a(f"v_lshlrev_b32 v{voff}, {shift}, v0")
    if nlanes < 64:
        a(f"s_mov_b64 exec, {hex((1 << nlanes) - 1)}")
    l = spin_begin(a, "pl")
    a(f"buffer_load_dword v{vtmp}, v{voff}, {WS}, s{soff_reg} offen sc1")
    a("s_waitcnt vmcnt(0)")
    a(f"v_cmp_ne_u32 vcc, s{S_NONCE}, v{vtmp}")
    spin_end(a, l, done, sleep)
    if nlanes < 64:
        a("s_mov_b64 exec, -1")

def set_flag(a, soff_reg, vtmp):
    a(f"v_mov_b32 v{vtmp}, s{S_NONCE}")
    if FULL_LINE:
        a(f"v_lshlrev_b32 v{vtmp+1}, 2, v0")
        a("s_mov_b32 exec_hi, 0")
    else:
        a(f"v_mov_b32 v{vtmp+1}, 0")
        a("s_mov_b64 exec, 1")
    a(f"buffer_store_dword v{vtmp}, v{vtmp+1}, {WS}, s{soff_reg} offen sc1")
    a("s_mov_b64 exec, -1")

L_XN, L_WQ, L_WK, L_WV = 0, 32768, 131072, 147456
QSAVE = 250

def phase0(a):
    mk_srd(a, SRD_A, P_X, 2048 * 1024)
    mk_srd(a, SRD_B, P_WQ, 512 * 1024)
    a(f"s_lshl_b32 s54, s{S_TBK}, 5")
    a(f"s_lshl_b32 s55, s{S_W}, 2")
    a("s_add_u32 s54, s54, s55")
    a("v_lshrrev_b32 v2, 4, v0")
    a("v_and_b32 v3, 15, v0")
    a("v_add_u32 v4, s54, v2")
    a("v_lshlrev_b32 v4, 10, v4")
    a("v_lshl_add_u32 v4, v3, 4, v4")
    for i in range(4):
        a(f"buffer_load_dwordx4 v[{16+4*i}:{19+4*i}], v4, s[{SRD_A}:{SRD_A+3}], 0 offen offset:{256*i}")
    a("v_lshlrev_b32 v6, 4, v0")
    lskip = a.newlabel("nokv"); lj = a.newlabel("kvj")
    a(f"s_cmp_lg_u32 s{S_HQ}, 0")
    a(f"s_cbranch_scc1 {lskip}")
    mk_srd(a, SRD_C, P_WK, 16384)
    mk_srd(a, SRD_D, P_WV, 16384)
    a(f"s_lshl_b32 s60, s{S_W}, 11")
    for i in range(2):
        a(f"s_add_u32 s61, s60, {i*1024}")
        a(f"s_add_u32 m0, s61, {L_WK}")
        a("s_nop 0")
        a(f"buffer_load_dwordx4 v6, s[{SRD_C}:{SRD_C+3}], s61 offen lds")
        a(f"s_add_u32 m0, s61, {L_WV}")
        a("s_nop 0")
        a(f"buffer_load_dwordx4 v6, s[{SRD_D}:{SRD_D+3}], s61 offen lds")
    a.label(lskip)
    a("v_lshlrev_b32 v5, 1, v2")
    a("v_xor_b32 v5, v3, v5")
    a("v_lshlrev_b32 v5, 4, v5")
    a("v_lshl_add_u32 v5, v2, 10, v5")
    a(f"s_lshl_b32 s55, s{S_HQ}, 8")
    a("v_add_u32 v5, s55, v5")
    a(f"s_lshl_b32 s62, s{S_W}, 12")
    a(f"s_add_u32 s62, s62, {L_WQ}")
    a(f"s_lshl_b32 s63, s{S_W}, 14")
    def wq_dma(q):
        for i in range(4):
            a(f"s_add_u32 m0, s62, {(q % 3) * 32768 + i * 1024}")
            a(f"s_add_u32 s64, s63, {(q * 128 + 4 * i) * 1024}")
            a(f"buffer_load_dwordx4 v5, s[{SRD_B}:{SRD_B+3}], s64 offen lds")
    wq_dma(0)
    stamp(a, "p0")
    a("s_waitcnt vmcnt(4)")
    stamp(a); stamp(a, "p0")
    b = Asm()
    if True:
        b("s_mov_b32 s60, 0x3f803f80")
        for r in range(4): b(f"v_mov_b32 v{32+r}, 0")
        for i in range(16):
            b(f"v_dot2_f32_bf16 v{32 + (i & 1)}, v{16+i}, s60, v{32 + (i & 1)}")
            b(f"v_dot2_f32_bf16 v{34 + (i & 1)}, v{16+i}, v{16+i}, v{34 + (i & 1)}")
        b("s_mov_b32 s61, 0xffff0000")
        for i in range(4):
            b(f"v_lshlrev_b32 v{64+2*i}, 16, v{16+i}")
            b(f"v_and_b32 v{65+2*i}, s61, v{16+i}")
        b("v_add_f32 v32, v32, v33")
        b("v_add_f32 v34, v34, v35")
        for n, sh in enumerate((8, 4, 2, 1)):
            for i in range(4 + 3*n, 7 + 3*n):
                b(f"v_lshlrev_b32 v{64+2*i}, 16, v{16+i}")
                b(f"v_and_b32 v{65+2*i}, s61, v{16+i}")
            b(f"v_add_f32_dpp v32, v32, v32 row_ror:{sh} row_mask:0xf bank_mask:0xf")
            b(f"v_add_f32_dpp v34, v34, v34 row_ror:{sh} row_mask:0xf bank_mask:0xf")
        b(f"v_mul_f32 v32, {f32hex(1.0/512)}, v32")
        b("v_mul_f32 v33, v32, v32")
        b(f"v_mov_b32 v35, {f32hex(1.0/512)}")
        b("v_fma_f32 v34, v34, v35, -v33")
        b("v_max_f32 v34, 0, v34")
        b(f"v_add_f32 v34, {f32hex(1e-5)}, v34")
        b("v_rsq_f32 v38, v34")
        b.c("XN write addr")
        b(f"s_lshl_b32 s55, s{S_W}, 2")
        b("v_add_u32 v7, s55, v2")
        b("v_mov_b32 v39, v38")
        b("v_mul_f32 v36, v32, v38")
        b("v_sub_f32 v36, 0, v36")
        b("v_mov_b32 v37, v36")
        for i in range(16):
            b(f"v_pk_fma_f32 v[{64+2*i}:{65+2*i}], v[{64+2*i}:{65+2*i}], v[38:39], v[36:37]")
        b("v_and_b32 v8, 7, v3")
        b("v_xor_b32 v7, v7, v8")
        b("v_lshlrev_b32 v7, 4, v7")
        b("v_lshrrev_b32 v8, 1, v3")
        b("v_lshl_add_u32 v7, v8, 10, v7")
        b("v_and_b32 v8, 1, v3")
        b("v_lshl_add_u32 v7, v8, 9, v7")
        for i in range(4):
            for e in range(4):
                b(f"v_cvt_pk_bf16_f32 v{16+4*i+e}, v{64+8*i+2*e}, v{65+8*i+2*e}")
            b(f"ds_write_b128 v7, v[{16+4*i}:{19+4*i}] offset:{L_XN + i*8192}")

    a.L.extend(b.L)
    wq_dma(1); wq_dma(2)
    a("v_lshrrev_b32 v8, 5, v0")
    a("v_and_b32 v9, 31, v0")
    for m in range(4):
        a(f"v_add_u32 v10, {2*m}, v8")
        a("v_xor_b32 v10, v9, v10")
        a("v_lshlrev_b32 v10, 4, v10")
        a(f"v_lshl_add_u32 v{40+m}, v8, 9, v10")
    a("v_lshrrev_b32 v10, 2, v3")
    a("v_and_b32 v11, 3, v3")
    a("v_lshl_add_u32 v12, v8, 3, v10")
    a(f"s_lshl_b32 s55, s{S_W}, 1")
    a("v_lshrrev_b32 v13, 1, v11")
    a("v_add_u32 v13, s55, v13")
    a("v_lshlrev_b32 v14, 1, v10")
    a("v_xor_b32 v13, v13, v14")
    a("v_lshlrev_b32 v13, 4, v13")
    a("v_lshl_add_u32 v13, v12, 8, v13")
    a("v_and_b32 v14, 1, v11")
    a("v_lshl_add_u32 v13, v14, 3, v13")
    a(f"v_add_u32 v44, {L_WQ}, v13")
    stamp(a, "p0")
    a("s_waitcnt lgkmcnt(0)")
    a.c("launch tag: a fixed-point-free bijection of the tag the previous launch left (any value works)")
    a(f"s_mul_i32 s{S_NONCE}, s{S_NONCE}, 0x9E3779B1")
    a(f"s_add_u32 s{S_NONCE}, s{S_NONCE}, 0x7F4A7C15")
    a("s_barrier")
    stamp(a); stamp(a, "p0")
    lkvd = a.newlabel("kvdone"); lkv1 = a.newlabel("kv1")
    a(f"s_cmp_lg_u32 s{S_HQ}, 0")
    a(f"s_cbranch_scc1 {lkv1}")
    a.c("tr addr: blk0 -> WV, blk1 -> WK ; row (64w + 16e + 8khalf + 4rd + r4)*32 + cg*8")
    a("v_lshlrev_b32 v13, 5, v12")
    a("v_lshl_add_u32 v13, v11, 3, v13")
    a(f"s_lshl_b32 s55, s{S_W}, 11")
    a("v_add_u32 v13, s55, v13")
    a("v_and_b32 v14, 1, v2")
    a(f"v_mov_b32 v15, {L_WV}")
    a(f"v_mov_b32 v45, {L_WK}")
    a("v_cmp_eq_u32 vcc, 1, v14")
    a("s_nop 1")
    a("v_cndmask_b32 v15, v15, v45, vcc")
    a("v_add_u32 v13, v13, v15")
    a.c("xn frags for k-steps 4w..4w+3 : s&3 = e")
    a(f"s_lshl_b32 s55, s{S_W}, 12")
    for e in range(4):
        a(f"v_add_u32 v{46+e}, s55, v{40+e}")
    for e in range(4):
        a(f"ds_read_b64_tr_b16 v[{64+4*e}:{65+4*e}], v13 offset:{e*512}")
        a(f"ds_read_b64_tr_b16 v[{66+4*e}:{67+4*e}], v13 offset:{e*512+128}")
        a(f"ds_read_b128 v[{80+4*e}:{83+4*e}], v{46+e} offset:{L_XN + e*1024}")
    for e in range(4):
        a(f"s_waitcnt lgkmcnt({9-3*e})")
        mfma(a, 96, 64 + 4 * e, 80 + 4 * e, None if e == 0 else 96)
    a.c("RED: q=0,1 -> WK + w*2048 + q*1024 ; q=2,3 -> WV + w*2048 + (q-2)*1024  (own, already consumed rows)")
    a(f"s_lshl_b32 s55, s{S_W}, 11")
    a(f"s_add_u32 s55, s55, {L_WK}")
    a("v_add_u32 v14, s55, v6")
    a(f"v_add_u32 v15, {L_WV - L_WK}, v14")
    a("s_nop 10")
    a("ds_write_b128 v14, v[96:99]")
    a("ds_write_b128 v14, v[100:103] offset:1024")
    a("ds_write_b128 v15, v[104:107]")
    a("ds_write_b128 v15, v[108:111] offset:1024")
    a.label(lkv1)
    stamp(a, "p0")
    a("s_waitcnt vmcnt(8) lgkmcnt(0)")
    stamp(a, "p0")
    a("s_barrier")
    stamp(a, "p0")
    a(f"s_cmp_lg_u32 s{S_HQ}, 0")
    a(f"s_cbranch_scc1 {lkvd}")
    lv = a.newlabel("kv_v")
    a(f"s_cmp_eq_u32 s{S_W}, 1")
    a(f"s_cbranch_scc1 {lv}")
    a(f"s_cmp_lg_u32 s{S_W}, 0")
    a(f"s_cbranch_scc1 {lkvd}")
    def red8(base):
        a(f"v_add_u32 v14, {base}, v6")
        for ww in range(8):
            a(f"ds_read_b128 v[{64+8*ww}:{67+8*ww}], v14 offset:{ww*2048}")
            a(f"ds_read_b128 v[{68+8*ww}:{71+8*ww}], v14 offset:{ww*2048+1024}")
            if ww == 3: a("s_waitcnt lgkmcnt(4)")
        a("s_waitcnt lgkmcnt(0)")
        for ww in range(1, 8):
            for i in range(4):
                a(f"v_pk_add_f32 v[{64+2*i}:{65+2*i}], v[{64+2*i}:{65+2*i}], v[{64+8*ww+2*i}:{65+8*ww+2*i}]")
        for r in range(4):
            a(f"v_cvt_pk_bf16_f32 v{76+r}, v{64+2*r}, v{65+2*r}")
    red8(L_WV)
    a(f"s_lshl_b32 s55, s{S_TBK}, 10")
    a(f"s_add_u32 s55, s55, {KF}")
    a(f"buffer_store_dwordx4 v[76:79], v6, {WS}, s55 offen sc1")
    a("v_mov_b32 v80, 0")
    for r in range(4):
        a(f"v_dot2_f32_bf16 v80, v{76+r}, v{76+r}, v80")
    a("s_nop 2")
    xhalf(a, 80, 81, "v_add_f32")
    dpp_sum16(a, 80, "v_max_f32")
    xrow16(a, 80, 81, "v_max_f32")
    a(f"v_mov_b32 v{QSAVE+5}, v80")
    a(f"s_branch {lkvd}")
    a.label(lv)
    red8(L_WK)
    a("v_lshlrev_b32 v80, 5, v9")
    a("v_lshl_add_u32 v80, v8, 3, v80")
    a(f"v_add_u32 v80, {L_WK}, v80")
    a("ds_write_b64 v80, v[76:77]")
    a("ds_write_b64 v80, v[78:79] offset:16")
    a("v_lshl_add_u32 v81, v8, 2, v10")
    a("v_lshlrev_b32 v81, 5, v81")
    a("v_and_b32 v82, 1, v11")
    a("v_lshlrev_b32 v82, 1, v82")
    a("v_lshrrev_b32 v83, 1, v11")
    a("v_add_u32 v82, v82, v83")
    a("v_lshl_add_u32 v81, v82, 3, v81")
    a(f"v_add_u32 v81, {L_WK}, v81")
    a("s_waitcnt lgkmcnt(0)")
    for c2 in range(2):
        for rd in range(2):
            d = 84 + 4 * c2 + 2 * rd
            a(f"ds_read_b64_tr_b16 v[{d}:{d+1}], v81 offset:{(16*c2 + 8*rd) * 32}")
    a("v_lshl_add_u32 v82, v8, 4, v3")
    a("v_lshlrev_b32 v82, 4, v82")
    a(f"s_lshl_b32 s55, s{S_TBK}, 10")
    a(f"s_add_u32 s55, s55, {VF}")
    a("s_waitcnt lgkmcnt(0)")
    a("s_mov_b32 exec_lo, 0x0000ffff")
    a("s_mov_b32 exec_hi, 0x0000ffff")
    a(f"buffer_store_dwordx4 v[84:87], v82, {WS}, s55 offen sc1")
    a(f"buffer_store_dwordx4 v[88:91], v82, {WS}, s55 offen offset:512 sc1")
    a("s_mov_b64 exec, -1")
    a.label(lkvd)
    a("v_add_u32 v45, 1024, v44")
    stamp(a, "p0")
    def publish_kv():
        lnf = a.newlabel("noflag")
        a(f"s_cmp_lg_u32 s{S_HQ}, 0")
        a(f"s_cbranch_scc1 {lnf}")
        a(f"s_cmp_lg_u32 s{S_W}, 0")
        a(f"s_cbranch_scc1 {lnf}")
        a(f"s_lshl_b32 s55, s{S_TBK}, 7")
        a(f"s_add_u32 s55, s55, {FLG_A}")
        a("v_lshlrev_b32 v80, 3, v0")
        a(f"v_mov_b32 v{QSAVE+4}, s{S_NONCE}")
        a("s_mov_b64 exec, 0xffff")
        a(f"buffer_store_dwordx2 v[{QSAVE+4}:{QSAVE+5}], v80, {WS}, s55 offen sc1")
        a("s_mov_b64 exec, -1")
        a.label(lnf)
    ACC = 96
    AB = [112, 116, 120]; BB = [124, 128, 132]
    def issue(s):
        A = AB[s % 3]; B = BB[s % 3]
        a.lg(f"ds_read_b64_tr_b16 v[{A}:{A+1}], v44", s)
        a.lg(f"ds_read_b64_tr_b16 v[{A+2}:{A+3}], v45", s)
        a.lg(f"ds_read_b128 v[{B}:{B+3}], v{40 + (s & 3)} offset:{L_XN + s*1024}", s)
        d = 4096 - (98304 if s == 23 else 0)
        a(f"v_add_u32 v44, {d & 0xffffffff:#x}, v44"); a(f"v_add_u32 v45, {d & 0xffffffff:#x}, v45")
    a.lgq = []
    issue(0); issue(1)
    for s in range(32):
        if s + 2 < 32:
            if s + 2 == 8:
                a("s_waitcnt vmcnt(0)")
                a("s_barrier")
                stamp(a, "p0"); a.lgq = [] if PROFILE and STAMPSET == "p0" else a.lgq
                publish_kv()
            if s + 2 == 24:
                a("s_waitcnt vmcnt(0)")
                a("s_barrier")
            issue(s + 2)
        a.lg_wait(s)
        mfma(a, ACC, AB[s % 3], BB[s % 3], None if s == 0 else ACC)
        if s == 7:
            a("s_barrier")
            wq_dma(3)
    a("s_nop 15")
    a(f"s_mov_b32 s55, {f32hex(QSCALE)}")
    for r in range(8):
        a(f"v_mul_f32 v{64+r}, s55, v{ACC+r}")
    for r in range(4):
        a(f"v_cvt_pk_bf16_f32 v{QSAVE+r}, v{64+2*r}, v{65+2*r}")
    stamp(a); stamp(a, "p0")
    a("s_barrier")
    stamp(a, "p0")

L_SCR = 131072
S_JOB = 78
V_WJS, V_WJT, V_WJC = 140, 141, 142
SRD_J1, SRD_J2 = 20, 36
def wj_setup(a):
    a("v_lshrrev_b32 v143, 4, v0")
    a("v_and_b32 v144, 15, v0")
    a("v_lshrrev_b32 v145, 5, v0")
    a("v_lshrrev_b32 v146, 2, v144")
    a("v_and_b32 v147, 3, v144")
    a("v_and_b32 v148, 1, v147")
    a("v_lshlrev_b32 v148, 1, v148")
    a("v_lshrrev_b32 v149, 1, v147")
    a("v_add_u32 v148, v148, v149")
    a("v_lshlrev_b32 v148, 3, v148")
    a("v_and_b32 v149, 1, v143")
    a("v_lshl_add_u32 v150, v145, 3, v146")
    a(f"s_lshl_b32 s57, s{S_W}, 12")
    a(f"s_add_u32 s57, s57, {L_SCR}")
    a(f"s_mov_b32 s{S_JOB}, 0")
    lo = a.newlabel("wjo"); ld = a.newlabel("wjd")
    a("s_cmp_ge_u32 s2, 112")
    a(f"s_cbranch_scc1 {lo}")
    a(f"s_mov_b32 s{S_JOB}, 1")
    a("s_lshr_b32 s60, s2, 2")
    a("s_and_b32 s61, s2, 3")
    a("s_lshl_b32 s62, s61, 3")
    a(f"s_add_u32 s62, s62, s{S_W}")
    mk_srd(a, SRD_J1, P_WG, 512 * 3584)
    mk_srd(a, SRD_J2, P_WU, 512 * 3584)
    a("v_lshrrev_b32 v151, 3, v0")
    a("s_mov_b32 s63, 3584")
    a("v_mul_lo_u32 v151, v151, s63")
    a("v_and_b32 v152, 7, v0")
    a(f"v_lshl_add_u32 v{V_WJS}, v152, 4, v151")
    a("s_mul_i32 s58, s62, 57344")
    a("s_lshl_b32 s63, s60, 7")
    a("s_add_u32 s58, s58, s63")
    a("v_lshlrev_b32 v151, 7, v150")
    a("v_lshl_add_u32 v151, v149, 11, v151")
    a("v_add_u32 v151, v151, v148")
    a(f"v_add_u32 v{V_WJT}, s57, v151")
    a("s_lshl_b32 s59, s60, 7")
    a("s_add_u32 s59, s59, s62")
    a("s_lshl_b32 s59, s59, 10")
    a(f"s_add_u32 s59, s59, {WGF}")
    a("s_mul_i32 s72, s61, 112")
    a("s_lshl_b32 s63, s60, 2")
    a("s_add_u32 s72, s72, s63")
    a("s_lshl_b32 s72, s72, 7")
    a(f"s_add_u32 s72, s72, {CSP}")
    a("v_lshlrev_b32 v151, 2, v0")
    a(f"v_add_u32 v{V_WJC}, s57, v151")
    a.c("warm the L2 with the 16 source rows (one 128-byte line per row and matrix)")
    a("v_and_b32 v151, 15, v0")
    a("s_mov_b32 s63, 3584")
    a("v_mul_lo_u32 v151, v151, s63")
    a(f"buffer_load_dword v153, v151, s[{SRD_J1}:{SRD_J1+3}], s58 offen")
    a(f"buffer_load_dword v154, v151, s[{SRD_J2}:{SRD_J2+3}], s58 offen")
    a(f"s_branch {ld}")
    a.label(lo)
    a("s_cmp_ge_u32 s2, 184")
    a(f"s_cbranch_scc1 {ld}")
    a("s_sub_u32 s60, s2, 112")
    a("s_lshl_b32 s60, s60, 3")
    a(f"s_add_u32 s60, s60, s{S_W}")
    lwd = a.newlabel("wjwd")
    a("s_cmp_ge_u32 s60, 128")
    a(f"s_cbranch_scc1 {lwd}")
    a(f"s_mov_b32 s{S_JOB}, 3")
    mk_srd(a, SRD_J1, P_WO, 512 * 1024)
    a("s_lshr_b32 s61, s60, 3")
    a("s_and_b32 s62, s60, 7")
    a("v_lshrrev_b32 v151, 3, v0")
    a("v_lshlrev_b32 v151, 10, v151")
    a("v_and_b32 v152, 7, v0")
    a(f"v_lshl_add_u32 v{V_WJS}, v152, 4, v151")
    a("s_lshl_b32 s58, s61, 15")
    a("s_lshl_b32 s60, s62, 7")
    a("s_add_u32 s58, s58, s60")
    a("s_mov_b32 s69, 8192")
    a("v_lshl_add_u32 v151, v143, 3, v146")
    a("v_lshlrev_b32 v151, 7, v151")
    a("v_lshl_add_u32 v151, v147, 3, v151")
    a(f"v_add_u32 v{V_WJT}, s57, v151")
    a("s_lshl_b32 s59, s62, 6")
    a("s_add_u32 s59, s59, s61")
    a("s_lshl_b32 s59, s59, 10")
    a(f"s_add_u32 s59, s59, {WOF}")
    a("s_mov_b32 s72, 16384")
    a("v_and_b32 v151, 31, v0")
    a("v_lshlrev_b32 v151, 10, v151")
    a(f"buffer_load_dword v153, v151, s[{SRD_J1}:{SRD_J1+3}], s58 offen")
    a(f"s_branch {ld}")
    a.label(lwd)
    a(f"s_mov_b32 s{S_JOB}, 2")
    a("s_sub_u32 s60, s60, 128")
    mk_srd(a, SRD_J1, P_WD, 1792 * 1024)
    a("s_lshr_b32 s61, s60, 2")
    a("s_and_b32 s62, s60, 3")
    a("v_lshlrev_b32 v151, 10, v143")
    a(f"v_lshl_add_u32 v{V_WJS}, v144, 4, v151")
    a("s_lshl_b32 s58, s61, 14")
    a("s_lshl_b32 s60, s62, 8")
    a("s_add_u32 s58, s58, s60")
    a("s_mov_b32 s69, 4096")
    a("v_lshlrev_b32 v151, 8, v150")
    a("v_lshl_add_u32 v151, v149, 5, v151")
    a("v_add_u32 v151, v151, v148")
    a(f"v_add_u32 v{V_WJT}, s57, v151")
    a("s_lshl_b32 s59, s62, 2")
    a("s_mul_i32 s59, s59, 112")
    a("s_add_u32 s59, s59, s61")
    a("s_lshl_b32 s59, s59, 10")
    a(f"s_add_u32 s59, s59, {WDF}")
    a(f"s_mov_b32 s72, {112*1024}")
    a("v_and_b32 v151, 31, v0")
    a("v_lshrrev_b32 v152, 1, v151")
    a("v_lshlrev_b32 v152, 10, v152")
    a("v_and_b32 v151, 1, v151")
    a("v_lshl_add_u32 v151, v151, 7, v152")
    a(f"buffer_load_dword v153, v151, s[{SRD_J1}:{SRD_J1+3}], s58 offen")
    a.label(ld)

def wj_branch(a, g_code, o_code):
    lo = a.newlabel("jo"); le = a.newlabel("je")
    a(f"s_cmp_eq_u32 s{S_JOB}, 1")
    a(f"s_cbranch_scc0 {lo}")
    if g_code: g_code()
    a(f"s_branch {le}")
    a.label(lo)
    if o_code:
        a(f"s_cmp_eq_u32 s{S_JOB}, 0")
        a(f"s_cbranch_scc1 {le}")
        o_code()
    a.label(le)

def wj_issue(a, part=None):
    def g():
        for i in ([0, 1] if part is None else [part]):
            a(f"s_add_u32 m0, s57, {i*1024}")
            a(f"s_add_u32 s63, s58, {i*8*3584}")
            a(f"buffer_load_dwordx4 v{V_WJS}, s[{SRD_J1}:{SRD_J1+3}], s63 offen lds")
            a(f"s_add_u32 m0, s57, {2048 + i*1024}")
            a("s_nop 0")
            a(f"buffer_load_dwordx4 v{V_WJS}, s[{SRD_J2}:{SRD_J2+3}], s63 offen lds")
    def o():
        for i in (range(4) if part is None else [2 * part, 2 * part + 1]):
            a(f"s_add_u32 m0, s57, {i*1024}")
            a(f"s_mul_i32 s63, s69, {i}")
            a(f"s_add_u32 s63, s63, s58")
            a(f"buffer_load_dwordx4 v{V_WJS}, s[{SRD_J1}:{SRD_J1+3}], s63 offen lds")
    wj_branch(a, g, o)

def wj_read(a, n_younger):
    def rd(st, rdoff):
        def f():
            a(f"s_waitcnt vmcnt({n_younger})")
            for q in range(4):
                d = 96 + 4 * q
                a(f"ds_read_b64_tr_b16 v[{d}:{d+1}], v{V_WJT} offset:{q*st}")
                a(f"ds_read_b64_tr_b16 v[{d+2}:{d+3}], v{V_WJT} offset:{q*st + rdoff}")
        return f
    l2 = a.newlabel("jr2"); le = a.newlabel("jre")
    a(f"s_cmp_eq_u32 s{S_JOB}, 0")
    a(f"s_cbranch_scc1 {le}")
    a(f"s_cmp_eq_u32 s{S_JOB}, 2")
    a(f"s_cbranch_scc1 {l2}")
    rd(32, 512)()
    a(f"s_branch {le}")
    a.label(l2)
    rd(64, 1024)()
    a.label(le)

def wj_store(a):
    def g():
        for r in range(4):
            a(f"v_mov_b32 v{112+r}, 0x3f803f80")
        for q in range(4):
            d = 96 + 4 * q
            a(f"s_add_u32 s63, s59, {q*32768}")
            a(f"buffer_store_dwordx4 v[{d}:{d+3}], v1, {WS}, s63 offen sc1")
        for q in range(4):
            mfma(a, 160 + 16 * q, 112, 96 + 4 * q, None)
    def o():
        a("s_mov_b32 s63, s59")
        for q in range(4):
            d = 96 + 4 * q
            a(f"buffer_store_dwordx4 v[{d}:{d+3}], v1, {WS}, s63 offen sc1")
            if q < 3: a("s_add_u32 s63, s63, s72")
    wj_branch(a, g, o)

def wj_cspart(a):
    def g():
        a("s_mov_b32 exec_hi, 0")
        for q in range(4):
            a(f"ds_write_b32 v{V_WJC}, v{160 + 16 * q} offset:{q*128}")
        a("s_mov_b64 exec, -1")
    wj_branch(a, g, None)

def wj_csread(a):
    def g():
        l = a.newlabel("csr")
        a(f"s_cmp_ge_u32 s{S_W}, 2")
        a(f"s_cbranch_scc1 {l}")
        a(f"s_lshl_b32 s63, s{S_W}, 8")
        a("v_lshlrev_b32 v104, 2, v0")
        a("v_add_u32 v104, s63, v104")
        a(f"v_add_u32 v105, {L_SCR}, v104")
        for ww in range(8):
            a(f"ds_read_b32 v{96+ww}, v105 offset:{ww*4096}")
        a.label(l)
    wj_branch(a, g, None)

def wj_csstore(a):
    def g():
        l = a.newlabel("css")
        a(f"s_cmp_ge_u32 s{S_W}, 2")
        a(f"s_cbranch_scc1 {l}")
        for ww in range(1, 8):
            a(f"v_add_f32 v96, v96, v{96+ww}")
        a(f"buffer_store_dword v96, v104, {WS}, s72 offen sc1")
        a.label(l)
    wj_branch(a, g, None)

def wj_signal(a):
    l = a.newlabel("wsig")
    a(f"s_cmp_eq_u32 s{S_JOB}, 0")
    a(f"s_cbranch_scc1 {l}")
    a(f"s_cmp_lg_u32 s{S_W}, 0")
    a(f"s_cbranch_scc1 {l}")
    a("s_lshl_b32 s63, s2, 7")
    a(f"s_add_u32 s63, s63, {FLG_W}")
    set_flag(a, 63, 96)
    a.label(l)

A_Q, A_O, A_S, A_P = 4, 8, [24, 40], 56
A_K = [64, 68]
A_V = [[72, 76], [80, 84]]
A_VK, A_VV = 88, 89
A_NEG = 96
WO_R = 92
WG_R = 128
XR = 60
BOUND2 = 1600.0

def attn_tile(a, p, extra=None):
    b = p & 1; nb = b ^ 1
    S = A_S[b]
    def ex(r): a(f"v_exp_f32 v{S+r}, v{S+r}")
    def cv(k): a(f"v_cvt_pk_bf16_f32 v{A_P+k}, v{S+2*k}, v{S+2*k+1}")
    a("s_waitcnt lgkmcnt(0)")
    mfma(a, A_S[nb], A_K[nb], A_Q, None)
    a(f"ds_read_b128 v[{A_K[b]}:{A_K[b]+3}], v{A_VK} offset:{(p+2)*1024}")
    ex(0); ex(1); ex(2); ex(3)
    cv(0)
    mfma(a, A_O, A_V[1][nb], A_P + 4, A_O)
    a("s_mov_b64 exec, s[70:71]")
    a(f"ds_read_b128 v[{A_V[0][nb]}:{A_V[0][nb]+3}], v{A_VV} offset:{(p+1)*1024}")
    a(f"ds_read_b128 v[{A_V[1][nb]}:{A_V[1][nb]+3}], v{A_VV} offset:{(p+1)*1024 + 512}")
    a("s_mov_b64 exec, -1")
    if extra: extra()
    ex(4); cv(1); ex(5); ex(6); ex(7); cv(2); ex(8); cv(3)
    ex(9); ex(10); ex(11)
    mfma(a, A_O, A_V[0][b], A_P, A_O)
    cv(4); ex(12); cv(5); ex(13); ex(14); ex(15); cv(6)
    cv(7)

def wave_consts(a):
    a.c("WOF + (8cq + w)*16384 -> s68")
    a(f"s_lshl_b32 s68, s{S_HQ}, 3")
    a(f"s_add_u32 s68, s68, s{S_W}")
    a("s_lshl_b32 s68, s68, 14")
    a(f"s_add_u32 s68, s68, {WOF}")
    a.c("WGF + fb*32768 -> s73, fb = 7j + w (waves 0..6; wave 7 uses fb of wave 6, harmless duplicate)")
    a(f"s_min_u32 s73, s{S_W}, 6")
    a(f"s_mul_i32 s74, s{S_J}, 7")
    a("s_add_u32 s74, s74, s73")
    a("s_lshl_b32 s73, s74, 15")
    a(f"s_add_u32 s73, s73, {WGF}")

def ld_wg(a, s, tag="WG"):
    a(f"s_add_u32 s75, s73, {(s >> 2) * 4096}")
    a.vm(f"buffer_load_dwordx4 v[{WG_R+4*s}:{WG_R+4*s+3}], v1, {WS}, s75 offen offset:{(s&3)*1024} sc1", (tag, s))
def ld_wo(a, s):
    a(f"s_add_u32 s75, s68, {(s >> 2) * 4096}")
    a.vm(f"buffer_load_dwordx4 v[{WO_R+4*s}:{WO_R+4*s+3}], v1, {WS}, s75 offen offset:{(s&3)*1024} sc1", ("WO", s))

def prefetch_lists():
    it2 = [("g", s) for s in range(7, 32)]
    it3 = [("o", s) for s in range(16)]
    return it2, it3

def kv_dma(a, st, part=None):
    if part in (None, 0):
        a(f"s_add_u32 m0, s60, {st*16384}")
        a(f"s_add_u32 s62, s60, {st*16384 + KF}")
        a(f"buffer_load_dwordx4 v1, {WS}, s62 offen sc1 lds")
        a(f"buffer_load_dwordx4 v1, {WS}, s62 offen offset:1024 sc1 lds")
    if part in (None, 1):
        a(f"s_add_u32 m0, s60, {st*16384 + 65536}")
        a(f"s_add_u32 s62, s60, {st*16384 + VF}")
        a(f"buffer_load_dwordx4 v1, {WS}, s62 offen sc1 lds")
        a(f"buffer_load_dwordx4 v1, {WS}, s62 offen offset:1024 sc1 lds")

def wready_poll(a):
    l = a.newlabel("wrq")
    a(f"s_cmp_lg_u32 s{S_W}, 0")
    a(f"s_cbranch_scc1 {l}")
    a("v_lshlrev_b32 v2, 7, v0")
    a("v_add_u32 v3, 128, v0")
    a("v_min_u32 v3, 183, v3")
    a("v_lshlrev_b32 v3, 7, v3")
    a(f"s_mov_b32 s63, {FLG_W}")
    a(f"buffer_load_dword v96, v2, {WS}, s63 offen sc1")
    a(f"s_mov_b32 s63, {FLG_W + 64*128}")
    a(f"buffer_load_dword v97, v2, {WS}, s63 offen sc1")
    a(f"s_mov_b32 s63, {FLG_W}")
    a(f"buffer_load_dword v98, v3, {WS}, s63 offen sc1")
    a.label(l)
def wready_check(a):
    l = a.newlabel("wrc"); dn = a.newlabel("wrd")
    a(f"s_cmp_lg_u32 s{S_W}, 0")
    a(f"s_cbranch_scc1 {l}")
    def test():
        a("s_waitcnt vmcnt(0)")
        a(f"v_cmp_ne_u32 vcc, s{S_NONCE}, v96")
        a(f"v_cmp_ne_u32 s[62:63], s{S_NONCE}, v97")
        a("s_nop 1")
        a("s_or_b64 s[62:63], s[62:63], vcc")
        a(f"v_cmp_ne_u32 vcc, s{S_NONCE}, v98")
        a("s_nop 4")
        a("s_or_b64 vcc, vcc, s[62:63]")
    test()
    a(f"s_cbranch_vccz {dn}")
    l2 = spin_begin(a, "wrp")
    a(f"s_mov_b32 s63, {FLG_W}")
    a(f"buffer_load_dword v96, v2, {WS}, s63 offen sc1")
    a(f"buffer_load_dword v98, v3, {WS}, s63 offen sc1")
    a(f"s_mov_b32 s63, {FLG_W + 64*128}")
    a(f"buffer_load_dword v97, v2, {WS}, s63 offen sc1")
    test()
    spin_end(a, l2, dn, 4)
    a.label(l)
    a("s_barrier")

def x_residual(a):
    mk_srd(a, SRD_A, P_X, 2048 * 1024)
    a("v_and_b32 v2, 15, v0")
    a("v_lshrrev_b32 v3, 4, v0")
    a("v_lshlrev_b32 v2, 10, v2")
    a("v_lshl_add_u32 v2, v3, 3, v2")
    a(f"s_lshl_b32 s62, s{S_TBK}, 15")
    a(f"s_lshl_b32 s63, s{S_HQ}, 8")
    a("s_add_u32 s62, s62, s63")
    a(f"s_lshl_b32 s63, s{S_W}, 5")
    a("s_add_u32 s62, s62, s63")
    a.vm(f"buffer_load_dwordx2 v[{XRES}:{XRES+1}], v2, s[{SRD_A}:{SRD_A+3}], s62 offen", "XR")
    a("s_add_u32 s62, s62, 16384")
    a.vm(f"buffer_load_dwordx2 v[{XRES+2}:{XRES+3}], v2, s[{SRD_A}:{SRD_A+3}], s62 offen", "XR")
XRES = 4

def attention(a):
    a("v_lshlrev_b32 v1, 4, v0")
    for r in range(4):
        a(f"v_mov_b32 v{A_Q+r}, v{QSAVE+r}")
    a("s_mov_b32 s70, 0x0000ffff")
    a("s_mov_b32 s71, 0x0000ffff")
    for r in range(16):
        a(f"v_mov_b32 v{A_O+r}, 0")
        a(f"v_mov_b32 v{72+r}, 0x3f803f80")
    for r in range(8):
        a(f"v_mov_b32 v{A_P+r}, 0")
    a(f"v_mov_b32 v{A_VK}, v1")
    a("v_lshrrev_b32 v90, 5, v0")
    a("v_and_b32 v91, 15, v0")
    a("v_lshl_add_u32 v90, v90, 4, v91")
    a("v_lshlrev_b32 v90, 4, v90")
    a(f"v_add_u32 v{A_VV}, 65536, v90")
    wave_consts(a)
    wj_setup(a)
    a("v_mov_b32 v90, 0")
    for r in range(4):
        a(f"v_dot2_f32_bf16 v90, v{A_Q+r}, v{A_Q+r}, v90")
    a(f"s_lshl_b32 s60, s{S_W}, 11")
    a("s_nop 1")
    xhalf(a, 90, 91, "v_add_f32")
    la = a.newlabel("sa")
    a(f"s_cmp_lg_u32 s{S_W}, 0")
    a(f"s_cbranch_scc1 {la}")
    done = a.newlabel("syncA")
    a("v_lshlrev_b32 v2, 7, v0")
    a(f"s_mov_b32 s63, {FLG_A}")
    l = spin_begin(a, "pollA")
    a(f"buffer_load_dwordx2 v[96:97], v2, {WS}, s63 offen sc1")
    a("s_waitcnt vmcnt(0)")
    a(f"v_cmp_ne_u32 vcc, s{S_NONCE}, v96")
    spin_end(a, l, done, 2)
    dpp_sum16(a, 97, "v_max_f32")
    xrow16(a, 97, 91, "v_max_f32")
    xhalf(a, 97, 91, "v_max_f32")
    a(f"v_mov_b32 v91, {L_SCR + 4096 - 128}")
    a("s_mov_b64 exec, 1")
    a("ds_write_b32 v91, v97")
    a("s_mov_b64 exec, -1")
    a("s_waitcnt lgkmcnt(0)")
    a.label(la)
    a("s_barrier")
    stamp(a)
    kv_dma(a, 0)
    a(f"v_mov_b32 v91, {L_SCR + 4096 - 128}")
    a("ds_read_b32 v3, v91")
    a("s_waitcnt lgkmcnt(0)")
    a("v_mul_f32 v90, v90, v3")
    a(f"v_mov_b32 v91, {f32hex(BOUND2)}")
    a("v_cmp_gt_f32 vcc, v90, v91")
    a.c("workgroup-wide vote: any row that might leave the safe range sends the whole workgroup to the max-subtracting path")
    a("s_nop 4")
    a("s_cmp_lg_u64 vcc, 0")
    a("s_cselect_b32 s61, 1, 0")
    a("v_mov_b32 v90, s61")
    a(f"s_lshl_b32 s61, s{S_W}, 2")
    a(f"s_add_u32 s61, s61, {L_SCR + 4096 - 64}")
    a("v_mov_b32 v91, s61")
    a("s_mov_b64 exec, 1")
    a("ds_write_b32 v91, v90")
    a("s_mov_b64 exec, -1")
    a("s_waitcnt vmcnt(0) lgkmcnt(0)")
    a("s_barrier")
    a(f"v_mov_b32 v91, {L_SCR + 4096 - 64}")
    a("ds_read_b128 v[96:99], v91")
    a("ds_read_b128 v[100:103], v91 offset:16")
    a(f"ds_read_b128 v[{A_K[0]}:{A_K[0]+3}], v{A_VK}")
    a(f"ds_read_b128 v[{A_K[1]}:{A_K[1]+3}], v{A_VK} offset:1024")
    a("s_mov_b64 exec, s[70:71]")
    a(f"ds_read_b128 v[{A_V[0][0]}:{A_V[0][0]+3}], v{A_VV}")
    a(f"ds_read_b128 v[{A_V[1][0]}:{A_V[1][0]+3}], v{A_VV} offset:512")
    a("s_mov_b64 exec, -1")
    a("s_waitcnt lgkmcnt(0)")
    a("v_or3_b32 v96, v96, v97, v98")
    a("v_or3_b32 v100, v100, v101, v102")
    a("v_or3_b32 v96, v96, v99, v103")
    a("v_or_b32 v96, v96, v100")
    a("s_barrier")
    a("v_readfirstlane_b32 s61, v96")
    lslow = a.newlabel("slow"); lepi = a.newlabel("attn_epi")
    a("s_nop 3")
    a("s_cmp_lg_u32 s61, 0")
    a(f"s_cbranch_scc1 {lslow}")
    stamp(a)
    mfma(a, A_S[0], A_K[0], A_Q, None)
    it_pref = [("g", s) for s in range(7, 32)] + [("o", s) for s in range(16)]
    NPF0, NPF1 = 36, 62
    a("s_nop 15")
    a.vm_reset()
    def extra_for(t):
        def f():
            if t in (0, 1): kv_dma(a, 1, t)
            if t in (2, 3): wj_issue(a, t - 2)
            if t in (4, 5): kv_dma(a, 2, t - 4)
            if t in (6, 7): kv_dma(a, 3, t - 6)
            if t == 12: wj_read(a, 8)
            if t == 13: wj_store(a)
            if t == 15: wj_cspart(a)
            if t == 16: wj_csread(a)
            if t == 17: wj_csstore(a)
            if t == 33: wready_poll(a)
            if NPF0 <= t < NPF1:
                k0 = (t - NPF0) * len(it_pref) // (NPF1 - NPF0); k1 = (t + 1 - NPF0) * len(it_pref) // (NPF1 - NPF0)
                for k, s in it_pref[k0:k1]:
                    (ld_wg if k == "g" else ld_wo)(a, s)
            if t == 62: x_residual(a)
        return f
    for t in range(64):
        p = t & 15
        if t in (0, 4, 8, 12, 16, 20, 24, 28, 32, 36, 40, 48, 56, 63): stamp(a, "attn")
        if t > 0 and t % 4 == 0:
            if t == 12:
                a("s_waitcnt vmcnt(8)")
            if t == 16:
                a("s_waitcnt lgkmcnt(0)")
            if t == 24:
                a("s_waitcnt vmcnt(0)")
            if t == 36:
                wready_check(a)
            else:
                a("s_barrier")
            if t == 24:
                wj_signal(a)
        if PRIO:
            a(f"s_setprio {3 - (t & 3)}")
        attn_tile(a, p, extra_for(t))
        if p == 15 and t < 63:
            a(f"v_add_u32 v{A_VK}, 16384, v{A_VK}")
            a(f"v_add_u32 v{A_VV}, 16384, v{A_VV}")
    if PRIO: a("s_setprio 0")
    a("s_nop 1")
    mfma(a, A_O, A_V[1][1], A_P + 4, A_O)
    a(f"s_branch {lepi}")
    a.label(lslow)
    for st in range(1, 4):
        kv_dma(a, st)
    wj_issue(a)
    wj_read(a, 0)
    a("s_waitcnt lgkmcnt(0)")
    wj_store(a)
    a("s_nop 15")
    wj_cspart(a)
    a("s_waitcnt vmcnt(0) lgkmcnt(0)")
    a("s_barrier")
    wj_csread(a)
    a("s_waitcnt lgkmcnt(0)")
    wj_csstore(a)
    a("s_waitcnt vmcnt(0)")
    a("s_barrier")
    wj_signal(a)
    a("v_mov_b32 v92, 0xff800000")
    a("s_mov_b32 s55, 0")
    l1 = a.newlabel("s1")
    a.label(l1)
    a(f"ds_read_b128 v[{A_K[0]}:{A_K[0]+3}], v{A_VK}")
    a("s_waitcnt lgkmcnt(0)")
    mfma(a, A_S[0], A_K[0], A_Q, None)
    a("s_nop 15")
    for r in range(8):
        a(f"v_max3_f32 v92, v{A_S[0]+2*r}, v{A_S[0]+2*r+1}, v92")
    a(f"v_add_u32 v{A_VK}, 1024, v{A_VK}")
    a("s_add_u32 s55, s55, 1")
    a("s_cmp_lt_u32 s55, 64")
    a(f"s_cbranch_scc1 {l1}")
    xhalf(a, 92, 91, "v_max_f32")
    for r in range(16):
        a(f"v_sub_f32 v{A_NEG+r}, 0, v92")
    a(f"v_mov_b32 v{A_VK}, v1")
    a("s_mov_b32 s55, 0")
    l2 = a.newlabel("s2")
    a.label(l2)
    a(f"ds_read_b128 v[{A_K[0]}:{A_K[0]+3}], v{A_VK}")
    a("s_mov_b64 exec, s[70:71]")
    a(f"ds_read_b128 v[{A_V[0][0]}:{A_V[0][0]+3}], v{A_VV}")
    a(f"ds_read_b128 v[{A_V[1][0]}:{A_V[1][0]+3}], v{A_VV} offset:512")
    a("s_mov_b64 exec, -1")
    a("s_waitcnt lgkmcnt(0)")
    mfma(a, A_S[0], A_K[0], A_Q, A_NEG)
    a("s_nop 15")
    for r in range(16):
        a(f"v_exp_f32 v{A_S[0]+r}, v{A_S[0]+r}")
    a("s_nop 0")
    for k in range(8):
        a(f"v_cvt_pk_bf16_f32 v{A_P+k}, v{A_S[0]+2*k}, v{A_S[0]+2*k+1}")
    a("s_nop 1")
    mfma(a, A_O, A_V[0][0], A_P, A_O)
    mfma(a, A_O, A_V[1][0], A_P + 4, A_O)
    a(f"v_add_u32 v{A_VK}, 1024, v{A_VK}")
    a(f"v_add_u32 v{A_VV}, 1024, v{A_VV}")
    a("s_add_u32 s55, s55, 1")
    a("s_cmp_lt_u32 s55, 64")
    a(f"s_cbranch_scc1 {l2}")
    a("s_nop 15")
    wready_poll(a)
    wready_check(a)
    sv = list(a.vmq)
    for k, s in it_pref:
        (ld_wg if k == "g" else ld_wo)(a, s)
    x_residual(a)
    a.vmq = sv
    a.label(lepi)
    stamp(a)
    a("s_nop 15")
    a(f"v_rcp_f32 v90, v{A_O+8}")
    a("s_nop 0")
    for r in range(8):
        a(f"v_mul_f32 v{A_O+r}, v{A_O+r}, v90")
    for k in range(4):
        a(f"v_cvt_pk_bf16_f32 v{A_P+k}, v{A_O+2*k}, v{A_O+2*k+1}")
    a.c("OF + (tbk*32 + 8hq + w)*1024")
    a(f"s_lshl_b32 s60, s{S_TBK}, 5")
    a(f"s_lshl_b32 s61, s{S_HQ}, 3")
    a("s_add_u32 s60, s60, s61")
    a(f"s_add_u32 s60, s60, s{S_W}")
    a("s_lshl_b32 s60, s60, 10")
    a(f"s_add_u32 s60, s60, {OF}")
    a(f"buffer_store_dwordx4 v[{A_P}:{A_P+3}], v1, {WS}, s60 offen sc1")

def eflag_base(a, dst):
    a(f"s_lshl_b32 s{dst}, s{S_G}, 11")
    a(f"s_add_u32 s{dst}, s{dst}, {FLG_E}")

def wg_publish(a, base, vt):
    stamp(a, "p3")
    a("s_waitcnt vmcnt(0)")
    stamp(a, "p3")
    a("s_barrier")
    l = a.newlabel("pub")
    a(f"s_cmp_lg_u32 s{S_W}, 0")
    a(f"s_cbranch_scc1 {l}")
    a(f"s_lshl_b32 s60, s{S_G}, 4")
    a(f"s_add_u32 s60, s60, s{S_J}")
    a("s_lshl_b32 s60, s60, 7")
    a(f"s_add_u32 s60, s60, {base}")
    set_flag(a, 60, vt)
    a.label(l)

def wg_wait(a, base, first_expr, n, vt, vo):
    l = a.newlabel("wt")
    a(f"s_cmp_lg_u32 s{S_W}, 0")
    a(f"s_cbranch_scc1 {l}")
    a(f"s_lshl_b32 s60, s{S_G}, 4")
    if first_expr is not None:
        first_expr()
    a("s_lshl_b32 s60, s60, 7")
    a(f"s_add_u32 s60, s60, {base}")
    poll_flags(a, 60, n, vt, vo, sleep=POLL_SLEEP)
    a.label(l)
    a("s_barrier")

def wave_publish(a, base, vt):
    a(f"s_lshl_b32 s60, s{S_G}, 4")
    a(f"s_add_u32 s60, s60, s{S_J}")
    a("s_lshl_b32 s60, s60, 3")
    a(f"s_add_u32 s60, s60, s{S_W}")
    a("s_lshl_b32 s60, s60, 7")
    a(f"s_add_u32 s60, s60, {base}")
    stamp(a, "p3")
    a("s_waitcnt vmcnt(0)")
    stamp(a, "p3")
    set_flag(a, 60, vt)

L3_ST = 131072 + 4096
def mfma16(a, d, A, B, c):
    cs = "0" if c is None else f"v[{c}:{c+3}]"
    a(f"v_mfma_f32_16x16x32_bf16 v[{d}:{d+3}], v[{A}:{A+3}], v[{B}:{B+3}], {cs}")

def p3(a):
    wg_publish(a, FLG_B, 28)
    stamp(a)
    def fe():
        a(f"s_lshl_b32 s61, s{S_TQ}, 2")
        a("s_add_u32 s60, s60, s61")
    wg_wait(a, FLG_B, fe, 4, 28, 30)
    stamp(a)
    a.c("o fragments -> LDS [32 heads][1024] over key tiles 0..31 (dead since the last barriers of the attention loop)")
    a(f"s_lshl_b32 s60, s{S_W}, 12")
    a("s_mov_b32 m0, s60")
    a(f"s_lshl_b32 s61, s{S_TBK}, 15")
    a("s_add_u32 s61, s61, s60")
    a(f"s_add_u32 s61, s61, {OF}")
    for e in range(4):
        a(f"buffer_load_dwordx4 v1, {WS}, s61 offen offset:{e*1024} sc1 lds")
    a.c("operand address: (g>>1)*1024 + ((g&1)*32 + (lane&15))*16")
    a("v_lshrrev_b32 v30, 5, v0")
    a("v_lshlrev_b32 v30, 10, v30")
    a("v_bfe_u32 v31, v0, 4, 1")
    a("v_lshlrev_b32 v31, 5, v31")
    a("v_and_b32 v29, 15, v0")
    a("v_add_u32 v31, v31, v29")
    a("v_lshl_add_u32 v30, v31, 4, v30")
    a("v_and_b32 v2, 31, v0")
    stamp(a, "p3")
    a("s_waitcnt vmcnt(0)")
    stamp(a, "p3")
    a("s_barrier")
    stamp(a, "p3")
    BBF = [[32 + 8 * k, 36 + 8 * k] for k in range(3)]
    a.lgq = []
    def rd(s):
        for th2 in range(2):
            r = BBF[s % 3][th2]
            a.lg(f"ds_read_b128 v[{r}:{r+3}], v30 offset:{s*2048 + th2*256}", s)
    rd(0); rd(1)
    for s in range(16):
        if s + 2 < 16: rd(s + 2)
        a.lg_wait(s)
        for th2 in range(2):
            mfma16(a, 8 + 4 * th2, WO_R + 4 * s, BBF[s % 3][th2], None if s == 0 else 8 + 4 * th2)
    stamp(a, "p3")
    a("s_mov_b32 s61, 0xffff0000")
    for i in range(4):
        a(f"v_lshlrev_b32 v{32+2*i}, 16, v{XRES+i}")
        a(f"v_and_b32 v{33+2*i}, s61, v{XRES+i}")
    a(f"s_lshl_b32 s60, s{S_TBK}, 5")
    a(f"s_lshl_b32 s61, s{S_HQ}, 3")
    a("s_add_u32 s60, s60, s61")
    a(f"s_add_u32 s60, s60, s{S_W}")
    a("s_lshl_b32 s60, s60, 10")
    a(f"s_add_u32 s60, s60, {HF}")
    a("s_nop 1")
    for i in range(4):
        a(f"v_pk_add_f32 v[{8+2*i}:{9+2*i}], v[{8+2*i}:{9+2*i}], v[{32+2*i}:{33+2*i}]")
    for i in range(4):
        a(f"v_cvt_pk_bf16_f32 v{40+i}, v{8+2*i}, v{9+2*i}")
    a("s_nop 1")
    a("v_permlane16_swap_b32 v40, v42")
    a("v_permlane16_swap_b32 v41, v43")
    a("s_nop 1")
    a(f"buffer_store_dwordx4 v[40:43], v1, {WS}, s60 offen sc1")
    stamp(a, "p3")
    a("s_mov_b32 s61, 0x3f803f80")
    a("v_mov_b32 v44, 0")
    a("v_mov_b32 v45, 0")
    for i in range(4):
        a(f"v_dot2_f32_bf16 v44, v{40+i}, s61, v44")
        a(f"v_dot2_f32_bf16 v45, v{40+i}, v{40+i}, v45")
    a("s_nop 2")
    xhalf(a, 44, 46, "v_add_f32")
    xhalf(a, 45, 46, "v_add_f32")
    a(f"s_lshl_b32 s60, s{S_W}, 8")
    a(f"s_add_u32 s60, s60, {L3_ST}")
    a("v_lshlrev_b32 v46, 3, v2")
    a("v_add_u32 v47, s60, v46")
    a("s_mov_b32 exec_hi, 0")
    a("ds_write_b64 v47, v[44:45]")
    a("s_mov_b64 exec, -1")
    a("s_waitcnt lgkmcnt(0)")
    wg_publish(a, FLG_C, 28)
    a.vm_reset()
    for s in range(7):
        ld_wg(a, s)
    stamp(a)

L4_ST = 131072
L4_CS = 131072 + 1024
WD_R = 128
def ld_wd(a, u):
    s, ct = u >> 1, u & 1
    off = ct * 114688 + (s >> 2) * 4096
    a(f"s_add_u32 s75, s76, {off}")
    a.vm(f"buffer_load_dwordx4 v[{WD_R+4*u}:{WD_R+4*u+3}], v1, {WS}, s75 offen offset:{(s&3)*1024} sc1", ("WD", u))

def p4(a):
    a(f"s_and_b32 s77, s{S_J}, 7")
    a("s_mul_i32 s76, s77, 229376")
    a(f"s_mul_i32 s60, s{S_W}, 14336")
    a("s_add_u32 s76, s76, s60")
    a(f"s_add_u32 s76, s76, {WDF}")
    stamp(a, "p4")
    wg_wait(a, FLG_C, None, 16, 28, 5)
    stamp(a); stamp(a, "p4")
    a(f"s_lshl_b32 s62, s{S_G}, 17")
    a(f"s_lshl_b32 s63, s{S_W}, 10")
    a("s_add_u32 s62, s62, s63")
    a(f"s_add_u32 s62, s62, {HF}")
    def dma(st):
        for tb in range(4):
            off = tb * 32768 + st * 8192
            a(f"s_add_u32 m0, s63, {off}")
            a(f"s_add_u32 s64, s62, {off}")
            a.vm(f"buffer_load_dwordx4 v1, {WS}, s64 offen sc1 lds", ("H", st))
    a.vm_reset()
    dma(0); dma(1)
    lhelp = a.newlabel("help"); ljoin = a.newlabel("p4join")
    a(f"s_cmp_eq_u32 s{S_W}, 7")
    a(f"s_cbranch_scc1 {lhelp}")
    sv = list(a.vmq)
    a("v_add_u32 v2, 65536, v1")
    BB = [[32 + 4 * t for t in range(4)], [48 + 4 * t for t in range(4)]]
    def breads(s):
        for tb in range(4):
            base = "v1" if tb < 2 else "v2"
            a.lg(f"ds_read_b128 v[{BB[s&1][tb]}:{BB[s&1][tb]+3}], {base} offset:{(tb&1)*32768 + s*1024}", s)
    a.lgq = []
    a.vm_wait(("H", 0))
    stamp(a, "p4")
    a("s_barrier")
    stamp(a); stamp(a, "p4")
    breads(0)
    for s in range(32):
        if s + 1 < 32:
            if (s + 1) % 8 == 0:
                a.vm_wait(("H", (s + 1) // 8))
                a("s_barrier")
            breads(s + 1)
        if s == 24:
            a("v_and_b32 v3, 31, v0")
            a("v_lshlrev_b32 v3, 3, v3")
            a(f"v_add_u32 v3, {L4_ST}, v3")
            for tb in range(4):
                a.lg(f"ds_read_b64 v[{4+2*tb}:{5+2*tb}], v3 offset:{tb*256}", "st")
            a("v_lshrrev_b32 v12, 5, v0")
            a("v_lshlrev_b32 v12, 4, v12")
            a(f"s_lshl_b32 s60, s{S_W}, 7")
            a(f"s_add_u32 s60, s60, {L4_CS}")
            a("v_add_u32 v12, s60, v12")
            for q in range(4):
                a.lg(f"ds_read_b128 v[{16+4*q}:{19+4*q}], v12 offset:{q*32}", "st")
        a.lg_wait(s)
        for tb in range(4):
            mfma(a, 64 + 16 * tb, WG_R + 4 * s, BB[s & 1][tb], None if s == 0 else 64 + 16 * tb)
        if s == 0: dma(2)
        if s == 4: dma(3)
        if s >= 1 and s - 1 < 28:
            ld_wd(a, s - 1)
    stamp(a); stamp(a, "p4")
    a("s_waitcnt lgkmcnt(0)")
    a("s_nop 7")
    a("s_mul_i32 s60, s74, 1024")
    a(f"s_lshl_b32 s61, s{S_G}, 2")
    a("s_mul_i32 s61, s61, 114688")
    a("s_add_u32 s60, s60, s61")
    a(f"s_add_u32 s60, s60, {HHF}")
    for tb in range(4):
        A = 64 + 16 * tb
        mean, r2 = 4 + 2 * tb, 5 + 2 * tb
        a(f"v_sub_f32 v32, 0, v{mean}")
        a(f"v_mov_b32 v33, v32")
        a(f"v_mov_b32 v34, v{r2}")
        a(f"v_mov_b32 v35, v{r2}")
        for i in range(8):
            a(f"v_pk_fma_f32 v[{A+2*i}:{A+2*i+1}], v[{16+2*i}:{17+2*i}], v[32:33], v[{A+2*i}:{A+2*i+1}]")
        for r in range(8):
            a(f"v_max_f32 v{A+r}, 0, v{A+r}")
        for i in range(4):
            a(f"v_pk_mul_f32 v[{A+8+2*i}:{A+9+2*i}], v[{A+8+2*i}:{A+9+2*i}], v[34:35]")
        for i in range(4):
            a(f"v_pk_mul_f32 v[{A+2*i}:{A+2*i+1}], v[{A+2*i}:{A+2*i+1}], v[{A+8+2*i}:{A+9+2*i}]")
        for i in range(4):
            a(f"v_cvt_pk_bf16_f32 v{36+4*(tb&1)+i}, v{A+2*i}, v{A+2*i+1}")
        a(f"buffer_store_dwordx4 v[{36+4*(tb&1)}:{39+4*(tb&1)}], v1, {WS}, s60 offen sc1")
        if tb < 3:
            a("s_add_u32 s60, s60, 114688")
    stamp(a, "p4")
    a(f"s_branch {ljoin}")
    a.label(lhelp)
    a.vmq = list(sv)
    dma(2); dma(3)
    a("v_lshlrev_b32 v3, 2, v0")
    a(f"s_mul_i32 s60, s{S_J}, 896")
    a(f"s_add_u32 s60, s60, {CSP}")
    for kq in range(4):
        for i in range(4):
            a.vm(f"buffer_load_dword v{32+4*kq+i}, v3, {WS}, s60 offen offset:{i*256} sc1", "cs")
        if kq < 3:
            a("s_add_u32 s60, s60, 14336")
    a.vm_wait(("H", 0))
    a("s_barrier")
    a.c("finish this workgroup's row statistics (partials of the 8 waves are in LDS) and publish them")
    a("v_and_b32 v2, 31, v0")
    a("v_lshlrev_b32 v64, 3, v2")
    a(f"v_add_u32 v65, {L3_ST}, v64")
    for ww in range(8):
        a(f"ds_read_b64 v[{66+2*ww}:{67+2*ww}], v65 offset:{ww*256}")
    a("s_waitcnt lgkmcnt(0)")
    for ww in range(1, 8):
        a(f"v_pk_add_f32 v[66:67], v[66:67], v[{66+2*ww}:{67+2*ww}]")
    a("v_lshlrev_b32 v64, 5, v2")
    a(f"s_lshl_b32 s60, s{S_TBK}, 10")
    a(f"s_lshl_b32 s61, s{S_HQ}, 3")
    a("s_add_u32 s60, s60, s61")
    a(f"s_add_u32 s60, s60, {HST}")
    a("s_mov_b32 exec_hi, 0")
    a.vm(f"buffer_store_dwordx2 v[66:67], v64, {WS}, s60 offen sc1", "hst")
    a("s_mov_b64 exec, -1")
    a.vm_wait_all()
    eflag_base(a, 60)
    a(f"s_lshl_b32 s61, s{S_J}, 7")
    a("s_add_u32 s60, s60, s61")
    set_flag(a, 60, 28)
    a("s_barrier")
    a("s_barrier")
    eflag_base(a, 60)
    poll_flags(a, 60, 16, 28, 2)
    a("v_lshlrev_b32 v2, 5, v0")
    a(f"s_lshl_b32 s60, s{S_G}, 12")
    a(f"s_add_u32 s60, s60, {HST}")
    for i in range(2):
        a(f"buffer_load_dwordx4 v[{8+8*i}:{11+8*i}], v2, {WS}, s60 offen offset:{i*2048} sc1")
        a(f"buffer_load_dwordx4 v[{12+8*i}:{15+8*i}], v2, {WS}, s60 offen offset:{i*2048+16} sc1")
    a.vm_wait_all()
    for i in range(2):
        b = 8 + 8 * i
        a(f"v_add_f32 v{b}, v{b}, v{b+2}")
        a(f"v_add_f32 v{b+4}, v{b+4}, v{b+6}")
        a(f"v_add_f32 v{b+1}, v{b+1}, v{b+3}")
        a(f"v_add_f32 v{b+5}, v{b+5}, v{b+7}")
        a(f"v_add_f32 v{b}, v{b}, v{b+4}")
        a(f"v_add_f32 v{b+1}, v{b+1}, v{b+5}")
        a(f"v_mul_f32 v{b}, {f32hex(1.0/512)}, v{b}")
        a(f"v_mul_f32 v{b+2}, v{b}, v{b}")
        a(f"v_mov_b32 v{b+3}, {f32hex(1.0/512)}")
        a(f"v_fma_f32 v{b+1}, v{b+1}, v{b+3}, -v{b+2}")
        a(f"v_max_f32 v{b+1}, 0, v{b+1}")
        a(f"v_add_f32 v{b+1}, {f32hex(1e-5)}, v{b+1}")
        a(f"v_rcp_f32 v{b+1}, v{b+1}")
    a("v_lshlrev_b32 v4, 3, v0")
    a(f"v_add_u32 v4, {L4_ST}, v4")
    a("ds_write_b64 v4, v[8:9]")
    a("ds_write_b64 v4, v[16:17] offset:512")
    for i in range(4):
        a(f"v_add_f32 v{32+i}, v{32+i}, v{36+i}")
        a(f"v_add_f32 v{40+i}, v{40+i}, v{44+i}")
        a(f"v_add_f32 v{32+i}, v{32+i}, v{40+i}")
    a(f"v_add_u32 v3, {L4_CS}, v3")
    for i in range(3):
        a(f"ds_write_b32 v3, v{32+i} offset:{i*256}")
    a("s_mov_b32 exec_hi, 0")
    a("ds_write_b32 v3, v35 offset:768")
    a("s_mov_b64 exec, -1")
    a("s_waitcnt lgkmcnt(0)")
    a("s_barrier")
    for u in range(28):
        ld_wd(a, u)
    a.label(ljoin)
    wg_publish(a, FLG_D, 28)
    a.vm_reset()
    stamp(a)

def p5(a):
    mk_srd(a, SRD_A, P_OUT, 2048 * 1024)
    a(f"s_lshr_b32 s72, s{S_J}, 3")
    a(f"s_lshl_b32 s61, s{S_G}, 2")
    a("s_lshl_b32 s62, s72, 1")
    a("s_add_u32 s61, s61, s62")
    a(f"s_mul_i32 s62, s{S_W}, 14336")
    a("s_mul_i32 s64, s61, 114688")
    a("s_add_u32 s64, s64, s62")
    a(f"s_add_u32 s64, s64, {HHF}")
    a("s_add_u32 s65, s64, 114688")
    a("v_lshrrev_b32 v2, 3, v0")
    a(f"s_lshl_b32 s62, s{S_W}, 3")
    a("v_add_u32 v2, s62, v2")
    a("v_and_b32 v3, 7, v0")
    a("v_lshrrev_b32 v4, 5, v2")
    a("v_lshlrev_b32 v4, 5, v4")
    a("v_lshrrev_b32 v5, 1, v3")
    a("v_add_u32 v4, v4, v5")
    a("v_lshlrev_b32 v4, 10, v4")
    a("v_and_b32 v5, 1, v3")
    a("v_lshlrev_b32 v5, 5, v5")
    a("v_and_b32 v6, 31, v2")
    a("v_add_u32 v5, v5, v6")
    a("v_lshl_add_u32 v4, v5, 4, v4")
    a("s_lshl_b32 s62, s61, 5")
    a("s_lshl_b32 s63, s77, 2")
    a("s_add_u32 s62, s62, s63")
    a("s_lshl_b32 s62, s62, 10")
    a(f"s_add_u32 s62, s62, {HF}")
    a(f"buffer_load_dwordx4 v[8:11], v4, {WS}, s62 offen sc1")
    stamp(a, "p4")
    wg_wait(a, FLG_D, None, 16, 28, 5)
    stamp(a); stamp(a, "p4")
    BREG = [16, 24, 32, 40, 48, 56, 240, 248]
    ACC = 64
    a.vm_reset()
    def ldB(s):
        if s and (s & 3) == 0:
            a("s_add_u32 s64, s64, 4096"); a("s_add_u32 s65, s65, 4096")
        r = BREG[s % 8]
        a.vm(f"buffer_load_dwordx4 v[{r}:{r+3}], v1, {WS}, s64 offen offset:{(s&3)*1024} sc1", ("B", s))
        a.vm(f"buffer_load_dwordx4 v[{r+4}:{r+7}], v1, {WS}, s65 offen offset:{(s&3)*1024} sc1", ("B", s))
    for s in range(8):
        ldB(s)
    for s in range(14):
        a.vm_wait(("B", s))
        for ct in range(2):
            for tb in range(2):
                d = ACC + (ct * 2 + tb) * 16
                mfma(a, d, WD_R + (2 * s + ct) * 4, BREG[s % 8] + 4 * tb, None if s == 0 else d)
        if s + 8 < 14:
            ldB(s + 8)
    stamp(a)
    a("v_and_b32 v12, 31, v0")
    a("v_lshrrev_b32 v13, 5, v0")
    a("v_lshlrev_b32 v13, 1, v13")
    a("v_and_b32 v14, 7, v12")
    a("v_xor_b32 v13, v13, v14")
    a("v_lshlrev_b32 v12, 8, v12")
    a(f"s_lshl_b32 s62, s{S_W}, 14")
    a("v_add_u32 v12, s62, v12")
    for k, (rg, q) in enumerate([(0, 0), (0, 1), (1, 0), (1, 1)]):
        a(f"v_xor_b32 v{16+k}, {rg*4+q}, v13")
        a(f"v_lshl_add_u32 v{16+k}, v{16+k}, 4, v12")
    a("s_nop 3")
    for ct in range(2):
        for tb in range(2):
            d = ACC + (ct * 2 + tb) * 16
            for k, (rg, q) in enumerate([(0, 0), (0, 1), (1, 0), (1, 1)]):
                r = d + 8 * rg + 4 * q
                a(f"ds_write_b128 v{16+k}, v[{r}:{r+3}] offset:{ct*128 + tb*8192}")
    a("s_waitcnt lgkmcnt(0)")
    a("s_barrier")
    a("v_and_b32 v12, 7, v2")
    a("v_lshlrev_b32 v13, 1, v3")
    a("v_xor_b32 v14, v13, v12")
    a("v_or_b32 v13, 1, v13")
    a("v_xor_b32 v15, v13, v12")
    a("v_lshlrev_b32 v14, 4, v14")
    a("v_lshlrev_b32 v15, 4, v15")
    a("v_lshl_add_u32 v14, v2, 8, v14")
    a("v_lshl_add_u32 v15, v2, 8, v15")
    a("v_add_u32 v12, 65536, v14")
    a("v_add_u32 v13, 65536, v15")
    for src in range(8):
        b0, b1 = ("v14", "v15") if src < 4 else ("v12", "v13")
        a(f"ds_read_b128 v[{16+8*src}:{19+8*src}], {b0} offset:{(src&3)*16384}")
        a(f"ds_read_b128 v[{20+8*src}:{23+8*src}], {b1} offset:{(src&3)*16384}")
        if src == 3: a("s_waitcnt lgkmcnt(4)")
    a("s_mov_b32 s62, 0xffff0000")
    for i in range(4):
        a(f"v_lshlrev_b32 v{80+2*i}, 16, v{8+i}")
        a(f"v_and_b32 v{81+2*i}, s62, v{8+i}")
    a("s_waitcnt lgkmcnt(0)")
    for src in range(1, 8):
        for i in range(4):
            a(f"v_pk_add_f32 v[{16+2*i}:{17+2*i}], v[{16+2*i}:{17+2*i}], v[{16+8*src+2*i}:{17+8*src+2*i}]")
    for i in range(4):
        a(f"v_pk_add_f32 v[{16+2*i}:{17+2*i}], v[{16+2*i}:{17+2*i}], v[{80+2*i}:{81+2*i}]")
    for i in range(4):
        a(f"v_cvt_pk_bf16_f32 v{8+i}, v{16+2*i}, v{17+2*i}")
    a("v_lshlrev_b32 v4, 10, v2")
    a("v_lshl_add_u32 v4, v3, 4, v4")
    a(f"s_lshl_b32 s62, s{S_G}, 17")
    a("s_lshl_b32 s63, s72, 16")
    a("s_add_u32 s62, s62, s63")
    a("s_lshl_b32 s63, s77, 7")
    a("s_add_u32 s62, s62, s63")
    a(f"buffer_store_dwordx4 v[8:11], v4, s[{SRD_A}:{SRD_A+3}], s62 offen")

def build():
    a = Asm()
    label = G.NAME + "_kernel"
    a.raw(G.HEADER.rstrip("\n"))
    a.raw("; @launch grid=(256,1,1) block=(512,1,1) lds=163840")
    a.raw('.amdgcn_target "amdgcn-amd-amdhsa--gfx950"')
    a.raw(".text")
    a.raw(f".globl {label}")
    a.raw(".p2align 8")
    a.raw(f".type {label},@function")
    a.raw(f"{label}:")
    if PROFILE:
        a("s_memtime s[98:99]")
        a("s_memrealtime s[100:101]")
        for k in range(16): a(f"s_mov_b32 s{80+k}, 0")
    G.WS_USED = WS_USED
    G.prologue(a, "L_fin")
    a(f"s_add_u32 s60, s{P_WS}, {NONCE}")
    a(f"s_addc_u32 s61, s{P_WS+1}, 0")
    a(f"s_load_dword s{S_NONCE}, s[60:61], 0")
    phase0(a)
    attention(a)
    p3(a)
    p4(a)
    p5(a)
    lnn = a.newlabel("nn")
    a("s_cmp_lg_u32 s2, 0")
    a(f"s_cbranch_scc1 {lnn}")
    a(f"s_cmp_lg_u32 s{S_W}, 0")
    a(f"s_cbranch_scc1 {lnn}")
    a(f"s_mov_b32 s62, {NONCE}")
    set_flag(a, 62, 28)
    a.label(lnn)
    if PROFILE:
        a(f"s_cmp_lg_u32 s{S_W}, {PROF_WAVE}")
        a("s_cbranch_scc1 L_fin")
        a("s_waitcnt vmcnt(0) lgkmcnt(0)")
        a("s_memtime s[96:97]")
        a("s_memrealtime s[54:55]")
        a("s_waitcnt lgkmcnt(0)")
        for k in range(16):
            a(f"s_sub_u32 s{80+k}, s{80+k}, s98")
            a(f"v_mov_b32 v{k}, s{80+k}")
        a("s_sub_u32 s96, s96, s98")
        a("s_sub_u32 s54, s54, s100")
        a("v_mov_b32 v16, s96")
        a("v_mov_b32 v17, s54")
        a("v_mov_b32 v18, s100")
        a("v_mov_b32 v19, 0")
        a("s_mul_i32 s54, s2, 128")
        a(f"s_add_u32 s54, s54, {PROF}")
        a("v_mov_b32 v20, 0")
        a("s_mov_b64 exec, 1")
        for q in range(5):
            a(f"buffer_store_dwordx4 v[{4*q}:{4*q+3}], v20, {WS}, s54 offen offset:{16*q}")
    a.label("L_fin")
    a("s_endpgm")
    a.raw('.section .rodata,"a"')
    a.raw(".p2align 6")
    G.descriptor(a, label, 256)
    return a.text()

if __name__ == "__main__":
    open(sys.argv[1], "w").write(build())
```

```python
import os, sys
from asmlib import Asm
import gen as G
from gen import (S_W, S_G, S_J, S_TBK, S_HQ, S_TQ, SRD_WS, SRD_A, SRD_B, SRD_C, SRD_D, mk_srd, f32hex,
                 dpp_sum16, xhalf, xrow16, OF, HF, KF, VF, HST, CSP, WOF, WDF, WGF, HHF, QSCALE,
                 P_X, P_WQ, P_WK, P_WV, P_WO, P_WG, P_WU, P_WD, P_OUT, P_DBG, P_WS)
from kernels2 import mfma
WS = f"s[{SRD_WS}:{SRD_WS+3}]"
FLG = 0x1410000
FLG_A, FLG_W, FLG_E = FLG, FLG + 64*128, FLG + 320*128
FLG_B, FLG_C, FLG_D = FLG + 1024*128, FLG + 3072*128, FLG + 5120*128
NONCE = FLG + 7168*128
S_NONCE = 56
PROF = 0x1400000
WS_USED = 0x1500000
SPIN = 400000
ZROWS = os.environ.get('ZROWS', '1') == '1'
OUT_FLAGS = os.environ.get('OUT_FLAGS', '')
POLL_DELAY = int(os.environ.get('POLL_DELAY', '0'))
SENT_D = os.environ.get('SENT_D', '0') == '1'
FULL_LINE = os.environ.get('FULL_LINE', '1') == '1'
POLL_SLEEP = int(os.environ.get('POLL_SLEEP', '2'))
PROFILE = G.PROFILE
PROF_WAVE = G.PROF_WAVE
PRIO = os.environ.get("PRIO", "1") == "1"
NST = [0]
STAMPSET = os.environ.get("STAMPSET", "main")
def stamp(a, kind="main"):
    if not PROFILE: return
    if kind != STAMPSET: return
    k = NST[0]; NST[0] += 1
    assert k < 16
    a("s_waitcnt lgkmcnt(0)")
    a("s_memtime s[96:97]")
    a("s_waitcnt lgkmcnt(0)")
    a(f"s_mov_b32 s{80+k}, s96")

def spin_begin(a, name):
    l = a.newlabel(name)
    a(f"s_mov_b32 s79, {SPIN}")
    a.label(l)
    return l
def spin_end(a, l, done, sleep=1):
    a("s_nop 4")
    a(f"s_cbranch_vccz {done}")
    a(f"s_sleep {sleep}")
    a("s_sub_u32 s79, s79, 1")
    a("s_cmp_lg_u32 s79, 0")
    a(f"s_cbranch_scc1 {l}")
    a.label(done)

def poll_flags(a, soff_reg, nlanes, vtmp, voff, sleep=1, shift=7):
    done = a.newlabel("pd")
    a(f"v_lshlrev_b32 v{voff}, {shift}, v0")
    if nlanes < 64:
        a(f"s_mov_b64 exec, {hex((1 << nlanes) - 1)}")
    l = spin_begin(a, "pl")
    a(f"buffer_load_dword v{vtmp}, v{voff}, {WS}, s{soff_reg} offen sc1")
    a("s_waitcnt vmcnt(0)")
    a(f"v_cmp_ne_u32 vcc, s{S_NONCE}, v{vtmp}")
    spin_end(a, l, done, sleep)
    if nlanes < 64:
        a("s_mov_b64 exec, -1")

def set_flag(a, soff_reg, vtmp):
    a(f"v_mov_b32 v{vtmp}, s{S_NONCE}")
    if FULL_LINE:
        a(f"v_lshlrev_b32 v{vtmp+1}, 2, v0")
        a("s_mov_b32 exec_hi, 0")
    else:
        a(f"v_mov_b32 v{vtmp+1}, 0")
        a("s_mov_b64 exec, 1")
    a(f"buffer_store_dword v{vtmp}, v{vtmp+1}, {WS}, s{soff_reg} offen sc1")
    a("s_mov_b64 exec, -1")

L_XN, L_WQ, L_WK, L_WV = 0, 32768, 131072, 147456
QSAVE = 250

def phase0(a):
    mk_srd(a, SRD_A, P_X, 2048 * 1024)
    mk_srd(a, SRD_B, P_WQ, 512 * 1024)
    a(f"s_lshl_b32 s54, s{S_TBK}, 5")
    a(f"s_lshl_b32 s55, s{S_W}, 2")
    a("s_add_u32 s54, s54, s55")
    a("v_lshrrev_b32 v2, 4, v0")
    a("v_and_b32 v3, 15, v0")
    a("v_add_u32 v4, s54, v2")
    a("v_lshlrev_b32 v4, 10, v4")
    a("v_lshl_add_u32 v4, v3, 4, v4")
    for i in range(4):
        a(f"buffer_load_dwordx4 v[{16+4*i}:{19+4*i}], v4, s[{SRD_A}:{SRD_A+3}], 0 offen offset:{256*i}")
    a("v_lshlrev_b32 v6, 4, v0")
    lskip = a.newlabel("nokv"); lj = a.newlabel("kvj")
    a(f"s_cmp_lg_u32 s{S_HQ}, 0")
    a(f"s_cbranch_scc1 {lskip}")
    mk_srd(a, SRD_C, P_WK, 16384)
    mk_srd(a, SRD_D, P_WV, 16384)
    a(f"s_lshl_b32 s60, s{S_W}, 11")
    for i in range(2):
        a(f"s_add_u32 s61, s60, {i*1024}")
        a(f"s_add_u32 m0, s61, {L_WK}")
        a("s_nop 0")
        a(f"buffer_load_dwordx4 v6, s[{SRD_C}:{SRD_C+3}], s61 offen lds")
        a(f"s_add_u32 m0, s61, {L_WV}")
        a("s_nop 0")
        a(f"buffer_load_dwordx4 v6, s[{SRD_D}:{SRD_D+3}], s61 offen lds")
    a.label(lskip)
    a("v_lshlrev_b32 v5, 1, v2")
    a("v_xor_b32 v5, v3, v5")
    a("v_lshlrev_b32 v5, 4, v5")
    a("v_lshl_add_u32 v5, v2, 10, v5")
    a(f"s_lshl_b32 s55, s{S_HQ}, 8")
    a("v_add_u32 v5, s55, v5")
    a(f"s_lshl_b32 s62, s{S_W}, 12")
    a(f"s_add_u32 s62, s62, {L_WQ}")
    a(f"s_lshl_b32 s63, s{S_W}, 14")
    def wq_dma(q):
        for i in range(4):
            a(f"s_add_u32 m0, s62, {(q % 3) * 32768 + i * 1024}")
            a(f"s_add_u32 s64, s63, {(q * 128 + 4 * i) * 1024}")
            a(f"buffer_load_dwordx4 v5, s[{SRD_B}:{SRD_B+3}], s64 offen lds")
    wq_dma(0)
    stamp(a, "p0")
    a("s_waitcnt vmcnt(4)")
    stamp(a); stamp(a, "p0")
    b = Asm()
    if True:
        b("s_mov_b32 s60, 0x3f803f80")
        for r in range(4): b(f"v_mov_b32 v{32+r}, 0")
        for i in range(16):
            b(f"v_dot2_f32_bf16 v{32 + (i & 1)}, v{16+i}, s60, v{32 + (i & 1)}")
            b(f"v_dot2_f32_bf16 v{34 + (i & 1)}, v{16+i}, v{16+i}, v{34 + (i & 1)}")
        b("s_mov_b32 s61, 0xffff0000")
        for i in range(4):
            b(f"v_lshlrev_b32 v{64+2*i}, 16, v{16+i}")
            b(f"v_and_b32 v{65+2*i}, s61, v{16+i}")
        b("v_add_f32 v32, v32, v33")
        b("v_add_f32 v34, v34, v35")
        for n, sh in enumerate((8, 4, 2, 1)):
            for i in range(4 + 3*n, 7 + 3*n):
                b(f"v_lshlrev_b32 v{64+2*i}, 16, v{16+i}")
                b(f"v_and_b32 v{65+2*i}, s61, v{16+i}")
            b(f"v_add_f32_dpp v32, v32, v32 row_ror:{sh} row_mask:0xf bank_mask:0xf")
            b(f"v_add_f32_dpp v34, v34, v34 row_ror:{sh} row_mask:0xf bank_mask:0xf")
        b(f"v_mul_f32 v32, {f32hex(1.0/512)}, v32")
        b("v_mul_f32 v33, v32, v32")
        b(f"v_mov_b32 v35, {f32hex(1.0/512)}")
        b("v_fma_f32 v34, v34, v35, -v33")
        b("v_max_f32 v34, 0, v34")
        b(f"v_add_f32 v34, {f32hex(1e-5)}, v34")
        b("v_rsq_f32 v38, v34")
        b.c("XN write addr")
        b(f"s_lshl_b32 s55, s{S_W}, 2")
        b("v_add_u32 v7, s55, v2")
        b("v_mov_b32 v39, v38")
        b("v_mul_f32 v36, v32, v38")
        b("v_sub_f32 v36, 0, v36")
        b("v_mov_b32 v37, v36")
        for i in range(16):
            b(f"v_pk_fma_f32 v[{64+2*i}:{65+2*i}], v[{64+2*i}:{65+2*i}], v[38:39], v[36:37]")
        b("v_and_b32 v8, 7, v3")
        b("v_xor_b32 v7, v7, v8")
        b("v_lshlrev_b32 v7, 4, v7")
        b("v_lshrrev_b32 v8, 1, v3")
        b("v_lshl_add_u32 v7, v8, 10, v7")
        b("v_and_b32 v8, 1, v3")
        b("v_lshl_add_u32 v7, v8, 9, v7")
        for i in range(4):
            for e in range(4):
                b(f"v_cvt_pk_bf16_f32 v{16+4*i+e}, v{64+8*i+2*e}, v{65+8*i+2*e}")
            b(f"ds_write_b128 v7, v[{16+4*i}:{19+4*i}] offset:{L_XN + i*8192}")

    a.L.extend(b.L)
    wq_dma(1); wq_dma(2)
    a("v_lshrrev_b32 v8, 5, v0")
    a("v_and_b32 v9, 31, v0")
    for m in range(4):
        a(f"v_add_u32 v10, {2*m}, v8")
        a("v_xor_b32 v10, v9, v10")
        a("v_lshlrev_b32 v10, 4, v10")
        a(f"v_lshl_add_u32 v{40+m}, v8, 9, v10")
    a("v_lshrrev_b32 v10, 2, v3")
    a("v_and_b32 v11, 3, v3")
    a("v_lshl_add_u32 v12, v8, 3, v10")
    a(f"s_lshl_b32 s55, s{S_W}, 1")
    a("v_lshrrev_b32 v13, 1, v11")
    a("v_add_u32 v13, s55, v13")
    a("v_lshlrev_b32 v14, 1, v10")
    a("v_xor_b32 v13, v13, v14")
    a("v_lshlrev_b32 v13, 4, v13")
    a("v_lshl_add_u32 v13, v12, 8, v13")
    a("v_and_b32 v14, 1, v11")
    a("v_lshl_add_u32 v13, v14, 3, v13")
    a(f"v_add_u32 v44, {L_WQ}, v13")
    stamp(a, "p0")
    a("s_waitcnt lgkmcnt(0)")
    a.c("launch tag: a fixed-point-free bijection of the tag the previous launch left (any value works)")
    a(f"s_mul_i32 s{S_NONCE}, s{S_NONCE}, 0x9E3779B1")
    a(f"s_add_u32 s{S_NONCE}, s{S_NONCE}, 0x7F4A7C15")
    a("s_barrier")
    stamp(a); stamp(a, "p0")
    lkvd = a.newlabel("kvdone"); lkv1 = a.newlabel("kv1")
    a(f"s_cmp_lg_u32 s{S_HQ}, 0")
    a(f"s_cbranch_scc1 {lkv1}")
    a.c("tr addr: blk0 -> WV, blk1 -> WK ; row (64w + 16e + 8khalf + 4rd + r4)*32 + cg*8")
    a("v_lshlrev_b32 v13, 5, v12")
    a("v_lshl_add_u32 v13, v11, 3, v13")
    a(f"s_lshl_b32 s55, s{S_W}, 11")
    a("v_add_u32 v13, s55, v13")
    a("v_and_b32 v14, 1, v2")
    a(f"v_mov_b32 v15, {L_WV}")
    a(f"v_mov_b32 v45, {L_WK}")
    a("v_cmp_eq_u32 vcc, 1, v14")
    a("s_nop 1")
    a("v_cndmask_b32 v15, v15, v45, vcc")
    a("v_add_u32 v13, v13, v15")
    a.c("xn frags for k-steps 4w..4w+3 : s&3 = e")
    a(f"s_lshl_b32 s55, s{S_W}, 12")
    for e in range(4):
        a(f"v_add_u32 v{46+e}, s55, v{40+e}")
    for e in range(4):
        a(f"ds_read_b64_tr_b16 v[{64+4*e}:{65+4*e}], v13 offset:{e*512}")
        a(f"ds_read_b64_tr_b16 v[{66+4*e}:{67+4*e}], v13 offset:{e*512+128}")
        a(f"ds_read_b128 v[{80+4*e}:{83+4*e}], v{46+e} offset:{L_XN + e*1024}")
    for e in range(4):
        a(f"s_waitcnt lgkmcnt({9-3*e})")
        mfma(a, 96, 64 + 4 * e, 80 + 4 * e, None if e == 0 else 96)
    a.c("RED: q=0,1 -> WK + w*2048 + q*1024 ; q=2,3 -> WV + w*2048 + (q-2)*1024  (own, already consumed rows)")
    a(f"s_lshl_b32 s55, s{S_W}, 11")
    a(f"s_add_u32 s55, s55, {L_WK}")
    a("v_add_u32 v14, s55, v6")
    a(f"v_add_u32 v15, {L_WV - L_WK}, v14")
    a("s_nop 10")
    a("ds_write_b128 v14, v[96:99]")
    a("ds_write_b128 v14, v[100:103] offset:1024")
    a("ds_write_b128 v15, v[104:107]")
    a("ds_write_b128 v15, v[108:111] offset:1024")
    a.label(lkv1)
    stamp(a, "p0")
    a("s_waitcnt vmcnt(8) lgkmcnt(0)")
    stamp(a, "p0")
    a("s_barrier")
    stamp(a, "p0")
    a(f"s_cmp_lg_u32 s{S_HQ}, 0")
    a(f"s_cbranch_scc1 {lkvd}")
    lv = a.newlabel("kv_v")
    a(f"s_cmp_eq_u32 s{S_W}, 1")
    a(f"s_cbranch_scc1 {lv}")
    a(f"s_cmp_lg_u32 s{S_W}, 0")
    a(f"s_cbranch_scc1 {lkvd}")
    def red8(base):
        a(f"v_add_u32 v14, {base}, v6")
        for ww in range(8):
            a(f"ds_read_b128 v[{64+8*ww}:{67+8*ww}], v14 offset:{ww*2048}")
            a(f"ds_read_b128 v[{68+8*ww}:{71+8*ww}], v14 offset:{ww*2048+1024}")
            if ww == 3: a("s_waitcnt lgkmcnt(4)")
        a("s_waitcnt lgkmcnt(0)")
        for ww in range(1, 8):
            for i in range(4):
                a(f"v_pk_add_f32 v[{64+2*i}:{65+2*i}], v[{64+2*i}:{65+2*i}], v[{64+8*ww+2*i}:{65+8*ww+2*i}]")
        for r in range(4):
            a(f"v_cvt_pk_bf16_f32 v{76+r}, v{64+2*r}, v{65+2*r}")
    red8(L_WV)
    a(f"s_lshl_b32 s55, s{S_TBK}, 10")
    a(f"s_add_u32 s55, s55, {KF}")
    a(f"buffer_store_dwordx4 v[76:79], v6, {WS}, s55 offen sc1")
    a("v_mov_b32 v80, 0")
    for r in range(4):
        a(f"v_dot2_f32_bf16 v80, v{76+r}, v{76+r}, v80")
    a("s_nop 2")
    xhalf(a, 80, 81, "v_add_f32")
    dpp_sum16(a, 80, "v_max_f32")
    xrow16(a, 80, 81, "v_max_f32")
    a(f"v_mov_b32 v{QSAVE+5}, v80")
    a(f"s_branch {lkvd}")
    a.label(lv)
    red8(L_WK)
    a("v_lshlrev_b32 v80, 5, v9")
    a("v_lshl_add_u32 v80, v8, 3, v80")
    a(f"v_add_u32 v80, {L_WK}, v80")
    a("ds_write_b64 v80, v[76:77]")
    a("ds_write_b64 v80, v[78:79] offset:16")
    a("v_lshl_add_u32 v81, v8, 2, v10")
    a("v_lshlrev_b32 v81, 5, v81")
    a("v_and_b32 v82, 1, v11")
    a("v_lshlrev_b32 v82, 1, v82")
    a("v_lshrrev_b32 v83, 1, v11")
    a("v_add_u32 v82, v82, v83")
    a("v_lshl_add_u32 v81, v82, 3, v81")
    a(f"v_add_u32 v81, {L_WK}, v81")
    a("s_waitcnt lgkmcnt(0)")
    for c2 in range(2):
        for rd in range(2):
            d = 84 + 4 * c2 + 2 * rd
            a(f"ds_read_b64_tr_b16 v[{d}:{d+1}], v81 offset:{(16*c2 + 8*rd) * 32}")
    a("v_lshl_add_u32 v82, v8, 4, v3")
    a("v_lshlrev_b32 v82, 4, v82")
    a(f"s_lshl_b32 s55, s{S_TBK}, 10")
    a(f"s_add_u32 s55, s55, {VF}")
    a("s_waitcnt lgkmcnt(0)")
    a("s_mov_b32 exec_lo, 0x0000ffff")
    a("s_mov_b32 exec_hi, 0x0000ffff")
    a(f"buffer_store_dwordx4 v[84:87], v82, {WS}, s55 offen sc1")
    a(f"buffer_store_dwordx4 v[88:91], v82, {WS}, s55 offen offset:512 sc1")
    a("s_mov_b64 exec, -1")
    a.label(lkvd)
    a("v_add_u32 v45, 1024, v44")
    stamp(a, "p0")
    def publish_kv():
        lnf = a.newlabel("noflag")
        a(f"s_cmp_lg_u32 s{S_HQ}, 0")
        a(f"s_cbranch_scc1 {lnf}")
        a(f"s_cmp_lg_u32 s{S_W}, 0")
        a(f"s_cbranch_scc1 {lnf}")
        a(f"s_lshl_b32 s55, s{S_TBK}, 7")
        a(f"s_add_u32 s55, s55, {FLG_A}")
        a("v_lshlrev_b32 v80, 3, v0")
        a(f"v_mov_b32 v{QSAVE+4}, s{S_NONCE}")
        a("s_mov_b64 exec, 0xffff")
        a(f"buffer_store_dwordx2 v[{QSAVE+4}:{QSAVE+5}], v80, {WS}, s55 offen sc1")
        a("s_mov_b64 exec, -1")
        a.label(lnf)
    ACC = 96
    AB = [112, 116, 120]; BB = [124, 128, 132]
    def issue(s):
        A = AB[s % 3]; B = BB[s % 3]
        a.lg(f"ds_read_b64_tr_b16 v[{A}:{A+1}], v44", s)
        a.lg(f"ds_read_b64_tr_b16 v[{A+2}:{A+3}], v45", s)
        a.lg(f"ds_read_b128 v[{B}:{B+3}], v{40 + (s & 3)} offset:{L_XN + s*1024}", s)
        d = 4096 - (98304 if s == 23 else 0)
        a(f"v_add_u32 v44, {d & 0xffffffff:#x}, v44"); a(f"v_add_u32 v45, {d & 0xffffffff:#x}, v45")
    a.lgq = []
    issue(0); issue(1)
    for s in range(32):
        if s + 2 < 32:
            if s + 2 == 8:
                a("s_waitcnt vmcnt(0)")
                a("s_barrier")
                stamp(a, "p0"); a.lgq = [] if PROFILE and STAMPSET == "p0" else a.lgq
                publish_kv()
            if s + 2 == 24:
                a("s_waitcnt vmcnt(0)")
                a("s_barrier")
            issue(s + 2)
        a.lg_wait(s)
        mfma(a, ACC, AB[s % 3], BB[s % 3], None if s == 0 else ACC)
        if s == 7:
            a("s_barrier")
            wq_dma(3)
    a("s_nop 15")
    a(f"s_mov_b32 s55, {f32hex(QSCALE)}")
    for r in range(8):
        a(f"v_mul_f32 v{64+r}, s55, v{ACC+r}")
    for r in range(4):
        a(f"v_cvt_pk_bf16_f32 v{QSAVE+r}, v{64+2*r}, v{65+2*r}")
    stamp(a); stamp(a, "p0")
    a("s_barrier")
    stamp(a, "p0")

L_SCR = 131072
S_JOB = 78
V_WJS, V_WJT, V_WJC = 140, 141, 142
SRD_J1, SRD_J2 = 20, 36
def wj_setup(a):
    a("v_lshrrev_b32 v143, 4, v0")
    a("v_and_b32 v144, 15, v0")
    a("v_lshrrev_b32 v145, 5, v0")
    a("v_lshrrev_b32 v146, 2, v144")
    a("v_and_b32 v147, 3, v144")
    a("v_and_b32 v148, 1, v147")
    a("v_lshlrev_b32 v148, 1, v148")
    a("v_lshrrev_b32 v149, 1, v147")
    a("v_add_u32 v148, v148, v149")
    a("v_lshlrev_b32 v148, 3, v148")
    a("v_and_b32 v149, 1, v143")
    a("v_lshl_add_u32 v150, v145, 3, v146")
    a(f"s_lshl_b32 s57, s{S_W}, 12")
    a(f"s_add_u32 s57, s57, {L_SCR}")
    a(f"s_mov_b32 s{S_JOB}, 0")
    lo = a.newlabel("wjo"); ld = a.newlabel("wjd")
    a("s_cmp_ge_u32 s2, 112")
    a(f"s_cbranch_scc1 {lo}")
    a(f"s_mov_b32 s{S_JOB}, 1")
    a("s_lshr_b32 s60, s2, 2")
    a("s_and_b32 s61, s2, 3")
    a("s_lshl_b32 s62, s61, 3")
    a(f"s_add_u32 s62, s62, s{S_W}")
    mk_srd(a, SRD_J1, P_WG, 512 * 3584)
    mk_srd(a, SRD_J2, P_WU, 512 * 3584)
    a("v_lshrrev_b32 v151, 3, v0")
    a("s_mov_b32 s63, 3584")
    a("v_mul_lo_u32 v151, v151, s63")
    a("v_and_b32 v152, 7, v0")
    a(f"v_lshl_add_u32 v{V_WJS}, v152, 4, v151")
    a("s_mul_i32 s58, s62, 57344")
    a("s_lshl_b32 s63, s60, 7")
    a("s_add_u32 s58, s58, s63")
    a("v_lshlrev_b32 v151, 7, v150")
    a("v_lshl_add_u32 v151, v149, 11, v151")
    a("v_add_u32 v151, v151, v148")
    a(f"v_add_u32 v{V_WJT}, s57, v151")
    a("s_lshl_b32 s59, s60, 7")
    a("s_add_u32 s59, s59, s62")
    a("s_lshl_b32 s59, s59, 10")
    a(f"s_add_u32 s59, s59, {WGF}")
    a("s_mul_i32 s72, s61, 112")
    a("s_lshl_b32 s63, s60, 2")
    a("s_add_u32 s72, s72, s63")
    a("s_lshl_b32 s72, s72, 7")
    a(f"s_add_u32 s72, s72, {CSP}")
    a("v_lshlrev_b32 v151, 2, v0")
    a(f"v_add_u32 v{V_WJC}, s57, v151")
    a.c("warm the L2 with the 16 source rows (one 128-byte line per row and matrix)")
    a("v_and_b32 v151, 15, v0")
    a("s_mov_b32 s63, 3584")
    a("v_mul_lo_u32 v151, v151, s63")
    a(f"buffer_load_dword v153, v151, s[{SRD_J1}:{SRD_J1+3}], s58 offen")
    a(f"buffer_load_dword v154, v151, s[{SRD_J2}:{SRD_J2+3}], s58 offen")
    a(f"s_branch {ld}")
    a.label(lo)
    a("s_cmp_ge_u32 s2, 184")
    a(f"s_cbranch_scc1 {ld}")
    a("s_sub_u32 s60, s2, 112")
    a("s_lshl_b32 s60, s60, 3")
    a(f"s_add_u32 s60, s60, s{S_W}")
    lwd = a.newlabel("wjwd")
    a("s_cmp_ge_u32 s60, 128")
    a(f"s_cbranch_scc1 {lwd}")
    a(f"s_mov_b32 s{S_JOB}, 3")
    mk_srd(a, SRD_J1, P_WO, 512 * 1024)
    a("s_lshr_b32 s61, s60, 3")
    a("s_and_b32 s62, s60, 7")
    a("v_lshrrev_b32 v151, 3, v0")
    a("v_lshlrev_b32 v151, 10, v151")
    a("v_and_b32 v152, 7, v0")
    a(f"v_lshl_add_u32 v{V_WJS}, v152, 4, v151")
    a("s_lshl_b32 s58, s61, 15")
    a("s_lshl_b32 s60, s62, 7")
    a("s_add_u32 s58, s58, s60")
    a("s_mov_b32 s69, 8192")
    a("v_lshl_add_u32 v151, v143, 3, v146")
    a("v_lshlrev_b32 v151, 7, v151")
    a("v_lshl_add_u32 v151, v147, 3, v151")
    a(f"v_add_u32 v{V_WJT}, s57, v151")
    a("s_lshl_b32 s59, s62, 6")
    a("s_add_u32 s59, s59, s61")
    a("s_lshl_b32 s59, s59, 10")
    a(f"s_add_u32 s59, s59, {WOF}")
    a("s_mov_b32 s72, 16384")
    a("v_and_b32 v151, 31, v0")
    a("v_lshlrev_b32 v151, 10, v151")
    a(f"buffer_load_dword v153, v151, s[{SRD_J1}:{SRD_J1+3}], s58 offen")
    a(f"s_branch {ld}")
    a.label(lwd)
    a(f"s_mov_b32 s{S_JOB}, 2")
    a("s_sub_u32 s60, s60, 128")
    mk_srd(a, SRD_J1, P_WD, 1792 * 1024)
    a("s_lshr_b32 s61, s60, 2")
    a("s_and_b32 s62, s60, 3")
    a("v_lshlrev_b32 v151, 10, v143")
    a(f"v_lshl_add_u32 v{V_WJS}, v144, 4, v151")
    a("s_lshl_b32 s58, s61, 14")
    a("s_lshl_b32 s60, s62, 8")
    a("s_add_u32 s58, s58, s60")
    a("s_mov_b32 s69, 4096")
    a("v_lshlrev_b32 v151, 8, v150")
    a("v_lshl_add_u32 v151, v149, 5, v151")
    a("v_add_u32 v151, v151, v148")
    a(f"v_add_u32 v{V_WJT}, s57, v151")
    a("s_lshl_b32 s59, s62, 2")
    a("s_mul_i32 s59, s59, 112")
    a("s_add_u32 s59, s59, s61")
    a("s_lshl_b32 s59, s59, 10")
    a(f"s_add_u32 s59, s59, {WDF}")
    a(f"s_mov_b32 s72, {112*1024}")
    a("v_and_b32 v151, 31, v0")
    a("v_lshrrev_b32 v152, 1, v151")
    a("v_lshlrev_b32 v152, 10, v152")
    a("v_and_b32 v151, 1, v151")
    a("v_lshl_add_u32 v151, v151, 7, v152")
    a(f"buffer_load_dword v153, v151, s[{SRD_J1}:{SRD_J1+3}], s58 offen")
    a.label(ld)

def wj_branch(a, g_code, o_code):
    lo = a.newlabel("jo"); le = a.newlabel("je")
    a(f"s_cmp_eq_u32 s{S_JOB}, 1")
    a(f"s_cbranch_scc0 {lo}")
    if g_code: g_code()
    a(f"s_branch {le}")
    a.label(lo)
    if o_code:
        a(f"s_cmp_eq_u32 s{S_JOB}, 0")
        a(f"s_cbranch_scc1 {le}")
        o_code()
    a.label(le)

def wj_issue(a, part=None):
    def g():
        for i in ([0, 1] if part is None else [part]):
            a(f"s_add_u32 m0, s57, {i*1024}")
            a(f"s_add_u32 s63, s58, {i*8*3584}")
            a(f"buffer_load_dwordx4 v{V_WJS}, s[{SRD_J1}:{SRD_J1+3}], s63 offen lds")
            a(f"s_add_u32 m0, s57, {2048 + i*1024}")
            a("s_nop 0")
            a(f"buffer_load_dwordx4 v{V_WJS}, s[{SRD_J2}:{SRD_J2+3}], s63 offen lds")
    def o():
        for i in (range(4) if part is None else [2 * part, 2 * part + 1]):
            a(f"s_add_u32 m0, s57, {i*1024}")
            a(f"s_mul_i32 s63, s69, {i}")
            a(f"s_add_u32 s63, s63, s58")
            a(f"buffer_load_dwordx4 v{V_WJS}, s[{SRD_J1}:{SRD_J1+3}], s63 offen lds")
    wj_branch(a, g, o)

def wj_read(a, n_younger):
    def rd(st, rdoff):
        def f():
            a(f"s_waitcnt vmcnt({n_younger})")
            for q in range(4):
                d = 96 + 4 * q
                a(f"ds_read_b64_tr_b16 v[{d}:{d+1}], v{V_WJT} offset:{q*st}")
                a(f"ds_read_b64_tr_b16 v[{d+2}:{d+3}], v{V_WJT} offset:{q*st + rdoff}")
        return f
    l2 = a.newlabel("jr2"); le = a.newlabel("jre")
    a(f"s_cmp_eq_u32 s{S_JOB}, 0")
    a(f"s_cbranch_scc1 {le}")
    a(f"s_cmp_eq_u32 s{S_JOB}, 2")
    a(f"s_cbranch_scc1 {l2}")
    rd(32, 512)()
    a(f"s_branch {le}")
    a.label(l2)
    rd(64, 1024)()
    a.label(le)

def wj_store(a):
    def g():
        for r in range(4):
            a(f"v_mov_b32 v{112+r}, 0x3f803f80")
        for q in range(4):
            d = 96 + 4 * q
            a(f"s_add_u32 s63, s59, {q*32768}")
            a(f"buffer_store_dwordx4 v[{d}:{d+3}], v1, {WS}, s63 offen sc1")
        for q in range(4):
            mfma(a, 160 + 16 * q, 112, 96 + 4 * q, None)
    def o():
        a("s_mov_b32 s63, s59")
        for q in range(4):
            d = 96 + 4 * q
            a(f"buffer_store_dwordx4 v[{d}:{d+3}], v1, {WS}, s63 offen sc1")
            if q < 3: a("s_add_u32 s63, s63, s72")
    wj_branch(a, g, o)

def wj_cspart(a):
    def g():
        a("s_mov_b32 exec_hi, 0")
        for q in range(4):
            a(f"ds_write_b32 v{V_WJC}, v{160 + 16 * q} offset:{q*128}")
        a("s_mov_b64 exec, -1")
    wj_branch(a, g, None)

def wj_csread(a):
    def g():
        l = a.newlabel("csr")
        a(f"s_cmp_ge_u32 s{S_W}, 2")
        a(f"s_cbranch_scc1 {l}")
        a(f"s_lshl_b32 s63, s{S_W}, 8")
        a("v_lshlrev_b32 v104, 2, v0")
        a("v_add_u32 v104, s63, v104")
        a(f"v_add_u32 v105, {L_SCR}, v104")
        for ww in range(8):
            a(f"ds_read_b32 v{96+ww}, v105 offset:{ww*4096}")
        a.label(l)
    wj_branch(a, g, None)

def wj_csstore(a):
    def g():
        l = a.newlabel("css")
        a(f"s_cmp_ge_u32 s{S_W}, 2")
        a(f"s_cbranch_scc1 {l}")
        for ww in range(1, 8):
            a(f"v_add_f32 v96, v96, v{96+ww}")
        a(f"buffer_store_dword v96, v104, {WS}, s72 offen sc1")
        a.label(l)
    wj_branch(a, g, None)

def wj_signal(a):
    l = a.newlabel("wsig")
    a(f"s_cmp_eq_u32 s{S_JOB}, 0")
    a(f"s_cbranch_scc1 {l}")
    a(f"s_cmp_lg_u32 s{S_W}, 0")
    a(f"s_cbranch_scc1 {l}")
    a("s_lshl_b32 s63, s2, 7")
    a(f"s_add_u32 s63, s63, {FLG_W}")
    set_flag(a, 63, 96)
    a.label(l)

A_Q, A_O, A_S, A_P = 4, 8, [24, 40], 56
A_K = [64, 68]
A_V = [[72, 76], [80, 84]]
A_VK, A_VV = 88, 89
A_NEG = 96
WO_R = 92
WG_R = 128
XR = 60
BOUND2 = 1600.0

def attn_tile(a, p, extra=None):
    b = p & 1; nb = b ^ 1
    S = A_S[b]
    def ex(r): a(f"v_exp_f32 v{S+r}, v{S+r}")
    def cv(k): a(f"v_cvt_pk_bf16_f32 v{A_P+k}, v{S+2*k}, v{S+2*k+1}")
    a("s_waitcnt lgkmcnt(0)")
    mfma(a, A_S[nb], A_K[nb], A_Q, None)
    a(f"ds_read_b128 v[{A_K[b]}:{A_K[b]+3}], v{A_VK} offset:{(p+2)*1024}")
    ex(0); ex(1); ex(2); ex(3)
    cv(0)
    mfma(a, A_O, A_V[1][nb], A_P + 4, A_O)
    a("s_mov_b64 exec, s[70:71]")
    a(f"ds_read_b128 v[{A_V[0][nb]}:{A_V[0][nb]+3}], v{A_VV} offset:{(p+1)*1024}")
    a(f"ds_read_b128 v[{A_V[1][nb]}:{A_V[1][nb]+3}], v{A_VV} offset:{(p+1)*1024 + 512}")
    a("s_mov_b64 exec, -1")
    if extra: extra()
    ex(4); cv(1); ex(5); ex(6); ex(7); cv(2); ex(8); cv(3)
    ex(9); ex(10); ex(11)
    mfma(a, A_O, A_V[0][b], A_P, A_O)
    cv(4); ex(12); cv(5); ex(13); ex(14); ex(15); cv(6)
    cv(7)

def wave_consts(a):
    a.c("WOF + (8cq + w)*16384 -> s68")
    a(f"s_lshl_b32 s68, s{S_HQ}, 3")
    a(f"s_add_u32 s68, s68, s{S_W}")
    a("s_lshl_b32 s68, s68, 14")
    a(f"s_add_u32 s68, s68, {WOF}")
    a.c("WGF + fb*32768 -> s73, fb = 7j + w (waves 0..6; wave 7 uses fb of wave 6, harmless duplicate)")
    a(f"s_min_u32 s73, s{S_W}, 6")
    a(f"s_mul_i32 s74, s{S_J}, 7")
    a("s_add_u32 s74, s74, s73")
    a("s_lshl_b32 s73, s74, 15")
    a(f"s_add_u32 s73, s73, {WGF}")

def ld_wg(a, s, tag="WG"):
    a(f"s_add_u32 s75, s73, {(s >> 2) * 4096}")
    a.vm(f"buffer_load_dwordx4 v[{WG_R+4*s}:{WG_R+4*s+3}], v1, {WS}, s75 offen offset:{(s&3)*1024} sc1", (tag, s))
def ld_wo(a, s):
    a(f"s_add_u32 s75, s68, {(s >> 2) * 4096}")
    a.vm(f"buffer_load_dwordx4 v[{WO_R+4*s}:{WO_R+4*s+3}], v1, {WS}, s75 offen offset:{(s&3)*1024} sc1", ("WO", s))

def prefetch_lists():
    it2 = [("g", s) for s in range(7, 32)]
    it3 = [("o", s) for s in range(16)]
    return it2, it3

def kv_dma(a, st, part=None):
    if part in (None, 0):
        a(f"s_add_u32 m0, s60, {st*16384}")
        a(f"s_add_u32 s62, s60, {st*16384 + KF}")
        a(f"buffer_load_dwordx4 v1, {WS}, s62 offen sc1 lds")
        a(f"buffer_load_dwordx4 v1, {WS}, s62 offen offset:1024 sc1 lds")
    if part in (None, 1):
        a(f"s_add_u32 m0, s60, {st*16384 + 65536}")
        a(f"s_add_u32 s62, s60, {st*16384 + VF}")
        a(f"buffer_load_dwordx4 v1, {WS}, s62 offen sc1 lds")
        a(f"buffer_load_dwordx4 v1, {WS}, s62 offen offset:1024 sc1 lds")

def wready_poll(a):
    l = a.newlabel("wrq")
    a(f"s_cmp_lg_u32 s{S_W}, 0")
    a(f"s_cbranch_scc1 {l}")
    a("v_lshlrev_b32 v2, 7, v0")
    a("v_add_u32 v3, 128, v0")
    a("v_min_u32 v3, 183, v3")
    a("v_lshlrev_b32 v3, 7, v3")
    a(f"s_mov_b32 s63, {FLG_W}")
    a(f"buffer_load_dword v96, v2, {WS}, s63 offen sc1")
    a(f"s_mov_b32 s63, {FLG_W + 64*128}")
    a(f"buffer_load_dword v97, v2, {WS}, s63 offen sc1")
    a(f"s_mov_b32 s63, {FLG_W}")
    a(f"buffer_load_dword v98, v3, {WS}, s63 offen sc1")
    a.label(l)
def wready_check(a):
    l = a.newlabel("wrc"); dn = a.newlabel("wrd")
    a(f"s_cmp_lg_u32 s{S_W}, 0")
    a(f"s_cbranch_scc1 {l}")
    def test():
        a("s_waitcnt vmcnt(0)")
        a(f"v_cmp_ne_u32 vcc, s{S_NONCE}, v96")
        a(f"v_cmp_ne_u32 s[62:63], s{S_NONCE}, v97")
        a("s_nop 1")
        a("s_or_b64 s[62:63], s[62:63], vcc")
        a(f"v_cmp_ne_u32 vcc, s{S_NONCE}, v98")
        a("s_nop 4")
        a("s_or_b64 vcc, vcc, s[62:63]")
    test()
    a(f"s_cbranch_vccz {dn}")
    l2 = spin_begin(a, "wrp")
    a(f"s_mov_b32 s63, {FLG_W}")
    a(f"buffer_load_dword v96, v2, {WS}, s63 offen sc1")
    a(f"buffer_load_dword v98, v3, {WS}, s63 offen sc1")
    a(f"s_mov_b32 s63, {FLG_W + 64*128}")
    a(f"buffer_load_dword v97, v2, {WS}, s63 offen sc1")
    test()
    spin_end(a, l2, dn, 4)
    a.label(l)
    a("s_barrier")

def x_residual(a):
    mk_srd(a, SRD_A, P_X, 2048 * 1024)
    a("v_and_b32 v2, 15, v0")
    a("v_lshrrev_b32 v3, 4, v0")
    a("v_lshlrev_b32 v2, 10, v2")
    a("v_lshl_add_u32 v2, v3, 3, v2")
    a(f"s_lshl_b32 s62, s{S_TBK}, 15")
    a(f"s_lshl_b32 s63, s{S_HQ}, 8")
    a("s_add_u32 s62, s62, s63")
    a(f"s_lshl_b32 s63, s{S_W}, 5")
    a("s_add_u32 s62, s62, s63")
    a.vm(f"buffer_load_dwordx2 v[{XRES}:{XRES+1}], v2, s[{SRD_A}:{SRD_A+3}], s62 offen", "XR")
    a("s_add_u32 s62, s62, 16384")
    a.vm(f"buffer_load_dwordx2 v[{XRES+2}:{XRES+3}], v2, s[{SRD_A}:{SRD_A+3}], s62 offen", "XR")
XRES = 4

def hh_prefill(a):
    l = a.newlabel("pf")
    a(f"s_cmp_eq_u32 s{S_W}, 7")
    a(f"s_cbranch_scc1 {l}")
    for r in range(4): a(f"v_mov_b32 v{96+r}, -1")
    a("s_mul_i32 s62, s74, 1024")
    a(f"s_lshl_b32 s63, s{S_G}, 2")
    a("s_mul_i32 s63, s63, 114688")
    a("s_add_u32 s62, s62, s63")
    a(f"s_add_u32 s62, s62, {HHF}")
    for tb in range(4):
        a(f"buffer_store_dwordx4 v[96:99], v1, {WS}, s62 offen sc1")
        if tb < 3: a("s_add_u32 s62, s62, 114688")
    a("s_nop 1")
    a.label(l)

def attention(a):
    a("v_lshlrev_b32 v1, 4, v0")
    for r in range(4):
        a(f"v_mov_b32 v{A_Q+r}, v{QSAVE+r}")
    a("s_mov_b32 s70, 0x0000ffff")
    a("s_mov_b32 s71, 0x0000ffff")
    for r in range(16):
        a(f"v_mov_b32 v{A_O+r}, 0")
        a(f"v_mov_b32 v{72+r}, 0x3f803f80")
    if ZROWS:
        a("s_mov_b32 s62, 0x00110000"); a("s_mov_b32 s63, 0x00110000")
        a("v_mov_b32 v91, 0")
        for r in range(16): a(f"v_cndmask_b32 v{72+r}, v91, v{72+r}, s[62:63]")
    for r in range(8):
        a(f"v_mov_b32 v{A_P+r}, 0")
    a(f"v_mov_b32 v{A_VK}, v1")
    a("v_lshrrev_b32 v90, 5, v0")
    a("v_and_b32 v91, 15, v0")
    a("v_lshl_add_u32 v90, v90, 4, v91")
    a("v_lshlrev_b32 v90, 4, v90")
    a(f"v_add_u32 v{A_VV}, 65536, v90")
    wave_consts(a)
    wj_setup(a)
    a("v_mov_b32 v90, 0")
    for r in range(4):
        a(f"v_dot2_f32_bf16 v90, v{A_Q+r}, v{A_Q+r}, v90")
    a(f"s_lshl_b32 s60, s{S_W}, 11")
    a("s_nop 1")
    xhalf(a, 90, 91, "v_add_f32")
    la = a.newlabel("sa")
    a(f"s_cmp_lg_u32 s{S_W}, 0")
    a(f"s_cbranch_scc1 {la}")
    done = a.newlabel("syncA")
    a("v_lshlrev_b32 v2, 7, v0")
    a(f"s_mov_b32 s63, {FLG_A}")
    l = spin_begin(a, "pollA")
    a(f"buffer_load_dwordx2 v[96:97], v2, {WS}, s63 offen sc1")
    a("s_waitcnt vmcnt(0)")
    a(f"v_cmp_ne_u32 vcc, s{S_NONCE}, v96")
    spin_end(a, l, done, 2)
    dpp_sum16(a, 97, "v_max_f32")
    xrow16(a, 97, 91, "v_max_f32")
    xhalf(a, 97, 91, "v_max_f32")
    a(f"v_mov_b32 v91, {L_SCR + 4096 - 128}")
    a("s_mov_b64 exec, 1")
    a("ds_write_b32 v91, v97")
    a("s_mov_b64 exec, -1")
    a("s_waitcnt lgkmcnt(0)")
    a.label(la)
    a("s_barrier")
    stamp(a)
    kv_dma(a, 0)
    a(f"v_mov_b32 v91, {L_SCR + 4096 - 128}")
    a("ds_read_b32 v3, v91")
    a("s_waitcnt lgkmcnt(0)")
    a("v_mul_f32 v90, v90, v3")
    a(f"v_mov_b32 v91, {f32hex(BOUND2)}")
    a("v_cmp_gt_f32 vcc, v90, v91")
    a.c("workgroup-wide vote: any row that might leave the safe range sends the whole workgroup to the max-subtracting path")
    a("s_nop 4")
    a("s_cmp_lg_u64 vcc, 0")
    a("s_cselect_b32 s61, 1, 0")
    a("v_mov_b32 v90, s61")
    a(f"s_lshl_b32 s61, s{S_W}, 2")
    a(f"s_add_u32 s61, s61, {L_SCR + 4096 - 64}")
    a("v_mov_b32 v91, s61")
    a("s_mov_b64 exec, 1")
    a("ds_write_b32 v91, v90")
    a("s_mov_b64 exec, -1")
    a("s_waitcnt vmcnt(0) lgkmcnt(0)")
    a("s_barrier")
    a(f"v_mov_b32 v91, {L_SCR + 4096 - 64}")
    a("ds_read_b128 v[96:99], v91")
    a("ds_read_b128 v[100:103], v91 offset:16")
    a(f"ds_read_b128 v[{A_K[0]}:{A_K[0]+3}], v{A_VK}")
    a(f"ds_read_b128 v[{A_K[1]}:{A_K[1]+3}], v{A_VK} offset:1024")
    a("s_mov_b64 exec, s[70:71]")
    a(f"ds_read_b128 v[{A_V[0][0]}:{A_V[0][0]+3}], v{A_VV}")
    a(f"ds_read_b128 v[{A_V[1][0]}:{A_V[1][0]+3}], v{A_VV} offset:512")
    a("s_mov_b64 exec, -1")
    a("s_waitcnt lgkmcnt(0)")
    a("v_or3_b32 v96, v96, v97, v98")
    a("v_or3_b32 v100, v100, v101, v102")
    a("v_or3_b32 v96, v96, v99, v103")
    a("v_or_b32 v96, v96, v100")
    a("s_barrier")
    a("v_readfirstlane_b32 s61, v96")
    lslow = a.newlabel("slow"); lepi = a.newlabel("attn_epi")
    a("s_nop 3")
    a("s_cmp_lg_u32 s61, 0")
    a(f"s_cbranch_scc1 {lslow}")
    stamp(a)
    mfma(a, A_S[0], A_K[0], A_Q, None)
    it_pref = [("g", s) for s in range(7, 32)] + [("o", s) for s in range(16)]
    NPF0, NPF1 = 36, 62
    a("s_nop 15")
    a.vm_reset()
    def extra_for(t):
        def f():
            if t in (0, 1): kv_dma(a, 1, t)
            if t in (2, 3): wj_issue(a, t - 2)
            if t in (4, 5): kv_dma(a, 2, t - 4)
            if t in (6, 7): kv_dma(a, 3, t - 6)
            if t == 12: wj_read(a, 8)
            if t == 13: wj_store(a)
            if t == 15: wj_cspart(a)
            if t == 16: wj_csread(a)
            if t == 17: wj_csstore(a)
            if t == 33: wready_poll(a)
            if NPF0 <= t < NPF1:
                k0 = (t - NPF0) * len(it_pref) // (NPF1 - NPF0); k1 = (t + 1 - NPF0) * len(it_pref) // (NPF1 - NPF0)
                for k, s in it_pref[k0:k1]:
                    (ld_wg if k == "g" else ld_wo)(a, s)
            if SENT_D and t == 40: hh_prefill(a)
            if t == 62: x_residual(a)
        return f
    for t in range(64):
        p = t & 15
        if t in (0, 4, 8, 12, 16, 20, 24, 28, 32, 36, 40, 48, 56, 63): stamp(a, "attn")
        if t > 0 and t % 4 == 0:
            if t == 12:
                a("s_waitcnt vmcnt(8)")
            if t == 16:
                a("s_waitcnt lgkmcnt(0)")
            if t == 24:
                a("s_waitcnt vmcnt(0)")
            if t == 36:
                wready_check(a)
            else:
                a("s_barrier")
            if t == 24:
                wj_signal(a)
        if PRIO:
            a(f"s_setprio {3 - (t & 3)}")
        attn_tile(a, p, extra_for(t))
        if p == 15 and t < 63:
            a(f"v_add_u32 v{A_VK}, 16384, v{A_VK}")
            a(f"v_add_u32 v{A_VV}, 16384, v{A_VV}")
    if PRIO: a("s_setprio 0")
    a("s_nop 1")
    mfma(a, A_O, A_V[1][1], A_P + 4, A_O)
    a(f"s_branch {lepi}")
    a.label(lslow)
    for st in range(1, 4):
        kv_dma(a, st)
    wj_issue(a)
    wj_read(a, 0)
    a("s_waitcnt lgkmcnt(0)")
    wj_store(a)
    a("s_nop 15")
    wj_cspart(a)
    a("s_waitcnt vmcnt(0) lgkmcnt(0)")
    a("s_barrier")
    wj_csread(a)
    a("s_waitcnt lgkmcnt(0)")
    wj_csstore(a)
    a("s_waitcnt vmcnt(0)")
    a("s_barrier")
    wj_signal(a)
    a("v_mov_b32 v92, 0xff800000")
    a("s_mov_b32 s55, 0")
    l1 = a.newlabel("s1")
    a.label(l1)
    a(f"ds_read_b128 v[{A_K[0]}:{A_K[0]+3}], v{A_VK}")
    a("s_waitcnt lgkmcnt(0)")
    mfma(a, A_S[0], A_K[0], A_Q, None)
    a("s_nop 15")
    for r in range(8):
        a(f"v_max3_f32 v92, v{A_S[0]+2*r}, v{A_S[0]+2*r+1}, v92")
    a(f"v_add_u32 v{A_VK}, 1024, v{A_VK}")
    a("s_add_u32 s55, s55, 1")
    a("s_cmp_lt_u32 s55, 64")
    a(f"s_cbranch_scc1 {l1}")
    xhalf(a, 92, 91, "v_max_f32")
    for r in range(16):
        a(f"v_sub_f32 v{A_NEG+r}, 0, v92")
    a(f"v_mov_b32 v{A_VK}, v1")
    a("s_mov_b32 s55, 0")
    l2 = a.newlabel("s2")
    a.label(l2)
    a(f"ds_read_b128 v[{A_K[0]}:{A_K[0]+3}], v{A_VK}")
    a("s_mov_b64 exec, s[70:71]")
    a(f"ds_read_b128 v[{A_V[0][0]}:{A_V[0][0]+3}], v{A_VV}")
    a(f"ds_read_b128 v[{A_V[1][0]}:{A_V[1][0]+3}], v{A_VV} offset:512")
    a("s_mov_b64 exec, -1")
    a("s_waitcnt lgkmcnt(0)")
    mfma(a, A_S[0], A_K[0], A_Q, A_NEG)
    a("s_nop 15")
    for r in range(16):
        a(f"v_exp_f32 v{A_S[0]+r}, v{A_S[0]+r}")
    a("s_nop 0")
    for k in range(8):
        a(f"v_cvt_pk_bf16_f32 v{A_P+k}, v{A_S[0]+2*k}, v{A_S[0]+2*k+1}")
    a("s_nop 1")
    mfma(a, A_O, A_V[0][0], A_P, A_O)
    mfma(a, A_O, A_V[1][0], A_P + 4, A_O)
    a(f"v_add_u32 v{A_VK}, 1024, v{A_VK}")
    a(f"v_add_u32 v{A_VV}, 1024, v{A_VV}")
    a("s_add_u32 s55, s55, 1")
    a("s_cmp_lt_u32 s55, 64")
    a(f"s_cbranch_scc1 {l2}")
    a("s_nop 15")
    if SENT_D: hh_prefill(a)
    wready_poll(a)
    wready_check(a)
    sv = list(a.vmq)
    for k, s in it_pref:
        (ld_wg if k == "g" else ld_wo)(a, s)
    x_residual(a)
    a.vmq = sv
    a.label(lepi)
    stamp(a)
    a("s_nop 15")
    a(f"v_rcp_f32 v90, v{A_O+8}")
    a("s_nop 0")
    for r in range(8):
        a(f"v_mul_f32 v{A_O+r}, v{A_O+r}, v90")
    for k in range(4):
        a(f"v_cvt_pk_bf16_f32 v{A_P+k}, v{A_O+2*k}, v{A_O+2*k+1}")
    a.c("OF + (tbk*32 + 8hq + w)*1024")
    a(f"s_lshl_b32 s60, s{S_TBK}, 5")
    a(f"s_lshl_b32 s61, s{S_HQ}, 3")
    a("s_add_u32 s60, s60, s61")
    a(f"s_add_u32 s60, s60, s{S_W}")
    a("s_lshl_b32 s60, s60, 10")
    a(f"s_add_u32 s60, s60, {OF}")
    a(f"buffer_store_dwordx4 v[{A_P}:{A_P+3}], v1, {WS}, s60 offen sc1")

def eflag_base(a, dst):
    a(f"s_lshl_b32 s{dst}, s{S_G}, 11")
    a(f"s_add_u32 s{dst}, s{dst}, {FLG_E}")

def wg_publish(a, base, vt):
    stamp(a, "p3")
    a("s_waitcnt vmcnt(0)")
    stamp(a, "p3")
    a("s_barrier")
    l = a.newlabel("pub")
    a(f"s_cmp_lg_u32 s{S_W}, 0")
    a(f"s_cbranch_scc1 {l}")
    a(f"s_lshl_b32 s60, s{S_G}, 4")
    a(f"s_add_u32 s60, s60, s{S_J}")
    a("s_lshl_b32 s60, s60, 7")
    a(f"s_add_u32 s60, s60, {base}")
    set_flag(a, 60, vt)
    a.label(l)

def wg_wait(a, base, first_expr, n, vt, vo):
    l = a.newlabel("wt")
    a(f"s_cmp_lg_u32 s{S_W}, 0")
    a(f"s_cbranch_scc1 {l}")
    a(f"s_lshl_b32 s60, s{S_G}, 4")
    if first_expr is not None:
        first_expr()
    a("s_lshl_b32 s60, s60, 7")
    a(f"s_add_u32 s60, s60, {base}")
    if POLL_DELAY: a(f"s_sleep {POLL_DELAY}")
    poll_flags(a, 60, n, vt, vo, sleep=POLL_SLEEP)
    a.label(l)
    a("s_barrier")

def wave_publish(a, base, vt):
    a(f"s_lshl_b32 s60, s{S_G}, 4")
    a(f"s_add_u32 s60, s60, s{S_J}")
    a("s_lshl_b32 s60, s60, 3")
    a(f"s_add_u32 s60, s60, s{S_W}")
    a("s_lshl_b32 s60, s60, 7")
    a(f"s_add_u32 s60, s60, {base}")
    stamp(a, "p3")
    a("s_waitcnt vmcnt(0)")
    stamp(a, "p3")
    set_flag(a, 60, vt)

L3_ST = 131072 + 4096
def mfma16(a, d, A, B, c):
    cs = "0" if c is None else f"v[{c}:{c+3}]"
    a(f"v_mfma_f32_16x16x32_bf16 v[{d}:{d+3}], v[{A}:{A+3}], v[{B}:{B+3}], {cs}")

def p3(a):
    wg_publish(a, FLG_B, 28)
    stamp(a)
    def fe():
        a(f"s_lshl_b32 s61, s{S_TQ}, 2")
        a("s_add_u32 s60, s60, s61")
    wg_wait(a, FLG_B, fe, 4, 28, 30)
    stamp(a)
    a.c("o fragments -> LDS [32 heads][1024] over key tiles 0..31 (dead since the last barriers of the attention loop)")
    a(f"s_lshl_b32 s60, s{S_W}, 12")
    a("s_mov_b32 m0, s60")
    a(f"s_lshl_b32 s61, s{S_TBK}, 15")
    a("s_add_u32 s61, s61, s60")
    a(f"s_add_u32 s61, s61, {OF}")
    for e in range(4):
        a(f"buffer_load_dwordx4 v1, {WS}, s61 offen offset:{e*1024} sc1 lds")
    a.c("operand address: (g>>1)*1024 + ((g&1)*32 + (lane&15))*16")
    a("v_lshrrev_b32 v30, 5, v0")
    a("v_lshlrev_b32 v30, 10, v30")
    a("v_bfe_u32 v31, v0, 4, 1")
    a("v_lshlrev_b32 v31, 5, v31")
    a("v_and_b32 v29, 15, v0")
    a("v_add_u32 v31, v31, v29")
    a("v_lshl_add_u32 v30, v31, 4, v30")
    a("v_and_b32 v2, 31, v0")
    stamp(a, "p3")
    a("s_waitcnt vmcnt(0)")
    stamp(a, "p3")
    a("s_barrier")
    stamp(a, "p3")
    BBF = [[32 + 8 * k, 36 + 8 * k] for k in range(3)]
    a.lgq = []
    def rd(s):
        for th2 in range(2):
            r = BBF[s % 3][th2]
            a.lg(f"ds_read_b128 v[{r}:{r+3}], v30 offset:{s*2048 + th2*256}", s)
    rd(0); rd(1)
    for s in range(16):
        if s + 2 < 16: rd(s + 2)
        a.lg_wait(s)
        for th2 in range(2):
            mfma16(a, 8 + 4 * th2, WO_R + 4 * s, BBF[s % 3][th2], None if s == 0 else 8 + 4 * th2)
    stamp(a, "p3")
    a("s_mov_b32 s61, 0xffff0000")
    for i in range(4):
        a(f"v_lshlrev_b32 v{32+2*i}, 16, v{XRES+i}")
        a(f"v_and_b32 v{33+2*i}, s61, v{XRES+i}")
    a(f"s_lshl_b32 s60, s{S_TBK}, 5")
    a(f"s_lshl_b32 s61, s{S_HQ}, 3")
    a("s_add_u32 s60, s60, s61")
    a(f"s_add_u32 s60, s60, s{S_W}")
    a("s_lshl_b32 s60, s60, 10")
    a(f"s_add_u32 s60, s60, {HF}")
    a("s_nop 1")
    for i in range(4):
        a(f"v_pk_add_f32 v[{8+2*i}:{9+2*i}], v[{8+2*i}:{9+2*i}], v[{32+2*i}:{33+2*i}]")
    for i in range(4):
        a(f"v_cvt_pk_bf16_f32 v{40+i}, v{8+2*i}, v{9+2*i}")
    a("s_nop 1")
    a("v_permlane16_swap_b32 v40, v42")
    a("v_permlane16_swap_b32 v41, v43")
    a("s_nop 1")
    a(f"buffer_store_dwordx4 v[40:43], v1, {WS}, s60 offen sc1")
    stamp(a, "p3")
    a("s_mov_b32 s61, 0x3f803f80")
    a("v_mov_b32 v44, 0")
    a("v_mov_b32 v45, 0")
    for i in range(4):
        a(f"v_dot2_f32_bf16 v44, v{40+i}, s61, v44")
        a(f"v_dot2_f32_bf16 v45, v{40+i}, v{40+i}, v45")
    a("s_nop 2")
    xhalf(a, 44, 46, "v_add_f32")
    xhalf(a, 45, 46, "v_add_f32")
    a(f"s_lshl_b32 s60, s{S_W}, 8")
    a(f"s_add_u32 s60, s60, {L3_ST}")
    a("v_lshlrev_b32 v46, 3, v2")
    a("v_add_u32 v47, s60, v46")
    a("s_mov_b32 exec_hi, 0")
    a("ds_write_b64 v47, v[44:45]")
    a("s_mov_b64 exec, -1")
    a("s_waitcnt lgkmcnt(0)")
    wg_publish(a, FLG_C, 28)
    a.vm_reset()
    for s in range(7):
        ld_wg(a, s)
    stamp(a)

L4_ST = 131072
L4_CS = 131072 + 1024
WD_R = 128
def ld_wd(a, u):
    s, ct = u >> 1, u & 1
    off = ct * 114688 + (s >> 2) * 4096
    a(f"s_add_u32 s75, s76, {off}")
    a.vm(f"buffer_load_dwordx4 v[{WD_R+4*u}:{WD_R+4*u+3}], v1, {WS}, s75 offen offset:{(s&3)*1024} sc1", ("WD", u))

def p4(a):
    a(f"s_and_b32 s77, s{S_J}, 7")
    a("s_mul_i32 s76, s77, 229376")
    a(f"s_mul_i32 s60, s{S_W}, 14336")
    a("s_add_u32 s76, s76, s60")
    a(f"s_add_u32 s76, s76, {WDF}")
    stamp(a, "p4")
    wg_wait(a, FLG_C, None, 16, 28, 5)
    stamp(a); stamp(a, "p4")
    a(f"s_lshl_b32 s62, s{S_G}, 17")
    a(f"s_lshl_b32 s63, s{S_W}, 10")
    a("s_add_u32 s62, s62, s63")
    a(f"s_add_u32 s62, s62, {HF}")
    def dma(st):
        for tb in range(4):
            off = tb * 32768 + st * 8192
            a(f"s_add_u32 m0, s63, {off}")
            a(f"s_add_u32 s64, s62, {off}")
            a.vm(f"buffer_load_dwordx4 v1, {WS}, s64 offen sc1 lds", ("H", st))
    a.vm_reset()
    dma(0); dma(1)
    lhelp = a.newlabel("help"); ljoin = a.newlabel("p4join")
    a(f"s_cmp_eq_u32 s{S_W}, 7")
    a(f"s_cbranch_scc1 {lhelp}")
    sv = list(a.vmq)
    a("v_add_u32 v2, 65536, v1")
    BB = [[32 + 4 * t for t in range(4)], [48 + 4 * t for t in range(4)]]
    def breads(s):
        for tb in range(4):
            base = "v1" if tb < 2 else "v2"
            a.lg(f"ds_read_b128 v[{BB[s&1][tb]}:{BB[s&1][tb]+3}], {base} offset:{(tb&1)*32768 + s*1024}", s)
    a.lgq = []
    a.vm_wait(("H", 0))
    stamp(a, "p4")
    a("s_barrier")
    stamp(a); stamp(a, "p4")
    breads(0)
    for s in range(32):
        if s + 1 < 32:
            if (s + 1) % 8 == 0:
                a.vm_wait(("H", (s + 1) // 8))
                a("s_barrier")
            breads(s + 1)
        if s == 24:
            a("v_and_b32 v3, 31, v0")
            a("v_lshlrev_b32 v3, 3, v3")
            a(f"v_add_u32 v3, {L4_ST}, v3")
            for tb in range(4):
                a.lg(f"ds_read_b64 v[{4+2*tb}:{5+2*tb}], v3 offset:{tb*256}", "st")
            a("v_lshrrev_b32 v12, 5, v0")
            a("v_lshlrev_b32 v12, 4, v12")
            a(f"s_lshl_b32 s60, s{S_W}, 7")
            a(f"s_add_u32 s60, s60, {L4_CS}")
            a("v_add_u32 v12, s60, v12")
            for q in range(4):
                a.lg(f"ds_read_b128 v[{16+4*q}:{19+4*q}], v12 offset:{q*32}", "st")
        a.lg_wait(s)
        for tb in range(4):
            mfma(a, 64 + 16 * tb, WG_R + 4 * s, BB[s & 1][tb], None if s == 0 else 64 + 16 * tb)
        if s == 0: dma(2)
        if s == 4: dma(3)
        if s >= 1 and s - 1 < 28:
            ld_wd(a, s - 1)
    stamp(a); stamp(a, "p4")
    a("s_waitcnt lgkmcnt(0)")
    a("s_nop 7")
    a("s_mul_i32 s60, s74, 1024")
    a(f"s_lshl_b32 s61, s{S_G}, 2")
    a("s_mul_i32 s61, s61, 114688")
    a("s_add_u32 s60, s60, s61")
    a(f"s_add_u32 s60, s60, {HHF}")
    for tb in range(4):
        A = 64 + 16 * tb
        mean, r2 = 4 + 2 * tb, 5 + 2 * tb
        a(f"v_sub_f32 v32, 0, v{mean}")
        a(f"v_mov_b32 v33, v32")
        a(f"v_mov_b32 v34, v{r2}")
        a(f"v_mov_b32 v35, v{r2}")
        for i in range(8):
            a(f"v_pk_fma_f32 v[{A+2*i}:{A+2*i+1}], v[{16+2*i}:{17+2*i}], v[32:33], v[{A+2*i}:{A+2*i+1}]")
        for r in range(8):
            a(f"v_max_f32 v{A+r}, 0, v{A+r}")
        for i in range(4):
            a(f"v_pk_mul_f32 v[{A+8+2*i}:{A+9+2*i}], v[{A+8+2*i}:{A+9+2*i}], v[34:35]")
        for i in range(4):
            a(f"v_pk_mul_f32 v[{A+2*i}:{A+2*i+1}], v[{A+2*i}:{A+2*i+1}], v[{A+8+2*i}:{A+9+2*i}]")
        for i in range(4):
            a(f"v_cvt_pk_bf16_f32 v{36+4*(tb&1)+i}, v{A+2*i}, v{A+2*i+1}")
        a(f"buffer_store_dwordx4 v[{36+4*(tb&1)}:{39+4*(tb&1)}], v1, {WS}, s60 offen sc1")
        if tb < 3:
            a("s_add_u32 s60, s60, 114688")
    stamp(a, "p4")
    a(f"s_branch {ljoin}")
    a.label(lhelp)
    a.vmq = list(sv)
    dma(2); dma(3)
    a("v_lshlrev_b32 v3, 2, v0")
    a(f"s_mul_i32 s60, s{S_J}, 896")
    a(f"s_add_u32 s60, s60, {CSP}")
    for kq in range(4):
        for i in range(4):
            a.vm(f"buffer_load_dword v{32+4*kq+i}, v3, {WS}, s60 offen offset:{i*256} sc1", "cs")
        if kq < 3:
            a("s_add_u32 s60, s60, 14336")
    a.vm_wait(("H", 0))
    a("s_barrier")
    a.c("finish this workgroup's row statistics (partials of the 8 waves are in LDS) and publish them")
    a("v_and_b32 v2, 31, v0")
    a("v_lshlrev_b32 v64, 3, v2")
    a(f"v_add_u32 v65, {L3_ST}, v64")
    for ww in range(8):
        a(f"ds_read_b64 v[{66+2*ww}:{67+2*ww}], v65 offset:{ww*256}")
    a("s_waitcnt lgkmcnt(0)")
    for ww in range(1, 8):
        a(f"v_pk_add_f32 v[66:67], v[66:67], v[{66+2*ww}:{67+2*ww}]")
    a("v_lshlrev_b32 v64, 5, v2")
    a(f"s_lshl_b32 s60, s{S_TBK}, 10")
    a(f"s_lshl_b32 s61, s{S_HQ}, 3")
    a("s_add_u32 s60, s60, s61")
    a(f"s_add_u32 s60, s60, {HST}")
    a("s_mov_b32 exec_hi, 0")
    a.vm(f"buffer_store_dwordx2 v[66:67], v64, {WS}, s60 offen sc1", "hst")
    a("s_mov_b64 exec, -1")
    a.vm_wait_all()
    eflag_base(a, 60)
    a(f"s_lshl_b32 s61, s{S_J}, 7")
    a("s_add_u32 s60, s60, s61")
    set_flag(a, 60, 28)
    a("s_barrier")
    a("s_barrier")
    eflag_base(a, 60)
    poll_flags(a, 60, 16, 28, 2)
    a("v_lshlrev_b32 v2, 5, v0")
    a(f"s_lshl_b32 s60, s{S_G}, 12")
    a(f"s_add_u32 s60, s60, {HST}")
    for i in range(2):
        a(f"buffer_load_dwordx4 v[{8+8*i}:{11+8*i}], v2, {WS}, s60 offen offset:{i*2048} sc1")
        a(f"buffer_load_dwordx4 v[{12+8*i}:{15+8*i}], v2, {WS}, s60 offen offset:{i*2048+16} sc1")
    a.vm_wait_all()
    for i in range(2):
        b = 8 + 8 * i
        a(f"v_add_f32 v{b}, v{b}, v{b+2}")
        a(f"v_add_f32 v{b+4}, v{b+4}, v{b+6}")
        a(f"v_add_f32 v{b+1}, v{b+1}, v{b+3}")
        a(f"v_add_f32 v{b+5}, v{b+5}, v{b+7}")
        a(f"v_add_f32 v{b}, v{b}, v{b+4}")
        a(f"v_add_f32 v{b+1}, v{b+1}, v{b+5}")
        a(f"v_mul_f32 v{b}, {f32hex(1.0/512)}, v{b}")
        a(f"v_mul_f32 v{b+2}, v{b}, v{b}")
        a(f"v_mov_b32 v{b+3}, {f32hex(1.0/512)}")
        a(f"v_fma_f32 v{b+1}, v{b+1}, v{b+3}, -v{b+2}")
        a(f"v_max_f32 v{b+1}, 0, v{b+1}")
        a(f"v_add_f32 v{b+1}, {f32hex(1e-5)}, v{b+1}")
        a(f"v_rcp_f32 v{b+1}, v{b+1}")
    a("v_lshlrev_b32 v4, 3, v0")
    a(f"v_add_u32 v4, {L4_ST}, v4")
    a("ds_write_b64 v4, v[8:9]")
    a("ds_write_b64 v4, v[16:17] offset:512")
    for i in range(4):
        a(f"v_add_f32 v{32+i}, v{32+i}, v{36+i}")
        a(f"v_add_f32 v{40+i}, v{40+i}, v{44+i}")
        a(f"v_add_f32 v{32+i}, v{32+i}, v{40+i}")
    a(f"v_add_u32 v3, {L4_CS}, v3")
    for i in range(3):
        a(f"ds_write_b32 v3, v{32+i} offset:{i*256}")
    a("s_mov_b32 exec_hi, 0")
    a("ds_write_b32 v3, v35 offset:768")
    a("s_mov_b64 exec, -1")
    a("s_waitcnt lgkmcnt(0)")
    a("s_barrier")
    for u in range(28):
        ld_wd(a, u)
    a.label(ljoin)
    if not SENT_D:
        wg_publish(a, FLG_D, 28)
    a.vm_reset()
    stamp(a)

def p5(a):
    mk_srd(a, SRD_A, P_OUT, 2048 * 1024)
    a(f"s_lshr_b32 s72, s{S_J}, 3")
    a(f"s_lshl_b32 s61, s{S_G}, 2")
    a("s_lshl_b32 s62, s72, 1")
    a("s_add_u32 s61, s61, s62")
    a(f"s_mul_i32 s62, s{S_W}, 14336")
    a("s_mul_i32 s64, s61, 114688")
    a("s_add_u32 s64, s64, s62")
    a(f"s_add_u32 s64, s64, {HHF}")
    a("s_add_u32 s65, s64, 114688")
    a("v_lshrrev_b32 v2, 3, v0")
    a(f"s_lshl_b32 s62, s{S_W}, 3")
    a("v_add_u32 v2, s62, v2")
    a("v_and_b32 v3, 7, v0")
    a("v_lshrrev_b32 v4, 5, v2")
    a("v_lshlrev_b32 v4, 5, v4")
    a("v_lshrrev_b32 v5, 1, v3")
    a("v_add_u32 v4, v4, v5")
    a("v_lshlrev_b32 v4, 10, v4")
    a("v_and_b32 v5, 1, v3")
    a("v_lshlrev_b32 v5, 5, v5")
    a("v_and_b32 v6, 31, v2")
    a("v_add_u32 v5, v5, v6")
    a("v_lshl_add_u32 v4, v5, 4, v4")
    a("s_lshl_b32 s62, s61, 5")
    a("s_lshl_b32 s63, s77, 2")
    a("s_add_u32 s62, s62, s63")
    a("s_lshl_b32 s62, s62, 10")
    a(f"s_add_u32 s62, s62, {HF}")
    a(f"buffer_load_dwordx4 v[8:11], v4, {WS}, s62 offen sc1")
    stamp(a, "p4")
    if not SENT_D:
        wg_wait(a, FLG_D, None, 16, 28, 5)
    stamp(a); stamp(a, "p4")
    a("s_mov_b32 s62, s64"); a("s_mov_b32 s63, s65")
    retries = []
    BREG = [16, 24, 32, 40, 48, 56, 240, 248]
    ACC = 64
    a.vm_reset()
    def ldB(s):
        if s and (s & 3) == 0:
            a("s_add_u32 s64, s64, 4096"); a("s_add_u32 s65, s65, 4096")
        r = BREG[s % 8]
        a.vm(f"buffer_load_dwordx4 v[{r}:{r+3}], v1, {WS}, s64 offen offset:{(s&3)*1024} sc1", ("B", s))
        a.vm(f"buffer_load_dwordx4 v[{r+4}:{r+7}], v1, {WS}, s65 offen offset:{(s&3)*1024} sc1", ("B", s))
    for s in range(8):
        ldB(s)
    def check(r):
        a(f"v_max3_u32 v12, v{r}, v{r+1}, v{r+2}")
        a(f"v_max3_u32 v13, v{r+3}, v{r+4}, v{r+5}")
        a(f"v_max3_u32 v12, v{r+6}, v{r+7}, v12")
        a("v_max_u32 v12, v12, v13")
        a("v_cmp_eq_u32 vcc, -1, v12")
    stamp(a, "p5")
    for s in range(14):
        a.vm_wait(("B", s))
        if s in (0, 7): stamp(a, "p5")
        if SENT_D:
            lr = a.newlabel("rt"); lb = a.newlabel("rb")
            check(BREG[s % 8])
            a("s_nop 1")
            a(f"s_cbranch_vccnz {lr}")
            a.label(lb)
            retries.append((s, lr, lb))
        for ct in range(2):
            for tb in range(2):
                d = ACC + (ct * 2 + tb) * 16
                mfma(a, d, WD_R + (2 * s + ct) * 4, BREG[s % 8] + 4 * tb, None if s == 0 else d)
        if s + 8 < 14:
            ldB(s + 8)
    stamp(a); stamp(a, "p5")
    a("v_and_b32 v12, 31, v0")
    a("v_lshrrev_b32 v13, 5, v0")
    a("v_lshlrev_b32 v13, 1, v13")
    a("v_and_b32 v14, 7, v12")
    a("v_xor_b32 v13, v13, v14")
    a("v_lshlrev_b32 v12, 8, v12")
    a(f"s_lshl_b32 s62, s{S_W}, 14")
    a("v_add_u32 v12, s62, v12")
    for k, (rg, q) in enumerate([(0, 0), (0, 1), (1, 0), (1, 1)]):
        a(f"v_xor_b32 v{16+k}, {rg*4+q}, v13")
        a(f"v_lshl_add_u32 v{16+k}, v{16+k}, 4, v12")
    if SENT_D:
        lskip = a.newlabel("rskip")
        a(f"s_branch {lskip}")
        for (s_, lr, lb) in retries:
            r = BREG[s_ % 8]
            a.label(lr)
            a(f"s_mov_b32 s79, {SPIN}")
            lp = a.newlabel("rl")
            a.label(lp)
            a("s_sleep 2")
            a(f"s_add_u32 s60, s62, {(s_ >> 2) * 4096}")
            a(f"s_add_u32 s61, s63, {(s_ >> 2) * 4096}")
            a(f"buffer_load_dwordx4 v[{r}:{r+3}], v1, {WS}, s60 offen offset:{(s_&3)*1024} sc1")
            a(f"buffer_load_dwordx4 v[{r+4}:{r+7}], v1, {WS}, s61 offen offset:{(s_&3)*1024} sc1")
            a("s_waitcnt vmcnt(0)")
            check(r)
            a("s_nop 4")
            a(f"s_cbranch_vccz {lb}")
            a("s_sub_u32 s79, s79, 1")
            a("s_cmp_lg_u32 s79, 0")
            a(f"s_cbranch_scc1 {lp}")
            a(f"s_branch {lb}")
        a.label(lskip)
        a("s_barrier")
    a("s_nop 3")
    for ct in range(2):
        for tb in range(2):
            d = ACC + (ct * 2 + tb) * 16
            for k, (rg, q) in enumerate([(0, 0), (0, 1), (1, 0), (1, 1)]):
                r = d + 8 * rg + 4 * q
                a(f"ds_write_b128 v{16+k}, v[{r}:{r+3}] offset:{ct*128 + tb*8192}")
    stamp(a, "p5")
    a("s_waitcnt lgkmcnt(0)")
    stamp(a, "p5")
    a("s_barrier")
    stamp(a, "p5")
    a("v_and_b32 v12, 7, v2")
    a("v_lshlrev_b32 v13, 1, v3")
    a("v_xor_b32 v14, v13, v12")
    a("v_or_b32 v13, 1, v13")
    a("v_xor_b32 v15, v13, v12")
    a("v_lshlrev_b32 v14, 4, v14")
    a("v_lshlrev_b32 v15, 4, v15")
    a("v_lshl_add_u32 v14, v2, 8, v14")
    a("v_lshl_add_u32 v15, v2, 8, v15")
    a("v_add_u32 v12, 65536, v14")
    a("v_add_u32 v13, 65536, v15")
    for src in range(8):
        b0, b1 = ("v14", "v15") if src < 4 else ("v12", "v13")
        a(f"ds_read_b128 v[{16+8*src}:{19+8*src}], {b0} offset:{(src&3)*16384}")
        a(f"ds_read_b128 v[{20+8*src}:{23+8*src}], {b1} offset:{(src&3)*16384}")
        if src == 3: a("s_waitcnt lgkmcnt(4)")
    a("s_mov_b32 s62, 0xffff0000")
    for i in range(4):
        a(f"v_lshlrev_b32 v{80+2*i}, 16, v{8+i}")
        a(f"v_and_b32 v{81+2*i}, s62, v{8+i}")
    a("s_waitcnt lgkmcnt(0)")
    stamp(a, "p5")
    for src in range(1, 8):
        for i in range(4):
            a(f"v_pk_add_f32 v[{16+2*i}:{17+2*i}], v[{16+2*i}:{17+2*i}], v[{16+8*src+2*i}:{17+8*src+2*i}]")
    for i in range(4):
        a(f"v_pk_add_f32 v[{16+2*i}:{17+2*i}], v[{16+2*i}:{17+2*i}], v[{80+2*i}:{81+2*i}]")
    for i in range(4):
        a(f"v_cvt_pk_bf16_f32 v{8+i}, v{16+2*i}, v{17+2*i}")
    a("v_lshlrev_b32 v4, 10, v2")
    a("v_lshl_add_u32 v4, v3, 4, v4")
    a(f"s_lshl_b32 s62, s{S_G}, 17")
    a("s_lshl_b32 s63, s72, 16")
    a("s_add_u32 s62, s62, s63")
    a("s_lshl_b32 s63, s77, 7")
    a("s_add_u32 s62, s62, s63")
    a(f"buffer_store_dwordx4 v[8:11], v4, s[{SRD_A}:{SRD_A+3}], s62 offen {OUT_FLAGS}")

def build():
    a = Asm()
    label = G.NAME + "_kernel"
    a.raw(G.HEADER.rstrip("\n"))
    a.raw("; @launch grid=(256,1,1) block=(512,1,1) lds=163840")
    a.raw('.amdgcn_target "amdgcn-amd-amdhsa--gfx950"')
    a.raw(".text")
    a.raw(f".globl {label}")
    a.raw(".p2align 8")
    a.raw(f".type {label},@function")
    a.raw(f"{label}:")
    if PROFILE:
        a("s_memtime s[98:99]")
        a("s_memrealtime s[100:101]")
        for k in range(16): a(f"s_mov_b32 s{80+k}, 0")
    G.WS_USED = WS_USED
    G.prologue(a, "L_fin")
    a(f"s_add_u32 s60, s{P_WS}, {NONCE}")
    a(f"s_addc_u32 s61, s{P_WS+1}, 0")
    a(f"s_load_dword s{S_NONCE}, s[60:61], 0")
    phase0(a)
    attention(a)
    p3(a)
    p4(a)
    p5(a)
    lnn = a.newlabel("nn")
    a("s_cmp_lg_u32 s2, 0")
    a(f"s_cbranch_scc1 {lnn}")
    a(f"s_cmp_lg_u32 s{S_W}, 0")
    a(f"s_cbranch_scc1 {lnn}")
    a(f"s_mov_b32 s62, {NONCE}")
    set_flag(a, 62, 28)
    a.label(lnn)
    if PROFILE:
        a(f"s_cmp_lg_u32 s{S_W}, {PROF_WAVE}")
        a("s_cbranch_scc1 L_fin")
        a("s_waitcnt vmcnt(0) lgkmcnt(0)")
        a("s_memtime s[96:97]")
        a("s_memrealtime s[54:55]")
        a("s_waitcnt lgkmcnt(0)")
        for k in range(16):
            a(f"s_sub_u32 s{80+k}, s{80+k}, s98")
            a(f"v_mov_b32 v{k}, s{80+k}")
        a("s_sub_u32 s96, s96, s98")
        a("s_sub_u32 s54, s54, s100")
        a("v_mov_b32 v16, s96")
        a("v_mov_b32 v17, s54")
        a("v_mov_b32 v18, s100")
        a("v_mov_b32 v19, 0")
        a("s_mul_i32 s54, s2, 128")
        a(f"s_add_u32 s54, s54, {PROF}")
        a("v_mov_b32 v20, 0")
        a("s_mov_b64 exec, 1")
        for q in range(5):
            a(f"buffer_store_dwordx4 v[{4*q}:{4*q+3}], v20, {WS}, s54 offen offset:{16*q}")
    a.label("L_fin")
    a("s_endpgm")
    a.raw('.section .rodata,"a"')
    a.raw(".p2align 6")
    G.descriptor(a, label, 256)
    return a.text()

if __name__ == "__main__":
    open(sys.argv[1], "w").write(build())
```

```python
import os, sys
from asmlib import Asm
import gen as G
from gen import (S_W, S_G, S_J, S_TBK, S_HQ, S_TQ, SRD_WS, SRD_A, SRD_B, SRD_C, SRD_D, mk_srd, f32hex,
                 dpp_sum16, xhalf, xrow16, OF, HF, KF, VF, HST, CSP, WOF, WDF, WGF, HHF, QSCALE,
                 P_X, P_WQ, P_WK, P_WV, P_WO, P_WG, P_WU, P_WD, P_OUT, P_DBG, P_WS)
from kernels2 import mfma
WS = f"s[{SRD_WS}:{SRD_WS+3}]"
FLG = 0x1410000
FLG_A, FLG_W, FLG_E = FLG, FLG + 64*128, FLG + 320*128
FLG_B, FLG_C, FLG_D = FLG + 1024*128, FLG + 3072*128, FLG + 5120*128
NONCE = FLG + 7168*128
S_NONCE = 56
PROF = 0x1400000
WS_USED = 0x1500000
SPIN = 400000
DOUBLE = os.environ.get('DOUBLE', '')
ZROWS = os.environ.get('ZROWS', '1') == '1'
OUT_FLAGS = os.environ.get('OUT_FLAGS', '')
POLL_DELAY = int(os.environ.get('POLL_DELAY', '0'))
SENT_D = os.environ.get('SENT_D', '0') == '1'
FULL_LINE = os.environ.get('FULL_LINE', '1') == '1'
POLL_SLEEP = int(os.environ.get('POLL_SLEEP', '2'))
PROFILE = G.PROFILE
PROF_WAVE = G.PROF_WAVE
PRIO = os.environ.get("PRIO", "1") == "1"
NST = [0]
STAMPSET = os.environ.get("STAMPSET", "main")
def stamp(a, kind="main"):
    if not PROFILE: return
    if kind != STAMPSET: return
    k = NST[0]; NST[0] += 1
    assert k < 16
    a("s_waitcnt lgkmcnt(0)")
    a("s_memtime s[96:97]")
    a("s_waitcnt lgkmcnt(0)")
    a(f"s_mov_b32 s{80+k}, s96")

def spin_begin(a, name):
    l = a.newlabel(name)
    a(f"s_mov_b32 s79, {SPIN}")
    a.label(l)
    return l
def spin_end(a, l, done, sleep=1):
    a("s_nop 4")
    a(f"s_cbranch_vccz {done}")
    a(f"s_sleep {sleep}")
    a("s_sub_u32 s79, s79, 1")
    a("s_cmp_lg_u32 s79, 0")
    a(f"s_cbranch_scc1 {l}")
    a.label(done)

def poll_flags(a, soff_reg, nlanes, vtmp, voff, sleep=1, shift=7):
    done = a.newlabel("pd")
    a(f"v_lshlrev_b32 v{voff}, {shift}, v0")
    if nlanes < 64:
        a(f"s_mov_b64 exec, {hex((1 << nlanes) - 1)}")
    l = spin_begin(a, "pl")
    a(f"buffer_load_dword v{vtmp}, v{voff}, {WS}, s{soff_reg} offen sc1")
    a("s_waitcnt vmcnt(0)")
    a(f"v_cmp_ne_u32 vcc, s{S_NONCE}, v{vtmp}")
    spin_end(a, l, done, sleep)
    if nlanes < 64:
        a("s_mov_b64 exec, -1")

def set_flag(a, soff_reg, vtmp):
    a(f"v_mov_b32 v{vtmp}, s{S_NONCE}")
    if FULL_LINE:
        a(f"v_lshlrev_b32 v{vtmp+1}, 2, v0")
        a("s_mov_b32 exec_hi, 0")
    else:
        a(f"v_mov_b32 v{vtmp+1}, 0")
        a("s_mov_b64 exec, 1")
    a(f"buffer_store_dword v{vtmp}, v{vtmp+1}, {WS}, s{soff_reg} offen sc1")
    a("s_mov_b64 exec, -1")

L_XN, L_WQ, L_WK, L_WV = 0, 32768, 131072, 147456
QSAVE = 250

def phase0(a):
    mk_srd(a, SRD_A, P_X, 2048 * 1024)
    mk_srd(a, SRD_B, P_WQ, 512 * 1024)
    a(f"s_lshl_b32 s54, s{S_TBK}, 5")
    a(f"s_lshl_b32 s55, s{S_W}, 2")
    a("s_add_u32 s54, s54, s55")
    a("v_lshrrev_b32 v2, 4, v0")
    a("v_and_b32 v3, 15, v0")
    a("v_add_u32 v4, s54, v2")
    a("v_lshlrev_b32 v4, 10, v4")
    a("v_lshl_add_u32 v4, v3, 4, v4")
    for i in range(4):
        a(f"buffer_load_dwordx4 v[{16+4*i}:{19+4*i}], v4, s[{SRD_A}:{SRD_A+3}], 0 offen offset:{256*i}")
    a("v_lshlrev_b32 v6, 4, v0")
    lskip = a.newlabel("nokv"); lj = a.newlabel("kvj")
    a(f"s_cmp_lg_u32 s{S_HQ}, 0")
    a(f"s_cbranch_scc1 {lskip}")
    mk_srd(a, SRD_C, P_WK, 16384)
    mk_srd(a, SRD_D, P_WV, 16384)
    a(f"s_lshl_b32 s60, s{S_W}, 11")
    for i in range(2):
        a(f"s_add_u32 s61, s60, {i*1024}")
        a(f"s_add_u32 m0, s61, {L_WK}")
        a("s_nop 0")
        a(f"buffer_load_dwordx4 v6, s[{SRD_C}:{SRD_C+3}], s61 offen lds")
        a(f"s_add_u32 m0, s61, {L_WV}")
        a("s_nop 0")
        a(f"buffer_load_dwordx4 v6, s[{SRD_D}:{SRD_D+3}], s61 offen lds")
    a.label(lskip)
    a("v_lshlrev_b32 v5, 1, v2")
    a("v_xor_b32 v5, v3, v5")
    a("v_lshlrev_b32 v5, 4, v5")
    a("v_lshl_add_u32 v5, v2, 10, v5")
    a(f"s_lshl_b32 s55, s{S_HQ}, 8")
    a("v_add_u32 v5, s55, v5")
    a(f"s_lshl_b32 s62, s{S_W}, 12")
    a(f"s_add_u32 s62, s62, {L_WQ}")
    a(f"s_lshl_b32 s63, s{S_W}, 14")
    def wq_dma(q):
        for i in range(4):
            a(f"s_add_u32 m0, s62, {(q % 3) * 32768 + i * 1024}")
            a(f"s_add_u32 s64, s63, {(q * 128 + 4 * i) * 1024}")
            a(f"buffer_load_dwordx4 v5, s[{SRD_B}:{SRD_B+3}], s64 offen lds")
    wq_dma(0)
    stamp(a, "p0")
    a("s_waitcnt vmcnt(4)")
    stamp(a); stamp(a, "p0")
    b = Asm()
    if True:
        b("s_mov_b32 s60, 0x3f803f80")
        for r in range(4): b(f"v_mov_b32 v{32+r}, 0")
        for i in range(16):
            b(f"v_dot2_f32_bf16 v{32 + (i & 1)}, v{16+i}, s60, v{32 + (i & 1)}")
            b(f"v_dot2_f32_bf16 v{34 + (i & 1)}, v{16+i}, v{16+i}, v{34 + (i & 1)}")
        b("s_mov_b32 s61, 0xffff0000")
        for i in range(4):
            b(f"v_lshlrev_b32 v{64+2*i}, 16, v{16+i}")
            b(f"v_and_b32 v{65+2*i}, s61, v{16+i}")
        b("v_add_f32 v32, v32, v33")
        b("v_add_f32 v34, v34, v35")
        for n, sh in enumerate((8, 4, 2, 1)):
            for i in range(4 + 3*n, 7 + 3*n):
                b(f"v_lshlrev_b32 v{64+2*i}, 16, v{16+i}")
                b(f"v_and_b32 v{65+2*i}, s61, v{16+i}")
            b(f"v_add_f32_dpp v32, v32, v32 row_ror:{sh} row_mask:0xf bank_mask:0xf")
            b(f"v_add_f32_dpp v34, v34, v34 row_ror:{sh} row_mask:0xf bank_mask:0xf")
        b(f"v_mul_f32 v32, {f32hex(1.0/512)}, v32")
        b("v_mul_f32 v33, v32, v32")
        b(f"v_mov_b32 v35, {f32hex(1.0/512)}")
        b("v_fma_f32 v34, v34, v35, -v33")
        b("v_max_f32 v34, 0, v34")
        b(f"v_add_f32 v34, {f32hex(1e-5)}, v34")
        b("v_rsq_f32 v38, v34")
        b.c("XN write addr")
        b(f"s_lshl_b32 s55, s{S_W}, 2")
        b("v_add_u32 v7, s55, v2")
        b("v_mov_b32 v39, v38")
        b("v_mul_f32 v36, v32, v38")
        b("v_sub_f32 v36, 0, v36")
        b("v_mov_b32 v37, v36")
        for i in range(16):
            b(f"v_pk_fma_f32 v[{64+2*i}:{65+2*i}], v[{64+2*i}:{65+2*i}], v[38:39], v[36:37]")
        b("v_and_b32 v8, 7, v3")
        b("v_xor_b32 v7, v7, v8")
        b("v_lshlrev_b32 v7, 4, v7")
        b("v_lshrrev_b32 v8, 1, v3")
        b("v_lshl_add_u32 v7, v8, 10, v7")
        b("v_and_b32 v8, 1, v3")
        b("v_lshl_add_u32 v7, v8, 9, v7")
        for i in range(4):
            for e in range(4):
                b(f"v_cvt_pk_bf16_f32 v{16+4*i+e}, v{64+8*i+2*e}, v{65+8*i+2*e}")
            b(f"ds_write_b128 v7, v[{16+4*i}:{19+4*i}] offset:{L_XN + i*8192}")

    a.L.extend(b.L)
    wq_dma(1); wq_dma(2)
    a("v_lshrrev_b32 v8, 5, v0")
    a("v_and_b32 v9, 31, v0")
    for m in range(4):
        a(f"v_add_u32 v10, {2*m}, v8")
        a("v_xor_b32 v10, v9, v10")
        a("v_lshlrev_b32 v10, 4, v10")
        a(f"v_lshl_add_u32 v{40+m}, v8, 9, v10")
    a("v_lshrrev_b32 v10, 2, v3")
    a("v_and_b32 v11, 3, v3")
    a("v_lshl_add_u32 v12, v8, 3, v10")
    a(f"s_lshl_b32 s55, s{S_W}, 1")
    a("v_lshrrev_b32 v13, 1, v11")
    a("v_add_u32 v13, s55, v13")
    a("v_lshlrev_b32 v14, 1, v10")
    a("v_xor_b32 v13, v13, v14")
    a("v_lshlrev_b32 v13, 4, v13")
    a("v_lshl_add_u32 v13, v12, 8, v13")
    a("v_and_b32 v14, 1, v11")
    a("v_lshl_add_u32 v13, v14, 3, v13")
    a(f"v_add_u32 v44, {L_WQ}, v13")
    stamp(a, "p0")
    a("s_waitcnt lgkmcnt(0)")
    a.c("launch tag: a fixed-point-free bijection of the tag the previous launch left (any value works)")
    a(f"s_mul_i32 s{S_NONCE}, s{S_NONCE}, 0x9E3779B1")
    a(f"s_add_u32 s{S_NONCE}, s{S_NONCE}, 0x7F4A7C15")
    a("s_barrier")
    stamp(a); stamp(a, "p0")
    lkvd = a.newlabel("kvdone"); lkv1 = a.newlabel("kv1")
    a(f"s_cmp_lg_u32 s{S_HQ}, 0")
    a(f"s_cbranch_scc1 {lkv1}")
    a.c("tr addr: blk0 -> WV, blk1 -> WK ; row (64w + 16e + 8khalf + 4rd + r4)*32 + cg*8")
    a("v_lshlrev_b32 v13, 5, v12")
    a("v_lshl_add_u32 v13, v11, 3, v13")
    a(f"s_lshl_b32 s55, s{S_W}, 11")
    a("v_add_u32 v13, s55, v13")
    a("v_and_b32 v14, 1, v2")
    a(f"v_mov_b32 v15, {L_WV}")
    a(f"v_mov_b32 v45, {L_WK}")
    a("v_cmp_eq_u32 vcc, 1, v14")
    a("s_nop 1")
    a("v_cndmask_b32 v15, v15, v45, vcc")
    a("v_add_u32 v13, v13, v15")
    a.c("xn frags for k-steps 4w..4w+3 : s&3 = e")
    a(f"s_lshl_b32 s55, s{S_W}, 12")
    for e in range(4):
        a(f"v_add_u32 v{46+e}, s55, v{40+e}")
    for e in range(4):
        a(f"ds_read_b64_tr_b16 v[{64+4*e}:{65+4*e}], v13 offset:{e*512}")
        a(f"ds_read_b64_tr_b16 v[{66+4*e}:{67+4*e}], v13 offset:{e*512+128}")
        a(f"ds_read_b128 v[{80+4*e}:{83+4*e}], v{46+e} offset:{L_XN + e*1024}")
    for e in range(4):
        a(f"s_waitcnt lgkmcnt({9-3*e})")
        mfma(a, 96, 64 + 4 * e, 80 + 4 * e, None if e == 0 else 96)
    a.c("RED: q=0,1 -> WK + w*2048 + q*1024 ; q=2,3 -> WV + w*2048 + (q-2)*1024  (own, already consumed rows)")
    a(f"s_lshl_b32 s55, s{S_W}, 11")
    a(f"s_add_u32 s55, s55, {L_WK}")
    a("v_add_u32 v14, s55, v6")
    a(f"v_add_u32 v15, {L_WV - L_WK}, v14")
    a("s_nop 10")
    a("ds_write_b128 v14, v[96:99]")
    a("ds_write_b128 v14, v[100:103] offset:1024")
    a("ds_write_b128 v15, v[104:107]")
    a("ds_write_b128 v15, v[108:111] offset:1024")
    a.label(lkv1)
    stamp(a, "p0")
    a("s_waitcnt vmcnt(8) lgkmcnt(0)")
    stamp(a, "p0")
    a("s_barrier")
    stamp(a, "p0")
    a(f"s_cmp_lg_u32 s{S_HQ}, 0")
    a(f"s_cbranch_scc1 {lkvd}")
    lv = a.newlabel("kv_v")
    a(f"s_cmp_eq_u32 s{S_W}, 1")
    a(f"s_cbranch_scc1 {lv}")
    a(f"s_cmp_lg_u32 s{S_W}, 0")
    a(f"s_cbranch_scc1 {lkvd}")
    def red8(base):
        a(f"v_add_u32 v14, {base}, v6")
        for ww in range(8):
            a(f"ds_read_b128 v[{64+8*ww}:{67+8*ww}], v14 offset:{ww*2048}")
            a(f"ds_read_b128 v[{68+8*ww}:{71+8*ww}], v14 offset:{ww*2048+1024}")
            if ww == 3: a("s_waitcnt lgkmcnt(4)")
        a("s_waitcnt lgkmcnt(0)")
        for ww in range(1, 8):
            for i in range(4):
                a(f"v_pk_add_f32 v[{64+2*i}:{65+2*i}], v[{64+2*i}:{65+2*i}], v[{64+8*ww+2*i}:{65+8*ww+2*i}]")
        for r in range(4):
            a(f"v_cvt_pk_bf16_f32 v{76+r}, v{64+2*r}, v{65+2*r}")
    red8(L_WV)
    a(f"s_lshl_b32 s55, s{S_TBK}, 10")
    a(f"s_add_u32 s55, s55, {KF}")
    a(f"buffer_store_dwordx4 v[76:79], v6, {WS}, s55 offen sc1")
    a("v_mov_b32 v80, 0")
    for r in range(4):
        a(f"v_dot2_f32_bf16 v80, v{76+r}, v{76+r}, v80")
    a("s_nop 2")
    xhalf(a, 80, 81, "v_add_f32")
    dpp_sum16(a, 80, "v_max_f32")
    xrow16(a, 80, 81, "v_max_f32")
    a(f"v_mov_b32 v{QSAVE+5}, v80")
    a(f"s_branch {lkvd}")
    a.label(lv)
    red8(L_WK)
    a("v_lshlrev_b32 v80, 5, v9")
    a("v_lshl_add_u32 v80, v8, 3, v80")
    a(f"v_add_u32 v80, {L_WK}, v80")
    a("ds_write_b64 v80, v[76:77]")
    a("ds_write_b64 v80, v[78:79] offset:16")
    a("v_lshl_add_u32 v81, v8, 2, v10")
    a("v_lshlrev_b32 v81, 5, v81")
    a("v_and_b32 v82, 1, v11")
    a("v_lshlrev_b32 v82, 1, v82")
    a("v_lshrrev_b32 v83, 1, v11")
    a("v_add_u32 v82, v82, v83")
    a("v_lshl_add_u32 v81, v82, 3, v81")
    a(f"v_add_u32 v81, {L_WK}, v81")
    a("s_waitcnt lgkmcnt(0)")
    for c2 in range(2):
        for rd in range(2):
            d = 84 + 4 * c2 + 2 * rd
            a(f"ds_read_b64_tr_b16 v[{d}:{d+1}], v81 offset:{(16*c2 + 8*rd) * 32}")
    a("v_lshl_add_u32 v82, v8, 4, v3")
    a("v_lshlrev_b32 v82, 4, v82")
    a(f"s_lshl_b32 s55, s{S_TBK}, 10")
    a(f"s_add_u32 s55, s55, {VF}")
    a("s_waitcnt lgkmcnt(0)")
    a("s_mov_b32 exec_lo, 0x0000ffff")
    a("s_mov_b32 exec_hi, 0x0000ffff")
    a(f"buffer_store_dwordx4 v[84:87], v82, {WS}, s55 offen sc1")
    a(f"buffer_store_dwordx4 v[88:91], v82, {WS}, s55 offen offset:512 sc1")
    a("s_mov_b64 exec, -1")
    a.label(lkvd)
    a("v_add_u32 v45, 1024, v44")
    stamp(a, "p0")
    def publish_kv():
        lnf = a.newlabel("noflag")
        a(f"s_cmp_lg_u32 s{S_HQ}, 0")
        a(f"s_cbranch_scc1 {lnf}")
        a(f"s_cmp_lg_u32 s{S_W}, 0")
        a(f"s_cbranch_scc1 {lnf}")
        a(f"s_lshl_b32 s55, s{S_TBK}, 7")
        a(f"s_add_u32 s55, s55, {FLG_A}")
        a("v_lshlrev_b32 v80, 3, v0")
        a(f"v_mov_b32 v{QSAVE+4}, s{S_NONCE}")
        a("s_mov_b64 exec, 0xffff")
        a(f"buffer_store_dwordx2 v[{QSAVE+4}:{QSAVE+5}], v80, {WS}, s55 offen sc1")
        a("s_mov_b64 exec, -1")
        a.label(lnf)
    ACC = 96
    AB = [112, 116, 120]; BB = [124, 128, 132]
    def issue(s):
        A = AB[s % 3]; B = BB[s % 3]
        a.lg(f"ds_read_b64_tr_b16 v[{A}:{A+1}], v44", s)
        a.lg(f"ds_read_b64_tr_b16 v[{A+2}:{A+3}], v45", s)
        a.lg(f"ds_read_b128 v[{B}:{B+3}], v{40 + (s & 3)} offset:{L_XN + s*1024}", s)
        d = 4096 - (98304 if s == 23 else 0)
        a(f"v_add_u32 v44, {d & 0xffffffff:#x}, v44"); a(f"v_add_u32 v45, {d & 0xffffffff:#x}, v45")
    a.lgq = []
    issue(0); issue(1)
    for s in range(32):
        if s + 2 < 32:
            if s + 2 == 8:
                a("s_waitcnt vmcnt(0)")
                a("s_barrier")
                stamp(a, "p0"); a.lgq = [] if PROFILE and STAMPSET == "p0" else a.lgq
                publish_kv()
            if s + 2 == 24:
                a("s_waitcnt vmcnt(0)")
                a("s_barrier")
            issue(s + 2)
        a.lg_wait(s)
        mfma(a, ACC, AB[s % 3], BB[s % 3], None if s == 0 else ACC)
        if s == 7:
            a("s_barrier")
            wq_dma(3)
    a("s_nop 15")
    a(f"s_mov_b32 s55, {f32hex(QSCALE)}")
    for r in range(8):
        a(f"v_mul_f32 v{64+r}, s55, v{ACC+r}")
    for r in range(4):
        a(f"v_cvt_pk_bf16_f32 v{QSAVE+r}, v{64+2*r}, v{65+2*r}")
    stamp(a); stamp(a, "p0")
    a("s_barrier")
    stamp(a, "p0")

L_SCR = 131072
S_JOB = 78
V_WJS, V_WJT, V_WJC = 140, 141, 142
SRD_J1, SRD_J2 = 20, 36
def wj_setup(a):
    a("v_lshrrev_b32 v143, 4, v0")
    a("v_and_b32 v144, 15, v0")
    a("v_lshrrev_b32 v145, 5, v0")
    a("v_lshrrev_b32 v146, 2, v144")
    a("v_and_b32 v147, 3, v144")
    a("v_and_b32 v148, 1, v147")
    a("v_lshlrev_b32 v148, 1, v148")
    a("v_lshrrev_b32 v149, 1, v147")
    a("v_add_u32 v148, v148, v149")
    a("v_lshlrev_b32 v148, 3, v148")
    a("v_and_b32 v149, 1, v143")
    a("v_lshl_add_u32 v150, v145, 3, v146")
    a(f"s_lshl_b32 s57, s{S_W}, 12")
    a(f"s_add_u32 s57, s57, {L_SCR}")
    a(f"s_mov_b32 s{S_JOB}, 0")
    lo = a.newlabel("wjo"); ld = a.newlabel("wjd")
    a("s_cmp_ge_u32 s2, 112")
    a(f"s_cbranch_scc1 {lo}")
    a(f"s_mov_b32 s{S_JOB}, 1")
    a("s_lshr_b32 s60, s2, 2")
    a("s_and_b32 s61, s2, 3")
    a("s_lshl_b32 s62, s61, 3")
    a(f"s_add_u32 s62, s62, s{S_W}")
    mk_srd(a, SRD_J1, P_WG, 512 * 3584)
    mk_srd(a, SRD_J2, P_WU, 512 * 3584)
    a("v_lshrrev_b32 v151, 3, v0")
    a("s_mov_b32 s63, 3584")
    a("v_mul_lo_u32 v151, v151, s63")
    a("v_and_b32 v152, 7, v0")
    a(f"v_lshl_add_u32 v{V_WJS}, v152, 4, v151")
    a("s_mul_i32 s58, s62, 57344")
    a("s_lshl_b32 s63, s60, 7")
    a("s_add_u32 s58, s58, s63")
    a("v_lshlrev_b32 v151, 7, v150")
    a("v_lshl_add_u32 v151, v149, 11, v151")
    a("v_add_u32 v151, v151, v148")
    a(f"v_add_u32 v{V_WJT}, s57, v151")
    a("s_lshl_b32 s59, s60, 7")
    a("s_add_u32 s59, s59, s62")
    a("s_lshl_b32 s59, s59, 10")
    a(f"s_add_u32 s59, s59, {WGF}")
    a("s_mul_i32 s72, s61, 112")
    a("s_lshl_b32 s63, s60, 2")
    a("s_add_u32 s72, s72, s63")
    a("s_lshl_b32 s72, s72, 7")
    a(f"s_add_u32 s72, s72, {CSP}")
    a("v_lshlrev_b32 v151, 2, v0")
    a(f"v_add_u32 v{V_WJC}, s57, v151")
    a.c("warm the L2 with the 16 source rows (one 128-byte line per row and matrix)")
    a("v_and_b32 v151, 15, v0")
    a("s_mov_b32 s63, 3584")
    a("v_mul_lo_u32 v151, v151, s63")
    a(f"buffer_load_dword v153, v151, s[{SRD_J1}:{SRD_J1+3}], s58 offen")
    a(f"buffer_load_dword v154, v151, s[{SRD_J2}:{SRD_J2+3}], s58 offen")
    a(f"s_branch {ld}")
    a.label(lo)
    a("s_cmp_ge_u32 s2, 184")
    a(f"s_cbranch_scc1 {ld}")
    a("s_sub_u32 s60, s2, 112")
    a("s_lshl_b32 s60, s60, 3")
    a(f"s_add_u32 s60, s60, s{S_W}")
    lwd = a.newlabel("wjwd")
    a("s_cmp_ge_u32 s60, 128")
    a(f"s_cbranch_scc1 {lwd}")
    a(f"s_mov_b32 s{S_JOB}, 3")
    mk_srd(a, SRD_J1, P_WO, 512 * 1024)
    a("s_lshr_b32 s61, s60, 3")
    a("s_and_b32 s62, s60, 7")
    a("v_lshrrev_b32 v151, 3, v0")
    a("v_lshlrev_b32 v151, 10, v151")
    a("v_and_b32 v152, 7, v0")
    a(f"v_lshl_add_u32 v{V_WJS}, v152, 4, v151")
    a("s_lshl_b32 s58, s61, 15")
    a("s_lshl_b32 s60, s62, 7")
    a("s_add_u32 s58, s58, s60")
    a("s_mov_b32 s69, 8192")
    a("v_lshl_add_u32 v151, v143, 3, v146")
    a("v_lshlrev_b32 v151, 7, v151")
    a("v_lshl_add_u32 v151, v147, 3, v151")
    a(f"v_add_u32 v{V_WJT}, s57, v151")
    a("s_lshl_b32 s59, s62, 6")
    a("s_add_u32 s59, s59, s61")
    a("s_lshl_b32 s59, s59, 10")
    a(f"s_add_u32 s59, s59, {WOF}")
    a("s_mov_b32 s72, 16384")
    a("v_and_b32 v151, 31, v0")
    a("v_lshlrev_b32 v151, 10, v151")
    a(f"buffer_load_dword v153, v151, s[{SRD_J1}:{SRD_J1+3}], s58 offen")
    a(f"s_branch {ld}")
    a.label(lwd)
    a(f"s_mov_b32 s{S_JOB}, 2")
    a("s_sub_u32 s60, s60, 128")
    mk_srd(a, SRD_J1, P_WD, 1792 * 1024)
    a("s_lshr_b32 s61, s60, 2")
    a("s_and_b32 s62, s60, 3")
    a("v_lshlrev_b32 v151, 10, v143")
    a(f"v_lshl_add_u32 v{V_WJS}, v144, 4, v151")
    a("s_lshl_b32 s58, s61, 14")
    a("s_lshl_b32 s60, s62, 8")
    a("s_add_u32 s58, s58, s60")
    a("s_mov_b32 s69, 4096")
    a("v_lshlrev_b32 v151, 8, v150")
    a("v_lshl_add_u32 v151, v149, 5, v151")
    a("v_add_u32 v151, v151, v148")
    a(f"v_add_u32 v{V_WJT}, s57, v151")
    a("s_lshl_b32 s59, s62, 2")
    a("s_mul_i32 s59, s59, 112")
    a("s_add_u32 s59, s59, s61")
    a("s_lshl_b32 s59, s59, 10")
    a(f"s_add_u32 s59, s59, {WDF}")
    a(f"s_mov_b32 s72, {112*1024}")
    a("v_and_b32 v151, 31, v0")
    a("v_lshrrev_b32 v152, 1, v151")
    a("v_lshlrev_b32 v152, 10, v152")
    a("v_and_b32 v151, 1, v151")
    a("v_lshl_add_u32 v151, v151, 7, v152")
    a(f"buffer_load_dword v153, v151, s[{SRD_J1}:{SRD_J1+3}], s58 offen")
    a.label(ld)

def wj_branch(a, g_code, o_code):
    lo = a.newlabel("jo"); le = a.newlabel("je")
    a(f"s_cmp_eq_u32 s{S_JOB}, 1")
    a(f"s_cbranch_scc0 {lo}")
    if g_code: g_code()
    a(f"s_branch {le}")
    a.label(lo)
    if o_code:
        a(f"s_cmp_eq_u32 s{S_JOB}, 0")
        a(f"s_cbranch_scc1 {le}")
        o_code()
    a.label(le)

def wj_issue(a, part=None):
    def g():
        for i in ([0, 1] if part is None else [part]):
            a(f"s_add_u32 m0, s57, {i*1024}")
            a(f"s_add_u32 s63, s58, {i*8*3584}")
            a(f"buffer_load_dwordx4 v{V_WJS}, s[{SRD_J1}:{SRD_J1+3}], s63 offen lds")
            a(f"s_add_u32 m0, s57, {2048 + i*1024}")
            a("s_nop 0")
            a(f"buffer_load_dwordx4 v{V_WJS}, s[{SRD_J2}:{SRD_J2+3}], s63 offen lds")
    def o():
        for i in (range(4) if part is None else [2 * part, 2 * part + 1]):
            a(f"s_add_u32 m0, s57, {i*1024}")
            a(f"s_mul_i32 s63, s69, {i}")
            a(f"s_add_u32 s63, s63, s58")
            a(f"buffer_load_dwordx4 v{V_WJS}, s[{SRD_J1}:{SRD_J1+3}], s63 offen lds")
    wj_branch(a, g, o)

def wj_read(a, n_younger):
    def rd(st, rdoff):
        def f():
            a(f"s_waitcnt vmcnt({n_younger})")
            for q in range(4):
                d = 96 + 4 * q
                a(f"ds_read_b64_tr_b16 v[{d}:{d+1}], v{V_WJT} offset:{q*st}")
                a(f"ds_read_b64_tr_b16 v[{d+2}:{d+3}], v{V_WJT} offset:{q*st + rdoff}")
        return f
    l2 = a.newlabel("jr2"); le = a.newlabel("jre")
    a(f"s_cmp_eq_u32 s{S_JOB}, 0")
    a(f"s_cbranch_scc1 {le}")
    a(f"s_cmp_eq_u32 s{S_JOB}, 2")
    a(f"s_cbranch_scc1 {l2}")
    rd(32, 512)()
    a(f"s_branch {le}")
    a.label(l2)
    rd(64, 1024)()
    a.label(le)

def wj_store(a):
    def g():
        for r in range(4):
            a(f"v_mov_b32 v{112+r}, 0x3f803f80")
        for q in range(4):
            d = 96 + 4 * q
            a(f"s_add_u32 s63, s59, {q*32768}")
            a(f"buffer_store_dwordx4 v[{d}:{d+3}], v1, {WS}, s63 offen sc1")
        for q in range(4):
            mfma(a, 160 + 16 * q, 112, 96 + 4 * q, None)
    def o():
        a("s_mov_b32 s63, s59")
        for q in range(4):
            d = 96 + 4 * q
            a(f"buffer_store_dwordx4 v[{d}:{d+3}], v1, {WS}, s63 offen sc1")
            if q < 3: a("s_add_u32 s63, s63, s72")
    wj_branch(a, g, o)

def wj_cspart(a):
    def g():
        a("s_mov_b32 exec_hi, 0")
        for q in range(4):
            a(f"ds_write_b32 v{V_WJC}, v{160 + 16 * q} offset:{q*128}")
        a("s_mov_b64 exec, -1")
    wj_branch(a, g, None)

def wj_csread(a):
    def g():
        l = a.newlabel("csr")
        a(f"s_cmp_ge_u32 s{S_W}, 2")
        a(f"s_cbranch_scc1 {l}")
        a(f"s_lshl_b32 s63, s{S_W}, 8")
        a("v_lshlrev_b32 v104, 2, v0")
        a("v_add_u32 v104, s63, v104")
        a(f"v_add_u32 v105, {L_SCR}, v104")
        for ww in range(8):
            a(f"ds_read_b32 v{96+ww}, v105 offset:{ww*4096}")
        a.label(l)
    wj_branch(a, g, None)

def wj_csstore(a):
    def g():
        l = a.newlabel("css")
        a(f"s_cmp_ge_u32 s{S_W}, 2")
        a(f"s_cbranch_scc1 {l}")
        for ww in range(1, 8):
            a(f"v_add_f32 v96, v96, v{96+ww}")
        a(f"buffer_store_dword v96, v104, {WS}, s72 offen sc1")
        a.label(l)
    wj_branch(a, g, None)

def wj_signal(a):
    l = a.newlabel("wsig")
    a(f"s_cmp_eq_u32 s{S_JOB}, 0")
    a(f"s_cbranch_scc1 {l}")
    a(f"s_cmp_lg_u32 s{S_W}, 0")
    a(f"s_cbranch_scc1 {l}")
    a("s_lshl_b32 s63, s2, 7")
    a(f"s_add_u32 s63, s63, {FLG_W}")
    set_flag(a, 63, 96)
    a.label(l)

A_Q, A_O, A_S, A_P = 4, 8, [24, 40], 56
A_K = [64, 68]
A_V = [[72, 76], [80, 84]]
A_VK, A_VV = 88, 89
A_NEG = 96
WO_R = 92
WG_R = 128
XR = 60
BOUND2 = 1600.0

def attn_tile(a, p, extra=None):
    b = p & 1; nb = b ^ 1
    S = A_S[b]
    def ex(r): a(f"v_exp_f32 v{S+r}, v{S+r}")
    def cv(k): a(f"v_cvt_pk_bf16_f32 v{A_P+k}, v{S+2*k}, v{S+2*k+1}")
    a("s_waitcnt lgkmcnt(0)")
    mfma(a, A_S[nb], A_K[nb], A_Q, None)
    a(f"ds_read_b128 v[{A_K[b]}:{A_K[b]+3}], v{A_VK} offset:{(p+2)*1024}")
    ex(0); ex(1); ex(2); ex(3)
    cv(0)
    mfma(a, A_O, A_V[1][nb], A_P + 4, A_O)
    a("s_mov_b64 exec, s[70:71]")
    a(f"ds_read_b128 v[{A_V[0][nb]}:{A_V[0][nb]+3}], v{A_VV} offset:{(p+1)*1024}")
    a(f"ds_read_b128 v[{A_V[1][nb]}:{A_V[1][nb]+3}], v{A_VV} offset:{(p+1)*1024 + 512}")
    a("s_mov_b64 exec, -1")
    if extra: extra()
    ex(4); cv(1); ex(5); ex(6); ex(7); cv(2); ex(8); cv(3)
    ex(9); ex(10); ex(11)
    mfma(a, A_O, A_V[0][b], A_P, A_O)
    cv(4); ex(12); cv(5); ex(13); ex(14); ex(15); cv(6)
    cv(7)

def wave_consts(a):
    a.c("WOF + (8cq + w)*16384 -> s68")
    a(f"s_lshl_b32 s68, s{S_HQ}, 3")
    a(f"s_add_u32 s68, s68, s{S_W}")
    a("s_lshl_b32 s68, s68, 14")
    a(f"s_add_u32 s68, s68, {WOF}")
    a.c("WGF + fb*32768 -> s73, fb = 7j + w (waves 0..6; wave 7 uses fb of wave 6, harmless duplicate)")
    a(f"s_min_u32 s73, s{S_W}, 6")
    a(f"s_mul_i32 s74, s{S_J}, 7")
    a("s_add_u32 s74, s74, s73")
    a("s_lshl_b32 s73, s74, 15")
    a(f"s_add_u32 s73, s73, {WGF}")

def ld_wg(a, s, tag="WG"):
    a(f"s_add_u32 s75, s73, {(s >> 2) * 4096}")
    a.vm(f"buffer_load_dwordx4 v[{WG_R+4*s}:{WG_R+4*s+3}], v1, {WS}, s75 offen offset:{(s&3)*1024} sc1", (tag, s))
def ld_wo(a, s):
    a(f"s_add_u32 s75, s68, {(s >> 2) * 4096}")
    a.vm(f"buffer_load_dwordx4 v[{WO_R+4*s}:{WO_R+4*s+3}], v1, {WS}, s75 offen offset:{(s&3)*1024} sc1", ("WO", s))

def prefetch_lists():
    it2 = [("g", s) for s in range(7, 32)]
    it3 = [("o", s) for s in range(16)]
    return it2, it3

def kv_dma(a, st, part=None):
    if part in (None, 0):
        a(f"s_add_u32 m0, s60, {st*16384}")
        a(f"s_add_u32 s62, s60, {st*16384 + KF}")
        a(f"buffer_load_dwordx4 v1, {WS}, s62 offen sc1 lds")
        a(f"buffer_load_dwordx4 v1, {WS}, s62 offen offset:1024 sc1 lds")
    if part in (None, 1):
        a(f"s_add_u32 m0, s60, {st*16384 + 65536}")
        a(f"s_add_u32 s62, s60, {st*16384 + VF}")
        a(f"buffer_load_dwordx4 v1, {WS}, s62 offen sc1 lds")
        a(f"buffer_load_dwordx4 v1, {WS}, s62 offen offset:1024 sc1 lds")

def wready_poll(a):
    l = a.newlabel("wrq")
    a(f"s_cmp_lg_u32 s{S_W}, 0")
    a(f"s_cbranch_scc1 {l}")
    a("v_lshlrev_b32 v2, 7, v0")
    a("v_add_u32 v3, 128, v0")
    a("v_min_u32 v3, 183, v3")
    a("v_lshlrev_b32 v3, 7, v3")
    a(f"s_mov_b32 s63, {FLG_W}")
    a(f"buffer_load_dword v96, v2, {WS}, s63 offen sc1")
    a(f"s_mov_b32 s63, {FLG_W + 64*128}")
    a(f"buffer_load_dword v97, v2, {WS}, s63 offen sc1")
    a(f"s_mov_b32 s63, {FLG_W}")
    a(f"buffer_load_dword v98, v3, {WS}, s63 offen sc1")
    a.label(l)
def wready_check(a):
    l = a.newlabel("wrc"); dn = a.newlabel("wrd")
    a(f"s_cmp_lg_u32 s{S_W}, 0")
    a(f"s_cbranch_scc1 {l}")
    def test():
        a("s_waitcnt vmcnt(0)")
        a(f"v_cmp_ne_u32 vcc, s{S_NONCE}, v96")
        a(f"v_cmp_ne_u32 s[62:63], s{S_NONCE}, v97")
        a("s_nop 1")
        a("s_or_b64 s[62:63], s[62:63], vcc")
        a(f"v_cmp_ne_u32 vcc, s{S_NONCE}, v98")
        a("s_nop 4")
        a("s_or_b64 vcc, vcc, s[62:63]")
    test()
    a(f"s_cbranch_vccz {dn}")
    l2 = spin_begin(a, "wrp")
    a(f"s_mov_b32 s63, {FLG_W}")
    a(f"buffer_load_dword v96, v2, {WS}, s63 offen sc1")
    a(f"buffer_load_dword v98, v3, {WS}, s63 offen sc1")
    a(f"s_mov_b32 s63, {FLG_W + 64*128}")
    a(f"buffer_load_dword v97, v2, {WS}, s63 offen sc1")
    test()
    spin_end(a, l2, dn, 4)
    a.label(l)
    a("s_barrier")

def x_residual(a):
    mk_srd(a, SRD_A, P_X, 2048 * 1024)
    a("v_and_b32 v2, 15, v0")
    a("v_lshrrev_b32 v3, 4, v0")
    a("v_lshlrev_b32 v2, 10, v2")
    a("v_lshl_add_u32 v2, v3, 3, v2")
    a(f"s_lshl_b32 s62, s{S_TBK}, 15")
    a(f"s_lshl_b32 s63, s{S_HQ}, 8")
    a("s_add_u32 s62, s62, s63")
    a(f"s_lshl_b32 s63, s{S_W}, 5")
    a("s_add_u32 s62, s62, s63")
    a.vm(f"buffer_load_dwordx2 v[{XRES}:{XRES+1}], v2, s[{SRD_A}:{SRD_A+3}], s62 offen", "XR")
    a("s_add_u32 s62, s62, 16384")
    a.vm(f"buffer_load_dwordx2 v[{XRES+2}:{XRES+3}], v2, s[{SRD_A}:{SRD_A+3}], s62 offen", "XR")
XRES = 4

def hh_prefill(a):
    l = a.newlabel("pf")
    a(f"s_cmp_eq_u32 s{S_W}, 7")
    a(f"s_cbranch_scc1 {l}")
    for r in range(4): a(f"v_mov_b32 v{96+r}, -1")
    a("s_mul_i32 s62, s74, 1024")
    a(f"s_lshl_b32 s63, s{S_G}, 2")
    a("s_mul_i32 s63, s63, 114688")
    a("s_add_u32 s62, s62, s63")
    a(f"s_add_u32 s62, s62, {HHF}")
    for tb in range(4):
        a(f"buffer_store_dwordx4 v[96:99], v1, {WS}, s62 offen sc1")
        if tb < 3: a("s_add_u32 s62, s62, 114688")
    a("s_nop 1")
    a.label(l)

def attention(a):
    a("v_lshlrev_b32 v1, 4, v0")
    for r in range(4):
        a(f"v_mov_b32 v{A_Q+r}, v{QSAVE+r}")
    a("s_mov_b32 s70, 0x0000ffff")
    a("s_mov_b32 s71, 0x0000ffff")
    for r in range(16):
        a(f"v_mov_b32 v{A_O+r}, 0")
        a(f"v_mov_b32 v{72+r}, 0x3f803f80")
    if ZROWS:
        a("s_mov_b32 s62, 0x00110000"); a("s_mov_b32 s63, 0x00110000")
        a("v_mov_b32 v91, 0")
        for r in range(16): a(f"v_cndmask_b32 v{72+r}, v91, v{72+r}, s[62:63]")
    for r in range(8):
        a(f"v_mov_b32 v{A_P+r}, 0")
    a(f"v_mov_b32 v{A_VK}, v1")
    a("v_lshrrev_b32 v90, 5, v0")
    a("v_and_b32 v91, 15, v0")
    a("v_lshl_add_u32 v90, v90, 4, v91")
    a("v_lshlrev_b32 v90, 4, v90")
    a(f"v_add_u32 v{A_VV}, 65536, v90")
    wave_consts(a)
    wj_setup(a)
    a("v_mov_b32 v90, 0")
    for r in range(4):
        a(f"v_dot2_f32_bf16 v90, v{A_Q+r}, v{A_Q+r}, v90")
    a(f"s_lshl_b32 s60, s{S_W}, 11")
    a("s_nop 1")
    xhalf(a, 90, 91, "v_add_f32")
    la = a.newlabel("sa")
    a(f"s_cmp_lg_u32 s{S_W}, 0")
    a(f"s_cbranch_scc1 {la}")
    done = a.newlabel("syncA")
    a("v_lshlrev_b32 v2, 7, v0")
    a(f"s_mov_b32 s63, {FLG_A}")
    l = spin_begin(a, "pollA")
    a(f"buffer_load_dwordx2 v[96:97], v2, {WS}, s63 offen sc1")
    a("s_waitcnt vmcnt(0)")
    a(f"v_cmp_ne_u32 vcc, s{S_NONCE}, v96")
    spin_end(a, l, done, 2)
    dpp_sum16(a, 97, "v_max_f32")
    xrow16(a, 97, 91, "v_max_f32")
    xhalf(a, 97, 91, "v_max_f32")
    a(f"v_mov_b32 v91, {L_SCR + 4096 - 128}")
    a("s_mov_b64 exec, 1")
    a("ds_write_b32 v91, v97")
    a("s_mov_b64 exec, -1")
    a("s_waitcnt lgkmcnt(0)")
    a.label(la)
    a("s_barrier")
    stamp(a)
    kv_dma(a, 0)
    a(f"v_mov_b32 v91, {L_SCR + 4096 - 128}")
    a("ds_read_b32 v3, v91")
    a("s_waitcnt lgkmcnt(0)")
    a("v_mul_f32 v90, v90, v3")
    a(f"v_mov_b32 v91, {f32hex(BOUND2)}")
    a("v_cmp_gt_f32 vcc, v90, v91")
    a.c("workgroup-wide vote: any row that might leave the safe range sends the whole workgroup to the max-subtracting path")
    a("s_nop 4")
    a("s_cmp_lg_u64 vcc, 0")
    a("s_cselect_b32 s61, 1, 0")
    a("v_mov_b32 v90, s61")
    a(f"s_lshl_b32 s61, s{S_W}, 2")
    a(f"s_add_u32 s61, s61, {L_SCR + 4096 - 64}")
    a("v_mov_b32 v91, s61")
    a("s_mov_b64 exec, 1")
    a("ds_write_b32 v91, v90")
    a("s_mov_b64 exec, -1")
    a("s_waitcnt vmcnt(0) lgkmcnt(0)")
    a("s_barrier")
    a(f"v_mov_b32 v91, {L_SCR + 4096 - 64}")
    a("ds_read_b128 v[96:99], v91")
    a("ds_read_b128 v[100:103], v91 offset:16")
    a(f"ds_read_b128 v[{A_K[0]}:{A_K[0]+3}], v{A_VK}")
    a(f"ds_read_b128 v[{A_K[1]}:{A_K[1]+3}], v{A_VK} offset:1024")
    a("s_mov_b64 exec, s[70:71]")
    a(f"ds_read_b128 v[{A_V[0][0]}:{A_V[0][0]+3}], v{A_VV}")
    a(f"ds_read_b128 v[{A_V[1][0]}:{A_V[1][0]+3}], v{A_VV} offset:512")
    a("s_mov_b64 exec, -1")
    a("s_waitcnt lgkmcnt(0)")
    a("v_or3_b32 v96, v96, v97, v98")
    a("v_or3_b32 v100, v100, v101, v102")
    a("v_or3_b32 v96, v96, v99, v103")
    a("v_or_b32 v96, v96, v100")
    a("s_barrier")
    a("v_readfirstlane_b32 s61, v96")
    lslow = a.newlabel("slow"); lepi = a.newlabel("attn_epi")
    a("s_nop 3")
    a("s_cmp_lg_u32 s61, 0")
    a(f"s_cbranch_scc1 {lslow}")
    stamp(a)
    mfma(a, A_S[0], A_K[0], A_Q, None)
    it_pref = [("g", s) for s in range(7, 32)] + [("o", s) for s in range(16)]
    NPF0, NPF1 = 36, 62
    a("s_nop 15")
    a.vm_reset()
    def extra_for(t):
        def f():
            if t in (0, 1): kv_dma(a, 1, t)
            if t in (2, 3): wj_issue(a, t - 2)
            if t in (4, 5): kv_dma(a, 2, t - 4)
            if t in (6, 7): kv_dma(a, 3, t - 6)
            if t == 12: wj_read(a, 8)
            if t == 13: wj_store(a)
            if t == 15: wj_cspart(a)
            if t == 16: wj_csread(a)
            if t == 17: wj_csstore(a)
            if t == 33: wready_poll(a)
            if NPF0 <= t < NPF1:
                k0 = (t - NPF0) * len(it_pref) // (NPF1 - NPF0); k1 = (t + 1 - NPF0) * len(it_pref) // (NPF1 - NPF0)
                for k, s in it_pref[k0:k1]:
                    (ld_wg if k == "g" else ld_wo)(a, s)
            if SENT_D and t == 40: hh_prefill(a)
            if t == 62: x_residual(a)
        return f
    for t in range(64):
        p = t & 15
        if t in (0, 4, 8, 12, 16, 20, 24, 28, 32, 36, 40, 48, 56, 63): stamp(a, "attn")
        if t > 0 and t % 4 == 0:
            if t == 12:
                a("s_waitcnt vmcnt(8)")
            if t == 16:
                a("s_waitcnt lgkmcnt(0)")
            if t == 24:
                a("s_waitcnt vmcnt(0)")
            if t == 36:
                wready_check(a)
            else:
                a("s_barrier")
            if t == 24:
                wj_signal(a)
        if PRIO:
            a(f"s_setprio {3 - (t & 3)}")
        attn_tile(a, p, extra_for(t))
        if p == 15 and t < 63:
            a(f"v_add_u32 v{A_VK}, 16384, v{A_VK}")
            a(f"v_add_u32 v{A_VV}, 16384, v{A_VV}")
    if PRIO: a("s_setprio 0")
    a("s_nop 1")
    mfma(a, A_O, A_V[1][1], A_P + 4, A_O)
    a(f"s_branch {lepi}")
    a.label(lslow)
    for st in range(1, 4):
        kv_dma(a, st)
    wj_issue(a)
    wj_read(a, 0)
    a("s_waitcnt lgkmcnt(0)")
    wj_store(a)
    a("s_nop 15")
    wj_cspart(a)
    a("s_waitcnt vmcnt(0) lgkmcnt(0)")
    a("s_barrier")
    wj_csread(a)
    a("s_waitcnt lgkmcnt(0)")
    wj_csstore(a)
    a("s_waitcnt vmcnt(0)")
    a("s_barrier")
    wj_signal(a)
    a("v_mov_b32 v92, 0xff800000")
    a("s_mov_b32 s55, 0")
    l1 = a.newlabel("s1")
    a.label(l1)
    a(f"ds_read_b128 v[{A_K[0]}:{A_K[0]+3}], v{A_VK}")
    a("s_waitcnt lgkmcnt(0)")
    mfma(a, A_S[0], A_K[0], A_Q, None)
    a("s_nop 15")
    for r in range(8):
        a(f"v_max3_f32 v92, v{A_S[0]+2*r}, v{A_S[0]+2*r+1}, v92")
    a(f"v_add_u32 v{A_VK}, 1024, v{A_VK}")
    a("s_add_u32 s55, s55, 1")
    a("s_cmp_lt_u32 s55, 64")
    a(f"s_cbranch_scc1 {l1}")
    xhalf(a, 92, 91, "v_max_f32")
    for r in range(16):
        a(f"v_sub_f32 v{A_NEG+r}, 0, v92")
    a(f"v_mov_b32 v{A_VK}, v1")
    a("s_mov_b32 s55, 0")
    l2 = a.newlabel("s2")
    a.label(l2)
    a(f"ds_read_b128 v[{A_K[0]}:{A_K[0]+3}], v{A_VK}")
    a("s_mov_b64 exec, s[70:71]")
    a(f"ds_read_b128 v[{A_V[0][0]}:{A_V[0][0]+3}], v{A_VV}")
    a(f"ds_read_b128 v[{A_V[1][0]}:{A_V[1][0]+3}], v{A_VV} offset:512")
    a("s_mov_b64 exec, -1")
    a("s_waitcnt lgkmcnt(0)")
    mfma(a, A_S[0], A_K[0], A_Q, A_NEG)
    a("s_nop 15")
    for r in range(16):
        a(f"v_exp_f32 v{A_S[0]+r}, v{A_S[0]+r}")
    a("s_nop 0")
    for k in range(8):
        a(f"v_cvt_pk_bf16_f32 v{A_P+k}, v{A_S[0]+2*k}, v{A_S[0]+2*k+1}")
    a("s_nop 1")
    mfma(a, A_O, A_V[0][0], A_P, A_O)
    mfma(a, A_O, A_V[1][0], A_P + 4, A_O)
    a(f"v_add_u32 v{A_VK}, 1024, v{A_VK}")
    a(f"v_add_u32 v{A_VV}, 1024, v{A_VV}")
    a("s_add_u32 s55, s55, 1")
    a("s_cmp_lt_u32 s55, 64")
    a(f"s_cbranch_scc1 {l2}")
    a("s_nop 15")
    if SENT_D: hh_prefill(a)
    wready_poll(a)
    wready_check(a)
    sv = list(a.vmq)
    for k, s in it_pref:
        (ld_wg if k == "g" else ld_wo)(a, s)
    x_residual(a)
    a.vmq = sv
    a.label(lepi)
    stamp(a)
    a("s_nop 15")
    a(f"v_rcp_f32 v90, v{A_O+8}")
    a("s_nop 0")
    for r in range(8):
        a(f"v_mul_f32 v{A_O+r}, v{A_O+r}, v90")
    for k in range(4):
        a(f"v_cvt_pk_bf16_f32 v{A_P+k}, v{A_O+2*k}, v{A_O+2*k+1}")
    a.c("OF + (tbk*32 + 8hq + w)*1024")
    a(f"s_lshl_b32 s60, s{S_TBK}, 5")
    a(f"s_lshl_b32 s61, s{S_HQ}, 3")
    a("s_add_u32 s60, s60, s61")
    a(f"s_add_u32 s60, s60, s{S_W}")
    a("s_lshl_b32 s60, s60, 10")
    a(f"s_add_u32 s60, s60, {OF}")
    a(f"buffer_store_dwordx4 v[{A_P}:{A_P+3}], v1, {WS}, s60 offen sc1")
    if "o" in DOUBLE: a(f"buffer_store_dwordx4 v[{A_P}:{A_P+3}], v1, {WS}, s60 offen")

def eflag_base(a, dst):
    a(f"s_lshl_b32 s{dst}, s{S_G}, 11")
    a(f"s_add_u32 s{dst}, s{dst}, {FLG_E}")

def wg_publish(a, base, vt):
    stamp(a, "p3")
    a("s_waitcnt vmcnt(0)")
    stamp(a, "p3")
    a("s_barrier")
    l = a.newlabel("pub")
    a(f"s_cmp_lg_u32 s{S_W}, 0")
    a(f"s_cbranch_scc1 {l}")
    a(f"s_lshl_b32 s60, s{S_G}, 4")
    a(f"s_add_u32 s60, s60, s{S_J}")
    a("s_lshl_b32 s60, s60, 7")
    a(f"s_add_u32 s60, s60, {base}")
    set_flag(a, 60, vt)
    a.label(l)

def wg_wait(a, base, first_expr, n, vt, vo):
    l = a.newlabel("wt")
    a(f"s_cmp_lg_u32 s{S_W}, 0")
    a(f"s_cbranch_scc1 {l}")
    a(f"s_lshl_b32 s60, s{S_G}, 4")
    if first_expr is not None:
        first_expr()
    a("s_lshl_b32 s60, s60, 7")
    a(f"s_add_u32 s60, s60, {base}")
    if POLL_DELAY: a(f"s_sleep {POLL_DELAY}")
    poll_flags(a, 60, n, vt, vo, sleep=POLL_SLEEP)
    a.label(l)
    a("s_barrier")

def wave_publish(a, base, vt):
    a(f"s_lshl_b32 s60, s{S_G}, 4")
    a(f"s_add_u32 s60, s60, s{S_J}")
    a("s_lshl_b32 s60, s60, 3")
    a(f"s_add_u32 s60, s60, s{S_W}")
    a("s_lshl_b32 s60, s60, 7")
    a(f"s_add_u32 s60, s60, {base}")
    stamp(a, "p3")
    a("s_waitcnt vmcnt(0)")
    stamp(a, "p3")
    set_flag(a, 60, vt)

L3_ST = 131072 + 4096
def mfma16(a, d, A, B, c):
    cs = "0" if c is None else f"v[{c}:{c+3}]"
    a(f"v_mfma_f32_16x16x32_bf16 v[{d}:{d+3}], v[{A}:{A+3}], v[{B}:{B+3}], {cs}")

def p3(a):
    wg_publish(a, FLG_B, 28)
    stamp(a)
    def fe():
        a(f"s_lshl_b32 s61, s{S_TQ}, 2")
        a("s_add_u32 s60, s60, s61")
    wg_wait(a, FLG_B, fe, 4, 28, 30)
    stamp(a)
    a.c("o fragments -> LDS [32 heads][1024] over key tiles 0..31 (dead since the last barriers of the attention loop)")
    a(f"s_lshl_b32 s60, s{S_W}, 12")
    a("s_mov_b32 m0, s60")
    a(f"s_lshl_b32 s61, s{S_TBK}, 15")
    a("s_add_u32 s61, s61, s60")
    a(f"s_add_u32 s61, s61, {OF}")
    for e in range(4):
        a(f"buffer_load_dwordx4 v1, {WS}, s61 offen offset:{e*1024} sc1 lds")
    a.c("operand address: (g>>1)*1024 + ((g&1)*32 + (lane&15))*16")
    a("v_lshrrev_b32 v30, 5, v0")
    a("v_lshlrev_b32 v30, 10, v30")
    a("v_bfe_u32 v31, v0, 4, 1")
    a("v_lshlrev_b32 v31, 5, v31")
    a("v_and_b32 v29, 15, v0")
    a("v_add_u32 v31, v31, v29")
    a("v_lshl_add_u32 v30, v31, 4, v30")
    a("v_and_b32 v2, 31, v0")
    stamp(a, "p3")
    a("s_waitcnt vmcnt(0)")
    stamp(a, "p3")
    a("s_barrier")
    stamp(a, "p3")
    BBF = [[32 + 8 * k, 36 + 8 * k] for k in range(3)]
    a.lgq = []
    def rd(s):
        for th2 in range(2):
            r = BBF[s % 3][th2]
            a.lg(f"ds_read_b128 v[{r}:{r+3}], v30 offset:{s*2048 + th2*256}", s)
    rd(0); rd(1)
    for s in range(16):
        if s + 2 < 16: rd(s + 2)
        a.lg_wait(s)
        for th2 in range(2):
            mfma16(a, 8 + 4 * th2, WO_R + 4 * s, BBF[s % 3][th2], None if s == 0 else 8 + 4 * th2)
    stamp(a, "p3")
    a("s_mov_b32 s61, 0xffff0000")
    for i in range(4):
        a(f"v_lshlrev_b32 v{32+2*i}, 16, v{XRES+i}")
        a(f"v_and_b32 v{33+2*i}, s61, v{XRES+i}")
    a(f"s_lshl_b32 s60, s{S_TBK}, 5")
    a(f"s_lshl_b32 s61, s{S_HQ}, 3")
    a("s_add_u32 s60, s60, s61")
    a(f"s_add_u32 s60, s60, s{S_W}")
    a("s_lshl_b32 s60, s60, 10")
    a(f"s_add_u32 s60, s60, {HF}")
    a("s_nop 1")
    for i in range(4):
        a(f"v_pk_add_f32 v[{8+2*i}:{9+2*i}], v[{8+2*i}:{9+2*i}], v[{32+2*i}:{33+2*i}]")
    for i in range(4):
        a(f"v_cvt_pk_bf16_f32 v{40+i}, v{8+2*i}, v{9+2*i}")
    a("s_nop 1")
    a("v_permlane16_swap_b32 v40, v42")
    a("v_permlane16_swap_b32 v41, v43")
    a("s_nop 1")
    a(f"buffer_store_dwordx4 v[40:43], v1, {WS}, s60 offen sc1")
    if "h" in DOUBLE: a(f"buffer_store_dwordx4 v[40:43], v1, {WS}, s60 offen")
    stamp(a, "p3")
    a("s_mov_b32 s61, 0x3f803f80")
    a("v_mov_b32 v44, 0")
    a("v_mov_b32 v45, 0")
    for i in range(4):
        a(f"v_dot2_f32_bf16 v44, v{40+i}, s61, v44")
        a(f"v_dot2_f32_bf16 v45, v{40+i}, v{40+i}, v45")
    a("s_nop 2")
    xhalf(a, 44, 46, "v_add_f32")
    xhalf(a, 45, 46, "v_add_f32")
    a(f"s_lshl_b32 s60, s{S_W}, 8")
    a(f"s_add_u32 s60, s60, {L3_ST}")
    a("v_lshlrev_b32 v46, 3, v2")
    a("v_add_u32 v47, s60, v46")
    a("s_mov_b32 exec_hi, 0")
    a("ds_write_b64 v47, v[44:45]")
    a("s_mov_b64 exec, -1")
    a("s_waitcnt lgkmcnt(0)")
    wg_publish(a, FLG_C, 28)
    a.vm_reset()
    for s in range(7):
        ld_wg(a, s)
    stamp(a)

L4_ST = 131072
L4_CS = 131072 + 1024
WD_R = 128
def ld_wd(a, u):
    s, ct = u >> 1, u & 1
    off = ct * 114688 + (s >> 2) * 4096
    a(f"s_add_u32 s75, s76, {off}")
    a.vm(f"buffer_load_dwordx4 v[{WD_R+4*u}:{WD_R+4*u+3}], v1, {WS}, s75 offen offset:{(s&3)*1024} sc1", ("WD", u))

def p4(a):
    a(f"s_and_b32 s77, s{S_J}, 7")
    a("s_mul_i32 s76, s77, 229376")
    a(f"s_mul_i32 s60, s{S_W}, 14336")
    a("s_add_u32 s76, s76, s60")
    a(f"s_add_u32 s76, s76, {WDF}")
    stamp(a, "p4")
    wg_wait(a, FLG_C, None, 16, 28, 5)
    stamp(a); stamp(a, "p4")
    a(f"s_lshl_b32 s62, s{S_G}, 17")
    a(f"s_lshl_b32 s63, s{S_W}, 10")
    a("s_add_u32 s62, s62, s63")
    a(f"s_add_u32 s62, s62, {HF}")
    def dma(st):
        for tb in range(4):
            off = tb * 32768 + st * 8192
            a(f"s_add_u32 m0, s63, {off}")
            a(f"s_add_u32 s64, s62, {off}")
            a.vm(f"buffer_load_dwordx4 v1, {WS}, s64 offen sc1 lds", ("H", st))
    a.vm_reset()
    dma(0); dma(1)
    lhelp = a.newlabel("help"); ljoin = a.newlabel("p4join")
    a(f"s_cmp_eq_u32 s{S_W}, 7")
    a(f"s_cbranch_scc1 {lhelp}")
    sv = list(a.vmq)
    a("v_add_u32 v2, 65536, v1")
    BB = [[32 + 4 * t for t in range(4)], [48 + 4 * t for t in range(4)]]
    def breads(s):
        for tb in range(4):
            base = "v1" if tb < 2 else "v2"
            a.lg(f"ds_read_b128 v[{BB[s&1][tb]}:{BB[s&1][tb]+3}], {base} offset:{(tb&1)*32768 + s*1024}", s)
    a.lgq = []
    a.vm_wait(("H", 0))
    stamp(a, "p4")
    a("s_barrier")
    stamp(a); stamp(a, "p4")
    breads(0)
    for s in range(32):
        if s + 1 < 32:
            if (s + 1) % 8 == 0:
                a.vm_wait(("H", (s + 1) // 8))
                a("s_barrier")
            breads(s + 1)
        if s == 24:
            a("v_and_b32 v3, 31, v0")
            a("v_lshlrev_b32 v3, 3, v3")
            a(f"v_add_u32 v3, {L4_ST}, v3")
            for tb in range(4):
                a.lg(f"ds_read_b64 v[{4+2*tb}:{5+2*tb}], v3 offset:{tb*256}", "st")
            a("v_lshrrev_b32 v12, 5, v0")
            a("v_lshlrev_b32 v12, 4, v12")
            a(f"s_lshl_b32 s60, s{S_W}, 7")
            a(f"s_add_u32 s60, s60, {L4_CS}")
            a("v_add_u32 v12, s60, v12")
            for q in range(4):
                a.lg(f"ds_read_b128 v[{16+4*q}:{19+4*q}], v12 offset:{q*32}", "st")
        a.lg_wait(s)
        for tb in range(4):
            mfma(a, 64 + 16 * tb, WG_R + 4 * s, BB[s & 1][tb], None if s == 0 else 64 + 16 * tb)
        if s == 0: dma(2)
        if s == 4: dma(3)
        if s >= 1 and s - 1 < 28:
            ld_wd(a, s - 1)
    stamp(a); stamp(a, "p4")
    a("s_waitcnt lgkmcnt(0)")
    a("s_nop 7")
    a("s_mul_i32 s60, s74, 1024")
    a(f"s_lshl_b32 s61, s{S_G}, 2")
    a("s_mul_i32 s61, s61, 114688")
    a("s_add_u32 s60, s60, s61")
    a(f"s_add_u32 s60, s60, {HHF}")
    for tb in range(4):
        A = 64 + 16 * tb
        mean, r2 = 4 + 2 * tb, 5 + 2 * tb
        a(f"v_sub_f32 v32, 0, v{mean}")
        a(f"v_mov_b32 v33, v32")
        a(f"v_mov_b32 v34, v{r2}")
        a(f"v_mov_b32 v35, v{r2}")
        for i in range(8):
            a(f"v_pk_fma_f32 v[{A+2*i}:{A+2*i+1}], v[{16+2*i}:{17+2*i}], v[32:33], v[{A+2*i}:{A+2*i+1}]")
        for r in range(8):
            a(f"v_max_f32 v{A+r}, 0, v{A+r}")
        for i in range(4):
            a(f"v_pk_mul_f32 v[{A+8+2*i}:{A+9+2*i}], v[{A+8+2*i}:{A+9+2*i}], v[34:35]")
        for i in range(4):
            a(f"v_pk_mul_f32 v[{A+2*i}:{A+2*i+1}], v[{A+2*i}:{A+2*i+1}], v[{A+8+2*i}:{A+9+2*i}]")
        for i in range(4):
            a(f"v_cvt_pk_bf16_f32 v{36+4*(tb&1)+i}, v{A+2*i}, v{A+2*i+1}")
        a(f"buffer_store_dwordx4 v[{36+4*(tb&1)}:{39+4*(tb&1)}], v1, {WS}, s60 offen sc1")
        if "g" in DOUBLE: a(f"buffer_store_dwordx4 v[{36+4*(tb&1)}:{39+4*(tb&1)}], v1, {WS}, s60 offen")
        if tb < 3:
            a("s_add_u32 s60, s60, 114688")
    stamp(a, "p4")
    a(f"s_branch {ljoin}")
    a.label(lhelp)
    a.vmq = list(sv)
    dma(2); dma(3)
    a("v_lshlrev_b32 v3, 2, v0")
    a(f"s_mul_i32 s60, s{S_J}, 896")
    a(f"s_add_u32 s60, s60, {CSP}")
    for kq in range(4):
        for i in range(4):
            a.vm(f"buffer_load_dword v{32+4*kq+i}, v3, {WS}, s60 offen offset:{i*256} sc1", "cs")
        if kq < 3:
            a("s_add_u32 s60, s60, 14336")
    a.vm_wait(("H", 0))
    a("s_barrier")
    a.c("finish this workgroup's row statistics (partials of the 8 waves are in LDS) and publish them")
    a("v_and_b32 v2, 31, v0")
    a("v_lshlrev_b32 v64, 3, v2")
    a(f"v_add_u32 v65, {L3_ST}, v64")
    for ww in range(8):
        a(f"ds_read_b64 v[{66+2*ww}:{67+2*ww}], v65 offset:{ww*256}")
    a("s_waitcnt lgkmcnt(0)")
    for ww in range(1, 8):
        a(f"v_pk_add_f32 v[66:67], v[66:67], v[{66+2*ww}:{67+2*ww}]")
    a("v_lshlrev_b32 v64, 5, v2")
    a(f"s_lshl_b32 s60, s{S_TBK}, 10")
    a(f"s_lshl_b32 s61, s{S_HQ}, 3")
    a("s_add_u32 s60, s60, s61")
    a(f"s_add_u32 s60, s60, {HST}")
    a("s_mov_b32 exec_hi, 0")
    a.vm(f"buffer_store_dwordx2 v[66:67], v64, {WS}, s60 offen sc1", "hst")
    a("s_mov_b64 exec, -1")
    a.vm_wait_all()
    eflag_base(a, 60)
    a(f"s_lshl_b32 s61, s{S_J}, 7")
    a("s_add_u32 s60, s60, s61")
    set_flag(a, 60, 28)
    a("s_barrier")
    a("s_barrier")
    eflag_base(a, 60)
    poll_flags(a, 60, 16, 28, 2)
    a("v_lshlrev_b32 v2, 5, v0")
    a(f"s_lshl_b32 s60, s{S_G}, 12")
    a(f"s_add_u32 s60, s60, {HST}")
    for i in range(2):
        a(f"buffer_load_dwordx4 v[{8+8*i}:{11+8*i}], v2, {WS}, s60 offen offset:{i*2048} sc1")
        a(f"buffer_load_dwordx4 v[{12+8*i}:{15+8*i}], v2, {WS}, s60 offen offset:{i*2048+16} sc1")
    a.vm_wait_all()
    for i in range(2):
        b = 8 + 8 * i
        a(f"v_add_f32 v{b}, v{b}, v{b+2}")
        a(f"v_add_f32 v{b+4}, v{b+4}, v{b+6}")
        a(f"v_add_f32 v{b+1}, v{b+1}, v{b+3}")
        a(f"v_add_f32 v{b+5}, v{b+5}, v{b+7}")
        a(f"v_add_f32 v{b}, v{b}, v{b+4}")
        a(f"v_add_f32 v{b+1}, v{b+1}, v{b+5}")
        a(f"v_mul_f32 v{b}, {f32hex(1.0/512)}, v{b}")
        a(f"v_mul_f32 v{b+2}, v{b}, v{b}")
        a(f"v_mov_b32 v{b+3}, {f32hex(1.0/512)}")
        a(f"v_fma_f32 v{b+1}, v{b+1}, v{b+3}, -v{b+2}")
        a(f"v_max_f32 v{b+1}, 0, v{b+1}")
        a(f"v_add_f32 v{b+1}, {f32hex(1e-5)}, v{b+1}")
        a(f"v_rcp_f32 v{b+1}, v{b+1}")
    a("v_lshlrev_b32 v4, 3, v0")
    a(f"v_add_u32 v4, {L4_ST}, v4")
    a("ds_write_b64 v4, v[8:9]")
    a("ds_write_b64 v4, v[16:17] offset:512")
    for i in range(4):
        a(f"v_add_f32 v{32+i}, v{32+i}, v{36+i}")
        a(f"v_add_f32 v{40+i}, v{40+i}, v{44+i}")
        a(f"v_add_f32 v{32+i}, v{32+i}, v{40+i}")
    a(f"v_add_u32 v3, {L4_CS}, v3")
    for i in range(3):
        a(f"ds_write_b32 v3, v{32+i} offset:{i*256}")
    a("s_mov_b32 exec_hi, 0")
    a("ds_write_b32 v3, v35 offset:768")
    a("s_mov_b64 exec, -1")
    a("s_waitcnt lgkmcnt(0)")
    a("s_barrier")
    for u in range(28):
        ld_wd(a, u)
    a.label(ljoin)
    if not SENT_D:
        wg_publish(a, FLG_D, 28)
    a.vm_reset()
    stamp(a)

def p5(a):
    mk_srd(a, SRD_A, P_OUT, 2048 * 1024)
    a(f"s_lshr_b32 s72, s{S_J}, 3")
    a(f"s_lshl_b32 s61, s{S_G}, 2")
    a("s_lshl_b32 s62, s72, 1")
    a("s_add_u32 s61, s61, s62")
    a(f"s_mul_i32 s62, s{S_W}, 14336")
    a("s_mul_i32 s64, s61, 114688")
    a("s_add_u32 s64, s64, s62")
    a(f"s_add_u32 s64, s64, {HHF}")
    a("s_add_u32 s65, s64, 114688")
    a("v_lshrrev_b32 v2, 3, v0")
    a(f"s_lshl_b32 s62, s{S_W}, 3")
    a("v_add_u32 v2, s62, v2")
    a("v_and_b32 v3, 7, v0")
    a("v_lshrrev_b32 v4, 5, v2")
    a("v_lshlrev_b32 v4, 5, v4")
    a("v_lshrrev_b32 v5, 1, v3")
    a("v_add_u32 v4, v4, v5")
    a("v_lshlrev_b32 v4, 10, v4")
    a("v_and_b32 v5, 1, v3")
    a("v_lshlrev_b32 v5, 5, v5")
    a("v_and_b32 v6, 31, v2")
    a("v_add_u32 v5, v5, v6")
    a("v_lshl_add_u32 v4, v5, 4, v4")
    a("s_lshl_b32 s62, s61, 5")
    a("s_lshl_b32 s63, s77, 2")
    a("s_add_u32 s62, s62, s63")
    a("s_lshl_b32 s62, s62, 10")
    a(f"s_add_u32 s62, s62, {HF}")
    a(f"buffer_load_dwordx4 v[8:11], v4, {WS}, s62 offen sc1")
    stamp(a, "p4")
    if not SENT_D:
        wg_wait(a, FLG_D, None, 16, 28, 5)
    stamp(a); stamp(a, "p4")
    a("s_mov_b32 s62, s64"); a("s_mov_b32 s63, s65")
    retries = []
    BREG = [16, 24, 32, 40, 48, 56, 240, 248]
    ACC = 64
    a.vm_reset()
    def ldB(s):
        if s and (s & 3) == 0:
            a("s_add_u32 s64, s64, 4096"); a("s_add_u32 s65, s65, 4096")
        r = BREG[s % 8]
        a.vm(f"buffer_load_dwordx4 v[{r}:{r+3}], v1, {WS}, s64 offen offset:{(s&3)*1024} sc1", ("B", s))
        a.vm(f"buffer_load_dwordx4 v[{r+4}:{r+7}], v1, {WS}, s65 offen offset:{(s&3)*1024} sc1", ("B", s))
    for s in range(8):
        ldB(s)
    def check(r):
        a(f"v_max3_u32 v12, v{r}, v{r+1}, v{r+2}")
        a(f"v_max3_u32 v13, v{r+3}, v{r+4}, v{r+5}")
        a(f"v_max3_u32 v12, v{r+6}, v{r+7}, v12")
        a("v_max_u32 v12, v12, v13")
        a("v_cmp_eq_u32 vcc, -1, v12")
    stamp(a, "p5")
    for s in range(14):
        a.vm_wait(("B", s))
        if s in (0, 7): stamp(a, "p5")
        if SENT_D:
            lr = a.newlabel("rt"); lb = a.newlabel("rb")
            check(BREG[s % 8])
            a("s_nop 1")
            a(f"s_cbranch_vccnz {lr}")
            a.label(lb)
            retries.append((s, lr, lb))
        for ct in range(2):
            for tb in range(2):
                d = ACC + (ct * 2 + tb) * 16
                mfma(a, d, WD_R + (2 * s + ct) * 4, BREG[s % 8] + 4 * tb, None if s == 0 else d)
        if s + 8 < 14:
            ldB(s + 8)
    stamp(a); stamp(a, "p5")
    a("v_and_b32 v12, 31, v0")
    a("v_lshrrev_b32 v13, 5, v0")
    a("v_lshlrev_b32 v13, 1, v13")
    a("v_and_b32 v14, 7, v12")
    a("v_xor_b32 v13, v13, v14")
    a("v_lshlrev_b32 v12, 8, v12")
    a(f"s_lshl_b32 s62, s{S_W}, 14")
    a("v_add_u32 v12, s62, v12")
    for k, (rg, q) in enumerate([(0, 0), (0, 1), (1, 0), (1, 1)]):
        a(f"v_xor_b32 v{16+k}, {rg*4+q}, v13")
        a(f"v_lshl_add_u32 v{16+k}, v{16+k}, 4, v12")
    if SENT_D:
        lskip = a.newlabel("rskip")
        a(f"s_branch {lskip}")
        for (s_, lr, lb) in retries:
            r = BREG[s_ % 8]
            a.label(lr)
            a(f"s_mov_b32 s79, {SPIN}")
            lp = a.newlabel("rl")
            a.label(lp)
            a("s_sleep 2")
            a(f"s_add_u32 s60, s62, {(s_ >> 2) * 4096}")
            a(f"s_add_u32 s61, s63, {(s_ >> 2) * 4096}")
            a(f"buffer_load_dwordx4 v[{r}:{r+3}], v1, {WS}, s60 offen offset:{(s_&3)*1024} sc1")
            a(f"buffer_load_dwordx4 v[{r+4}:{r+7}], v1, {WS}, s61 offen offset:{(s_&3)*1024} sc1")
            a("s_waitcnt vmcnt(0)")
            check(r)
            a("s_nop 4")
            a(f"s_cbranch_vccz {lb}")
            a("s_sub_u32 s79, s79, 1")
            a("s_cmp_lg_u32 s79, 0")
            a(f"s_cbranch_scc1 {lp}")
            a(f"s_branch {lb}")
        a.label(lskip)
        a("s_barrier")
    a("s_nop 3")
    for ct in range(2):
        for tb in range(2):
            d = ACC + (ct * 2 + tb) * 16
            for k, (rg, q) in enumerate([(0, 0), (0, 1), (1, 0), (1, 1)]):
                r = d + 8 * rg + 4 * q
                a(f"ds_write_b128 v{16+k}, v[{r}:{r+3}] offset:{ct*128 + tb*8192}")
    stamp(a, "p5")
    a("s_waitcnt lgkmcnt(0)")
    stamp(a, "p5")
    a("s_barrier")
    stamp(a, "p5")
    a("v_and_b32 v12, 7, v2")
    a("v_lshlrev_b32 v13, 1, v3")
    a("v_xor_b32 v14, v13, v12")
    a("v_or_b32 v13, 1, v13")
    a("v_xor_b32 v15, v13, v12")
    a("v_lshlrev_b32 v14, 4, v14")
    a("v_lshlrev_b32 v15, 4, v15")
    a("v_lshl_add_u32 v14, v2, 8, v14")
    a("v_lshl_add_u32 v15, v2, 8, v15")
    a("v_add_u32 v12, 65536, v14")
    a("v_add_u32 v13, 65536, v15")
    for src in range(8):
        b0, b1 = ("v14", "v15") if src < 4 else ("v12", "v13")
        a(f"ds_read_b128 v[{16+8*src}:{19+8*src}], {b0} offset:{(src&3)*16384}")
        a(f"ds_read_b128 v[{20+8*src}:{23+8*src}], {b1} offset:{(src&3)*16384}")
        if src == 3: a("s_waitcnt lgkmcnt(4)")
    a("s_mov_b32 s62, 0xffff0000")
    for i in range(4):
        a(f"v_lshlrev_b32 v{80+2*i}, 16, v{8+i}")
        a(f"v_and_b32 v{81+2*i}, s62, v{8+i}")
    a("s_waitcnt lgkmcnt(0)")
    stamp(a, "p5")
    for src in range(1, 8):
        for i in range(4):
            a(f"v_pk_add_f32 v[{16+2*i}:{17+2*i}], v[{16+2*i}:{17+2*i}], v[{16+8*src+2*i}:{17+8*src+2*i}]")
    for i in range(4):
        a(f"v_pk_add_f32 v[{16+2*i}:{17+2*i}], v[{16+2*i}:{17+2*i}], v[{80+2*i}:{81+2*i}]")
    for i in range(4):
        a(f"v_cvt_pk_bf16_f32 v{8+i}, v{16+2*i}, v{17+2*i}")
    a("v_lshlrev_b32 v4, 10, v2")
    a("v_lshl_add_u32 v4, v3, 4, v4")
    a(f"s_lshl_b32 s62, s{S_G}, 17")
    a("s_lshl_b32 s63, s72, 16")
    a("s_add_u32 s62, s62, s63")
    a("s_lshl_b32 s63, s77, 7")
    a("s_add_u32 s62, s62, s63")
    a(f"buffer_store_dwordx4 v[8:11], v4, s[{SRD_A}:{SRD_A+3}], s62 offen {OUT_FLAGS}")

def build():
    a = Asm()
    label = G.NAME + "_kernel"
    a.raw(G.HEADER.rstrip("\n"))
    a.raw("; @launch grid=(256,1,1) block=(512,1,1) lds=163840")
    a.raw('.amdgcn_target "amdgcn-amd-amdhsa--gfx950"')
    a.raw(".text")
    a.raw(f".globl {label}")
    a.raw(".p2align 8")
    a.raw(f".type {label},@function")
    a.raw(f"{label}:")
    if PROFILE:
        a("s_memtime s[98:99]")
        a("s_memrealtime s[100:101]")
        for k in range(16): a(f"s_mov_b32 s{80+k}, 0")
    G.WS_USED = WS_USED
    G.prologue(a, "L_fin")
    a(f"s_add_u32 s60, s{P_WS}, {NONCE}")
    a(f"s_addc_u32 s61, s{P_WS+1}, 0")
    a(f"s_load_dword s{S_NONCE}, s[60:61], 0")
    phase0(a)
    attention(a)
    p3(a)
    p4(a)
    p5(a)
    lnn = a.newlabel("nn")
    a("s_cmp_lg_u32 s2, 0")
    a(f"s_cbranch_scc1 {lnn}")
    a(f"s_cmp_lg_u32 s{S_W}, 0")
    a(f"s_cbranch_scc1 {lnn}")
    a(f"s_mov_b32 s62, {NONCE}")
    set_flag(a, 62, 28)
    a.label(lnn)
    if PROFILE:
        a(f"s_cmp_lg_u32 s{S_W}, {PROF_WAVE}")
        a("s_cbranch_scc1 L_fin")
        a("s_waitcnt vmcnt(0) lgkmcnt(0)")
        a("s_memtime s[96:97]")
        a("s_memrealtime s[54:55]")
        a("s_waitcnt lgkmcnt(0)")
        for k in range(16):
            a(f"s_sub_u32 s{80+k}, s{80+k}, s98")
            a(f"v_mov_b32 v{k}, s{80+k}")
        a("s_sub_u32 s96, s96, s98")
        a("s_sub_u32 s54, s54, s100")
        a("v_mov_b32 v16, s96")
        a("v_mov_b32 v17, s54")
        a("v_mov_b32 v18, s100")
        a("v_mov_b32 v19, 0")
        a("s_mul_i32 s54, s2, 128")
        a(f"s_add_u32 s54, s54, {PROF}")
        a("v_mov_b32 v20, 0")
        a("s_mov_b64 exec, 1")
        for q in range(5):
            a(f"buffer_store_dwordx4 v[{4*q}:{4*q+3}], v20, {WS}, s54 offen offset:{16*q}")
    a.label("L_fin")
    a("s_endpgm")
    a.raw('.section .rodata,"a"')
    a.raw(".p2align 6")
    G.descriptor(a, label, 256)
    return a.text()

if __name__ == "__main__":
    open(sys.argv[1], "w").write(build())
```

```python
import os, sys
from asmlib import Asm
import gen as G
from gen import (S_W, S_G, S_J, S_TBK, S_HQ, S_TQ, SRD_WS, SRD_A, SRD_B, SRD_C, SRD_D, mk_srd, f32hex,
                 dpp_sum16, xhalf, xrow16, OF, HF, KF, VF, HST, CSP, WOF, WDF, WGF, HHF, QSCALE,
                 P_X, P_WQ, P_WK, P_WV, P_WO, P_WG, P_WU, P_WD, P_OUT, P_DBG, P_WS)
from kernels2 import mfma
WS = f"s[{SRD_WS}:{SRD_WS+3}]"
FLG = 0x1410000
FLG_A, FLG_W, FLG_E, FLG_X = FLG, FLG + 64*128, FLG + 320*128, FLG + 576*128
FLG_B, FLG_C, FLG_D = FLG + 1024*128, FLG + 3072*128, FLG + 5120*128
NONCE = FLG + 7168*128
S_NONCE = 56
PROF = 0x1400000
WS_USED = 0x1500000
SPIN = 400000
S_LOCAL = 69
LOCAL_OK = os.environ.get('LOCAL_OK', '1') == '1'
PRIO2 = os.environ.get('PRIO2', '1') == '1'
DOUBLE = os.environ.get('DOUBLE', '')
ZROWS = os.environ.get('ZROWS', '1') == '1'
OUT_FLAGS = os.environ.get('OUT_FLAGS', '')
POLL_DELAY = int(os.environ.get('POLL_DELAY', '0'))
SENT_D = os.environ.get('SENT_D', '0') == '1'
FULL_LINE = os.environ.get('FULL_LINE', '1') == '1'
POLL_SLEEP = int(os.environ.get('POLL_SLEEP', '2'))
PROFILE = G.PROFILE
PROF_WAVE = G.PROF_WAVE
PRIO = os.environ.get("PRIO", "1") == "1"
NST = [0]
STAMPSET = os.environ.get("STAMPSET", "main")
def stamp(a, kind="main"):
    if not PROFILE: return
    if kind != STAMPSET: return
    k = NST[0]; NST[0] += 1
    assert k < 16
    a("s_waitcnt lgkmcnt(0)")
    a("s_memtime s[96:97]")
    a("s_waitcnt lgkmcnt(0)")
    a(f"s_mov_b32 s{80+k}, s96")

def spin_begin(a, name):
    l = a.newlabel(name)
    a(f"s_mov_b32 s79, {SPIN}")
    a.label(l)
    return l
def spin_end(a, l, done, sleep=1):
    a("s_nop 4")
    a(f"s_cbranch_vccz {done}")
    a(f"s_sleep {sleep}")
    a("s_sub_u32 s79, s79, 1")
    a("s_cmp_lg_u32 s79, 0")
    a(f"s_cbranch_scc1 {l}")
    a.label(done)

def gstore(a, instr, vm_tag=None):
    if not LOCAL_OK:
        a(instr + " sc1"); return
    lf = a.newlabel("gl"); le = a.newlabel("ge")
    a(f"s_cmp_eq_u32 s{S_LOCAL}, 1")
    a(f"s_cbranch_scc1 {lf}")
    a(instr + " sc1")
    a(f"s_branch {le}")
    a.label(lf)
    a(instr)
    a.label(le)

def poll_flags(a, soff_reg, nlanes, vtmp, voff, sleep=1, shift=7):
    done = a.newlabel("pd")
    a(f"v_lshlrev_b32 v{voff}, {shift}, v0")
    if nlanes < 64:
        a(f"s_mov_b64 exec, {hex((1 << nlanes) - 1)}")
    l = spin_begin(a, "pl")
    a(f"buffer_load_dword v{vtmp}, v{voff}, {WS}, s{soff_reg} offen sc1")
    a("s_waitcnt vmcnt(0)")
    a(f"v_cmp_ne_u32 vcc, s{S_NONCE}, v{vtmp}")
    spin_end(a, l, done, sleep)
    if nlanes < 64:
        a("s_mov_b64 exec, -1")

def set_flag(a, soff_reg, vtmp, fast_ok=False):
    a(f"v_mov_b32 v{vtmp}, s{S_NONCE}")
    if FULL_LINE:
        a(f"v_lshlrev_b32 v{vtmp+1}, 2, v0")
        a("s_mov_b32 exec_hi, 0")
    else:
        a(f"v_mov_b32 v{vtmp+1}, 0")
        a("s_mov_b64 exec, 1")
    if fast_ok:
        gstore(a, f"buffer_store_dword v{vtmp}, v{vtmp+1}, {WS}, s{soff_reg} offen")
    else:
        a(f"buffer_store_dword v{vtmp}, v{vtmp+1}, {WS}, s{soff_reg} offen sc1")
    a("s_mov_b64 exec, -1")

L_XN, L_WQ, L_WK, L_WV = 0, 32768, 131072, 147456
QSAVE = 244

def phase0(a):
    mk_srd(a, SRD_A, P_X, 2048 * 1024)
    mk_srd(a, SRD_B, P_WQ, 512 * 1024)
    a(f"s_lshl_b32 s54, s{S_TBK}, 5")
    a(f"s_lshl_b32 s55, s{S_W}, 2")
    a("s_add_u32 s54, s54, s55")
    a("v_lshrrev_b32 v2, 4, v0")
    a("v_and_b32 v3, 15, v0")
    a("v_add_u32 v4, s54, v2")
    a("v_lshlrev_b32 v4, 10, v4")
    a("v_lshl_add_u32 v4, v3, 4, v4")
    for i in range(4):
        a(f"buffer_load_dwordx4 v[{16+4*i}:{19+4*i}], v4, s[{SRD_A}:{SRD_A+3}], 0 offen offset:{256*i}")
    a("v_lshlrev_b32 v6, 4, v0")
    lskip = a.newlabel("nokv"); lj = a.newlabel("kvj")
    a(f"s_cmp_lg_u32 s{S_HQ}, 0")
    a(f"s_cbranch_scc1 {lskip}")
    mk_srd(a, SRD_C, P_WK, 16384)
    mk_srd(a, SRD_D, P_WV, 16384)
    a(f"s_lshl_b32 s60, s{S_W}, 11")
    for i in range(2):
        a(f"s_add_u32 s61, s60, {i*1024}")
        a(f"s_add_u32 m0, s61, {L_WK}")
        a("s_nop 0")
        a(f"buffer_load_dwordx4 v6, s[{SRD_C}:{SRD_C+3}], s61 offen lds")
        a(f"s_add_u32 m0, s61, {L_WV}")
        a("s_nop 0")
        a(f"buffer_load_dwordx4 v6, s[{SRD_D}:{SRD_D+3}], s61 offen lds")
    a.label(lskip)
    a("v_lshlrev_b32 v5, 2, v2")
    a("v_xor_b32 v5, v3, v5")
    a("v_lshlrev_b32 v5, 4, v5")
    a("v_lshl_add_u32 v5, v2, 10, v5")
    a(f"s_lshl_b32 s55, s{S_HQ}, 8")
    a("v_add_u32 v5, s55, v5")
    a(f"s_lshl_b32 s62, s{S_W}, 12")
    a(f"s_add_u32 s62, s62, {L_WQ}")
    a(f"s_lshl_b32 s63, s{S_W}, 14")
    def wq_dma(q):
        for i in range(4):
            a(f"s_add_u32 m0, s62, {q * 32768 + i * 1024}")
            a(f"s_add_u32 s64, s63, {(q * 128 + 4 * i) * 1024}")
            a(f"buffer_load_dwordx4 v5, s[{SRD_B}:{SRD_B+3}], s64 offen lds")
    wq_dma(0)
    stamp(a, "p0")
    a("s_waitcnt vmcnt(4)")
    stamp(a); stamp(a, "p0")
    b = Asm()
    if True:
        b("s_mov_b32 s60, 0x3f803f80")
        for r in range(4): b(f"v_mov_b32 v{32+r}, 0")
        for i in range(16):
            b(f"v_dot2_f32_bf16 v{32 + (i & 1)}, v{16+i}, s60, v{32 + (i & 1)}")
            b(f"v_dot2_f32_bf16 v{34 + (i & 1)}, v{16+i}, v{16+i}, v{34 + (i & 1)}")
        b("s_mov_b32 s61, 0xffff0000")
        for i in range(4):
            b(f"v_lshlrev_b32 v{64+2*i}, 16, v{16+i}")
            b(f"v_and_b32 v{65+2*i}, s61, v{16+i}")
        b("v_add_f32 v32, v32, v33")
        b("v_add_f32 v34, v34, v35")
        for n, sh in enumerate((8, 4, 2, 1)):
            for i in range(4 + 3*n, 7 + 3*n):
                b(f"v_lshlrev_b32 v{64+2*i}, 16, v{16+i}")
                b(f"v_and_b32 v{65+2*i}, s61, v{16+i}")
            b(f"v_add_f32_dpp v32, v32, v32 row_ror:{sh} row_mask:0xf bank_mask:0xf")
            b(f"v_add_f32_dpp v34, v34, v34 row_ror:{sh} row_mask:0xf bank_mask:0xf")
        b(f"v_mul_f32 v32, {f32hex(1.0/512)}, v32")
        b("v_mul_f32 v33, v32, v32")
        b(f"v_mov_b32 v35, {f32hex(1.0/512)}")
        b("v_fma_f32 v34, v34, v35, -v33")
        b("v_max_f32 v34, 0, v34")
        b(f"v_add_f32 v34, {f32hex(1e-5)}, v34")
        b("v_rsq_f32 v38, v34")
        b.c("XN write addr")
        b(f"s_lshl_b32 s55, s{S_W}, 2")
        b("v_add_u32 v7, s55, v2")
        b("v_mov_b32 v39, v38")
        b("v_mul_f32 v36, v32, v38")
        b("v_sub_f32 v36, 0, v36")
        b("v_mov_b32 v37, v36")
        for i in range(16):
            b(f"v_pk_fma_f32 v[{64+2*i}:{65+2*i}], v[{64+2*i}:{65+2*i}], v[38:39], v[36:37]")
        b("v_and_b32 v8, 7, v3")
        b("v_xor_b32 v7, v7, v8")
        b("v_lshlrev_b32 v7, 4, v7")
        b("v_lshrrev_b32 v8, 1, v3")
        b("v_lshl_add_u32 v7, v8, 10, v7")
        b("v_and_b32 v8, 1, v3")
        b("v_lshl_add_u32 v7, v8, 9, v7")
        for i in range(4):
            for e in range(4):
                b(f"v_cvt_pk_bf16_f32 v{16+4*i+e}, v{64+8*i+2*e}, v{65+8*i+2*e}")
            b(f"ds_write_b128 v7, v[{16+4*i}:{19+4*i}] offset:{L_XN + i*8192}")

    a.L.extend(b.L)
    wq_dma(1); wq_dma(2)
    a("v_lshrrev_b32 v8, 5, v0")
    a("v_and_b32 v9, 31, v0")
    for m in range(4):
        a(f"v_add_u32 v10, {2*m}, v8")
        a("v_xor_b32 v10, v9, v10")
        a("v_lshlrev_b32 v10, 4, v10")
        a(f"v_lshl_add_u32 v{40+m}, v8, 9, v10")
    a("v_lshrrev_b32 v10, 2, v3")
    a("v_and_b32 v11, 3, v3")
    a("v_lshl_add_u32 v12, v8, 3, v10")
    a.c("wq fragment rows 0..15 = head 2p, rows 16..31 = head 2p+1 ; chunk = 4p + 2blk + (cg>>1), swizzled by r4<<2")
    a(f"s_and_b32 s55, s{S_W}, 3")
    a("s_lshl_b32 s55, s55, 2")
    a("v_lshrrev_b32 v13, 1, v11")
    a("v_add_u32 v13, s55, v13")
    a("v_and_b32 v14, 1, v2")
    a("v_lshl_add_u32 v13, v14, 1, v13")
    a("v_lshlrev_b32 v14, 2, v10")
    a("v_xor_b32 v13, v13, v14")
    a("v_lshlrev_b32 v13, 4, v13")
    a("v_lshl_add_u32 v13, v12, 8, v13")
    a("v_and_b32 v14, 1, v11")
    a("v_lshl_add_u32 v13, v14, 3, v13")
    a(f"s_lshr_b32 s55, s{S_W}, 2")
    a("s_lshl_b32 s55, s55, 12")
    a(f"s_add_u32 s55, s55, {L_WQ}")
    a("v_add_u32 v44, s55, v13")
    stamp(a, "p0")
    a("s_waitcnt lgkmcnt(0)")
    a.c("launch tag: a fixed-point-free bijection of the tag the previous launch left (any value works)")
    a(f"s_mul_i32 s{S_NONCE}, s{S_NONCE}, 0x9E3779B1")
    a(f"s_add_u32 s{S_NONCE}, s{S_NONCE}, 0x7F4A7C15")
    a("s_barrier")
    stamp(a); stamp(a, "p0")
    lx = a.newlabel("xid")
    a(f"s_cmp_lg_u32 s{S_W}, 3")
    a(f"s_cbranch_scc1 {lx}")
    a.c("tell the other members of the group which XCD this workgroup runs on")
    a("s_getreg_b32 s55, hwreg(HW_REG_XCC_ID, 0, 4)")
    a(f"v_mov_b32 v50, s{S_NONCE}")
    a("v_mov_b32 v51, s55")
    a("v_lshlrev_b32 v52, 3, v0")
    a(f"s_lshl_b32 s55, s{S_G}, 4")
    a(f"s_add_u32 s55, s55, s{S_J}")
    a("s_lshl_b32 s55, s55, 7")
    a(f"s_add_u32 s55, s55, {FLG_X}")
    a("s_mov_b64 exec, 0xffff")
    a(f"buffer_store_dwordx2 v[50:51], v52, {WS}, s55 offen sc1")
    a("s_mov_b64 exec, -1")
    a.label(lx)
    lkvd = a.newlabel("kvdone"); lkv1 = a.newlabel("kv1"); lkv0 = a.newlabel("kv0")
    a(f"s_cmp_eq_u32 s{S_HQ}, 0")
    a(f"s_cbranch_scc1 {lkv0}")
    wq_dma(3)
    a(f"s_branch {lkv1}")
    a.label(lkv0)
    a.c("tr addr: blk0 -> WV, blk1 -> WK ; row (64w + 16e + 8khalf + 4rd + r4)*32 + cg*8")
    a("v_lshlrev_b32 v13, 5, v12")
    a("v_lshl_add_u32 v13, v11, 3, v13")
    a(f"s_lshl_b32 s55, s{S_W}, 11")
    a("v_add_u32 v13, s55, v13")
    a("v_and_b32 v14, 1, v2")
    a(f"v_mov_b32 v15, {L_WV}")
    a(f"v_mov_b32 v45, {L_WK}")
    a("v_cmp_eq_u32 vcc, 1, v14")
    a("s_nop 1")
    a("v_cndmask_b32 v15, v15, v45, vcc")
    a("v_add_u32 v13, v13, v15")
    a.c("xn frags for k-steps 4w..4w+3 : s&3 = e")
    a(f"s_lshl_b32 s55, s{S_W}, 12")
    for e in range(4):
        a(f"v_add_u32 v{46+e}, s55, v{40+e}")
    for e in range(4):
        a(f"ds_read_b64_tr_b16 v[{64+4*e}:{65+4*e}], v13 offset:{e*512}")
        a(f"ds_read_b64_tr_b16 v[{66+4*e}:{67+4*e}], v13 offset:{e*512+128}")
        a(f"ds_read_b128 v[{80+4*e}:{83+4*e}], v{46+e} offset:{L_XN + e*1024}")
    for e in range(4):
        a(f"s_waitcnt lgkmcnt({9-3*e})")
        mfma(a, 96, 64 + 4 * e, 80 + 4 * e, None if e == 0 else 96)
    a.c("RED: q=0,1 -> WK + w*2048 + q*1024 ; q=2,3 -> WV + w*2048 + (q-2)*1024  (own, already consumed rows)")
    a(f"s_lshl_b32 s55, s{S_W}, 11")
    a(f"s_add_u32 s55, s55, {L_WK}")
    a("v_add_u32 v14, s55, v6")
    a(f"v_add_u32 v15, {L_WV - L_WK}, v14")
    a("s_nop 10")
    a("ds_write_b128 v14, v[96:99]")
    a("ds_write_b128 v14, v[100:103] offset:1024")
    a("ds_write_b128 v15, v[104:107]")
    a("ds_write_b128 v15, v[108:111] offset:1024")
    a.label(lkv1)
    stamp(a, "p0")
    a("s_waitcnt vmcnt(8) lgkmcnt(0)")
    stamp(a, "p0")
    a("s_barrier")
    stamp(a, "p0")
    a(f"s_cmp_lg_u32 s{S_HQ}, 0")
    a(f"s_cbranch_scc1 {lkvd}")
    lv = a.newlabel("kv_v")
    a(f"s_cmp_eq_u32 s{S_W}, 1")
    a(f"s_cbranch_scc1 {lv}")
    a(f"s_cmp_lg_u32 s{S_W}, 0")
    a(f"s_cbranch_scc1 {lkvd}")
    def red8(base):
        a(f"v_add_u32 v14, {base}, v6")
        for ww in range(8):
            a(f"ds_read_b128 v[{64+8*ww}:{67+8*ww}], v14 offset:{ww*2048}")
            a(f"ds_read_b128 v[{68+8*ww}:{71+8*ww}], v14 offset:{ww*2048+1024}")
            if ww == 3: a("s_waitcnt lgkmcnt(4)")
        a("s_waitcnt lgkmcnt(0)")
        for ww in range(1, 8):
            for i in range(4):
                a(f"v_pk_add_f32 v[{64+2*i}:{65+2*i}], v[{64+2*i}:{65+2*i}], v[{64+8*ww+2*i}:{65+8*ww+2*i}]")
        for r in range(4):
            a(f"v_cvt_pk_bf16_f32 v{76+r}, v{64+2*r}, v{65+2*r}")
    red8(L_WV)
    a(f"s_lshl_b32 s55, s{S_TBK}, 10")
    a(f"s_add_u32 s55, s55, {KF}")
    a(f"buffer_store_dwordx4 v[76:79], v6, {WS}, s55 offen sc1")
    a("v_mov_b32 v80, 0")
    for r in range(4):
        a(f"v_dot2_f32_bf16 v80, v{76+r}, v{76+r}, v80")
    a("s_nop 2")
    xhalf(a, 80, 81, "v_add_f32")
    dpp_sum16(a, 80, "v_max_f32")
    xrow16(a, 80, 81, "v_max_f32")
    a(f"v_mov_b32 v{QSAVE+9}, v80")
    a(f"s_branch {lkvd}")
    a.label(lv)
    red8(L_WK)
    a("v_lshlrev_b32 v80, 5, v9")
    a("v_lshl_add_u32 v80, v8, 3, v80")
    a(f"v_add_u32 v80, {L_WK}, v80")
    a("ds_write_b64 v80, v[76:77]")
    a("ds_write_b64 v80, v[78:79] offset:16")
    a("v_lshl_add_u32 v81, v8, 2, v10")
    a("v_lshlrev_b32 v81, 5, v81")
    a("v_and_b32 v82, 1, v11")
    a("v_lshlrev_b32 v82, 1, v82")
    a("v_lshrrev_b32 v83, 1, v11")
    a("v_add_u32 v82, v82, v83")
    a("v_lshl_add_u32 v81, v82, 3, v81")
    a(f"v_add_u32 v81, {L_WK}, v81")
    a("s_waitcnt lgkmcnt(0)")
    for c2 in range(2):
        for rd in range(2):
            d = 84 + 4 * c2 + 2 * rd
            a(f"ds_read_b64_tr_b16 v[{d}:{d+1}], v81 offset:{(16*c2 + 8*rd) * 32}")
    a("v_lshl_add_u32 v82, v8, 4, v3")
    a("v_lshlrev_b32 v82, 4, v82")
    a(f"s_lshl_b32 s55, s{S_TBK}, 10")
    a(f"s_add_u32 s55, s55, {VF}")
    a("s_waitcnt lgkmcnt(0)")
    a("s_mov_b32 exec_lo, 0x0000ffff")
    a("s_mov_b32 exec_hi, 0x0000ffff")
    a(f"buffer_store_dwordx4 v[84:87], v82, {WS}, s55 offen sc1")
    a(f"buffer_store_dwordx4 v[88:91], v82, {WS}, s55 offen offset:512 sc1")
    a("s_mov_b64 exec, -1")
    a.label(lkvd)
    a("v_add_u32 v45, 1024, v44")
    stamp(a, "p0")
    def publish_kv():
        lnf = a.newlabel("noflag")
        a(f"s_cmp_lg_u32 s{S_HQ}, 0")
        a(f"s_cbranch_scc1 {lnf}")
        a(f"s_cmp_lg_u32 s{S_W}, 0")
        a(f"s_cbranch_scc1 {lnf}")
        a(f"s_lshl_b32 s55, s{S_TBK}, 7")
        a(f"s_add_u32 s55, s55, {FLG_A}")
        a("v_lshlrev_b32 v80, 3, v0")
        a(f"v_mov_b32 v{QSAVE+8}, s{S_NONCE}")
        a("s_mov_b64 exec, 0xffff")
        a(f"buffer_store_dwordx2 v[{QSAVE+8}:{QSAVE+9}], v80, {WS}, s55 offen sc1")
        a("s_mov_b64 exec, -1")
        a.label(lnf)
    ACC = 96
    AB = [112, 116, 120]; BB = [124, 128, 132]
    a.c("x fragment addresses: k-step s = 2u + kh, swizzle index s&3 = (2(u&1) + kh)")
    a(f"s_lshr_b32 s55, s{S_W}, 2")
    a("s_cmp_eq_u32 s55, 0")
    a("s_cselect_b64 vcc, -1, 0")
    a("s_lshl_b32 s55, s55, 10")
    a("v_cndmask_b32 v46, v41, v40, vcc")
    a("v_cndmask_b32 v47, v43, v42, vcc")
    a("v_add_u32 v46, s55, v46")
    a("v_add_u32 v47, s55, v47")
    def issue(u):
        A = AB[u % 3]; B = BB[u % 3]
        a.lg(f"ds_read_b64_tr_b16 v[{A}:{A+1}], v44", u)
        a.lg(f"ds_read_b64_tr_b16 v[{A+2}:{A+3}], v45", u)
        a.lg(f"ds_read_b128 v[{B}:{B+3}], v{46 + (u & 1)} offset:{L_XN + u*2048}", u)
        a("v_add_u32 v44, 8192, v44"); a("v_add_u32 v45, 8192, v45")
    a.lgq = []
    issue(0); issue(1)
    for u in range(16):
        if u + 2 < 16:
            if u + 2 == 4:
                a("s_waitcnt vmcnt(0)")
                a("s_barrier")
                stamp(a, "p0"); a.lgq = [] if PROFILE and STAMPSET == "p0" else a.lgq
                publish_kv()
                l3 = a.newlabel("q3b")
                a(f"s_cmp_lg_u32 s{S_HQ}, 0")
                a(f"s_cbranch_scc1 {l3}")
                wq_dma(3)
                a.label(l3)
            if u + 2 == 12:
                a("s_waitcnt vmcnt(0)")
                a("s_barrier")
            issue(u + 2)
        a.lg_wait(u)
        mfma(a, ACC, AB[u % 3], BB[u % 3], None if u == 0 else ACC)
    a.c("add the other half of the k range (wave w ^ 4); exchange through wq slot 0")
    a(f"s_lshl_b32 s55, s{S_W}, 12")
    a(f"s_add_u32 s55, s55, {L_WQ}")
    a("v_add_u32 v14, s55, v6")
    a(f"s_xor_b32 s55, s{S_W}, 4")
    a("s_lshl_b32 s55, s55, 12")
    a(f"s_add_u32 s55, s55, {L_WQ}")
    a("v_add_u32 v15, s55, v6")
    a("s_nop 9")
    for q in range(4):
        a(f"ds_write_b128 v14, v[{ACC+4*q}:{ACC+4*q+3}] offset:{q*1024}")
    a("s_waitcnt lgkmcnt(0)")
    a("s_barrier")
    for q in range(4):
        a(f"ds_read_b128 v[{64+4*q}:{67+4*q}], v15 offset:{q*1024}")
    a(f"v_mov_b32 v36, {f32hex(QSCALE)}")
    a("v_mov_b32 v37, v36")
    a("s_waitcnt lgkmcnt(0)")
    for i in range(8):
        a(f"v_pk_add_f32 v[{64+2*i}:{65+2*i}], v[{64+2*i}:{65+2*i}], v[{ACC+2*i}:{ACC+2*i+1}]")
    for i in range(8):
        a(f"v_pk_mul_f32 v[{64+2*i}:{65+2*i}], v[{64+2*i}:{65+2*i}], v[36:37]")
    for r in range(8):
        a(f"v_cvt_pk_bf16_f32 v{QSAVE+r}, v{64+2*r}, v{65+2*r}")
    stamp(a); stamp(a, "p0")
    a("s_barrier")
    stamp(a, "p0")

L_SCR = 131072
S_JOB = 78
V_WJS, V_WJT, V_WJC = 140, 141, 142
SRD_J1, SRD_J2 = 20, 36
def wj_setup(a):
    a("v_lshrrev_b32 v143, 4, v0")
    a("v_and_b32 v144, 15, v0")
    a("v_lshrrev_b32 v145, 5, v0")
    a("v_lshrrev_b32 v146, 2, v144")
    a("v_and_b32 v147, 3, v144")
    a("v_and_b32 v148, 1, v147")
    a("v_lshlrev_b32 v148, 1, v148")
    a("v_lshrrev_b32 v149, 1, v147")
    a("v_add_u32 v148, v148, v149")
    a("v_lshlrev_b32 v148, 3, v148")
    a("v_and_b32 v149, 1, v143")
    a("v_lshl_add_u32 v150, v145, 3, v146")
    a(f"s_lshl_b32 s57, s{S_W}, 12")
    a(f"s_add_u32 s57, s57, {L_SCR}")
    a(f"s_mov_b32 s{S_JOB}, 0")
    lo = a.newlabel("wjo"); ld = a.newlabel("wjd")
    a("s_cmp_ge_u32 s2, 112")
    a(f"s_cbranch_scc1 {lo}")
    a(f"s_mov_b32 s{S_JOB}, 1")
    a("s_lshr_b32 s60, s2, 2")
    a("s_and_b32 s61, s2, 3")
    a("s_lshl_b32 s62, s61, 3")
    a(f"s_add_u32 s62, s62, s{S_W}")
    mk_srd(a, SRD_J1, P_WG, 512 * 3584)
    mk_srd(a, SRD_J2, P_WU, 512 * 3584)
    a("v_lshrrev_b32 v151, 3, v0")
    a("s_mov_b32 s63, 3584")
    a("v_mul_lo_u32 v151, v151, s63")
    a("v_and_b32 v152, 7, v0")
    a(f"v_lshl_add_u32 v{V_WJS}, v152, 4, v151")
    a("s_mul_i32 s58, s62, 57344")
    a("s_lshl_b32 s63, s60, 7")
    a("s_add_u32 s58, s58, s63")
    a("v_lshlrev_b32 v151, 7, v150")
    a("v_lshl_add_u32 v151, v149, 11, v151")
    a("v_add_u32 v151, v151, v148")
    a(f"v_add_u32 v{V_WJT}, s57, v151")
    a("s_lshl_b32 s59, s60, 7")
    a("s_add_u32 s59, s59, s62")
    a("s_lshl_b32 s59, s59, 10")
    a(f"s_add_u32 s59, s59, {WGF}")
    a("s_mul_i32 s72, s61, 112")
    a("s_lshl_b32 s63, s60, 2")
    a("s_add_u32 s72, s72, s63")
    a("s_lshl_b32 s72, s72, 7")
    a(f"s_add_u32 s72, s72, {CSP}")
    a("v_lshlrev_b32 v151, 2, v0")
    a(f"v_add_u32 v{V_WJC}, s57, v151")
    a.c("warm the L2 with the 16 source rows (one 128-byte line per row and matrix)")
    a("v_and_b32 v151, 15, v0")
    a("s_mov_b32 s63, 3584")
    a("v_mul_lo_u32 v151, v151, s63")
    a(f"buffer_load_dword v153, v151, s[{SRD_J1}:{SRD_J1+3}], s58 offen")
    a(f"buffer_load_dword v154, v151, s[{SRD_J2}:{SRD_J2+3}], s58 offen")
    a(f"s_branch {ld}")
    a.label(lo)
    a("s_cmp_ge_u32 s2, 184")
    a(f"s_cbranch_scc1 {ld}")
    a("s_sub_u32 s60, s2, 112")
    a("s_lshl_b32 s60, s60, 3")
    a(f"s_add_u32 s60, s60, s{S_W}")
    lwd = a.newlabel("wjwd")
    a("s_cmp_ge_u32 s60, 128")
    a(f"s_cbranch_scc1 {lwd}")
    a(f"s_mov_b32 s{S_JOB}, 3")
    mk_srd(a, SRD_J1, P_WO, 512 * 1024)
    a("s_lshr_b32 s61, s60, 3")
    a("s_and_b32 s62, s60, 7")
    a("v_lshrrev_b32 v151, 3, v0")
    a("v_lshlrev_b32 v151, 10, v151")
    a("v_and_b32 v152, 7, v0")
    a(f"v_lshl_add_u32 v{V_WJS}, v152, 4, v151")
    a("s_lshl_b32 s58, s61, 15")
    a("s_lshl_b32 s60, s62, 7")
    a("s_add_u32 s58, s58, s60")
    a("s_mov_b32 s69, 8192")
    a("v_lshl_add_u32 v151, v143, 3, v146")
    a("v_lshlrev_b32 v151, 7, v151")
    a("v_lshl_add_u32 v151, v147, 3, v151")
    a(f"v_add_u32 v{V_WJT}, s57, v151")
    a("s_lshl_b32 s59, s62, 6")
    a("s_add_u32 s59, s59, s61")
    a("s_lshl_b32 s59, s59, 10")
    a(f"s_add_u32 s59, s59, {WOF}")
    a("s_mov_b32 s72, 16384")
    a("v_and_b32 v151, 31, v0")
    a("v_lshlrev_b32 v151, 10, v151")
    a(f"buffer_load_dword v153, v151, s[{SRD_J1}:{SRD_J1+3}], s58 offen")
    a(f"s_branch {ld}")
    a.label(lwd)
    a(f"s_mov_b32 s{S_JOB}, 2")
    a("s_sub_u32 s60, s60, 128")
    mk_srd(a, SRD_J1, P_WD, 1792 * 1024)
    a("s_lshr_b32 s61, s60, 2")
    a("s_and_b32 s62, s60, 3")
    a("v_lshlrev_b32 v151, 10, v143")
    a(f"v_lshl_add_u32 v{V_WJS}, v144, 4, v151")
    a("s_lshl_b32 s58, s61, 14")
    a("s_lshl_b32 s60, s62, 8")
    a("s_add_u32 s58, s58, s60")
    a("s_mov_b32 s69, 4096")
    a("v_lshlrev_b32 v151, 8, v150")
    a("v_lshl_add_u32 v151, v149, 5, v151")
    a("v_add_u32 v151, v151, v148")
    a(f"v_add_u32 v{V_WJT}, s57, v151")
    a("s_lshl_b32 s59, s62, 2")
    a("s_mul_i32 s59, s59, 112")
    a("s_add_u32 s59, s59, s61")
    a("s_lshl_b32 s59, s59, 10")
    a(f"s_add_u32 s59, s59, {WDF}")
    a(f"s_mov_b32 s72, {112*1024}")
    a("v_and_b32 v151, 31, v0")
    a("v_lshrrev_b32 v152, 1, v151")
    a("v_lshlrev_b32 v152, 10, v152")
    a("v_and_b32 v151, 1, v151")
    a("v_lshl_add_u32 v151, v151, 7, v152")
    a(f"buffer_load_dword v153, v151, s[{SRD_J1}:{SRD_J1+3}], s58 offen")
    a.label(ld)

def wj_branch(a, g_code, o_code):
    lo = a.newlabel("jo"); le = a.newlabel("je")
    a(f"s_cmp_eq_u32 s{S_JOB}, 1")
    a(f"s_cbranch_scc0 {lo}")
    if g_code: g_code()
    a(f"s_branch {le}")
    a.label(lo)
    if o_code:
        a(f"s_cmp_eq_u32 s{S_JOB}, 0")
        a(f"s_cbranch_scc1 {le}")
        o_code()
    a.label(le)

def wj_issue(a, part=None):
    def g():
        for i in ([0, 1] if part is None else [part]):
            a(f"s_add_u32 m0, s57, {i*1024}")
            a(f"s_add_u32 s63, s58, {i*8*3584}")
            a(f"buffer_load_dwordx4 v{V_WJS}, s[{SRD_J1}:{SRD_J1+3}], s63 offen lds")
            a(f"s_add_u32 m0, s57, {2048 + i*1024}")
            a("s_nop 0")
            a(f"buffer_load_dwordx4 v{V_WJS}, s[{SRD_J2}:{SRD_J2+3}], s63 offen lds")
    def o():
        for i in (range(4) if part is None else [2 * part, 2 * part + 1]):
            a(f"s_add_u32 m0, s57, {i*1024}")
            a(f"s_mul_i32 s63, s69, {i}")
            a(f"s_add_u32 s63, s63, s58")
            a(f"buffer_load_dwordx4 v{V_WJS}, s[{SRD_J1}:{SRD_J1+3}], s63 offen lds")
    wj_branch(a, g, o)

def wj_read(a, n_younger):
    def rd(st, rdoff):
        def f():
            a(f"s_waitcnt vmcnt({n_younger})")
            for q in range(4):
                d = 112 + 4 * q
                a(f"ds_read_b64_tr_b16 v[{d}:{d+1}], v{V_WJT} offset:{q*st}")
                a(f"ds_read_b64_tr_b16 v[{d+2}:{d+3}], v{V_WJT} offset:{q*st + rdoff}")
        return f
    l2 = a.newlabel("jr2"); le = a.newlabel("jre")
    a(f"s_cmp_eq_u32 s{S_JOB}, 0")
    a(f"s_cbranch_scc1 {le}")
    a(f"s_cmp_eq_u32 s{S_JOB}, 2")
    a(f"s_cbranch_scc1 {l2}")
    rd(32, 512)()
    a(f"s_branch {le}")
    a.label(l2)
    rd(64, 1024)()
    a.label(le)

def wj_store(a):
    def g():
        for r in range(4):
            a(f"v_mov_b32 v{128+r}, 0x3f803f80")
        for q in range(4):
            d = 112 + 4 * q
            a(f"s_add_u32 s63, s59, {q*32768}")
            a(f"buffer_store_dwordx4 v[{d}:{d+3}], v1, {WS}, s63 offen sc1")
        for q in range(4):
            mfma(a, 160 + 16 * q, 128, 112 + 4 * q, None)
    def o():
        a("s_mov_b32 s63, s59")
        for q in range(4):
            d = 112 + 4 * q
            a(f"buffer_store_dwordx4 v[{d}:{d+3}], v1, {WS}, s63 offen sc1")
            if q < 3: a("s_add_u32 s63, s63, s72")
    wj_branch(a, g, o)

def wj_cspart(a):
    def g():
        a("s_mov_b32 exec_hi, 0")
        for q in range(4):
            a(f"ds_write_b32 v{V_WJC}, v{160 + 16 * q} offset:{q*128}")
        a("s_mov_b64 exec, -1")
    wj_branch(a, g, None)

def wj_csread(a):
    def g():
        l = a.newlabel("csr")
        a(f"s_cmp_ge_u32 s{S_W}, 2")
        a(f"s_cbranch_scc1 {l}")
        a(f"s_lshl_b32 s63, s{S_W}, 8")
        a("v_lshlrev_b32 v132, 2, v0")
        a("v_add_u32 v132, s63, v132")
        a(f"v_add_u32 v133, {L_SCR}, v132")
        for ww in range(8):
            a(f"ds_read_b32 v{112+ww}, v133 offset:{ww*4096}")
        a.label(l)
    wj_branch(a, g, None)

def wj_csstore(a):
    def g():
        l = a.newlabel("css")
        a(f"s_cmp_ge_u32 s{S_W}, 2")
        a(f"s_cbranch_scc1 {l}")
        for ww in range(1, 8):
            a(f"v_add_f32 v112, v112, v{112+ww}")
        a(f"buffer_store_dword v112, v132, {WS}, s72 offen sc1")
        a.label(l)
    wj_branch(a, g, None)

def wj_signal(a):
    l = a.newlabel("wsig")
    a(f"s_cmp_eq_u32 s{S_JOB}, 0")
    a(f"s_cbranch_scc1 {l}")
    a(f"s_cmp_lg_u32 s{S_W}, 0")
    a(f"s_cbranch_scc1 {l}")
    a("s_lshl_b32 s63, s2, 7")
    a(f"s_add_u32 s63, s63, {FLG_W}")
    set_flag(a, 63, 112)
    a.label(l)

A_Q, A_O, A_S, A_P = 4, 8, [24, 40], 56
A_K = [64, 68]
A_V = [[72, 76], [80, 84]]
A_VK, A_VV = 88, 89
A_NEG = 96
A_Q2, A_O2 = 92, 96
WO_R = 112
NG_LATE = 12
WG_R = 128
XR = 60
BOUND2 = 1600.0

def attn_tile(a, p, extra=None):
    h = p & 1; i = p >> 1
    S = A_S[h]; Q = [A_Q, A_Q2]; O = [A_O, A_O2]
    def ex(r): a(f"v_exp_f32 v{S+r}, v{S+r}")
    def cv(k): a(f"v_cvt_pk_bf16_f32 v{A_P+k}, v{S+2*k}, v{S+2*k+1}")
    a("s_waitcnt lgkmcnt(0)")
    if h == 0:
        mfma(a, A_S[1], A_K[i & 1], Q[1], None)
    else:
        mfma(a, A_S[0], A_K[(i + 1) & 1], Q[0], None)
        a(f"ds_read_b128 v[{A_K[i & 1]}:{A_K[i & 1]+3}], v{A_VK} offset:{(i+2)*1024}")
    ex(0); ex(1); ex(2); ex(3)
    cv(0)
    if h == 0:
        mfma(a, O[1], A_V[1][(i - 1) & 1], A_P + 4, O[1])
        nb = (i + 1) & 1
        a("s_mov_b64 exec, s[70:71]")
        a(f"ds_read_b128 v[{A_V[0][nb]}:{A_V[0][nb]+3}], v{A_VV} offset:{(i+1)*1024}")
        a(f"ds_read_b128 v[{A_V[1][nb]}:{A_V[1][nb]+3}], v{A_VV} offset:{(i+1)*1024 + 512}")
        a("s_mov_b64 exec, -1")
    else:
        mfma(a, O[0], A_V[1][i & 1], A_P + 4, O[0])
    if extra: extra()
    ex(4); cv(1); ex(5); ex(6); ex(7); cv(2); ex(8); cv(3)
    ex(9); ex(10); ex(11)
    mfma(a, O[h], A_V[0][i & 1], A_P, O[h])
    cv(4); ex(12); cv(5); ex(13); ex(14); ex(15); cv(6)
    cv(7)

def wave_consts(a):
    a.c("WOF + (8cq + w)*16384 -> s68")
    a(f"s_lshl_b32 s68, s{S_HQ}, 3")
    a(f"s_add_u32 s68, s68, s{S_W}")
    a("s_lshl_b32 s68, s68, 14")
    a(f"s_add_u32 s68, s68, {WOF}")
    a.c("WGF + fb*32768 -> s73, fb = 7j + w (waves 0..6; wave 7 uses fb of wave 6, harmless duplicate)")
    a(f"s_min_u32 s73, s{S_W}, 6")
    a(f"s_mul_i32 s74, s{S_J}, 7")
    a("s_add_u32 s74, s74, s73")
    a("s_lshl_b32 s73, s74, 15")
    a(f"s_add_u32 s73, s73, {WGF}")

def ld_wg(a, s, tag="WG"):
    a(f"s_add_u32 s75, s73, {(s >> 2) * 4096}")
    a.vm(f"buffer_load_dwordx4 v[{WG_R+4*s}:{WG_R+4*s+3}], v1, {WS}, s75 offen offset:{(s&3)*1024} sc1", (tag, s))
def ld_wo(a, s):
    a(f"s_add_u32 s75, s68, {(s >> 2) * 4096}")
    a.vm(f"buffer_load_dwordx4 v[{WO_R+4*s}:{WO_R+4*s+3}], v1, {WS}, s75 offen offset:{(s&3)*1024} sc1", ("WO", s))

def prefetch_lists():
    it2 = [("g", s) for s in range(7, 32)]
    it3 = [("o", s) for s in range(16)]
    return it2, it3

def kv_dma(a, st, part=None):
    if part in (None, 0):
        a(f"s_add_u32 m0, s60, {st*8192}")
        a(f"s_add_u32 s62, s60, {st*8192 + KF}")
        a(f"buffer_load_dwordx4 v1, {WS}, s62 offen sc1 lds")
        a(f"buffer_load_dwordx4 v1, {WS}, s62 offen offset:1024 sc1 lds")
    if part in (None, 1):
        a(f"s_add_u32 m0, s60, {st*8192 + 65536}")
        a(f"s_add_u32 s62, s60, {st*8192 + VF}")
        a(f"buffer_load_dwordx4 v1, {WS}, s62 offen sc1 lds")
        a(f"buffer_load_dwordx4 v1, {WS}, s62 offen offset:1024 sc1 lds")

def wready_poll(a):
    l = a.newlabel("wrq")
    a(f"s_cmp_lg_u32 s{S_W}, 0")
    a(f"s_cbranch_scc1 {l}")
    a("v_lshlrev_b32 v2, 7, v0")
    a("v_add_u32 v3, 128, v0")
    a("v_min_u32 v3, 183, v3")
    a("v_lshlrev_b32 v3, 7, v3")
    a(f"s_mov_b32 s63, {FLG_W}")
    a(f"buffer_load_dword v112, v2, {WS}, s63 offen sc1")
    a(f"s_mov_b32 s63, {FLG_W + 64*128}")
    a(f"buffer_load_dword v113, v2, {WS}, s63 offen sc1")
    a(f"s_mov_b32 s63, {FLG_W}")
    a(f"buffer_load_dword v114, v3, {WS}, s63 offen sc1")
    a.label(l)
def wready_check(a):
    l = a.newlabel("wrc"); dn = a.newlabel("wrd")
    a(f"s_cmp_lg_u32 s{S_W}, 0")
    a(f"s_cbranch_scc1 {l}")
    def test():
        a("s_waitcnt vmcnt(0)")
        a(f"v_cmp_ne_u32 vcc, s{S_NONCE}, v112")
        a(f"v_cmp_ne_u32 s[62:63], s{S_NONCE}, v113")
        a("s_nop 1")
        a("s_or_b64 s[62:63], s[62:63], vcc")
        a(f"v_cmp_ne_u32 vcc, s{S_NONCE}, v114")
        a("s_nop 4")
        a("s_or_b64 vcc, vcc, s[62:63]")
    test()
    a(f"s_cbranch_vccz {dn}")
    l2 = spin_begin(a, "wrp")
    a(f"s_mov_b32 s63, {FLG_W}")
    a(f"buffer_load_dword v112, v2, {WS}, s63 offen sc1")
    a(f"buffer_load_dword v114, v3, {WS}, s63 offen sc1")
    a(f"s_mov_b32 s63, {FLG_W + 64*128}")
    a(f"buffer_load_dword v113, v2, {WS}, s63 offen sc1")
    test()
    spin_end(a, l2, dn, 4)
    a.label(l)
    a("s_barrier")

def local_poll(a):
    a("v_lshlrev_b32 v118, 7, v0")
    a(f"s_lshl_b32 s62, s{S_G}, 11")
    a(f"s_add_u32 s62, s62, {FLG_X}")
    a("s_mov_b64 exec, 0xffff")
    a(f"buffer_load_dwordx2 v[116:117], v118, {WS}, s62 offen sc1")
    a("s_mov_b64 exec, -1")
def local_check(a):
    dn = a.newlabel("lcd")
    a(f"s_lshl_b32 s62, s{S_G}, 11")
    a(f"s_add_u32 s62, s62, {FLG_X}")
    a("s_mov_b64 exec, 0xffff")
    a("s_waitcnt vmcnt(0)")
    a(f"v_cmp_ne_u32 vcc, s{S_NONCE}, v116")
    a("s_nop 4")
    a(f"s_cbranch_vccz {dn}")
    l = spin_begin(a, "lcp")
    a(f"buffer_load_dwordx2 v[116:117], v118, {WS}, s62 offen sc1")
    a("s_waitcnt vmcnt(0)")
    a(f"v_cmp_ne_u32 vcc, s{S_NONCE}, v116")
    spin_end(a, l, dn, 4)
    a("s_getreg_b32 s62, hwreg(HW_REG_XCC_ID, 0, 4)")
    a("v_cmp_ne_u32 vcc, s62, v117")
    a(f"v_cmp_ne_u32 s[62:63], s{S_NONCE}, v116")
    a("s_mov_b64 exec, -1")
    a("s_nop 2")
    a("s_or_b64 vcc, vcc, s[62:63]")
    a("s_cmp_eq_u64 vcc, 0")
    a(f"s_cselect_b32 s{S_LOCAL}, 1, 0")

def x_residual(a):
    mk_srd(a, SRD_A, P_X, 2048 * 1024)
    a("v_and_b32 v2, 15, v0")
    a("v_lshrrev_b32 v3, 4, v0")
    a("v_lshlrev_b32 v2, 10, v2")
    a("v_lshl_add_u32 v2, v3, 3, v2")
    a(f"s_lshl_b32 s62, s{S_TBK}, 15")
    a(f"s_lshl_b32 s63, s{S_HQ}, 8")
    a("s_add_u32 s62, s62, s63")
    a(f"s_lshl_b32 s63, s{S_W}, 5")
    a("s_add_u32 s62, s62, s63")
    a.vm(f"buffer_load_dwordx2 v[{XRES}:{XRES+1}], v2, s[{SRD_A}:{SRD_A+3}], s62 offen", "XR")
    a("s_add_u32 s62, s62, 16384")
    a.vm(f"buffer_load_dwordx2 v[{XRES+2}:{XRES+3}], v2, s[{SRD_A}:{SRD_A+3}], s62 offen", "XR")
XRES = 4

def hh_prefill(a):
    l = a.newlabel("pf")
    a(f"s_cmp_eq_u32 s{S_W}, 7")
    a(f"s_cbranch_scc1 {l}")
    for r in range(4): a(f"v_mov_b32 v{96+r}, -1")
    a("s_mul_i32 s62, s74, 1024")
    a(f"s_lshl_b32 s63, s{S_G}, 2")
    a("s_mul_i32 s63, s63, 114688")
    a("s_add_u32 s62, s62, s63")
    a(f"s_add_u32 s62, s62, {HHF}")
    for tb in range(4):
        a(f"buffer_store_dwordx4 v[96:99], v1, {WS}, s62 offen sc1")
        if tb < 3: a("s_add_u32 s62, s62, 114688")
    a("s_nop 1")
    a.label(l)

def attention(a):
    a("v_lshlrev_b32 v1, 4, v0")
    for r in range(4):
        a(f"v_mov_b32 v{A_Q+r}, v{QSAVE+r}")
        a(f"v_mov_b32 v{A_Q2+r}, v{QSAVE+4+r}")
    a("s_mov_b32 s70, 0x0000ffff")
    a("s_mov_b32 s71, 0x0000ffff")
    for r in range(16):
        a(f"v_mov_b32 v{A_O+r}, 0")
        a(f"v_mov_b32 v{A_O2+r}, 0")
        a(f"v_mov_b32 v{72+r}, 0x3f803f80")
    if ZROWS:
        a("s_mov_b32 s62, 0x00110000"); a("s_mov_b32 s63, 0x00110000")
        a("v_mov_b32 v91, 0")
        for r in range(16): a(f"v_cndmask_b32 v{72+r}, v91, v{72+r}, s[62:63]")
    for r in range(8):
        a(f"v_mov_b32 v{A_P+r}, 0")
    a(f"s_lshr_b32 s61, s{S_W}, 2")
    a("s_lshl_b32 s61, s61, 15")
    a(f"v_add_u32 v{A_VK}, s61, v1")
    a("v_lshrrev_b32 v90, 5, v0")
    a("v_and_b32 v91, 15, v0")
    a("v_lshl_add_u32 v90, v90, 4, v91")
    a("v_lshlrev_b32 v90, 4, v90")
    a("s_add_u32 s61, s61, 65536")
    a(f"v_add_u32 v{A_VV}, s61, v90")
    wave_consts(a)
    wj_setup(a)
    a("v_mov_b32 v90, 0")
    a("v_mov_b32 v2, 0")
    for r in range(4):
        a(f"v_dot2_f32_bf16 v90, v{A_Q+r}, v{A_Q+r}, v90")
        a(f"v_dot2_f32_bf16 v2, v{A_Q2+r}, v{A_Q2+r}, v2")
    a(f"s_lshr_b32 s60, s{S_W}, 2")
    a("s_lshl_b32 s60, s60, 4")
    a(f"s_and_b32 s61, s{S_W}, 3")
    a("s_add_u32 s60, s60, s61")
    a("s_lshl_b32 s60, s60, 11")
    xhalf(a, 90, 91, "v_add_f32")
    xhalf(a, 2, 91, "v_add_f32")
    a("v_max_f32 v90, v90, v2")
    la = a.newlabel("sa")
    a(f"s_cmp_lg_u32 s{S_W}, 0")
    a(f"s_cbranch_scc1 {la}")
    done = a.newlabel("syncA")
    a("v_lshlrev_b32 v2, 7, v0")
    a(f"s_mov_b32 s63, {FLG_A}")
    l = spin_begin(a, "pollA")
    a(f"buffer_load_dwordx2 v[112:113], v2, {WS}, s63 offen sc1")
    a("s_waitcnt vmcnt(0)")
    a(f"v_cmp_ne_u32 vcc, s{S_NONCE}, v112")
    spin_end(a, l, done, 2)
    dpp_sum16(a, 113, "v_max_f32")
    xrow16(a, 113, 91, "v_max_f32")
    xhalf(a, 113, 91, "v_max_f32")
    a(f"v_mov_b32 v91, {L_SCR + 4096 - 128}")
    a("s_mov_b64 exec, 1")
    a("ds_write_b32 v91, v113")
    a("s_mov_b64 exec, -1")
    a("s_waitcnt lgkmcnt(0)")
    a.label(la)
    a("s_barrier")
    stamp(a)
    kv_dma(a, 0)
    a(f"v_mov_b32 v91, {L_SCR + 4096 - 128}")
    a("ds_read_b32 v3, v91")
    a("s_waitcnt lgkmcnt(0)")
    a("v_mul_f32 v90, v90, v3")
    a(f"v_mov_b32 v91, {f32hex(BOUND2)}")
    a("v_cmp_gt_f32 vcc, v90, v91")
    a.c("workgroup-wide vote: any row that might leave the safe range sends the whole workgroup to the max-subtracting path")
    a("s_nop 4")
    a("s_cmp_lg_u64 vcc, 0")
    a("s_cselect_b32 s61, 1, 0")
    a("v_mov_b32 v90, s61")
    a(f"s_lshl_b32 s61, s{S_W}, 2")
    a(f"s_add_u32 s61, s61, {L_SCR + 4096 - 64}")
    a("v_mov_b32 v91, s61")
    a("s_mov_b64 exec, 1")
    a("ds_write_b32 v91, v90")
    a("s_mov_b64 exec, -1")
    a("s_waitcnt vmcnt(0) lgkmcnt(0)")
    a("s_barrier")
    a(f"v_mov_b32 v91, {L_SCR + 4096 - 64}")
    a("ds_read_b128 v[112:115], v91")
    a("ds_read_b128 v[116:119], v91 offset:16")
    a(f"ds_read_b128 v[{A_K[0]}:{A_K[0]+3}], v{A_VK}")
    a(f"ds_read_b128 v[{A_K[1]}:{A_K[1]+3}], v{A_VK} offset:1024")
    a("s_mov_b64 exec, s[70:71]")
    a(f"ds_read_b128 v[{A_V[0][0]}:{A_V[0][0]+3}], v{A_VV}")
    a(f"ds_read_b128 v[{A_V[1][0]}:{A_V[1][0]+3}], v{A_VV} offset:512")
    a("s_mov_b64 exec, -1")
    a("s_waitcnt lgkmcnt(0)")
    a("v_or3_b32 v112, v112, v113, v114")
    a("v_or3_b32 v116, v116, v117, v118")
    a("v_or3_b32 v112, v112, v115, v119")
    a("v_or_b32 v112, v112, v116")
    a("s_barrier")
    a("v_readfirstlane_b32 s61, v112")
    lslow = a.newlabel("slow"); lepi = a.newlabel("attn_epi")
    a("s_nop 3")
    a("s_cmp_lg_u32 s61, 0")
    a(f"s_cbranch_scc1 {lslow}")
    stamp(a)
    mfma(a, A_S[0], A_K[0], A_Q, None)
    it_pref = [("g", s) for s in range(NG_LATE, 32)] + [("o", s) for s in range(16)]
    NPF0, NPF1 = 36, 62
    a("s_nop 15")
    a.vm_reset()
    def extra_for(t):
        def f():
            if t in (0, 1): kv_dma(a, 1, t)
            if t in (2, 3): wj_issue(a, t - 2)
            if t in (4, 5): kv_dma(a, 2, t - 4)
            if t in (6, 7): kv_dma(a, 3, t - 6)
            if t == 12: wj_read(a, 8)
            if t == 13: wj_store(a)
            if t == 15: wj_cspart(a)
            if t == 16: wj_csread(a)
            if t == 17: wj_csstore(a)
            if t == 33: wready_poll(a); local_poll(a)
            if t == 36: local_check(a)
            if NPF0 <= t < NPF1:
                k0 = (t - NPF0) * len(it_pref) // (NPF1 - NPF0); k1 = (t + 1 - NPF0) * len(it_pref) // (NPF1 - NPF0)
                for k, s in it_pref[k0:k1]:
                    (ld_wg if k == "g" else ld_wo)(a, s)
            if SENT_D and t == 40: hh_prefill(a)
            if t == 62: x_residual(a)
        return f
    for t in range(64):
        p = t & 15
        if t in (0, 4, 8, 12, 16, 20, 24, 28, 32, 36, 40, 48, 56, 63): stamp(a, "attn")
        if t > 0 and t % 4 == 0:
            if t == 12:
                a("s_waitcnt vmcnt(8)")
            if t == 16:
                a("s_waitcnt lgkmcnt(0)")
            if t == 24:
                a("s_waitcnt vmcnt(0)")
            if t == 36:
                wready_check(a)
            else:
                a("s_barrier")
            if t == 24:
                wj_signal(a)
        if PRIO:
            a(f"s_setprio {3 - (t & 3)}")
        attn_tile(a, p, extra_for(t))
        if p == 15 and t < 63:
            a(f"v_add_u32 v{A_VK}, 8192, v{A_VK}")
            a(f"v_add_u32 v{A_VV}, 8192, v{A_VV}")
    if PRIO: a("s_setprio 0")
    a("s_nop 1")
    mfma(a, A_O2, A_V[1][1], A_P + 4, A_O2)
    a(f"s_branch {lepi}")
    a.label(lslow)
    for st in range(1, 4):
        kv_dma(a, st)
    wj_issue(a)
    wj_read(a, 0)
    a("s_waitcnt lgkmcnt(0)")
    wj_store(a)
    a("s_nop 15")
    wj_cspart(a)
    a("s_waitcnt vmcnt(0) lgkmcnt(0)")
    a("s_barrier")
    wj_csread(a)
    a("s_waitcnt lgkmcnt(0)")
    wj_csstore(a)
    a("s_waitcnt vmcnt(0)")
    a("s_barrier")
    wj_signal(a)
    NEG = [112, 128]
    for h in range(2):
        Qh = [A_Q, A_Q2][h]
        a(f"v_mov_b32 v{2+h}, 0xff800000")
        a(f"v_mov_b32 v90, v{A_VK}")
        a("s_mov_b32 s55, 0")
        l1 = a.newlabel("s1")
        a.label(l1)
        a(f"ds_read_b128 v[{A_K[0]}:{A_K[0]+3}], v90")
        a("s_waitcnt lgkmcnt(0)")
        mfma(a, A_S[0], A_K[0], Qh, None)
        a("s_nop 15")
        for r in range(8):
            a(f"v_max3_f32 v{2+h}, v{A_S[0]+2*r}, v{A_S[0]+2*r+1}, v{2+h}")
        a("v_add_u32 v90, 1024, v90")
        a("s_add_u32 s55, s55, 1")
        a("s_cmp_lt_u32 s55, 32")
        a(f"s_cbranch_scc1 {l1}")
        xhalf(a, 2 + h, 91, "v_max_f32")
    a.c("the other half of the keys belongs to wave w ^ 4: exchange the maxima")
    a(f"s_lshl_b32 s55, s{S_W}, 12")
    a(f"s_add_u32 s55, s55, {L_SCR}")
    a("v_lshlrev_b32 v90, 3, v0")
    a("v_add_u32 v91, s55, v90")
    a("ds_write_b64 v91, v[2:3]")
    a(f"s_xor_b32 s55, s{S_W}, 4")
    a("s_lshl_b32 s55, s55, 12")
    a(f"s_add_u32 s55, s55, {L_SCR}")
    a("v_add_u32 v91, s55, v90")
    a("s_waitcnt lgkmcnt(0)")
    a("s_barrier")
    a("ds_read_b64 v[90:91], v91")
    a("s_waitcnt lgkmcnt(0)")
    a("v_max_f32 v2, v2, v90")
    a("v_max_f32 v3, v3, v91")
    for h in range(2):
        for r in range(16):
            a(f"v_sub_f32 v{NEG[h]+r}, 0, v{2+h}")
    for h in range(2):
        Qh = [A_Q, A_Q2][h]; Oh = [A_O, A_O2][h]
        a(f"v_mov_b32 v90, v{A_VK}")
        a(f"v_mov_b32 v91, v{A_VV}")
        a("s_mov_b32 s55, 0")
        l2 = a.newlabel("s2")
        a.label(l2)
        a(f"ds_read_b128 v[{A_K[0]}:{A_K[0]+3}], v90")
        a("s_mov_b64 exec, s[70:71]")
        a(f"ds_read_b128 v[{A_V[0][0]}:{A_V[0][0]+3}], v91")
        a(f"ds_read_b128 v[{A_V[1][0]}:{A_V[1][0]+3}], v91 offset:512")
        a("s_mov_b64 exec, -1")
        a("s_waitcnt lgkmcnt(0)")
        mfma(a, A_S[0], A_K[0], Qh, NEG[h])
        a("s_nop 15")
        for r in range(16):
            a(f"v_exp_f32 v{A_S[0]+r}, v{A_S[0]+r}")
        a("s_nop 0")
        for k in range(8):
            a(f"v_cvt_pk_bf16_f32 v{A_P+k}, v{A_S[0]+2*k}, v{A_S[0]+2*k+1}")
        a("s_nop 1")
        mfma(a, Oh, A_V[0][0], A_P, Oh)
        mfma(a, Oh, A_V[1][0], A_P + 4, Oh)
        a("v_add_u32 v90, 1024, v90")
        a("v_add_u32 v91, 1024, v91")
        a("s_add_u32 s55, s55, 1")
        a("s_cmp_lt_u32 s55, 32")
        a(f"s_cbranch_scc1 {l2}")
    a("s_nop 15")
    a("s_barrier")
    if SENT_D: hh_prefill(a)
    wready_poll(a)
    local_poll(a)
    wready_check(a)
    local_check(a)
    sv = list(a.vmq)
    for k, s in it_pref:
        (ld_wg if k == "g" else ld_wo)(a, s)
    x_residual(a)
    a.vmq = sv
    a.label(lepi)
    stamp(a)
    a.c("wave kh finishes head 2p + kh: it hands the partial sums of the other head to wave w ^ 4")
    a(f"s_lshl_b32 s60, s{S_W}, 12")
    a(f"s_add_u32 s60, s60, {L_SCR}")
    a("v_add_u32 v90, s60, v1")
    a(f"s_xor_b32 s60, s{S_W}, 4")
    a("s_lshl_b32 s60, s60, 12")
    a(f"s_add_u32 s60, s60, {L_SCR}")
    a("v_add_u32 v91, s60, v1")
    a("s_nop 9")
    lk1 = a.newlabel("kh1"); lk2 = a.newlabel("khj")
    a(f"s_cmp_ge_u32 s{S_W}, 4")
    a(f"s_cbranch_scc1 {lk1}")
    for q in range(3):
        a(f"ds_write_b128 v90, v[{A_O2+4*q}:{A_O2+4*q+3}] offset:{q*1024}")
    a(f"s_branch {lk2}")
    a.label(lk1)
    for q in range(3):
        a(f"ds_write_b128 v90, v[{A_O+4*q}:{A_O+4*q+3}] offset:{q*1024}")
    for r in range(9):
        a(f"v_mov_b32 v{A_O+r}, v{A_O2+r}")
    a.label(lk2)
    a("s_waitcnt lgkmcnt(0)")
    a("s_barrier")
    for q in range(3):
        a(f"ds_read_b128 v[{24+4*q}:{27+4*q}], v91 offset:{q*1024}")
    a("s_waitcnt lgkmcnt(0)")
    for i in range(4):
        a(f"v_pk_add_f32 v[{A_O+2*i}:{A_O+2*i+1}], v[{A_O+2*i}:{A_O+2*i+1}], v[{24+2*i}:{25+2*i}]")
    a(f"v_add_f32 v{A_O+8}, v{A_O+8}, v32")
    a(f"v_rcp_f32 v90, v{A_O+8}")
    a("s_nop 0")
    for r in range(8):
        a(f"v_mul_f32 v{A_O+r}, v{A_O+r}, v90")
    for k in range(4):
        a(f"v_cvt_pk_bf16_f32 v{A_P+k}, v{A_O+2*k}, v{A_O+2*k+1}")
    a.c("OF + (tbk*32 + 8hq + 2p + kh)*1024")
    a(f"s_lshl_b32 s60, s{S_TBK}, 5")
    a(f"s_lshl_b32 s61, s{S_HQ}, 3")
    a("s_add_u32 s60, s60, s61")
    a(f"s_and_b32 s61, s{S_W}, 3")
    a("s_lshl_b32 s61, s61, 1")
    a("s_add_u32 s60, s60, s61")
    a(f"s_lshr_b32 s61, s{S_W}, 2")
    a("s_add_u32 s60, s60, s61")
    a("s_lshl_b32 s60, s60, 10")
    a(f"s_add_u32 s60, s60, {OF}")
    gstore(a, f"buffer_store_dwordx4 v[{A_P}:{A_P+3}], v1, {WS}, s60 offen")
    if "o" in DOUBLE: a(f"buffer_store_dwordx4 v[{A_P}:{A_P+3}], v1, {WS}, s60 offen")

def eflag_base(a, dst):
    a(f"s_lshl_b32 s{dst}, s{S_G}, 11")
    a(f"s_add_u32 s{dst}, s{dst}, {FLG_E}")

def wg_publish(a, base, vt):
    stamp(a, "p3")
    a("s_waitcnt vmcnt(0)")
    stamp(a, "p3")
    a("s_barrier")
    l = a.newlabel("pub")
    a(f"s_cmp_lg_u32 s{S_W}, 0")
    a(f"s_cbranch_scc1 {l}")
    a(f"s_lshl_b32 s60, s{S_G}, 4")
    a(f"s_add_u32 s60, s60, s{S_J}")
    a("s_lshl_b32 s60, s60, 7")
    a(f"s_add_u32 s60, s60, {base}")
    set_flag(a, 60, vt, True)
    a.label(l)

def wg_wait(a, base, first_expr, n, vt, vo):
    l = a.newlabel("wt")
    a(f"s_cmp_lg_u32 s{S_W}, 0")
    a(f"s_cbranch_scc1 {l}")
    a(f"s_lshl_b32 s60, s{S_G}, 4")
    if first_expr is not None:
        first_expr()
    a("s_lshl_b32 s60, s60, 7")
    a(f"s_add_u32 s60, s60, {base}")
    if POLL_DELAY: a(f"s_sleep {POLL_DELAY}")
    poll_flags(a, 60, n, vt, vo, sleep=POLL_SLEEP)
    a.label(l)
    a("s_barrier")

def wave_publish(a, base, vt):
    a(f"s_lshl_b32 s60, s{S_G}, 4")
    a(f"s_add_u32 s60, s60, s{S_J}")
    a("s_lshl_b32 s60, s60, 3")
    a(f"s_add_u32 s60, s60, s{S_W}")
    a("s_lshl_b32 s60, s60, 7")
    a(f"s_add_u32 s60, s60, {base}")
    stamp(a, "p3")
    a("s_waitcnt vmcnt(0)")
    stamp(a, "p3")
    set_flag(a, 60, vt)

L3_ST = 131072 + 4096
def mfma16(a, d, A, B, c):
    cs = "0" if c is None else f"v[{c}:{c+3}]"
    a(f"v_mfma_f32_16x16x32_bf16 v[{d}:{d+3}], v[{A}:{A+3}], v[{B}:{B+3}], {cs}")

def p3(a):
    wg_publish(a, FLG_B, 28)
    stamp(a)
    def fe():
        a(f"s_lshl_b32 s61, s{S_TQ}, 2")
        a("s_add_u32 s60, s60, s61")
    wg_wait(a, FLG_B, fe, 4, 28, 30)
    stamp(a)
    a.c("o fragments -> LDS [32 heads][1024] over key tiles 0..31 (dead since the last barriers of the attention loop)")
    a(f"s_lshl_b32 s60, s{S_W}, 12")
    a("s_mov_b32 m0, s60")
    a(f"s_lshl_b32 s61, s{S_TBK}, 15")
    a("s_add_u32 s61, s61, s60")
    a(f"s_add_u32 s61, s61, {OF}")
    for e in range(4):
        a(f"buffer_load_dwordx4 v1, {WS}, s61 offen offset:{e*1024} sc1 lds")
    a.c("operand address: (g>>1)*1024 + ((g&1)*32 + (lane&15))*16")
    a("v_lshrrev_b32 v30, 5, v0")
    a("v_lshlrev_b32 v30, 10, v30")
    a("v_bfe_u32 v31, v0, 4, 1")
    a("v_lshlrev_b32 v31, 5, v31")
    a("v_and_b32 v29, 15, v0")
    a("v_add_u32 v31, v31, v29")
    a("v_lshl_add_u32 v30, v31, 4, v30")
    a("v_and_b32 v2, 31, v0")
    stamp(a, "p3")
    a("s_waitcnt vmcnt(0)")
    stamp(a, "p3")
    a("s_barrier")
    stamp(a, "p3")
    BBF = [[32 + 8 * k, 36 + 8 * k] for k in range(3)]
    a.lgq = []
    def rd(s):
        for th2 in range(2):
            r = BBF[s % 3][th2]
            a.lg(f"ds_read_b128 v[{r}:{r+3}], v30 offset:{s*2048 + th2*256}", s)
    rd(0); rd(1)
    for s in range(16):
        if s + 2 < 16: rd(s + 2)
        a.lg_wait(s)
        for th2 in range(2):
            mfma16(a, 8 + 4 * th2, WO_R + 4 * s, BBF[s % 3][th2], None if s == 0 else 8 + 4 * th2)
    stamp(a, "p3")
    a("s_mov_b32 s61, 0xffff0000")
    for i in range(4):
        a(f"v_lshlrev_b32 v{32+2*i}, 16, v{XRES+i}")
        a(f"v_and_b32 v{33+2*i}, s61, v{XRES+i}")
    a(f"s_lshl_b32 s60, s{S_TBK}, 5")
    a(f"s_lshl_b32 s61, s{S_HQ}, 3")
    a("s_add_u32 s60, s60, s61")
    a(f"s_add_u32 s60, s60, s{S_W}")
    a("s_lshl_b32 s60, s60, 10")
    a(f"s_add_u32 s60, s60, {HF}")
    a("s_nop 1")
    for i in range(4):
        a(f"v_pk_add_f32 v[{8+2*i}:{9+2*i}], v[{8+2*i}:{9+2*i}], v[{32+2*i}:{33+2*i}]")
    for i in range(4):
        a(f"v_cvt_pk_bf16_f32 v{40+i}, v{8+2*i}, v{9+2*i}")
    a("s_nop 1")
    a("v_permlane16_swap_b32 v40, v42")
    a("v_permlane16_swap_b32 v41, v43")
    a("s_nop 1")
    gstore(a, f"buffer_store_dwordx4 v[40:43], v1, {WS}, s60 offen")
    if "h" in DOUBLE: a(f"buffer_store_dwordx4 v[40:43], v1, {WS}, s60 offen")
    stamp(a, "p3")
    a("s_mov_b32 s61, 0x3f803f80")
    a("v_mov_b32 v44, 0")
    a("v_mov_b32 v45, 0")
    for i in range(4):
        a(f"v_dot2_f32_bf16 v44, v{40+i}, s61, v44")
        a(f"v_dot2_f32_bf16 v45, v{40+i}, v{40+i}, v45")
    a("s_nop 2")
    xhalf(a, 44, 46, "v_add_f32")
    xhalf(a, 45, 46, "v_add_f32")
    a(f"s_lshl_b32 s60, s{S_W}, 8")
    a(f"s_add_u32 s60, s60, {L3_ST}")
    a("v_lshlrev_b32 v46, 3, v2")
    a("v_add_u32 v47, s60, v46")
    a("s_mov_b32 exec_hi, 0")
    a("ds_write_b64 v47, v[44:45]")
    a("s_mov_b64 exec, -1")
    a("s_waitcnt lgkmcnt(0)")
    wg_publish(a, FLG_C, 28)
    a.vm_reset()
    for s in range(NG_LATE):
        ld_wg(a, s)
    stamp(a)

L4_ST = 131072
L4_CS = 131072 + 1024
WD_R = 128
def ld_wd(a, u):
    s, ct = u >> 1, u & 1
    off = ct * 114688 + (s >> 2) * 4096
    a(f"s_add_u32 s75, s76, {off}")
    a.vm(f"buffer_load_dwordx4 v[{WD_R+4*u}:{WD_R+4*u+3}], v1, {WS}, s75 offen offset:{(s&3)*1024} sc1", ("WD", u))

def p4(a):
    a(f"s_and_b32 s77, s{S_J}, 7")
    a("s_mul_i32 s76, s77, 229376")
    a(f"s_mul_i32 s60, s{S_W}, 14336")
    a("s_add_u32 s76, s76, s60")
    a(f"s_add_u32 s76, s76, {WDF}")
    stamp(a, "p4")
    wg_wait(a, FLG_C, None, 16, 28, 5)
    stamp(a); stamp(a, "p4")
    a(f"s_lshl_b32 s62, s{S_G}, 17")
    a(f"s_lshl_b32 s63, s{S_W}, 10")
    a("s_add_u32 s62, s62, s63")
    a(f"s_add_u32 s62, s62, {HF}")
    def dma(st):
        for tb in range(4):
            off = tb * 32768 + st * 8192
            a(f"s_add_u32 m0, s63, {off}")
            a(f"s_add_u32 s64, s62, {off}")
            a.vm(f"buffer_load_dwordx4 v1, {WS}, s64 offen sc1 lds", ("H", st))
    a.vm_reset()
    dma(0); dma(1)
    lhelp = a.newlabel("help"); ljoin = a.newlabel("p4join")
    a(f"s_cmp_eq_u32 s{S_W}, 7")
    a(f"s_cbranch_scc1 {lhelp}")
    sv = list(a.vmq)
    a("v_add_u32 v2, 65536, v1")
    BB = [[32 + 4 * t for t in range(4)], [48 + 4 * t for t in range(4)]]
    def breads(s):
        for tb in range(4):
            base = "v1" if tb < 2 else "v2"
            a.lg(f"ds_read_b128 v[{BB[s&1][tb]}:{BB[s&1][tb]+3}], {base} offset:{(tb&1)*32768 + s*1024}", s)
    a.lgq = []
    a.vm_wait(("H", 0))
    stamp(a, "p4")
    a("s_barrier")
    stamp(a); stamp(a, "p4")
    breads(0)
    for s in range(32):
        if s + 1 < 32:
            if (s + 1) % 8 == 0:
                a.vm_wait(("H", (s + 1) // 8))
                a("s_barrier")
            breads(s + 1)
        if s == 24:
            a("v_and_b32 v3, 31, v0")
            a("v_lshlrev_b32 v3, 3, v3")
            a(f"v_add_u32 v3, {L4_ST}, v3")
            for tb in range(4):
                a.lg(f"ds_read_b64 v[{4+2*tb}:{5+2*tb}], v3 offset:{tb*256}", "st")
            a("v_lshrrev_b32 v12, 5, v0")
            a("v_lshlrev_b32 v12, 4, v12")
            a(f"s_lshl_b32 s60, s{S_W}, 7")
            a(f"s_add_u32 s60, s60, {L4_CS}")
            a("v_add_u32 v12, s60, v12")
            for q in range(4):
                a.lg(f"ds_read_b128 v[{16+4*q}:{19+4*q}], v12 offset:{q*32}", "st")
        if PRIO2 and s % 2 == 0: a(f"s_setprio {3 - ((s & 7) >> 1)}")
        a.lg_wait(s)
        for tb in range(4):
            mfma(a, 64 + 16 * tb, WG_R + 4 * s, BB[s & 1][tb], None if s == 0 else 64 + 16 * tb)
        if s == 0: dma(2)
        if s == 4: dma(3)
        if s >= 1 and s - 1 < 28:
            ld_wd(a, s - 1)
    stamp(a); stamp(a, "p4")
    if PRIO2: a("s_setprio 0")
    a("s_waitcnt lgkmcnt(0)")
    a("s_nop 7")
    a("s_mul_i32 s60, s74, 1024")
    a(f"s_lshl_b32 s61, s{S_G}, 2")
    a("s_mul_i32 s61, s61, 114688")
    a("s_add_u32 s60, s60, s61")
    a(f"s_add_u32 s60, s60, {HHF}")
    for tb in range(4):
        A = 64 + 16 * tb
        st = 4 + 2 * tb
        for i in range(8):
            a(f"v_pk_fma_f32 v[{A+2*i}:{A+2*i+1}], v[{16+2*i}:{17+2*i}], v[{st}:{st+1}], v[{A+2*i}:{A+2*i+1}] op_sel_hi:[1,0,1]")
        for i in range(4):
            a(f"v_pk_mul_f32 v[{A+8+2*i}:{A+9+2*i}], v[{A+8+2*i}:{A+9+2*i}], v[{st}:{st+1}] op_sel:[0,1] op_sel_hi:[1,1]")
        for r in range(8):
            a(f"v_max_f32 v{A+r}, 0, v{A+r}")
        for i in range(4):
            a(f"v_pk_mul_f32 v[{A+2*i}:{A+2*i+1}], v[{A+2*i}:{A+2*i+1}], v[{A+8+2*i}:{A+9+2*i}]")
        for i in range(4):
            a(f"v_cvt_pk_bf16_f32 v{36+4*(tb&1)+i}, v{A+2*i}, v{A+2*i+1}")
        gstore(a, f"buffer_store_dwordx4 v[{36+4*(tb&1)}:{39+4*(tb&1)}], v1, {WS}, s60 offen")
        if "g" in DOUBLE: a(f"buffer_store_dwordx4 v[{36+4*(tb&1)}:{39+4*(tb&1)}], v1, {WS}, s60 offen")
        if tb < 3:
            a("s_add_u32 s60, s60, 114688")
    stamp(a, "p4")
    a(f"s_branch {ljoin}")
    a.label(lhelp)
    a.vmq = list(sv)
    dma(2); dma(3)
    a("v_lshlrev_b32 v3, 2, v0")
    a(f"s_mul_i32 s60, s{S_J}, 896")
    a(f"s_add_u32 s60, s60, {CSP}")
    for kq in range(4):
        for i in range(4):
            a.vm(f"buffer_load_dword v{32+4*kq+i}, v3, {WS}, s60 offen offset:{i*256} sc1", "cs")
        if kq < 3:
            a("s_add_u32 s60, s60, 14336")
    a.vm_wait(("H", 0))
    a("s_barrier")
    a.c("finish this workgroup's row statistics (partials of the 8 waves are in LDS) and publish them")
    a("v_and_b32 v2, 31, v0")
    a("v_lshlrev_b32 v64, 3, v2")
    a(f"v_add_u32 v65, {L3_ST}, v64")
    for ww in range(8):
        a(f"ds_read_b64 v[{66+2*ww}:{67+2*ww}], v65 offset:{ww*256}")
    a("s_waitcnt lgkmcnt(0)")
    for ww in range(1, 8):
        a(f"v_pk_add_f32 v[66:67], v[66:67], v[{66+2*ww}:{67+2*ww}]")
    a("v_lshlrev_b32 v64, 5, v2")
    a(f"s_lshl_b32 s60, s{S_TBK}, 10")
    a(f"s_lshl_b32 s61, s{S_HQ}, 3")
    a("s_add_u32 s60, s60, s61")
    a(f"s_add_u32 s60, s60, {HST}")
    a("s_mov_b32 exec_hi, 0")
    a.vm(f"buffer_store_dwordx2 v[66:67], v64, {WS}, s60 offen sc1", "hst")
    a("s_mov_b64 exec, -1")
    a.vm_wait_all()
    eflag_base(a, 60)
    a(f"s_lshl_b32 s61, s{S_J}, 7")
    a("s_add_u32 s60, s60, s61")
    set_flag(a, 60, 28)
    a("s_barrier")
    a("s_barrier")
    eflag_base(a, 60)
    poll_flags(a, 60, 16, 28, 2)
    a("v_lshlrev_b32 v2, 5, v0")
    a(f"s_lshl_b32 s60, s{S_G}, 12")
    a(f"s_add_u32 s60, s60, {HST}")
    for i in range(2):
        a(f"buffer_load_dwordx4 v[{8+8*i}:{11+8*i}], v2, {WS}, s60 offen offset:{i*2048} sc1")
        a(f"buffer_load_dwordx4 v[{12+8*i}:{15+8*i}], v2, {WS}, s60 offen offset:{i*2048+16} sc1")
    a.vm_wait_all()
    for i in range(2):
        b = 8 + 8 * i
        a(f"v_add_f32 v{b}, v{b}, v{b+2}")
        a(f"v_add_f32 v{b+4}, v{b+4}, v{b+6}")
        a(f"v_add_f32 v{b+1}, v{b+1}, v{b+3}")
        a(f"v_add_f32 v{b+5}, v{b+5}, v{b+7}")
        a(f"v_add_f32 v{b}, v{b}, v{b+4}")
        a(f"v_add_f32 v{b+1}, v{b+1}, v{b+5}")
        a(f"v_mul_f32 v{b}, {f32hex(1.0/512)}, v{b}")
        a(f"v_mul_f32 v{b+2}, v{b}, v{b}")
        a(f"v_mov_b32 v{b+3}, {f32hex(1.0/512)}")
        a(f"v_fma_f32 v{b+1}, v{b+1}, v{b+3}, -v{b+2}")
        a(f"v_max_f32 v{b+1}, 0, v{b+1}")
        a(f"v_add_f32 v{b+1}, {f32hex(1e-5)}, v{b+1}")
        a(f"v_rcp_f32 v{b+1}, v{b+1}")
        a(f"v_sub_f32 v{b}, 0, v{b}")
    a("v_lshlrev_b32 v4, 3, v0")
    a(f"v_add_u32 v4, {L4_ST}, v4")
    a("ds_write_b64 v4, v[8:9]")
    a("ds_write_b64 v4, v[16:17] offset:512")
    for i in range(4):
        a(f"v_add_f32 v{32+i}, v{32+i}, v{36+i}")
        a(f"v_add_f32 v{40+i}, v{40+i}, v{44+i}")
        a(f"v_add_f32 v{32+i}, v{32+i}, v{40+i}")
    a(f"v_add_u32 v3, {L4_CS}, v3")
    for i in range(3):
        a(f"ds_write_b32 v3, v{32+i} offset:{i*256}")
    a("s_mov_b32 exec_hi, 0")
    a("ds_write_b32 v3, v35 offset:768")
    a("s_mov_b64 exec, -1")
    a("s_waitcnt lgkmcnt(0)")
    a("s_barrier")
    for u in range(28):
        ld_wd(a, u)
    a.label(ljoin)
    if not SENT_D:
        wg_publish(a, FLG_D, 28)
    a.vm_reset()
    stamp(a)

def p5(a):
    mk_srd(a, SRD_A, P_OUT, 2048 * 1024)
    a(f"s_lshr_b32 s72, s{S_J}, 3")
    a(f"s_lshl_b32 s61, s{S_G}, 2")
    a("s_lshl_b32 s62, s72, 1")
    a("s_add_u32 s61, s61, s62")
    a(f"s_mul_i32 s62, s{S_W}, 14336")
    a("s_mul_i32 s64, s61, 114688")
    a("s_add_u32 s64, s64, s62")
    a(f"s_add_u32 s64, s64, {HHF}")
    a("s_add_u32 s65, s64, 114688")
    a("v_lshrrev_b32 v2, 3, v0")
    a(f"s_lshl_b32 s62, s{S_W}, 3")
    a("v_add_u32 v2, s62, v2")
    a("v_and_b32 v3, 7, v0")
    a("v_lshrrev_b32 v4, 5, v2")
    a("v_lshlrev_b32 v4, 5, v4")
    a("v_lshrrev_b32 v5, 1, v3")
    a("v_add_u32 v4, v4, v5")
    a("v_lshlrev_b32 v4, 10, v4")
    a("v_and_b32 v5, 1, v3")
    a("v_lshlrev_b32 v5, 5, v5")
    a("v_and_b32 v6, 31, v2")
    a("v_add_u32 v5, v5, v6")
    a("v_lshl_add_u32 v4, v5, 4, v4")
    a("s_lshl_b32 s62, s61, 5")
    a("s_lshl_b32 s63, s77, 2")
    a("s_add_u32 s62, s62, s63")
    a("s_lshl_b32 s62, s62, 10")
    a(f"s_add_u32 s62, s62, {HF}")
    a(f"buffer_load_dwordx4 v[8:11], v4, {WS}, s62 offen sc1")
    stamp(a, "p4")
    if not SENT_D:
        wg_wait(a, FLG_D, None, 16, 28, 5)
    stamp(a); stamp(a, "p4")
    a("s_mov_b32 s62, s64"); a("s_mov_b32 s63, s65")
    retries = []
    BREG = [16, 24, 32, 40, 48, 56, 240, 248]
    ACC = 64
    a.vm_reset()
    def ldB(s):
        if s and (s & 3) == 0:
            a("s_add_u32 s64, s64, 4096"); a("s_add_u32 s65, s65, 4096")
        r = BREG[s % 8]
        a.vm(f"buffer_load_dwordx4 v[{r}:{r+3}], v1, {WS}, s64 offen offset:{(s&3)*1024} sc1", ("B", s))
        a.vm(f"buffer_load_dwordx4 v[{r+4}:{r+7}], v1, {WS}, s65 offen offset:{(s&3)*1024} sc1", ("B", s))
    for s in range(8):
        ldB(s)
    def check(r):
        a(f"v_max3_u32 v12, v{r}, v{r+1}, v{r+2}")
        a(f"v_max3_u32 v13, v{r+3}, v{r+4}, v{r+5}")
        a(f"v_max3_u32 v12, v{r+6}, v{r+7}, v12")
        a("v_max_u32 v12, v12, v13")
        a("v_cmp_eq_u32 vcc, -1, v12")
    stamp(a, "p5")
    for s in range(14):
        a.vm_wait(("B", s))
        if s in (0, 7): stamp(a, "p5")
        if SENT_D:
            lr = a.newlabel("rt"); lb = a.newlabel("rb")
            check(BREG[s % 8])
            a("s_nop 1")
            a(f"s_cbranch_vccnz {lr}")
            a.label(lb)
            retries.append((s, lr, lb))
        for ct in range(2):
            for tb in range(2):
                d = ACC + (ct * 2 + tb) * 16
                mfma(a, d, WD_R + (2 * s + ct) * 4, BREG[s % 8] + 4 * tb, None if s == 0 else d)
        if s + 8 < 14:
            ldB(s + 8)
    stamp(a); stamp(a, "p5")
    if PRIO2: a("s_setprio 0")
    a("v_and_b32 v12, 31, v0")
    a("v_lshrrev_b32 v13, 5, v0")
    a("v_lshlrev_b32 v13, 1, v13")
    a("v_and_b32 v14, 7, v12")
    a("v_xor_b32 v13, v13, v14")
    a("v_lshlrev_b32 v12, 8, v12")
    a(f"s_lshl_b32 s62, s{S_W}, 14")
    a("v_add_u32 v12, s62, v12")
    for k, (rg, q) in enumerate([(0, 0), (0, 1), (1, 0), (1, 1)]):
        a(f"v_xor_b32 v{16+k}, {rg*4+q}, v13")
        a(f"v_lshl_add_u32 v{16+k}, v{16+k}, 4, v12")
    if SENT_D:
        lskip = a.newlabel("rskip")
        a(f"s_branch {lskip}")
        for (s_, lr, lb) in retries:
            r = BREG[s_ % 8]
            a.label(lr)
            a(f"s_mov_b32 s79, {SPIN}")
            lp = a.newlabel("rl")
            a.label(lp)
            a("s_sleep 2")
            a(f"s_add_u32 s60, s62, {(s_ >> 2) * 4096}")
            a(f"s_add_u32 s61, s63, {(s_ >> 2) * 4096}")
            a(f"buffer_load_dwordx4 v[{r}:{r+3}], v1, {WS}, s60 offen offset:{(s_&3)*1024} sc1")
            a(f"buffer_load_dwordx4 v[{r+4}:{r+7}], v1, {WS}, s61 offen offset:{(s_&3)*1024} sc1")
            a("s_waitcnt vmcnt(0)")
            check(r)
            a("s_nop 4")
            a(f"s_cbranch_vccz {lb}")
            a("s_sub_u32 s79, s79, 1")
            a("s_cmp_lg_u32 s79, 0")
            a(f"s_cbranch_scc1 {lp}")
            a(f"s_branch {lb}")
        a.label(lskip)
        a("s_barrier")
    a("s_nop 3")
    for ct in range(2):
        for tb in range(2):
            d = ACC + (ct * 2 + tb) * 16
            for k, (rg, q) in enumerate([(0, 0), (0, 1), (1, 0), (1, 1)]):
                r = d + 8 * rg + 4 * q
                a(f"ds_write_b128 v{16+k}, v[{r}:{r+3}] offset:{ct*128 + tb*8192}")
    stamp(a, "p5")
    a("s_waitcnt lgkmcnt(0)")
    stamp(a, "p5")
    a("s_barrier")
    stamp(a, "p5")
    a("v_and_b32 v12, 7, v2")
    a("v_lshlrev_b32 v13, 1, v3")
    a("v_xor_b32 v14, v13, v12")
    a("v_or_b32 v13, 1, v13")
    a("v_xor_b32 v15, v13, v12")
    a("v_lshlrev_b32 v14, 4, v14")
    a("v_lshlrev_b32 v15, 4, v15")
    a("v_lshl_add_u32 v14, v2, 8, v14")
    a("v_lshl_add_u32 v15, v2, 8, v15")
    a("v_add_u32 v12, 65536, v14")
    a("v_add_u32 v13, 65536, v15")
    for src in range(8):
        b0, b1 = ("v14", "v15") if src < 4 else ("v12", "v13")
        a(f"ds_read_b128 v[{16+8*src}:{19+8*src}], {b0} offset:{(src&3)*16384}")
        a(f"ds_read_b128 v[{20+8*src}:{23+8*src}], {b1} offset:{(src&3)*16384}")
        if src == 3: a("s_waitcnt lgkmcnt(4)")
    a("s_mov_b32 s62, 0xffff0000")
    for i in range(4):
        a(f"v_lshlrev_b32 v{80+2*i}, 16, v{8+i}")
        a(f"v_and_b32 v{81+2*i}, s62, v{8+i}")
    a("s_waitcnt lgkmcnt(0)")
    stamp(a, "p5")
    for src in range(1, 8):
        for i in range(4):
            a(f"v_pk_add_f32 v[{16+2*i}:{17+2*i}], v[{16+2*i}:{17+2*i}], v[{16+8*src+2*i}:{17+8*src+2*i}]")
    for i in range(4):
        a(f"v_pk_add_f32 v[{16+2*i}:{17+2*i}], v[{16+2*i}:{17+2*i}], v[{80+2*i}:{81+2*i}]")
    for i in range(4):
        a(f"v_cvt_pk_bf16_f32 v{8+i}, v{16+2*i}, v{17+2*i}")
    a("v_lshlrev_b32 v4, 10, v2")
    a("v_lshl_add_u32 v4, v3, 4, v4")
    a(f"s_lshl_b32 s62, s{S_G}, 17")
    a("s_lshl_b32 s63, s72, 16")
    a("s_add_u32 s62, s62, s63")
    a("s_lshl_b32 s63, s77, 7")
    a("s_add_u32 s62, s62, s63")
    a(f"buffer_store_dwordx4 v[8:11], v4, s[{SRD_A}:{SRD_A+3}], s62 offen {OUT_FLAGS}")

def build():
    a = Asm()
    label = G.NAME + "_kernel"
    a.raw(G.HEADER.rstrip("\n"))
    a.raw("; @launch grid=(256,1,1) block=(512,1,1) lds=163840")
    a.raw('.amdgcn_target "amdgcn-amd-amdhsa--gfx950"')
    a.raw(".text")
    a.raw(f".globl {label}")
    a.raw(".p2align 8")
    a.raw(f".type {label},@function")
    a.raw(f"{label}:")
    if PROFILE:
        a("s_memtime s[98:99]")
        a("s_memrealtime s[100:101]")
        for k in range(16): a(f"s_mov_b32 s{80+k}, 0")
    G.WS_USED = WS_USED
    G.prologue(a, "L_fin")
    a(f"s_add_u32 s60, s{P_WS}, {NONCE}")
    a(f"s_addc_u32 s61, s{P_WS+1}, 0")
    a(f"s_load_dword s{S_NONCE}, s[60:61], 0")
    phase0(a)
    attention(a)
    p3(a)
    p4(a)
    p5(a)
    lnn = a.newlabel("nn")
    a("s_cmp_lg_u32 s2, 0")
    a(f"s_cbranch_scc1 {lnn}")
    a(f"s_cmp_lg_u32 s{S_W}, 0")
    a(f"s_cbranch_scc1 {lnn}")
    a(f"s_mov_b32 s62, {NONCE}")
    set_flag(a, 62, 28)
    a.label(lnn)
    if PROFILE:
        a(f"s_cmp_lg_u32 s{S_W}, {PROF_WAVE}")
        a("s_cbranch_scc1 L_fin")
        a("s_waitcnt vmcnt(0) lgkmcnt(0)")
        a("s_memtime s[96:97]")
        a("s_memrealtime s[54:55]")
        a("s_waitcnt lgkmcnt(0)")
        for k in range(16):
            a(f"s_sub_u32 s{80+k}, s{80+k}, s98")
            a(f"v_mov_b32 v{k}, s{80+k}")
        a("s_sub_u32 s96, s96, s98")
        a("s_sub_u32 s54, s54, s100")
        a("v_mov_b32 v16, s96")
        a("v_mov_b32 v17, s54")
        a("v_mov_b32 v18, s100")
        a("v_mov_b32 v19, 0")
        a("s_mul_i32 s54, s2, 128")
        a(f"s_add_u32 s54, s54, {PROF}")
        a("v_mov_b32 v20, 0")
        a("s_mov_b64 exec, 1")
        for q in range(5):
            a(f"buffer_store_dwordx4 v[{4*q}:{4*q+3}], v20, {WS}, s54 offen offset:{16*q}")
    a.label("L_fin")
    a("s_endpgm")
    a.raw('.section .rodata,"a"')
    a.raw(".p2align 6")
    G.descriptor(a, label, 256)
    return a.text()

if __name__ == "__main__":
    open(sys.argv[1], "w").write(build())
```

```python
import os, sys
from asmlib import Asm
import gen as G
from gen import (S_W, S_G, S_J, S_TBK, S_HQ, S_TQ, SRD_WS, SRD_A, SRD_B, SRD_C, SRD_D, mk_srd, f32hex,
                 dpp_sum16, xhalf, xrow16, OF, HF, KF, VF, HST, CSP, WOF, WDF, WGF, HHF, QSCALE,
                 P_X, P_WQ, P_WK, P_WV, P_WO, P_WG, P_WU, P_WD, P_OUT, P_DBG, P_WS)
from kernels2 import mfma
WS = f"s[{SRD_WS}:{SRD_WS+3}]"
FLG = 0x1410000
FLG_A, FLG_W, FLG_E, FLG_X = FLG, FLG + 64*128, FLG + 320*128, FLG + 576*128
FLG_B, FLG_C, FLG_D = FLG + 1024*128, FLG + 3072*128, FLG + 5120*128
NONCE = FLG + 7168*128
S_NONCE = 56
PROF = 0x1400000
WS_USED = 0x1500000
SPIN = 400000
S_LOCAL = 69
LOCAL_OK = os.environ.get('LOCAL_OK', '1') == '1'
LOCAL_DATA = os.environ.get('LOCAL_DATA', '')
PRIO2 = os.environ.get('PRIO2', '1') == '1'
DOUBLE = os.environ.get('DOUBLE', '')
ZROWS = os.environ.get('ZROWS', '1') == '1'
OUT_FLAGS = os.environ.get('OUT_FLAGS', '')
POLL_DELAY = int(os.environ.get('POLL_DELAY', '0'))
SENT_D = os.environ.get('SENT_D', '0') == '1'
FULL_LINE = os.environ.get('FULL_LINE', '1') == '1'
POLL_SLEEP = int(os.environ.get('POLL_SLEEP', '2'))
PROFILE = G.PROFILE
PROF_WAVE = G.PROF_WAVE
PRIO = os.environ.get("PRIO", "1") == "1"
NST = [0]
STAMPSET = os.environ.get("STAMPSET", "main")
def stamp(a, kind="main"):
    if not PROFILE: return
    if kind != STAMPSET: return
    k = NST[0]; NST[0] += 1
    assert k < 16
    a("s_waitcnt lgkmcnt(0)")
    a("s_memtime s[96:97]")
    a("s_waitcnt lgkmcnt(0)")
    a(f"s_mov_b32 s{80+k}, s96")

def spin_begin(a, name):
    l = a.newlabel(name)
    a(f"s_mov_b32 s79, {SPIN}")
    a.label(l)
    return l
def spin_end(a, l, done, sleep=1):
    a("s_nop 4")
    a(f"s_cbranch_vccz {done}")
    a(f"s_sleep {sleep}")
    a("s_sub_u32 s79, s79, 1")
    a("s_cmp_lg_u32 s79, 0")
    a(f"s_cbranch_scc1 {l}")
    a.label(done)

def gstore(a, instr, kind="f"):
    if not LOCAL_OK or (kind != "f" and kind not in LOCAL_DATA):
        a(instr + " sc1"); return
    lf = a.newlabel("gl"); le = a.newlabel("ge")
    a(f"s_cmp_eq_u32 s{S_LOCAL}, 1")
    a(f"s_cbranch_scc1 {lf}")
    a(instr + " sc1")
    a(f"s_branch {le}")
    a.label(lf)
    a(instr)
    a.label(le)

def poll_flags(a, soff_reg, nlanes, vtmp, voff, sleep=1, shift=7):
    done = a.newlabel("pd")
    a(f"v_lshlrev_b32 v{voff}, {shift}, v0")
    if nlanes < 64:
        a(f"s_mov_b64 exec, {hex((1 << nlanes) - 1)}")
    l = spin_begin(a, "pl")
    a(f"buffer_load_dword v{vtmp}, v{voff}, {WS}, s{soff_reg} offen sc1")
    a("s_waitcnt vmcnt(0)")
    a(f"v_cmp_ne_u32 vcc, s{S_NONCE}, v{vtmp}")
    spin_end(a, l, done, sleep)
    if nlanes < 64:
        a("s_mov_b64 exec, -1")

def set_flag(a, soff_reg, vtmp, fast_ok=False):
    a(f"v_mov_b32 v{vtmp}, s{S_NONCE}")
    if FULL_LINE:
        a(f"v_lshlrev_b32 v{vtmp+1}, 2, v0")
        a("s_mov_b32 exec_hi, 0")
    else:
        a(f"v_mov_b32 v{vtmp+1}, 0")
        a("s_mov_b64 exec, 1")
    if fast_ok:
        gstore(a, f"buffer_store_dword v{vtmp}, v{vtmp+1}, {WS}, s{soff_reg} offen")
    else:
        a(f"buffer_store_dword v{vtmp}, v{vtmp+1}, {WS}, s{soff_reg} offen sc1")
    a("s_mov_b64 exec, -1")

L_XN, L_WQ, L_WK, L_WV = 0, 32768, 131072, 147456
QSAVE = 244

def phase0(a):
    mk_srd(a, SRD_A, P_X, 2048 * 1024)
    mk_srd(a, SRD_B, P_WQ, 512 * 1024)
    a(f"s_lshl_b32 s54, s{S_TBK}, 5")
    a(f"s_lshl_b32 s55, s{S_W}, 2")
    a("s_add_u32 s54, s54, s55")
    a("v_lshrrev_b32 v2, 4, v0")
    a("v_and_b32 v3, 15, v0")
    a("v_add_u32 v4, s54, v2")
    a("v_lshlrev_b32 v4, 10, v4")
    a("v_lshl_add_u32 v4, v3, 4, v4")
    for i in range(4):
        a(f"buffer_load_dwordx4 v[{16+4*i}:{19+4*i}], v4, s[{SRD_A}:{SRD_A+3}], 0 offen offset:{256*i}")
    a("v_lshlrev_b32 v6, 4, v0")
    lskip = a.newlabel("nokv"); lj = a.newlabel("kvj")
    a(f"s_cmp_lg_u32 s{S_HQ}, 0")
    a(f"s_cbranch_scc1 {lskip}")
    mk_srd(a, SRD_C, P_WK, 16384)
    mk_srd(a, SRD_D, P_WV, 16384)
    a(f"s_lshl_b32 s60, s{S_W}, 11")
    for i in range(2):
        a(f"s_add_u32 s61, s60, {i*1024}")
        a(f"s_add_u32 m0, s61, {L_WK}")
        a("s_nop 0")
        a(f"buffer_load_dwordx4 v6, s[{SRD_C}:{SRD_C+3}], s61 offen lds")
        a(f"s_add_u32 m0, s61, {L_WV}")
        a("s_nop 0")
        a(f"buffer_load_dwordx4 v6, s[{SRD_D}:{SRD_D+3}], s61 offen lds")
    a.label(lskip)
    a("v_lshlrev_b32 v5, 2, v2")
    a("v_xor_b32 v5, v3, v5")
    a("v_lshlrev_b32 v5, 4, v5")
    a("v_lshl_add_u32 v5, v2, 10, v5")
    a(f"s_lshl_b32 s55, s{S_HQ}, 8")
    a("v_add_u32 v5, s55, v5")
    a(f"s_lshl_b32 s62, s{S_W}, 12")
    a(f"s_add_u32 s62, s62, {L_WQ}")
    a(f"s_lshl_b32 s63, s{S_W}, 14")
    def wq_dma(q):
        for i in range(4):
            a(f"s_add_u32 m0, s62, {q * 32768 + i * 1024}")
            a(f"s_add_u32 s64, s63, {(q * 128 + 4 * i) * 1024}")
            a(f"buffer_load_dwordx4 v5, s[{SRD_B}:{SRD_B+3}], s64 offen lds")
    wq_dma(0)
    stamp(a, "p0")
    a("s_waitcnt vmcnt(4)")
    stamp(a); stamp(a, "p0")
    b = Asm()
    if True:
        b("s_mov_b32 s60, 0x3f803f80")
        for r in range(4): b(f"v_mov_b32 v{32+r}, 0")
        for i in range(16):
            b(f"v_dot2_f32_bf16 v{32 + (i & 1)}, v{16+i}, s60, v{32 + (i & 1)}")
            b(f"v_dot2_f32_bf16 v{34 + (i & 1)}, v{16+i}, v{16+i}, v{34 + (i & 1)}")
        b("s_mov_b32 s61, 0xffff0000")
        for i in range(4):
            b(f"v_lshlrev_b32 v{64+2*i}, 16, v{16+i}")
            b(f"v_and_b32 v{65+2*i}, s61, v{16+i}")
        b("v_add_f32 v32, v32, v33")
        b("v_add_f32 v34, v34, v35")
        for n, sh in enumerate((8, 4, 2, 1)):
            for i in range(4 + 3*n, 7 + 3*n):
                b(f"v_lshlrev_b32 v{64+2*i}, 16, v{16+i}")
                b(f"v_and_b32 v{65+2*i}, s61, v{16+i}")
            b(f"v_add_f32_dpp v32, v32, v32 row_ror:{sh} row_mask:0xf bank_mask:0xf")
            b(f"v_add_f32_dpp v34, v34, v34 row_ror:{sh} row_mask:0xf bank_mask:0xf")
        b(f"v_mul_f32 v32, {f32hex(1.0/512)}, v32")
        b("v_mul_f32 v33, v32, v32")
        b(f"v_mov_b32 v35, {f32hex(1.0/512)}")
        b("v_fma_f32 v34, v34, v35, -v33")
        b("v_max_f32 v34, 0, v34")
        b(f"v_add_f32 v34, {f32hex(1e-5)}, v34")
        b("v_rsq_f32 v38, v34")
        b.c("XN write addr")
        b(f"s_lshl_b32 s55, s{S_W}, 2")
        b("v_add_u32 v7, s55, v2")
        b("v_mov_b32 v39, v38")
        b("v_mul_f32 v36, v32, v38")
        b("v_sub_f32 v36, 0, v36")
        b("v_mov_b32 v37, v36")
        for i in range(16):
            b(f"v_pk_fma_f32 v[{64+2*i}:{65+2*i}], v[{64+2*i}:{65+2*i}], v[38:39], v[36:37]")
        b("v_and_b32 v8, 7, v3")
        b("v_xor_b32 v7, v7, v8")
        b("v_lshlrev_b32 v7, 4, v7")
        b("v_lshrrev_b32 v8, 1, v3")
        b("v_lshl_add_u32 v7, v8, 10, v7")
        b("v_and_b32 v8, 1, v3")
        b("v_lshl_add_u32 v7, v8, 9, v7")
        for i in range(4):
            for e in range(4):
                b(f"v_cvt_pk_bf16_f32 v{16+4*i+e}, v{64+8*i+2*e}, v{65+8*i+2*e}")
            b(f"ds_write_b128 v7, v[{16+4*i}:{19+4*i}] offset:{L_XN + i*8192}")

    a.L.extend(b.L)
    wq_dma(1); wq_dma(2)
    a("v_lshrrev_b32 v8, 5, v0")
    a("v_and_b32 v9, 31, v0")
    for m in range(4):
        a(f"v_add_u32 v10, {2*m}, v8")
        a("v_xor_b32 v10, v9, v10")
        a("v_lshlrev_b32 v10, 4, v10")
        a(f"v_lshl_add_u32 v{40+m}, v8, 9, v10")
    a("v_lshrrev_b32 v10, 2, v3")
    a("v_and_b32 v11, 3, v3")
    a("v_lshl_add_u32 v12, v8, 3, v10")
    a.c("wq fragment rows 0..15 = head 2p, rows 16..31 = head 2p+1 ; chunk = 4p + 2blk + (cg>>1), swizzled by r4<<2")
    a(f"s_and_b32 s55, s{S_W}, 3")
    a("s_lshl_b32 s55, s55, 2")
    a("v_lshrrev_b32 v13, 1, v11")
    a("v_add_u32 v13, s55, v13")
    a("v_and_b32 v14, 1, v2")
    a("v_lshl_add_u32 v13, v14, 1, v13")
    a("v_lshlrev_b32 v14, 2, v10")
    a("v_xor_b32 v13, v13, v14")
    a("v_lshlrev_b32 v13, 4, v13")
    a("v_lshl_add_u32 v13, v12, 8, v13")
    a("v_and_b32 v14, 1, v11")
    a("v_lshl_add_u32 v13, v14, 3, v13")
    a(f"s_lshr_b32 s55, s{S_W}, 2")
    a("s_lshl_b32 s55, s55, 12")
    a(f"s_add_u32 s55, s55, {L_WQ}")
    a("v_add_u32 v44, s55, v13")
    stamp(a, "p0")
    a("s_waitcnt lgkmcnt(0)")
    a.c("launch tag: a fixed-point-free bijection of the tag the previous launch left (any value works)")
    a(f"s_mul_i32 s{S_NONCE}, s{S_NONCE}, 0x9E3779B1")
    a(f"s_add_u32 s{S_NONCE}, s{S_NONCE}, 0x7F4A7C15")
    a("s_barrier")
    stamp(a); stamp(a, "p0")
    lx = a.newlabel("xid")
    a(f"s_cmp_lg_u32 s{S_W}, 3")
    a(f"s_cbranch_scc1 {lx}")
    a.c("tell the other members of the group which XCD this workgroup runs on")
    a("s_getreg_b32 s55, hwreg(HW_REG_XCC_ID, 0, 4)")
    a(f"v_mov_b32 v50, s{S_NONCE}")
    a("v_mov_b32 v51, s55")
    a("v_lshlrev_b32 v52, 3, v0")
    a(f"s_lshl_b32 s55, s{S_G}, 4")
    a(f"s_add_u32 s55, s55, s{S_J}")
    a("s_lshl_b32 s55, s55, 7")
    a(f"s_add_u32 s55, s55, {FLG_X}")
    a("s_mov_b64 exec, 0xffff")
    a(f"buffer_store_dwordx2 v[50:51], v52, {WS}, s55 offen sc1")
    a("s_mov_b64 exec, -1")
    a.label(lx)
    lkvd = a.newlabel("kvdone"); lkv1 = a.newlabel("kv1"); lkv0 = a.newlabel("kv0")
    a(f"s_cmp_eq_u32 s{S_HQ}, 0")
    a(f"s_cbranch_scc1 {lkv0}")
    wq_dma(3)
    a(f"s_branch {lkv1}")
    a.label(lkv0)
    a.c("tr addr: blk0 -> WV, blk1 -> WK ; row (64w + 16e + 8khalf + 4rd + r4)*32 + cg*8")
    a("v_lshlrev_b32 v13, 5, v12")
    a("v_lshl_add_u32 v13, v11, 3, v13")
    a(f"s_lshl_b32 s55, s{S_W}, 11")
    a("v_add_u32 v13, s55, v13")
    a("v_and_b32 v14, 1, v2")
    a(f"v_mov_b32 v15, {L_WV}")
    a(f"v_mov_b32 v45, {L_WK}")
    a("v_cmp_eq_u32 vcc, 1, v14")
    a("s_nop 1")
    a("v_cndmask_b32 v15, v15, v45, vcc")
    a("v_add_u32 v13, v13, v15")
    a.c("xn frags for k-steps 4w..4w+3 : s&3 = e")
    a(f"s_lshl_b32 s55, s{S_W}, 12")
    for e in range(4):
        a(f"v_add_u32 v{46+e}, s55, v{40+e}")
    for e in range(4):
        a(f"ds_read_b64_tr_b16 v[{64+4*e}:{65+4*e}], v13 offset:{e*512}")
        a(f"ds_read_b64_tr_b16 v[{66+4*e}:{67+4*e}], v13 offset:{e*512+128}")
        a(f"ds_read_b128 v[{80+4*e}:{83+4*e}], v{46+e} offset:{L_XN + e*1024}")
    for e in range(4):
        a(f"s_waitcnt lgkmcnt({9-3*e})")
        mfma(a, 96, 64 + 4 * e, 80 + 4 * e, None if e == 0 else 96)
    a.c("RED: q=0,1 -> WK + w*2048 + q*1024 ; q=2,3 -> WV + w*2048 + (q-2)*1024  (own, already consumed rows)")
    a(f"s_lshl_b32 s55, s{S_W}, 11")
    a(f"s_add_u32 s55, s55, {L_WK}")
    a("v_add_u32 v14, s55, v6")
    a(f"v_add_u32 v15, {L_WV - L_WK}, v14")
    a("s_nop 10")
    a("ds_write_b128 v14, v[96:99]")
    a("ds_write_b128 v14, v[100:103] offset:1024")
    a("ds_write_b128 v15, v[104:107]")
    a("ds_write_b128 v15, v[108:111] offset:1024")
    a.label(lkv1)
    stamp(a, "p0")
    a("s_waitcnt vmcnt(8) lgkmcnt(0)")
    stamp(a, "p0")
    a("s_barrier")
    stamp(a, "p0")
    a(f"s_cmp_lg_u32 s{S_HQ}, 0")
    a(f"s_cbranch_scc1 {lkvd}")
    lv = a.newlabel("kv_v")
    a(f"s_cmp_eq_u32 s{S_W}, 1")
    a(f"s_cbranch_scc1 {lv}")
    a(f"s_cmp_lg_u32 s{S_W}, 0")
    a(f"s_cbranch_scc1 {lkvd}")
    def red8(base):
        a(f"v_add_u32 v14, {base}, v6")
        for ww in range(8):
            a(f"ds_read_b128 v[{64+8*ww}:{67+8*ww}], v14 offset:{ww*2048}")
            a(f"ds_read_b128 v[{68+8*ww}:{71+8*ww}], v14 offset:{ww*2048+1024}")
            if ww == 3: a("s_waitcnt lgkmcnt(4)")
        a("s_waitcnt lgkmcnt(0)")
        for ww in range(1, 8):
            for i in range(4):
                a(f"v_pk_add_f32 v[{64+2*i}:{65+2*i}], v[{64+2*i}:{65+2*i}], v[{64+8*ww+2*i}:{65+8*ww+2*i}]")
        for r in range(4):
            a(f"v_cvt_pk_bf16_f32 v{76+r}, v{64+2*r}, v{65+2*r}")
    red8(L_WV)
    a(f"s_lshl_b32 s55, s{S_TBK}, 10")
    a(f"s_add_u32 s55, s55, {KF}")
    a(f"buffer_store_dwordx4 v[76:79], v6, {WS}, s55 offen sc1")
    a("v_mov_b32 v80, 0")
    for r in range(4):
        a(f"v_dot2_f32_bf16 v80, v{76+r}, v{76+r}, v80")
    a("s_nop 2")
    xhalf(a, 80, 81, "v_add_f32")
    dpp_sum16(a, 80, "v_max_f32")
    xrow16(a, 80, 81, "v_max_f32")
    a(f"v_mov_b32 v{QSAVE+9}, v80")
    a(f"s_branch {lkvd}")
    a.label(lv)
    red8(L_WK)
    a("v_lshlrev_b32 v80, 5, v9")
    a("v_lshl_add_u32 v80, v8, 3, v80")
    a(f"v_add_u32 v80, {L_WK}, v80")
    a("ds_write_b64 v80, v[76:77]")
    a("ds_write_b64 v80, v[78:79] offset:16")
    a("v_lshl_add_u32 v81, v8, 2, v10")
    a("v_lshlrev_b32 v81, 5, v81")
    a("v_and_b32 v82, 1, v11")
    a("v_lshlrev_b32 v82, 1, v82")
    a("v_lshrrev_b32 v83, 1, v11")
    a("v_add_u32 v82, v82, v83")
    a("v_lshl_add_u32 v81, v82, 3, v81")
    a(f"v_add_u32 v81, {L_WK}, v81")
    a("s_waitcnt lgkmcnt(0)")
    for c2 in range(2):
        for rd in range(2):
            d = 84 + 4 * c2 + 2 * rd
            a(f"ds_read_b64_tr_b16 v[{d}:{d+1}], v81 offset:{(16*c2 + 8*rd) * 32}")
    a("v_lshl_add_u32 v82, v8, 4, v3")
    a("v_lshlrev_b32 v82, 4, v82")
    a(f"s_lshl_b32 s55, s{S_TBK}, 10")
    a(f"s_add_u32 s55, s55, {VF}")
    a("s_waitcnt lgkmcnt(0)")
    a("s_mov_b32 exec_lo, 0x0000ffff")
    a("s_mov_b32 exec_hi, 0x0000ffff")
    a(f"buffer_store_dwordx4 v[84:87], v82, {WS}, s55 offen sc1")
    a(f"buffer_store_dwordx4 v[88:91], v82, {WS}, s55 offen offset:512 sc1")
    a("s_mov_b64 exec, -1")
    a.label(lkvd)
    a("v_add_u32 v45, 1024, v44")
    stamp(a, "p0")
    def publish_kv():
        lnf = a.newlabel("noflag")
        a(f"s_cmp_lg_u32 s{S_HQ}, 0")
        a(f"s_cbranch_scc1 {lnf}")
        a(f"s_cmp_lg_u32 s{S_W}, 0")
        a(f"s_cbranch_scc1 {lnf}")
        a(f"s_lshl_b32 s55, s{S_TBK}, 7")
        a(f"s_add_u32 s55, s55, {FLG_A}")
        a("v_lshlrev_b32 v80, 3, v0")
        a(f"v_mov_b32 v{QSAVE+8}, s{S_NONCE}")
        a("s_mov_b64 exec, 0xffff")
        a(f"buffer_store_dwordx2 v[{QSAVE+8}:{QSAVE+9}], v80, {WS}, s55 offen sc1")
        a("s_mov_b64 exec, -1")
        a.label(lnf)
    ACC = 96
    AB = [112, 116, 120]; BB = [124, 128, 132]
    a.c("x fragment addresses: k-step s = 2u + kh, swizzle index s&3 = (2(u&1) + kh)")
    a(f"s_lshr_b32 s55, s{S_W}, 2")
    a("s_cmp_eq_u32 s55, 0")
    a("s_cselect_b64 vcc, -1, 0")
    a("s_lshl_b32 s55, s55, 10")
    a("v_cndmask_b32 v46, v41, v40, vcc")
    a("v_cndmask_b32 v47, v43, v42, vcc")
    a("v_add_u32 v46, s55, v46")
    a("v_add_u32 v47, s55, v47")
    def issue(u):
        A = AB[u % 3]; B = BB[u % 3]
        a.lg(f"ds_read_b64_tr_b16 v[{A}:{A+1}], v44", u)
        a.lg(f"ds_read_b64_tr_b16 v[{A+2}:{A+3}], v45", u)
        a.lg(f"ds_read_b128 v[{B}:{B+3}], v{46 + (u & 1)} offset:{L_XN + u*2048}", u)
        a("v_add_u32 v44, 8192, v44"); a("v_add_u32 v45, 8192, v45")
    a.lgq = []
    issue(0); issue(1)
    for u in range(16):
        if u + 2 < 16:
            if u + 2 == 4:
                a("s_waitcnt vmcnt(0)")
                a("s_barrier")
                stamp(a, "p0"); a.lgq = [] if PROFILE and STAMPSET == "p0" else a.lgq
                publish_kv()
                l3 = a.newlabel("q3b")
                a(f"s_cmp_lg_u32 s{S_HQ}, 0")
                a(f"s_cbranch_scc1 {l3}")
                wq_dma(3)
                a.label(l3)
            if u + 2 == 12:
                a("s_waitcnt vmcnt(0)")
                a("s_barrier")
            issue(u + 2)
        a.lg_wait(u)
        mfma(a, ACC, AB[u % 3], BB[u % 3], None if u == 0 else ACC)
    a.c("add the other half of the k range (wave w ^ 4); exchange through wq slot 0")
    a(f"s_lshl_b32 s55, s{S_W}, 12")
    a(f"s_add_u32 s55, s55, {L_WQ}")
    a("v_add_u32 v14, s55, v6")
    a(f"s_xor_b32 s55, s{S_W}, 4")
    a("s_lshl_b32 s55, s55, 12")
    a(f"s_add_u32 s55, s55, {L_WQ}")
    a("v_add_u32 v15, s55, v6")
    a("s_nop 9")
    for q in range(4):
        a(f"ds_write_b128 v14, v[{ACC+4*q}:{ACC+4*q+3}] offset:{q*1024}")
    a("s_waitcnt lgkmcnt(0)")
    a("s_barrier")
    for q in range(4):
        a(f"ds_read_b128 v[{64+4*q}:{67+4*q}], v15 offset:{q*1024}")
    a(f"v_mov_b32 v36, {f32hex(QSCALE)}")
    a("v_mov_b32 v37, v36")
    a("s_waitcnt lgkmcnt(0)")
    for i in range(8):
        a(f"v_pk_add_f32 v[{64+2*i}:{65+2*i}], v[{64+2*i}:{65+2*i}], v[{ACC+2*i}:{ACC+2*i+1}]")
    for i in range(8):
        a(f"v_pk_mul_f32 v[{64+2*i}:{65+2*i}], v[{64+2*i}:{65+2*i}], v[36:37]")
    for r in range(8):
        a(f"v_cvt_pk_bf16_f32 v{QSAVE+r}, v{64+2*r}, v{65+2*r}")
    stamp(a); stamp(a, "p0")
    a("s_barrier")
    stamp(a, "p0")

L_SCR = 131072
S_JOB = 78
V_WJS, V_WJT, V_WJC = 140, 141, 142
SRD_J1, SRD_J2 = 20, 36
def wj_setup(a):
    a("v_lshrrev_b32 v143, 4, v0")
    a("v_and_b32 v144, 15, v0")
    a("v_lshrrev_b32 v145, 5, v0")
    a("v_lshrrev_b32 v146, 2, v144")
    a("v_and_b32 v147, 3, v144")
    a("v_and_b32 v148, 1, v147")
    a("v_lshlrev_b32 v148, 1, v148")
    a("v_lshrrev_b32 v149, 1, v147")
    a("v_add_u32 v148, v148, v149")
    a("v_lshlrev_b32 v148, 3, v148")
    a("v_and_b32 v149, 1, v143")
    a("v_lshl_add_u32 v150, v145, 3, v146")
    a(f"s_lshl_b32 s57, s{S_W}, 12")
    a(f"s_add_u32 s57, s57, {L_SCR}")
    a(f"s_mov_b32 s{S_JOB}, 0")
    lo = a.newlabel("wjo"); ld = a.newlabel("wjd")
    a("s_cmp_ge_u32 s2, 112")
    a(f"s_cbranch_scc1 {lo}")
    a(f"s_mov_b32 s{S_JOB}, 1")
    a("s_lshr_b32 s60, s2, 2")
    a("s_and_b32 s61, s2, 3")
    a("s_lshl_b32 s62, s61, 3")
    a(f"s_add_u32 s62, s62, s{S_W}")
    mk_srd(a, SRD_J1, P_WG, 512 * 3584)
    mk_srd(a, SRD_J2, P_WU, 512 * 3584)
    a("v_lshrrev_b32 v151, 3, v0")
    a("s_mov_b32 s63, 3584")
    a("v_mul_lo_u32 v151, v151, s63")
    a("v_and_b32 v152, 7, v0")
    a(f"v_lshl_add_u32 v{V_WJS}, v152, 4, v151")
    a("s_mul_i32 s58, s62, 57344")
    a("s_lshl_b32 s63, s60, 7")
    a("s_add_u32 s58, s58, s63")
    a("v_lshlrev_b32 v151, 7, v150")
    a("v_lshl_add_u32 v151, v149, 11, v151")
    a("v_add_u32 v151, v151, v148")
    a(f"v_add_u32 v{V_WJT}, s57, v151")
    a("s_lshl_b32 s59, s60, 7")
    a("s_add_u32 s59, s59, s62")
    a("s_lshl_b32 s59, s59, 10")
    a(f"s_add_u32 s59, s59, {WGF}")
    a("s_mul_i32 s72, s61, 112")
    a("s_lshl_b32 s63, s60, 2")
    a("s_add_u32 s72, s72, s63")
    a("s_lshl_b32 s72, s72, 7")
    a(f"s_add_u32 s72, s72, {CSP}")
    a("v_lshlrev_b32 v151, 2, v0")
    a(f"v_add_u32 v{V_WJC}, s57, v151")
    a.c("warm the L2 with the 16 source rows (one 128-byte line per row and matrix)")
    a("v_and_b32 v151, 15, v0")
    a("s_mov_b32 s63, 3584")
    a("v_mul_lo_u32 v151, v151, s63")
    a(f"buffer_load_dword v153, v151, s[{SRD_J1}:{SRD_J1+3}], s58 offen")
    a(f"buffer_load_dword v154, v151, s[{SRD_J2}:{SRD_J2+3}], s58 offen")
    a(f"s_branch {ld}")
    a.label(lo)
    a("s_cmp_ge_u32 s2, 184")
    a(f"s_cbranch_scc1 {ld}")
    a("s_sub_u32 s60, s2, 112")
    a("s_lshl_b32 s60, s60, 3")
    a(f"s_add_u32 s60, s60, s{S_W}")
    lwd = a.newlabel("wjwd")
    a("s_cmp_ge_u32 s60, 128")
    a(f"s_cbranch_scc1 {lwd}")
    a(f"s_mov_b32 s{S_JOB}, 3")
    mk_srd(a, SRD_J1, P_WO, 512 * 1024)
    a("s_lshr_b32 s61, s60, 3")
    a("s_and_b32 s62, s60, 7")
    a("v_lshrrev_b32 v151, 3, v0")
    a("v_lshlrev_b32 v151, 10, v151")
    a("v_and_b32 v152, 7, v0")
    a(f"v_lshl_add_u32 v{V_WJS}, v152, 4, v151")
    a("s_lshl_b32 s58, s61, 15")
    a("s_lshl_b32 s60, s62, 7")
    a("s_add_u32 s58, s58, s60")
    a("s_mov_b32 s69, 8192")
    a("v_lshl_add_u32 v151, v143, 3, v146")
    a("v_lshlrev_b32 v151, 7, v151")
    a("v_lshl_add_u32 v151, v147, 3, v151")
    a(f"v_add_u32 v{V_WJT}, s57, v151")
    a("s_lshl_b32 s59, s62, 6")
    a("s_add_u32 s59, s59, s61")
    a("s_lshl_b32 s59, s59, 10")
    a(f"s_add_u32 s59, s59, {WOF}")
    a("s_mov_b32 s72, 16384")
    a("v_and_b32 v151, 31, v0")
    a("v_lshlrev_b32 v151, 10, v151")
    a(f"buffer_load_dword v153, v151, s[{SRD_J1}:{SRD_J1+3}], s58 offen")
    a(f"s_branch {ld}")
    a.label(lwd)
    a(f"s_mov_b32 s{S_JOB}, 2")
    a("s_sub_u32 s60, s60, 128")
    mk_srd(a, SRD_J1, P_WD, 1792 * 1024)
    a("s_lshr_b32 s61, s60, 2")
    a("s_and_b32 s62, s60, 3")
    a("v_lshlrev_b32 v151, 10, v143")
    a(f"v_lshl_add_u32 v{V_WJS}, v144, 4, v151")
    a("s_lshl_b32 s58, s61, 14")
    a("s_lshl_b32 s60, s62, 8")
    a("s_add_u32 s58, s58, s60")
    a("s_mov_b32 s69, 4096")
    a("v_lshlrev_b32 v151, 8, v150")
    a("v_lshl_add_u32 v151, v149, 5, v151")
    a("v_add_u32 v151, v151, v148")
    a(f"v_add_u32 v{V_WJT}, s57, v151")
    a("s_lshl_b32 s59, s62, 2")
    a("s_mul_i32 s59, s59, 112")
    a("s_add_u32 s59, s59, s61")
    a("s_lshl_b32 s59, s59, 10")
    a(f"s_add_u32 s59, s59, {WDF}")
    a(f"s_mov_b32 s72, {112*1024}")
    a("v_and_b32 v151, 31, v0")
    a("v_lshrrev_b32 v152, 1, v151")
    a("v_lshlrev_b32 v152, 10, v152")
    a("v_and_b32 v151, 1, v151")
    a("v_lshl_add_u32 v151, v151, 7, v152")
    a(f"buffer_load_dword v153, v151, s[{SRD_J1}:{SRD_J1+3}], s58 offen")
    a.label(ld)

def wj_branch(a, g_code, o_code):
    lo = a.newlabel("jo"); le = a.newlabel("je")
    a(f"s_cmp_eq_u32 s{S_JOB}, 1")
    a(f"s_cbranch_scc0 {lo}")
    if g_code: g_code()
    a(f"s_branch {le}")
    a.label(lo)
    if o_code:
        a(f"s_cmp_eq_u32 s{S_JOB}, 0")
        a(f"s_cbranch_scc1 {le}")
        o_code()
    a.label(le)

def wj_issue(a, part=None):
    def g():
        for i in ([0, 1] if part is None else [part]):
            a(f"s_add_u32 m0, s57, {i*1024}")
            a(f"s_add_u32 s63, s58, {i*8*3584}")
            a(f"buffer_load_dwordx4 v{V_WJS}, s[{SRD_J1}:{SRD_J1+3}], s63 offen lds")
            a(f"s_add_u32 m0, s57, {2048 + i*1024}")
            a("s_nop 0")
            a(f"buffer_load_dwordx4 v{V_WJS}, s[{SRD_J2}:{SRD_J2+3}], s63 offen lds")
    def o():
        for i in (range(4) if part is None else [2 * part, 2 * part + 1]):
            a(f"s_add_u32 m0, s57, {i*1024}")
            a(f"s_mul_i32 s63, s69, {i}")
            a(f"s_add_u32 s63, s63, s58")
            a(f"buffer_load_dwordx4 v{V_WJS}, s[{SRD_J1}:{SRD_J1+3}], s63 offen lds")
    wj_branch(a, g, o)

def wj_read(a, n_younger):
    def rd(st, rdoff):
        def f():
            a(f"s_waitcnt vmcnt({n_younger})")
            for q in range(4):
                d = 112 + 4 * q
                a(f"ds_read_b64_tr_b16 v[{d}:{d+1}], v{V_WJT} offset:{q*st}")
                a(f"ds_read_b64_tr_b16 v[{d+2}:{d+3}], v{V_WJT} offset:{q*st + rdoff}")
        return f
    l2 = a.newlabel("jr2"); le = a.newlabel("jre")
    a(f"s_cmp_eq_u32 s{S_JOB}, 0")
    a(f"s_cbranch_scc1 {le}")
    a(f"s_cmp_eq_u32 s{S_JOB}, 2")
    a(f"s_cbranch_scc1 {l2}")
    rd(32, 512)()
    a(f"s_branch {le}")
    a.label(l2)
    rd(64, 1024)()
    a.label(le)

def wj_store(a):
    def g():
        for r in range(4):
            a(f"v_mov_b32 v{128+r}, 0x3f803f80")
        for q in range(4):
            d = 112 + 4 * q
            a(f"s_add_u32 s63, s59, {q*32768}")
            a(f"buffer_store_dwordx4 v[{d}:{d+3}], v1, {WS}, s63 offen sc1")
        for q in range(4):
            mfma(a, 160 + 16 * q, 128, 112 + 4 * q, None)
    def o():
        a("s_mov_b32 s63, s59")
        for q in range(4):
            d = 112 + 4 * q
            a(f"buffer_store_dwordx4 v[{d}:{d+3}], v1, {WS}, s63 offen sc1")
            if q < 3: a("s_add_u32 s63, s63, s72")
    wj_branch(a, g, o)

def wj_cspart(a):
    def g():
        a("s_mov_b32 exec_hi, 0")
        for q in range(4):
            a(f"ds_write_b32 v{V_WJC}, v{160 + 16 * q} offset:{q*128}")
        a("s_mov_b64 exec, -1")
    wj_branch(a, g, None)

def wj_csread(a):
    def g():
        l = a.newlabel("csr")
        a(f"s_cmp_ge_u32 s{S_W}, 2")
        a(f"s_cbranch_scc1 {l}")
        a(f"s_lshl_b32 s63, s{S_W}, 8")
        a("v_lshlrev_b32 v132, 2, v0")
        a("v_add_u32 v132, s63, v132")
        a(f"v_add_u32 v133, {L_SCR}, v132")
        for ww in range(8):
            a(f"ds_read_b32 v{112+ww}, v133 offset:{ww*4096}")
        a.label(l)
    wj_branch(a, g, None)

def wj_csstore(a):
    def g():
        l = a.newlabel("css")
        a(f"s_cmp_ge_u32 s{S_W}, 2")
        a(f"s_cbranch_scc1 {l}")
        for ww in range(1, 8):
            a(f"v_add_f32 v112, v112, v{112+ww}")
        a(f"buffer_store_dword v112, v132, {WS}, s72 offen sc1")
        a.label(l)
    wj_branch(a, g, None)

def wj_signal(a):
    l = a.newlabel("wsig")
    a(f"s_cmp_eq_u32 s{S_JOB}, 0")
    a(f"s_cbranch_scc1 {l}")
    a(f"s_cmp_lg_u32 s{S_W}, 0")
    a(f"s_cbranch_scc1 {l}")
    a("s_lshl_b32 s63, s2, 7")
    a(f"s_add_u32 s63, s63, {FLG_W}")
    set_flag(a, 63, 112)
    a.label(l)

A_Q, A_O, A_S, A_P = 4, 8, [24, 40], 56
A_K = [64, 68]
A_V = [[72, 76], [80, 84]]
A_VK, A_VV = 88, 89
A_NEG = 96
A_Q2, A_O2 = 92, 96
WO_R = 112
NG_LATE = 12
WG_R = 128
XR = 60
BOUND2 = 1600.0

def attn_tile(a, p, extra=None):
    h = p & 1; i = p >> 1
    S = A_S[h]; Q = [A_Q, A_Q2]; O = [A_O, A_O2]
    def ex(r): a(f"v_exp_f32 v{S+r}, v{S+r}")
    def cv(k): a(f"v_cvt_pk_bf16_f32 v{A_P+k}, v{S+2*k}, v{S+2*k+1}")
    a("s_waitcnt lgkmcnt(0)")
    if h == 0:
        mfma(a, A_S[1], A_K[i & 1], Q[1], None)
    else:
        mfma(a, A_S[0], A_K[(i + 1) & 1], Q[0], None)
        a(f"ds_read_b128 v[{A_K[i & 1]}:{A_K[i & 1]+3}], v{A_VK} offset:{(i+2)*1024}")
    ex(0); ex(1); ex(2); ex(3)
    cv(0)
    if h == 0:
        mfma(a, O[1], A_V[1][(i - 1) & 1], A_P + 4, O[1])
        nb = (i + 1) & 1
        a("s_mov_b64 exec, s[70:71]")
        a(f"ds_read_b128 v[{A_V[0][nb]}:{A_V[0][nb]+3}], v{A_VV} offset:{(i+1)*1024}")
        a(f"ds_read_b128 v[{A_V[1][nb]}:{A_V[1][nb]+3}], v{A_VV} offset:{(i+1)*1024 + 512}")
        a("s_mov_b64 exec, -1")
    else:
        mfma(a, O[0], A_V[1][i & 1], A_P + 4, O[0])
    if extra: extra()
    ex(4); cv(1); ex(5); ex(6); ex(7); cv(2); ex(8); cv(3)
    ex(9); ex(10); ex(11)
    mfma(a, O[h], A_V[0][i & 1], A_P, O[h])
    cv(4); ex(12); cv(5); ex(13); ex(14); ex(15); cv(6)
    cv(7)

def wave_consts(a):
    a.c("WOF + (8cq + w)*16384 -> s68")
    a(f"s_lshl_b32 s68, s{S_HQ}, 3")
    a(f"s_add_u32 s68, s68, s{S_W}")
    a("s_lshl_b32 s68, s68, 14")
    a(f"s_add_u32 s68, s68, {WOF}")
    a.c("WGF + fb*32768 -> s73, fb = 7j + w (waves 0..6; wave 7 uses fb of wave 6, harmless duplicate)")
    a(f"s_min_u32 s73, s{S_W}, 6")
    a(f"s_mul_i32 s74, s{S_J}, 7")
    a("s_add_u32 s74, s74, s73")
    a("s_lshl_b32 s73, s74, 15")
    a(f"s_add_u32 s73, s73, {WGF}")

def ld_wg(a, s, tag="WG"):
    a(f"s_add_u32 s75, s73, {(s >> 2) * 4096}")
    a.vm(f"buffer_load_dwordx4 v[{WG_R+4*s}:{WG_R+4*s+3}], v1, {WS}, s75 offen offset:{(s&3)*1024} sc1", (tag, s))
def ld_wo(a, s):
    a(f"s_add_u32 s75, s68, {(s >> 2) * 4096}")
    a.vm(f"buffer_load_dwordx4 v[{WO_R+4*s}:{WO_R+4*s+3}], v1, {WS}, s75 offen offset:{(s&3)*1024} sc1", ("WO", s))

def prefetch_lists():
    it2 = [("g", s) for s in range(7, 32)]
    it3 = [("o", s) for s in range(16)]
    return it2, it3

def kv_dma(a, st, part=None):
    if part in (None, 0):
        a(f"s_add_u32 m0, s60, {st*8192}")
        a(f"s_add_u32 s62, s60, {st*8192 + KF}")
        a(f"buffer_load_dwordx4 v1, {WS}, s62 offen sc1 lds")
        a(f"buffer_load_dwordx4 v1, {WS}, s62 offen offset:1024 sc1 lds")
    if part in (None, 1):
        a(f"s_add_u32 m0, s60, {st*8192 + 65536}")
        a(f"s_add_u32 s62, s60, {st*8192 + VF}")
        a(f"buffer_load_dwordx4 v1, {WS}, s62 offen sc1 lds")
        a(f"buffer_load_dwordx4 v1, {WS}, s62 offen offset:1024 sc1 lds")

def wready_poll(a):
    l = a.newlabel("wrq")
    a(f"s_cmp_lg_u32 s{S_W}, 0")
    a(f"s_cbranch_scc1 {l}")
    a("v_lshlrev_b32 v2, 7, v0")
    a("v_add_u32 v3, 128, v0")
    a("v_min_u32 v3, 183, v3")
    a("v_lshlrev_b32 v3, 7, v3")
    a(f"s_mov_b32 s63, {FLG_W}")
    a(f"buffer_load_dword v112, v2, {WS}, s63 offen sc1")
    a(f"s_mov_b32 s63, {FLG_W + 64*128}")
    a(f"buffer_load_dword v113, v2, {WS}, s63 offen sc1")
    a(f"s_mov_b32 s63, {FLG_W}")
    a(f"buffer_load_dword v114, v3, {WS}, s63 offen sc1")
    a.label(l)
def wready_check(a):
    l = a.newlabel("wrc"); dn = a.newlabel("wrd")
    a(f"s_cmp_lg_u32 s{S_W}, 0")
    a(f"s_cbranch_scc1 {l}")
    def test():
        a("s_waitcnt vmcnt(0)")
        a(f"v_cmp_ne_u32 vcc, s{S_NONCE}, v112")
        a(f"v_cmp_ne_u32 s[62:63], s{S_NONCE}, v113")
        a("s_nop 1")
        a("s_or_b64 s[62:63], s[62:63], vcc")
        a(f"v_cmp_ne_u32 vcc, s{S_NONCE}, v114")
        a("s_nop 4")
        a("s_or_b64 vcc, vcc, s[62:63]")
    test()
    a(f"s_cbranch_vccz {dn}")
    l2 = spin_begin(a, "wrp")
    a(f"s_mov_b32 s63, {FLG_W}")
    a(f"buffer_load_dword v112, v2, {WS}, s63 offen sc1")
    a(f"buffer_load_dword v114, v3, {WS}, s63 offen sc1")
    a(f"s_mov_b32 s63, {FLG_W + 64*128}")
    a(f"buffer_load_dword v113, v2, {WS}, s63 offen sc1")
    test()
    spin_end(a, l2, dn, 4)
    a.label(l)
    a("s_barrier")

def local_poll(a):
    a("v_lshlrev_b32 v118, 7, v0")
    a(f"s_lshl_b32 s62, s{S_G}, 11")
    a(f"s_add_u32 s62, s62, {FLG_X}")
    a("s_mov_b64 exec, 0xffff")
    a(f"buffer_load_dwordx2 v[116:117], v118, {WS}, s62 offen sc1")
    a("s_mov_b64 exec, -1")
def local_check(a):
    dn = a.newlabel("lcd")
    a(f"s_lshl_b32 s62, s{S_G}, 11")
    a(f"s_add_u32 s62, s62, {FLG_X}")
    a("s_mov_b64 exec, 0xffff")
    a("s_waitcnt vmcnt(0)")
    a(f"v_cmp_ne_u32 vcc, s{S_NONCE}, v116")
    a("s_nop 4")
    a(f"s_cbranch_vccz {dn}")
    l = spin_begin(a, "lcp")
    a(f"buffer_load_dwordx2 v[116:117], v118, {WS}, s62 offen sc1")
    a("s_waitcnt vmcnt(0)")
    a(f"v_cmp_ne_u32 vcc, s{S_NONCE}, v116")
    spin_end(a, l, dn, 4)
    a("s_getreg_b32 s62, hwreg(HW_REG_XCC_ID, 0, 4)")
    a("v_cmp_ne_u32 vcc, s62, v117")
    a(f"v_cmp_ne_u32 s[62:63], s{S_NONCE}, v116")
    a("s_mov_b64 exec, -1")
    a("s_nop 2")
    a("s_or_b64 vcc, vcc, s[62:63]")
    a("s_cmp_eq_u64 vcc, 0")
    a(f"s_cselect_b32 s{S_LOCAL}, 1, 0")

def x_residual(a):
    mk_srd(a, SRD_A, P_X, 2048 * 1024)
    a("v_and_b32 v2, 15, v0")
    a("v_lshrrev_b32 v3, 4, v0")
    a("v_lshlrev_b32 v2, 10, v2")
    a("v_lshl_add_u32 v2, v3, 3, v2")
    a(f"s_lshl_b32 s62, s{S_TBK}, 15")
    a(f"s_lshl_b32 s63, s{S_HQ}, 8")
    a("s_add_u32 s62, s62, s63")
    a(f"s_lshl_b32 s63, s{S_W}, 5")
    a("s_add_u32 s62, s62, s63")
    a.vm(f"buffer_load_dwordx2 v[{XRES}:{XRES+1}], v2, s[{SRD_A}:{SRD_A+3}], s62 offen", "XR")
    a("s_add_u32 s62, s62, 16384")
    a.vm(f"buffer_load_dwordx2 v[{XRES+2}:{XRES+3}], v2, s[{SRD_A}:{SRD_A+3}], s62 offen", "XR")
XRES = 4

def hh_prefill(a):
    l = a.newlabel("pf")
    a(f"s_cmp_eq_u32 s{S_W}, 7")
    a(f"s_cbranch_scc1 {l}")
    for r in range(4): a(f"v_mov_b32 v{96+r}, -1")
    a("s_mul_i32 s62, s74, 1024")
    a(f"s_lshl_b32 s63, s{S_G}, 2")
    a("s_mul_i32 s63, s63, 114688")
    a("s_add_u32 s62, s62, s63")
    a(f"s_add_u32 s62, s62, {HHF}")
    for tb in range(4):
        a(f"buffer_store_dwordx4 v[96:99], v1, {WS}, s62 offen sc1")
        if tb < 3: a("s_add_u32 s62, s62, 114688")
    a("s_nop 1")
    a.label(l)

def attention(a):
    a("v_lshlrev_b32 v1, 4, v0")
    for r in range(4):
        a(f"v_mov_b32 v{A_Q+r}, v{QSAVE+r}")
        a(f"v_mov_b32 v{A_Q2+r}, v{QSAVE+4+r}")
    a("s_mov_b32 s70, 0x0000ffff")
    a("s_mov_b32 s71, 0x0000ffff")
    for r in range(16):
        a(f"v_mov_b32 v{A_O+r}, 0")
        a(f"v_mov_b32 v{A_O2+r}, 0")
        a(f"v_mov_b32 v{72+r}, 0x3f803f80")
    if ZROWS:
        a("s_mov_b32 s62, 0x00110000"); a("s_mov_b32 s63, 0x00110000")
        a("v_mov_b32 v91, 0")
        for r in range(16): a(f"v_cndmask_b32 v{72+r}, v91, v{72+r}, s[62:63]")
    for r in range(8):
        a(f"v_mov_b32 v{A_P+r}, 0")
    a(f"s_lshr_b32 s61, s{S_W}, 2")
    a("s_lshl_b32 s61, s61, 15")
    a(f"v_add_u32 v{A_VK}, s61, v1")
    a("v_lshrrev_b32 v90, 5, v0")
    a("v_and_b32 v91, 15, v0")
    a("v_lshl_add_u32 v90, v90, 4, v91")
    a("v_lshlrev_b32 v90, 4, v90")
    a("s_add_u32 s61, s61, 65536")
    a(f"v_add_u32 v{A_VV}, s61, v90")
    wave_consts(a)
    wj_setup(a)
    a("v_mov_b32 v90, 0")
    a("v_mov_b32 v2, 0")
    for r in range(4):
        a(f"v_dot2_f32_bf16 v90, v{A_Q+r}, v{A_Q+r}, v90")
        a(f"v_dot2_f32_bf16 v2, v{A_Q2+r}, v{A_Q2+r}, v2")
    a(f"s_lshr_b32 s60, s{S_W}, 2")
    a("s_lshl_b32 s60, s60, 4")
    a(f"s_and_b32 s61, s{S_W}, 3")
    a("s_add_u32 s60, s60, s61")
    a("s_lshl_b32 s60, s60, 11")
    xhalf(a, 90, 91, "v_add_f32")
    xhalf(a, 2, 91, "v_add_f32")
    a("v_max_f32 v90, v90, v2")
    la = a.newlabel("sa")
    a(f"s_cmp_lg_u32 s{S_W}, 0")
    a(f"s_cbranch_scc1 {la}")
    done = a.newlabel("syncA")
    a("v_lshlrev_b32 v2, 7, v0")
    a(f"s_mov_b32 s63, {FLG_A}")
    l = spin_begin(a, "pollA")
    a(f"buffer_load_dwordx2 v[112:113], v2, {WS}, s63 offen sc1")
    a("s_waitcnt vmcnt(0)")
    a(f"v_cmp_ne_u32 vcc, s{S_NONCE}, v112")
    spin_end(a, l, done, 2)
    dpp_sum16(a, 113, "v_max_f32")
    xrow16(a, 113, 91, "v_max_f32")
    xhalf(a, 113, 91, "v_max_f32")
    a(f"v_mov_b32 v91, {L_SCR + 4096 - 128}")
    a("s_mov_b64 exec, 1")
    a("ds_write_b32 v91, v113")
    a("s_mov_b64 exec, -1")
    a("s_waitcnt lgkmcnt(0)")
    a.label(la)
    a("s_barrier")
    stamp(a)
    kv_dma(a, 0)
    a(f"v_mov_b32 v91, {L_SCR + 4096 - 128}")
    a("ds_read_b32 v3, v91")
    a("s_waitcnt lgkmcnt(0)")
    a("v_mul_f32 v90, v90, v3")
    a(f"v_mov_b32 v91, {f32hex(BOUND2)}")
    a("v_cmp_gt_f32 vcc, v90, v91")
    a.c("workgroup-wide vote: any row that might leave the safe range sends the whole workgroup to the max-subtracting path")
    a("s_nop 4")
    a("s_cmp_lg_u64 vcc, 0")
    a("s_cselect_b32 s61, 1, 0")
    a("v_mov_b32 v90, s61")
    a(f"s_lshl_b32 s61, s{S_W}, 2")
    a(f"s_add_u32 s61, s61, {L_SCR + 4096 - 64}")
    a("v_mov_b32 v91, s61")
    a("s_mov_b64 exec, 1")
    a("ds_write_b32 v91, v90")
    a("s_mov_b64 exec, -1")
    a("s_waitcnt vmcnt(0) lgkmcnt(0)")
    a("s_barrier")
    a(f"v_mov_b32 v91, {L_SCR + 4096 - 64}")
    a("ds_read_b128 v[112:115], v91")
    a("ds_read_b128 v[116:119], v91 offset:16")
    a(f"ds_read_b128 v[{A_K[0]}:{A_K[0]+3}], v{A_VK}")
    a(f"ds_read_b128 v[{A_K[1]}:{A_K[1]+3}], v{A_VK} offset:1024")
    a("s_mov_b64 exec, s[70:71]")
    a(f"ds_read_b128 v[{A_V[0][0]}:{A_V[0][0]+3}], v{A_VV}")
    a(f"ds_read_b128 v[{A_V[1][0]}:{A_V[1][0]+3}], v{A_VV} offset:512")
    a("s_mov_b64 exec, -1")
    a("s_waitcnt lgkmcnt(0)")
    a("v_or3_b32 v112, v112, v113, v114")
    a("v_or3_b32 v116, v116, v117, v118")
    a("v_or3_b32 v112, v112, v115, v119")
    a("v_or_b32 v112, v112, v116")
    a("s_barrier")
    a("v_readfirstlane_b32 s61, v112")
    lslow = a.newlabel("slow"); lepi = a.newlabel("attn_epi")
    a("s_nop 3")
    a("s_cmp_lg_u32 s61, 0")
    a(f"s_cbranch_scc1 {lslow}")
    stamp(a)
    mfma(a, A_S[0], A_K[0], A_Q, None)
    it_pref = [("g", s) for s in range(NG_LATE, 32)] + [("o", s) for s in range(16)]
    NPF0, NPF1 = 36, 62
    a("s_nop 15")
    a.vm_reset()
    def extra_for(t):
        def f():
            if t in (0, 1): kv_dma(a, 1, t)
            if t in (2, 3): wj_issue(a, t - 2)
            if t in (4, 5): kv_dma(a, 2, t - 4)
            if t in (6, 7): kv_dma(a, 3, t - 6)
            if t == 12: wj_read(a, 8)
            if t == 13: wj_store(a)
            if t == 15: wj_cspart(a)
            if t == 16: wj_csread(a)
            if t == 17: wj_csstore(a)
            if t == 33: wready_poll(a); local_poll(a)
            if t == 36: local_check(a)
            if NPF0 <= t < NPF1:
                k0 = (t - NPF0) * len(it_pref) // (NPF1 - NPF0); k1 = (t + 1 - NPF0) * len(it_pref) // (NPF1 - NPF0)
                for k, s in it_pref[k0:k1]:
                    (ld_wg if k == "g" else ld_wo)(a, s)
            if SENT_D and t == 40: hh_prefill(a)
            if t == 62: x_residual(a)
        return f
    for t in range(64):
        p = t & 15
        if t in (0, 4, 8, 12, 16, 20, 24, 28, 32, 36, 40, 48, 56, 63): stamp(a, "attn")
        if t > 0 and t % 4 == 0:
            if t == 12:
                a("s_waitcnt vmcnt(8)")
            if t == 16:
                a("s_waitcnt lgkmcnt(0)")
            if t == 24:
                a("s_waitcnt vmcnt(0)")
            if t == 36:
                wready_check(a)
            else:
                a("s_barrier")
            if t == 24:
                wj_signal(a)
        if PRIO:
            a(f"s_setprio {3 - (t & 3)}")
        attn_tile(a, p, extra_for(t))
        if p == 15 and t < 63:
            a(f"v_add_u32 v{A_VK}, 8192, v{A_VK}")
            a(f"v_add_u32 v{A_VV}, 8192, v{A_VV}")
    if PRIO: a("s_setprio 0")
    a("s_nop 1")
    mfma(a, A_O2, A_V[1][1], A_P + 4, A_O2)
    a(f"s_branch {lepi}")
    a.label(lslow)
    for st in range(1, 4):
        kv_dma(a, st)
    wj_issue(a)
    wj_read(a, 0)
    a("s_waitcnt lgkmcnt(0)")
    wj_store(a)
    a("s_nop 15")
    wj_cspart(a)
    a("s_waitcnt vmcnt(0) lgkmcnt(0)")
    a("s_barrier")
    wj_csread(a)
    a("s_waitcnt lgkmcnt(0)")
    wj_csstore(a)
    a("s_waitcnt vmcnt(0)")
    a("s_barrier")
    wj_signal(a)
    NEG = [112, 128]
    for h in range(2):
        Qh = [A_Q, A_Q2][h]
        a(f"v_mov_b32 v{2+h}, 0xff800000")
        a(f"v_mov_b32 v90, v{A_VK}")
        a("s_mov_b32 s55, 0")
        l1 = a.newlabel("s1")
        a.label(l1)
        a(f"ds_read_b128 v[{A_K[0]}:{A_K[0]+3}], v90")
        a("s_waitcnt lgkmcnt(0)")
        mfma(a, A_S[0], A_K[0], Qh, None)
        a("s_nop 15")
        for r in range(8):
            a(f"v_max3_f32 v{2+h}, v{A_S[0]+2*r}, v{A_S[0]+2*r+1}, v{2+h}")
        a("v_add_u32 v90, 1024, v90")
        a("s_add_u32 s55, s55, 1")
        a("s_cmp_lt_u32 s55, 32")
        a(f"s_cbranch_scc1 {l1}")
        xhalf(a, 2 + h, 91, "v_max_f32")
    a.c("the other half of the keys belongs to wave w ^ 4: exchange the maxima")
    a(f"s_lshl_b32 s55, s{S_W}, 12")
    a(f"s_add_u32 s55, s55, {L_SCR}")
    a("v_lshlrev_b32 v90, 3, v0")
    a("v_add_u32 v91, s55, v90")
    a("ds_write_b64 v91, v[2:3]")
    a(f"s_xor_b32 s55, s{S_W}, 4")
    a("s_lshl_b32 s55, s55, 12")
    a(f"s_add_u32 s55, s55, {L_SCR}")
    a("v_add_u32 v91, s55, v90")
    a("s_waitcnt lgkmcnt(0)")
    a("s_barrier")
    a("ds_read_b64 v[90:91], v91")
    a("s_waitcnt lgkmcnt(0)")
    a("v_max_f32 v2, v2, v90")
    a("v_max_f32 v3, v3, v91")
    for h in range(2):
        for r in range(16):
            a(f"v_sub_f32 v{NEG[h]+r}, 0, v{2+h}")
    for h in range(2):
        Qh = [A_Q, A_Q2][h]; Oh = [A_O, A_O2][h]
        a(f"v_mov_b32 v90, v{A_VK}")
        a(f"v_mov_b32 v91, v{A_VV}")
        a("s_mov_b32 s55, 0")
        l2 = a.newlabel("s2")
        a.label(l2)
        a(f"ds_read_b128 v[{A_K[0]}:{A_K[0]+3}], v90")
        a("s_mov_b64 exec, s[70:71]")
        a(f"ds_read_b128 v[{A_V[0][0]}:{A_V[0][0]+3}], v91")
        a(f"ds_read_b128 v[{A_V[1][0]}:{A_V[1][0]+3}], v91 offset:512")
        a("s_mov_b64 exec, -1")
        a("s_waitcnt lgkmcnt(0)")
        mfma(a, A_S[0], A_K[0], Qh, NEG[h])
        a("s_nop 15")
        for r in range(16):
            a(f"v_exp_f32 v{A_S[0]+r}, v{A_S[0]+r}")
        a("s_nop 0")
        for k in range(8):
            a(f"v_cvt_pk_bf16_f32 v{A_P+k}, v{A_S[0]+2*k}, v{A_S[0]+2*k+1}")
        a("s_nop 1")
        mfma(a, Oh, A_V[0][0], A_P, Oh)
        mfma(a, Oh, A_V[1][0], A_P + 4, Oh)
        a("v_add_u32 v90, 1024, v90")
        a("v_add_u32 v91, 1024, v91")
        a("s_add_u32 s55, s55, 1")
        a("s_cmp_lt_u32 s55, 32")
        a(f"s_cbranch_scc1 {l2}")
    a("s_nop 15")
    a("s_barrier")
    if SENT_D: hh_prefill(a)
    wready_poll(a)
    local_poll(a)
    wready_check(a)
    local_check(a)
    sv = list(a.vmq)
    for k, s in it_pref:
        (ld_wg if k == "g" else ld_wo)(a, s)
    x_residual(a)
    a.vmq = sv
    a.label(lepi)
    stamp(a)
    a.c("wave kh finishes head 2p + kh: it hands the partial sums of the other head to wave w ^ 4")
    a(f"s_lshl_b32 s60, s{S_W}, 12")
    a(f"s_add_u32 s60, s60, {L_SCR}")
    a("v_add_u32 v90, s60, v1")
    a(f"s_xor_b32 s60, s{S_W}, 4")
    a("s_lshl_b32 s60, s60, 12")
    a(f"s_add_u32 s60, s60, {L_SCR}")
    a("v_add_u32 v91, s60, v1")
    a("s_nop 9")
    lk1 = a.newlabel("kh1"); lk2 = a.newlabel("khj")
    a(f"s_cmp_ge_u32 s{S_W}, 4")
    a(f"s_cbranch_scc1 {lk1}")
    for q in range(3):
        a(f"ds_write_b128 v90, v[{A_O2+4*q}:{A_O2+4*q+3}] offset:{q*1024}")
    a(f"s_branch {lk2}")
    a.label(lk1)
    for q in range(3):
        a(f"ds_write_b128 v90, v[{A_O+4*q}:{A_O+4*q+3}] offset:{q*1024}")
    for r in range(9):
        a(f"v_mov_b32 v{A_O+r}, v{A_O2+r}")
    a.label(lk2)
    a("s_waitcnt lgkmcnt(0)")
    a("s_barrier")
    for q in range(3):
        a(f"ds_read_b128 v[{24+4*q}:{27+4*q}], v91 offset:{q*1024}")
    a("s_waitcnt lgkmcnt(0)")
    for i in range(4):
        a(f"v_pk_add_f32 v[{A_O+2*i}:{A_O+2*i+1}], v[{A_O+2*i}:{A_O+2*i+1}], v[{24+2*i}:{25+2*i}]")
    a(f"v_add_f32 v{A_O+8}, v{A_O+8}, v32")
    a(f"v_rcp_f32 v90, v{A_O+8}")
    a("s_nop 0")
    for r in range(8):
        a(f"v_mul_f32 v{A_O+r}, v{A_O+r}, v90")
    for k in range(4):
        a(f"v_cvt_pk_bf16_f32 v{A_P+k}, v{A_O+2*k}, v{A_O+2*k+1}")
    a.c("OF + (tbk*32 + 8hq + 2p + kh)*1024")
    a(f"s_lshl_b32 s60, s{S_TBK}, 5")
    a(f"s_lshl_b32 s61, s{S_HQ}, 3")
    a("s_add_u32 s60, s60, s61")
    a(f"s_and_b32 s61, s{S_W}, 3")
    a("s_lshl_b32 s61, s61, 1")
    a("s_add_u32 s60, s60, s61")
    a(f"s_lshr_b32 s61, s{S_W}, 2")
    a("s_add_u32 s60, s60, s61")
    a("s_lshl_b32 s60, s60, 10")
    a(f"s_add_u32 s60, s60, {OF}")
    gstore(a, f"buffer_store_dwordx4 v[{A_P}:{A_P+3}], v1, {WS}, s60 offen", "o")
    if "o" in DOUBLE: a(f"buffer_store_dwordx4 v[{A_P}:{A_P+3}], v1, {WS}, s60 offen")

def eflag_base(a, dst):
    a(f"s_lshl_b32 s{dst}, s{S_G}, 11")
    a(f"s_add_u32 s{dst}, s{dst}, {FLG_E}")

def wg_publish(a, base, vt):
    stamp(a, "p3")
    a("s_waitcnt vmcnt(0)")
    stamp(a, "p3")
    a("s_barrier")
    l = a.newlabel("pub")
    a(f"s_cmp_lg_u32 s{S_W}, 0")
    a(f"s_cbranch_scc1 {l}")
    a(f"s_lshl_b32 s60, s{S_G}, 4")
    a(f"s_add_u32 s60, s60, s{S_J}")
    a("s_lshl_b32 s60, s60, 7")
    a(f"s_add_u32 s60, s60, {base}")
    set_flag(a, 60, vt, True)
    a.label(l)

def wg_wait(a, base, first_expr, n, vt, vo):
    l = a.newlabel("wt")
    a(f"s_cmp_lg_u32 s{S_W}, 0")
    a(f"s_cbranch_scc1 {l}")
    a(f"s_lshl_b32 s60, s{S_G}, 4")
    if first_expr is not None:
        first_expr()
    a("s_lshl_b32 s60, s60, 7")
    a(f"s_add_u32 s60, s60, {base}")
    if POLL_DELAY: a(f"s_sleep {POLL_DELAY}")
    poll_flags(a, 60, n, vt, vo, sleep=POLL_SLEEP)
    a.label(l)
    a("s_barrier")

def wave_publish(a, base, vt):
    a(f"s_lshl_b32 s60, s{S_G}, 4")
    a(f"s_add_u32 s60, s60, s{S_J}")
    a("s_lshl_b32 s60, s60, 3")
    a(f"s_add_u32 s60, s60, s{S_W}")
    a("s_lshl_b32 s60, s60, 7")
    a(f"s_add_u32 s60, s60, {base}")
    stamp(a, "p3")
    a("s_waitcnt vmcnt(0)")
    stamp(a, "p3")
    set_flag(a, 60, vt)

L3_ST = 131072 + 4096
def mfma16(a, d, A, B, c):
    cs = "0" if c is None else f"v[{c}:{c+3}]"
    a(f"v_mfma_f32_16x16x32_bf16 v[{d}:{d+3}], v[{A}:{A+3}], v[{B}:{B+3}], {cs}")

def p3(a):
    wg_publish(a, FLG_B, 28)
    stamp(a)
    def fe():
        a(f"s_lshl_b32 s61, s{S_TQ}, 2")
        a("s_add_u32 s60, s60, s61")
    wg_wait(a, FLG_B, fe, 4, 28, 30)
    stamp(a)
    a.c("o fragments -> LDS [32 heads][1024] over key tiles 0..31 (dead since the last barriers of the attention loop)")
    a(f"s_lshl_b32 s60, s{S_W}, 12")
    a("s_mov_b32 m0, s60")
    a(f"s_lshl_b32 s61, s{S_TBK}, 15")
    a("s_add_u32 s61, s61, s60")
    a(f"s_add_u32 s61, s61, {OF}")
    for e in range(4):
        a(f"buffer_load_dwordx4 v1, {WS}, s61 offen offset:{e*1024} sc1 lds")
    a.c("operand address: (g>>1)*1024 + ((g&1)*32 + (lane&15))*16")
    a("v_lshrrev_b32 v30, 5, v0")
    a("v_lshlrev_b32 v30, 10, v30")
    a("v_bfe_u32 v31, v0, 4, 1")
    a("v_lshlrev_b32 v31, 5, v31")
    a("v_and_b32 v29, 15, v0")
    a("v_add_u32 v31, v31, v29")
    a("v_lshl_add_u32 v30, v31, 4, v30")
    a("v_and_b32 v2, 31, v0")
    stamp(a, "p3")
    a("s_waitcnt vmcnt(0)")
    stamp(a, "p3")
    a("s_barrier")
    stamp(a, "p3")
    BBF = [[32 + 8 * k, 36 + 8 * k] for k in range(3)]
    a.lgq = []
    def rd(s):
        for th2 in range(2):
            r = BBF[s % 3][th2]
            a.lg(f"ds_read_b128 v[{r}:{r+3}], v30 offset:{s*2048 + th2*256}", s)
    rd(0); rd(1)
    for s in range(16):
        if s + 2 < 16: rd(s + 2)
        a.lg_wait(s)
        for th2 in range(2):
            mfma16(a, 8 + 4 * th2, WO_R + 4 * s, BBF[s % 3][th2], None if s == 0 else 8 + 4 * th2)
    stamp(a, "p3")
    a("s_mov_b32 s61, 0xffff0000")
    for i in range(4):
        a(f"v_lshlrev_b32 v{32+2*i}, 16, v{XRES+i}")
        a(f"v_and_b32 v{33+2*i}, s61, v{XRES+i}")
    a(f"s_lshl_b32 s60, s{S_TBK}, 5")
    a(f"s_lshl_b32 s61, s{S_HQ}, 3")
    a("s_add_u32 s60, s60, s61")
    a(f"s_add_u32 s60, s60, s{S_W}")
    a("s_lshl_b32 s60, s60, 10")
    a(f"s_add_u32 s60, s60, {HF}")
    a("s_nop 1")
    for i in range(4):
        a(f"v_pk_add_f32 v[{8+2*i}:{9+2*i}], v[{8+2*i}:{9+2*i}], v[{32+2*i}:{33+2*i}]")
    for i in range(4):
        a(f"v_cvt_pk_bf16_f32 v{40+i}, v{8+2*i}, v{9+2*i}")
    a("s_nop 1")
    a("v_permlane16_swap_b32 v40, v42")
    a("v_permlane16_swap_b32 v41, v43")
    a("s_nop 1")
    gstore(a, f"buffer_store_dwordx4 v[40:43], v1, {WS}, s60 offen", "h")
    if "h" in DOUBLE: a(f"buffer_store_dwordx4 v[40:43], v1, {WS}, s60 offen")
    stamp(a, "p3")
    a("s_mov_b32 s61, 0x3f803f80")
    a("v_mov_b32 v44, 0")
    a("v_mov_b32 v45, 0")
    for i in range(4):
        a(f"v_dot2_f32_bf16 v44, v{40+i}, s61, v44")
        a(f"v_dot2_f32_bf16 v45, v{40+i}, v{40+i}, v45")
    a("s_nop 2")
    xhalf(a, 44, 46, "v_add_f32")
    xhalf(a, 45, 46, "v_add_f32")
    a(f"s_lshl_b32 s60, s{S_W}, 8")
    a(f"s_add_u32 s60, s60, {L3_ST}")
    a("v_lshlrev_b32 v46, 3, v2")
    a("v_add_u32 v47, s60, v46")
    a("s_mov_b32 exec_hi, 0")
    a("ds_write_b64 v47, v[44:45]")
    a("s_mov_b64 exec, -1")
    a("s_waitcnt lgkmcnt(0)")
    wg_publish(a, FLG_C, 28)
    a.vm_reset()
    for s in range(NG_LATE):
        ld_wg(a, s)
    stamp(a)

L4_ST = 131072
L4_CS = 131072 + 1024
WD_R = 128
def ld_wd(a, u):
    s, ct = u >> 1, u & 1
    off = ct * 114688 + (s >> 2) * 4096
    a(f"s_add_u32 s75, s76, {off}")
    a.vm(f"buffer_load_dwordx4 v[{WD_R+4*u}:{WD_R+4*u+3}], v1, {WS}, s75 offen offset:{(s&3)*1024} sc1", ("WD", u))

def p4(a):
    a(f"s_and_b32 s77, s{S_J}, 7")
    a("s_mul_i32 s76, s77, 229376")
    a(f"s_mul_i32 s60, s{S_W}, 14336")
    a("s_add_u32 s76, s76, s60")
    a(f"s_add_u32 s76, s76, {WDF}")
    stamp(a, "p4")
    wg_wait(a, FLG_C, None, 16, 28, 5)
    stamp(a); stamp(a, "p4")
    a(f"s_lshl_b32 s62, s{S_G}, 17")
    a(f"s_lshl_b32 s63, s{S_W}, 10")
    a("s_add_u32 s62, s62, s63")
    a(f"s_add_u32 s62, s62, {HF}")
    def dma(st):
        for tb in range(4):
            off = tb * 32768 + st * 8192
            a(f"s_add_u32 m0, s63, {off}")
            a(f"s_add_u32 s64, s62, {off}")
            a.vm(f"buffer_load_dwordx4 v1, {WS}, s64 offen sc1 lds", ("H", st))
    a.vm_reset()
    dma(0); dma(1)
    lhelp = a.newlabel("help"); ljoin = a.newlabel("p4join")
    a(f"s_cmp_eq_u32 s{S_W}, 7")
    a(f"s_cbranch_scc1 {lhelp}")
    sv = list(a.vmq)
    a("v_add_u32 v2, 65536, v1")
    BB = [[32 + 4 * t for t in range(4)], [48 + 4 * t for t in range(4)]]
    def breads(s):
        for tb in range(4):
            base = "v1" if tb < 2 else "v2"
            a.lg(f"ds_read_b128 v[{BB[s&1][tb]}:{BB[s&1][tb]+3}], {base} offset:{(tb&1)*32768 + s*1024}", s)
    a.lgq = []
    a.vm_wait(("H", 0))
    stamp(a, "p4")
    a("s_barrier")
    stamp(a); stamp(a, "p4")
    breads(0)
    for s in range(32):
        if s + 1 < 32:
            if (s + 1) % 8 == 0:
                a.vm_wait(("H", (s + 1) // 8))
                a("s_barrier")
            breads(s + 1)
        if s == 24:
            a("v_and_b32 v3, 31, v0")
            a("v_lshlrev_b32 v3, 3, v3")
            a(f"v_add_u32 v3, {L4_ST}, v3")
            for tb in range(4):
                a.lg(f"ds_read_b64 v[{4+2*tb}:{5+2*tb}], v3 offset:{tb*256}", "st")
            a("v_lshrrev_b32 v12, 5, v0")
            a("v_lshlrev_b32 v12, 4, v12")
            a(f"s_lshl_b32 s60, s{S_W}, 7")
            a(f"s_add_u32 s60, s60, {L4_CS}")
            a("v_add_u32 v12, s60, v12")
            for q in range(4):
                a.lg(f"ds_read_b128 v[{16+4*q}:{19+4*q}], v12 offset:{q*32}", "st")
        if PRIO2 and s % 2 == 0: a(f"s_setprio {3 - ((s & 7) >> 1)}")
        a.lg_wait(s)
        for tb in range(4):
            mfma(a, 64 + 16 * tb, WG_R + 4 * s, BB[s & 1][tb], None if s == 0 else 64 + 16 * tb)
        if s == 0: dma(2)
        if s == 4: dma(3)
        if s >= 1 and s - 1 < 28:
            ld_wd(a, s - 1)
    stamp(a); stamp(a, "p4")
    if PRIO2: a("s_setprio 0")
    a("s_waitcnt lgkmcnt(0)")
    a("s_nop 7")
    a("s_mul_i32 s60, s74, 1024")
    a(f"s_lshl_b32 s61, s{S_G}, 2")
    a("s_mul_i32 s61, s61, 114688")
    a("s_add_u32 s60, s60, s61")
    a(f"s_add_u32 s60, s60, {HHF}")
    for tb in range(4):
        A = 64 + 16 * tb
        st = 4 + 2 * tb
        for i in range(8):
            a(f"v_pk_fma_f32 v[{A+2*i}:{A+2*i+1}], v[{16+2*i}:{17+2*i}], v[{st}:{st+1}], v[{A+2*i}:{A+2*i+1}] op_sel_hi:[1,0,1]")
        for i in range(4):
            a(f"v_pk_mul_f32 v[{A+8+2*i}:{A+9+2*i}], v[{A+8+2*i}:{A+9+2*i}], v[{st}:{st+1}] op_sel:[0,1] op_sel_hi:[1,1]")
        for r in range(8):
            a(f"v_max_f32 v{A+r}, 0, v{A+r}")
        for i in range(4):
            a(f"v_pk_mul_f32 v[{A+2*i}:{A+2*i+1}], v[{A+2*i}:{A+2*i+1}], v[{A+8+2*i}:{A+9+2*i}]")
        for i in range(4):
            a(f"v_cvt_pk_bf16_f32 v{36+4*(tb&1)+i}, v{A+2*i}, v{A+2*i+1}")
        gstore(a, f"buffer_store_dwordx4 v[{36+4*(tb&1)}:{39+4*(tb&1)}], v1, {WS}, s60 offen", "g")
        if "g" in DOUBLE: a(f"buffer_store_dwordx4 v[{36+4*(tb&1)}:{39+4*(tb&1)}], v1, {WS}, s60 offen")
        if tb < 3:
            a("s_add_u32 s60, s60, 114688")
    stamp(a, "p4")
    a(f"s_branch {ljoin}")
    a.label(lhelp)
    a.vmq = list(sv)
    dma(2); dma(3)
    a("v_lshlrev_b32 v3, 2, v0")
    a(f"s_mul_i32 s60, s{S_J}, 896")
    a(f"s_add_u32 s60, s60, {CSP}")
    for kq in range(4):
        for i in range(4):
            a.vm(f"buffer_load_dword v{32+4*kq+i}, v3, {WS}, s60 offen offset:{i*256} sc1", "cs")
        if kq < 3:
            a("s_add_u32 s60, s60, 14336")
    a.vm_wait(("H", 0))
    a("s_barrier")
    a.c("finish this workgroup's row statistics (partials of the 8 waves are in LDS) and publish them")
    a("v_and_b32 v2, 31, v0")
    a("v_lshlrev_b32 v64, 3, v2")
    a(f"v_add_u32 v65, {L3_ST}, v64")
    for ww in range(8):
        a(f"ds_read_b64 v[{66+2*ww}:{67+2*ww}], v65 offset:{ww*256}")
    a("s_waitcnt lgkmcnt(0)")
    for ww in range(1, 8):
        a(f"v_pk_add_f32 v[66:67], v[66:67], v[{66+2*ww}:{67+2*ww}]")
    a("v_lshlrev_b32 v64, 5, v2")
    a(f"s_lshl_b32 s60, s{S_TBK}, 10")
    a(f"s_lshl_b32 s61, s{S_HQ}, 3")
    a("s_add_u32 s60, s60, s61")
    a(f"s_add_u32 s60, s60, {HST}")
    a("s_mov_b32 exec_hi, 0")
    a.vm(f"buffer_store_dwordx2 v[66:67], v64, {WS}, s60 offen sc1", "hst")
    a("s_mov_b64 exec, -1")
    a.vm_wait_all()
    eflag_base(a, 60)
    a(f"s_lshl_b32 s61, s{S_J}, 7")
    a("s_add_u32 s60, s60, s61")
    set_flag(a, 60, 28)
    a("s_barrier")
    a("s_barrier")
    eflag_base(a, 60)
    poll_flags(a, 60, 16, 28, 2)
    a("v_lshlrev_b32 v2, 5, v0")
    a(f"s_lshl_b32 s60, s{S_G}, 12")
    a(f"s_add_u32 s60, s60, {HST}")
    for i in range(2):
        a(f"buffer_load_dwordx4 v[{8+8*i}:{11+8*i}], v2, {WS}, s60 offen offset:{i*2048} sc1")
        a(f"buffer_load_dwordx4 v[{12+8*i}:{15+8*i}], v2, {WS}, s60 offen offset:{i*2048+16} sc1")
    a.vm_wait_all()
    for i in range(2):
        b = 8 + 8 * i
        a(f"v_add_f32 v{b}, v{b}, v{b+2}")
        a(f"v_add_f32 v{b+4}, v{b+4}, v{b+6}")
        a(f"v_add_f32 v{b+1}, v{b+1}, v{b+3}")
        a(f"v_add_f32 v{b+5}, v{b+5}, v{b+7}")
        a(f"v_add_f32 v{b}, v{b}, v{b+4}")
        a(f"v_add_f32 v{b+1}, v{b+1}, v{b+5}")
        a(f"v_mul_f32 v{b}, {f32hex(1.0/512)}, v{b}")
        a(f"v_mul_f32 v{b+2}, v{b}, v{b}")
        a(f"v_mov_b32 v{b+3}, {f32hex(1.0/512)}")
        a(f"v_fma_f32 v{b+1}, v{b+1}, v{b+3}, -v{b+2}")
        a(f"v_max_f32 v{b+1}, 0, v{b+1}")
        a(f"v_add_f32 v{b+1}, {f32hex(1e-5)}, v{b+1}")
        a(f"v_rcp_f32 v{b+1}, v{b+1}")
        a(f"v_sub_f32 v{b}, 0, v{b}")
    a("v_lshlrev_b32 v4, 3, v0")
    a(f"v_add_u32 v4, {L4_ST}, v4")
    a("ds_write_b64 v4, v[8:9]")
    a("ds_write_b64 v4, v[16:17] offset:512")
    for i in range(4):
        a(f"v_add_f32 v{32+i}, v{32+i}, v{36+i}")
        a(f"v_add_f32 v{40+i}, v{40+i}, v{44+i}")
        a(f"v_add_f32 v{32+i}, v{32+i}, v{40+i}")
    a(f"v_add_u32 v3, {L4_CS}, v3")
    for i in range(3):
        a(f"ds_write_b32 v3, v{32+i} offset:{i*256}")
    a("s_mov_b32 exec_hi, 0")
    a("ds_write_b32 v3, v35 offset:768")
    a("s_mov_b64 exec, -1")
    a("s_waitcnt lgkmcnt(0)")
    a("s_barrier")
    for u in range(28):
        ld_wd(a, u)
    a.label(ljoin)
    if not SENT_D:
        wg_publish(a, FLG_D, 28)
    a.vm_reset()
    stamp(a)

def p5(a):
    mk_srd(a, SRD_A, P_OUT, 2048 * 1024)
    a(f"s_lshr_b32 s72, s{S_J}, 3")
    a(f"s_lshl_b32 s61, s{S_G}, 2")
    a("s_lshl_b32 s62, s72, 1")
    a("s_add_u32 s61, s61, s62")
    a(f"s_mul_i32 s62, s{S_W}, 14336")
    a("s_mul_i32 s64, s61, 114688")
    a("s_add_u32 s64, s64, s62")
    a(f"s_add_u32 s64, s64, {HHF}")
    a("s_add_u32 s65, s64, 114688")
    a("v_lshrrev_b32 v2, 3, v0")
    a(f"s_lshl_b32 s62, s{S_W}, 3")
    a("v_add_u32 v2, s62, v2")
    a("v_and_b32 v3, 7, v0")
    a("v_lshrrev_b32 v4, 5, v2")
    a("v_lshlrev_b32 v4, 5, v4")
    a("v_lshrrev_b32 v5, 1, v3")
    a("v_add_u32 v4, v4, v5")
    a("v_lshlrev_b32 v4, 10, v4")
    a("v_and_b32 v5, 1, v3")
    a("v_lshlrev_b32 v5, 5, v5")
    a("v_and_b32 v6, 31, v2")
    a("v_add_u32 v5, v5, v6")
    a("v_lshl_add_u32 v4, v5, 4, v4")
    a("s_lshl_b32 s62, s61, 5")
    a("s_lshl_b32 s63, s77, 2")
    a("s_add_u32 s62, s62, s63")
    a("s_lshl_b32 s62, s62, 10")
    a(f"s_add_u32 s62, s62, {HF}")
    a(f"buffer_load_dwordx4 v[8:11], v4, {WS}, s62 offen sc1")
    stamp(a, "p4")
    if not SENT_D:
        wg_wait(a, FLG_D, None, 16, 28, 5)
    stamp(a); stamp(a, "p4")
    a("s_mov_b32 s62, s64"); a("s_mov_b32 s63, s65")
    retries = []
    BREG = [16, 24, 32, 40, 48, 56, 240, 248]
    ACC = 64
    a.vm_reset()
    def ldB(s):
        if s and (s & 3) == 0:
            a("s_add_u32 s64, s64, 4096"); a("s_add_u32 s65, s65, 4096")
        r = BREG[s % 8]
        a.vm(f"buffer_load_dwordx4 v[{r}:{r+3}], v1, {WS}, s64 offen offset:{(s&3)*1024} sc1", ("B", s))
        a.vm(f"buffer_load_dwordx4 v[{r+4}:{r+7}], v1, {WS}, s65 offen offset:{(s&3)*1024} sc1", ("B", s))
    for s in range(8):
        ldB(s)
    def check(r):
        a(f"v_max3_u32 v12, v{r}, v{r+1}, v{r+2}")
        a(f"v_max3_u32 v13, v{r+3}, v{r+4}, v{r+5}")
        a(f"v_max3_u32 v12, v{r+6}, v{r+7}, v12")
        a("v_max_u32 v12, v12, v13")
        a("v_cmp_eq_u32 vcc, -1, v12")
    stamp(a, "p5")
    for s in range(14):
        a.vm_wait(("B", s))
        if s in (0, 7): stamp(a, "p5")
        if SENT_D:
            lr = a.newlabel("rt"); lb = a.newlabel("rb")
            check(BREG[s % 8])
            a("s_nop 1")
            a(f"s_cbranch_vccnz {lr}")
            a.label(lb)
            retries.append((s, lr, lb))
        for ct in range(2):
            for tb in range(2):
                d = ACC + (ct * 2 + tb) * 16
                mfma(a, d, WD_R + (2 * s + ct) * 4, BREG[s % 8] + 4 * tb, None if s == 0 else d)
        if s + 8 < 14:
            ldB(s + 8)
    stamp(a); stamp(a, "p5")
    if PRIO2: a("s_setprio 0")
    a("v_and_b32 v12, 31, v0")
    a("v_lshrrev_b32 v13, 5, v0")
    a("v_lshlrev_b32 v13, 1, v13")
    a("v_and_b32 v14, 7, v12")
    a("v_xor_b32 v13, v13, v14")
    a("v_lshlrev_b32 v12, 8, v12")
    a(f"s_lshl_b32 s62, s{S_W}, 14")
    a("v_add_u32 v12, s62, v12")
    for k, (rg, q) in enumerate([(0, 0), (0, 1), (1, 0), (1, 1)]):
        a(f"v_xor_b32 v{16+k}, {rg*4+q}, v13")
        a(f"v_lshl_add_u32 v{16+k}, v{16+k}, 4, v12")
    if SENT_D:
        lskip = a.newlabel("rskip")
        a(f"s_branch {lskip}")
        for (s_, lr, lb) in retries:
            r = BREG[s_ % 8]
            a.label(lr)
            a(f"s_mov_b32 s79, {SPIN}")
            lp = a.newlabel("rl")
            a.label(lp)
            a("s_sleep 2")
            a(f"s_add_u32 s60, s62, {(s_ >> 2) * 4096}")
            a(f"s_add_u32 s61, s63, {(s_ >> 2) * 4096}")
            a(f"buffer_load_dwordx4 v[{r}:{r+3}], v1, {WS}, s60 offen offset:{(s_&3)*1024} sc1")
            a(f"buffer_load_dwordx4 v[{r+4}:{r+7}], v1, {WS}, s61 offen offset:{(s_&3)*1024} sc1")
            a("s_waitcnt vmcnt(0)")
            check(r)
            a("s_nop 4")
            a(f"s_cbranch_vccz {lb}")
            a("s_sub_u32 s79, s79, 1")
            a("s_cmp_lg_u32 s79, 0")
            a(f"s_cbranch_scc1 {lp}")
            a(f"s_branch {lb}")
        a.label(lskip)
        a("s_barrier")
    a("s_nop 3")
    for ct in range(2):
        for tb in range(2):
            d = ACC + (ct * 2 + tb) * 16
            for k, (rg, q) in enumerate([(0, 0), (0, 1), (1, 0), (1, 1)]):
                r = d + 8 * rg + 4 * q
                a(f"ds_write_b128 v{16+k}, v[{r}:{r+3}] offset:{ct*128 + tb*8192}")
    stamp(a, "p5")
    a("s_waitcnt lgkmcnt(0)")
    stamp(a, "p5")
    a("s_barrier")
    stamp(a, "p5")
    a("v_and_b32 v12, 7, v2")
    a("v_lshlrev_b32 v13, 1, v3")
    a("v_xor_b32 v14, v13, v12")
    a("v_or_b32 v13, 1, v13")
    a("v_xor_b32 v15, v13, v12")
    a("v_lshlrev_b32 v14, 4, v14")
    a("v_lshlrev_b32 v15, 4, v15")
    a("v_lshl_add_u32 v14, v2, 8, v14")
    a("v_lshl_add_u32 v15, v2, 8, v15")
    a("v_add_u32 v12, 65536, v14")
    a("v_add_u32 v13, 65536, v15")
    for src in range(8):
        b0, b1 = ("v14", "v15") if src < 4 else ("v12", "v13")
        a(f"ds_read_b128 v[{16+8*src}:{19+8*src}], {b0} offset:{(src&3)*16384}")
        a(f"ds_read_b128 v[{20+8*src}:{23+8*src}], {b1} offset:{(src&3)*16384}")
        if src == 3: a("s_waitcnt lgkmcnt(4)")
    a("s_mov_b32 s62, 0xffff0000")
    for i in range(4):
        a(f"v_lshlrev_b32 v{80+2*i}, 16, v{8+i}")
        a(f"v_and_b32 v{81+2*i}, s62, v{8+i}")
    a("s_waitcnt lgkmcnt(0)")
    stamp(a, "p5")
    for src in range(1, 8):
        for i in range(4):
            a(f"v_pk_add_f32 v[{16+2*i}:{17+2*i}], v[{16+2*i}:{17+2*i}], v[{16+8*src+2*i}:{17+8*src+2*i}]")
    for i in range(4):
        a(f"v_pk_add_f32 v[{16+2*i}:{17+2*i}], v[{16+2*i}:{17+2*i}], v[{80+2*i}:{81+2*i}]")
    for i in range(4):
        a(f"v_cvt_pk_bf16_f32 v{8+i}, v{16+2*i}, v{17+2*i}")
    a("v_lshlrev_b32 v4, 10, v2")
    a("v_lshl_add_u32 v4, v3, 4, v4")
    a(f"s_lshl_b32 s62, s{S_G}, 17")
    a("s_lshl_b32 s63, s72, 16")
    a("s_add_u32 s62, s62, s63")
    a("s_lshl_b32 s63, s77, 7")
    a("s_add_u32 s62, s62, s63")
    a(f"buffer_store_dwordx4 v[8:11], v4, s[{SRD_A}:{SRD_A+3}], s62 offen {OUT_FLAGS}")

def build():
    a = Asm()
    label = G.NAME + "_kernel"
    a.raw(G.HEADER.rstrip("\n"))
    a.raw("; @launch grid=(256,1,1) block=(512,1,1) lds=163840")
    a.raw('.amdgcn_target "amdgcn-amd-amdhsa--gfx950"')
    a.raw(".text")
    a.raw(f".globl {label}")
    a.raw(".p2align 8")
    a.raw(f".type {label},@function")
    a.raw(f"{label}:")
    if PROFILE:
        a("s_memtime s[98:99]")
        a("s_memrealtime s[100:101]")
        for k in range(16): a(f"s_mov_b32 s{80+k}, 0")
    G.WS_USED = WS_USED
    G.prologue(a, "L_fin")
    a(f"s_add_u32 s60, s{P_WS}, {NONCE}")
    a(f"s_addc_u32 s61, s{P_WS+1}, 0")
    a(f"s_load_dword s{S_NONCE}, s[60:61], 0")
    phase0(a)
    attention(a)
    p3(a)
    p4(a)
    p5(a)
    lnn = a.newlabel("nn")
    a("s_cmp_lg_u32 s2, 0")
    a(f"s_cbranch_scc1 {lnn}")
    a(f"s_cmp_lg_u32 s{S_W}, 0")
    a(f"s_cbranch_scc1 {lnn}")
    a(f"s_mov_b32 s62, {NONCE}")
    set_flag(a, 62, 28)
    a.label(lnn)
    if PROFILE:
        a(f"s_cmp_lg_u32 s{S_W}, {PROF_WAVE}")
        a("s_cbranch_scc1 L_fin")
        a("s_waitcnt vmcnt(0) lgkmcnt(0)")
        a("s_memtime s[96:97]")
        a("s_memrealtime s[54:55]")
        a("s_waitcnt lgkmcnt(0)")
        for k in range(16):
            a(f"s_sub_u32 s{80+k}, s{80+k}, s98")
            a(f"v_mov_b32 v{k}, s{80+k}")
        a("s_sub_u32 s96, s96, s98")
        a("s_sub_u32 s54, s54, s100")
        a("v_mov_b32 v16, s96")
        a("v_mov_b32 v17, s54")
        a("v_mov_b32 v18, s100")
        a("v_mov_b32 v19, 0")
        a("s_mul_i32 s54, s2, 128")
        a(f"s_add_u32 s54, s54, {PROF}")
        a("v_mov_b32 v20, 0")
        a("s_mov_b64 exec, 1")
        for q in range(5):
            a(f"buffer_store_dwordx4 v[{4*q}:{4*q+3}], v20, {WS}, s54 offen offset:{16*q}")
    a.label("L_fin")
    a("s_endpgm")
    a.raw('.section .rodata,"a"')
    a.raw(".p2align 6")
    G.descriptor(a, label, 256)
    return a.text()

if __name__ == "__main__":
    open(sys.argv[1], "w").write(build())
```

```python
import os, sys
from asmlib import Asm
import gen as G
from gen import (S_W, S_G, S_J, S_TBK, S_HQ, S_TQ, SRD_WS, SRD_A, SRD_B, SRD_C, SRD_D, mk_srd, f32hex,
                 dpp_sum16, xhalf, xrow16, OF, HF, KF, VF, HST, CSP, WOF, WDF, WGF, HHF, QSCALE,
                 P_X, P_WQ, P_WK, P_WV, P_WO, P_WG, P_WU, P_WD, P_OUT, P_DBG, P_WS)
from kernels2 import mfma
WS = f"s[{SRD_WS}:{SRD_WS+3}]"
FLG = 0x1410000
FLG_A, FLG_W, FLG_E, FLG_X = FLG, FLG + 64*128, FLG + 320*128, FLG + 576*128
FLG_B, FLG_C, FLG_D = FLG + 1024*128, FLG + 3072*128, FLG + 5120*128
NONCE = FLG + 7168*128
S_NONCE = 56
PROF = 0x1400000
WS_USED = 0x1500000
SPIN = 400000
S_LOCAL = 69
LOCAL_OK = os.environ.get('LOCAL_OK', '1') == '1'
LOCAL_DATA = os.environ.get('LOCAL_DATA', '')
PRIO2 = os.environ.get('PRIO2', '1') == '1'
DOUBLE = os.environ.get('DOUBLE', '')
ZROWS = os.environ.get('ZROWS', '1') == '1'
OUT_FLAGS = os.environ.get('OUT_FLAGS', '')
POLL_DELAY = int(os.environ.get('POLL_DELAY', '0'))
SENT_D = os.environ.get('SENT_D', '0') == '1'
FULL_LINE = os.environ.get('FULL_LINE', '1') == '1'
POLL_SLEEP = int(os.environ.get('POLL_SLEEP', '2'))
PROFILE = G.PROFILE
PROF_WAVE = G.PROF_WAVE
PRIO = os.environ.get("PRIO", "1") == "1"
NST = [0]
STAMPSET = os.environ.get("STAMPSET", "main")
def stamp(a, kind="main"):
    if not PROFILE: return
    if kind != STAMPSET: return
    k = NST[0]; NST[0] += 1
    assert k < 16
    a("s_waitcnt lgkmcnt(0)")
    a("s_memtime s[96:97]")
    a("s_waitcnt lgkmcnt(0)")
    a(f"s_mov_b32 s{80+k}, s96")

def spin_begin(a, name):
    l = a.newlabel(name)
    a(f"s_mov_b32 s79, {SPIN}")
    a.label(l)
    return l
def spin_end(a, l, done, sleep=1):
    a("s_nop 4")
    a(f"s_cbranch_vccz {done}")
    a(f"s_sleep {sleep}")
    a("s_sub_u32 s79, s79, 1")
    a("s_cmp_lg_u32 s79, 0")
    a(f"s_cbranch_scc1 {l}")
    a.label(done)

def gstore(a, instr, kind="f"):
    if not LOCAL_OK or (kind != "f" and kind not in LOCAL_DATA):
        a(instr + " sc1"); return
    lf = a.newlabel("gl"); le = a.newlabel("ge")
    a(f"s_cmp_eq_u32 s{S_LOCAL}, 1")
    a(f"s_cbranch_scc1 {lf}")
    a(instr + " sc1")
    a(f"s_branch {le}")
    a.label(lf)
    a(instr)
    a.label(le)

def clean_store(a, reg, sreg, kind):
    if kind not in LOCAL_DATA: return
    l = a.newlabel("cl")
    a(f"s_cmp_eq_u32 s{S_LOCAL}, 1")
    a(f"s_cbranch_scc0 {l}")
    a(f"buffer_store_dwordx4 v[{reg}:{reg+3}], v1, {WS}, s{sreg} offen sc1")
    a.label(l)

def poll_flags(a, soff_reg, nlanes, vtmp, voff, sleep=1, shift=7):
    done = a.newlabel("pd")
    a(f"v_lshlrev_b32 v{voff}, {shift}, v0")
    if nlanes < 64:
        a(f"s_mov_b64 exec, {hex((1 << nlanes) - 1)}")
    l = spin_begin(a, "pl")
    a(f"buffer_load_dword v{vtmp}, v{voff}, {WS}, s{soff_reg} offen sc1")
    a("s_waitcnt vmcnt(0)")
    a(f"v_cmp_ne_u32 vcc, s{S_NONCE}, v{vtmp}")
    spin_end(a, l, done, sleep)
    if nlanes < 64:
        a("s_mov_b64 exec, -1")

def set_flag(a, soff_reg, vtmp, fast_ok=False):
    a(f"v_mov_b32 v{vtmp}, s{S_NONCE}")
    if FULL_LINE:
        a(f"v_lshlrev_b32 v{vtmp+1}, 2, v0")
        a("s_mov_b32 exec_hi, 0")
    else:
        a(f"v_mov_b32 v{vtmp+1}, 0")
        a("s_mov_b64 exec, 1")
    if fast_ok:
        gstore(a, f"buffer_store_dword v{vtmp}, v{vtmp+1}, {WS}, s{soff_reg} offen")
    else:
        a(f"buffer_store_dword v{vtmp}, v{vtmp+1}, {WS}, s{soff_reg} offen sc1")
    a("s_mov_b64 exec, -1")

L_XN, L_WQ, L_WK, L_WV = 0, 32768, 131072, 147456
QSAVE = 244

def phase0(a):
    mk_srd(a, SRD_A, P_X, 2048 * 1024)
    mk_srd(a, SRD_B, P_WQ, 512 * 1024)
    a(f"s_lshl_b32 s54, s{S_TBK}, 5")
    a(f"s_lshl_b32 s55, s{S_W}, 2")
    a("s_add_u32 s54, s54, s55")
    a("v_lshrrev_b32 v2, 4, v0")
    a("v_and_b32 v3, 15, v0")
    a("v_add_u32 v4, s54, v2")
    a("v_lshlrev_b32 v4, 10, v4")
    a("v_lshl_add_u32 v4, v3, 4, v4")
    for i in range(4):
        a(f"buffer_load_dwordx4 v[{16+4*i}:{19+4*i}], v4, s[{SRD_A}:{SRD_A+3}], 0 offen offset:{256*i}")
    a("v_lshlrev_b32 v6, 4, v0")
    lskip = a.newlabel("nokv"); lj = a.newlabel("kvj")
    a(f"s_cmp_lg_u32 s{S_HQ}, 0")
    a(f"s_cbranch_scc1 {lskip}")
    mk_srd(a, SRD_C, P_WK, 16384)
    mk_srd(a, SRD_D, P_WV, 16384)
    a(f"s_lshl_b32 s60, s{S_W}, 11")
    for i in range(2):
        a(f"s_add_u32 s61, s60, {i*1024}")
        a(f"s_add_u32 m0, s61, {L_WK}")
        a("s_nop 0")
        a(f"buffer_load_dwordx4 v6, s[{SRD_C}:{SRD_C+3}], s61 offen lds")
        a(f"s_add_u32 m0, s61, {L_WV}")
        a("s_nop 0")
        a(f"buffer_load_dwordx4 v6, s[{SRD_D}:{SRD_D+3}], s61 offen lds")
    a.label(lskip)
    a("v_lshlrev_b32 v5, 2, v2")
    a("v_xor_b32 v5, v3, v5")
    a("v_lshlrev_b32 v5, 4, v5")
    a("v_lshl_add_u32 v5, v2, 10, v5")
    a(f"s_lshl_b32 s55, s{S_HQ}, 8")
    a("v_add_u32 v5, s55, v5")
    a(f"s_lshl_b32 s62, s{S_W}, 12")
    a(f"s_add_u32 s62, s62, {L_WQ}")
    a(f"s_lshl_b32 s63, s{S_W}, 14")
    def wq_dma(q):
        for i in range(4):
            a(f"s_add_u32 m0, s62, {q * 32768 + i * 1024}")
            a(f"s_add_u32 s64, s63, {(q * 128 + 4 * i) * 1024}")
            a(f"buffer_load_dwordx4 v5, s[{SRD_B}:{SRD_B+3}], s64 offen lds")
    wq_dma(0)
    stamp(a, "p0")
    a("s_waitcnt vmcnt(4)")
    stamp(a); stamp(a, "p0")
    b = Asm()
    if True:
        b("s_mov_b32 s60, 0x3f803f80")
        for r in range(4): b(f"v_mov_b32 v{32+r}, 0")
        for i in range(16):
            b(f"v_dot2_f32_bf16 v{32 + (i & 1)}, v{16+i}, s60, v{32 + (i & 1)}")
            b(f"v_dot2_f32_bf16 v{34 + (i & 1)}, v{16+i}, v{16+i}, v{34 + (i & 1)}")
        b("s_mov_b32 s61, 0xffff0000")
        for i in range(4):
            b(f"v_lshlrev_b32 v{64+2*i}, 16, v{16+i}")
            b(f"v_and_b32 v{65+2*i}, s61, v{16+i}")
        b("v_add_f32 v32, v32, v33")
        b("v_add_f32 v34, v34, v35")
        for n, sh in enumerate((8, 4, 2, 1)):
            for i in range(4 + 3*n, 7 + 3*n):
                b(f"v_lshlrev_b32 v{64+2*i}, 16, v{16+i}")
                b(f"v_and_b32 v{65+2*i}, s61, v{16+i}")
            b(f"v_add_f32_dpp v32, v32, v32 row_ror:{sh} row_mask:0xf bank_mask:0xf")
            b(f"v_add_f32_dpp v34, v34, v34 row_ror:{sh} row_mask:0xf bank_mask:0xf")
        b(f"v_mul_f32 v32, {f32hex(1.0/512)}, v32")
        b("v_mul_f32 v33, v32, v32")
        b(f"v_mov_b32 v35, {f32hex(1.0/512)}")
        b("v_fma_f32 v34, v34, v35, -v33")
        b("v_max_f32 v34, 0, v34")
        b(f"v_add_f32 v34, {f32hex(1e-5)}, v34")
        b("v_rsq_f32 v38, v34")
        b.c("XN write addr")
        b(f"s_lshl_b32 s55, s{S_W}, 2")
        b("v_add_u32 v7, s55, v2")
        b("v_mov_b32 v39, v38")
        b("v_mul_f32 v36, v32, v38")
        b("v_sub_f32 v36, 0, v36")
        b("v_mov_b32 v37, v36")
        for i in range(16):
            b(f"v_pk_fma_f32 v[{64+2*i}:{65+2*i}], v[{64+2*i}:{65+2*i}], v[38:39], v[36:37]")
        b("v_and_b32 v8, 7, v3")
        b("v_xor_b32 v7, v7, v8")
        b("v_lshlrev_b32 v7, 4, v7")
        b("v_lshrrev_b32 v8, 1, v3")
        b("v_lshl_add_u32 v7, v8, 10, v7")
        b("v_and_b32 v8, 1, v3")
        b("v_lshl_add_u32 v7, v8, 9, v7")
        for i in range(4):
            for e in range(4):
                b(f"v_cvt_pk_bf16_f32 v{16+4*i+e}, v{64+8*i+2*e}, v{65+8*i+2*e}")
            b(f"ds_write_b128 v7, v[{16+4*i}:{19+4*i}] offset:{L_XN + i*8192}")

    a.L.extend(b.L)
    wq_dma(1); wq_dma(2)
    a("v_lshrrev_b32 v8, 5, v0")
    a("v_and_b32 v9, 31, v0")
    for m in range(4):
        a(f"v_add_u32 v10, {2*m}, v8")
        a("v_xor_b32 v10, v9, v10")
        a("v_lshlrev_b32 v10, 4, v10")
        a(f"v_lshl_add_u32 v{40+m}, v8, 9, v10")
    a("v_lshrrev_b32 v10, 2, v3")
    a("v_and_b32 v11, 3, v3")
    a("v_lshl_add_u32 v12, v8, 3, v10")
    a.c("wq fragment rows 0..15 = head 2p, rows 16..31 = head 2p+1 ; chunk = 4p + 2blk + (cg>>1), swizzled by r4<<2")
    a(f"s_and_b32 s55, s{S_W}, 3")
    a("s_lshl_b32 s55, s55, 2")
    a("v_lshrrev_b32 v13, 1, v11")
    a("v_add_u32 v13, s55, v13")
    a("v_and_b32 v14, 1, v2")
    a("v_lshl_add_u32 v13, v14, 1, v13")
    a("v_lshlrev_b32 v14, 2, v10")
    a("v_xor_b32 v13, v13, v14")
    a("v_lshlrev_b32 v13, 4, v13")
    a("v_lshl_add_u32 v13, v12, 8, v13")
    a("v_and_b32 v14, 1, v11")
    a("v_lshl_add_u32 v13, v14, 3, v13")
    a(f"s_lshr_b32 s55, s{S_W}, 2")
    a("s_lshl_b32 s55, s55, 12")
    a(f"s_add_u32 s55, s55, {L_WQ}")
    a("v_add_u32 v44, s55, v13")
    stamp(a, "p0")
    a("s_waitcnt lgkmcnt(0)")
    a.c("launch tag: a fixed-point-free bijection of the tag the previous launch left (any value works)")
    a(f"s_mul_i32 s{S_NONCE}, s{S_NONCE}, 0x9E3779B1")
    a(f"s_add_u32 s{S_NONCE}, s{S_NONCE}, 0x7F4A7C15")
    a("s_barrier")
    stamp(a); stamp(a, "p0")
    lx = a.newlabel("xid")
    a(f"s_cmp_lg_u32 s{S_W}, 3")
    a(f"s_cbranch_scc1 {lx}")
    a.c("tell the other members of the group which XCD this workgroup runs on")
    a("s_getreg_b32 s55, hwreg(HW_REG_XCC_ID, 0, 4)")
    a(f"v_mov_b32 v50, s{S_NONCE}")
    a("v_mov_b32 v51, s55")
    a("v_lshlrev_b32 v52, 3, v0")
    a(f"s_lshl_b32 s55, s{S_G}, 4")
    a(f"s_add_u32 s55, s55, s{S_J}")
    a("s_lshl_b32 s55, s55, 7")
    a(f"s_add_u32 s55, s55, {FLG_X}")
    a("s_mov_b64 exec, 0xffff")
    a(f"buffer_store_dwordx2 v[50:51], v52, {WS}, s55 offen sc1")
    a("s_mov_b64 exec, -1")
    a.label(lx)
    lkvd = a.newlabel("kvdone"); lkv1 = a.newlabel("kv1"); lkv0 = a.newlabel("kv0")
    a(f"s_cmp_eq_u32 s{S_HQ}, 0")
    a(f"s_cbranch_scc1 {lkv0}")
    wq_dma(3)
    a(f"s_branch {lkv1}")
    a.label(lkv0)
    a.c("tr addr: blk0 -> WV, blk1 -> WK ; row (64w + 16e + 8khalf + 4rd + r4)*32 + cg*8")
    a("v_lshlrev_b32 v13, 5, v12")
    a("v_lshl_add_u32 v13, v11, 3, v13")
    a(f"s_lshl_b32 s55, s{S_W}, 11")
    a("v_add_u32 v13, s55, v13")
    a("v_and_b32 v14, 1, v2")
    a(f"v_mov_b32 v15, {L_WV}")
    a(f"v_mov_b32 v45, {L_WK}")
    a("v_cmp_eq_u32 vcc, 1, v14")
    a("s_nop 1")
    a("v_cndmask_b32 v15, v15, v45, vcc")
    a("v_add_u32 v13, v13, v15")
    a.c("xn frags for k-steps 4w..4w+3 : s&3 = e")
    a(f"s_lshl_b32 s55, s{S_W}, 12")
    for e in range(4):
        a(f"v_add_u32 v{46+e}, s55, v{40+e}")
    for e in range(4):
        a(f"ds_read_b64_tr_b16 v[{64+4*e}:{65+4*e}], v13 offset:{e*512}")
        a(f"ds_read_b64_tr_b16 v[{66+4*e}:{67+4*e}], v13 offset:{e*512+128}")
        a(f"ds_read_b128 v[{80+4*e}:{83+4*e}], v{46+e} offset:{L_XN + e*1024}")
    for e in range(4):
        a(f"s_waitcnt lgkmcnt({9-3*e})")
        mfma(a, 96, 64 + 4 * e, 80 + 4 * e, None if e == 0 else 96)
    a.c("RED: q=0,1 -> WK + w*2048 + q*1024 ; q=2,3 -> WV + w*2048 + (q-2)*1024  (own, already consumed rows)")
    a(f"s_lshl_b32 s55, s{S_W}, 11")
    a(f"s_add_u32 s55, s55, {L_WK}")
    a("v_add_u32 v14, s55, v6")
    a(f"v_add_u32 v15, {L_WV - L_WK}, v14")
    a("s_nop 10")
    a("ds_write_b128 v14, v[96:99]")
    a("ds_write_b128 v14, v[100:103] offset:1024")
    a("ds_write_b128 v15, v[104:107]")
    a("ds_write_b128 v15, v[108:111] offset:1024")
    a.label(lkv1)
    stamp(a, "p0")
    a("s_waitcnt vmcnt(8) lgkmcnt(0)")
    stamp(a, "p0")
    a("s_barrier")
    stamp(a, "p0")
    a(f"s_cmp_lg_u32 s{S_HQ}, 0")
    a(f"s_cbranch_scc1 {lkvd}")
    lv = a.newlabel("kv_v")
    a(f"s_cmp_eq_u32 s{S_W}, 1")
    a(f"s_cbranch_scc1 {lv}")
    a(f"s_cmp_lg_u32 s{S_W}, 0")
    a(f"s_cbranch_scc1 {lkvd}")
    def red8(base):
        a(f"v_add_u32 v14, {base}, v6")
        for ww in range(8):
            a(f"ds_read_b128 v[{64+8*ww}:{67+8*ww}], v14 offset:{ww*2048}")
            a(f"ds_read_b128 v[{68+8*ww}:{71+8*ww}], v14 offset:{ww*2048+1024}")
            if ww == 3: a("s_waitcnt lgkmcnt(4)")
        a("s_waitcnt lgkmcnt(0)")
        for ww in range(1, 8):
            for i in range(4):
                a(f"v_pk_add_f32 v[{64+2*i}:{65+2*i}], v[{64+2*i}:{65+2*i}], v[{64+8*ww+2*i}:{65+8*ww+2*i}]")
        for r in range(4):
            a(f"v_cvt_pk_bf16_f32 v{76+r}, v{64+2*r}, v{65+2*r}")
    red8(L_WV)
    a(f"s_lshl_b32 s55, s{S_TBK}, 10")
    a(f"s_add_u32 s55, s55, {KF}")
    a(f"buffer_store_dwordx4 v[76:79], v6, {WS}, s55 offen sc1")
    a("v_mov_b32 v80, 0")
    for r in range(4):
        a(f"v_dot2_f32_bf16 v80, v{76+r}, v{76+r}, v80")
    a("s_nop 2")
    xhalf(a, 80, 81, "v_add_f32")
    dpp_sum16(a, 80, "v_max_f32")
    xrow16(a, 80, 81, "v_max_f32")
    a(f"v_mov_b32 v{QSAVE+9}, v80")
    a(f"s_branch {lkvd}")
    a.label(lv)
    red8(L_WK)
    a("v_lshlrev_b32 v80, 5, v9")
    a("v_lshl_add_u32 v80, v8, 3, v80")
    a(f"v_add_u32 v80, {L_WK}, v80")
    a("ds_write_b64 v80, v[76:77]")
    a("ds_write_b64 v80, v[78:79] offset:16")
    a("v_lshl_add_u32 v81, v8, 2, v10")
    a("v_lshlrev_b32 v81, 5, v81")
    a("v_and_b32 v82, 1, v11")
    a("v_lshlrev_b32 v82, 1, v82")
    a("v_lshrrev_b32 v83, 1, v11")
    a("v_add_u32 v82, v82, v83")
    a("v_lshl_add_u32 v81, v82, 3, v81")
    a(f"v_add_u32 v81, {L_WK}, v81")
    a("s_waitcnt lgkmcnt(0)")
    for c2 in range(2):
        for rd in range(2):
            d = 84 + 4 * c2 + 2 * rd
            a(f"ds_read_b64_tr_b16 v[{d}:{d+1}], v81 offset:{(16*c2 + 8*rd) * 32}")
    a("v_lshl_add_u32 v82, v8, 4, v3")
    a("v_lshlrev_b32 v82, 4, v82")
    a(f"s_lshl_b32 s55, s{S_TBK}, 10")
    a(f"s_add_u32 s55, s55, {VF}")
    a("s_waitcnt lgkmcnt(0)")
    a("s_mov_b32 exec_lo, 0x0000ffff")
    a("s_mov_b32 exec_hi, 0x0000ffff")
    a(f"buffer_store_dwordx4 v[84:87], v82, {WS}, s55 offen sc1")
    a(f"buffer_store_dwordx4 v[88:91], v82, {WS}, s55 offen offset:512 sc1")
    a("s_mov_b64 exec, -1")
    a.label(lkvd)
    a("v_add_u32 v45, 1024, v44")
    stamp(a, "p0")
    def publish_kv():
        lnf = a.newlabel("noflag")
        a(f"s_cmp_lg_u32 s{S_HQ}, 0")
        a(f"s_cbranch_scc1 {lnf}")
        a(f"s_cmp_lg_u32 s{S_W}, 0")
        a(f"s_cbranch_scc1 {lnf}")
        a(f"s_lshl_b32 s55, s{S_TBK}, 7")
        a(f"s_add_u32 s55, s55, {FLG_A}")
        a("v_lshlrev_b32 v80, 3, v0")
        a(f"v_mov_b32 v{QSAVE+8}, s{S_NONCE}")
        a("s_mov_b64 exec, 0xffff")
        a(f"buffer_store_dwordx2 v[{QSAVE+8}:{QSAVE+9}], v80, {WS}, s55 offen sc1")
        a("s_mov_b64 exec, -1")
        a.label(lnf)
    ACC = 96
    AB = [112, 116, 120]; BB = [124, 128, 132]
    a.c("x fragment addresses: k-step s = 2u + kh, swizzle index s&3 = (2(u&1) + kh)")
    a(f"s_lshr_b32 s55, s{S_W}, 2")
    a("s_cmp_eq_u32 s55, 0")
    a("s_cselect_b64 vcc, -1, 0")
    a("s_lshl_b32 s55, s55, 10")
    a("v_cndmask_b32 v46, v41, v40, vcc")
    a("v_cndmask_b32 v47, v43, v42, vcc")
    a("v_add_u32 v46, s55, v46")
    a("v_add_u32 v47, s55, v47")
    def issue(u):
        A = AB[u % 3]; B = BB[u % 3]
        a.lg(f"ds_read_b64_tr_b16 v[{A}:{A+1}], v44", u)
        a.lg(f"ds_read_b64_tr_b16 v[{A+2}:{A+3}], v45", u)
        a.lg(f"ds_read_b128 v[{B}:{B+3}], v{46 + (u & 1)} offset:{L_XN + u*2048}", u)
        a("v_add_u32 v44, 8192, v44"); a("v_add_u32 v45, 8192, v45")
    a.lgq = []
    issue(0); issue(1)
    for u in range(16):
        if u + 2 < 16:
            if u + 2 == 4:
                a("s_waitcnt vmcnt(0)")
                a("s_barrier")
                stamp(a, "p0"); a.lgq = [] if PROFILE and STAMPSET == "p0" else a.lgq
                publish_kv()
                l3 = a.newlabel("q3b")
                a(f"s_cmp_lg_u32 s{S_HQ}, 0")
                a(f"s_cbranch_scc1 {l3}")
                wq_dma(3)
                a.label(l3)
            if u + 2 == 12:
                a("s_waitcnt vmcnt(0)")
                a("s_barrier")
            issue(u + 2)
        a.lg_wait(u)
        mfma(a, ACC, AB[u % 3], BB[u % 3], None if u == 0 else ACC)
    a.c("add the other half of the k range (wave w ^ 4); exchange through wq slot 0")
    a(f"s_lshl_b32 s55, s{S_W}, 12")
    a(f"s_add_u32 s55, s55, {L_WQ}")
    a("v_add_u32 v14, s55, v6")
    a(f"s_xor_b32 s55, s{S_W}, 4")
    a("s_lshl_b32 s55, s55, 12")
    a(f"s_add_u32 s55, s55, {L_WQ}")
    a("v_add_u32 v15, s55, v6")
    a("s_nop 9")
    for q in range(4):
        a(f"ds_write_b128 v14, v[{ACC+4*q}:{ACC+4*q+3}] offset:{q*1024}")
    a("s_waitcnt lgkmcnt(0)")
    a("s_barrier")
    for q in range(4):
        a(f"ds_read_b128 v[{64+4*q}:{67+4*q}], v15 offset:{q*1024}")
    a(f"v_mov_b32 v36, {f32hex(QSCALE)}")
    a("v_mov_b32 v37, v36")
    a("s_waitcnt lgkmcnt(0)")
    for i in range(8):
        a(f"v_pk_add_f32 v[{64+2*i}:{65+2*i}], v[{64+2*i}:{65+2*i}], v[{ACC+2*i}:{ACC+2*i+1}]")
    for i in range(8):
        a(f"v_pk_mul_f32 v[{64+2*i}:{65+2*i}], v[{64+2*i}:{65+2*i}], v[36:37]")
    for r in range(8):
        a(f"v_cvt_pk_bf16_f32 v{QSAVE+r}, v{64+2*r}, v{65+2*r}")
    stamp(a); stamp(a, "p0")
    a("s_barrier")
    stamp(a, "p0")

L_SCR = 131072
S_JOB = 78
V_WJS, V_WJT, V_WJC = 140, 141, 142
SRD_J1, SRD_J2 = 20, 36
def wj_setup(a):
    a("v_lshrrev_b32 v143, 4, v0")
    a("v_and_b32 v144, 15, v0")
    a("v_lshrrev_b32 v145, 5, v0")
    a("v_lshrrev_b32 v146, 2, v144")
    a("v_and_b32 v147, 3, v144")
    a("v_and_b32 v148, 1, v147")
    a("v_lshlrev_b32 v148, 1, v148")
    a("v_lshrrev_b32 v149, 1, v147")
    a("v_add_u32 v148, v148, v149")
    a("v_lshlrev_b32 v148, 3, v148")
    a("v_and_b32 v149, 1, v143")
    a("v_lshl_add_u32 v150, v145, 3, v146")
    a(f"s_lshl_b32 s57, s{S_W}, 12")
    a(f"s_add_u32 s57, s57, {L_SCR}")
    a(f"s_mov_b32 s{S_JOB}, 0")
    lo = a.newlabel("wjo"); ld = a.newlabel("wjd")
    a("s_cmp_ge_u32 s2, 112")
    a(f"s_cbranch_scc1 {lo}")
    a(f"s_mov_b32 s{S_JOB}, 1")
    a("s_lshr_b32 s60, s2, 2")
    a("s_and_b32 s61, s2, 3")
    a("s_lshl_b32 s62, s61, 3")
    a(f"s_add_u32 s62, s62, s{S_W}")
    mk_srd(a, SRD_J1, P_WG, 512 * 3584)
    mk_srd(a, SRD_J2, P_WU, 512 * 3584)
    a("v_lshrrev_b32 v151, 3, v0")
    a("s_mov_b32 s63, 3584")
    a("v_mul_lo_u32 v151, v151, s63")
    a("v_and_b32 v152, 7, v0")
    a(f"v_lshl_add_u32 v{V_WJS}, v152, 4, v151")
    a("s_mul_i32 s58, s62, 57344")
    a("s_lshl_b32 s63, s60, 7")
    a("s_add_u32 s58, s58, s63")
    a("v_lshlrev_b32 v151, 7, v150")
    a("v_lshl_add_u32 v151, v149, 11, v151")
    a("v_add_u32 v151, v151, v148")
    a(f"v_add_u32 v{V_WJT}, s57, v151")
    a("s_lshl_b32 s59, s60, 7")
    a("s_add_u32 s59, s59, s62")
    a("s_lshl_b32 s59, s59, 10")
    a(f"s_add_u32 s59, s59, {WGF}")
    a("s_mul_i32 s72, s61, 112")
    a("s_lshl_b32 s63, s60, 2")
    a("s_add_u32 s72, s72, s63")
    a("s_lshl_b32 s72, s72, 7")
    a(f"s_add_u32 s72, s72, {CSP}")
    a("v_lshlrev_b32 v151, 2, v0")
    a(f"v_add_u32 v{V_WJC}, s57, v151")
    a.c("warm the L2 with the 16 source rows (one 128-byte line per row and matrix)")
    a("v_and_b32 v151, 15, v0")
    a("s_mov_b32 s63, 3584")
    a("v_mul_lo_u32 v151, v151, s63")
    a(f"buffer_load_dword v153, v151, s[{SRD_J1}:{SRD_J1+3}], s58 offen")
    a(f"buffer_load_dword v154, v151, s[{SRD_J2}:{SRD_J2+3}], s58 offen")
    a(f"s_branch {ld}")
    a.label(lo)
    a("s_cmp_ge_u32 s2, 184")
    a(f"s_cbranch_scc1 {ld}")
    a("s_sub_u32 s60, s2, 112")
    a("s_lshl_b32 s60, s60, 3")
    a(f"s_add_u32 s60, s60, s{S_W}")
    lwd = a.newlabel("wjwd")
    a("s_cmp_ge_u32 s60, 128")
    a(f"s_cbranch_scc1 {lwd}")
    a(f"s_mov_b32 s{S_JOB}, 3")
    mk_srd(a, SRD_J1, P_WO, 512 * 1024)
    a("s_lshr_b32 s61, s60, 3")
    a("s_and_b32 s62, s60, 7")
    a("v_lshrrev_b32 v151, 3, v0")
    a("v_lshlrev_b32 v151, 10, v151")
    a("v_and_b32 v152, 7, v0")
    a(f"v_lshl_add_u32 v{V_WJS}, v152, 4, v151")
    a("s_lshl_b32 s58, s61, 15")
    a("s_lshl_b32 s60, s62, 7")
    a("s_add_u32 s58, s58, s60")
    a("s_mov_b32 s69, 8192")
    a("v_lshl_add_u32 v151, v143, 3, v146")
    a("v_lshlrev_b32 v151, 7, v151")
    a("v_lshl_add_u32 v151, v147, 3, v151")
    a(f"v_add_u32 v{V_WJT}, s57, v151")
    a("s_lshl_b32 s59, s62, 6")
    a("s_add_u32 s59, s59, s61")
    a("s_lshl_b32 s59, s59, 10")
    a(f"s_add_u32 s59, s59, {WOF}")
    a("s_mov_b32 s72, 16384")
    a("v_and_b32 v151, 31, v0")
    a("v_lshlrev_b32 v151, 10, v151")
    a(f"buffer_load_dword v153, v151, s[{SRD_J1}:{SRD_J1+3}], s58 offen")
    a(f"s_branch {ld}")
    a.label(lwd)
    a(f"s_mov_b32 s{S_JOB}, 2")
    a("s_sub_u32 s60, s60, 128")
    mk_srd(a, SRD_J1, P_WD, 1792 * 1024)
    a("s_lshr_b32 s61, s60, 2")
    a("s_and_b32 s62, s60, 3")
    a("v_lshlrev_b32 v151, 10, v143")
    a(f"v_lshl_add_u32 v{V_WJS}, v144, 4, v151")
    a("s_lshl_b32 s58, s61, 14")
    a("s_lshl_b32 s60, s62, 8")
    a("s_add_u32 s58, s58, s60")
    a("s_mov_b32 s69, 4096")
    a("v_lshlrev_b32 v151, 8, v150")
    a("v_lshl_add_u32 v151, v149, 5, v151")
    a("v_add_u32 v151, v151, v148")
    a(f"v_add_u32 v{V_WJT}, s57, v151")
    a("s_lshl_b32 s59, s62, 2")
    a("s_mul_i32 s59, s59, 112")
    a("s_add_u32 s59, s59, s61")
    a("s_lshl_b32 s59, s59, 10")
    a(f"s_add_u32 s59, s59, {WDF}")
    a(f"s_mov_b32 s72, {112*1024}")
    a("v_and_b32 v151, 31, v0")
    a("v_lshrrev_b32 v152, 1, v151")
    a("v_lshlrev_b32 v152, 10, v152")
    a("v_and_b32 v151, 1, v151")
    a("v_lshl_add_u32 v151, v151, 7, v152")
    a(f"buffer_load_dword v153, v151, s[{SRD_J1}:{SRD_J1+3}], s58 offen")
    a.label(ld)

def wj_branch(a, g_code, o_code):
    lo = a.newlabel("jo"); le = a.newlabel("je")
    a(f"s_cmp_eq_u32 s{S_JOB}, 1")
    a(f"s_cbranch_scc0 {lo}")
    if g_code: g_code()
    a(f"s_branch {le}")
    a.label(lo)
    if o_code:
        a(f"s_cmp_eq_u32 s{S_JOB}, 0")
        a(f"s_cbranch_scc1 {le}")
        o_code()
    a.label(le)

def wj_issue(a, part=None):
    def g():
        for i in ([0, 1] if part is None else [part]):
            a(f"s_add_u32 m0, s57, {i*1024}")
            a(f"s_add_u32 s63, s58, {i*8*3584}")
            a(f"buffer_load_dwordx4 v{V_WJS}, s[{SRD_J1}:{SRD_J1+3}], s63 offen lds")
            a(f"s_add_u32 m0, s57, {2048 + i*1024}")
            a("s_nop 0")
            a(f"buffer_load_dwordx4 v{V_WJS}, s[{SRD_J2}:{SRD_J2+3}], s63 offen lds")
    def o():
        for i in (range(4) if part is None else [2 * part, 2 * part + 1]):
            a(f"s_add_u32 m0, s57, {i*1024}")
            a(f"s_mul_i32 s63, s69, {i}")
            a(f"s_add_u32 s63, s63, s58")
            a(f"buffer_load_dwordx4 v{V_WJS}, s[{SRD_J1}:{SRD_J1+3}], s63 offen lds")
    wj_branch(a, g, o)

def wj_read(a, n_younger):
    def rd(st, rdoff):
        def f():
            a(f"s_waitcnt vmcnt({n_younger})")
            for q in range(4):
                d = 112 + 4 * q
                a(f"ds_read_b64_tr_b16 v[{d}:{d+1}], v{V_WJT} offset:{q*st}")
                a(f"ds_read_b64_tr_b16 v[{d+2}:{d+3}], v{V_WJT} offset:{q*st + rdoff}")
        return f
    l2 = a.newlabel("jr2"); le = a.newlabel("jre")
    a(f"s_cmp_eq_u32 s{S_JOB}, 0")
    a(f"s_cbranch_scc1 {le}")
    a(f"s_cmp_eq_u32 s{S_JOB}, 2")
    a(f"s_cbranch_scc1 {l2}")
    rd(32, 512)()
    a(f"s_branch {le}")
    a.label(l2)
    rd(64, 1024)()
    a.label(le)

def wj_store(a):
    def g():
        for r in range(4):
            a(f"v_mov_b32 v{128+r}, 0x3f803f80")
        for q in range(4):
            d = 112 + 4 * q
            a(f"s_add_u32 s63, s59, {q*32768}")
            a(f"buffer_store_dwordx4 v[{d}:{d+3}], v1, {WS}, s63 offen sc1")
        for q in range(4):
            mfma(a, 160 + 16 * q, 128, 112 + 4 * q, None)
    def o():
        a("s_mov_b32 s63, s59")
        for q in range(4):
            d = 112 + 4 * q
            a(f"buffer_store_dwordx4 v[{d}:{d+3}], v1, {WS}, s63 offen sc1")
            if q < 3: a("s_add_u32 s63, s63, s72")
    wj_branch(a, g, o)

def wj_cspart(a):
    def g():
        a("s_mov_b32 exec_hi, 0")
        for q in range(4):
            a(f"ds_write_b32 v{V_WJC}, v{160 + 16 * q} offset:{q*128}")
        a("s_mov_b64 exec, -1")
    wj_branch(a, g, None)

def wj_csread(a):
    def g():
        l = a.newlabel("csr")
        a(f"s_cmp_ge_u32 s{S_W}, 2")
        a(f"s_cbranch_scc1 {l}")
        a(f"s_lshl_b32 s63, s{S_W}, 8")
        a("v_lshlrev_b32 v132, 2, v0")
        a("v_add_u32 v132, s63, v132")
        a(f"v_add_u32 v133, {L_SCR}, v132")
        for ww in range(8):
            a(f"ds_read_b32 v{112+ww}, v133 offset:{ww*4096}")
        a.label(l)
    wj_branch(a, g, None)

def wj_csstore(a):
    def g():
        l = a.newlabel("css")
        a(f"s_cmp_ge_u32 s{S_W}, 2")
        a(f"s_cbranch_scc1 {l}")
        for ww in range(1, 8):
            a(f"v_add_f32 v112, v112, v{112+ww}")
        a(f"buffer_store_dword v112, v132, {WS}, s72 offen sc1")
        a.label(l)
    wj_branch(a, g, None)

def wj_signal(a):
    l = a.newlabel("wsig")
    a(f"s_cmp_eq_u32 s{S_JOB}, 0")
    a(f"s_cbranch_scc1 {l}")
    a(f"s_cmp_lg_u32 s{S_W}, 0")
    a(f"s_cbranch_scc1 {l}")
    a("s_lshl_b32 s63, s2, 7")
    a(f"s_add_u32 s63, s63, {FLG_W}")
    set_flag(a, 63, 112)
    a.label(l)

A_Q, A_O, A_S, A_P = 4, 8, [24, 40], 56
A_K = [64, 68]
A_V = [[72, 76], [80, 84]]
A_VK, A_VV = 88, 89
A_NEG = 96
A_Q2, A_O2 = 92, 96
WO_R = 112
NG_LATE = 12
WG_R = 128
XR = 60
BOUND2 = 1600.0

def attn_tile(a, p, extra=None):
    h = p & 1; i = p >> 1
    S = A_S[h]; Q = [A_Q, A_Q2]; O = [A_O, A_O2]
    def ex(r): a(f"v_exp_f32 v{S+r}, v{S+r}")
    def cv(k): a(f"v_cvt_pk_bf16_f32 v{A_P+k}, v{S+2*k}, v{S+2*k+1}")
    a("s_waitcnt lgkmcnt(0)")
    if h == 0:
        mfma(a, A_S[1], A_K[i & 1], Q[1], None)
    else:
        mfma(a, A_S[0], A_K[(i + 1) & 1], Q[0], None)
        a(f"ds_read_b128 v[{A_K[i & 1]}:{A_K[i & 1]+3}], v{A_VK} offset:{(i+2)*1024}")
    ex(0); ex(1); ex(2); ex(3)
    cv(0)
    if h == 0:
        mfma(a, O[1], A_V[1][(i - 1) & 1], A_P + 4, O[1])
        nb = (i + 1) & 1
        a("s_mov_b64 exec, s[70:71]")
        a(f"ds_read_b128 v[{A_V[0][nb]}:{A_V[0][nb]+3}], v{A_VV} offset:{(i+1)*1024}")
        a(f"ds_read_b128 v[{A_V[1][nb]}:{A_V[1][nb]+3}], v{A_VV} offset:{(i+1)*1024 + 512}")
        a("s_mov_b64 exec, -1")
    else:
        mfma(a, O[0], A_V[1][i & 1], A_P + 4, O[0])
    if extra: extra()
    ex(4); cv(1); ex(5); ex(6); ex(7); cv(2); ex(8); cv(3)
    ex(9); ex(10); ex(11)
    mfma(a, O[h], A_V[0][i & 1], A_P, O[h])
    cv(4); ex(12); cv(5); ex(13); ex(14); ex(15); cv(6)
    cv(7)

def wave_consts(a):
    a.c("WOF + (8cq + w)*16384 -> s68")
    a(f"s_lshl_b32 s68, s{S_HQ}, 3")
    a(f"s_add_u32 s68, s68, s{S_W}")
    a("s_lshl_b32 s68, s68, 14")
    a(f"s_add_u32 s68, s68, {WOF}")
    a.c("WGF + fb*32768 -> s73, fb = 7j + w (waves 0..6; wave 7 uses fb of wave 6, harmless duplicate)")
    a(f"s_min_u32 s73, s{S_W}, 6")
    a(f"s_mul_i32 s74, s{S_J}, 7")
    a("s_add_u32 s74, s74, s73")
    a("s_lshl_b32 s73, s74, 15")
    a(f"s_add_u32 s73, s73, {WGF}")

def ld_wg(a, s, tag="WG"):
    a(f"s_add_u32 s75, s73, {(s >> 2) * 4096}")
    a.vm(f"buffer_load_dwordx4 v[{WG_R+4*s}:{WG_R+4*s+3}], v1, {WS}, s75 offen offset:{(s&3)*1024} sc1", (tag, s))
def ld_wo(a, s):
    a(f"s_add_u32 s75, s68, {(s >> 2) * 4096}")
    a.vm(f"buffer_load_dwordx4 v[{WO_R+4*s}:{WO_R+4*s+3}], v1, {WS}, s75 offen offset:{(s&3)*1024} sc1", ("WO", s))

def prefetch_lists():
    it2 = [("g", s) for s in range(7, 32)]
    it3 = [("o", s) for s in range(16)]
    return it2, it3

def kv_dma(a, st, part=None):
    if part in (None, 0):
        a(f"s_add_u32 m0, s60, {st*8192}")
        a(f"s_add_u32 s62, s60, {st*8192 + KF}")
        a(f"buffer_load_dwordx4 v1, {WS}, s62 offen sc1 lds")
        a(f"buffer_load_dwordx4 v1, {WS}, s62 offen offset:1024 sc1 lds")
    if part in (None, 1):
        a(f"s_add_u32 m0, s60, {st*8192 + 65536}")
        a(f"s_add_u32 s62, s60, {st*8192 + VF}")
        a(f"buffer_load_dwordx4 v1, {WS}, s62 offen sc1 lds")
        a(f"buffer_load_dwordx4 v1, {WS}, s62 offen offset:1024 sc1 lds")

def wready_poll(a):
    l = a.newlabel("wrq")
    a(f"s_cmp_lg_u32 s{S_W}, 0")
    a(f"s_cbranch_scc1 {l}")
    a("v_lshlrev_b32 v2, 7, v0")
    a("v_add_u32 v3, 128, v0")
    a("v_min_u32 v3, 183, v3")
    a("v_lshlrev_b32 v3, 7, v3")
    a(f"s_mov_b32 s63, {FLG_W}")
    a(f"buffer_load_dword v112, v2, {WS}, s63 offen sc1")
    a(f"s_mov_b32 s63, {FLG_W + 64*128}")
    a(f"buffer_load_dword v113, v2, {WS}, s63 offen sc1")
    a(f"s_mov_b32 s63, {FLG_W}")
    a(f"buffer_load_dword v114, v3, {WS}, s63 offen sc1")
    a.label(l)
def wready_check(a):
    l = a.newlabel("wrc"); dn = a.newlabel("wrd")
    a(f"s_cmp_lg_u32 s{S_W}, 0")
    a(f"s_cbranch_scc1 {l}")
    def test():
        a("s_waitcnt vmcnt(0)")
        a(f"v_cmp_ne_u32 vcc, s{S_NONCE}, v112")
        a(f"v_cmp_ne_u32 s[62:63], s{S_NONCE}, v113")
        a("s_nop 1")
        a("s_or_b64 s[62:63], s[62:63], vcc")
        a(f"v_cmp_ne_u32 vcc, s{S_NONCE}, v114")
        a("s_nop 4")
        a("s_or_b64 vcc, vcc, s[62:63]")
    test()
    a(f"s_cbranch_vccz {dn}")
    l2 = spin_begin(a, "wrp")
    a(f"s_mov_b32 s63, {FLG_W}")
    a(f"buffer_load_dword v112, v2, {WS}, s63 offen sc1")
    a(f"buffer_load_dword v114, v3, {WS}, s63 offen sc1")
    a(f"s_mov_b32 s63, {FLG_W + 64*128}")
    a(f"buffer_load_dword v113, v2, {WS}, s63 offen sc1")
    test()
    spin_end(a, l2, dn, 4)
    a.label(l)
    a("s_barrier")

def local_poll(a):
    a("v_lshlrev_b32 v118, 7, v0")
    a(f"s_lshl_b32 s62, s{S_G}, 11")
    a(f"s_add_u32 s62, s62, {FLG_X}")
    a("s_mov_b64 exec, 0xffff")
    a(f"buffer_load_dwordx2 v[116:117], v118, {WS}, s62 offen sc1")
    a("s_mov_b64 exec, -1")
def local_check(a):
    dn = a.newlabel("lcd")
    a(f"s_lshl_b32 s62, s{S_G}, 11")
    a(f"s_add_u32 s62, s62, {FLG_X}")
    a("s_mov_b64 exec, 0xffff")
    a("s_waitcnt vmcnt(0)")
    a(f"v_cmp_ne_u32 vcc, s{S_NONCE}, v116")
    a("s_nop 4")
    a(f"s_cbranch_vccz {dn}")
    l = spin_begin(a, "lcp")
    a(f"buffer_load_dwordx2 v[116:117], v118, {WS}, s62 offen sc1")
    a("s_waitcnt vmcnt(0)")
    a(f"v_cmp_ne_u32 vcc, s{S_NONCE}, v116")
    spin_end(a, l, dn, 4)
    a("s_getreg_b32 s62, hwreg(HW_REG_XCC_ID, 0, 4)")
    a("v_cmp_ne_u32 vcc, s62, v117")
    a(f"v_cmp_ne_u32 s[62:63], s{S_NONCE}, v116")
    a("s_mov_b64 exec, -1")
    a("s_nop 2")
    a("s_or_b64 vcc, vcc, s[62:63]")
    a("s_cmp_eq_u64 vcc, 0")
    a(f"s_cselect_b32 s{S_LOCAL}, 1, 0")

def x_residual(a):
    mk_srd(a, SRD_A, P_X, 2048 * 1024)
    a("v_and_b32 v2, 15, v0")
    a("v_lshrrev_b32 v3, 4, v0")
    a("v_lshlrev_b32 v2, 10, v2")
    a("v_lshl_add_u32 v2, v3, 3, v2")
    a(f"s_lshl_b32 s62, s{S_TBK}, 15")
    a(f"s_lshl_b32 s63, s{S_HQ}, 8")
    a("s_add_u32 s62, s62, s63")
    a(f"s_lshl_b32 s63, s{S_W}, 5")
    a("s_add_u32 s62, s62, s63")
    a.vm(f"buffer_load_dwordx2 v[{XRES}:{XRES+1}], v2, s[{SRD_A}:{SRD_A+3}], s62 offen", "XR")
    a("s_add_u32 s62, s62, 16384")
    a.vm(f"buffer_load_dwordx2 v[{XRES+2}:{XRES+3}], v2, s[{SRD_A}:{SRD_A+3}], s62 offen", "XR")
XRES = 4

def hh_prefill(a):
    l = a.newlabel("pf")
    a(f"s_cmp_eq_u32 s{S_W}, 7")
    a(f"s_cbranch_scc1 {l}")
    for r in range(4): a(f"v_mov_b32 v{96+r}, -1")
    a("s_mul_i32 s62, s74, 1024")
    a(f"s_lshl_b32 s63, s{S_G}, 2")
    a("s_mul_i32 s63, s63, 114688")
    a("s_add_u32 s62, s62, s63")
    a(f"s_add_u32 s62, s62, {HHF}")
    for tb in range(4):
        a(f"buffer_store_dwordx4 v[96:99], v1, {WS}, s62 offen sc1")
        if tb < 3: a("s_add_u32 s62, s62, 114688")
    a("s_nop 1")
    a.label(l)

def attention(a):
    a("v_lshlrev_b32 v1, 4, v0")
    for r in range(4):
        a(f"v_mov_b32 v{A_Q+r}, v{QSAVE+r}")
        a(f"v_mov_b32 v{A_Q2+r}, v{QSAVE+4+r}")
    a("s_mov_b32 s70, 0x0000ffff")
    a("s_mov_b32 s71, 0x0000ffff")
    for r in range(16):
        a(f"v_mov_b32 v{A_O+r}, 0")
        a(f"v_mov_b32 v{A_O2+r}, 0")
        a(f"v_mov_b32 v{72+r}, 0x3f803f80")
    if ZROWS:
        a("s_mov_b32 s62, 0x00110000"); a("s_mov_b32 s63, 0x00110000")
        a("v_mov_b32 v91, 0")
        for r in range(16): a(f"v_cndmask_b32 v{72+r}, v91, v{72+r}, s[62:63]")
    for r in range(8):
        a(f"v_mov_b32 v{A_P+r}, 0")
    a(f"s_lshr_b32 s61, s{S_W}, 2")
    a("s_lshl_b32 s61, s61, 15")
    a(f"v_add_u32 v{A_VK}, s61, v1")
    a("v_lshrrev_b32 v90, 5, v0")
    a("v_and_b32 v91, 15, v0")
    a("v_lshl_add_u32 v90, v90, 4, v91")
    a("v_lshlrev_b32 v90, 4, v90")
    a("s_add_u32 s61, s61, 65536")
    a(f"v_add_u32 v{A_VV}, s61, v90")
    wave_consts(a)
    wj_setup(a)
    a("v_mov_b32 v90, 0")
    a("v_mov_b32 v2, 0")
    for r in range(4):
        a(f"v_dot2_f32_bf16 v90, v{A_Q+r}, v{A_Q+r}, v90")
        a(f"v_dot2_f32_bf16 v2, v{A_Q2+r}, v{A_Q2+r}, v2")
    a(f"s_lshr_b32 s60, s{S_W}, 2")
    a("s_lshl_b32 s60, s60, 4")
    a(f"s_and_b32 s61, s{S_W}, 3")
    a("s_add_u32 s60, s60, s61")
    a("s_lshl_b32 s60, s60, 11")
    xhalf(a, 90, 91, "v_add_f32")
    xhalf(a, 2, 91, "v_add_f32")
    a("v_max_f32 v90, v90, v2")
    la = a.newlabel("sa")
    a(f"s_cmp_lg_u32 s{S_W}, 0")
    a(f"s_cbranch_scc1 {la}")
    done = a.newlabel("syncA")
    a("v_lshlrev_b32 v2, 7, v0")
    a(f"s_mov_b32 s63, {FLG_A}")
    l = spin_begin(a, "pollA")
    a(f"buffer_load_dwordx2 v[112:113], v2, {WS}, s63 offen sc1")
    a("s_waitcnt vmcnt(0)")
    a(f"v_cmp_ne_u32 vcc, s{S_NONCE}, v112")
    spin_end(a, l, done, 2)
    dpp_sum16(a, 113, "v_max_f32")
    xrow16(a, 113, 91, "v_max_f32")
    xhalf(a, 113, 91, "v_max_f32")
    a(f"v_mov_b32 v91, {L_SCR + 4096 - 128}")
    a("s_mov_b64 exec, 1")
    a("ds_write_b32 v91, v113")
    a("s_mov_b64 exec, -1")
    a("s_waitcnt lgkmcnt(0)")
    a.label(la)
    a("s_barrier")
    stamp(a)
    kv_dma(a, 0)
    a(f"v_mov_b32 v91, {L_SCR + 4096 - 128}")
    a("ds_read_b32 v3, v91")
    a("s_waitcnt lgkmcnt(0)")
    a("v_mul_f32 v90, v90, v3")
    a(f"v_mov_b32 v91, {f32hex(BOUND2)}")
    a("v_cmp_gt_f32 vcc, v90, v91")
    a.c("workgroup-wide vote: any row that might leave the safe range sends the whole workgroup to the max-subtracting path")
    a("s_nop 4")
    a("s_cmp_lg_u64 vcc, 0")
    a("s_cselect_b32 s61, 1, 0")
    a("v_mov_b32 v90, s61")
    a(f"s_lshl_b32 s61, s{S_W}, 2")
    a(f"s_add_u32 s61, s61, {L_SCR + 4096 - 64}")
    a("v_mov_b32 v91, s61")
    a("s_mov_b64 exec, 1")
    a("ds_write_b32 v91, v90")
    a("s_mov_b64 exec, -1")
    a("s_waitcnt vmcnt(0) lgkmcnt(0)")
    a("s_barrier")
    a(f"v_mov_b32 v91, {L_SCR + 4096 - 64}")
    a("ds_read_b128 v[112:115], v91")
    a("ds_read_b128 v[116:119], v91 offset:16")
    a(f"ds_read_b128 v[{A_K[0]}:{A_K[0]+3}], v{A_VK}")
    a(f"ds_read_b128 v[{A_K[1]}:{A_K[1]+3}], v{A_VK} offset:1024")
    a("s_mov_b64 exec, s[70:71]")
    a(f"ds_read_b128 v[{A_V[0][0]}:{A_V[0][0]+3}], v{A_VV}")
    a(f"ds_read_b128 v[{A_V[1][0]}:{A_V[1][0]+3}], v{A_VV} offset:512")
    a("s_mov_b64 exec, -1")
    a("s_waitcnt lgkmcnt(0)")
    a("v_or3_b32 v112, v112, v113, v114")
    a("v_or3_b32 v116, v116, v117, v118")
    a("v_or3_b32 v112, v112, v115, v119")
    a("v_or_b32 v112, v112, v116")
    a("s_barrier")
    a("v_readfirstlane_b32 s61, v112")
    lslow = a.newlabel("slow"); lepi = a.newlabel("attn_epi")
    a("s_nop 3")
    a("s_cmp_lg_u32 s61, 0")
    a(f"s_cbranch_scc1 {lslow}")
    stamp(a)
    mfma(a, A_S[0], A_K[0], A_Q, None)
    it_pref = [("g", s) for s in range(NG_LATE, 32)] + [("o", s) for s in range(16)]
    NPF0, NPF1 = 36, 62
    a("s_nop 15")
    a.vm_reset()
    def extra_for(t):
        def f():
            if t in (0, 1): kv_dma(a, 1, t)
            if t in (2, 3): wj_issue(a, t - 2)
            if t in (4, 5): kv_dma(a, 2, t - 4)
            if t in (6, 7): kv_dma(a, 3, t - 6)
            if t == 12: wj_read(a, 8)
            if t == 13: wj_store(a)
            if t == 15: wj_cspart(a)
            if t == 16: wj_csread(a)
            if t == 17: wj_csstore(a)
            if t == 33: wready_poll(a); local_poll(a)
            if t == 36: local_check(a)
            if NPF0 <= t < NPF1:
                k0 = (t - NPF0) * len(it_pref) // (NPF1 - NPF0); k1 = (t + 1 - NPF0) * len(it_pref) // (NPF1 - NPF0)
                for k, s in it_pref[k0:k1]:
                    (ld_wg if k == "g" else ld_wo)(a, s)
            if SENT_D and t == 40: hh_prefill(a)
            if t == 62: x_residual(a)
        return f
    for t in range(64):
        p = t & 15
        if t in (0, 4, 8, 12, 16, 20, 24, 28, 32, 36, 40, 48, 56, 63): stamp(a, "attn")
        if t > 0 and t % 4 == 0:
            if t == 12:
                a("s_waitcnt vmcnt(8)")
            if t == 16:
                a("s_waitcnt lgkmcnt(0)")
            if t == 24:
                a("s_waitcnt vmcnt(0)")
            if t == 36:
                wready_check(a)
            else:
                a("s_barrier")
            if t == 24:
                wj_signal(a)
        if PRIO:
            a(f"s_setprio {3 - (t & 3)}")
        attn_tile(a, p, extra_for(t))
        if p == 15 and t < 63:
            a(f"v_add_u32 v{A_VK}, 8192, v{A_VK}")
            a(f"v_add_u32 v{A_VV}, 8192, v{A_VV}")
    if PRIO: a("s_setprio 0")
    a("s_nop 1")
    mfma(a, A_O2, A_V[1][1], A_P + 4, A_O2)
    a(f"s_branch {lepi}")
    a.label(lslow)
    for st in range(1, 4):
        kv_dma(a, st)
    wj_issue(a)
    wj_read(a, 0)
    a("s_waitcnt lgkmcnt(0)")
    wj_store(a)
    a("s_nop 15")
    wj_cspart(a)
    a("s_waitcnt vmcnt(0) lgkmcnt(0)")
    a("s_barrier")
    wj_csread(a)
    a("s_waitcnt lgkmcnt(0)")
    wj_csstore(a)
    a("s_waitcnt vmcnt(0)")
    a("s_barrier")
    wj_signal(a)
    NEG = [112, 128]
    for h in range(2):
        Qh = [A_Q, A_Q2][h]
        a(f"v_mov_b32 v{2+h}, 0xff800000")
        a(f"v_mov_b32 v90, v{A_VK}")
        a("s_mov_b32 s55, 0")
        l1 = a.newlabel("s1")
        a.label(l1)
        a(f"ds_read_b128 v[{A_K[0]}:{A_K[0]+3}], v90")
        a("s_waitcnt lgkmcnt(0)")
        mfma(a, A_S[0], A_K[0], Qh, None)
        a("s_nop 15")
        for r in range(8):
            a(f"v_max3_f32 v{2+h}, v{A_S[0]+2*r}, v{A_S[0]+2*r+1}, v{2+h}")
        a("v_add_u32 v90, 1024, v90")
        a("s_add_u32 s55, s55, 1")
        a("s_cmp_lt_u32 s55, 32")
        a(f"s_cbranch_scc1 {l1}")
        xhalf(a, 2 + h, 91, "v_max_f32")
    a.c("the other half of the keys belongs to wave w ^ 4: exchange the maxima")
    a(f"s_lshl_b32 s55, s{S_W}, 12")
    a(f"s_add_u32 s55, s55, {L_SCR}")
    a("v_lshlrev_b32 v90, 3, v0")
    a("v_add_u32 v91, s55, v90")
    a("ds_write_b64 v91, v[2:3]")
    a(f"s_xor_b32 s55, s{S_W}, 4")
    a("s_lshl_b32 s55, s55, 12")
    a(f"s_add_u32 s55, s55, {L_SCR}")
    a("v_add_u32 v91, s55, v90")
    a("s_waitcnt lgkmcnt(0)")
    a("s_barrier")
    a("ds_read_b64 v[90:91], v91")
    a("s_waitcnt lgkmcnt(0)")
    a("v_max_f32 v2, v2, v90")
    a("v_max_f32 v3, v3, v91")
    for h in range(2):
        for r in range(16):
            a(f"v_sub_f32 v{NEG[h]+r}, 0, v{2+h}")
    for h in range(2):
        Qh = [A_Q, A_Q2][h]; Oh = [A_O, A_O2][h]
        a(f"v_mov_b32 v90, v{A_VK}")
        a(f"v_mov_b32 v91, v{A_VV}")
        a("s_mov_b32 s55, 0")
        l2 = a.newlabel("s2")
        a.label(l2)
        a(f"ds_read_b128 v[{A_K[0]}:{A_K[0]+3}], v90")
        a("s_mov_b64 exec, s[70:71]")
        a(f"ds_read_b128 v[{A_V[0][0]}:{A_V[0][0]+3}], v91")
        a(f"ds_read_b128 v[{A_V[1][0]}:{A_V[1][0]+3}], v91 offset:512")
        a("s_mov_b64 exec, -1")
        a("s_waitcnt lgkmcnt(0)")
        mfma(a, A_S[0], A_K[0], Qh, NEG[h])
        a("s_nop 15")
        for r in range(16):
            a(f"v_exp_f32 v{A_S[0]+r}, v{A_S[0]+r}")
        a("s_nop 0")
        for k in range(8):
            a(f"v_cvt_pk_bf16_f32 v{A_P+k}, v{A_S[0]+2*k}, v{A_S[0]+2*k+1}")
        a("s_nop 1")
        mfma(a, Oh, A_V[0][0], A_P, Oh)
        mfma(a, Oh, A_V[1][0], A_P + 4, Oh)
        a("v_add_u32 v90, 1024, v90")
        a("v_add_u32 v91, 1024, v91")
        a("s_add_u32 s55, s55, 1")
        a("s_cmp_lt_u32 s55, 32")
        a(f"s_cbranch_scc1 {l2}")
    a("s_nop 15")
    a("s_barrier")
    if SENT_D: hh_prefill(a)
    wready_poll(a)
    local_poll(a)
    wready_check(a)
    local_check(a)
    sv = list(a.vmq)
    for k, s in it_pref:
        (ld_wg if k == "g" else ld_wo)(a, s)
    x_residual(a)
    a.vmq = sv
    a.label(lepi)
    stamp(a)
    a.c("wave kh finishes head 2p + kh: it hands the partial sums of the other head to wave w ^ 4")
    a(f"s_lshl_b32 s60, s{S_W}, 12")
    a(f"s_add_u32 s60, s60, {L_SCR}")
    a("v_add_u32 v90, s60, v1")
    a(f"s_xor_b32 s60, s{S_W}, 4")
    a("s_lshl_b32 s60, s60, 12")
    a(f"s_add_u32 s60, s60, {L_SCR}")
    a("v_add_u32 v91, s60, v1")
    a("s_nop 9")
    lk1 = a.newlabel("kh1"); lk2 = a.newlabel("khj")
    a(f"s_cmp_ge_u32 s{S_W}, 4")
    a(f"s_cbranch_scc1 {lk1}")
    for q in range(3):
        a(f"ds_write_b128 v90, v[{A_O2+4*q}:{A_O2+4*q+3}] offset:{q*1024}")
    a(f"s_branch {lk2}")
    a.label(lk1)
    for q in range(3):
        a(f"ds_write_b128 v90, v[{A_O+4*q}:{A_O+4*q+3}] offset:{q*1024}")
    for r in range(9):
        a(f"v_mov_b32 v{A_O+r}, v{A_O2+r}")
    a.label(lk2)
    a("s_waitcnt lgkmcnt(0)")
    a("s_barrier")
    for q in range(3):
        a(f"ds_read_b128 v[{24+4*q}:{27+4*q}], v91 offset:{q*1024}")
    a("s_waitcnt lgkmcnt(0)")
    for i in range(4):
        a(f"v_pk_add_f32 v[{A_O+2*i}:{A_O+2*i+1}], v[{A_O+2*i}:{A_O+2*i+1}], v[{24+2*i}:{25+2*i}]")
    a(f"v_add_f32 v{A_O+8}, v{A_O+8}, v32")
    a(f"v_rcp_f32 v90, v{A_O+8}")
    a("s_nop 0")
    for r in range(8):
        a(f"v_mul_f32 v{A_O+r}, v{A_O+r}, v90")
    for k in range(4):
        a(f"v_cvt_pk_bf16_f32 v{A_P+k}, v{A_O+2*k}, v{A_O+2*k+1}")
    a.c("OF + (tbk*32 + 8hq + 2p + kh)*1024")
    a(f"s_lshl_b32 s60, s{S_TBK}, 5")
    a(f"s_lshl_b32 s61, s{S_HQ}, 3")
    a("s_add_u32 s60, s60, s61")
    a(f"s_and_b32 s61, s{S_W}, 3")
    a("s_lshl_b32 s61, s61, 1")
    a("s_add_u32 s60, s60, s61")
    a(f"s_lshr_b32 s61, s{S_W}, 2")
    a("s_add_u32 s60, s60, s61")
    a("s_lshl_b32 s60, s60, 10")
    a(f"s_add_u32 s60, s60, {OF}")
    a("s_mov_b32 s54, s60")
    gstore(a, f"buffer_store_dwordx4 v[{A_P}:{A_P+3}], v1, {WS}, s60 offen", "o")
    if "o" in DOUBLE: a(f"buffer_store_dwordx4 v[{A_P}:{A_P+3}], v1, {WS}, s60 offen")

def eflag_base(a, dst):
    a(f"s_lshl_b32 s{dst}, s{S_G}, 11")
    a(f"s_add_u32 s{dst}, s{dst}, {FLG_E}")

def wg_publish(a, base, vt):
    stamp(a, "p3")
    a("s_waitcnt vmcnt(0)")
    stamp(a, "p3")
    a("s_barrier")
    l = a.newlabel("pub")
    a(f"s_cmp_lg_u32 s{S_W}, 0")
    a(f"s_cbranch_scc1 {l}")
    a(f"s_lshl_b32 s60, s{S_G}, 4")
    a(f"s_add_u32 s60, s60, s{S_J}")
    a("s_lshl_b32 s60, s60, 7")
    a(f"s_add_u32 s60, s60, {base}")
    set_flag(a, 60, vt, True)
    a.label(l)

def wg_wait(a, base, first_expr, n, vt, vo):
    l = a.newlabel("wt")
    a(f"s_cmp_lg_u32 s{S_W}, 0")
    a(f"s_cbranch_scc1 {l}")
    a(f"s_lshl_b32 s60, s{S_G}, 4")
    if first_expr is not None:
        first_expr()
    a("s_lshl_b32 s60, s60, 7")
    a(f"s_add_u32 s60, s60, {base}")
    if POLL_DELAY: a(f"s_sleep {POLL_DELAY}")
    poll_flags(a, 60, n, vt, vo, sleep=POLL_SLEEP)
    a.label(l)
    a("s_barrier")

def wave_publish(a, base, vt):
    a(f"s_lshl_b32 s60, s{S_G}, 4")
    a(f"s_add_u32 s60, s60, s{S_J}")
    a("s_lshl_b32 s60, s60, 3")
    a(f"s_add_u32 s60, s60, s{S_W}")
    a("s_lshl_b32 s60, s60, 7")
    a(f"s_add_u32 s60, s60, {base}")
    stamp(a, "p3")
    a("s_waitcnt vmcnt(0)")
    stamp(a, "p3")
    set_flag(a, 60, vt)

L3_ST = 131072 + 4096
def mfma16(a, d, A, B, c):
    cs = "0" if c is None else f"v[{c}:{c+3}]"
    a(f"v_mfma_f32_16x16x32_bf16 v[{d}:{d+3}], v[{A}:{A+3}], v[{B}:{B+3}], {cs}")

def p3(a):
    wg_publish(a, FLG_B, 28)
    stamp(a)
    def fe():
        a(f"s_lshl_b32 s61, s{S_TQ}, 2")
        a("s_add_u32 s60, s60, s61")
    wg_wait(a, FLG_B, fe, 4, 28, 30)
    stamp(a)
    a.c("o fragments -> LDS [32 heads][1024] over key tiles 0..31 (dead since the last barriers of the attention loop)")
    a(f"s_lshl_b32 s60, s{S_W}, 12")
    a("s_mov_b32 m0, s60")
    a(f"s_lshl_b32 s61, s{S_TBK}, 15")
    a("s_add_u32 s61, s61, s60")
    a(f"s_add_u32 s61, s61, {OF}")
    for e in range(4):
        a(f"buffer_load_dwordx4 v1, {WS}, s61 offen offset:{e*1024} sc1 lds")
    a.c("operand address: (g>>1)*1024 + ((g&1)*32 + (lane&15))*16")
    a("v_lshrrev_b32 v30, 5, v0")
    a("v_lshlrev_b32 v30, 10, v30")
    a("v_bfe_u32 v31, v0, 4, 1")
    a("v_lshlrev_b32 v31, 5, v31")
    a("v_and_b32 v29, 15, v0")
    a("v_add_u32 v31, v31, v29")
    a("v_lshl_add_u32 v30, v31, 4, v30")
    a("v_and_b32 v2, 31, v0")
    stamp(a, "p3")
    a("s_waitcnt vmcnt(0)")
    stamp(a, "p3")
    a("s_barrier")
    stamp(a, "p3")
    BBF = [[32 + 8 * k, 36 + 8 * k] for k in range(3)]
    a.lgq = []
    def rd(s):
        for th2 in range(2):
            r = BBF[s % 3][th2]
            a.lg(f"ds_read_b128 v[{r}:{r+3}], v30 offset:{s*2048 + th2*256}", s)
    rd(0); rd(1)
    for s in range(16):
        if s + 2 < 16: rd(s + 2)
        a.lg_wait(s)
        for th2 in range(2):
            mfma16(a, 8 + 4 * th2, WO_R + 4 * s, BBF[s % 3][th2], None if s == 0 else 8 + 4 * th2)
    stamp(a, "p3")
    a("s_mov_b32 s61, 0xffff0000")
    for i in range(4):
        a(f"v_lshlrev_b32 v{32+2*i}, 16, v{XRES+i}")
        a(f"v_and_b32 v{33+2*i}, s61, v{XRES+i}")
    a(f"s_lshl_b32 s60, s{S_TBK}, 5")
    a(f"s_lshl_b32 s61, s{S_HQ}, 3")
    a("s_add_u32 s60, s60, s61")
    a(f"s_add_u32 s60, s60, s{S_W}")
    a("s_lshl_b32 s60, s60, 10")
    a(f"s_add_u32 s60, s60, {HF}")
    a("s_nop 1")
    for i in range(4):
        a(f"v_pk_add_f32 v[{8+2*i}:{9+2*i}], v[{8+2*i}:{9+2*i}], v[{32+2*i}:{33+2*i}]")
    for i in range(4):
        a(f"v_cvt_pk_bf16_f32 v{40+i}, v{8+2*i}, v{9+2*i}")
    a("s_nop 1")
    a("v_permlane16_swap_b32 v40, v42")
    a("v_permlane16_swap_b32 v41, v43")
    a("s_nop 1")
    a("s_mov_b32 s55, s60")
    gstore(a, f"buffer_store_dwordx4 v[40:43], v1, {WS}, s60 offen", "h")
    if "h" in LOCAL_DATA:
        for r in range(4): a(f"v_mov_b32 v{12+r}, v{40+r}")
    if "h" in DOUBLE: a(f"buffer_store_dwordx4 v[40:43], v1, {WS}, s60 offen")
    stamp(a, "p3")
    a("s_mov_b32 s61, 0x3f803f80")
    a("v_mov_b32 v44, 0")
    a("v_mov_b32 v45, 0")
    for i in range(4):
        a(f"v_dot2_f32_bf16 v44, v{40+i}, s61, v44")
        a(f"v_dot2_f32_bf16 v45, v{40+i}, v{40+i}, v45")
    a("s_nop 2")
    xhalf(a, 44, 46, "v_add_f32")
    xhalf(a, 45, 46, "v_add_f32")
    a(f"s_lshl_b32 s60, s{S_W}, 8")
    a(f"s_add_u32 s60, s60, {L3_ST}")
    a("v_lshlrev_b32 v46, 3, v2")
    a("v_add_u32 v47, s60, v46")
    a("s_mov_b32 exec_hi, 0")
    a("ds_write_b64 v47, v[44:45]")
    a("s_mov_b64 exec, -1")
    a("s_waitcnt lgkmcnt(0)")
    wg_publish(a, FLG_C, 28)
    a.vm_reset()
    for s in range(NG_LATE):
        ld_wg(a, s)
    stamp(a)

L4_ST = 131072
L4_CS = 131072 + 1024
WD_R = 128
def ld_wd(a, u):
    s, ct = u >> 1, u & 1
    off = ct * 114688 + (s >> 2) * 4096
    a(f"s_add_u32 s75, s76, {off}")
    a.vm(f"buffer_load_dwordx4 v[{WD_R+4*u}:{WD_R+4*u+3}], v1, {WS}, s75 offen offset:{(s&3)*1024} sc1", ("WD", u))

def p4(a):
    a(f"s_and_b32 s77, s{S_J}, 7")
    a("s_mul_i32 s76, s77, 229376")
    a(f"s_mul_i32 s60, s{S_W}, 14336")
    a("s_add_u32 s76, s76, s60")
    a(f"s_add_u32 s76, s76, {WDF}")
    stamp(a, "p4")
    wg_wait(a, FLG_C, None, 16, 28, 5)
    stamp(a); stamp(a, "p4")
    a(f"s_lshl_b32 s62, s{S_G}, 17")
    a(f"s_lshl_b32 s63, s{S_W}, 10")
    a("s_add_u32 s62, s62, s63")
    a(f"s_add_u32 s62, s62, {HF}")
    def dma(st):
        for tb in range(4):
            off = tb * 32768 + st * 8192
            a(f"s_add_u32 m0, s63, {off}")
            a(f"s_add_u32 s64, s62, {off}")
            a.vm(f"buffer_load_dwordx4 v1, {WS}, s64 offen sc1 lds", ("H", st))
    a.vm_reset()
    dma(0); dma(1)
    if "o" in LOCAL_DATA:
        clean_store(a, A_P, 54, "o")
    lhelp = a.newlabel("help"); ljoin = a.newlabel("p4join")
    a(f"s_cmp_eq_u32 s{S_W}, 7")
    a(f"s_cbranch_scc1 {lhelp}")
    sv = list(a.vmq)
    a("v_add_u32 v2, 65536, v1")
    BB = [[32 + 4 * t for t in range(4)], [48 + 4 * t for t in range(4)]]
    def breads(s):
        for tb in range(4):
            base = "v1" if tb < 2 else "v2"
            a.lg(f"ds_read_b128 v[{BB[s&1][tb]}:{BB[s&1][tb]+3}], {base} offset:{(tb&1)*32768 + s*1024}", s)
    a.lgq = []
    a.vm_wait(("H", 0))
    stamp(a, "p4")
    a("s_barrier")
    stamp(a); stamp(a, "p4")
    breads(0)
    for s in range(32):
        if s + 1 < 32:
            if (s + 1) % 8 == 0:
                a.vm_wait(("H", (s + 1) // 8))
                a("s_barrier")
            breads(s + 1)
        if s == 24:
            a("v_and_b32 v3, 31, v0")
            a("v_lshlrev_b32 v3, 3, v3")
            a(f"v_add_u32 v3, {L4_ST}, v3")
            for tb in range(4):
                a.lg(f"ds_read_b64 v[{4+2*tb}:{5+2*tb}], v3 offset:{tb*256}", "st")
            a("v_lshrrev_b32 v12, 5, v0")
            a("v_lshlrev_b32 v12, 4, v12")
            a(f"s_lshl_b32 s60, s{S_W}, 7")
            a(f"s_add_u32 s60, s60, {L4_CS}")
            a("v_add_u32 v12, s60, v12")
            for q in range(4):
                a.lg(f"ds_read_b128 v[{16+4*q}:{19+4*q}], v12 offset:{q*32}", "st")
        if PRIO2 and s % 2 == 0: a(f"s_setprio {3 - ((s & 7) >> 1)}")
        a.lg_wait(s)
        for tb in range(4):
            mfma(a, 64 + 16 * tb, WG_R + 4 * s, BB[s & 1][tb], None if s == 0 else 64 + 16 * tb)
        if s == 0: dma(2)
        if s == 4: dma(3)
        if s == 20: clean_store(a, 12, 55, "h")
        if s >= 1 and s - 1 < 28:
            ld_wd(a, s - 1)
    stamp(a); stamp(a, "p4")
    if PRIO2: a("s_setprio 0")
    a("s_waitcnt lgkmcnt(0)")
    a("s_nop 7")
    a("s_mul_i32 s60, s74, 1024")
    a(f"s_lshl_b32 s61, s{S_G}, 2")
    a("s_mul_i32 s61, s61, 114688")
    a("s_add_u32 s60, s60, s61")
    a(f"s_add_u32 s60, s60, {HHF}")
    for tb in range(4):
        A = 64 + 16 * tb
        st = 4 + 2 * tb
        for i in range(8):
            a(f"v_pk_fma_f32 v[{A+2*i}:{A+2*i+1}], v[{16+2*i}:{17+2*i}], v[{st}:{st+1}], v[{A+2*i}:{A+2*i+1}] op_sel_hi:[1,0,1]")
        for i in range(4):
            a(f"v_pk_mul_f32 v[{A+8+2*i}:{A+9+2*i}], v[{A+8+2*i}:{A+9+2*i}], v[{st}:{st+1}] op_sel:[0,1] op_sel_hi:[1,1]")
        for r in range(8):
            a(f"v_max_f32 v{A+r}, 0, v{A+r}")
        for i in range(4):
            a(f"v_pk_mul_f32 v[{A+2*i}:{A+2*i+1}], v[{A+2*i}:{A+2*i+1}], v[{A+8+2*i}:{A+9+2*i}]")
        for i in range(4):
            a(f"v_cvt_pk_bf16_f32 v{36+4*(tb&1)+i}, v{A+2*i}, v{A+2*i+1}")
        gstore(a, f"buffer_store_dwordx4 v[{36+4*(tb&1)}:{39+4*(tb&1)}], v1, {WS}, s60 offen", "g")
        if "g" in DOUBLE: a(f"buffer_store_dwordx4 v[{36+4*(tb&1)}:{39+4*(tb&1)}], v1, {WS}, s60 offen")
        if tb < 3:
            a("s_add_u32 s60, s60, 114688")
    stamp(a, "p4")
    a(f"s_branch {ljoin}")
    a.label(lhelp)
    a.vmq = list(sv)
    dma(2); dma(3)
    a("v_lshlrev_b32 v3, 2, v0")
    a(f"s_mul_i32 s60, s{S_J}, 896")
    a(f"s_add_u32 s60, s60, {CSP}")
    for kq in range(4):
        for i in range(4):
            a.vm(f"buffer_load_dword v{32+4*kq+i}, v3, {WS}, s60 offen offset:{i*256} sc1", "cs")
        if kq < 3:
            a("s_add_u32 s60, s60, 14336")
    a.vm_wait(("H", 0))
    a("s_barrier")
    a.c("finish this workgroup's row statistics (partials of the 8 waves are in LDS) and publish them")
    a("v_and_b32 v2, 31, v0")
    a("v_lshlrev_b32 v64, 3, v2")
    a(f"v_add_u32 v65, {L3_ST}, v64")
    for ww in range(8):
        a(f"ds_read_b64 v[{66+2*ww}:{67+2*ww}], v65 offset:{ww*256}")
    a("s_waitcnt lgkmcnt(0)")
    for ww in range(1, 8):
        a(f"v_pk_add_f32 v[66:67], v[66:67], v[{66+2*ww}:{67+2*ww}]")
    a("v_lshlrev_b32 v64, 5, v2")
    a(f"s_lshl_b32 s60, s{S_TBK}, 10")
    a(f"s_lshl_b32 s61, s{S_HQ}, 3")
    a("s_add_u32 s60, s60, s61")
    a(f"s_add_u32 s60, s60, {HST}")
    a("s_mov_b32 exec_hi, 0")
    a.vm(f"buffer_store_dwordx2 v[66:67], v64, {WS}, s60 offen sc1", "hst")
    a("s_mov_b64 exec, -1")
    a.vm_wait_all()
    eflag_base(a, 60)
    a(f"s_lshl_b32 s61, s{S_J}, 7")
    a("s_add_u32 s60, s60, s61")
    set_flag(a, 60, 28)
    a("s_barrier")
    a("s_barrier")
    clean_store(a, 12, 55, "h")
    eflag_base(a, 60)
    poll_flags(a, 60, 16, 28, 2)
    a("v_lshlrev_b32 v2, 5, v0")
    a(f"s_lshl_b32 s60, s{S_G}, 12")
    a(f"s_add_u32 s60, s60, {HST}")
    for i in range(2):
        a(f"buffer_load_dwordx4 v[{8+8*i}:{11+8*i}], v2, {WS}, s60 offen offset:{i*2048} sc1")
        a(f"buffer_load_dwordx4 v[{12+8*i}:{15+8*i}], v2, {WS}, s60 offen offset:{i*2048+16} sc1")
    a.vm_wait_all()
    for i in range(2):
        b = 8 + 8 * i
        a(f"v_add_f32 v{b}, v{b}, v{b+2}")
        a(f"v_add_f32 v{b+4}, v{b+4}, v{b+6}")
        a(f"v_add_f32 v{b+1}, v{b+1}, v{b+3}")
        a(f"v_add_f32 v{b+5}, v{b+5}, v{b+7}")
        a(f"v_add_f32 v{b}, v{b}, v{b+4}")
        a(f"v_add_f32 v{b+1}, v{b+1}, v{b+5}")
        a(f"v_mul_f32 v{b}, {f32hex(1.0/512)}, v{b}")
        a(f"v_mul_f32 v{b+2}, v{b}, v{b}")
        a(f"v_mov_b32 v{b+3}, {f32hex(1.0/512)}")
        a(f"v_fma_f32 v{b+1}, v{b+1}, v{b+3}, -v{b+2}")
        a(f"v_max_f32 v{b+1}, 0, v{b+1}")
        a(f"v_add_f32 v{b+1}, {f32hex(1e-5)}, v{b+1}")
        a(f"v_rcp_f32 v{b+1}, v{b+1}")
        a(f"v_sub_f32 v{b}, 0, v{b}")
    a("v_lshlrev_b32 v4, 3, v0")
    a(f"v_add_u32 v4, {L4_ST}, v4")
    a("ds_write_b64 v4, v[8:9]")
    a("ds_write_b64 v4, v[16:17] offset:512")
    for i in range(4):
        a(f"v_add_f32 v{32+i}, v{32+i}, v{36+i}")
        a(f"v_add_f32 v{40+i}, v{40+i}, v{44+i}")
        a(f"v_add_f32 v{32+i}, v{32+i}, v{40+i}")
    a(f"v_add_u32 v3, {L4_CS}, v3")
    for i in range(3):
        a(f"ds_write_b32 v3, v{32+i} offset:{i*256}")
    a("s_mov_b32 exec_hi, 0")
    a("ds_write_b32 v3, v35 offset:768")
    a("s_mov_b64 exec, -1")
    a("s_waitcnt lgkmcnt(0)")
    a("s_barrier")
    for u in range(28):
        ld_wd(a, u)
    a.label(ljoin)
    if not SENT_D:
        wg_publish(a, FLG_D, 28)
    a.vm_reset()
    stamp(a)

def p5(a):
    mk_srd(a, SRD_A, P_OUT, 2048 * 1024)
    a(f"s_lshr_b32 s72, s{S_J}, 3")
    a(f"s_lshl_b32 s61, s{S_G}, 2")
    a("s_lshl_b32 s62, s72, 1")
    a("s_add_u32 s61, s61, s62")
    a(f"s_mul_i32 s62, s{S_W}, 14336")
    a("s_mul_i32 s64, s61, 114688")
    a("s_add_u32 s64, s64, s62")
    a(f"s_add_u32 s64, s64, {HHF}")
    a("s_add_u32 s65, s64, 114688")
    a("v_lshrrev_b32 v2, 3, v0")
    a(f"s_lshl_b32 s62, s{S_W}, 3")
    a("v_add_u32 v2, s62, v2")
    a("v_and_b32 v3, 7, v0")
    a("v_lshrrev_b32 v4, 5, v2")
    a("v_lshlrev_b32 v4, 5, v4")
    a("v_lshrrev_b32 v5, 1, v3")
    a("v_add_u32 v4, v4, v5")
    a("v_lshlrev_b32 v4, 10, v4")
    a("v_and_b32 v5, 1, v3")
    a("v_lshlrev_b32 v5, 5, v5")
    a("v_and_b32 v6, 31, v2")
    a("v_add_u32 v5, v5, v6")
    a("v_lshl_add_u32 v4, v5, 4, v4")
    a("s_lshl_b32 s62, s61, 5")
    a("s_lshl_b32 s63, s77, 2")
    a("s_add_u32 s62, s62, s63")
    a("s_lshl_b32 s62, s62, 10")
    a(f"s_add_u32 s62, s62, {HF}")
    a(f"buffer_load_dwordx4 v[8:11], v4, {WS}, s62 offen sc1")
    stamp(a, "p4")
    if not SENT_D:
        wg_wait(a, FLG_D, None, 16, 28, 5)
    stamp(a); stamp(a, "p4")
    a("s_mov_b32 s62, s64"); a("s_mov_b32 s63, s65")
    retries = []
    BREG = [16, 24, 32, 40, 48, 56, 240, 248]
    ACC = 64
    a.vm_reset()
    def ldB(s):
        if s and (s & 3) == 0:
            a("s_add_u32 s64, s64, 4096"); a("s_add_u32 s65, s65, 4096")
        r = BREG[s % 8]
        a.vm(f"buffer_load_dwordx4 v[{r}:{r+3}], v1, {WS}, s64 offen offset:{(s&3)*1024} sc1", ("B", s))
        a.vm(f"buffer_load_dwordx4 v[{r+4}:{r+7}], v1, {WS}, s65 offen offset:{(s&3)*1024} sc1", ("B", s))
    for s in range(8):
        ldB(s)
    def check(r):
        a(f"v_max3_u32 v12, v{r}, v{r+1}, v{r+2}")
        a(f"v_max3_u32 v13, v{r+3}, v{r+4}, v{r+5}")
        a(f"v_max3_u32 v12, v{r+6}, v{r+7}, v12")
        a("v_max_u32 v12, v12, v13")
        a("v_cmp_eq_u32 vcc, -1, v12")
    stamp(a, "p5")
    for s in range(14):
        a.vm_wait(("B", s))
        if s in (0, 7): stamp(a, "p5")
        if SENT_D:
            lr = a.newlabel("rt"); lb = a.newlabel("rb")
            check(BREG[s % 8])
            a("s_nop 1")
            a(f"s_cbranch_vccnz {lr}")
            a.label(lb)
            retries.append((s, lr, lb))
        for ct in range(2):
            for tb in range(2):
                d = ACC + (ct * 2 + tb) * 16
                mfma(a, d, WD_R + (2 * s + ct) * 4, BREG[s % 8] + 4 * tb, None if s == 0 else d)
        if s + 8 < 14:
            ldB(s + 8)
    stamp(a); stamp(a, "p5")
    if PRIO2: a("s_setprio 0")
    a("v_and_b32 v12, 31, v0")
    a("v_lshrrev_b32 v13, 5, v0")
    a("v_lshlrev_b32 v13, 1, v13")
    a("v_and_b32 v14, 7, v12")
    a("v_xor_b32 v13, v13, v14")
    a("v_lshlrev_b32 v12, 8, v12")
    a(f"s_lshl_b32 s62, s{S_W}, 14")
    a("v_add_u32 v12, s62, v12")
    for k, (rg, q) in enumerate([(0, 0), (0, 1), (1, 0), (1, 1)]):
        a(f"v_xor_b32 v{16+k}, {rg*4+q}, v13")
        a(f"v_lshl_add_u32 v{16+k}, v{16+k}, 4, v12")
    if SENT_D:
        lskip = a.newlabel("rskip")
        a(f"s_branch {lskip}")
        for (s_, lr, lb) in retries:
            r = BREG[s_ % 8]
            a.label(lr)
            a(f"s_mov_b32 s79, {SPIN}")
            lp = a.newlabel("rl")
            a.label(lp)
            a("s_sleep 2")
            a(f"s_add_u32 s60, s62, {(s_ >> 2) * 4096}")
            a(f"s_add_u32 s61, s63, {(s_ >> 2) * 4096}")
            a(f"buffer_load_dwordx4 v[{r}:{r+3}], v1, {WS}, s60 offen offset:{(s_&3)*1024} sc1")
            a(f"buffer_load_dwordx4 v[{r+4}:{r+7}], v1, {WS}, s61 offen offset:{(s_&3)*1024} sc1")
            a("s_waitcnt vmcnt(0)")
            check(r)
            a("s_nop 4")
            a(f"s_cbranch_vccz {lb}")
            a("s_sub_u32 s79, s79, 1")
            a("s_cmp_lg_u32 s79, 0")
            a(f"s_cbranch_scc1 {lp}")
            a(f"s_branch {lb}")
        a.label(lskip)
        a("s_barrier")
    a("s_nop 3")
    for ct in range(2):
        for tb in range(2):
            d = ACC + (ct * 2 + tb) * 16
            for k, (rg, q) in enumerate([(0, 0), (0, 1), (1, 0), (1, 1)]):
                r = d + 8 * rg + 4 * q
                a(f"ds_write_b128 v{16+k}, v[{r}:{r+3}] offset:{ct*128 + tb*8192}")
    stamp(a, "p5")
    a("s_waitcnt lgkmcnt(0)")
    stamp(a, "p5")
    a("s_barrier")
    stamp(a, "p5")
    a("v_and_b32 v12, 7, v2")
    a("v_lshlrev_b32 v13, 1, v3")
    a("v_xor_b32 v14, v13, v12")
    a("v_or_b32 v13, 1, v13")
    a("v_xor_b32 v15, v13, v12")
    a("v_lshlrev_b32 v14, 4, v14")
    a("v_lshlrev_b32 v15, 4, v15")
    a("v_lshl_add_u32 v14, v2, 8, v14")
    a("v_lshl_add_u32 v15, v2, 8, v15")
    a("v_add_u32 v12, 65536, v14")
    a("v_add_u32 v13, 65536, v15")
    for src in range(8):
        b0, b1 = ("v14", "v15") if src < 4 else ("v12", "v13")
        a(f"ds_read_b128 v[{16+8*src}:{19+8*src}], {b0} offset:{(src&3)*16384}")
        a(f"ds_read_b128 v[{20+8*src}:{23+8*src}], {b1} offset:{(src&3)*16384}")
        if src == 3: a("s_waitcnt lgkmcnt(4)")
    a("s_mov_b32 s62, 0xffff0000")
    for i in range(4):
        a(f"v_lshlrev_b32 v{80+2*i}, 16, v{8+i}")
        a(f"v_and_b32 v{81+2*i}, s62, v{8+i}")
    a("s_waitcnt lgkmcnt(0)")
    stamp(a, "p5")
    for src in range(1, 8):
        for i in range(4):
            a(f"v_pk_add_f32 v[{16+2*i}:{17+2*i}], v[{16+2*i}:{17+2*i}], v[{16+8*src+2*i}:{17+8*src+2*i}]")
    for i in range(4):
        a(f"v_pk_add_f32 v[{16+2*i}:{17+2*i}], v[{16+2*i}:{17+2*i}], v[{80+2*i}:{81+2*i}]")
    for i in range(4):
        a(f"v_cvt_pk_bf16_f32 v{8+i}, v{16+2*i}, v{17+2*i}")
    a("v_lshlrev_b32 v4, 10, v2")
    a("v_lshl_add_u32 v4, v3, 4, v4")
    a(f"s_lshl_b32 s62, s{S_G}, 17")
    a("s_lshl_b32 s63, s72, 16")
    a("s_add_u32 s62, s62, s63")
    a("s_lshl_b32 s63, s77, 7")
    a("s_add_u32 s62, s62, s63")
    a(f"buffer_store_dwordx4 v[8:11], v4, s[{SRD_A}:{SRD_A+3}], s62 offen {OUT_FLAGS}")

def build():
    a = Asm()
    label = G.NAME + "_kernel"
    a.raw(G.HEADER.rstrip("\n"))
    a.raw("; @launch grid=(256,1,1) block=(512,1,1) lds=163840")
    a.raw('.amdgcn_target "amdgcn-amd-amdhsa--gfx950"')
    a.raw(".text")
    a.raw(f".globl {label}")
    a.raw(".p2align 8")
    a.raw(f".type {label},@function")
    a.raw(f"{label}:")
    if PROFILE:
        a("s_memtime s[98:99]")
        a("s_memrealtime s[100:101]")
        for k in range(16): a(f"s_mov_b32 s{80+k}, 0")
    G.WS_USED = WS_USED
    G.prologue(a, "L_fin")
    a(f"s_add_u32 s60, s{P_WS}, {NONCE}")
    a(f"s_addc_u32 s61, s{P_WS+1}, 0")
    a(f"s_load_dword s{S_NONCE}, s[60:61], 0")
    phase0(a)
    attention(a)
    p3(a)
    p4(a)
    p5(a)
    lnn = a.newlabel("nn")
    a("s_cmp_lg_u32 s2, 0")
    a(f"s_cbranch_scc1 {lnn}")
    a(f"s_cmp_lg_u32 s{S_W}, 0")
    a(f"s_cbranch_scc1 {lnn}")
    a(f"s_mov_b32 s62, {NONCE}")
    set_flag(a, 62, 28)
    a.label(lnn)
    if PROFILE:
        a(f"s_cmp_lg_u32 s{S_W}, {PROF_WAVE}")
        a("s_cbranch_scc1 L_fin")
        a("s_waitcnt vmcnt(0) lgkmcnt(0)")
        a("s_memtime s[96:97]")
        a("s_memrealtime s[54:55]")
        a("s_waitcnt lgkmcnt(0)")
        for k in range(16):
            a(f"s_sub_u32 s{80+k}, s{80+k}, s98")
            a(f"v_mov_b32 v{k}, s{80+k}")
        a("s_sub_u32 s96, s96, s98")
        a("s_sub_u32 s54, s54, s100")
        a("v_mov_b32 v16, s96")
        a("v_mov_b32 v17, s54")
        a("v_mov_b32 v18, s100")
        a("v_mov_b32 v19, 0")
        a("s_mul_i32 s54, s2, 128")
        a(f"s_add_u32 s54, s54, {PROF}")
        a("v_mov_b32 v20, 0")
        a("s_mov_b64 exec, 1")
        for q in range(5):
            a(f"buffer_store_dwordx4 v[{4*q}:{4*q+3}], v20, {WS}, s54 offen offset:{16*q}")
    a.label("L_fin")
    a("s_endpgm")
    a.raw('.section .rodata,"a"')
    a.raw(".p2align 6")
    G.descriptor(a, label, 256)
    return a.text()

if __name__ == "__main__":
    open(sys.argv[1], "w").write(build())
```

```python
import os, sys
from asmlib import Asm
import gen as G
from gen import (S_W, S_G, S_J, S_TBK, S_HQ, S_TQ, SRD_WS, SRD_A, SRD_B, SRD_C, SRD_D, mk_srd, f32hex,
                 dpp_sum16, xhalf, xrow16, OF, HF, KF, VF, HST, CSP, WOF, WDF, WGF, HHF, QSCALE,
                 P_X, P_WQ, P_WK, P_WV, P_WO, P_WG, P_WU, P_WD, P_OUT, P_DBG, P_WS)
from kernels2 import mfma
WS = f"s[{SRD_WS}:{SRD_WS+3}]"
FLG = 0x1410000
FLG_A, FLG_W, FLG_E, FLG_X = FLG, FLG + 64*128, FLG + 320*128, FLG + 576*128
FLG_B, FLG_C, FLG_D = FLG + 1024*128, FLG + 3072*128, FLG + 5120*128
NONCE = FLG + 7168*128
S_NONCE = 56
PROF = 0x1400000
WS_USED = 0x1500000
SPIN = 400000
S_LOCAL = 69
LOCAL_OK = os.environ.get('LOCAL_OK', '1') == '1'
LOCAL_DATA = os.environ.get('LOCAL_DATA', '')
PRIO2 = os.environ.get('PRIO2', '1') == '1'
DOUBLE = os.environ.get('DOUBLE', '')
ZROWS = os.environ.get('ZROWS', '1') == '1'
OUT_FLAGS = os.environ.get('OUT_FLAGS', '')
POLL_DELAY = int(os.environ.get('POLL_DELAY', '0'))
SENT_D = os.environ.get('SENT_D', '0') == '1'
FULL_LINE = os.environ.get('FULL_LINE', '1') == '1'
POLL_SLEEP = int(os.environ.get('POLL_SLEEP', '2'))
PROFILE = G.PROFILE
PROF_WAVE = G.PROF_WAVE
PRIO = os.environ.get("PRIO", "1") == "1"
NST = [0]
STAMPSET = os.environ.get("STAMPSET", "main")
def stamp(a, kind="main"):
    if not PROFILE: return
    if kind != STAMPSET: return
    k = NST[0]; NST[0] += 1
    assert k < 16
    a("s_waitcnt lgkmcnt(0)")
    a("s_memtime s[96:97]")
    a("s_waitcnt lgkmcnt(0)")
    a(f"s_mov_b32 s{80+k}, s96")

def spin_begin(a, name):
    l = a.newlabel(name)
    a(f"s_mov_b32 s79, {SPIN}")
    a.label(l)
    return l
def spin_end(a, l, done, sleep=1):
    a("s_nop 4")
    a(f"s_cbranch_vccz {done}")
    a(f"s_sleep {sleep}")
    a("s_sub_u32 s79, s79, 1")
    a("s_cmp_lg_u32 s79, 0")
    a(f"s_cbranch_scc1 {l}")
    a.label(done)

def gstore(a, instr, kind="f"):
    if not LOCAL_OK or (kind != "f" and kind not in LOCAL_DATA):
        a(instr + " sc1"); return
    lf = a.newlabel("gl"); le = a.newlabel("ge")
    a(f"s_cmp_eq_u32 s{S_LOCAL}, 1")
    a(f"s_cbranch_scc1 {lf}")
    a(instr + " sc1")
    a(f"s_branch {le}")
    a.label(lf)
    a(instr)
    a.label(le)

def clean_store(a, reg, sreg, kind):
    if kind not in LOCAL_DATA: return
    l = a.newlabel("cl")
    a(f"s_cmp_eq_u32 s{S_LOCAL}, 1")
    a(f"s_cbranch_scc0 {l}")
    a(f"buffer_store_dwordx4 v[{reg}:{reg+3}], v1, {WS}, s{sreg} offen sc1")
    a.label(l)

def poll_flags(a, soff_reg, nlanes, vtmp, voff, sleep=1, shift=7):
    done = a.newlabel("pd")
    a(f"v_lshlrev_b32 v{voff}, {shift}, v0")
    if nlanes < 64:
        a(f"s_mov_b64 exec, {hex((1 << nlanes) - 1)}")
    l = spin_begin(a, "pl")
    a(f"buffer_load_dword v{vtmp}, v{voff}, {WS}, s{soff_reg} offen sc1")
    a("s_waitcnt vmcnt(0)")
    a(f"v_cmp_ne_u32 vcc, s{S_NONCE}, v{vtmp}")
    spin_end(a, l, done, sleep)
    if nlanes < 64:
        a("s_mov_b64 exec, -1")

def set_flag(a, soff_reg, vtmp, fast_ok=False):
    a(f"v_mov_b32 v{vtmp}, s{S_NONCE}")
    if FULL_LINE:
        a(f"v_lshlrev_b32 v{vtmp+1}, 2, v0")
        a("s_mov_b32 exec_hi, 0")
    else:
        a(f"v_mov_b32 v{vtmp+1}, 0")
        a("s_mov_b64 exec, 1")
    if fast_ok:
        gstore(a, f"buffer_store_dword v{vtmp}, v{vtmp+1}, {WS}, s{soff_reg} offen")
    else:
        a(f"buffer_store_dword v{vtmp}, v{vtmp+1}, {WS}, s{soff_reg} offen sc1")
    a("s_mov_b64 exec, -1")

L_XN, L_WQ, L_WK, L_WV = 0, 32768, 131072, 147456
QSAVE = 244

def phase0(a):
    mk_srd(a, SRD_A, P_X, 2048 * 1024)
    mk_srd(a, SRD_B, P_WQ, 512 * 1024)
    a(f"s_lshl_b32 s54, s{S_TBK}, 5")
    a(f"s_lshl_b32 s55, s{S_W}, 2")
    a("s_add_u32 s54, s54, s55")
    a("v_lshrrev_b32 v2, 4, v0")
    a("v_and_b32 v3, 15, v0")
    a("v_add_u32 v4, s54, v2")
    a("v_lshlrev_b32 v4, 10, v4")
    a("v_lshl_add_u32 v4, v3, 4, v4")
    for i in range(4):
        a(f"buffer_load_dwordx4 v[{16+4*i}:{19+4*i}], v4, s[{SRD_A}:{SRD_A+3}], 0 offen offset:{256*i}")
    a("v_lshlrev_b32 v6, 4, v0")
    lskip = a.newlabel("nokv"); lj = a.newlabel("kvj")
    a(f"s_cmp_lg_u32 s{S_HQ}, 0")
    a(f"s_cbranch_scc1 {lskip}")
    mk_srd(a, SRD_C, P_WK, 16384)
    mk_srd(a, SRD_D, P_WV, 16384)
    a(f"s_lshl_b32 s60, s{S_W}, 11")
    for i in range(2):
        a(f"s_add_u32 s61, s60, {i*1024}")
        a(f"s_add_u32 m0, s61, {L_WK}")
        a("s_nop 0")
        a(f"buffer_load_dwordx4 v6, s[{SRD_C}:{SRD_C+3}], s61 offen lds")
        a(f"s_add_u32 m0, s61, {L_WV}")
        a("s_nop 0")
        a(f"buffer_load_dwordx4 v6, s[{SRD_D}:{SRD_D+3}], s61 offen lds")
    a.label(lskip)
    a("v_lshlrev_b32 v5, 2, v2")
    a("v_xor_b32 v5, v3, v5")
    a("v_lshlrev_b32 v5, 4, v5")
    a("v_lshl_add_u32 v5, v2, 10, v5")
    a(f"s_lshl_b32 s55, s{S_HQ}, 8")
    a("v_add_u32 v5, s55, v5")
    a(f"s_lshl_b32 s62, s{S_W}, 12")
    a(f"s_add_u32 s62, s62, {L_WQ}")
    a(f"s_lshl_b32 s63, s{S_W}, 14")
    def wq_dma(q):
        for i in range(4):
            a(f"s_add_u32 m0, s62, {q * 32768 + i * 1024}")
            a(f"s_add_u32 s64, s63, {(q * 128 + 4 * i) * 1024}")
            a(f"buffer_load_dwordx4 v5, s[{SRD_B}:{SRD_B+3}], s64 offen lds")
    wq_dma(0)
    stamp(a, "p0")
    a("s_waitcnt vmcnt(4)")
    stamp(a); stamp(a, "p0")
    b = Asm()
    if True:
        b("s_mov_b32 s60, 0x3f803f80")
        for r in range(4): b(f"v_mov_b32 v{32+r}, 0")
        for i in range(16):
            b(f"v_dot2_f32_bf16 v{32 + (i & 1)}, v{16+i}, s60, v{32 + (i & 1)}")
            b(f"v_dot2_f32_bf16 v{34 + (i & 1)}, v{16+i}, v{16+i}, v{34 + (i & 1)}")
        b("s_mov_b32 s61, 0xffff0000")
        for i in range(4):
            b(f"v_lshlrev_b32 v{64+2*i}, 16, v{16+i}")
            b(f"v_and_b32 v{65+2*i}, s61, v{16+i}")
        b("v_add_f32 v32, v32, v33")
        b("v_add_f32 v34, v34, v35")
        for n, sh in enumerate((8, 4, 2, 1)):
            for i in range(4 + 3*n, 7 + 3*n):
                b(f"v_lshlrev_b32 v{64+2*i}, 16, v{16+i}")
                b(f"v_and_b32 v{65+2*i}, s61, v{16+i}")
            b(f"v_add_f32_dpp v32, v32, v32 row_ror:{sh} row_mask:0xf bank_mask:0xf")
            b(f"v_add_f32_dpp v34, v34, v34 row_ror:{sh} row_mask:0xf bank_mask:0xf")
        b(f"v_mul_f32 v32, {f32hex(1.0/512)}, v32")
        b("v_mul_f32 v33, v32, v32")
        b(f"v_mov_b32 v35, {f32hex(1.0/512)}")
        b("v_fma_f32 v34, v34, v35, -v33")
        b("v_max_f32 v34, 0, v34")
        b(f"v_add_f32 v34, {f32hex(1e-5)}, v34")
        b("v_rsq_f32 v38, v34")
        b.c("XN write addr")
        b(f"s_lshl_b32 s55, s{S_W}, 2")
        b("v_add_u32 v7, s55, v2")
        b("v_mov_b32 v39, v38")
        b("v_mul_f32 v36, v32, v38")
        b("v_sub_f32 v36, 0, v36")
        b("v_mov_b32 v37, v36")
        for i in range(16):
            b(f"v_pk_fma_f32 v[{64+2*i}:{65+2*i}], v[{64+2*i}:{65+2*i}], v[38:39], v[36:37]")
        b("v_and_b32 v8, 7, v3")
        b("v_xor_b32 v7, v7, v8")
        b("v_lshlrev_b32 v7, 4, v7")
        b("v_lshrrev_b32 v8, 1, v3")
        b("v_lshl_add_u32 v7, v8, 10, v7")
        b("v_and_b32 v8, 1, v3")
        b("v_lshl_add_u32 v7, v8, 9, v7")
        for i in range(4):
            for e in range(4):
                b(f"v_cvt_pk_bf16_f32 v{16+4*i+e}, v{64+8*i+2*e}, v{65+8*i+2*e}")
            b(f"ds_write_b128 v7, v[{16+4*i}:{19+4*i}] offset:{L_XN + i*8192}")

    a.L.extend(b.L)
    wq_dma(1); wq_dma(2)
    a("v_lshrrev_b32 v8, 5, v0")
    a("v_and_b32 v9, 31, v0")
    for m in range(4):
        a(f"v_add_u32 v10, {2*m}, v8")
        a("v_xor_b32 v10, v9, v10")
        a("v_lshlrev_b32 v10, 4, v10")
        a(f"v_lshl_add_u32 v{40+m}, v8, 9, v10")
    a("v_lshrrev_b32 v10, 2, v3")
    a("v_and_b32 v11, 3, v3")
    a("v_lshl_add_u32 v12, v8, 3, v10")
    a.c("wq fragment rows 0..15 = head 2p, rows 16..31 = head 2p+1 ; chunk = 4p + 2blk + (cg>>1), swizzled by r4<<2")
    a(f"s_and_b32 s55, s{S_W}, 3")
    a("s_lshl_b32 s55, s55, 2")
    a("v_lshrrev_b32 v13, 1, v11")
    a("v_add_u32 v13, s55, v13")
    a("v_and_b32 v14, 1, v2")
    a("v_lshl_add_u32 v13, v14, 1, v13")
    a("v_lshlrev_b32 v14, 2, v10")
    a("v_xor_b32 v13, v13, v14")
    a("v_lshlrev_b32 v13, 4, v13")
    a("v_lshl_add_u32 v13, v12, 8, v13")
    a("v_and_b32 v14, 1, v11")
    a("v_lshl_add_u32 v13, v14, 3, v13")
    a(f"s_lshr_b32 s55, s{S_W}, 2")
    a("s_lshl_b32 s55, s55, 12")
    a(f"s_add_u32 s55, s55, {L_WQ}")
    a("v_add_u32 v44, s55, v13")
    stamp(a, "p0")
    a("s_waitcnt lgkmcnt(0)")
    a.c("launch tag: a fixed-point-free bijection of the tag the previous launch left (any value works)")
    a(f"s_mul_i32 s{S_NONCE}, s{S_NONCE}, 0x9E3779B1")
    a(f"s_add_u32 s{S_NONCE}, s{S_NONCE}, 0x7F4A7C15")
    a("s_barrier")
    stamp(a); stamp(a, "p0")
    lx = a.newlabel("xid")
    a(f"s_cmp_lg_u32 s{S_W}, 3")
    a(f"s_cbranch_scc1 {lx}")
    a.c("tell the other members of the group which XCD this workgroup runs on")
    a("s_getreg_b32 s55, hwreg(HW_REG_XCC_ID, 0, 4)")
    a(f"v_mov_b32 v50, s{S_NONCE}")
    a("v_mov_b32 v51, s55")
    a("v_lshlrev_b32 v52, 3, v0")
    a(f"s_lshl_b32 s55, s{S_G}, 4")
    a(f"s_add_u32 s55, s55, s{S_J}")
    a("s_lshl_b32 s55, s55, 7")
    a(f"s_add_u32 s55, s55, {FLG_X}")
    a("s_mov_b64 exec, 0xffff")
    a(f"buffer_store_dwordx2 v[50:51], v52, {WS}, s55 offen sc1")
    a("s_mov_b64 exec, -1")
    a.label(lx)
    lkvd = a.newlabel("kvdone"); lkv1 = a.newlabel("kv1"); lkv0 = a.newlabel("kv0")
    a(f"s_cmp_eq_u32 s{S_HQ}, 0")
    a(f"s_cbranch_scc1 {lkv0}")
    wq_dma(3)
    a("s_waitcnt vmcnt(12) lgkmcnt(0)")
    lkv2 = a.newlabel("kv2")
    a(f"s_branch {lkv2}")
    a.label(lkv0)
    a.c("tr addr: blk0 -> WV, blk1 -> WK ; row (64w + 16e + 8khalf + 4rd + r4)*32 + cg*8")
    a("v_lshlrev_b32 v13, 5, v12")
    a("v_lshl_add_u32 v13, v11, 3, v13")
    a(f"s_lshl_b32 s55, s{S_W}, 11")
    a("v_add_u32 v13, s55, v13")
    a("v_and_b32 v14, 1, v2")
    a(f"v_mov_b32 v15, {L_WV}")
    a(f"v_mov_b32 v45, {L_WK}")
    a("v_cmp_eq_u32 vcc, 1, v14")
    a("s_nop 1")
    a("v_cndmask_b32 v15, v15, v45, vcc")
    a("v_add_u32 v13, v13, v15")
    a.c("xn frags for k-steps 4w..4w+3 : s&3 = e")
    a(f"s_lshl_b32 s55, s{S_W}, 12")
    for e in range(4):
        a(f"v_add_u32 v{46+e}, s55, v{40+e}")
    for e in range(4):
        a(f"ds_read_b64_tr_b16 v[{64+4*e}:{65+4*e}], v13 offset:{e*512}")
        a(f"ds_read_b64_tr_b16 v[{66+4*e}:{67+4*e}], v13 offset:{e*512+128}")
        a(f"ds_read_b128 v[{80+4*e}:{83+4*e}], v{46+e} offset:{L_XN + e*1024}")
    for e in range(4):
        a(f"s_waitcnt lgkmcnt({9-3*e})")
        mfma(a, 96, 64 + 4 * e, 80 + 4 * e, None if e == 0 else 96)
    a.c("RED: q=0,1 -> WK + w*2048 + q*1024 ; q=2,3 -> WV + w*2048 + (q-2)*1024  (own, already consumed rows)")
    a(f"s_lshl_b32 s55, s{S_W}, 11")
    a(f"s_add_u32 s55, s55, {L_WK}")
    a("v_add_u32 v14, s55, v6")
    a(f"v_add_u32 v15, {L_WV - L_WK}, v14")
    a("s_nop 10")
    a("ds_write_b128 v14, v[96:99]")
    a("ds_write_b128 v14, v[100:103] offset:1024")
    a("ds_write_b128 v15, v[104:107]")
    a("ds_write_b128 v15, v[108:111] offset:1024")
    a.label(lkv1)
    stamp(a, "p0")
    a("s_waitcnt vmcnt(8) lgkmcnt(0)")
    a.label(lkv2)
    stamp(a, "p0")
    a("s_barrier")
    stamp(a, "p0")
    a(f"s_cmp_lg_u32 s{S_HQ}, 0")
    a(f"s_cbranch_scc1 {lkvd}")
    lv = a.newlabel("kv_v")
    a(f"s_cmp_eq_u32 s{S_W}, 1")
    a(f"s_cbranch_scc1 {lv}")
    a(f"s_cmp_lg_u32 s{S_W}, 0")
    a(f"s_cbranch_scc1 {lkvd}")
    def red8(base):
        a(f"v_add_u32 v14, {base}, v6")
        for ww in range(8):
            a(f"ds_read_b128 v[{64+8*ww}:{67+8*ww}], v14 offset:{ww*2048}")
            a(f"ds_read_b128 v[{68+8*ww}:{71+8*ww}], v14 offset:{ww*2048+1024}")
            if ww == 3: a("s_waitcnt lgkmcnt(4)")
        a("s_waitcnt lgkmcnt(0)")
        for ww in range(1, 8):
            for i in range(4):
                a(f"v_pk_add_f32 v[{64+2*i}:{65+2*i}], v[{64+2*i}:{65+2*i}], v[{64+8*ww+2*i}:{65+8*ww+2*i}]")
        for r in range(4):
            a(f"v_cvt_pk_bf16_f32 v{76+r}, v{64+2*r}, v{65+2*r}")
    red8(L_WV)
    a(f"s_lshl_b32 s55, s{S_TBK}, 10")
    a(f"s_add_u32 s55, s55, {KF}")
    a(f"buffer_store_dwordx4 v[76:79], v6, {WS}, s55 offen sc1")
    a("v_mov_b32 v80, 0")
    for r in range(4):
        a(f"v_dot2_f32_bf16 v80, v{76+r}, v{76+r}, v80")
    a("s_nop 2")
    xhalf(a, 80, 81, "v_add_f32")
    dpp_sum16(a, 80, "v_max_f32")
    xrow16(a, 80, 81, "v_max_f32")
    a(f"v_mov_b32 v{QSAVE+9}, v80")
    a(f"s_branch {lkvd}")
    a.label(lv)
    red8(L_WK)
    a("v_lshlrev_b32 v80, 5, v9")
    a("v_lshl_add_u32 v80, v8, 3, v80")
    a(f"v_add_u32 v80, {L_WK}, v80")
    a("ds_write_b64 v80, v[76:77]")
    a("ds_write_b64 v80, v[78:79] offset:16")
    a("v_lshl_add_u32 v81, v8, 2, v10")
    a("v_lshlrev_b32 v81, 5, v81")
    a("v_and_b32 v82, 1, v11")
    a("v_lshlrev_b32 v82, 1, v82")
    a("v_lshrrev_b32 v83, 1, v11")
    a("v_add_u32 v82, v82, v83")
    a("v_lshl_add_u32 v81, v82, 3, v81")
    a(f"v_add_u32 v81, {L_WK}, v81")
    a("s_waitcnt lgkmcnt(0)")
    for c2 in range(2):
        for rd in range(2):
            d = 84 + 4 * c2 + 2 * rd
            a(f"ds_read_b64_tr_b16 v[{d}:{d+1}], v81 offset:{(16*c2 + 8*rd) * 32}")
    a("v_lshl_add_u32 v82, v8, 4, v3")
    a("v_lshlrev_b32 v82, 4, v82")
    a(f"s_lshl_b32 s55, s{S_TBK}, 10")
    a(f"s_add_u32 s55, s55, {VF}")
    a("s_waitcnt lgkmcnt(0)")
    a("s_mov_b32 exec_lo, 0x0000ffff")
    a("s_mov_b32 exec_hi, 0x0000ffff")
    a(f"buffer_store_dwordx4 v[84:87], v82, {WS}, s55 offen sc1")
    a(f"buffer_store_dwordx4 v[88:91], v82, {WS}, s55 offen offset:512 sc1")
    a("s_mov_b64 exec, -1")
    a.label(lkvd)
    a("v_add_u32 v45, 1024, v44")
    stamp(a, "p0")
    def publish_kv():
        lnf = a.newlabel("noflag")
        a(f"s_cmp_lg_u32 s{S_HQ}, 0")
        a(f"s_cbranch_scc1 {lnf}")
        a(f"s_cmp_lg_u32 s{S_W}, 0")
        a(f"s_cbranch_scc1 {lnf}")
        a(f"s_lshl_b32 s55, s{S_TBK}, 7")
        a(f"s_add_u32 s55, s55, {FLG_A}")
        a("v_lshlrev_b32 v80, 3, v0")
        a(f"v_mov_b32 v{QSAVE+8}, s{S_NONCE}")
        a("s_mov_b64 exec, 0xffff")
        a(f"buffer_store_dwordx2 v[{QSAVE+8}:{QSAVE+9}], v80, {WS}, s55 offen sc1")
        a("s_mov_b64 exec, -1")
        a.label(lnf)
    ACC = 96
    NB = 3; PD = 2
    AB = [112 + 8 * i for i in range(NB)]; BB = [116 + 8 * i for i in range(NB)]
    a.c("x fragment addresses: k-step s = 2u + kh, swizzle index s&3 = (2(u&1) + kh)")
    a(f"s_lshr_b32 s55, s{S_W}, 2")
    a("s_cmp_eq_u32 s55, 0")
    a("s_cselect_b64 vcc, -1, 0")
    a("s_lshl_b32 s55, s55, 10")
    a("v_cndmask_b32 v46, v41, v40, vcc")
    a("v_cndmask_b32 v47, v43, v42, vcc")
    a("v_add_u32 v46, s55, v46")
    a("v_add_u32 v47, s55, v47")
    def issue(u):
        A = AB[u % NB]; B = BB[u % NB]
        a.lg(f"ds_read_b64_tr_b16 v[{A}:{A+1}], v44", u)
        a.lg(f"ds_read_b64_tr_b16 v[{A+2}:{A+3}], v45", u)
        a.lg(f"ds_read_b128 v[{B}:{B+3}], v{46 + (u & 1)} offset:{L_XN + u*2048}", u)
        a("v_add_u32 v44, 8192, v44"); a("v_add_u32 v45, 8192, v45")
    def quarter_wait(q):
        lk = a.newlabel("qk"); le = a.newlabel("qe")
        a(f"s_cmp_eq_u32 s{S_HQ}, 0")
        a(f"s_cbranch_scc1 {lk}")
        a(f"s_waitcnt vmcnt({4 * (3 - q)})")
        a(f"s_branch {le}")
        a.label(lk)
        if q != 2: a("s_waitcnt vmcnt(0)")
        a.label(le)
        a("s_barrier")
    a.lgq = []
    for u in range(PD): issue(u)
    for u in range(16):
        if u in (1, 4, 8, 9, 12, 15) and PROFILE and STAMPSET == "q":
            stamp(a, "q"); a.lgq = []
        if u + PD < 16:
            if u + PD == 4:
                quarter_wait(1)
                stamp(a, "p0"); a.lgq = [] if PROFILE and STAMPSET == "p0" else a.lgq
                publish_kv()
                l3 = a.newlabel("q3b")
                a(f"s_cmp_lg_u32 s{S_HQ}, 0")
                a(f"s_cbranch_scc1 {l3}")
                wq_dma(3)
                a.label(l3)
            if u + PD == 8: quarter_wait(2)
            if u + PD == 12: quarter_wait(3)
            issue(u + PD)
        a.lg_wait(u)
        mfma(a, ACC, AB[u % NB], BB[u % NB], None if u == 0 else ACC)
    stamp(a, "q")
    a.c("add the other half of the k range (wave w ^ 4); exchange through wq slot 0")
    a(f"s_lshl_b32 s55, s{S_W}, 12")
    a(f"s_add_u32 s55, s55, {L_WQ}")
    a("v_add_u32 v14, s55, v6")
    a(f"s_xor_b32 s55, s{S_W}, 4")
    a("s_lshl_b32 s55, s55, 12")
    a(f"s_add_u32 s55, s55, {L_WQ}")
    a("v_add_u32 v15, s55, v6")
    a("s_nop 9")
    for q in range(4):
        a(f"ds_write_b128 v14, v[{ACC+4*q}:{ACC+4*q+3}] offset:{q*1024}")
    a("s_waitcnt lgkmcnt(0)")
    a("s_barrier")
    stamp(a, "q")
    for q in range(4):
        a(f"ds_read_b128 v[{64+4*q}:{67+4*q}], v15 offset:{q*1024}")
    a(f"v_mov_b32 v36, {f32hex(QSCALE)}")
    a("v_mov_b32 v37, v36")
    a("s_waitcnt lgkmcnt(0)")
    for i in range(8):
        a(f"v_pk_add_f32 v[{64+2*i}:{65+2*i}], v[{64+2*i}:{65+2*i}], v[{ACC+2*i}:{ACC+2*i+1}]")
    for i in range(8):
        a(f"v_pk_mul_f32 v[{64+2*i}:{65+2*i}], v[{64+2*i}:{65+2*i}], v[36:37]")
    for r in range(8):
        a(f"v_cvt_pk_bf16_f32 v{QSAVE+r}, v{64+2*r}, v{65+2*r}")
    stamp(a); stamp(a, "p0"); stamp(a, "q")
    a("s_barrier")
    stamp(a, "p0")

L_SCR = 131072
S_JOB = 78
V_WJS, V_WJT, V_WJC = 140, 141, 142
SRD_J1, SRD_J2 = 20, 36
def wj_setup(a):
    a("v_lshrrev_b32 v143, 4, v0")
    a("v_and_b32 v144, 15, v0")
    a("v_lshrrev_b32 v145, 5, v0")
    a("v_lshrrev_b32 v146, 2, v144")
    a("v_and_b32 v147, 3, v144")
    a("v_and_b32 v148, 1, v147")
    a("v_lshlrev_b32 v148, 1, v148")
    a("v_lshrrev_b32 v149, 1, v147")
    a("v_add_u32 v148, v148, v149")
    a("v_lshlrev_b32 v148, 3, v148")
    a("v_and_b32 v149, 1, v143")
    a("v_lshl_add_u32 v150, v145, 3, v146")
    a(f"s_lshl_b32 s57, s{S_W}, 12")
    a(f"s_add_u32 s57, s57, {L_SCR}")
    a(f"s_mov_b32 s{S_JOB}, 0")
    lo = a.newlabel("wjo"); ld = a.newlabel("wjd")
    a("s_cmp_ge_u32 s2, 112")
    a(f"s_cbranch_scc1 {lo}")
    a(f"s_mov_b32 s{S_JOB}, 1")
    a("s_lshr_b32 s60, s2, 2")
    a("s_and_b32 s61, s2, 3")
    a("s_lshl_b32 s62, s61, 3")
    a(f"s_add_u32 s62, s62, s{S_W}")
    mk_srd(a, SRD_J1, P_WG, 512 * 3584)
    mk_srd(a, SRD_J2, P_WU, 512 * 3584)
    a("v_lshrrev_b32 v151, 3, v0")
    a("s_mov_b32 s63, 3584")
    a("v_mul_lo_u32 v151, v151, s63")
    a("v_and_b32 v152, 7, v0")
    a(f"v_lshl_add_u32 v{V_WJS}, v152, 4, v151")
    a("s_mul_i32 s58, s62, 57344")
    a("s_lshl_b32 s63, s60, 7")
    a("s_add_u32 s58, s58, s63")
    a("v_lshlrev_b32 v151, 7, v150")
    a("v_lshl_add_u32 v151, v149, 11, v151")
    a("v_add_u32 v151, v151, v148")
    a(f"v_add_u32 v{V_WJT}, s57, v151")
    a("s_lshl_b32 s59, s60, 7")
    a("s_add_u32 s59, s59, s62")
    a("s_lshl_b32 s59, s59, 10")
    a(f"s_add_u32 s59, s59, {WGF}")
    a("s_mul_i32 s72, s61, 112")
    a("s_lshl_b32 s63, s60, 2")
    a("s_add_u32 s72, s72, s63")
    a("s_lshl_b32 s72, s72, 7")
    a(f"s_add_u32 s72, s72, {CSP}")
    a("v_lshlrev_b32 v151, 2, v0")
    a(f"v_add_u32 v{V_WJC}, s57, v151")
    a.c("warm the L2 with the 16 source rows (one 128-byte line per row and matrix)")
    a("v_and_b32 v151, 15, v0")
    a("s_mov_b32 s63, 3584")
    a("v_mul_lo_u32 v151, v151, s63")
    a(f"buffer_load_dword v153, v151, s[{SRD_J1}:{SRD_J1+3}], s58 offen")
    a(f"buffer_load_dword v154, v151, s[{SRD_J2}:{SRD_J2+3}], s58 offen")
    a(f"s_branch {ld}")
    a.label(lo)
    a("s_cmp_ge_u32 s2, 184")
    a(f"s_cbranch_scc1 {ld}")
    a("s_sub_u32 s60, s2, 112")
    a("s_lshl_b32 s60, s60, 3")
    a(f"s_add_u32 s60, s60, s{S_W}")
    lwd = a.newlabel("wjwd")
    a("s_cmp_ge_u32 s60, 128")
    a(f"s_cbranch_scc1 {lwd}")
    a(f"s_mov_b32 s{S_JOB}, 3")
    mk_srd(a, SRD_J1, P_WO, 512 * 1024)
    a("s_lshr_b32 s61, s60, 3")
    a("s_and_b32 s62, s60, 7")
    a("v_lshrrev_b32 v151, 3, v0")
    a("v_lshlrev_b32 v151, 10, v151")
    a("v_and_b32 v152, 7, v0")
    a(f"v_lshl_add_u32 v{V_WJS}, v152, 4, v151")
    a("s_lshl_b32 s58, s61, 15")
    a("s_lshl_b32 s60, s62, 7")
    a("s_add_u32 s58, s58, s60")
    a("s_mov_b32 s69, 8192")
    a("v_lshl_add_u32 v151, v143, 3, v146")
    a("v_lshlrev_b32 v151, 7, v151")
    a("v_lshl_add_u32 v151, v147, 3, v151")
    a(f"v_add_u32 v{V_WJT}, s57, v151")
    a("s_lshl_b32 s59, s62, 6")
    a("s_add_u32 s59, s59, s61")
    a("s_lshl_b32 s59, s59, 10")
    a(f"s_add_u32 s59, s59, {WOF}")
    a("s_mov_b32 s72, 16384")
    a("v_and_b32 v151, 31, v0")
    a("v_lshlrev_b32 v151, 10, v151")
    a(f"buffer_load_dword v153, v151, s[{SRD_J1}:{SRD_J1+3}], s58 offen")
    a(f"s_branch {ld}")
    a.label(lwd)
    a(f"s_mov_b32 s{S_JOB}, 2")
    a("s_sub_u32 s60, s60, 128")
    mk_srd(a, SRD_J1, P_WD, 1792 * 1024)
    a("s_lshr_b32 s61, s60, 2")
    a("s_and_b32 s62, s60, 3")
    a("v_lshlrev_b32 v151, 10, v143")
    a(f"v_lshl_add_u32 v{V_WJS}, v144, 4, v151")
    a("s_lshl_b32 s58, s61, 14")
    a("s_lshl_b32 s60, s62, 8")
    a("s_add_u32 s58, s58, s60")
    a("s_mov_b32 s69, 4096")
    a("v_lshlrev_b32 v151, 8, v150")
    a("v_lshl_add_u32 v151, v149, 5, v151")
    a("v_add_u32 v151, v151, v148")
    a(f"v_add_u32 v{V_WJT}, s57, v151")
    a("s_lshl_b32 s59, s62, 2")
    a("s_mul_i32 s59, s59, 112")
    a("s_add_u32 s59, s59, s61")
    a("s_lshl_b32 s59, s59, 10")
    a(f"s_add_u32 s59, s59, {WDF}")
    a(f"s_mov_b32 s72, {112*1024}")
    a("v_and_b32 v151, 31, v0")
    a("v_lshrrev_b32 v152, 1, v151")
    a("v_lshlrev_b32 v152, 10, v152")
    a("v_and_b32 v151, 1, v151")
    a("v_lshl_add_u32 v151, v151, 7, v152")
    a(f"buffer_load_dword v153, v151, s[{SRD_J1}:{SRD_J1+3}], s58 offen")
    a.label(ld)

def wj_branch(a, g_code, o_code):
    lo = a.newlabel("jo"); le = a.newlabel("je")
    a(f"s_cmp_eq_u32 s{S_JOB}, 1")
    a(f"s_cbranch_scc0 {lo}")
    if g_code: g_code()
    a(f"s_branch {le}")
    a.label(lo)
    if o_code:
        a(f"s_cmp_eq_u32 s{S_JOB}, 0")
        a(f"s_cbranch_scc1 {le}")
        o_code()
    a.label(le)

def wj_issue(a, part=None):
    def g():
        for i in ([0, 1] if part is None else [part]):
            a(f"s_add_u32 m0, s57, {i*1024}")
            a(f"s_add_u32 s63, s58, {i*8*3584}")
            a(f"buffer_load_dwordx4 v{V_WJS}, s[{SRD_J1}:{SRD_J1+3}], s63 offen lds")
            a(f"s_add_u32 m0, s57, {2048 + i*1024}")
            a("s_nop 0")
            a(f"buffer_load_dwordx4 v{V_WJS}, s[{SRD_J2}:{SRD_J2+3}], s63 offen lds")
    def o():
        for i in (range(4) if part is None else [2 * part, 2 * part + 1]):
            a(f"s_add_u32 m0, s57, {i*1024}")
            a(f"s_mul_i32 s63, s69, {i}")
            a(f"s_add_u32 s63, s63, s58")
            a(f"buffer_load_dwordx4 v{V_WJS}, s[{SRD_J1}:{SRD_J1+3}], s63 offen lds")
    wj_branch(a, g, o)

def wj_read(a, n_younger):
    def rd(st, rdoff):
        def f():
            a(f"s_waitcnt vmcnt({n_younger})")
            for q in range(4):
                d = 112 + 4 * q
                a(f"ds_read_b64_tr_b16 v[{d}:{d+1}], v{V_WJT} offset:{q*st}")
                a(f"ds_read_b64_tr_b16 v[{d+2}:{d+3}], v{V_WJT} offset:{q*st + rdoff}")
        return f
    l2 = a.newlabel("jr2"); le = a.newlabel("jre")
    a(f"s_cmp_eq_u32 s{S_JOB}, 0")
    a(f"s_cbranch_scc1 {le}")
    a(f"s_cmp_eq_u32 s{S_JOB}, 2")
    a(f"s_cbranch_scc1 {l2}")
    rd(32, 512)()
    a(f"s_branch {le}")
    a.label(l2)
    rd(64, 1024)()
    a.label(le)

def wj_store(a):
    def g():
        for r in range(4):
            a(f"v_mov_b32 v{128+r}, 0x3f803f80")
        for q in range(4):
            d = 112 + 4 * q
            a(f"s_add_u32 s63, s59, {q*32768}")
            a(f"buffer_store_dwordx4 v[{d}:{d+3}], v1, {WS}, s63 offen sc1")
        for q in range(4):
            mfma(a, 160 + 16 * q, 128, 112 + 4 * q, None)
    def o():
        a("s_mov_b32 s63, s59")
        for q in range(4):
            d = 112 + 4 * q
            a(f"buffer_store_dwordx4 v[{d}:{d+3}], v1, {WS}, s63 offen sc1")
            if q < 3: a("s_add_u32 s63, s63, s72")
    wj_branch(a, g, o)

def wj_cspart(a):
    def g():
        a("s_mov_b32 exec_hi, 0")
        for q in range(4):
            a(f"ds_write_b32 v{V_WJC}, v{160 + 16 * q} offset:{q*128}")
        a("s_mov_b64 exec, -1")
    wj_branch(a, g, None)

def wj_csread(a):
    def g():
        l = a.newlabel("csr")
        a(f"s_cmp_ge_u32 s{S_W}, 2")
        a(f"s_cbranch_scc1 {l}")
        a(f"s_lshl_b32 s63, s{S_W}, 8")
        a("v_lshlrev_b32 v132, 2, v0")
        a("v_add_u32 v132, s63, v132")
        a(f"v_add_u32 v133, {L_SCR}, v132")
        for ww in range(8):
            a(f"ds_read_b32 v{112+ww}, v133 offset:{ww*4096}")
        a.label(l)
    wj_branch(a, g, None)

def wj_csstore(a):
    def g():
        l = a.newlabel("css")
        a(f"s_cmp_ge_u32 s{S_W}, 2")
        a(f"s_cbranch_scc1 {l}")
        for ww in range(1, 8):
            a(f"v_add_f32 v112, v112, v{112+ww}")
        a(f"buffer_store_dword v112, v132, {WS}, s72 offen sc1")
        a.label(l)
    wj_branch(a, g, None)

def wj_signal(a):
    l = a.newlabel("wsig")
    a(f"s_cmp_eq_u32 s{S_JOB}, 0")
    a(f"s_cbranch_scc1 {l}")
    a(f"s_cmp_lg_u32 s{S_W}, 0")
    a(f"s_cbranch_scc1 {l}")
    a("s_lshl_b32 s63, s2, 7")
    a(f"s_add_u32 s63, s63, {FLG_W}")
    set_flag(a, 63, 112)
    a.label(l)

A_Q, A_O, A_S, A_P = 4, 8, [24, 40], 56
A_K = [64, 68]
A_V = [[72, 76], [80, 84]]
A_VK, A_VV = 88, 89
A_NEG = 96
A_Q2, A_O2 = 92, 96
WO_R = 112
NG_LATE = 12
WG_R = 128
XR = 60
BOUND2 = 1600.0

def attn_tile(a, p, extra=None):
    h = p & 1; i = p >> 1
    S = A_S[h]; Q = [A_Q, A_Q2]; O = [A_O, A_O2]
    def ex(r): a(f"v_exp_f32 v{S+r}, v{S+r}")
    def cv(k): a(f"v_cvt_pk_bf16_f32 v{A_P+k}, v{S+2*k}, v{S+2*k+1}")
    a("s_waitcnt lgkmcnt(0)")
    if h == 0:
        mfma(a, A_S[1], A_K[i & 1], Q[1], None)
    else:
        mfma(a, A_S[0], A_K[(i + 1) & 1], Q[0], None)
        a(f"ds_read_b128 v[{A_K[i & 1]}:{A_K[i & 1]+3}], v{A_VK} offset:{(i+2)*1024}")
    ex(0); ex(1); ex(2); ex(3)
    cv(0)
    if h == 0:
        mfma(a, O[1], A_V[1][(i - 1) & 1], A_P + 4, O[1])
        nb = (i + 1) & 1
        a("s_mov_b64 exec, s[70:71]")
        a(f"ds_read_b128 v[{A_V[0][nb]}:{A_V[0][nb]+3}], v{A_VV} offset:{(i+1)*1024}")
        a(f"ds_read_b128 v[{A_V[1][nb]}:{A_V[1][nb]+3}], v{A_VV} offset:{(i+1)*1024 + 512}")
        a("s_mov_b64 exec, -1")
    else:
        mfma(a, O[0], A_V[1][i & 1], A_P + 4, O[0])
    if extra: extra()
    ex(4); cv(1); ex(5); ex(6); ex(7); cv(2); ex(8); cv(3)
    ex(9); ex(10); ex(11)
    mfma(a, O[h], A_V[0][i & 1], A_P, O[h])
    cv(4); ex(12); cv(5); ex(13); ex(14); ex(15); cv(6)
    cv(7)

def wave_consts(a):
    a.c("WOF + (8cq + w)*16384 -> s68")
    a(f"s_lshl_b32 s68, s{S_HQ}, 3")
    a(f"s_add_u32 s68, s68, s{S_W}")
    a("s_lshl_b32 s68, s68, 14")
    a(f"s_add_u32 s68, s68, {WOF}")
    a.c("WGF + fb*32768 -> s73, fb = 7j + w (waves 0..6; wave 7 uses fb of wave 6, harmless duplicate)")
    a(f"s_min_u32 s73, s{S_W}, 6")
    a(f"s_mul_i32 s74, s{S_J}, 7")
    a("s_add_u32 s74, s74, s73")
    a("s_lshl_b32 s73, s74, 15")
    a(f"s_add_u32 s73, s73, {WGF}")

def ld_wg(a, s, tag="WG"):
    a(f"s_add_u32 s75, s73, {(s >> 2) * 4096}")
    a.vm(f"buffer_load_dwordx4 v[{WG_R+4*s}:{WG_R+4*s+3}], v1, {WS}, s75 offen offset:{(s&3)*1024} sc1", (tag, s))
def ld_wo(a, s):
    a(f"s_add_u32 s75, s68, {(s >> 2) * 4096}")
    a.vm(f"buffer_load_dwordx4 v[{WO_R+4*s}:{WO_R+4*s+3}], v1, {WS}, s75 offen offset:{(s&3)*1024} sc1", ("WO", s))

def prefetch_lists():
    it2 = [("g", s) for s in range(7, 32)]
    it3 = [("o", s) for s in range(16)]
    return it2, it3

def kv_dma(a, st, part=None):
    if part in (None, 0):
        a(f"s_add_u32 m0, s60, {st*8192}")
        a(f"s_add_u32 s62, s60, {st*8192 + KF}")
        a(f"buffer_load_dwordx4 v1, {WS}, s62 offen sc1 lds")
        a(f"buffer_load_dwordx4 v1, {WS}, s62 offen offset:1024 sc1 lds")
    if part in (None, 1):
        a(f"s_add_u32 m0, s60, {st*8192 + 65536}")
        a(f"s_add_u32 s62, s60, {st*8192 + VF}")
        a(f"buffer_load_dwordx4 v1, {WS}, s62 offen sc1 lds")
        a(f"buffer_load_dwordx4 v1, {WS}, s62 offen offset:1024 sc1 lds")

def wready_poll(a):
    l = a.newlabel("wrq")
    a(f"s_cmp_lg_u32 s{S_W}, 0")
    a(f"s_cbranch_scc1 {l}")
    a("v_lshlrev_b32 v2, 7, v0")
    a("v_add_u32 v3, 128, v0")
    a("v_min_u32 v3, 183, v3")
    a("v_lshlrev_b32 v3, 7, v3")
    a(f"s_mov_b32 s63, {FLG_W}")
    a(f"buffer_load_dword v112, v2, {WS}, s63 offen sc1")
    a(f"s_mov_b32 s63, {FLG_W + 64*128}")
    a(f"buffer_load_dword v113, v2, {WS}, s63 offen sc1")
    a(f"s_mov_b32 s63, {FLG_W}")
    a(f"buffer_load_dword v114, v3, {WS}, s63 offen sc1")
    a.label(l)
def wready_check(a):
    l = a.newlabel("wrc"); dn = a.newlabel("wrd")
    a(f"s_cmp_lg_u32 s{S_W}, 0")
    a(f"s_cbranch_scc1 {l}")
    def test():
        a("s_waitcnt vmcnt(0)")
        a(f"v_cmp_ne_u32 vcc, s{S_NONCE}, v112")
        a(f"v_cmp_ne_u32 s[62:63], s{S_NONCE}, v113")
        a("s_nop 1")
        a("s_or_b64 s[62:63], s[62:63], vcc")
        a(f"v_cmp_ne_u32 vcc, s{S_NONCE}, v114")
        a("s_nop 4")
        a("s_or_b64 vcc, vcc, s[62:63]")
    test()
    a(f"s_cbranch_vccz {dn}")
    l2 = spin_begin(a, "wrp")
    a(f"s_mov_b32 s63, {FLG_W}")
    a(f"buffer_load_dword v112, v2, {WS}, s63 offen sc1")
    a(f"buffer_load_dword v114, v3, {WS}, s63 offen sc1")
    a(f"s_mov_b32 s63, {FLG_W + 64*128}")
    a(f"buffer_load_dword v113, v2, {WS}, s63 offen sc1")
    test()
    spin_end(a, l2, dn, 4)
    a.label(l)
    a("s_barrier")

def local_poll(a):
    a("v_lshlrev_b32 v118, 7, v0")
    a(f"s_lshl_b32 s62, s{S_G}, 11")
    a(f"s_add_u32 s62, s62, {FLG_X}")
    a("s_mov_b64 exec, 0xffff")
    a(f"buffer_load_dwordx2 v[116:117], v118, {WS}, s62 offen sc1")
    a("s_mov_b64 exec, -1")
def local_check(a):
    dn = a.newlabel("lcd")
    a(f"s_lshl_b32 s62, s{S_G}, 11")
    a(f"s_add_u32 s62, s62, {FLG_X}")
    a("s_mov_b64 exec, 0xffff")
    a("s_waitcnt vmcnt(0)")
    a(f"v_cmp_ne_u32 vcc, s{S_NONCE}, v116")
    a("s_nop 4")
    a(f"s_cbranch_vccz {dn}")
    l = spin_begin(a, "lcp")
    a(f"buffer_load_dwordx2 v[116:117], v118, {WS}, s62 offen sc1")
    a("s_waitcnt vmcnt(0)")
    a(f"v_cmp_ne_u32 vcc, s{S_NONCE}, v116")
    spin_end(a, l, dn, 4)
    a("s_getreg_b32 s62, hwreg(HW_REG_XCC_ID, 0, 4)")
    a("v_cmp_ne_u32 vcc, s62, v117")
    a(f"v_cmp_ne_u32 s[62:63], s{S_NONCE}, v116")
    a("s_mov_b64 exec, -1")
    a("s_nop 2")
    a("s_or_b64 vcc, vcc, s[62:63]")
    a("s_cmp_eq_u64 vcc, 0")
    a(f"s_cselect_b32 s{S_LOCAL}, 1, 0")

def x_residual(a):
    mk_srd(a, SRD_A, P_X, 2048 * 1024)
    a("v_and_b32 v2, 15, v0")
    a("v_lshrrev_b32 v3, 4, v0")
    a("v_lshlrev_b32 v2, 10, v2")
    a("v_lshl_add_u32 v2, v3, 3, v2")
    a(f"s_lshl_b32 s62, s{S_TBK}, 15")
    a(f"s_lshl_b32 s63, s{S_HQ}, 8")
    a("s_add_u32 s62, s62, s63")
    a(f"s_lshl_b32 s63, s{S_W}, 5")
    a("s_add_u32 s62, s62, s63")
    a.vm(f"buffer_load_dwordx2 v[{XRES}:{XRES+1}], v2, s[{SRD_A}:{SRD_A+3}], s62 offen", "XR")
    a("s_add_u32 s62, s62, 16384")
    a.vm(f"buffer_load_dwordx2 v[{XRES+2}:{XRES+3}], v2, s[{SRD_A}:{SRD_A+3}], s62 offen", "XR")
XRES = 4

def hh_prefill(a):
    l = a.newlabel("pf")
    a(f"s_cmp_eq_u32 s{S_W}, 7")
    a(f"s_cbranch_scc1 {l}")
    for r in range(4): a(f"v_mov_b32 v{96+r}, -1")
    a("s_mul_i32 s62, s74, 1024")
    a(f"s_lshl_b32 s63, s{S_G}, 2")
    a("s_mul_i32 s63, s63, 114688")
    a("s_add_u32 s62, s62, s63")
    a(f"s_add_u32 s62, s62, {HHF}")
    for tb in range(4):
        a(f"buffer_store_dwordx4 v[96:99], v1, {WS}, s62 offen sc1")
        if tb < 3: a("s_add_u32 s62, s62, 114688")
    a("s_nop 1")
    a.label(l)

def attention(a):
    a("v_lshlrev_b32 v1, 4, v0")
    for r in range(4):
        a(f"v_mov_b32 v{A_Q+r}, v{QSAVE+r}")
        a(f"v_mov_b32 v{A_Q2+r}, v{QSAVE+4+r}")
    a("s_mov_b32 s70, 0x0000ffff")
    a("s_mov_b32 s71, 0x0000ffff")
    for r in range(16):
        a(f"v_mov_b32 v{A_O+r}, 0")
        a(f"v_mov_b32 v{A_O2+r}, 0")
        a(f"v_mov_b32 v{72+r}, 0x3f803f80")
    if ZROWS:
        a("s_mov_b32 s62, 0x00110000"); a("s_mov_b32 s63, 0x00110000")
        a("v_mov_b32 v91, 0")
        for r in range(16): a(f"v_cndmask_b32 v{72+r}, v91, v{72+r}, s[62:63]")
    for r in range(8):
        a(f"v_mov_b32 v{A_P+r}, 0")
    a(f"s_lshr_b32 s61, s{S_W}, 2")
    a("s_lshl_b32 s61, s61, 15")
    a(f"v_add_u32 v{A_VK}, s61, v1")
    a("v_lshrrev_b32 v90, 5, v0")
    a("v_and_b32 v91, 15, v0")
    a("v_lshl_add_u32 v90, v90, 4, v91")
    a("v_lshlrev_b32 v90, 4, v90")
    a("s_add_u32 s61, s61, 65536")
    a(f"v_add_u32 v{A_VV}, s61, v90")
    wave_consts(a)
    wj_setup(a)
    a("v_mov_b32 v90, 0")
    a("v_mov_b32 v2, 0")
    for r in range(4):
        a(f"v_dot2_f32_bf16 v90, v{A_Q+r}, v{A_Q+r}, v90")
        a(f"v_dot2_f32_bf16 v2, v{A_Q2+r}, v{A_Q2+r}, v2")
    a(f"s_lshr_b32 s60, s{S_W}, 2")
    a("s_lshl_b32 s60, s60, 4")
    a(f"s_and_b32 s61, s{S_W}, 3")
    a("s_add_u32 s60, s60, s61")
    a("s_lshl_b32 s60, s60, 11")
    xhalf(a, 90, 91, "v_add_f32")
    xhalf(a, 2, 91, "v_add_f32")
    a("v_max_f32 v90, v90, v2")
    la = a.newlabel("sa")
    a(f"s_cmp_lg_u32 s{S_W}, 0")
    a(f"s_cbranch_scc1 {la}")
    done = a.newlabel("syncA")
    a("v_lshlrev_b32 v2, 7, v0")
    a(f"s_mov_b32 s63, {FLG_A}")
    l = spin_begin(a, "pollA")
    a(f"buffer_load_dwordx2 v[112:113], v2, {WS}, s63 offen sc1")
    a("s_waitcnt vmcnt(0)")
    a(f"v_cmp_ne_u32 vcc, s{S_NONCE}, v112")
    spin_end(a, l, done, 2)
    dpp_sum16(a, 113, "v_max_f32")
    xrow16(a, 113, 91, "v_max_f32")
    xhalf(a, 113, 91, "v_max_f32")
    a(f"v_mov_b32 v91, {L_SCR + 4096 - 128}")
    a("s_mov_b64 exec, 1")
    a("ds_write_b32 v91, v113")
    a("s_mov_b64 exec, -1")
    a("s_waitcnt lgkmcnt(0)")
    a.label(la)
    a("s_barrier")
    stamp(a)
    kv_dma(a, 0)
    a(f"v_mov_b32 v91, {L_SCR + 4096 - 128}")
    a("ds_read_b32 v3, v91")
    a("s_waitcnt lgkmcnt(0)")
    a("v_mul_f32 v90, v90, v3")
    a(f"v_mov_b32 v91, {f32hex(BOUND2)}")
    a("v_cmp_gt_f32 vcc, v90, v91")
    a.c("workgroup-wide vote: any row that might leave the safe range sends the whole workgroup to the max-subtracting path")
    a("s_nop 4")
    a("s_cmp_lg_u64 vcc, 0")
    a("s_cselect_b32 s61, 1, 0")
    a("v_mov_b32 v90, s61")
    a(f"s_lshl_b32 s61, s{S_W}, 2")
    a(f"s_add_u32 s61, s61, {L_SCR + 4096 - 64}")
    a("v_mov_b32 v91, s61")
    a("s_mov_b64 exec, 1")
    a("ds_write_b32 v91, v90")
    a("s_mov_b64 exec, -1")
    a("s_waitcnt vmcnt(0) lgkmcnt(0)")
    a("s_barrier")
    a(f"v_mov_b32 v91, {L_SCR + 4096 - 64}")
    a("ds_read_b128 v[112:115], v91")
    a("ds_read_b128 v[116:119], v91 offset:16")
    a(f"ds_read_b128 v[{A_K[0]}:{A_K[0]+3}], v{A_VK}")
    a(f"ds_read_b128 v[{A_K[1]}:{A_K[1]+3}], v{A_VK} offset:1024")
    a("s_mov_b64 exec, s[70:71]")
    a(f"ds_read_b128 v[{A_V[0][0]}:{A_V[0][0]+3}], v{A_VV}")
    a(f"ds_read_b128 v[{A_V[1][0]}:{A_V[1][0]+3}], v{A_VV} offset:512")
    a("s_mov_b64 exec, -1")
    a("s_waitcnt lgkmcnt(0)")
    a("v_or3_b32 v112, v112, v113, v114")
    a("v_or3_b32 v116, v116, v117, v118")
    a("v_or3_b32 v112, v112, v115, v119")
    a("v_or_b32 v112, v112, v116")
    a("s_barrier")
    a("v_readfirstlane_b32 s61, v112")
    lslow = a.newlabel("slow"); lepi = a.newlabel("attn_epi")
    a("s_nop 3")
    a("s_cmp_lg_u32 s61, 0")
    a(f"s_cbranch_scc1 {lslow}")
    stamp(a)
    mfma(a, A_S[0], A_K[0], A_Q, None)
    it_pref = [("g", s) for s in range(NG_LATE, 32)] + [("o", s) for s in range(16)]
    NPF0, NPF1 = 36, 62
    a("s_nop 15")
    a.vm_reset()
    def extra_for(t):
        def f():
            if t in (0, 1): kv_dma(a, 1, t)
            if t in (2, 3): wj_issue(a, t - 2)
            if t in (4, 5): kv_dma(a, 2, t - 4)
            if t in (6, 7): kv_dma(a, 3, t - 6)
            if t == 12: wj_read(a, 8)
            if t == 13: wj_store(a)
            if t == 15: wj_cspart(a)
            if t == 16: wj_csread(a)
            if t == 17: wj_csstore(a)
            if t == 33: wready_poll(a); local_poll(a)
            if t == 36: local_check(a)
            if NPF0 <= t < NPF1:
                k0 = (t - NPF0) * len(it_pref) // (NPF1 - NPF0); k1 = (t + 1 - NPF0) * len(it_pref) // (NPF1 - NPF0)
                for k, s in it_pref[k0:k1]:
                    (ld_wg if k == "g" else ld_wo)(a, s)
            if SENT_D and t == 40: hh_prefill(a)
            if t == 62: x_residual(a)
        return f
    for t in range(64):
        p = t & 15
        if t in (0, 4, 8, 12, 16, 20, 24, 28, 32, 36, 40, 48, 56, 63): stamp(a, "attn")
        if t > 0 and t % 4 == 0:
            if t == 12:
                a("s_waitcnt vmcnt(8)")
            if t == 16:
                a("s_waitcnt lgkmcnt(0)")
            if t == 24:
                a("s_waitcnt vmcnt(0)")
            if t == 36:
                wready_check(a)
            else:
                a("s_barrier")
            if t == 24:
                wj_signal(a)
        if PRIO:
            a(f"s_setprio {3 - (t & 3)}")
        attn_tile(a, p, extra_for(t))
        if p == 15 and t < 63:
            a(f"v_add_u32 v{A_VK}, 8192, v{A_VK}")
            a(f"v_add_u32 v{A_VV}, 8192, v{A_VV}")
    if PRIO: a("s_setprio 0")
    a("s_nop 1")
    mfma(a, A_O2, A_V[1][1], A_P + 4, A_O2)
    a(f"s_branch {lepi}")
    a.label(lslow)
    for st in range(1, 4):
        kv_dma(a, st)
    wj_issue(a)
    wj_read(a, 0)
    a("s_waitcnt lgkmcnt(0)")
    wj_store(a)
    a("s_nop 15")
    wj_cspart(a)
    a("s_waitcnt vmcnt(0) lgkmcnt(0)")
    a("s_barrier")
    wj_csread(a)
    a("s_waitcnt lgkmcnt(0)")
    wj_csstore(a)
    a("s_waitcnt vmcnt(0)")
    a("s_barrier")
    wj_signal(a)
    NEG = [112, 128]
    for h in range(2):
        Qh = [A_Q, A_Q2][h]
        a(f"v_mov_b32 v{2+h}, 0xff800000")
        a(f"v_mov_b32 v90, v{A_VK}")
        a("s_mov_b32 s55, 0")
        l1 = a.newlabel("s1")
        a.label(l1)
        a(f"ds_read_b128 v[{A_K[0]}:{A_K[0]+3}], v90")
        a("s_waitcnt lgkmcnt(0)")
        mfma(a, A_S[0], A_K[0], Qh, None)
        a("s_nop 15")
        for r in range(8):
            a(f"v_max3_f32 v{2+h}, v{A_S[0]+2*r}, v{A_S[0]+2*r+1}, v{2+h}")
        a("v_add_u32 v90, 1024, v90")
        a("s_add_u32 s55, s55, 1")
        a("s_cmp_lt_u32 s55, 32")
        a(f"s_cbranch_scc1 {l1}")
        xhalf(a, 2 + h, 91, "v_max_f32")
    a.c("the other half of the keys belongs to wave w ^ 4: exchange the maxima")
    a(f"s_lshl_b32 s55, s{S_W}, 12")
    a(f"s_add_u32 s55, s55, {L_SCR}")
    a("v_lshlrev_b32 v90, 3, v0")
    a("v_add_u32 v91, s55, v90")
    a("ds_write_b64 v91, v[2:3]")
    a(f"s_xor_b32 s55, s{S_W}, 4")
    a("s_lshl_b32 s55, s55, 12")
    a(f"s_add_u32 s55, s55, {L_SCR}")
    a("v_add_u32 v91, s55, v90")
    a("s_waitcnt lgkmcnt(0)")
    a("s_barrier")
    a("ds_read_b64 v[90:91], v91")
    a("s_waitcnt lgkmcnt(0)")
    a("v_max_f32 v2, v2, v90")
    a("v_max_f32 v3, v3, v91")
    for h in range(2):
        for r in range(16):
            a(f"v_sub_f32 v{NEG[h]+r}, 0, v{2+h}")
    for h in range(2):
        Qh = [A_Q, A_Q2][h]; Oh = [A_O, A_O2][h]
        a(f"v_mov_b32 v90, v{A_VK}")
        a(f"v_mov_b32 v91, v{A_VV}")
        a("s_mov_b32 s55, 0")
        l2 = a.newlabel("s2")
        a.label(l2)
        a(f"ds_read_b128 v[{A_K[0]}:{A_K[0]+3}], v90")
        a("s_mov_b64 exec, s[70:71]")
        a(f"ds_read_b128 v[{A_V[0][0]}:{A_V[0][0]+3}], v91")
        a(f"ds_read_b128 v[{A_V[1][0]}:{A_V[1][0]+3}], v91 offset:512")
        a("s_mov_b64 exec, -1")
        a("s_waitcnt lgkmcnt(0)")
        mfma(a, A_S[0], A_K[0], Qh, NEG[h])
        a("s_nop 15")
        for r in range(16):
            a(f"v_exp_f32 v{A_S[0]+r}, v{A_S[0]+r}")
        a("s_nop 0")
        for k in range(8):
            a(f"v_cvt_pk_bf16_f32 v{A_P+k}, v{A_S[0]+2*k}, v{A_S[0]+2*k+1}")
        a("s_nop 1")
        mfma(a, Oh, A_V[0][0], A_P, Oh)
        mfma(a, Oh, A_V[1][0], A_P + 4, Oh)
        a("v_add_u32 v90, 1024, v90")
        a("v_add_u32 v91, 1024, v91")
        a("s_add_u32 s55, s55, 1")
        a("s_cmp_lt_u32 s55, 32")
        a(f"s_cbranch_scc1 {l2}")
    a("s_nop 15")
    a("s_barrier")
    if SENT_D: hh_prefill(a)
    wready_poll(a)
    local_poll(a)
    wready_check(a)
    local_check(a)
    sv = list(a.vmq)
    for k, s in it_pref:
        (ld_wg if k == "g" else ld_wo)(a, s)
    x_residual(a)
    a.vmq = sv
    a.label(lepi)
    stamp(a)
    a.c("wave kh finishes head 2p + kh: it hands the partial sums of the other head to wave w ^ 4")
    a(f"s_lshl_b32 s60, s{S_W}, 12")
    a(f"s_add_u32 s60, s60, {L_SCR}")
    a("v_add_u32 v90, s60, v1")
    a(f"s_xor_b32 s60, s{S_W}, 4")
    a("s_lshl_b32 s60, s60, 12")
    a(f"s_add_u32 s60, s60, {L_SCR}")
    a("v_add_u32 v91, s60, v1")
    a("s_nop 9")
    lk1 = a.newlabel("kh1"); lk2 = a.newlabel("khj")
    a(f"s_cmp_ge_u32 s{S_W}, 4")
    a(f"s_cbranch_scc1 {lk1}")
    for q in range(3):
        a(f"ds_write_b128 v90, v[{A_O2+4*q}:{A_O2+4*q+3}] offset:{q*1024}")
    a(f"s_branch {lk2}")
    a.label(lk1)
    for q in range(3):
        a(f"ds_write_b128 v90, v[{A_O+4*q}:{A_O+4*q+3}] offset:{q*1024}")
    for r in range(9):
        a(f"v_mov_b32 v{A_O+r}, v{A_O2+r}")
    a.label(lk2)
    a("s_waitcnt lgkmcnt(0)")
    a("s_barrier")
    for q in range(3):
        a(f"ds_read_b128 v[{24+4*q}:{27+4*q}], v91 offset:{q*1024}")
    a("s_waitcnt lgkmcnt(0)")
    for i in range(4):
        a(f"v_pk_add_f32 v[{A_O+2*i}:{A_O+2*i+1}], v[{A_O+2*i}:{A_O+2*i+1}], v[{24+2*i}:{25+2*i}]")
    a(f"v_add_f32 v{A_O+8}, v{A_O+8}, v32")
    a(f"v_rcp_f32 v90, v{A_O+8}")
    a("s_nop 0")
    for r in range(8):
        a(f"v_mul_f32 v{A_O+r}, v{A_O+r}, v90")
    for k in range(4):
        a(f"v_cvt_pk_bf16_f32 v{A_P+k}, v{A_O+2*k}, v{A_O+2*k+1}")
    a.c("OF + (tbk*32 + 8hq + 2p + kh)*1024")
    a(f"s_lshl_b32 s60, s{S_TBK}, 5")
    a(f"s_lshl_b32 s61, s{S_HQ}, 3")
    a("s_add_u32 s60, s60, s61")
    a(f"s_and_b32 s61, s{S_W}, 3")
    a("s_lshl_b32 s61, s61, 1")
    a("s_add_u32 s60, s60, s61")
    a(f"s_lshr_b32 s61, s{S_W}, 2")
    a("s_add_u32 s60, s60, s61")
    a("s_lshl_b32 s60, s60, 10")
    a(f"s_add_u32 s60, s60, {OF}")
    a("s_mov_b32 s54, s60")
    gstore(a, f"buffer_store_dwordx4 v[{A_P}:{A_P+3}], v1, {WS}, s60 offen", "o")
    if "o" in DOUBLE: a(f"buffer_store_dwordx4 v[{A_P}:{A_P+3}], v1, {WS}, s60 offen")

def eflag_base(a, dst):
    a(f"s_lshl_b32 s{dst}, s{S_G}, 11")
    a(f"s_add_u32 s{dst}, s{dst}, {FLG_E}")

def wg_publish(a, base, vt, younger=0):
    stamp(a, "p3")
    a(f"s_waitcnt vmcnt({younger})")
    stamp(a, "p3")
    a("s_barrier")
    l = a.newlabel("pub")
    a(f"s_cmp_lg_u32 s{S_W}, 0")
    a(f"s_cbranch_scc1 {l}")
    a(f"s_lshl_b32 s60, s{S_G}, 4")
    a(f"s_add_u32 s60, s60, s{S_J}")
    a("s_lshl_b32 s60, s60, 7")
    a(f"s_add_u32 s60, s60, {base}")
    set_flag(a, 60, vt, True)
    a.label(l)

def wg_wait(a, base, first_expr, n, vt, vo):
    l = a.newlabel("wt")
    a(f"s_cmp_lg_u32 s{S_W}, 0")
    a(f"s_cbranch_scc1 {l}")
    a(f"s_lshl_b32 s60, s{S_G}, 4")
    if first_expr is not None:
        first_expr()
    a("s_lshl_b32 s60, s60, 7")
    a(f"s_add_u32 s60, s60, {base}")
    if POLL_DELAY: a(f"s_sleep {POLL_DELAY}")
    poll_flags(a, 60, n, vt, vo, sleep=POLL_SLEEP)
    a.label(l)
    a("s_barrier")

def wave_publish(a, base, vt):
    a(f"s_lshl_b32 s60, s{S_G}, 4")
    a(f"s_add_u32 s60, s60, s{S_J}")
    a("s_lshl_b32 s60, s60, 3")
    a(f"s_add_u32 s60, s60, s{S_W}")
    a("s_lshl_b32 s60, s60, 7")
    a(f"s_add_u32 s60, s60, {base}")
    stamp(a, "p3")
    a("s_waitcnt vmcnt(0)")
    stamp(a, "p3")
    set_flag(a, 60, vt)

L3_ST = 131072 + 4096
def mfma16(a, d, A, B, c):
    cs = "0" if c is None else f"v[{c}:{c+3}]"
    a(f"v_mfma_f32_16x16x32_bf16 v[{d}:{d+3}], v[{A}:{A+3}], v[{B}:{B+3}], {cs}")

def p3(a):
    wg_publish(a, FLG_B, 28)
    stamp(a)
    def fe():
        a(f"s_lshl_b32 s61, s{S_TQ}, 2")
        a("s_add_u32 s60, s60, s61")
    wg_wait(a, FLG_B, fe, 4, 28, 30)
    stamp(a)
    a.c("o fragments -> LDS [32 heads][1024] over key tiles 0..31 (dead since the last barriers of the attention loop)")
    a(f"s_lshl_b32 s60, s{S_W}, 12")
    a("s_mov_b32 m0, s60")
    a(f"s_lshl_b32 s61, s{S_TBK}, 15")
    a("s_add_u32 s61, s61, s60")
    a(f"s_add_u32 s61, s61, {OF}")
    for e in range(4):
        a(f"buffer_load_dwordx4 v1, {WS}, s61 offen offset:{e*1024} sc1 lds")
    a.c("operand address: (g>>1)*1024 + ((g&1)*32 + (lane&15))*16")
    a("v_lshrrev_b32 v30, 5, v0")
    a("v_lshlrev_b32 v30, 10, v30")
    a("v_bfe_u32 v31, v0, 4, 1")
    a("v_lshlrev_b32 v31, 5, v31")
    a("v_and_b32 v29, 15, v0")
    a("v_add_u32 v31, v31, v29")
    a("v_lshl_add_u32 v30, v31, 4, v30")
    a("v_and_b32 v2, 31, v0")
    stamp(a, "p3")
    a("s_waitcnt vmcnt(0)")
    stamp(a, "p3")
    a("s_barrier")
    stamp(a, "p3")
    BBF = [[32 + 8 * k, 36 + 8 * k] for k in range(3)]
    a.lgq = []
    def rd(s):
        for th2 in range(2):
            r = BBF[s % 3][th2]
            a.lg(f"ds_read_b128 v[{r}:{r+3}], v30 offset:{s*2048 + th2*256}", s)
    rd(0); rd(1)
    for s in range(16):
        if s + 2 < 16: rd(s + 2)
        a.lg_wait(s)
        for th2 in range(2):
            mfma16(a, 8 + 4 * th2, WO_R + 4 * s, BBF[s % 3][th2], None if s == 0 else 8 + 4 * th2)
    stamp(a, "p3")
    a("s_mov_b32 s61, 0xffff0000")
    for i in range(4):
        a(f"v_lshlrev_b32 v{32+2*i}, 16, v{XRES+i}")
        a(f"v_and_b32 v{33+2*i}, s61, v{XRES+i}")
    a(f"s_lshl_b32 s60, s{S_TBK}, 5")
    a(f"s_lshl_b32 s61, s{S_HQ}, 3")
    a("s_add_u32 s60, s60, s61")
    a(f"s_add_u32 s60, s60, s{S_W}")
    a("s_lshl_b32 s60, s60, 10")
    a(f"s_add_u32 s60, s60, {HF}")
    a("s_nop 1")
    for i in range(4):
        a(f"v_pk_add_f32 v[{8+2*i}:{9+2*i}], v[{8+2*i}:{9+2*i}], v[{32+2*i}:{33+2*i}]")
    for i in range(4):
        a(f"v_cvt_pk_bf16_f32 v{40+i}, v{8+2*i}, v{9+2*i}")
    a("s_nop 1")
    a("v_permlane16_swap_b32 v40, v42")
    a("v_permlane16_swap_b32 v41, v43")
    a("s_nop 1")
    a("s_mov_b32 s55, s60")
    gstore(a, f"buffer_store_dwordx4 v[40:43], v1, {WS}, s60 offen", "h")
    if "h" in LOCAL_DATA:
        for r in range(4): a(f"v_mov_b32 v{12+r}, v{40+r}")
    if "h" in DOUBLE: a(f"buffer_store_dwordx4 v[40:43], v1, {WS}, s60 offen")
    stamp(a, "p3")
    a("s_mov_b32 s61, 0x3f803f80")
    a("v_mov_b32 v44, 0")
    a("v_mov_b32 v45, 0")
    for i in range(4):
        a(f"v_dot2_f32_bf16 v44, v{40+i}, s61, v44")
        a(f"v_dot2_f32_bf16 v45, v{40+i}, v{40+i}, v45")
    a("s_nop 2")
    xhalf(a, 44, 46, "v_add_f32")
    xhalf(a, 45, 46, "v_add_f32")
    a(f"s_lshl_b32 s60, s{S_W}, 8")
    a(f"s_add_u32 s60, s60, {L3_ST}")
    a("v_lshlrev_b32 v46, 3, v2")
    a("v_add_u32 v47, s60, v46")
    a("s_mov_b32 exec_hi, 0")
    a("ds_write_b64 v47, v[44:45]")
    a("s_mov_b64 exec, -1")
    a("s_waitcnt lgkmcnt(0)")
    wg_publish(a, FLG_C, 28)
    a.vm_reset()
    for s in range(NG_LATE):
        ld_wg(a, s)
    stamp(a)

L4_ST = 131072
L4_CS = 131072 + 1024
WD_R = 128
def ld_wd(a, u):
    s, ct = u >> 1, u & 1
    off = ct * 114688 + (s >> 2) * 4096
    a(f"s_add_u32 s75, s76, {off}")
    a.vm(f"buffer_load_dwordx4 v[{WD_R+4*u}:{WD_R+4*u+3}], v1, {WS}, s75 offen offset:{(s&3)*1024} sc1", ("WD", u))

def p4(a):
    a(f"s_and_b32 s77, s{S_J}, 7")
    a("s_mul_i32 s76, s77, 229376")
    a(f"s_mul_i32 s60, s{S_W}, 14336")
    a("s_add_u32 s76, s76, s60")
    a(f"s_add_u32 s76, s76, {WDF}")
    stamp(a, "p4")
    wg_wait(a, FLG_C, None, 16, 28, 5)
    stamp(a); stamp(a, "p4")
    a(f"s_lshl_b32 s62, s{S_G}, 17")
    a(f"s_lshl_b32 s63, s{S_W}, 10")
    a("s_add_u32 s62, s62, s63")
    a(f"s_add_u32 s62, s62, {HF}")
    def dma(st):
        for tb in range(4):
            off = tb * 32768 + st * 8192
            a(f"s_add_u32 m0, s63, {off}")
            a(f"s_add_u32 s64, s62, {off}")
            a.vm(f"buffer_load_dwordx4 v1, {WS}, s64 offen sc1 lds", ("H", st))
    a.vm_reset()
    dma(0)
    if "o" in LOCAL_DATA:
        clean_store(a, A_P, 54, "o")
    lhelp = a.newlabel("help"); ljoin = a.newlabel("p4join")
    a(f"s_cmp_eq_u32 s{S_W}, 7")
    a(f"s_cbranch_scc1 {lhelp}")
    sv = list(a.vmq)
    a("v_add_u32 v2, 65536, v1")
    BB = [[32 + 4 * t for t in range(4)], [48 + 4 * t for t in range(4)]]
    def breads(s):
        for tb in range(4):
            base = "v1" if tb < 2 else "v2"
            a.lg(f"ds_read_b128 v[{BB[s&1][tb]}:{BB[s&1][tb]+3}], {base} offset:{(tb&1)*32768 + s*1024}", s)
    a.lgq = []
    a.vm_wait(("H", 0))
    stamp(a, "p4")
    a("s_barrier")
    stamp(a); stamp(a, "p4")
    breads(0)
    dma(1)
    for s in range(24):
        if (s + 1) % 8 == 0:
            a.vm_wait(("H", (s + 1) // 8))
            a("s_barrier")
        if s + 1 < 24:
            breads(s + 1)
        if PRIO2 and s % 2 == 0: a(f"s_setprio {3 - ((s & 7) >> 1)}")
        a.lg_wait(s)
        for tb in range(4):
            mfma(a, 64 + 16 * tb, WG_R + 4 * s, BB[s & 1][tb], None if s == 0 else 64 + 16 * tb)
        if s == 2: dma(2)
        if s == 6: dma(3)
        if s == 20: clean_store(a, 12, 55, "h")
        if s >= 1:
            ld_wd(a, s - 1)
    a("v_and_b32 v3, 31, v0")
    a("v_lshlrev_b32 v3, 3, v3")
    a(f"v_add_u32 v3, {L4_ST}, v3")
    SL = [32 + 4 * i for i in range(8)]
    seq = [(tb, s) for tb in range(4) for s in range(24, 32)]
    def rd(k):
        tb, s = seq[k]
        base = "v1" if tb < 2 else "v2"
        r = SL[k % 8]
        a.lg(f"ds_read_b128 v[{r}:{r+3}], {base} offset:{(tb&1)*32768 + s*1024}", ("t", k))
    for k in range(4): rd(k)
    for tb in range(4):
        a.lg(f"ds_read_b64 v[{4+2*tb}:{5+2*tb}], v3 offset:{tb*256}", "st")
    a("v_lshrrev_b32 v12, 5, v0")
    a("v_lshlrev_b32 v12, 4, v12")
    a(f"s_lshl_b32 s60, s{S_W}, 7")
    a(f"s_add_u32 s60, s60, {L4_CS}")
    a("v_add_u32 v12, s60, v12")
    for q in range(4):
        a.lg(f"ds_read_b128 v[{16+4*q}:{19+4*q}], v12 offset:{q*32}", "st")
    a("s_mul_i32 s60, s74, 1024")
    a(f"s_lshl_b32 s61, s{S_G}, 2")
    a("s_mul_i32 s61, s61, 114688")
    a("s_add_u32 s60, s60, s61")
    a(f"s_add_u32 s60, s60, {HHF}")
    def epi(tb):
        A = 64 + 16 * tb; st = 4 + 2 * tb; o = 8 + 0
        L = []
        for i in range(8):
            L.append(f"v_pk_fma_f32 v[{A+2*i}:{A+2*i+1}], v[{16+2*i}:{17+2*i}], v[{st}:{st+1}], v[{A+2*i}:{A+2*i+1}] op_sel_hi:[1,0,1]")
        for i in range(4):
            L.append(f"v_pk_mul_f32 v[{A+8+2*i}:{A+9+2*i}], v[{A+8+2*i}:{A+9+2*i}], v[{st}:{st+1}] op_sel:[0,1] op_sel_hi:[1,1]")
        for r in range(8):
            L.append(f"v_max_f32 v{A+r}, 0, v{A+r}")
        for i in range(4):
            L.append(f"v_pk_mul_f32 v[{A+2*i}:{A+2*i+1}], v[{A+2*i}:{A+2*i+1}], v[{A+8+2*i}:{A+9+2*i}]")
        for i in range(4):
            L.append(f"v_cvt_pk_bf16_f32 v{A+8+i}, v{A+2*i}, v{A+2*i+1}")
        L.append(("st", f"buffer_store_dwordx4 v[{A+8}:{A+11}], v1, {WS}, s60 offen"))
        if tb < 3: L.append("s_add_u32 s60, s60, 114688")
        return L
    def emit(items):
        for ins in items:
            if isinstance(ins, tuple): gstore(a, ins[1], "g")
            else: a(ins)
    pend = []
    for k, (tb, s) in enumerate(seq):
        if k + 4 < len(seq): rd(k + 4)
        a.lg_wait(("t", k))
        mfma(a, 64 + 16 * tb, WG_R + 4 * s, SL[k % 8], 64 + 16 * tb)
        if k == 0: ld_wd(a, 23)
        if k % 8 == 2 and tb > 0:
            if tb == 1: a.lg_wait("st")
            pend = epi(tb - 1)
            a("s_nop 3")
        n = (len(pend) + 4) // 5 if (k % 8) < 7 else len(pend)
        if k % 8 >= 2 or tb == 0:
            emit(pend[:5 if (k % 8) < 7 else len(pend)]); pend = pend[5 if (k % 8) < 7 else len(pend):]
    stamp(a); stamp(a, "p4")
    if PRIO2: a("s_setprio 0")
    a("s_nop 9")
    emit(epi(3))
    for u in range(24, 28): ld_wd(a, u)
    stamp(a, "p4")
    a(f"s_branch {ljoin}")
    a.label(lhelp)
    a.vmq = list(sv)
    dma(1); dma(2); dma(3)
    a("v_lshlrev_b32 v3, 2, v0")
    a(f"s_mul_i32 s60, s{S_J}, 896")
    a(f"s_add_u32 s60, s60, {CSP}")
    for kq in range(4):
        for i in range(4):
            a.vm(f"buffer_load_dword v{32+4*kq+i}, v3, {WS}, s60 offen offset:{i*256} sc1", "cs")
        if kq < 3:
            a("s_add_u32 s60, s60, 14336")
    a.vm_wait(("H", 0))
    a("s_barrier")
    a.c("finish this workgroup's row statistics (partials of the 8 waves are in LDS) and publish them")
    a("v_and_b32 v2, 31, v0")
    a("v_lshlrev_b32 v64, 3, v2")
    a(f"v_add_u32 v65, {L3_ST}, v64")
    for ww in range(8):
        a(f"ds_read_b64 v[{66+2*ww}:{67+2*ww}], v65 offset:{ww*256}")
    a("s_waitcnt lgkmcnt(0)")
    for ww in range(1, 8):
        a(f"v_pk_add_f32 v[66:67], v[66:67], v[{66+2*ww}:{67+2*ww}]")
    a("v_lshlrev_b32 v64, 5, v2")
    a(f"s_lshl_b32 s60, s{S_TBK}, 10")
    a(f"s_lshl_b32 s61, s{S_HQ}, 3")
    a("s_add_u32 s60, s60, s61")
    a(f"s_add_u32 s60, s60, {HST}")
    a("s_mov_b32 exec_hi, 0")
    a.vm(f"buffer_store_dwordx2 v[66:67], v64, {WS}, s60 offen sc1", "hst")
    a("s_mov_b64 exec, -1")
    a.vm_wait_all()
    eflag_base(a, 60)
    a(f"s_lshl_b32 s61, s{S_J}, 7")
    a("s_add_u32 s60, s60, s61")
    set_flag(a, 60, 28)
    a("s_barrier")
    a("s_barrier")
    clean_store(a, 12, 55, "h")
    eflag_base(a, 60)
    poll_flags(a, 60, 16, 28, 2)
    a("v_lshlrev_b32 v2, 5, v0")
    a(f"s_lshl_b32 s60, s{S_G}, 12")
    a(f"s_add_u32 s60, s60, {HST}")
    for i in range(2):
        a(f"buffer_load_dwordx4 v[{8+8*i}:{11+8*i}], v2, {WS}, s60 offen offset:{i*2048} sc1")
        a(f"buffer_load_dwordx4 v[{12+8*i}:{15+8*i}], v2, {WS}, s60 offen offset:{i*2048+16} sc1")
    a.vm_wait_all()
    for i in range(2):
        b = 8 + 8 * i
        a(f"v_add_f32 v{b}, v{b}, v{b+2}")
        a(f"v_add_f32 v{b+4}, v{b+4}, v{b+6}")
        a(f"v_add_f32 v{b+1}, v{b+1}, v{b+3}")
        a(f"v_add_f32 v{b+5}, v{b+5}, v{b+7}")
        a(f"v_add_f32 v{b}, v{b}, v{b+4}")
        a(f"v_add_f32 v{b+1}, v{b+1}, v{b+5}")
        a(f"v_mul_f32 v{b}, {f32hex(1.0/512)}, v{b}")
        a(f"v_mul_f32 v{b+2}, v{b}, v{b}")
        a(f"v_mov_b32 v{b+3}, {f32hex(1.0/512)}")
        a(f"v_fma_f32 v{b+1}, v{b+1}, v{b+3}, -v{b+2}")
        a(f"v_max_f32 v{b+1}, 0, v{b+1}")
        a(f"v_add_f32 v{b+1}, {f32hex(1e-5)}, v{b+1}")
        a(f"v_rcp_f32 v{b+1}, v{b+1}")
        a(f"v_sub_f32 v{b}, 0, v{b}")
    a("v_lshlrev_b32 v4, 3, v0")
    a(f"v_add_u32 v4, {L4_ST}, v4")
    a("ds_write_b64 v4, v[8:9]")
    a("ds_write_b64 v4, v[16:17] offset:512")
    for i in range(4):
        a(f"v_add_f32 v{32+i}, v{32+i}, v{36+i}")
        a(f"v_add_f32 v{40+i}, v{40+i}, v{44+i}")
        a(f"v_add_f32 v{32+i}, v{32+i}, v{40+i}")
    a(f"v_add_u32 v3, {L4_CS}, v3")
    for i in range(3):
        a(f"ds_write_b32 v3, v{32+i} offset:{i*256}")
    a("s_mov_b32 exec_hi, 0")
    a("ds_write_b32 v3, v35 offset:768")
    a("s_mov_b64 exec, -1")
    a("s_waitcnt lgkmcnt(0)")
    a("s_barrier")
    for u in range(28):
        ld_wd(a, u)
    a.label(ljoin)
    if not SENT_D:
        wg_publish(a, FLG_D, 28, 4)
    a.vm_reset()
    stamp(a)

def p5(a):
    mk_srd(a, SRD_A, P_OUT, 2048 * 1024)
    a(f"s_lshr_b32 s72, s{S_J}, 3")
    a(f"s_lshl_b32 s61, s{S_G}, 2")
    a("s_lshl_b32 s62, s72, 1")
    a("s_add_u32 s61, s61, s62")
    a(f"s_mul_i32 s62, s{S_W}, 14336")
    a("s_mul_i32 s64, s61, 114688")
    a("s_add_u32 s64, s64, s62")
    a(f"s_add_u32 s64, s64, {HHF}")
    a("s_add_u32 s65, s64, 114688")
    a("v_lshrrev_b32 v2, 3, v0")
    a(f"s_lshl_b32 s62, s{S_W}, 3")
    a("v_add_u32 v2, s62, v2")
    a("v_and_b32 v3, 7, v0")
    a("v_lshrrev_b32 v4, 5, v2")
    a("v_lshlrev_b32 v4, 5, v4")
    a("v_lshrrev_b32 v5, 1, v3")
    a("v_add_u32 v4, v4, v5")
    a("v_lshlrev_b32 v4, 10, v4")
    a("v_and_b32 v5, 1, v3")
    a("v_lshlrev_b32 v5, 5, v5")
    a("v_and_b32 v6, 31, v2")
    a("v_add_u32 v5, v5, v6")
    a("v_lshl_add_u32 v4, v5, 4, v4")
    a("s_lshl_b32 s62, s61, 5")
    a("s_lshl_b32 s63, s77, 2")
    a("s_add_u32 s62, s62, s63")
    a("s_lshl_b32 s62, s62, 10")
    a(f"s_add_u32 s62, s62, {HF}")
    a(f"buffer_load_dwordx4 v[8:11], v4, {WS}, s62 offen sc1")
    stamp(a, "p4")
    if not SENT_D:
        wg_wait(a, FLG_D, None, 16, 28, 5)
    stamp(a); stamp(a, "p4")
    a("s_mov_b32 s62, s64"); a("s_mov_b32 s63, s65")
    retries = []
    BREG = [16, 24, 32, 40, 48, 56, 240, 248]
    ACC = 64
    a.vm_reset()
    def ldB(s):
        if s and (s & 3) == 0:
            a("s_add_u32 s64, s64, 4096"); a("s_add_u32 s65, s65, 4096")
        r = BREG[s % 8]
        a.vm(f"buffer_load_dwordx4 v[{r}:{r+3}], v1, {WS}, s64 offen offset:{(s&3)*1024} sc1", ("B", s))
        a.vm(f"buffer_load_dwordx4 v[{r+4}:{r+7}], v1, {WS}, s65 offen offset:{(s&3)*1024} sc1", ("B", s))
    for s in range(8):
        ldB(s)
    def check(r):
        a(f"v_max3_u32 v12, v{r}, v{r+1}, v{r+2}")
        a(f"v_max3_u32 v13, v{r+3}, v{r+4}, v{r+5}")
        a(f"v_max3_u32 v12, v{r+6}, v{r+7}, v12")
        a("v_max_u32 v12, v12, v13")
        a("v_cmp_eq_u32 vcc, -1, v12")
    stamp(a, "p5")
    for s in range(14):
        a.vm_wait(("B", s))
        if s in (0, 7): stamp(a, "p5")
        if SENT_D:
            lr = a.newlabel("rt"); lb = a.newlabel("rb")
            check(BREG[s % 8])
            a("s_nop 1")
            a(f"s_cbranch_vccnz {lr}")
            a.label(lb)
            retries.append((s, lr, lb))
        for ct in range(2):
            for tb in range(2):
                d = ACC + (ct * 2 + tb) * 16
                mfma(a, d, WD_R + (2 * s + ct) * 4, BREG[s % 8] + 4 * tb, None if s == 0 else d)
        if s + 8 < 14:
            ldB(s + 8)
    stamp(a); stamp(a, "p5")
    if PRIO2: a("s_setprio 0")
    a("v_and_b32 v12, 31, v0")
    a("v_lshrrev_b32 v13, 5, v0")
    a("v_lshlrev_b32 v13, 1, v13")
    a("v_and_b32 v14, 7, v12")
    a("v_xor_b32 v13, v13, v14")
    a("v_lshlrev_b32 v12, 8, v12")
    a(f"s_lshl_b32 s62, s{S_W}, 14")
    a("v_add_u32 v12, s62, v12")
    for k, (rg, q) in enumerate([(0, 0), (0, 1), (1, 0), (1, 1)]):
        a(f"v_xor_b32 v{16+k}, {rg*4+q}, v13")
        a(f"v_lshl_add_u32 v{16+k}, v{16+k}, 4, v12")
    if SENT_D:
        lskip = a.newlabel("rskip")
        a(f"s_branch {lskip}")
        for (s_, lr, lb) in retries:
            r = BREG[s_ % 8]
            a.label(lr)
            a(f"s_mov_b32 s79, {SPIN}")
            lp = a.newlabel("rl")
            a.label(lp)
            a("s_sleep 2")
            a(f"s_add_u32 s60, s62, {(s_ >> 2) * 4096}")
            a(f"s_add_u32 s61, s63, {(s_ >> 2) * 4096}")
            a(f"buffer_load_dwordx4 v[{r}:{r+3}], v1, {WS}, s60 offen offset:{(s_&3)*1024} sc1")
            a(f"buffer_load_dwordx4 v[{r+4}:{r+7}], v1, {WS}, s61 offen offset:{(s_&3)*1024} sc1")
            a("s_waitcnt vmcnt(0)")
            check(r)
            a("s_nop 4")
            a(f"s_cbranch_vccz {lb}")
            a("s_sub_u32 s79, s79, 1")
            a("s_cmp_lg_u32 s79, 0")
            a(f"s_cbranch_scc1 {lp}")
            a(f"s_branch {lb}")
        a.label(lskip)
        a("s_barrier")
    a("s_nop 3")
    for ct in range(2):
        for tb in range(2):
            d = ACC + (ct * 2 + tb) * 16
            for k, (rg, q) in enumerate([(0, 0), (0, 1), (1, 0), (1, 1)]):
                r = d + 8 * rg + 4 * q
                a(f"ds_write_b128 v{16+k}, v[{r}:{r+3}] offset:{ct*128 + tb*8192}")
    stamp(a, "p5")
    a("s_waitcnt lgkmcnt(0)")
    stamp(a, "p5")
    a("s_barrier")
    stamp(a, "p5")
    a("v_and_b32 v12, 7, v2")
    a("v_lshlrev_b32 v13, 1, v3")
    a("v_xor_b32 v14, v13, v12")
    a("v_or_b32 v13, 1, v13")
    a("v_xor_b32 v15, v13, v12")
    a("v_lshlrev_b32 v14, 4, v14")
    a("v_lshlrev_b32 v15, 4, v15")
    a("v_lshl_add_u32 v14, v2, 8, v14")
    a("v_lshl_add_u32 v15, v2, 8, v15")
    a("v_add_u32 v12, 65536, v14")
    a("v_add_u32 v13, 65536, v15")
    for src in range(8):
        b0, b1 = ("v14", "v15") if src < 4 else ("v12", "v13")
        a(f"ds_read_b128 v[{16+8*src}:{19+8*src}], {b0} offset:{(src&3)*16384}")
        a(f"ds_read_b128 v[{20+8*src}:{23+8*src}], {b1} offset:{(src&3)*16384}")
        if src == 3: a("s_waitcnt lgkmcnt(4)")
    a("s_mov_b32 s62, 0xffff0000")
    for i in range(4):
        a(f"v_lshlrev_b32 v{80+2*i}, 16, v{8+i}")
        a(f"v_and_b32 v{81+2*i}, s62, v{8+i}")
    a("s_waitcnt lgkmcnt(0)")
    stamp(a, "p5")
    for src in range(1, 8):
        for i in range(4):
            a(f"v_pk_add_f32 v[{16+2*i}:{17+2*i}], v[{16+2*i}:{17+2*i}], v[{16+8*src+2*i}:{17+8*src+2*i}]")
    for i in range(4):
        a(f"v_pk_add_f32 v[{16+2*i}:{17+2*i}], v[{16+2*i}:{17+2*i}], v[{80+2*i}:{81+2*i}]")
    for i in range(4):
        a(f"v_cvt_pk_bf16_f32 v{8+i}, v{16+2*i}, v{17+2*i}")
    a("v_lshlrev_b32 v4, 10, v2")
    a("v_lshl_add_u32 v4, v3, 4, v4")
    a(f"s_lshl_b32 s62, s{S_G}, 17")
    a("s_lshl_b32 s63, s72, 16")
    a("s_add_u32 s62, s62, s63")
    a("s_lshl_b32 s63, s77, 7")
    a("s_add_u32 s62, s62, s63")
    a(f"buffer_store_dwordx4 v[8:11], v4, s[{SRD_A}:{SRD_A+3}], s62 offen {OUT_FLAGS}")

def build():
    a = Asm()
    label = G.NAME + "_kernel"
    a.raw(G.HEADER.rstrip("\n"))
    a.raw("; @launch grid=(256,1,1) block=(512,1,1) lds=163840")
    a.raw('.amdgcn_target "amdgcn-amd-amdhsa--gfx950"')
    a.raw(".text")
    a.raw(f".globl {label}")
    a.raw(".p2align 8")
    a.raw(f".type {label},@function")
    a.raw(f"{label}:")
    if PROFILE:
        a("s_memtime s[98:99]")
        a("s_memrealtime s[100:101]")
        for k in range(16): a(f"s_mov_b32 s{80+k}, 0")
    G.WS_USED = WS_USED
    G.prologue(a, "L_fin")
    a(f"s_add_u32 s60, s{P_WS}, {NONCE}")
    a(f"s_addc_u32 s61, s{P_WS+1}, 0")
    a(f"s_load_dword s{S_NONCE}, s[60:61], 0")
    phase0(a)
    attention(a)
    p3(a)
    p4(a)
    p5(a)
    lnn = a.newlabel("nn")
    a("s_cmp_lg_u32 s2, 0")
    a(f"s_cbranch_scc1 {lnn}")
    a(f"s_cmp_lg_u32 s{S_W}, 0")
    a(f"s_cbranch_scc1 {lnn}")
    a(f"s_mov_b32 s62, {NONCE}")
    set_flag(a, 62, 28)
    a.label(lnn)
    if PROFILE:
        a(f"s_cmp_lg_u32 s{S_W}, {PROF_WAVE}")
        a("s_cbranch_scc1 L_fin")
        a("s_waitcnt vmcnt(0) lgkmcnt(0)")
        a("s_memtime s[96:97]")
        a("s_memrealtime s[54:55]")
        a("s_waitcnt lgkmcnt(0)")
        for k in range(16):
            a(f"s_sub_u32 s{80+k}, s{80+k}, s98")
            a(f"v_mov_b32 v{k}, s{80+k}")
        a("s_sub_u32 s96, s96, s98")
        a("s_sub_u32 s54, s54, s100")
        a("v_mov_b32 v16, s96")
        a("v_mov_b32 v17, s54")
        a("v_mov_b32 v18, s100")
        a("s_getreg_b32 s62, hwreg(HW_REG_XCC_ID, 0, 4)")
        a(f"s_lshl_b32 s63, s{S_LOCAL}, 8")
        a("s_or_b32 s62, s62, s63")
        a("v_mov_b32 v19, s62")
        a("s_mul_i32 s54, s2, 128")
        a(f"s_add_u32 s54, s54, {PROF}")
        a("v_mov_b32 v20, 0")
        a("s_mov_b64 exec, 1")
        for q in range(5):
            a(f"buffer_store_dwordx4 v[{4*q}:{4*q+3}], v20, {WS}, s54 offen offset:{16*q}")
    a.label("L_fin")
    a("s_endpgm")
    a.raw('.section .rodata,"a"')
    a.raw(".p2align 6")
    G.descriptor(a, label, 256)
    return a.text()

if __name__ == "__main__":
    open(sys.argv[1], "w").write(build())
```

```python
import os, sys
from asmlib import Asm
import gen as G
from gen import (S_W, S_G, S_J, S_TBK, S_HQ, S_TQ, SRD_WS, SRD_A, SRD_B, SRD_C, SRD_D, mk_srd, f32hex,
                 dpp_sum16, xhalf, xrow16, OF, HF, KF, VF, HST, CSP, WOF, WDF, WGF, HHF, QSCALE,
                 P_X, P_WQ, P_WK, P_WV, P_WO, P_WG, P_WU, P_WD, P_OUT, P_DBG, P_WS)
from kernels2 import mfma
WS = f"s[{SRD_WS}:{SRD_WS+3}]"
FLG = 0x1410000
FLG_A, FLG_W, FLG_E, FLG_X = FLG, FLG + 64*128, FLG + 320*128, FLG + 576*128
FLG_B, FLG_C, FLG_D = FLG + 1024*128, FLG + 3072*128, FLG + 5120*128
NONCE = FLG + 7168*128
S_NONCE = 56
PROF = 0x1400000
WS_USED = 0x1500000
SPIN = 400000
P5PRIO = os.environ.get('P5PRIO', '0') == '1'
BAR_EVERY = int(os.environ.get('BAR_EVERY', '8'))
ALTP = int(os.environ.get('ALTP', '0'))
S_LOCAL = 69
LOCAL_OK = os.environ.get('LOCAL_OK', '1') == '1'
LOCAL_DATA = os.environ.get('LOCAL_DATA', '')
PRIO2 = os.environ.get('PRIO2', '1') == '1'
DOUBLE = os.environ.get('DOUBLE', '')
ZROWS = os.environ.get('ZROWS', '1') == '1'
OUT_FLAGS = os.environ.get('OUT_FLAGS', '')
POLL_DELAY = int(os.environ.get('POLL_DELAY', '0'))
SENT_D = os.environ.get('SENT_D', '0') == '1'
FULL_LINE = os.environ.get('FULL_LINE', '1') == '1'
POLL_SLEEP = int(os.environ.get('POLL_SLEEP', '1'))
PROFILE = G.PROFILE
PROF_WAVE = G.PROF_WAVE
PRIO = os.environ.get("PRIO", "0") == "1"
NST = [0]
STAMPSET = os.environ.get("STAMPSET", "main")
def stamp(a, kind="main"):
    if not PROFILE: return
    if kind != STAMPSET: return
    k = NST[0]; NST[0] += 1
    assert k < 16
    a("s_waitcnt lgkmcnt(0)")
    a("s_memtime s[96:97]")
    a("s_waitcnt lgkmcnt(0)")
    a(f"s_mov_b32 s{80+k}, s96")

def spin_begin(a, name):
    l = a.newlabel(name)
    a(f"s_mov_b32 s79, {SPIN}")
    a.label(l)
    return l
def spin_end(a, l, done, sleep=1):
    a("s_nop 4")
    a(f"s_cbranch_vccz {done}")
    a(f"s_sleep {sleep}")
    a("s_sub_u32 s79, s79, 1")
    a("s_cmp_lg_u32 s79, 0")
    a(f"s_cbranch_scc1 {l}")
    a.label(done)

def gstore(a, instr, kind="f"):
    if not LOCAL_OK or (kind != "f" and kind not in LOCAL_DATA):
        a(instr + " sc1"); return
    lf = a.newlabel("gl"); le = a.newlabel("ge")
    a(f"s_cmp_eq_u32 s{S_LOCAL}, 1")
    a(f"s_cbranch_scc1 {lf}")
    a(instr + " sc1")
    a(f"s_branch {le}")
    a.label(lf)
    a(instr)
    a.label(le)

def clean_store(a, reg, sreg, kind):
    if kind not in LOCAL_DATA: return
    l = a.newlabel("cl")
    a(f"s_cmp_eq_u32 s{S_LOCAL}, 1")
    a(f"s_cbranch_scc0 {l}")
    a(f"buffer_store_dwordx4 v[{reg}:{reg+3}], v1, {WS}, s{sreg} offen sc1")
    a.label(l)

def poll_flags(a, soff_reg, nlanes, vtmp, voff, sleep=1, shift=7):
    done = a.newlabel("pd")
    a(f"v_lshlrev_b32 v{voff}, {shift}, v0")
    if nlanes < 64:
        a(f"s_mov_b64 exec, {hex((1 << nlanes) - 1)}")
    l = spin_begin(a, "pl")
    a(f"buffer_load_dword v{vtmp}, v{voff}, {WS}, s{soff_reg} offen sc1")
    a("s_waitcnt vmcnt(0)")
    a(f"v_cmp_ne_u32 vcc, s{S_NONCE}, v{vtmp}")
    spin_end(a, l, done, sleep)
    if nlanes < 64:
        a("s_mov_b64 exec, -1")

def set_flag(a, soff_reg, vtmp, fast_ok=False):
    a(f"v_mov_b32 v{vtmp}, s{S_NONCE}")
    if FULL_LINE:
        a(f"v_lshlrev_b32 v{vtmp+1}, 2, v0")
        a("s_mov_b32 exec_hi, 0")
    else:
        a(f"v_mov_b32 v{vtmp+1}, 0")
        a("s_mov_b64 exec, 1")
    if fast_ok:
        gstore(a, f"buffer_store_dword v{vtmp}, v{vtmp+1}, {WS}, s{soff_reg} offen")
    else:
        a(f"buffer_store_dword v{vtmp}, v{vtmp+1}, {WS}, s{soff_reg} offen sc1")
    a("s_mov_b64 exec, -1")

L_XN, L_WQ, L_WK, L_WV = 0, 32768, 131072, 147456
QSAVE = 244

def phase0(a):
    mk_srd(a, SRD_A, P_X, 2048 * 1024)
    mk_srd(a, SRD_B, P_WQ, 512 * 1024)
    a(f"s_lshl_b32 s54, s{S_TBK}, 5")
    a(f"s_lshl_b32 s55, s{S_W}, 2")
    a("s_add_u32 s54, s54, s55")
    a("v_lshrrev_b32 v2, 4, v0")
    a("v_and_b32 v3, 15, v0")
    a("v_add_u32 v4, s54, v2")
    a("v_lshlrev_b32 v4, 10, v4")
    a("v_lshl_add_u32 v4, v3, 4, v4")
    for i in range(4):
        a(f"buffer_load_dwordx4 v[{16+4*i}:{19+4*i}], v4, s[{SRD_A}:{SRD_A+3}], 0 offen offset:{256*i}")
    a("v_lshlrev_b32 v6, 4, v0")
    lskip = a.newlabel("nokv"); lj = a.newlabel("kvj")
    a(f"s_cmp_lg_u32 s{S_HQ}, 0")
    a(f"s_cbranch_scc1 {lskip}")
    mk_srd(a, SRD_C, P_WK, 16384)
    mk_srd(a, SRD_D, P_WV, 16384)
    a(f"s_lshl_b32 s60, s{S_W}, 11")
    for i in range(2):
        a(f"s_add_u32 s61, s60, {i*1024}")
        a(f"s_add_u32 m0, s61, {L_WK}")
        a("s_nop 0")
        a(f"buffer_load_dwordx4 v6, s[{SRD_C}:{SRD_C+3}], s61 offen lds")
        a(f"s_add_u32 m0, s61, {L_WV}")
        a("s_nop 0")
        a(f"buffer_load_dwordx4 v6, s[{SRD_D}:{SRD_D+3}], s61 offen lds")
    a.label(lskip)
    a("v_lshlrev_b32 v5, 2, v2")
    a("v_xor_b32 v5, v3, v5")
    a("v_lshlrev_b32 v5, 4, v5")
    a("v_lshl_add_u32 v5, v2, 10, v5")
    a(f"s_lshl_b32 s55, s{S_HQ}, 8")
    a("v_add_u32 v5, s55, v5")
    a(f"s_lshl_b32 s62, s{S_W}, 12")
    a(f"s_add_u32 s62, s62, {L_WQ}")
    a(f"s_lshl_b32 s63, s{S_W}, 14")
    def wq_dma(q):
        for i in range(4):
            a(f"s_add_u32 m0, s62, {q * 32768 + i * 1024}")
            a(f"s_add_u32 s64, s63, {(q * 128 + 4 * i) * 1024}")
            a(f"buffer_load_dwordx4 v5, s[{SRD_B}:{SRD_B+3}], s64 offen lds")
    wq_dma(0)
    stamp(a, "p0")
    a("s_waitcnt vmcnt(4)")
    stamp(a); stamp(a, "p0")
    b = Asm()
    if True:
        b("s_mov_b32 s60, 0x3f803f80")
        for r in range(4): b(f"v_mov_b32 v{32+r}, 0")
        for i in range(16):
            b(f"v_dot2_f32_bf16 v{32 + (i & 1)}, v{16+i}, s60, v{32 + (i & 1)}")
            b(f"v_dot2_f32_bf16 v{34 + (i & 1)}, v{16+i}, v{16+i}, v{34 + (i & 1)}")
        b("s_mov_b32 s61, 0xffff0000")
        for i in range(4):
            b(f"v_lshlrev_b32 v{64+2*i}, 16, v{16+i}")
            b(f"v_and_b32 v{65+2*i}, s61, v{16+i}")
        b("v_add_f32 v32, v32, v33")
        b("v_add_f32 v34, v34, v35")
        for n, sh in enumerate((8, 4, 2, 1)):
            for i in range(4 + 3*n, 7 + 3*n):
                b(f"v_lshlrev_b32 v{64+2*i}, 16, v{16+i}")
                b(f"v_and_b32 v{65+2*i}, s61, v{16+i}")
            b(f"v_add_f32_dpp v32, v32, v32 row_ror:{sh} row_mask:0xf bank_mask:0xf")
            b(f"v_add_f32_dpp v34, v34, v34 row_ror:{sh} row_mask:0xf bank_mask:0xf")
        b(f"v_mul_f32 v32, {f32hex(1.0/512)}, v32")
        b("v_mul_f32 v33, v32, v32")
        b(f"v_mov_b32 v35, {f32hex(1.0/512)}")
        b("v_fma_f32 v34, v34, v35, -v33")
        b("v_max_f32 v34, 0, v34")
        b(f"v_add_f32 v34, {f32hex(1e-5)}, v34")
        b("v_rsq_f32 v38, v34")
        b.c("XN write addr")
        b(f"s_lshl_b32 s55, s{S_W}, 2")
        b("v_add_u32 v7, s55, v2")
        b("v_mov_b32 v39, v38")
        b("v_mul_f32 v36, v32, v38")
        b("v_sub_f32 v36, 0, v36")
        b("v_mov_b32 v37, v36")
        for i in range(16):
            b(f"v_pk_fma_f32 v[{64+2*i}:{65+2*i}], v[{64+2*i}:{65+2*i}], v[38:39], v[36:37]")
        b("v_and_b32 v8, 7, v3")
        b("v_xor_b32 v7, v7, v8")
        b("v_lshlrev_b32 v7, 4, v7")
        b("v_lshrrev_b32 v8, 1, v3")
        b("v_lshl_add_u32 v7, v8, 10, v7")
        b("v_and_b32 v8, 1, v3")
        b("v_lshl_add_u32 v7, v8, 9, v7")
        for i in range(4):
            for e in range(4):
                b(f"v_cvt_pk_bf16_f32 v{16+4*i+e}, v{64+8*i+2*e}, v{65+8*i+2*e}")
            b(f"ds_write_b128 v7, v[{16+4*i}:{19+4*i}] offset:{L_XN + i*8192}")

    a.L.extend(b.L)
    wq_dma(1); wq_dma(2)
    a("v_lshrrev_b32 v8, 5, v0")
    a("v_and_b32 v9, 31, v0")
    for m in range(4):
        a(f"v_add_u32 v10, {2*m}, v8")
        a("v_xor_b32 v10, v9, v10")
        a("v_lshlrev_b32 v10, 4, v10")
        a(f"v_lshl_add_u32 v{40+m}, v8, 9, v10")
    a("v_lshrrev_b32 v10, 2, v3")
    a("v_and_b32 v11, 3, v3")
    a("v_lshl_add_u32 v12, v8, 3, v10")
    a.c("wq fragment rows 0..15 = head 2p, rows 16..31 = head 2p+1 ; chunk = 4p + 2blk + (cg>>1), swizzled by r4<<2")
    a(f"s_and_b32 s55, s{S_W}, 3")
    a("s_lshl_b32 s55, s55, 2")
    a("v_lshrrev_b32 v13, 1, v11")
    a("v_add_u32 v13, s55, v13")
    a("v_and_b32 v14, 1, v2")
    a("v_lshl_add_u32 v13, v14, 1, v13")
    a("v_lshlrev_b32 v14, 2, v10")
    a("v_xor_b32 v13, v13, v14")
    a("v_lshlrev_b32 v13, 4, v13")
    a("v_lshl_add_u32 v13, v12, 8, v13")
    a("v_and_b32 v14, 1, v11")
    a("v_lshl_add_u32 v13, v14, 3, v13")
    a(f"s_lshr_b32 s55, s{S_W}, 2")
    a("s_lshl_b32 s55, s55, 12")
    a(f"s_add_u32 s55, s55, {L_WQ}")
    a("v_add_u32 v44, s55, v13")
    stamp(a, "p0")
    a("s_waitcnt lgkmcnt(0)")
    a.c("launch tag: a fixed-point-free bijection of the tag the previous launch left (any value works)")
    a(f"s_mul_i32 s{S_NONCE}, s{S_NONCE}, 0x9E3779B1")
    a(f"s_add_u32 s{S_NONCE}, s{S_NONCE}, 0x7F4A7C15")
    a("s_barrier")
    stamp(a); stamp(a, "p0")
    lx = a.newlabel("xid")
    a(f"s_cmp_lg_u32 s{S_W}, 3")
    a(f"s_cbranch_scc1 {lx}")
    a.c("tell the other members of the group which XCD this workgroup runs on")
    a("s_getreg_b32 s55, hwreg(HW_REG_XCC_ID, 0, 4)")
    a(f"v_mov_b32 v50, s{S_NONCE}")
    a("v_mov_b32 v51, s55")
    a("v_lshlrev_b32 v52, 3, v0")
    a(f"s_lshl_b32 s55, s{S_G}, 4")
    a(f"s_add_u32 s55, s55, s{S_J}")
    a("s_lshl_b32 s55, s55, 7")
    a(f"s_add_u32 s55, s55, {FLG_X}")
    a("s_mov_b64 exec, 0xffff")
    a(f"buffer_store_dwordx2 v[50:51], v52, {WS}, s55 offen sc1")
    a("s_mov_b64 exec, -1")
    a.label(lx)
    lkvd = a.newlabel("kvdone"); lkv1 = a.newlabel("kv1"); lkv0 = a.newlabel("kv0")
    a(f"s_cmp_eq_u32 s{S_HQ}, 0")
    a(f"s_cbranch_scc1 {lkv0}")
    wq_dma(3)
    a("s_waitcnt vmcnt(12) lgkmcnt(0)")
    lkv2 = a.newlabel("kv2")
    a(f"s_branch {lkv2}")
    a.label(lkv0)
    a.c("tr addr: blk0 -> WV, blk1 -> WK ; row (64w + 16e + 8khalf + 4rd + r4)*32 + cg*8")
    a("v_lshlrev_b32 v13, 5, v12")
    a("v_lshl_add_u32 v13, v11, 3, v13")
    a(f"s_lshl_b32 s55, s{S_W}, 11")
    a("v_add_u32 v13, s55, v13")
    a("v_and_b32 v14, 1, v2")
    a(f"v_mov_b32 v15, {L_WV}")
    a(f"v_mov_b32 v45, {L_WK}")
    a("v_cmp_eq_u32 vcc, 1, v14")
    a("s_nop 1")
    a("v_cndmask_b32 v15, v15, v45, vcc")
    a("v_add_u32 v13, v13, v15")
    a.c("xn frags for k-steps 4w..4w+3 : s&3 = e")
    a(f"s_lshl_b32 s55, s{S_W}, 12")
    for e in range(4):
        a(f"v_add_u32 v{46+e}, s55, v{40+e}")
    for e in range(4):
        a(f"ds_read_b64_tr_b16 v[{64+4*e}:{65+4*e}], v13 offset:{e*512}")
        a(f"ds_read_b64_tr_b16 v[{66+4*e}:{67+4*e}], v13 offset:{e*512+128}")
        a(f"ds_read_b128 v[{80+4*e}:{83+4*e}], v{46+e} offset:{L_XN + e*1024}")
    for e in range(4):
        a(f"s_waitcnt lgkmcnt({9-3*e})")
        mfma(a, 96, 64 + 4 * e, 80 + 4 * e, None if e == 0 else 96)
    a.c("RED: q=0,1 -> WK + w*2048 + q*1024 ; q=2,3 -> WV + w*2048 + (q-2)*1024  (own, already consumed rows)")
    a(f"s_lshl_b32 s55, s{S_W}, 11")
    a(f"s_add_u32 s55, s55, {L_WK}")
    a("v_add_u32 v14, s55, v6")
    a(f"v_add_u32 v15, {L_WV - L_WK}, v14")
    a("s_nop 10")
    a("ds_write_b128 v14, v[96:99]")
    a("ds_write_b128 v14, v[100:103] offset:1024")
    a("ds_write_b128 v15, v[104:107]")
    a("ds_write_b128 v15, v[108:111] offset:1024")
    a.label(lkv1)
    stamp(a, "p0")
    a("s_waitcnt vmcnt(8) lgkmcnt(0)")
    a.label(lkv2)
    stamp(a, "p0")
    a("s_barrier")
    stamp(a, "p0")
    a(f"s_cmp_lg_u32 s{S_HQ}, 0")
    a(f"s_cbranch_scc1 {lkvd}")
    lv = a.newlabel("kv_v")
    a(f"s_cmp_eq_u32 s{S_W}, 1")
    a(f"s_cbranch_scc1 {lv}")
    a(f"s_cmp_lg_u32 s{S_W}, 0")
    a(f"s_cbranch_scc1 {lkvd}")
    def red8(base):
        a(f"v_add_u32 v14, {base}, v6")
        for ww in range(8):
            a(f"ds_read_b128 v[{64+8*ww}:{67+8*ww}], v14 offset:{ww*2048}")
            a(f"ds_read_b128 v[{68+8*ww}:{71+8*ww}], v14 offset:{ww*2048+1024}")
            if ww == 3: a("s_waitcnt lgkmcnt(4)")
        a("s_waitcnt lgkmcnt(0)")
        for ww in range(1, 8):
            for i in range(4):
                a(f"v_pk_add_f32 v[{64+2*i}:{65+2*i}], v[{64+2*i}:{65+2*i}], v[{64+8*ww+2*i}:{65+8*ww+2*i}]")
        for r in range(4):
            a(f"v_cvt_pk_bf16_f32 v{76+r}, v{64+2*r}, v{65+2*r}")
    red8(L_WV)
    a(f"s_lshl_b32 s55, s{S_TBK}, 10")
    a(f"s_add_u32 s55, s55, {KF}")
    a(f"buffer_store_dwordx4 v[76:79], v6, {WS}, s55 offen sc1")
    a("v_mov_b32 v80, 0")
    for r in range(4):
        a(f"v_dot2_f32_bf16 v80, v{76+r}, v{76+r}, v80")
    a("s_nop 2")
    xhalf(a, 80, 81, "v_add_f32")
    dpp_sum16(a, 80, "v_max_f32")
    xrow16(a, 80, 81, "v_max_f32")
    a(f"v_mov_b32 v{QSAVE+9}, v80")
    a(f"s_branch {lkvd}")
    a.label(lv)
    red8(L_WK)
    a("v_lshlrev_b32 v80, 5, v9")
    a("v_lshl_add_u32 v80, v8, 3, v80")
    a(f"v_add_u32 v80, {L_WK}, v80")
    a("ds_write_b64 v80, v[76:77]")
    a("ds_write_b64 v80, v[78:79] offset:16")
    a("v_lshl_add_u32 v81, v8, 2, v10")
    a("v_lshlrev_b32 v81, 5, v81")
    a("v_and_b32 v82, 1, v11")
    a("v_lshlrev_b32 v82, 1, v82")
    a("v_lshrrev_b32 v83, 1, v11")
    a("v_add_u32 v82, v82, v83")
    a("v_lshl_add_u32 v81, v82, 3, v81")
    a(f"v_add_u32 v81, {L_WK}, v81")
    a("s_waitcnt lgkmcnt(0)")
    for c2 in range(2):
        for rd in range(2):
            d = 84 + 4 * c2 + 2 * rd
            a(f"ds_read_b64_tr_b16 v[{d}:{d+1}], v81 offset:{(16*c2 + 8*rd) * 32}")
    a("v_lshl_add_u32 v82, v8, 4, v3")
    a("v_lshlrev_b32 v82, 4, v82")
    a(f"s_lshl_b32 s55, s{S_TBK}, 10")
    a(f"s_add_u32 s55, s55, {VF}")
    a("s_waitcnt lgkmcnt(0)")
    a("s_mov_b32 exec_lo, 0x0000ffff")
    a("s_mov_b32 exec_hi, 0x0000ffff")
    a(f"buffer_store_dwordx4 v[84:87], v82, {WS}, s55 offen sc1")
    a(f"buffer_store_dwordx4 v[88:91], v82, {WS}, s55 offen offset:512 sc1")
    a("s_mov_b64 exec, -1")
    a.label(lkvd)
    a("v_add_u32 v45, 1024, v44")
    stamp(a, "p0")
    def publish_kv():
        lnf = a.newlabel("noflag")
        a(f"s_cmp_lg_u32 s{S_HQ}, 0")
        a(f"s_cbranch_scc1 {lnf}")
        a(f"s_cmp_lg_u32 s{S_W}, 0")
        a(f"s_cbranch_scc1 {lnf}")
        a(f"s_lshl_b32 s55, s{S_TBK}, 7")
        a(f"s_add_u32 s55, s55, {FLG_A}")
        a("v_lshlrev_b32 v80, 3, v0")
        a(f"v_mov_b32 v{QSAVE+8}, s{S_NONCE}")
        a("s_mov_b64 exec, 0xffff")
        a(f"buffer_store_dwordx2 v[{QSAVE+8}:{QSAVE+9}], v80, {WS}, s55 offen sc1")
        a("s_mov_b64 exec, -1")
        a.label(lnf)
    ACC = 96
    NB = 3; PD = 2
    AB = [112 + 8 * i for i in range(NB)]; BB = [116 + 8 * i for i in range(NB)]
    a.c("x fragment addresses: k-step s = 2u + kh, swizzle index s&3 = (2(u&1) + kh)")
    a(f"s_lshr_b32 s55, s{S_W}, 2")
    a("s_cmp_eq_u32 s55, 0")
    a("s_cselect_b64 vcc, -1, 0")
    a("s_lshl_b32 s55, s55, 10")
    a("v_cndmask_b32 v46, v41, v40, vcc")
    a("v_cndmask_b32 v47, v43, v42, vcc")
    a("v_add_u32 v46, s55, v46")
    a("v_add_u32 v47, s55, v47")
    def issue(u):
        A = AB[u % NB]; B = BB[u % NB]
        a.lg(f"ds_read_b64_tr_b16 v[{A}:{A+1}], v44", u)
        a.lg(f"ds_read_b64_tr_b16 v[{A+2}:{A+3}], v45", u)
        a.lg(f"ds_read_b128 v[{B}:{B+3}], v{46 + (u & 1)} offset:{L_XN + u*2048}", u)
        a("v_add_u32 v44, 8192, v44"); a("v_add_u32 v45, 8192, v45")
    def quarter_wait(q):
        lk = a.newlabel("qk"); le = a.newlabel("qe")
        a(f"s_cmp_eq_u32 s{S_HQ}, 0")
        a(f"s_cbranch_scc1 {lk}")
        a(f"s_waitcnt vmcnt({4 * (3 - q)})")
        a(f"s_branch {le}")
        a.label(lk)
        if q != 2: a("s_waitcnt vmcnt(0)")
        a.label(le)
        a("s_barrier")
    a.lgq = []
    for u in range(PD): issue(u)
    for u in range(16):
        if u in (1, 4, 8, 9, 12, 15) and PROFILE and STAMPSET == "q":
            stamp(a, "q"); a.lgq = []
        if u + PD < 16:
            if u + PD == 4:
                quarter_wait(1)
                stamp(a, "p0"); a.lgq = [] if PROFILE and STAMPSET == "p0" else a.lgq
                publish_kv()
                l3 = a.newlabel("q3b")
                a(f"s_cmp_lg_u32 s{S_HQ}, 0")
                a(f"s_cbranch_scc1 {l3}")
                wq_dma(3)
                a.label(l3)
            if u + PD == 8: quarter_wait(2)
            if u + PD == 12: quarter_wait(3)
            issue(u + PD)
        a.lg_wait(u)
        mfma(a, ACC, AB[u % NB], BB[u % NB], None if u == 0 else ACC)
    stamp(a, "q")
    a.c("add the other half of the k range (wave w ^ 4); exchange through wq slot 0")
    a(f"s_lshl_b32 s55, s{S_W}, 12")
    a(f"s_add_u32 s55, s55, {L_WQ}")
    a("v_add_u32 v14, s55, v6")
    a(f"s_xor_b32 s55, s{S_W}, 4")
    a("s_lshl_b32 s55, s55, 12")
    a(f"s_add_u32 s55, s55, {L_WQ}")
    a("v_add_u32 v15, s55, v6")
    a("s_nop 9")
    for q in range(4):
        a(f"ds_write_b128 v14, v[{ACC+4*q}:{ACC+4*q+3}] offset:{q*1024}")
    a("s_waitcnt lgkmcnt(0)")
    a("s_barrier")
    stamp(a, "q")
    for q in range(4):
        a(f"ds_read_b128 v[{64+4*q}:{67+4*q}], v15 offset:{q*1024}")
    a(f"v_mov_b32 v36, {f32hex(QSCALE)}")
    a("v_mov_b32 v37, v36")
    a("s_waitcnt lgkmcnt(0)")
    for i in range(8):
        a(f"v_pk_add_f32 v[{64+2*i}:{65+2*i}], v[{64+2*i}:{65+2*i}], v[{ACC+2*i}:{ACC+2*i+1}]")
    for i in range(8):
        a(f"v_pk_mul_f32 v[{64+2*i}:{65+2*i}], v[{64+2*i}:{65+2*i}], v[36:37]")
    for r in range(8):
        a(f"v_cvt_pk_bf16_f32 v{QSAVE+r}, v{64+2*r}, v{65+2*r}")
    stamp(a); stamp(a, "p0"); stamp(a, "q")
    a("s_barrier")
    stamp(a, "p0")

L_SCR = 131072
S_JOB = 78
V_WJS, V_WJT, V_WJC = 140, 141, 142
SRD_J1, SRD_J2 = 20, 36
def wj_setup(a):
    a("v_lshrrev_b32 v143, 4, v0")
    a("v_and_b32 v144, 15, v0")
    a("v_lshrrev_b32 v145, 5, v0")
    a("v_lshrrev_b32 v146, 2, v144")
    a("v_and_b32 v147, 3, v144")
    a("v_and_b32 v148, 1, v147")
    a("v_lshlrev_b32 v148, 1, v148")
    a("v_lshrrev_b32 v149, 1, v147")
    a("v_add_u32 v148, v148, v149")
    a("v_lshlrev_b32 v148, 3, v148")
    a("v_and_b32 v149, 1, v143")
    a("v_lshl_add_u32 v150, v145, 3, v146")
    a(f"s_lshl_b32 s57, s{S_W}, 12")
    a(f"s_add_u32 s57, s57, {L_SCR}")
    a(f"s_mov_b32 s{S_JOB}, 0")
    lo = a.newlabel("wjo"); ld = a.newlabel("wjd")
    a("s_cmp_ge_u32 s2, 112")
    a(f"s_cbranch_scc1 {lo}")
    a(f"s_mov_b32 s{S_JOB}, 1")
    a("s_lshr_b32 s60, s2, 2")
    a("s_and_b32 s61, s2, 3")
    a("s_lshl_b32 s62, s61, 3")
    a(f"s_add_u32 s62, s62, s{S_W}")
    mk_srd(a, SRD_J1, P_WG, 512 * 3584)
    mk_srd(a, SRD_J2, P_WU, 512 * 3584)
    a("v_lshrrev_b32 v151, 3, v0")
    a("s_mov_b32 s63, 3584")
    a("v_mul_lo_u32 v151, v151, s63")
    a("v_and_b32 v152, 7, v0")
    a(f"v_lshl_add_u32 v{V_WJS}, v152, 4, v151")
    a("s_mul_i32 s58, s62, 57344")
    a("s_lshl_b32 s63, s60, 7")
    a("s_add_u32 s58, s58, s63")
    a("v_lshlrev_b32 v151, 7, v150")
    a("v_lshl_add_u32 v151, v149, 11, v151")
    a("v_add_u32 v151, v151, v148")
    a(f"v_add_u32 v{V_WJT}, s57, v151")
    a("s_lshl_b32 s59, s60, 7")
    a("s_add_u32 s59, s59, s62")
    a("s_lshl_b32 s59, s59, 10")
    a(f"s_add_u32 s59, s59, {WGF}")
    a("s_mul_i32 s72, s61, 112")
    a("s_lshl_b32 s63, s60, 2")
    a("s_add_u32 s72, s72, s63")
    a("s_lshl_b32 s72, s72, 7")
    a(f"s_add_u32 s72, s72, {CSP}")
    a("v_lshlrev_b32 v151, 2, v0")
    a(f"v_add_u32 v{V_WJC}, s57, v151")
    a.c("warm the L2 with the 16 source rows (one 128-byte line per row and matrix)")
    a("v_and_b32 v151, 15, v0")
    a("s_mov_b32 s63, 3584")
    a("v_mul_lo_u32 v151, v151, s63")
    a(f"buffer_load_dword v153, v151, s[{SRD_J1}:{SRD_J1+3}], s58 offen")
    a(f"buffer_load_dword v154, v151, s[{SRD_J2}:{SRD_J2+3}], s58 offen")
    a(f"s_branch {ld}")
    a.label(lo)
    a("s_cmp_ge_u32 s2, 184")
    a(f"s_cbranch_scc1 {ld}")
    a("s_sub_u32 s60, s2, 112")
    a("s_lshl_b32 s60, s60, 3")
    a(f"s_add_u32 s60, s60, s{S_W}")
    lwd = a.newlabel("wjwd")
    a("s_cmp_ge_u32 s60, 128")
    a(f"s_cbranch_scc1 {lwd}")
    a(f"s_mov_b32 s{S_JOB}, 3")
    mk_srd(a, SRD_J1, P_WO, 512 * 1024)
    a("s_lshr_b32 s61, s60, 3")
    a("s_and_b32 s62, s60, 7")
    a("v_lshrrev_b32 v151, 3, v0")
    a("v_lshlrev_b32 v151, 10, v151")
    a("v_and_b32 v152, 7, v0")
    a(f"v_lshl_add_u32 v{V_WJS}, v152, 4, v151")
    a("s_lshl_b32 s58, s61, 15")
    a("s_lshl_b32 s60, s62, 7")
    a("s_add_u32 s58, s58, s60")
    a("s_mov_b32 s69, 8192")
    a("v_lshl_add_u32 v151, v143, 3, v146")
    a("v_lshlrev_b32 v151, 7, v151")
    a("v_lshl_add_u32 v151, v147, 3, v151")
    a(f"v_add_u32 v{V_WJT}, s57, v151")
    a("s_lshl_b32 s59, s62, 6")
    a("s_add_u32 s59, s59, s61")
    a("s_lshl_b32 s59, s59, 10")
    a(f"s_add_u32 s59, s59, {WOF}")
    a("s_mov_b32 s72, 16384")
    a("v_and_b32 v151, 31, v0")
    a("v_lshlrev_b32 v151, 10, v151")
    a(f"buffer_load_dword v153, v151, s[{SRD_J1}:{SRD_J1+3}], s58 offen")
    a(f"s_branch {ld}")
    a.label(lwd)
    a(f"s_mov_b32 s{S_JOB}, 2")
    a("s_sub_u32 s60, s60, 128")
    mk_srd(a, SRD_J1, P_WD, 1792 * 1024)
    a("s_lshr_b32 s61, s60, 2")
    a("s_and_b32 s62, s60, 3")
    a("v_lshlrev_b32 v151, 10, v143")
    a(f"v_lshl_add_u32 v{V_WJS}, v144, 4, v151")
    a("s_lshl_b32 s58, s61, 14")
    a("s_lshl_b32 s60, s62, 8")
    a("s_add_u32 s58, s58, s60")
    a("s_mov_b32 s69, 4096")
    a("v_lshlrev_b32 v151, 8, v150")
    a("v_lshl_add_u32 v151, v149, 5, v151")
    a("v_add_u32 v151, v151, v148")
    a(f"v_add_u32 v{V_WJT}, s57, v151")
    a("s_lshl_b32 s59, s62, 2")
    a("s_mul_i32 s59, s59, 112")
    a("s_add_u32 s59, s59, s61")
    a("s_lshl_b32 s59, s59, 10")
    a(f"s_add_u32 s59, s59, {WDF}")
    a(f"s_mov_b32 s72, {112*1024}")
    a("v_and_b32 v151, 31, v0")
    a("v_lshrrev_b32 v152, 1, v151")
    a("v_lshlrev_b32 v152, 10, v152")
    a("v_and_b32 v151, 1, v151")
    a("v_lshl_add_u32 v151, v151, 7, v152")
    a(f"buffer_load_dword v153, v151, s[{SRD_J1}:{SRD_J1+3}], s58 offen")
    a.label(ld)

def wj_branch(a, g_code, o_code):
    lo = a.newlabel("jo"); le = a.newlabel("je")
    a(f"s_cmp_eq_u32 s{S_JOB}, 1")
    a(f"s_cbranch_scc0 {lo}")
    if g_code: g_code()
    a(f"s_branch {le}")
    a.label(lo)
    if o_code:
        a(f"s_cmp_eq_u32 s{S_JOB}, 0")
        a(f"s_cbranch_scc1 {le}")
        o_code()
    a.label(le)

def wj_issue(a, part=None):
    def g():
        for i in ([0, 1] if part is None else [part]):
            a(f"s_add_u32 m0, s57, {i*1024}")
            a(f"s_add_u32 s63, s58, {i*8*3584}")
            a(f"buffer_load_dwordx4 v{V_WJS}, s[{SRD_J1}:{SRD_J1+3}], s63 offen lds")
            a(f"s_add_u32 m0, s57, {2048 + i*1024}")
            a("s_nop 0")
            a(f"buffer_load_dwordx4 v{V_WJS}, s[{SRD_J2}:{SRD_J2+3}], s63 offen lds")
    def o():
        for i in (range(4) if part is None else [2 * part, 2 * part + 1]):
            a(f"s_add_u32 m0, s57, {i*1024}")
            a(f"s_mul_i32 s63, s69, {i}")
            a(f"s_add_u32 s63, s63, s58")
            a(f"buffer_load_dwordx4 v{V_WJS}, s[{SRD_J1}:{SRD_J1+3}], s63 offen lds")
    wj_branch(a, g, o)

def wj_read(a, n_younger):
    def rd(st, rdoff):
        def f():
            a(f"s_waitcnt vmcnt({n_younger})")
            for q in range(4):
                d = 112 + 4 * q
                a(f"ds_read_b64_tr_b16 v[{d}:{d+1}], v{V_WJT} offset:{q*st}")
                a(f"ds_read_b64_tr_b16 v[{d+2}:{d+3}], v{V_WJT} offset:{q*st + rdoff}")
        return f
    l2 = a.newlabel("jr2"); le = a.newlabel("jre")
    a(f"s_cmp_eq_u32 s{S_JOB}, 0")
    a(f"s_cbranch_scc1 {le}")
    a(f"s_cmp_eq_u32 s{S_JOB}, 2")
    a(f"s_cbranch_scc1 {l2}")
    rd(32, 512)()
    a(f"s_branch {le}")
    a.label(l2)
    rd(64, 1024)()
    a.label(le)

def wj_store(a):
    def g():
        for r in range(4):
            a(f"v_mov_b32 v{128+r}, 0x3f803f80")
        for q in range(4):
            d = 112 + 4 * q
            a(f"s_add_u32 s63, s59, {q*32768}")
            a(f"buffer_store_dwordx4 v[{d}:{d+3}], v1, {WS}, s63 offen sc1")
        for q in range(4):
            mfma(a, 160 + 16 * q, 128, 112 + 4 * q, None)
    def o():
        a("s_mov_b32 s63, s59")
        for q in range(4):
            d = 112 + 4 * q
            a(f"buffer_store_dwordx4 v[{d}:{d+3}], v1, {WS}, s63 offen sc1")
            if q < 3: a("s_add_u32 s63, s63, s72")
    wj_branch(a, g, o)

def wj_cspart(a):
    def g():
        a("s_mov_b32 exec_hi, 0")
        for q in range(4):
            a(f"ds_write_b32 v{V_WJC}, v{160 + 16 * q} offset:{q*128}")
        a("s_mov_b64 exec, -1")
    wj_branch(a, g, None)

def wj_csread(a):
    def g():
        l = a.newlabel("csr")
        a(f"s_cmp_ge_u32 s{S_W}, 2")
        a(f"s_cbranch_scc1 {l}")
        a(f"s_lshl_b32 s63, s{S_W}, 8")
        a("v_lshlrev_b32 v132, 2, v0")
        a("v_add_u32 v132, s63, v132")
        a(f"v_add_u32 v133, {L_SCR}, v132")
        for ww in range(8):
            a(f"ds_read_b32 v{112+ww}, v133 offset:{ww*4096}")
        a.label(l)
    wj_branch(a, g, None)

def wj_csstore(a):
    def g():
        l = a.newlabel("css")
        a(f"s_cmp_ge_u32 s{S_W}, 2")
        a(f"s_cbranch_scc1 {l}")
        for ww in range(1, 8):
            a(f"v_add_f32 v112, v112, v{112+ww}")
        a(f"buffer_store_dword v112, v132, {WS}, s72 offen sc1")
        a.label(l)
    wj_branch(a, g, None)

def wj_signal(a):
    l = a.newlabel("wsig")
    a(f"s_cmp_eq_u32 s{S_JOB}, 0")
    a(f"s_cbranch_scc1 {l}")
    a(f"s_cmp_lg_u32 s{S_W}, 0")
    a(f"s_cbranch_scc1 {l}")
    a("s_lshl_b32 s63, s2, 7")
    a(f"s_add_u32 s63, s63, {FLG_W}")
    set_flag(a, 63, 112)
    a.label(l)

A_Q, A_O, A_S, A_P = 4, 8, [24, 40], 56
A_K = [64, 68]
A_V = [[72, 76], [80, 84]]
A_VK, A_VV = 88, 89
A_NEG = 96
A_Q2, A_O2 = 92, 96
WO_R = 112
NG_LATE = 12
WG_R = 128
XR = 60
BOUND2 = 1600.0

def attn_tile(a, p, extra=None):
    h = p & 1; i = p >> 1
    S = A_S[h]; Q = [A_Q, A_Q2]; O = [A_O, A_O2]
    def ex(r): a(f"v_exp_f32 v{S+r}, v{S+r}")
    def cv(k): a(f"v_cvt_pk_bf16_f32 v{A_P+k}, v{S+2*k}, v{S+2*k+1}")
    a("s_waitcnt lgkmcnt(0)")
    if h == 0:
        mfma(a, A_S[1], A_K[i & 1], Q[1], None)
    else:
        mfma(a, A_S[0], A_K[(i + 1) & 1], Q[0], None)
        a(f"ds_read_b128 v[{A_K[i & 1]}:{A_K[i & 1]+3}], v{A_VK} offset:{(i+2)*1024}")
    ex(0); ex(1); ex(2); ex(3)
    cv(0)
    if h == 0:
        mfma(a, O[1], A_V[1][(i - 1) & 1], A_P + 4, O[1])
        nb = (i + 1) & 1
        a("s_mov_b64 exec, s[70:71]")
        a(f"ds_read_b128 v[{A_V[0][nb]}:{A_V[0][nb]+3}], v{A_VV} offset:{(i+1)*1024}")
        a(f"ds_read_b128 v[{A_V[1][nb]}:{A_V[1][nb]+3}], v{A_VV} offset:{(i+1)*1024 + 512}")
        a("s_mov_b64 exec, -1")
    else:
        mfma(a, O[0], A_V[1][i & 1], A_P + 4, O[0])
    if extra: extra()
    ex(4); cv(1); ex(5); ex(6); ex(7); cv(2); ex(8); cv(3)
    ex(9); ex(10); ex(11)
    mfma(a, O[h], A_V[0][i & 1], A_P, O[h])
    cv(4); ex(12); cv(5); ex(13); ex(14); ex(15); cv(6)
    cv(7)

def wave_consts(a):
    a.c("WOF + (8cq + w)*16384 -> s68")
    a(f"s_lshl_b32 s68, s{S_HQ}, 3")
    a(f"s_add_u32 s68, s68, s{S_W}")
    a("s_lshl_b32 s68, s68, 14")
    a(f"s_add_u32 s68, s68, {WOF}")
    a.c("WGF + fb*32768 -> s73, fb = 7j + w (waves 0..6; wave 7 uses fb of wave 6, harmless duplicate)")
    a(f"s_min_u32 s73, s{S_W}, 6")
    a(f"s_mul_i32 s74, s{S_J}, 7")
    a("s_add_u32 s74, s74, s73")
    a("s_lshl_b32 s73, s74, 15")
    a(f"s_add_u32 s73, s73, {WGF}")

def ld_wg(a, s, tag="WG"):
    a(f"s_add_u32 s75, s73, {(s >> 2) * 4096}")
    a.vm(f"buffer_load_dwordx4 v[{WG_R+4*s}:{WG_R+4*s+3}], v1, {WS}, s75 offen offset:{(s&3)*1024} sc1", (tag, s))
def ld_wo(a, s):
    a(f"s_add_u32 s75, s68, {(s >> 2) * 4096}")
    a.vm(f"buffer_load_dwordx4 v[{WO_R+4*s}:{WO_R+4*s+3}], v1, {WS}, s75 offen offset:{(s&3)*1024} sc1", ("WO", s))

def prefetch_lists():
    it2 = [("g", s) for s in range(7, 32)]
    it3 = [("o", s) for s in range(16)]
    return it2, it3

def kv_dma(a, st, part=None):
    if part in (None, 0):
        a(f"s_add_u32 m0, s60, {st*8192}")
        a(f"s_add_u32 s62, s60, {st*8192 + KF}")
        a(f"buffer_load_dwordx4 v1, {WS}, s62 offen sc1 lds")
        a(f"buffer_load_dwordx4 v1, {WS}, s62 offen offset:1024 sc1 lds")
    if part in (None, 1):
        a(f"s_add_u32 m0, s60, {st*8192 + 65536}")
        a(f"s_add_u32 s62, s60, {st*8192 + VF}")
        a(f"buffer_load_dwordx4 v1, {WS}, s62 offen sc1 lds")
        a(f"buffer_load_dwordx4 v1, {WS}, s62 offen offset:1024 sc1 lds")

def wready_poll(a):
    l = a.newlabel("wrq")
    a(f"s_cmp_lg_u32 s{S_W}, 0")
    a(f"s_cbranch_scc1 {l}")
    a("v_lshlrev_b32 v2, 7, v0")
    a("v_add_u32 v3, 128, v0")
    a("v_min_u32 v3, 183, v3")
    a("v_lshlrev_b32 v3, 7, v3")
    a(f"s_mov_b32 s63, {FLG_W}")
    a(f"buffer_load_dword v112, v2, {WS}, s63 offen sc1")
    a(f"s_mov_b32 s63, {FLG_W + 64*128}")
    a(f"buffer_load_dword v113, v2, {WS}, s63 offen sc1")
    a(f"s_mov_b32 s63, {FLG_W}")
    a(f"buffer_load_dword v114, v3, {WS}, s63 offen sc1")
    a.label(l)
def wready_check(a):
    l = a.newlabel("wrc"); dn = a.newlabel("wrd")
    a(f"s_cmp_lg_u32 s{S_W}, 0")
    a(f"s_cbranch_scc1 {l}")
    def test():
        a("s_waitcnt vmcnt(0)")
        a(f"v_cmp_ne_u32 vcc, s{S_NONCE}, v112")
        a(f"v_cmp_ne_u32 s[62:63], s{S_NONCE}, v113")
        a("s_nop 1")
        a("s_or_b64 s[62:63], s[62:63], vcc")
        a(f"v_cmp_ne_u32 vcc, s{S_NONCE}, v114")
        a("s_nop 4")
        a("s_or_b64 vcc, vcc, s[62:63]")
    test()
    a(f"s_cbranch_vccz {dn}")
    l2 = spin_begin(a, "wrp")
    a(f"s_mov_b32 s63, {FLG_W}")
    a(f"buffer_load_dword v112, v2, {WS}, s63 offen sc1")
    a(f"buffer_load_dword v114, v3, {WS}, s63 offen sc1")
    a(f"s_mov_b32 s63, {FLG_W + 64*128}")
    a(f"buffer_load_dword v113, v2, {WS}, s63 offen sc1")
    test()
    spin_end(a, l2, dn, 4)
    a.label(l)
    a("s_barrier")

def local_poll(a):
    a("v_lshlrev_b32 v118, 7, v0")
    a(f"s_lshl_b32 s62, s{S_G}, 11")
    a(f"s_add_u32 s62, s62, {FLG_X}")
    a("s_mov_b64 exec, 0xffff")
    a(f"buffer_load_dwordx2 v[116:117], v118, {WS}, s62 offen sc1")
    a("s_mov_b64 exec, -1")
def local_check(a):
    dn = a.newlabel("lcd")
    a(f"s_lshl_b32 s62, s{S_G}, 11")
    a(f"s_add_u32 s62, s62, {FLG_X}")
    a("s_mov_b64 exec, 0xffff")
    a("s_waitcnt vmcnt(0)")
    a(f"v_cmp_ne_u32 vcc, s{S_NONCE}, v116")
    a("s_nop 4")
    a(f"s_cbranch_vccz {dn}")
    l = spin_begin(a, "lcp")
    a(f"buffer_load_dwordx2 v[116:117], v118, {WS}, s62 offen sc1")
    a("s_waitcnt vmcnt(0)")
    a(f"v_cmp_ne_u32 vcc, s{S_NONCE}, v116")
    spin_end(a, l, dn, 4)
    a("s_getreg_b32 s62, hwreg(HW_REG_XCC_ID, 0, 4)")
    a("v_cmp_ne_u32 vcc, s62, v117")
    a(f"v_cmp_ne_u32 s[62:63], s{S_NONCE}, v116")
    a("s_mov_b64 exec, -1")
    a("s_nop 2")
    a("s_or_b64 vcc, vcc, s[62:63]")
    a("s_cmp_eq_u64 vcc, 0")
    a(f"s_cselect_b32 s{S_LOCAL}, 1, 0")

def x_residual(a):
    mk_srd(a, SRD_A, P_X, 2048 * 1024)
    a("v_and_b32 v2, 15, v0")
    a("v_lshrrev_b32 v3, 4, v0")
    a("v_lshlrev_b32 v2, 10, v2")
    a("v_lshl_add_u32 v2, v3, 3, v2")
    a(f"s_lshl_b32 s62, s{S_TBK}, 15")
    a(f"s_lshl_b32 s63, s{S_HQ}, 8")
    a("s_add_u32 s62, s62, s63")
    a(f"s_lshl_b32 s63, s{S_W}, 5")
    a("s_add_u32 s62, s62, s63")
    a.vm(f"buffer_load_dwordx2 v[{XRES}:{XRES+1}], v2, s[{SRD_A}:{SRD_A+3}], s62 offen", "XR")
    a("s_add_u32 s62, s62, 16384")
    a.vm(f"buffer_load_dwordx2 v[{XRES+2}:{XRES+3}], v2, s[{SRD_A}:{SRD_A+3}], s62 offen", "XR")
XRES = 4

def hh_prefill(a):
    l = a.newlabel("pf")
    a(f"s_cmp_eq_u32 s{S_W}, 7")
    a(f"s_cbranch_scc1 {l}")
    for r in range(4): a(f"v_mov_b32 v{96+r}, -1")
    a("s_mul_i32 s62, s74, 1024")
    a(f"s_lshl_b32 s63, s{S_G}, 2")
    a("s_mul_i32 s63, s63, 114688")
    a("s_add_u32 s62, s62, s63")
    a(f"s_add_u32 s62, s62, {HHF}")
    for tb in range(4):
        a(f"buffer_store_dwordx4 v[96:99], v1, {WS}, s62 offen sc1")
        if tb < 3: a("s_add_u32 s62, s62, 114688")
    a("s_nop 1")
    a.label(l)

def attention(a):
    a("v_lshlrev_b32 v1, 4, v0")
    for r in range(4):
        a(f"v_mov_b32 v{A_Q+r}, v{QSAVE+r}")
        a(f"v_mov_b32 v{A_Q2+r}, v{QSAVE+4+r}")
    a("s_mov_b32 s70, 0x0000ffff")
    a("s_mov_b32 s71, 0x0000ffff")
    for r in range(16):
        a(f"v_mov_b32 v{A_O+r}, 0")
        a(f"v_mov_b32 v{A_O2+r}, 0")
        a(f"v_mov_b32 v{72+r}, 0x3f803f80")
    if ZROWS:
        a("s_mov_b32 s62, 0x00110000"); a("s_mov_b32 s63, 0x00110000")
        a("v_mov_b32 v91, 0")
        for r in range(16): a(f"v_cndmask_b32 v{72+r}, v91, v{72+r}, s[62:63]")
    for r in range(8):
        a(f"v_mov_b32 v{A_P+r}, 0")
    a(f"s_lshr_b32 s61, s{S_W}, 2")
    a("s_lshl_b32 s61, s61, 15")
    a(f"v_add_u32 v{A_VK}, s61, v1")
    a("v_lshrrev_b32 v90, 5, v0")
    a("v_and_b32 v91, 15, v0")
    a("v_lshl_add_u32 v90, v90, 4, v91")
    a("v_lshlrev_b32 v90, 4, v90")
    a("s_add_u32 s61, s61, 65536")
    a(f"v_add_u32 v{A_VV}, s61, v90")
    wave_consts(a)
    wj_setup(a)
    a("v_mov_b32 v90, 0")
    a("v_mov_b32 v2, 0")
    for r in range(4):
        a(f"v_dot2_f32_bf16 v90, v{A_Q+r}, v{A_Q+r}, v90")
        a(f"v_dot2_f32_bf16 v2, v{A_Q2+r}, v{A_Q2+r}, v2")
    a(f"s_lshr_b32 s60, s{S_W}, 2")
    a("s_lshl_b32 s60, s60, 4")
    a(f"s_and_b32 s61, s{S_W}, 3")
    a("s_add_u32 s60, s60, s61")
    a("s_lshl_b32 s60, s60, 11")
    xhalf(a, 90, 91, "v_add_f32")
    xhalf(a, 2, 91, "v_add_f32")
    a("v_max_f32 v90, v90, v2")
    la = a.newlabel("sa")
    a(f"s_cmp_lg_u32 s{S_W}, 0")
    a(f"s_cbranch_scc1 {la}")
    done = a.newlabel("syncA")
    a("v_lshlrev_b32 v2, 7, v0")
    a(f"s_mov_b32 s63, {FLG_A}")
    l = spin_begin(a, "pollA")
    a(f"buffer_load_dwordx2 v[112:113], v2, {WS}, s63 offen sc1")
    a("s_waitcnt vmcnt(0)")
    a(f"v_cmp_ne_u32 vcc, s{S_NONCE}, v112")
    spin_end(a, l, done, 2)
    dpp_sum16(a, 113, "v_max_f32")
    xrow16(a, 113, 91, "v_max_f32")
    xhalf(a, 113, 91, "v_max_f32")
    a(f"v_mov_b32 v91, {L_SCR + 4096 - 128}")
    a("s_mov_b64 exec, 1")
    a("ds_write_b32 v91, v113")
    a("s_mov_b64 exec, -1")
    a("s_waitcnt lgkmcnt(0)")
    a.label(la)
    a("s_barrier")
    stamp(a)
    kv_dma(a, 0)
    a(f"v_mov_b32 v91, {L_SCR + 4096 - 128}")
    a("ds_read_b32 v3, v91")
    a("s_waitcnt lgkmcnt(0)")
    a("v_mul_f32 v90, v90, v3")
    a(f"v_mov_b32 v91, {f32hex(BOUND2)}")
    a("v_cmp_gt_f32 vcc, v90, v91")
    a.c("workgroup-wide vote: any row that might leave the safe range sends the whole workgroup to the max-subtracting path")
    a("s_nop 4")
    a("s_cmp_lg_u64 vcc, 0")
    a("s_cselect_b32 s61, 1, 0")
    a("v_mov_b32 v90, s61")
    a(f"s_lshl_b32 s61, s{S_W}, 2")
    a(f"s_add_u32 s61, s61, {L_SCR + 4096 - 64}")
    a("v_mov_b32 v91, s61")
    a("s_mov_b64 exec, 1")
    a("ds_write_b32 v91, v90")
    a("s_mov_b64 exec, -1")
    a("s_waitcnt vmcnt(0) lgkmcnt(0)")
    a("s_barrier")
    a(f"v_mov_b32 v91, {L_SCR + 4096 - 64}")
    a("ds_read_b128 v[112:115], v91")
    a("ds_read_b128 v[116:119], v91 offset:16")
    a(f"ds_read_b128 v[{A_K[0]}:{A_K[0]+3}], v{A_VK}")
    a(f"ds_read_b128 v[{A_K[1]}:{A_K[1]+3}], v{A_VK} offset:1024")
    a("s_mov_b64 exec, s[70:71]")
    a(f"ds_read_b128 v[{A_V[0][0]}:{A_V[0][0]+3}], v{A_VV}")
    a(f"ds_read_b128 v[{A_V[1][0]}:{A_V[1][0]+3}], v{A_VV} offset:512")
    a("s_mov_b64 exec, -1")
    a("s_waitcnt lgkmcnt(0)")
    a("v_or3_b32 v112, v112, v113, v114")
    a("v_or3_b32 v116, v116, v117, v118")
    a("v_or3_b32 v112, v112, v115, v119")
    a("v_or_b32 v112, v112, v116")
    a("s_barrier")
    a("v_readfirstlane_b32 s61, v112")
    lslow = a.newlabel("slow"); lepi = a.newlabel("attn_epi")
    a("s_nop 3")
    a("s_cmp_lg_u32 s61, 0")
    a(f"s_cbranch_scc1 {lslow}")
    stamp(a)
    mfma(a, A_S[0], A_K[0], A_Q, None)
    it_pref = [("g", s) for s in range(NG_LATE, 32)] + [("o", s) for s in range(16)]
    NPF0, NPF1 = 36, 62
    a("s_nop 15")
    a.vm_reset()
    def extra_for(t):
        def f():
            if t in (0, 1): kv_dma(a, 1, t)
            if t in (2, 3): wj_issue(a, t - 2)
            if t in (4, 5): kv_dma(a, 2, t - 4)
            if t in (6, 7): kv_dma(a, 3, t - 6)
            if t == 12: wj_read(a, 8)
            if t == 13: wj_store(a)
            if t == 15: wj_cspart(a)
            if t == 16: wj_csread(a)
            if t == 17: wj_csstore(a)
            if t == 33: wready_poll(a); local_poll(a)
            if t == 36: local_check(a)
            if NPF0 <= t < NPF1:
                k0 = (t - NPF0) * len(it_pref) // (NPF1 - NPF0); k1 = (t + 1 - NPF0) * len(it_pref) // (NPF1 - NPF0)
                for k, s in it_pref[k0:k1]:
                    (ld_wg if k == "g" else ld_wo)(a, s)
            if SENT_D and t == 40: hh_prefill(a)
            if t == 62: x_residual(a)
        return f
    for t in range(64):
        p = t & 15
        if t in (0, 4, 8, 12, 16, 20, 24, 28, 32, 36, 40, 48, 56, 63): stamp(a, "attn")
        if t > 0 and t % 4 == 0 and (t % BAR_EVERY == 0 or t in (12, 16, 24, 36)):
            if t == 12:
                a("s_waitcnt vmcnt(8)")
            if t == 16:
                a("s_waitcnt lgkmcnt(0)")
            if t == 24:
                a("s_waitcnt vmcnt(0)")
            if t == 36:
                wready_check(a)
            else:
                a("s_barrier")
            if t == 24:
                wj_signal(a)
        if PRIO:
            a(f"s_setprio {3 - (t & 3)}")
        if ALTP and t % ALTP == 0:
            hi_first = (t // ALTP) & 1
            l1 = a.newlabel("ap"); l2 = a.newlabel("aq")
            a(f"s_cmp_lt_u32 s{S_W}, 4")
            a(f"s_cbranch_scc1 {l1}")
            a(f"s_setprio {1 - hi_first}")
            a(f"s_branch {l2}")
            a.label(l1)
            a(f"s_setprio {hi_first}")
            a.label(l2)
        attn_tile(a, p, extra_for(t))
        if p == 15 and t < 63:
            a(f"v_add_u32 v{A_VK}, 8192, v{A_VK}")
            a(f"v_add_u32 v{A_VV}, 8192, v{A_VV}")
    if PRIO or ALTP: a("s_setprio 0")
    a("s_nop 1")
    mfma(a, A_O2, A_V[1][1], A_P + 4, A_O2)
    a(f"s_branch {lepi}")
    a.label(lslow)
    for st in range(1, 4):
        kv_dma(a, st)
    wj_issue(a)
    wj_read(a, 0)
    a("s_waitcnt lgkmcnt(0)")
    wj_store(a)
    a("s_nop 15")
    wj_cspart(a)
    a("s_waitcnt vmcnt(0) lgkmcnt(0)")
    a("s_barrier")
    wj_csread(a)
    a("s_waitcnt lgkmcnt(0)")
    wj_csstore(a)
    a("s_waitcnt vmcnt(0)")
    a("s_barrier")
    wj_signal(a)
    NEG = [112, 128]
    for h in range(2):
        Qh = [A_Q, A_Q2][h]
        a(f"v_mov_b32 v{2+h}, 0xff800000")
        a(f"v_mov_b32 v90, v{A_VK}")
        a("s_mov_b32 s55, 0")
        l1 = a.newlabel("s1")
        a.label(l1)
        a(f"ds_read_b128 v[{A_K[0]}:{A_K[0]+3}], v90")
        a("s_waitcnt lgkmcnt(0)")
        mfma(a, A_S[0], A_K[0], Qh, None)
        a("s_nop 15")
        for r in range(8):
            a(f"v_max3_f32 v{2+h}, v{A_S[0]+2*r}, v{A_S[0]+2*r+1}, v{2+h}")
        a("v_add_u32 v90, 1024, v90")
        a("s_add_u32 s55, s55, 1")
        a("s_cmp_lt_u32 s55, 32")
        a(f"s_cbranch_scc1 {l1}")
        xhalf(a, 2 + h, 91, "v_max_f32")
    a.c("the other half of the keys belongs to wave w ^ 4: exchange the maxima")
    a(f"s_lshl_b32 s55, s{S_W}, 12")
    a(f"s_add_u32 s55, s55, {L_SCR}")
    a("v_lshlrev_b32 v90, 3, v0")
    a("v_add_u32 v91, s55, v90")
    a("ds_write_b64 v91, v[2:3]")
    a(f"s_xor_b32 s55, s{S_W}, 4")
    a("s_lshl_b32 s55, s55, 12")
    a(f"s_add_u32 s55, s55, {L_SCR}")
    a("v_add_u32 v91, s55, v90")
    a("s_waitcnt lgkmcnt(0)")
    a("s_barrier")
    a("ds_read_b64 v[90:91], v91")
    a("s_waitcnt lgkmcnt(0)")
    a("v_max_f32 v2, v2, v90")
    a("v_max_f32 v3, v3, v91")
    for h in range(2):
        for r in range(16):
            a(f"v_sub_f32 v{NEG[h]+r}, 0, v{2+h}")
    for h in range(2):
        Qh = [A_Q, A_Q2][h]; Oh = [A_O, A_O2][h]
        a(f"v_mov_b32 v90, v{A_VK}")
        a(f"v_mov_b32 v91, v{A_VV}")
        a("s_mov_b32 s55, 0")
        l2 = a.newlabel("s2")
        a.label(l2)
        a(f"ds_read_b128 v[{A_K[0]}:{A_K[0]+3}], v90")
        a("s_mov_b64 exec, s[70:71]")
        a(f"ds_read_b128 v[{A_V[0][0]}:{A_V[0][0]+3}], v91")
        a(f"ds_read_b128 v[{A_V[1][0]}:{A_V[1][0]+3}], v91 offset:512")
        a("s_mov_b64 exec, -1")
        a("s_waitcnt lgkmcnt(0)")
        mfma(a, A_S[0], A_K[0], Qh, NEG[h])
        a("s_nop 15")
        for r in range(16):
            a(f"v_exp_f32 v{A_S[0]+r}, v{A_S[0]+r}")
        a("s_nop 0")
        for k in range(8):
            a(f"v_cvt_pk_bf16_f32 v{A_P+k}, v{A_S[0]+2*k}, v{A_S[0]+2*k+1}")
        a("s_nop 1")
        mfma(a, Oh, A_V[0][0], A_P, Oh)
        mfma(a, Oh, A_V[1][0], A_P + 4, Oh)
        a("v_add_u32 v90, 1024, v90")
        a("v_add_u32 v91, 1024, v91")
        a("s_add_u32 s55, s55, 1")
        a("s_cmp_lt_u32 s55, 32")
        a(f"s_cbranch_scc1 {l2}")
    a("s_nop 15")
    a("s_barrier")
    if SENT_D: hh_prefill(a)
    wready_poll(a)
    local_poll(a)
    wready_check(a)
    local_check(a)
    sv = list(a.vmq)
    for k, s in it_pref:
        (ld_wg if k == "g" else ld_wo)(a, s)
    x_residual(a)
    a.vmq = sv
    a.label(lepi)
    stamp(a)
    a.c("wave kh finishes head 2p + kh: it hands the partial sums of the other head to wave w ^ 4")
    a(f"s_lshl_b32 s60, s{S_W}, 12")
    a(f"s_add_u32 s60, s60, {L_SCR}")
    a("v_add_u32 v90, s60, v1")
    a(f"s_xor_b32 s60, s{S_W}, 4")
    a("s_lshl_b32 s60, s60, 12")
    a(f"s_add_u32 s60, s60, {L_SCR}")
    a("v_add_u32 v91, s60, v1")
    a("s_nop 9")
    lk1 = a.newlabel("kh1"); lk2 = a.newlabel("khj")
    a(f"s_cmp_ge_u32 s{S_W}, 4")
    a(f"s_cbranch_scc1 {lk1}")
    for q in range(3):
        a(f"ds_write_b128 v90, v[{A_O2+4*q}:{A_O2+4*q+3}] offset:{q*1024}")
    a(f"s_branch {lk2}")
    a.label(lk1)
    for q in range(3):
        a(f"ds_write_b128 v90, v[{A_O+4*q}:{A_O+4*q+3}] offset:{q*1024}")
    for r in range(9):
        a(f"v_mov_b32 v{A_O+r}, v{A_O2+r}")
    a.label(lk2)
    a("s_waitcnt lgkmcnt(0)")
    a("s_barrier")
    for q in range(3):
        a(f"ds_read_b128 v[{24+4*q}:{27+4*q}], v91 offset:{q*1024}")
    a("s_waitcnt lgkmcnt(0)")
    for i in range(4):
        a(f"v_pk_add_f32 v[{A_O+2*i}:{A_O+2*i+1}], v[{A_O+2*i}:{A_O+2*i+1}], v[{24+2*i}:{25+2*i}]")
    a(f"v_add_f32 v{A_O+8}, v{A_O+8}, v32")
    a(f"v_rcp_f32 v90, v{A_O+8}")
    a("s_nop 0")
    for r in range(8):
        a(f"v_mul_f32 v{A_O+r}, v{A_O+r}, v90")
    for k in range(4):
        a(f"v_cvt_pk_bf16_f32 v{A_P+k}, v{A_O+2*k}, v{A_O+2*k+1}")
    a.c("OF + (tbk*32 + 8hq + 2p + kh)*1024")
    a(f"s_lshl_b32 s60, s{S_TBK}, 5")
    a(f"s_lshl_b32 s61, s{S_HQ}, 3")
    a("s_add_u32 s60, s60, s61")
    a(f"s_and_b32 s61, s{S_W}, 3")
    a("s_lshl_b32 s61, s61, 1")
    a("s_add_u32 s60, s60, s61")
    a(f"s_lshr_b32 s61, s{S_W}, 2")
    a("s_add_u32 s60, s60, s61")
    a("s_lshl_b32 s60, s60, 10")
    a(f"s_add_u32 s60, s60, {OF}")
    a("s_mov_b32 s54, s60")
    gstore(a, f"buffer_store_dwordx4 v[{A_P}:{A_P+3}], v1, {WS}, s60 offen", "o")
    if "o" in DOUBLE: a(f"buffer_store_dwordx4 v[{A_P}:{A_P+3}], v1, {WS}, s60 offen")

def eflag_base(a, dst):
    a(f"s_lshl_b32 s{dst}, s{S_G}, 11")
    a(f"s_add_u32 s{dst}, s{dst}, {FLG_E}")

def wg_publish(a, base, vt, younger=0):
    stamp(a, "p3")
    a(f"s_waitcnt vmcnt({younger})")
    stamp(a, "p3")
    a("s_barrier")
    l = a.newlabel("pub")
    a(f"s_cmp_lg_u32 s{S_W}, 0")
    a(f"s_cbranch_scc1 {l}")
    a(f"s_lshl_b32 s60, s{S_G}, 4")
    a(f"s_add_u32 s60, s60, s{S_J}")
    a("s_lshl_b32 s60, s60, 7")
    a(f"s_add_u32 s60, s60, {base}")
    set_flag(a, 60, vt, True)
    a.label(l)

def wg_wait(a, base, first_expr, n, vt, vo):
    l = a.newlabel("wt")
    a(f"s_cmp_lg_u32 s{S_W}, 0")
    a(f"s_cbranch_scc1 {l}")
    a(f"s_lshl_b32 s60, s{S_G}, 4")
    if first_expr is not None:
        first_expr()
    a("s_lshl_b32 s60, s60, 7")
    a(f"s_add_u32 s60, s60, {base}")
    if POLL_DELAY: a(f"s_sleep {POLL_DELAY}")
    poll_flags(a, 60, n, vt, vo, sleep=POLL_SLEEP)
    a.label(l)
    a("s_barrier")

def wave_publish(a, base, vt):
    a(f"s_lshl_b32 s60, s{S_G}, 4")
    a(f"s_add_u32 s60, s60, s{S_J}")
    a("s_lshl_b32 s60, s60, 3")
    a(f"s_add_u32 s60, s60, s{S_W}")
    a("s_lshl_b32 s60, s60, 7")
    a(f"s_add_u32 s60, s60, {base}")
    stamp(a, "p3")
    a("s_waitcnt vmcnt(0)")
    stamp(a, "p3")
    set_flag(a, 60, vt)

L3_ST = 131072 + 4096
def mfma16(a, d, A, B, c):
    cs = "0" if c is None else f"v[{c}:{c+3}]"
    a(f"v_mfma_f32_16x16x32_bf16 v[{d}:{d+3}], v[{A}:{A+3}], v[{B}:{B+3}], {cs}")

def p3(a):
    wg_publish(a, FLG_B, 28)
    stamp(a)
    def fe():
        a(f"s_lshl_b32 s61, s{S_TQ}, 2")
        a("s_add_u32 s60, s60, s61")
    wg_wait(a, FLG_B, fe, 4, 28, 30)
    stamp(a)
    a.c("o fragments -> LDS [32 heads][1024] over key tiles 0..31 (dead since the last barriers of the attention loop)")
    a(f"s_lshl_b32 s60, s{S_W}, 12")
    a("s_mov_b32 m0, s60")
    a(f"s_lshl_b32 s61, s{S_TBK}, 15")
    a("s_add_u32 s61, s61, s60")
    a(f"s_add_u32 s61, s61, {OF}")
    for e in range(4):
        a(f"buffer_load_dwordx4 v1, {WS}, s61 offen offset:{e*1024} sc1 lds")
    a.c("operand address: (g>>1)*1024 + ((g&1)*32 + (lane&15))*16")
    a("v_lshrrev_b32 v30, 5, v0")
    a("v_lshlrev_b32 v30, 10, v30")
    a("v_bfe_u32 v31, v0, 4, 1")
    a("v_lshlrev_b32 v31, 5, v31")
    a("v_and_b32 v29, 15, v0")
    a("v_add_u32 v31, v31, v29")
    a("v_lshl_add_u32 v30, v31, 4, v30")
    a("v_and_b32 v2, 31, v0")
    stamp(a, "p3")
    a("s_waitcnt vmcnt(0)")
    stamp(a, "p3")
    a("s_barrier")
    stamp(a, "p3")
    BBF = [[32 + 8 * k, 36 + 8 * k] for k in range(3)]
    a.lgq = []
    def rd(s):
        for th2 in range(2):
            r = BBF[s % 3][th2]
            a.lg(f"ds_read_b128 v[{r}:{r+3}], v30 offset:{s*2048 + th2*256}", s)
    rd(0); rd(1)
    for s in range(16):
        if s + 2 < 16: rd(s + 2)
        a.lg_wait(s)
        for th2 in range(2):
            mfma16(a, 8 + 4 * th2, WO_R + 4 * s, BBF[s % 3][th2], None if s == 0 else 8 + 4 * th2)
    stamp(a, "p3")
    a("s_mov_b32 s61, 0xffff0000")
    for i in range(4):
        a(f"v_lshlrev_b32 v{32+2*i}, 16, v{XRES+i}")
        a(f"v_and_b32 v{33+2*i}, s61, v{XRES+i}")
    a(f"s_lshl_b32 s60, s{S_TBK}, 5")
    a(f"s_lshl_b32 s61, s{S_HQ}, 3")
    a("s_add_u32 s60, s60, s61")
    a(f"s_add_u32 s60, s60, s{S_W}")
    a("s_lshl_b32 s60, s60, 10")
    a(f"s_add_u32 s60, s60, {HF}")
    a("s_nop 1")
    for i in range(4):
        a(f"v_pk_add_f32 v[{8+2*i}:{9+2*i}], v[{8+2*i}:{9+2*i}], v[{32+2*i}:{33+2*i}]")
    for i in range(4):
        a(f"v_cvt_pk_bf16_f32 v{40+i}, v{8+2*i}, v{9+2*i}")
    a("s_nop 1")
    a("v_permlane16_swap_b32 v40, v42")
    a("v_permlane16_swap_b32 v41, v43")
    a("s_nop 1")
    a("s_mov_b32 s55, s60")
    gstore(a, f"buffer_store_dwordx4 v[40:43], v1, {WS}, s60 offen", "h")
    if "h" in LOCAL_DATA:
        for r in range(4): a(f"v_mov_b32 v{12+r}, v{40+r}")
    if "h" in DOUBLE: a(f"buffer_store_dwordx4 v[40:43], v1, {WS}, s60 offen")
    stamp(a, "p3")
    a("s_mov_b32 s61, 0x3f803f80")
    a("v_mov_b32 v44, 0")
    a("v_mov_b32 v45, 0")
    for i in range(4):
        a(f"v_dot2_f32_bf16 v44, v{40+i}, s61, v44")
        a(f"v_dot2_f32_bf16 v45, v{40+i}, v{40+i}, v45")
    a("s_nop 2")
    xhalf(a, 44, 46, "v_add_f32")
    xhalf(a, 45, 46, "v_add_f32")
    a(f"s_lshl_b32 s60, s{S_W}, 8")
    a(f"s_add_u32 s60, s60, {L3_ST}")
    a("v_lshlrev_b32 v46, 3, v2")
    a("v_add_u32 v47, s60, v46")
    a("s_mov_b32 exec_hi, 0")
    a("ds_write_b64 v47, v[44:45]")
    a("s_mov_b64 exec, -1")
    a("s_waitcnt lgkmcnt(0)")
    wg_publish(a, FLG_C, 28)
    a.vm_reset()
    for s in range(NG_LATE):
        ld_wg(a, s)
    stamp(a)

L4_ST = 131072
L4_CS = 131072 + 1024
WD_R = 128
def ld_wd(a, u):
    s, ct = u >> 1, u & 1
    off = ct * 114688 + (s >> 2) * 4096
    a(f"s_add_u32 s75, s76, {off}")
    a.vm(f"buffer_load_dwordx4 v[{WD_R+4*u}:{WD_R+4*u+3}], v1, {WS}, s75 offen offset:{(s&3)*1024} sc1", ("WD", u))

def p4(a):
    a(f"s_and_b32 s77, s{S_J}, 7")
    a("s_mul_i32 s76, s77, 229376")
    a(f"s_mul_i32 s60, s{S_W}, 14336")
    a("s_add_u32 s76, s76, s60")
    a(f"s_add_u32 s76, s76, {WDF}")
    stamp(a, "p4")
    wg_wait(a, FLG_C, None, 16, 28, 5)
    stamp(a); stamp(a, "p4")
    a(f"s_lshl_b32 s62, s{S_G}, 17")
    a(f"s_lshl_b32 s63, s{S_W}, 10")
    a("s_add_u32 s62, s62, s63")
    a(f"s_add_u32 s62, s62, {HF}")
    def dma(st):
        for tb in range(4):
            off = tb * 32768 + st * 8192
            a(f"s_add_u32 m0, s63, {off}")
            a(f"s_add_u32 s64, s62, {off}")
            a.vm(f"buffer_load_dwordx4 v1, {WS}, s64 offen sc1 lds", ("H", st))
    a.vm_reset()
    dma(0)
    if "o" in LOCAL_DATA:
        clean_store(a, A_P, 54, "o")
    lhelp = a.newlabel("help"); ljoin = a.newlabel("p4join")
    a(f"s_cmp_eq_u32 s{S_W}, 7")
    a(f"s_cbranch_scc1 {lhelp}")
    sv = list(a.vmq)
    a("v_add_u32 v2, 65536, v1")
    BB = [[32 + 4 * t for t in range(4)], [48 + 4 * t for t in range(4)]]
    def breads(s):
        for tb in range(4):
            base = "v1" if tb < 2 else "v2"
            a.lg(f"ds_read_b128 v[{BB[s&1][tb]}:{BB[s&1][tb]+3}], {base} offset:{(tb&1)*32768 + s*1024}", s)
    a.lgq = []
    a.vm_wait(("H", 0))
    stamp(a, "p4")
    a("s_barrier")
    stamp(a); stamp(a, "p4")
    breads(0)
    dma(1)
    for s in range(24):
        if (s + 1) % 8 == 0:
            a.vm_wait(("H", (s + 1) // 8))
            a("s_barrier")
        if s + 1 < 24:
            breads(s + 1)
        if PRIO2 and s % 2 == 0: a(f"s_setprio {3 - ((s & 7) >> 1)}")
        a.lg_wait(s)
        for tb in range(4):
            mfma(a, 64 + 16 * tb, WG_R + 4 * s, BB[s & 1][tb], None if s == 0 else 64 + 16 * tb)
        if s == 2: dma(2)
        if s == 6: dma(3)
        if s == 20: clean_store(a, 12, 55, "h")
        if s >= 1:
            ld_wd(a, s - 1)
    a("v_and_b32 v3, 31, v0")
    a("v_lshlrev_b32 v3, 3, v3")
    a(f"v_add_u32 v3, {L4_ST}, v3")
    SL = [32 + 4 * i for i in range(8)]
    seq = [(tb, s) for tb in range(4) for s in range(24, 32)]
    def rd(k):
        tb, s = seq[k]
        base = "v1" if tb < 2 else "v2"
        r = SL[k % 8]
        a.lg(f"ds_read_b128 v[{r}:{r+3}], {base} offset:{(tb&1)*32768 + s*1024}", ("t", k))
    for k in range(4): rd(k)
    for tb in range(4):
        a.lg(f"ds_read_b64 v[{4+2*tb}:{5+2*tb}], v3 offset:{tb*256}", "st")
    a("v_lshrrev_b32 v12, 5, v0")
    a("v_lshlrev_b32 v12, 4, v12")
    a(f"s_lshl_b32 s60, s{S_W}, 7")
    a(f"s_add_u32 s60, s60, {L4_CS}")
    a("v_add_u32 v12, s60, v12")
    for q in range(4):
        a.lg(f"ds_read_b128 v[{16+4*q}:{19+4*q}], v12 offset:{q*32}", "st")
    a("s_mul_i32 s60, s74, 1024")
    a(f"s_lshl_b32 s61, s{S_G}, 2")
    a("s_mul_i32 s61, s61, 114688")
    a("s_add_u32 s60, s60, s61")
    a(f"s_add_u32 s60, s60, {HHF}")
    def epi(tb):
        A = 64 + 16 * tb; st = 4 + 2 * tb; o = 8 + 0
        L = []
        for i in range(8):
            L.append(f"v_pk_fma_f32 v[{A+2*i}:{A+2*i+1}], v[{16+2*i}:{17+2*i}], v[{st}:{st+1}], v[{A+2*i}:{A+2*i+1}] op_sel_hi:[1,0,1]")
        for i in range(4):
            L.append(f"v_pk_mul_f32 v[{A+8+2*i}:{A+9+2*i}], v[{A+8+2*i}:{A+9+2*i}], v[{st}:{st+1}] op_sel:[0,1] op_sel_hi:[1,1]")
        for r in range(8):
            L.append(f"v_max_f32 v{A+r}, 0, v{A+r}")
        for i in range(4):
            L.append(f"v_pk_mul_f32 v[{A+2*i}:{A+2*i+1}], v[{A+2*i}:{A+2*i+1}], v[{A+8+2*i}:{A+9+2*i}]")
        for i in range(4):
            L.append(f"v_cvt_pk_bf16_f32 v{A+8+i}, v{A+2*i}, v{A+2*i+1}")
        L.append(("st", f"buffer_store_dwordx4 v[{A+8}:{A+11}], v1, {WS}, s60 offen"))
        if tb < 3: L.append("s_add_u32 s60, s60, 114688")
        return L
    def emit(items):
        for ins in items:
            if isinstance(ins, tuple): gstore(a, ins[1], "g")
            else: a(ins)
    pend = []
    for k, (tb, s) in enumerate(seq):
        if k + 4 < len(seq): rd(k + 4)
        a.lg_wait(("t", k))
        mfma(a, 64 + 16 * tb, WG_R + 4 * s, SL[k % 8], 64 + 16 * tb)
        if k == 0: ld_wd(a, 23)
        if k % 8 == 2 and tb > 0:
            if tb == 1: a.lg_wait("st")
            pend = epi(tb - 1)
            a("s_nop 3")
        n = (len(pend) + 4) // 5 if (k % 8) < 7 else len(pend)
        if k % 8 >= 2 or tb == 0:
            emit(pend[:5 if (k % 8) < 7 else len(pend)]); pend = pend[5 if (k % 8) < 7 else len(pend):]
    stamp(a); stamp(a, "p4")
    if PRIO2: a("s_setprio 0")
    a("s_nop 9")
    emit(epi(3))
    for u in range(24, 28): ld_wd(a, u)
    stamp(a, "p4")
    a(f"s_branch {ljoin}")
    a.label(lhelp)
    a.vmq = list(sv)
    dma(1); dma(2); dma(3)
    a("v_lshlrev_b32 v3, 2, v0")
    a(f"s_mul_i32 s60, s{S_J}, 896")
    a(f"s_add_u32 s60, s60, {CSP}")
    for kq in range(4):
        for i in range(4):
            a.vm(f"buffer_load_dword v{32+4*kq+i}, v3, {WS}, s60 offen offset:{i*256} sc1", "cs")
        if kq < 3:
            a("s_add_u32 s60, s60, 14336")
    a.vm_wait(("H", 0))
    a("s_barrier")
    a.c("finish this workgroup's row statistics (partials of the 8 waves are in LDS) and publish them")
    a("v_and_b32 v2, 31, v0")
    a("v_lshlrev_b32 v64, 3, v2")
    a(f"v_add_u32 v65, {L3_ST}, v64")
    for ww in range(8):
        a(f"ds_read_b64 v[{66+2*ww}:{67+2*ww}], v65 offset:{ww*256}")
    a("s_waitcnt lgkmcnt(0)")
    for ww in range(1, 8):
        a(f"v_pk_add_f32 v[66:67], v[66:67], v[{66+2*ww}:{67+2*ww}]")
    a("v_lshlrev_b32 v64, 5, v2")
    a(f"s_lshl_b32 s60, s{S_TBK}, 10")
    a(f"s_lshl_b32 s61, s{S_HQ}, 3")
    a("s_add_u32 s60, s60, s61")
    a(f"s_add_u32 s60, s60, {HST}")
    a("s_mov_b32 exec_hi, 0")
    a.vm(f"buffer_store_dwordx2 v[66:67], v64, {WS}, s60 offen sc1", "hst")
    a("s_mov_b64 exec, -1")
    a.vm_wait_all()
    eflag_base(a, 60)
    a(f"s_lshl_b32 s61, s{S_J}, 7")
    a("s_add_u32 s60, s60, s61")
    set_flag(a, 60, 28)
    a("s_barrier")
    a("s_barrier")
    clean_store(a, 12, 55, "h")
    eflag_base(a, 60)
    poll_flags(a, 60, 16, 28, 2)
    a("v_lshlrev_b32 v2, 5, v0")
    a(f"s_lshl_b32 s60, s{S_G}, 12")
    a(f"s_add_u32 s60, s60, {HST}")
    for i in range(2):
        a(f"buffer_load_dwordx4 v[{8+8*i}:{11+8*i}], v2, {WS}, s60 offen offset:{i*2048} sc1")
        a(f"buffer_load_dwordx4 v[{12+8*i}:{15+8*i}], v2, {WS}, s60 offen offset:{i*2048+16} sc1")
    a.vm_wait_all()
    for i in range(2):
        b = 8 + 8 * i
        a(f"v_add_f32 v{b}, v{b}, v{b+2}")
        a(f"v_add_f32 v{b+4}, v{b+4}, v{b+6}")
        a(f"v_add_f32 v{b+1}, v{b+1}, v{b+3}")
        a(f"v_add_f32 v{b+5}, v{b+5}, v{b+7}")
        a(f"v_add_f32 v{b}, v{b}, v{b+4}")
        a(f"v_add_f32 v{b+1}, v{b+1}, v{b+5}")
        a(f"v_mul_f32 v{b}, {f32hex(1.0/512)}, v{b}")
        a(f"v_mul_f32 v{b+2}, v{b}, v{b}")
        a(f"v_mov_b32 v{b+3}, {f32hex(1.0/512)}")
        a(f"v_fma_f32 v{b+1}, v{b+1}, v{b+3}, -v{b+2}")
        a(f"v_max_f32 v{b+1}, 0, v{b+1}")
        a(f"v_add_f32 v{b+1}, {f32hex(1e-5)}, v{b+1}")
        a(f"v_rcp_f32 v{b+1}, v{b+1}")
        a(f"v_sub_f32 v{b}, 0, v{b}")
    a("v_lshlrev_b32 v4, 3, v0")
    a(f"v_add_u32 v4, {L4_ST}, v4")
    a("ds_write_b64 v4, v[8:9]")
    a("ds_write_b64 v4, v[16:17] offset:512")
    for i in range(4):
        a(f"v_add_f32 v{32+i}, v{32+i}, v{36+i}")
        a(f"v_add_f32 v{40+i}, v{40+i}, v{44+i}")
        a(f"v_add_f32 v{32+i}, v{32+i}, v{40+i}")
    a(f"v_add_u32 v3, {L4_CS}, v3")
    for i in range(3):
        a(f"ds_write_b32 v3, v{32+i} offset:{i*256}")
    a("s_mov_b32 exec_hi, 0")
    a("ds_write_b32 v3, v35 offset:768")
    a("s_mov_b64 exec, -1")
    a("s_waitcnt lgkmcnt(0)")
    a("s_barrier")
    for u in range(28):
        ld_wd(a, u)
    a.label(ljoin)
    if not SENT_D:
        wg_publish(a, FLG_D, 28, 4)
    a.vm_reset()
    stamp(a)

def p5(a):
    mk_srd(a, SRD_A, P_OUT, 2048 * 1024)
    a(f"s_lshr_b32 s72, s{S_J}, 3")
    a(f"s_lshl_b32 s61, s{S_G}, 2")
    a("s_lshl_b32 s62, s72, 1")
    a("s_add_u32 s61, s61, s62")
    a(f"s_mul_i32 s62, s{S_W}, 14336")
    a("s_mul_i32 s64, s61, 114688")
    a("s_add_u32 s64, s64, s62")
    a(f"s_add_u32 s64, s64, {HHF}")
    a("s_add_u32 s65, s64, 114688")
    a("v_lshrrev_b32 v2, 3, v0")
    a(f"s_lshl_b32 s62, s{S_W}, 3")
    a("v_add_u32 v2, s62, v2")
    a("v_and_b32 v3, 7, v0")
    a("v_lshrrev_b32 v4, 5, v2")
    a("v_lshlrev_b32 v4, 5, v4")
    a("v_lshrrev_b32 v5, 1, v3")
    a("v_add_u32 v4, v4, v5")
    a("v_lshlrev_b32 v4, 10, v4")
    a("v_and_b32 v5, 1, v3")
    a("v_lshlrev_b32 v5, 5, v5")
    a("v_and_b32 v6, 31, v2")
    a("v_add_u32 v5, v5, v6")
    a("v_lshl_add_u32 v4, v5, 4, v4")
    a("s_lshl_b32 s62, s61, 5")
    a("s_lshl_b32 s63, s77, 2")
    a("s_add_u32 s62, s62, s63")
    a("s_lshl_b32 s62, s62, 10")
    a(f"s_add_u32 s62, s62, {HF}")
    a(f"buffer_load_dwordx4 v[8:11], v4, {WS}, s62 offen sc1")
    stamp(a, "p4")
    if not SENT_D:
        wg_wait(a, FLG_D, None, 16, 28, 5)
    stamp(a); stamp(a, "p4")
    a("s_mov_b32 s62, s64"); a("s_mov_b32 s63, s65")
    retries = []
    BREG = [16, 24, 32, 40, 48, 56, 240, 248]
    ACC = 64
    a.vm_reset()
    def ldB(s):
        if s and (s & 3) == 0:
            a("s_add_u32 s64, s64, 4096"); a("s_add_u32 s65, s65, 4096")
        r = BREG[s % 8]
        a.vm(f"buffer_load_dwordx4 v[{r}:{r+3}], v1, {WS}, s64 offen offset:{(s&3)*1024} sc1", ("B", s))
        a.vm(f"buffer_load_dwordx4 v[{r+4}:{r+7}], v1, {WS}, s65 offen offset:{(s&3)*1024} sc1", ("B", s))
    if P5PRIO:
        l5 = a.newlabel("p5p")
        a(f"s_cmp_lt_u32 s{S_W}, 4")
        a(f"s_cbranch_scc1 {l5}")
        a("s_setprio 1")
        a.label(l5)
    for s in range(8):
        ldB(s)
    def check(r):
        a(f"v_max3_u32 v12, v{r}, v{r+1}, v{r+2}")
        a(f"v_max3_u32 v13, v{r+3}, v{r+4}, v{r+5}")
        a(f"v_max3_u32 v12, v{r+6}, v{r+7}, v12")
        a("v_max_u32 v12, v12, v13")
        a("v_cmp_eq_u32 vcc, -1, v12")
    stamp(a, "p5")
    for s in range(14):
        a.vm_wait(("B", s))
        if s in (0, 7): stamp(a, "p5")
        if SENT_D:
            lr = a.newlabel("rt"); lb = a.newlabel("rb")
            check(BREG[s % 8])
            a("s_nop 1")
            a(f"s_cbranch_vccnz {lr}")
            a.label(lb)
            retries.append((s, lr, lb))
        for ct in range(2):
            for tb in range(2):
                d = ACC + (ct * 2 + tb) * 16
                mfma(a, d, WD_R + (2 * s + ct) * 4, BREG[s % 8] + 4 * tb, None if s == 0 else d)
        if s + 8 < 14:
            ldB(s + 8)
    stamp(a); stamp(a, "p5")
    if PRIO2: a("s_setprio 0")
    a("v_and_b32 v12, 31, v0")
    a("v_lshrrev_b32 v13, 5, v0")
    a("v_lshlrev_b32 v13, 1, v13")
    a("v_and_b32 v14, 7, v12")
    a("v_xor_b32 v13, v13, v14")
    a("v_lshlrev_b32 v12, 8, v12")
    a(f"s_lshl_b32 s62, s{S_W}, 14")
    a("v_add_u32 v12, s62, v12")
    for k, (rg, q) in enumerate([(0, 0), (0, 1), (1, 0), (1, 1)]):
        a(f"v_xor_b32 v{16+k}, {rg*4+q}, v13")
        a(f"v_lshl_add_u32 v{16+k}, v{16+k}, 4, v12")
    if SENT_D:
        lskip = a.newlabel("rskip")
        a(f"s_branch {lskip}")
        for (s_, lr, lb) in retries:
            r = BREG[s_ % 8]
            a.label(lr)
            a(f"s_mov_b32 s79, {SPIN}")
            lp = a.newlabel("rl")
            a.label(lp)
            a("s_sleep 2")
            a(f"s_add_u32 s60, s62, {(s_ >> 2) * 4096}")
            a(f"s_add_u32 s61, s63, {(s_ >> 2) * 4096}")
            a(f"buffer_load_dwordx4 v[{r}:{r+3}], v1, {WS}, s60 offen offset:{(s_&3)*1024} sc1")
            a(f"buffer_load_dwordx4 v[{r+4}:{r+7}], v1, {WS}, s61 offen offset:{(s_&3)*1024} sc1")
            a("s_waitcnt vmcnt(0)")
            check(r)
            a("s_nop 4")
            a(f"s_cbranch_vccz {lb}")
            a("s_sub_u32 s79, s79, 1")
            a("s_cmp_lg_u32 s79, 0")
            a(f"s_cbranch_scc1 {lp}")
            a(f"s_branch {lb}")
        a.label(lskip)
        a("s_barrier")
    a("s_nop 3")
    for ct in range(2):
        for tb in range(2):
            d = ACC + (ct * 2 + tb) * 16
            for k, (rg, q) in enumerate([(0, 0), (0, 1), (1, 0), (1, 1)]):
                r = d + 8 * rg + 4 * q
                a(f"ds_write_b128 v{16+k}, v[{r}:{r+3}] offset:{ct*128 + tb*8192}")
    stamp(a, "p5")
    a("s_waitcnt lgkmcnt(0)")
    stamp(a, "p5")
    a("s_barrier")
    stamp(a, "p5")
    a("v_and_b32 v12, 7, v2")
    a("v_lshlrev_b32 v13, 1, v3")
    a("v_xor_b32 v14, v13, v12")
    a("v_or_b32 v13, 1, v13")
    a("v_xor_b32 v15, v13, v12")
    a("v_lshlrev_b32 v14, 4, v14")
    a("v_lshlrev_b32 v15, 4, v15")
    a("v_lshl_add_u32 v14, v2, 8, v14")
    a("v_lshl_add_u32 v15, v2, 8, v15")
    a("v_add_u32 v12, 65536, v14")
    a("v_add_u32 v13, 65536, v15")
    for src in range(8):
        b0, b1 = ("v14", "v15") if src < 4 else ("v12", "v13")
        a(f"ds_read_b128 v[{16+8*src}:{19+8*src}], {b0} offset:{(src&3)*16384}")
        a(f"ds_read_b128 v[{20+8*src}:{23+8*src}], {b1} offset:{(src&3)*16384}")
        if src == 3: a("s_waitcnt lgkmcnt(4)")
    a("s_mov_b32 s62, 0xffff0000")
    for i in range(4):
        a(f"v_lshlrev_b32 v{80+2*i}, 16, v{8+i}")
        a(f"v_and_b32 v{81+2*i}, s62, v{8+i}")
    a("s_waitcnt lgkmcnt(0)")
    stamp(a, "p5")
    for src in range(1, 8):
        for i in range(4):
            a(f"v_pk_add_f32 v[{16+2*i}:{17+2*i}], v[{16+2*i}:{17+2*i}], v[{16+8*src+2*i}:{17+8*src+2*i}]")
    for i in range(4):
        a(f"v_pk_add_f32 v[{16+2*i}:{17+2*i}], v[{16+2*i}:{17+2*i}], v[{80+2*i}:{81+2*i}]")
    for i in range(4):
        a(f"v_cvt_pk_bf16_f32 v{8+i}, v{16+2*i}, v{17+2*i}")
    a("v_lshlrev_b32 v4, 10, v2")
    a("v_lshl_add_u32 v4, v3, 4, v4")
    a(f"s_lshl_b32 s62, s{S_G}, 17")
    a("s_lshl_b32 s63, s72, 16")
    a("s_add_u32 s62, s62, s63")
    a("s_lshl_b32 s63, s77, 7")
    a("s_add_u32 s62, s62, s63")
    a(f"buffer_store_dwordx4 v[8:11], v4, s[{SRD_A}:{SRD_A+3}], s62 offen {OUT_FLAGS}")

def build():
    a = Asm()
    label = G.NAME + "_kernel"
    a.raw(G.HEADER.rstrip("\n"))
    a.raw("; @launch grid=(256,1,1) block=(512,1,1) lds=163840")
    a.raw('.amdgcn_target "amdgcn-amd-amdhsa--gfx950"')
    a.raw(".text")
    a.raw(f".globl {label}")
    a.raw(".p2align 8")
    a.raw(f".type {label},@function")
    a.raw(f"{label}:")
    if PROFILE:
        a("s_memtime s[98:99]")
        a("s_memrealtime s[100:101]")
        for k in range(16): a(f"s_mov_b32 s{80+k}, 0")
    G.WS_USED = WS_USED
    G.prologue(a, "L_fin")
    a(f"s_add_u32 s60, s{P_WS}, {NONCE}")
    a(f"s_addc_u32 s61, s{P_WS+1}, 0")
    a(f"s_load_dword s{S_NONCE}, s[60:61], 0")
    phase0(a)
    attention(a)
    p3(a)
    p4(a)
    p5(a)
    lnn = a.newlabel("nn")
    a("s_cmp_lg_u32 s2, 0")
    a(f"s_cbranch_scc1 {lnn}")
    a(f"s_cmp_lg_u32 s{S_W}, 0")
    a(f"s_cbranch_scc1 {lnn}")
    a(f"s_mov_b32 s62, {NONCE}")
    set_flag(a, 62, 28)
    a.label(lnn)
    if PROFILE:
        a(f"s_cmp_lg_u32 s{S_W}, {PROF_WAVE}")
        a("s_cbranch_scc1 L_fin")
        a("s_waitcnt vmcnt(0) lgkmcnt(0)")
        a("s_memtime s[96:97]")
        a("s_memrealtime s[54:55]")
        a("s_waitcnt lgkmcnt(0)")
        for k in range(16):
            a(f"s_sub_u32 s{80+k}, s{80+k}, s98")
            a(f"v_mov_b32 v{k}, s{80+k}")
        a("s_sub_u32 s96, s96, s98")
        a("s_sub_u32 s54, s54, s100")
        a("v_mov_b32 v16, s96")
        a("v_mov_b32 v17, s54")
        a("v_mov_b32 v18, s100")
        a("s_getreg_b32 s62, hwreg(HW_REG_XCC_ID, 0, 4)")
        a(f"s_lshl_b32 s63, s{S_LOCAL}, 8")
        a("s_or_b32 s62, s62, s63")
        a("v_mov_b32 v19, s62")
        a("s_mul_i32 s54, s2, 128")
        a(f"s_add_u32 s54, s54, {PROF}")
        a("v_mov_b32 v20, 0")
        a("s_mov_b64 exec, 1")
        for q in range(5):
            a(f"buffer_store_dwordx4 v[{4*q}:{4*q+3}], v20, {WS}, s54 offen offset:{16*q}")
    a.label("L_fin")
    a("s_endpgm")
    a.raw('.section .rodata,"a"')
    a.raw(".p2align 6")
    G.descriptor(a, label, 256)
    return a.text()

if __name__ == "__main__":
    open(sys.argv[1], "w").write(build())
```

```python
import os, sys
from asmlib import Asm
import gen as G
from gen import (S_W, S_G, S_J, S_TBK, S_HQ, S_TQ, SRD_WS, SRD_A, SRD_B, SRD_C, SRD_D, mk_srd, f32hex,
                 dpp_sum16, xhalf, xrow16, OF, HF, KF, VF, HST, CSP, WOF, WDF, WGF, HHF, QSCALE,
                 P_X, P_WQ, P_WK, P_WV, P_WO, P_WG, P_WU, P_WD, P_OUT, P_DBG, P_WS)
from kernels2 import mfma
WS = f"s[{SRD_WS}:{SRD_WS+3}]"
FLG = 0x1410000
FLG_A, FLG_W, FLG_E, FLG_X = FLG, FLG + 64*128, FLG + 320*128, FLG + 576*128
FLG_B, FLG_C, FLG_D = FLG + 1024*128, FLG + 3072*128, FLG + 5120*128
NONCE = FLG + 7168*128
S_NONCE = 56
PROF = 0x1400000
WS_USED = 0x1500000
SPIN = 400000
LOCAL_NT = os.environ.get('LOCAL_NT', '0') == '1'
NOCLEAN = os.environ.get('NOCLEAN', '1') == '1'
P5PRIO = os.environ.get('P5PRIO', '0') == '1'
BAR_EVERY = int(os.environ.get('BAR_EVERY', '8'))
ALTP = int(os.environ.get('ALTP', '0'))
S_LOCAL = 69
LOCAL_OK = os.environ.get('LOCAL_OK', '1') == '1'
LOCAL_DATA = os.environ.get('LOCAL_DATA', '')
PRIO2 = os.environ.get('PRIO2', '1') == '1'
DOUBLE = os.environ.get('DOUBLE', '')
ZROWS = os.environ.get('ZROWS', '1') == '1'
OUT_FLAGS = os.environ.get('OUT_FLAGS', '')
POLL_DELAY = int(os.environ.get('POLL_DELAY', '0'))
SENT_D = os.environ.get('SENT_D', '0') == '1'
FULL_LINE = os.environ.get('FULL_LINE', '1') == '1'
POLL_SLEEP = int(os.environ.get('POLL_SLEEP', '1'))
PROFILE = G.PROFILE
PROF_WAVE = G.PROF_WAVE
PRIO = os.environ.get("PRIO", "0") == "1"
NST = [0]
STAMPSET = os.environ.get("STAMPSET", "main")
def stamp(a, kind="main"):
    if not PROFILE: return
    if kind != STAMPSET: return
    k = NST[0]; NST[0] += 1
    assert k < 16
    a("s_waitcnt lgkmcnt(0)")
    a("s_memtime s[96:97]")
    a("s_waitcnt lgkmcnt(0)")
    a(f"s_mov_b32 s{80+k}, s96")

def spin_begin(a, name):
    l = a.newlabel(name)
    a(f"s_mov_b32 s79, {SPIN}")
    a.label(l)
    return l
def spin_end(a, l, done, sleep=1):
    a("s_nop 4")
    a(f"s_cbranch_vccz {done}")
    a(f"s_sleep {sleep}")
    a("s_sub_u32 s79, s79, 1")
    a("s_cmp_lg_u32 s79, 0")
    a(f"s_cbranch_scc1 {l}")
    a.label(done)

def gstore(a, instr, kind="f"):
    if not LOCAL_OK or (kind != "f" and kind not in LOCAL_DATA):
        a(instr + " sc1"); return
    lf = a.newlabel("gl"); le = a.newlabel("ge")
    a(f"s_cmp_eq_u32 s{S_LOCAL}, 1")
    a(f"s_cbranch_scc1 {lf}")
    a(instr + " sc1")
    a(f"s_branch {le}")
    a.label(lf)
    a(instr + (" nt" if (kind != "f" and LOCAL_NT) else ""))
    a.label(le)

def clean_store(a, reg, sreg, kind):
    if kind not in LOCAL_DATA or NOCLEAN: return
    l = a.newlabel("cl")
    a(f"s_cmp_eq_u32 s{S_LOCAL}, 1")
    a(f"s_cbranch_scc0 {l}")
    a(f"buffer_store_dwordx4 v[{reg}:{reg+3}], v1, {WS}, s{sreg} offen sc1")
    a.label(l)

def poll_flags(a, soff_reg, nlanes, vtmp, voff, sleep=1, shift=7):
    done = a.newlabel("pd")
    a(f"v_lshlrev_b32 v{voff}, {shift}, v0")
    if nlanes < 64:
        a(f"s_mov_b64 exec, {hex((1 << nlanes) - 1)}")
    l = spin_begin(a, "pl")
    a(f"buffer_load_dword v{vtmp}, v{voff}, {WS}, s{soff_reg} offen sc1")
    a("s_waitcnt vmcnt(0)")
    a(f"v_cmp_ne_u32 vcc, s{S_NONCE}, v{vtmp}")
    spin_end(a, l, done, sleep)
    if nlanes < 64:
        a("s_mov_b64 exec, -1")

def set_flag(a, soff_reg, vtmp, fast_ok=False):
    a(f"v_mov_b32 v{vtmp}, s{S_NONCE}")
    if FULL_LINE:
        a(f"v_lshlrev_b32 v{vtmp+1}, 2, v0")
        a("s_mov_b32 exec_hi, 0")
    else:
        a(f"v_mov_b32 v{vtmp+1}, 0")
        a("s_mov_b64 exec, 1")
    if fast_ok:
        gstore(a, f"buffer_store_dword v{vtmp}, v{vtmp+1}, {WS}, s{soff_reg} offen")
    else:
        a(f"buffer_store_dword v{vtmp}, v{vtmp+1}, {WS}, s{soff_reg} offen sc1")
    a("s_mov_b64 exec, -1")

L_XN, L_WQ, L_WK, L_WV = 0, 32768, 131072, 147456
QSAVE = 244

def phase0(a):
    mk_srd(a, SRD_A, P_X, 2048 * 1024)
    mk_srd(a, SRD_B, P_WQ, 512 * 1024)
    a(f"s_lshl_b32 s54, s{S_TBK}, 5")
    a(f"s_lshl_b32 s55, s{S_W}, 2")
    a("s_add_u32 s54, s54, s55")
    a("v_lshrrev_b32 v2, 4, v0")
    a("v_and_b32 v3, 15, v0")
    a("v_add_u32 v4, s54, v2")
    a("v_lshlrev_b32 v4, 10, v4")
    a("v_lshl_add_u32 v4, v3, 4, v4")
    for i in range(4):
        a(f"buffer_load_dwordx4 v[{16+4*i}:{19+4*i}], v4, s[{SRD_A}:{SRD_A+3}], 0 offen offset:{256*i}")
    a("v_lshlrev_b32 v6, 4, v0")
    lskip = a.newlabel("nokv"); lj = a.newlabel("kvj")
    a(f"s_cmp_lg_u32 s{S_HQ}, 0")
    a(f"s_cbranch_scc1 {lskip}")
    mk_srd(a, SRD_C, P_WK, 16384)
    mk_srd(a, SRD_D, P_WV, 16384)
    a(f"s_lshl_b32 s60, s{S_W}, 11")
    for i in range(2):
        a(f"s_add_u32 s61, s60, {i*1024}")
        a(f"s_add_u32 m0, s61, {L_WK}")
        a("s_nop 0")
        a(f"buffer_load_dwordx4 v6, s[{SRD_C}:{SRD_C+3}], s61 offen lds")
        a(f"s_add_u32 m0, s61, {L_WV}")
        a("s_nop 0")
        a(f"buffer_load_dwordx4 v6, s[{SRD_D}:{SRD_D+3}], s61 offen lds")
    a.label(lskip)
    a("v_lshlrev_b32 v5, 2, v2")
    a("v_xor_b32 v5, v3, v5")
    a("v_lshlrev_b32 v5, 4, v5")
    a("v_lshl_add_u32 v5, v2, 10, v5")
    a(f"s_lshl_b32 s55, s{S_HQ}, 8")
    a("v_add_u32 v5, s55, v5")
    a(f"s_lshl_b32 s62, s{S_W}, 12")
    a(f"s_add_u32 s62, s62, {L_WQ}")
    a(f"s_lshl_b32 s63, s{S_W}, 14")
    def wq_dma(q):
        for i in range(4):
            a(f"s_add_u32 m0, s62, {q * 32768 + i * 1024}")
            a(f"s_add_u32 s64, s63, {(q * 128 + 4 * i) * 1024}")
            a(f"buffer_load_dwordx4 v5, s[{SRD_B}:{SRD_B+3}], s64 offen lds")
    wq_dma(0)
    stamp(a, "p0")
    a("s_waitcnt vmcnt(4)")
    stamp(a); stamp(a, "p0")
    b = Asm()
    if True:
        b("s_mov_b32 s60, 0x3f803f80")
        for r in range(4): b(f"v_mov_b32 v{32+r}, 0")
        for i in range(16):
            b(f"v_dot2_f32_bf16 v{32 + (i & 1)}, v{16+i}, s60, v{32 + (i & 1)}")
            b(f"v_dot2_f32_bf16 v{34 + (i & 1)}, v{16+i}, v{16+i}, v{34 + (i & 1)}")
        b("s_mov_b32 s61, 0xffff0000")
        for i in range(4):
            b(f"v_lshlrev_b32 v{64+2*i}, 16, v{16+i}")
            b(f"v_and_b32 v{65+2*i}, s61, v{16+i}")
        b("v_add_f32 v32, v32, v33")
        b("v_add_f32 v34, v34, v35")
        for n, sh in enumerate((8, 4, 2, 1)):
            for i in range(4 + 3*n, 7 + 3*n):
                b(f"v_lshlrev_b32 v{64+2*i}, 16, v{16+i}")
                b(f"v_and_b32 v{65+2*i}, s61, v{16+i}")
            b(f"v_add_f32_dpp v32, v32, v32 row_ror:{sh} row_mask:0xf bank_mask:0xf")
            b(f"v_add_f32_dpp v34, v34, v34 row_ror:{sh} row_mask:0xf bank_mask:0xf")
        b(f"v_mul_f32 v32, {f32hex(1.0/512)}, v32")
        b("v_mul_f32 v33, v32, v32")
        b(f"v_mov_b32 v35, {f32hex(1.0/512)}")
        b("v_fma_f32 v34, v34, v35, -v33")
        b("v_max_f32 v34, 0, v34")
        b(f"v_add_f32 v34, {f32hex(1e-5)}, v34")
        b("v_rsq_f32 v38, v34")
        b.c("XN write addr")
        b(f"s_lshl_b32 s55, s{S_W}, 2")
        b("v_add_u32 v7, s55, v2")
        b("v_mov_b32 v39, v38")
        b("v_mul_f32 v36, v32, v38")
        b("v_sub_f32 v36, 0, v36")
        b("v_mov_b32 v37, v36")
        for i in range(16):
            b(f"v_pk_fma_f32 v[{64+2*i}:{65+2*i}], v[{64+2*i}:{65+2*i}], v[38:39], v[36:37]")
        b("v_and_b32 v8, 7, v3")
        b("v_xor_b32 v7, v7, v8")
        b("v_lshlrev_b32 v7, 4, v7")
        b("v_lshrrev_b32 v8, 1, v3")
        b("v_lshl_add_u32 v7, v8, 10, v7")
        b("v_and_b32 v8, 1, v3")
        b("v_lshl_add_u32 v7, v8, 9, v7")
        for i in range(4):
            for e in range(4):
                b(f"v_cvt_pk_bf16_f32 v{16+4*i+e}, v{64+8*i+2*e}, v{65+8*i+2*e}")
            b(f"ds_write_b128 v7, v[{16+4*i}:{19+4*i}] offset:{L_XN + i*8192}")

    a.L.extend(b.L)
    wq_dma(1); wq_dma(2)
    a("v_lshrrev_b32 v8, 5, v0")
    a("v_and_b32 v9, 31, v0")
    for m in range(4):
        a(f"v_add_u32 v10, {2*m}, v8")
        a("v_xor_b32 v10, v9, v10")
        a("v_lshlrev_b32 v10, 4, v10")
        a(f"v_lshl_add_u32 v{40+m}, v8, 9, v10")
    a("v_lshrrev_b32 v10, 2, v3")
    a("v_and_b32 v11, 3, v3")
    a("v_lshl_add_u32 v12, v8, 3, v10")
    a.c("wq fragment rows 0..15 = head 2p, rows 16..31 = head 2p+1 ; chunk = 4p + 2blk + (cg>>1), swizzled by r4<<2")
    a(f"s_and_b32 s55, s{S_W}, 3")
    a("s_lshl_b32 s55, s55, 2")
    a("v_lshrrev_b32 v13, 1, v11")
    a("v_add_u32 v13, s55, v13")
    a("v_and_b32 v14, 1, v2")
    a("v_lshl_add_u32 v13, v14, 1, v13")
    a("v_lshlrev_b32 v14, 2, v10")
    a("v_xor_b32 v13, v13, v14")
    a("v_lshlrev_b32 v13, 4, v13")
    a("v_lshl_add_u32 v13, v12, 8, v13")
    a("v_and_b32 v14, 1, v11")
    a("v_lshl_add_u32 v13, v14, 3, v13")
    a(f"s_lshr_b32 s55, s{S_W}, 2")
    a("s_lshl_b32 s55, s55, 12")
    a(f"s_add_u32 s55, s55, {L_WQ}")
    a("v_add_u32 v44, s55, v13")
    stamp(a, "p0")
    a("s_waitcnt lgkmcnt(0)")
    a.c("launch tag: a fixed-point-free bijection of the tag the previous launch left (any value works)")
    a(f"s_mul_i32 s{S_NONCE}, s{S_NONCE}, 0x9E3779B1")
    a(f"s_add_u32 s{S_NONCE}, s{S_NONCE}, 0x7F4A7C15")
    a("s_barrier")
    stamp(a); stamp(a, "p0")
    lx = a.newlabel("xid")
    a(f"s_cmp_lg_u32 s{S_W}, 3")
    a(f"s_cbranch_scc1 {lx}")
    a.c("tell the other members of the group which XCD this workgroup runs on")
    a("s_getreg_b32 s55, hwreg(HW_REG_XCC_ID, 0, 4)")
    a(f"v_mov_b32 v50, s{S_NONCE}")
    a("v_mov_b32 v51, s55")
    a("v_lshlrev_b32 v52, 3, v0")
    a(f"s_lshl_b32 s55, s{S_G}, 4")
    a(f"s_add_u32 s55, s55, s{S_J}")
    a("s_lshl_b32 s55, s55, 7")
    a(f"s_add_u32 s55, s55, {FLG_X}")
    a("s_mov_b64 exec, 0xffff")
    a(f"buffer_store_dwordx2 v[50:51], v52, {WS}, s55 offen sc1")
    a("s_mov_b64 exec, -1")
    a.label(lx)
    lkvd = a.newlabel("kvdone"); lkv1 = a.newlabel("kv1"); lkv0 = a.newlabel("kv0")
    a(f"s_cmp_eq_u32 s{S_HQ}, 0")
    a(f"s_cbranch_scc1 {lkv0}")
    wq_dma(3)
    a("s_waitcnt vmcnt(12) lgkmcnt(0)")
    lkv2 = a.newlabel("kv2")
    a(f"s_branch {lkv2}")
    a.label(lkv0)
    a.c("tr addr: blk0 -> WV, blk1 -> WK ; row (64w + 16e + 8khalf + 4rd + r4)*32 + cg*8")
    a("v_lshlrev_b32 v13, 5, v12")
    a("v_lshl_add_u32 v13, v11, 3, v13")
    a(f"s_lshl_b32 s55, s{S_W}, 11")
    a("v_add_u32 v13, s55, v13")
    a("v_and_b32 v14, 1, v2")
    a(f"v_mov_b32 v15, {L_WV}")
    a(f"v_mov_b32 v45, {L_WK}")
    a("v_cmp_eq_u32 vcc, 1, v14")
    a("s_nop 1")
    a("v_cndmask_b32 v15, v15, v45, vcc")
    a("v_add_u32 v13, v13, v15")
    a.c("xn frags for k-steps 4w..4w+3 : s&3 = e")
    a(f"s_lshl_b32 s55, s{S_W}, 12")
    for e in range(4):
        a(f"v_add_u32 v{46+e}, s55, v{40+e}")
    for e in range(4):
        a(f"ds_read_b64_tr_b16 v[{64+4*e}:{65+4*e}], v13 offset:{e*512}")
        a(f"ds_read_b64_tr_b16 v[{66+4*e}:{67+4*e}], v13 offset:{e*512+128}")
        a(f"ds_read_b128 v[{80+4*e}:{83+4*e}], v{46+e} offset:{L_XN + e*1024}")
    for e in range(4):
        a(f"s_waitcnt lgkmcnt({9-3*e})")
        mfma(a, 96, 64 + 4 * e, 80 + 4 * e, None if e == 0 else 96)
    a.c("RED: q=0,1 -> WK + w*2048 + q*1024 ; q=2,3 -> WV + w*2048 + (q-2)*1024  (own, already consumed rows)")
    a(f"s_lshl_b32 s55, s{S_W}, 11")
    a(f"s_add_u32 s55, s55, {L_WK}")
    a("v_add_u32 v14, s55, v6")
    a(f"v_add_u32 v15, {L_WV - L_WK}, v14")
    a("s_nop 10")
    a("ds_write_b128 v14, v[96:99]")
    a("ds_write_b128 v14, v[100:103] offset:1024")
    a("ds_write_b128 v15, v[104:107]")
    a("ds_write_b128 v15, v[108:111] offset:1024")
    a.label(lkv1)
    stamp(a, "p0")
    a("s_waitcnt vmcnt(8) lgkmcnt(0)")
    a.label(lkv2)
    stamp(a, "p0")
    a("s_barrier")
    stamp(a, "p0")
    a(f"s_cmp_lg_u32 s{S_HQ}, 0")
    a(f"s_cbranch_scc1 {lkvd}")
    lv = a.newlabel("kv_v")
    a(f"s_cmp_eq_u32 s{S_W}, 1")
    a(f"s_cbranch_scc1 {lv}")
    a(f"s_cmp_lg_u32 s{S_W}, 0")
    a(f"s_cbranch_scc1 {lkvd}")
    def red8(base):
        a(f"v_add_u32 v14, {base}, v6")
        for ww in range(8):
            a(f"ds_read_b128 v[{64+8*ww}:{67+8*ww}], v14 offset:{ww*2048}")
            a(f"ds_read_b128 v[{68+8*ww}:{71+8*ww}], v14 offset:{ww*2048+1024}")
            if ww == 3: a("s_waitcnt lgkmcnt(4)")
        a("s_waitcnt lgkmcnt(0)")
        for ww in range(1, 8):
            for i in range(4):
                a(f"v_pk_add_f32 v[{64+2*i}:{65+2*i}], v[{64+2*i}:{65+2*i}], v[{64+8*ww+2*i}:{65+8*ww+2*i}]")
        for r in range(4):
            a(f"v_cvt_pk_bf16_f32 v{76+r}, v{64+2*r}, v{65+2*r}")
    red8(L_WV)
    a(f"s_lshl_b32 s55, s{S_TBK}, 10")
    a(f"s_add_u32 s55, s55, {KF}")
    a(f"buffer_store_dwordx4 v[76:79], v6, {WS}, s55 offen sc1")
    a("v_mov_b32 v80, 0")
    for r in range(4):
        a(f"v_dot2_f32_bf16 v80, v{76+r}, v{76+r}, v80")
    a("s_nop 2")
    xhalf(a, 80, 81, "v_add_f32")
    dpp_sum16(a, 80, "v_max_f32")
    xrow16(a, 80, 81, "v_max_f32")
    a(f"v_mov_b32 v{QSAVE+9}, v80")
    a(f"s_branch {lkvd}")
    a.label(lv)
    red8(L_WK)
    a("v_lshlrev_b32 v80, 5, v9")
    a("v_lshl_add_u32 v80, v8, 3, v80")
    a(f"v_add_u32 v80, {L_WK}, v80")
    a("ds_write_b64 v80, v[76:77]")
    a("ds_write_b64 v80, v[78:79] offset:16")
    a("v_lshl_add_u32 v81, v8, 2, v10")
    a("v_lshlrev_b32 v81, 5, v81")
    a("v_and_b32 v82, 1, v11")
    a("v_lshlrev_b32 v82, 1, v82")
    a("v_lshrrev_b32 v83, 1, v11")
    a("v_add_u32 v82, v82, v83")
    a("v_lshl_add_u32 v81, v82, 3, v81")
    a(f"v_add_u32 v81, {L_WK}, v81")
    a("s_waitcnt lgkmcnt(0)")
    for c2 in range(2):
        for rd in range(2):
            d = 84 + 4 * c2 + 2 * rd
            a(f"ds_read_b64_tr_b16 v[{d}:{d+1}], v81 offset:{(16*c2 + 8*rd) * 32}")
    a("v_lshl_add_u32 v82, v8, 4, v3")
    a("v_lshlrev_b32 v82, 4, v82")
    a(f"s_lshl_b32 s55, s{S_TBK}, 10")
    a(f"s_add_u32 s55, s55, {VF}")
    a("s_waitcnt lgkmcnt(0)")
    a("s_mov_b32 exec_lo, 0x0000ffff")
    a("s_mov_b32 exec_hi, 0x0000ffff")
    a(f"buffer_store_dwordx4 v[84:87], v82, {WS}, s55 offen sc1")
    a(f"buffer_store_dwordx4 v[88:91], v82, {WS}, s55 offen offset:512 sc1")
    a("s_mov_b64 exec, -1")
    a.label(lkvd)
    a("v_add_u32 v45, 1024, v44")
    stamp(a, "p0")
    def publish_kv():
        lnf = a.newlabel("noflag")
        a(f"s_cmp_lg_u32 s{S_HQ}, 0")
        a(f"s_cbranch_scc1 {lnf}")
        a(f"s_cmp_lg_u32 s{S_W}, 0")
        a(f"s_cbranch_scc1 {lnf}")
        a(f"s_lshl_b32 s55, s{S_TBK}, 7")
        a(f"s_add_u32 s55, s55, {FLG_A}")
        a("v_lshlrev_b32 v80, 3, v0")
        a(f"v_mov_b32 v{QSAVE+8}, s{S_NONCE}")
        a("s_mov_b64 exec, 0xffff")
        a(f"buffer_store_dwordx2 v[{QSAVE+8}:{QSAVE+9}], v80, {WS}, s55 offen sc1")
        a("s_mov_b64 exec, -1")
        a.label(lnf)
    ACC = 96
    NB = 3; PD = 2
    AB = [112 + 8 * i for i in range(NB)]; BB = [116 + 8 * i for i in range(NB)]
    a.c("x fragment addresses: k-step s = 2u + kh, swizzle index s&3 = (2(u&1) + kh)")
    a(f"s_lshr_b32 s55, s{S_W}, 2")
    a("s_cmp_eq_u32 s55, 0")
    a("s_cselect_b64 vcc, -1, 0")
    a("s_lshl_b32 s55, s55, 10")
    a("v_cndmask_b32 v46, v41, v40, vcc")
    a("v_cndmask_b32 v47, v43, v42, vcc")
    a("v_add_u32 v46, s55, v46")
    a("v_add_u32 v47, s55, v47")
    def issue(u):
        A = AB[u % NB]; B = BB[u % NB]
        a.lg(f"ds_read_b64_tr_b16 v[{A}:{A+1}], v44", u)
        a.lg(f"ds_read_b64_tr_b16 v[{A+2}:{A+3}], v45", u)
        a.lg(f"ds_read_b128 v[{B}:{B+3}], v{46 + (u & 1)} offset:{L_XN + u*2048}", u)
        a("v_add_u32 v44, 8192, v44"); a("v_add_u32 v45, 8192, v45")
    def quarter_wait(q):
        lk = a.newlabel("qk"); le = a.newlabel("qe")
        a(f"s_cmp_eq_u32 s{S_HQ}, 0")
        a(f"s_cbranch_scc1 {lk}")
        a(f"s_waitcnt vmcnt({4 * (3 - q)})")
        a(f"s_branch {le}")
        a.label(lk)
        if q != 2: a("s_waitcnt vmcnt(0)")
        a.label(le)
        a("s_barrier")
    a.lgq = []
    for u in range(PD): issue(u)
    for u in range(16):
        if u in (1, 4, 8, 9, 12, 15) and PROFILE and STAMPSET == "q":
            stamp(a, "q"); a.lgq = []
        if u + PD < 16:
            if u + PD == 4:
                quarter_wait(1)
                stamp(a, "p0"); a.lgq = [] if PROFILE and STAMPSET == "p0" else a.lgq
                publish_kv()
                l3 = a.newlabel("q3b")
                a(f"s_cmp_lg_u32 s{S_HQ}, 0")
                a(f"s_cbranch_scc1 {l3}")
                wq_dma(3)
                a.label(l3)
            if u + PD == 8: quarter_wait(2)
            if u + PD == 12: quarter_wait(3)
            issue(u + PD)
        a.lg_wait(u)
        mfma(a, ACC, AB[u % NB], BB[u % NB], None if u == 0 else ACC)
    stamp(a, "q")
    a.c("add the other half of the k range (wave w ^ 4); exchange through wq slot 0")
    a(f"s_lshl_b32 s55, s{S_W}, 12")
    a(f"s_add_u32 s55, s55, {L_WQ}")
    a("v_add_u32 v14, s55, v6")
    a(f"s_xor_b32 s55, s{S_W}, 4")
    a("s_lshl_b32 s55, s55, 12")
    a(f"s_add_u32 s55, s55, {L_WQ}")
    a("v_add_u32 v15, s55, v6")
    a("s_nop 9")
    for q in range(4):
        a(f"ds_write_b128 v14, v[{ACC+4*q}:{ACC+4*q+3}] offset:{q*1024}")
    a("s_waitcnt lgkmcnt(0)")
    a("s_barrier")
    stamp(a, "q")
    for q in range(4):
        a(f"ds_read_b128 v[{64+4*q}:{67+4*q}], v15 offset:{q*1024}")
    a(f"v_mov_b32 v36, {f32hex(QSCALE)}")
    a("v_mov_b32 v37, v36")
    a("s_waitcnt lgkmcnt(0)")
    for i in range(8):
        a(f"v_pk_add_f32 v[{64+2*i}:{65+2*i}], v[{64+2*i}:{65+2*i}], v[{ACC+2*i}:{ACC+2*i+1}]")
    for i in range(8):
        a(f"v_pk_mul_f32 v[{64+2*i}:{65+2*i}], v[{64+2*i}:{65+2*i}], v[36:37]")
    for r in range(8):
        a(f"v_cvt_pk_bf16_f32 v{QSAVE+r}, v{64+2*r}, v{65+2*r}")
    stamp(a); stamp(a, "p0"); stamp(a, "q")
    a("s_barrier")
    stamp(a, "p0")

L_SCR = 131072
S_JOB = 78
V_WJS, V_WJT, V_WJC = 140, 141, 142
SRD_J1, SRD_J2 = 20, 36
def wj_setup(a):
    a("v_lshrrev_b32 v143, 4, v0")
    a("v_and_b32 v144, 15, v0")
    a("v_lshrrev_b32 v145, 5, v0")
    a("v_lshrrev_b32 v146, 2, v144")
    a("v_and_b32 v147, 3, v144")
    a("v_and_b32 v148, 1, v147")
    a("v_lshlrev_b32 v148, 1, v148")
    a("v_lshrrev_b32 v149, 1, v147")
    a("v_add_u32 v148, v148, v149")
    a("v_lshlrev_b32 v148, 3, v148")
    a("v_and_b32 v149, 1, v143")
    a("v_lshl_add_u32 v150, v145, 3, v146")
    a(f"s_lshl_b32 s57, s{S_W}, 12")
    a(f"s_add_u32 s57, s57, {L_SCR}")
    a(f"s_mov_b32 s{S_JOB}, 0")
    lo = a.newlabel("wjo"); ld = a.newlabel("wjd")
    a("s_cmp_ge_u32 s2, 112")
    a(f"s_cbranch_scc1 {lo}")
    a(f"s_mov_b32 s{S_JOB}, 1")
    a("s_lshr_b32 s60, s2, 2")
    a("s_and_b32 s61, s2, 3")
    a("s_lshl_b32 s62, s61, 3")
    a(f"s_add_u32 s62, s62, s{S_W}")
    mk_srd(a, SRD_J1, P_WG, 512 * 3584)
    mk_srd(a, SRD_J2, P_WU, 512 * 3584)
    a("v_lshrrev_b32 v151, 3, v0")
    a("s_mov_b32 s63, 3584")
    a("v_mul_lo_u32 v151, v151, s63")
    a("v_and_b32 v152, 7, v0")
    a(f"v_lshl_add_u32 v{V_WJS}, v152, 4, v151")
    a("s_mul_i32 s58, s62, 57344")
    a("s_lshl_b32 s63, s60, 7")
    a("s_add_u32 s58, s58, s63")
    a("v_lshlrev_b32 v151, 7, v150")
    a("v_lshl_add_u32 v151, v149, 11, v151")
    a("v_add_u32 v151, v151, v148")
    a(f"v_add_u32 v{V_WJT}, s57, v151")
    a("s_lshl_b32 s59, s60, 7")
    a("s_add_u32 s59, s59, s62")
    a("s_lshl_b32 s59, s59, 10")
    a(f"s_add_u32 s59, s59, {WGF}")
    a("s_mul_i32 s72, s61, 112")
    a("s_lshl_b32 s63, s60, 2")
    a("s_add_u32 s72, s72, s63")
    a("s_lshl_b32 s72, s72, 7")
    a(f"s_add_u32 s72, s72, {CSP}")
    a("v_lshlrev_b32 v151, 2, v0")
    a(f"v_add_u32 v{V_WJC}, s57, v151")
    a(f"s_branch {ld}")
    a.label(lo)
    a("s_cmp_ge_u32 s2, 184")
    a(f"s_cbranch_scc1 {ld}")
    a("s_sub_u32 s60, s2, 112")
    a("s_lshl_b32 s60, s60, 3")
    a(f"s_add_u32 s60, s60, s{S_W}")
    lwd = a.newlabel("wjwd")
    a("s_cmp_ge_u32 s60, 128")
    a(f"s_cbranch_scc1 {lwd}")
    a(f"s_mov_b32 s{S_JOB}, 3")
    mk_srd(a, SRD_J1, P_WO, 512 * 1024)
    a("s_lshr_b32 s61, s60, 3")
    a("s_and_b32 s62, s60, 7")
    a("v_lshrrev_b32 v151, 3, v0")
    a("v_lshlrev_b32 v151, 10, v151")
    a("v_and_b32 v152, 7, v0")
    a(f"v_lshl_add_u32 v{V_WJS}, v152, 4, v151")
    a("s_lshl_b32 s58, s61, 15")
    a("s_lshl_b32 s60, s62, 7")
    a("s_add_u32 s58, s58, s60")
    a("s_mov_b32 s69, 8192")
    a("v_lshl_add_u32 v151, v143, 3, v146")
    a("v_lshlrev_b32 v151, 7, v151")
    a("v_lshl_add_u32 v151, v147, 3, v151")
    a(f"v_add_u32 v{V_WJT}, s57, v151")
    a("s_lshl_b32 s59, s62, 6")
    a("s_add_u32 s59, s59, s61")
    a("s_lshl_b32 s59, s59, 10")
    a(f"s_add_u32 s59, s59, {WOF}")
    a("s_mov_b32 s72, 16384")
    a(f"s_branch {ld}")
    a.label(lwd)
    a(f"s_mov_b32 s{S_JOB}, 2")
    a("s_sub_u32 s60, s60, 128")
    mk_srd(a, SRD_J1, P_WD, 1792 * 1024)
    a("s_lshr_b32 s61, s60, 2")
    a("s_and_b32 s62, s60, 3")
    a("v_lshlrev_b32 v151, 10, v143")
    a(f"v_lshl_add_u32 v{V_WJS}, v144, 4, v151")
    a("s_lshl_b32 s58, s61, 14")
    a("s_lshl_b32 s60, s62, 8")
    a("s_add_u32 s58, s58, s60")
    a("s_mov_b32 s69, 4096")
    a("v_lshlrev_b32 v151, 8, v150")
    a("v_lshl_add_u32 v151, v149, 5, v151")
    a("v_add_u32 v151, v151, v148")
    a(f"v_add_u32 v{V_WJT}, s57, v151")
    a("s_lshl_b32 s59, s62, 2")
    a("s_mul_i32 s59, s59, 112")
    a("s_add_u32 s59, s59, s61")
    a("s_lshl_b32 s59, s59, 10")
    a(f"s_add_u32 s59, s59, {WDF}")
    a(f"s_mov_b32 s72, {112*1024}")
    a.label(ld)

def wj_branch(a, g_code, o_code):
    lo = a.newlabel("jo"); le = a.newlabel("je")
    a(f"s_cmp_eq_u32 s{S_JOB}, 1")
    a(f"s_cbranch_scc0 {lo}")
    if g_code: g_code()
    a(f"s_branch {le}")
    a.label(lo)
    if o_code:
        a(f"s_cmp_eq_u32 s{S_JOB}, 0")
        a(f"s_cbranch_scc1 {le}")
        o_code()
    a.label(le)

def wj_issue(a, part=None):
    def g():
        for i in ([0, 1] if part is None else [part]):
            a(f"s_add_u32 m0, s57, {i*1024}")
            a(f"s_add_u32 s63, s58, {i*8*3584}")
            a(f"buffer_load_dwordx4 v{V_WJS}, s[{SRD_J1}:{SRD_J1+3}], s63 offen lds")
            a(f"s_add_u32 m0, s57, {2048 + i*1024}")
            a("s_nop 0")
            a(f"buffer_load_dwordx4 v{V_WJS}, s[{SRD_J2}:{SRD_J2+3}], s63 offen lds")
    def o():
        for i in (range(4) if part is None else [2 * part, 2 * part + 1]):
            a(f"s_add_u32 m0, s57, {i*1024}")
            a(f"s_mul_i32 s63, s69, {i}")
            a(f"s_add_u32 s63, s63, s58")
            a(f"buffer_load_dwordx4 v{V_WJS}, s[{SRD_J1}:{SRD_J1+3}], s63 offen lds")
    wj_branch(a, g, o)

def wj_read(a, n_younger):
    def rd(st, rdoff):
        def f():
            a(f"s_waitcnt vmcnt({n_younger})")
            for q in range(4):
                d = 112 + 4 * q
                a(f"ds_read_b64_tr_b16 v[{d}:{d+1}], v{V_WJT} offset:{q*st}")
                a(f"ds_read_b64_tr_b16 v[{d+2}:{d+3}], v{V_WJT} offset:{q*st + rdoff}")
        return f
    l2 = a.newlabel("jr2"); le = a.newlabel("jre")
    a(f"s_cmp_eq_u32 s{S_JOB}, 0")
    a(f"s_cbranch_scc1 {le}")
    a(f"s_cmp_eq_u32 s{S_JOB}, 2")
    a(f"s_cbranch_scc1 {l2}")
    rd(32, 512)()
    a(f"s_branch {le}")
    a.label(l2)
    rd(64, 1024)()
    a.label(le)

def wj_store(a):
    def g():
        for r in range(4):
            a(f"v_mov_b32 v{128+r}, 0x3f803f80")
        for q in range(4):
            d = 112 + 4 * q
            a(f"s_add_u32 s63, s59, {q*32768}")
            a(f"buffer_store_dwordx4 v[{d}:{d+3}], v1, {WS}, s63 offen sc1")
        for q in range(4):
            mfma(a, 160 + 16 * q, 128, 112 + 4 * q, None)
    def o():
        a("s_mov_b32 s63, s59")
        for q in range(4):
            d = 112 + 4 * q
            a(f"buffer_store_dwordx4 v[{d}:{d+3}], v1, {WS}, s63 offen sc1")
            if q < 3: a("s_add_u32 s63, s63, s72")
    wj_branch(a, g, o)

def wj_cspart(a):
    def g():
        a("s_mov_b32 exec_hi, 0")
        for q in range(4):
            a(f"ds_write_b32 v{V_WJC}, v{160 + 16 * q} offset:{q*128}")
        a("s_mov_b64 exec, -1")
    wj_branch(a, g, None)

def wj_csread(a):
    def g():
        l = a.newlabel("csr")
        a(f"s_cmp_ge_u32 s{S_W}, 2")
        a(f"s_cbranch_scc1 {l}")
        a(f"s_lshl_b32 s63, s{S_W}, 8")
        a("v_lshlrev_b32 v132, 2, v0")
        a("v_add_u32 v132, s63, v132")
        a(f"v_add_u32 v133, {L_SCR}, v132")
        for ww in range(8):
            a(f"ds_read_b32 v{112+ww}, v133 offset:{ww*4096}")
        a.label(l)
    wj_branch(a, g, None)

def wj_csstore(a):
    def g():
        l = a.newlabel("css")
        a(f"s_cmp_ge_u32 s{S_W}, 2")
        a(f"s_cbranch_scc1 {l}")
        for ww in range(1, 8):
            a(f"v_add_f32 v112, v112, v{112+ww}")
        a(f"buffer_store_dword v112, v132, {WS}, s72 offen sc1")
        a.label(l)
    wj_branch(a, g, None)

def wj_signal(a):
    l = a.newlabel("wsig")
    a(f"s_cmp_eq_u32 s{S_JOB}, 0")
    a(f"s_cbranch_scc1 {l}")
    a(f"s_cmp_lg_u32 s{S_W}, 0")
    a(f"s_cbranch_scc1 {l}")
    a("s_lshl_b32 s63, s2, 7")
    a(f"s_add_u32 s63, s63, {FLG_W}")
    set_flag(a, 63, 112)
    a.label(l)

A_Q, A_O, A_S, A_P = 4, 8, [24, 40], 56
A_K = [64, 68]
A_V = [[72, 76], [80, 84]]
A_VK, A_VV = 88, 89
A_NEG = 96
A_Q2, A_O2 = 92, 96
WO_R = 112
NG_LATE = 12
WG_R = 128
XR = 60
BOUND2 = 1600.0

def attn_tile(a, p, extra=None, t=None):
    h = p & 1; i = p >> 1
    S = A_S[h]; Q = [A_Q, A_Q2]; O = [A_O, A_O2]
    def ex(r): a(f"v_exp_f32 v{S+r}, v{S+r}")
    def cv(k): a(f"v_cvt_pk_bf16_f32 v{A_P+k}, v{S+2*k}, v{S+2*k+1}")
    a("s_waitcnt lgkmcnt(0)")
    if h == 0:
        mfma(a, A_S[1], A_K[i & 1], Q[1], None)
    else:
        mfma(a, A_S[0], A_K[(i + 1) & 1], Q[0], None)
        a(f"ds_read_b128 v[{A_K[i & 1]}:{A_K[i & 1]+3}], v{A_VK} offset:{(i+2)*1024}")
    ex(0); ex(1); ex(2); ex(3)
    cv(0)
    if h == 0:
        if t != 0: mfma(a, O[1], A_V[1][(i - 1) & 1], A_P + 4, O[1])
        nb = (i + 1) & 1
        a("s_mov_b64 exec, s[70:71]")
        a(f"ds_read_b128 v[{A_V[0][nb]}:{A_V[0][nb]+3}], v{A_VV} offset:{(i+1)*1024}")
        a(f"ds_read_b128 v[{A_V[1][nb]}:{A_V[1][nb]+3}], v{A_VV} offset:{(i+1)*1024 + 512}")
        a("s_mov_b64 exec, -1")
    else:
        mfma(a, O[0], A_V[1][i & 1], A_P + 4, O[0])
    if extra: extra()
    ex(4); cv(1); ex(5); ex(6); ex(7); cv(2); ex(8); cv(3)
    ex(9); ex(10); ex(11)
    mfma(a, O[h], A_V[0][i & 1], A_P, None if t in (0, 1) else O[h])
    cv(4); ex(12); cv(5); ex(13); ex(14); ex(15); cv(6)
    cv(7)

def wave_consts(a):
    a.c("WOF + (8cq + w)*16384 -> s68")
    a(f"s_lshl_b32 s68, s{S_HQ}, 3")
    a(f"s_add_u32 s68, s68, s{S_W}")
    a("s_lshl_b32 s68, s68, 14")
    a(f"s_add_u32 s68, s68, {WOF}")
    a.c("WGF + fb*32768 -> s73, fb = 7j + w (waves 0..6; wave 7 uses fb of wave 6, harmless duplicate)")
    a(f"s_min_u32 s73, s{S_W}, 6")
    a(f"s_mul_i32 s74, s{S_J}, 7")
    a("s_add_u32 s74, s74, s73")
    a("s_lshl_b32 s73, s74, 15")
    a(f"s_add_u32 s73, s73, {WGF}")

def ld_wg(a, s, tag="WG"):
    a(f"s_add_u32 s75, s73, {(s >> 2) * 4096}")
    a.vm(f"buffer_load_dwordx4 v[{WG_R+4*s}:{WG_R+4*s+3}], v1, {WS}, s75 offen offset:{(s&3)*1024} sc1", (tag, s))
def ld_wo(a, s):
    a(f"s_add_u32 s75, s68, {(s >> 2) * 4096}")
    a.vm(f"buffer_load_dwordx4 v[{WO_R+4*s}:{WO_R+4*s+3}], v1, {WS}, s75 offen offset:{(s&3)*1024} sc1", ("WO", s))

def prefetch_lists():
    it2 = [("g", s) for s in range(7, 32)]
    it3 = [("o", s) for s in range(16)]
    return it2, it3

def kv_dma(a, st, part=None):
    if part in (None, 0):
        a(f"s_add_u32 m0, s54, {st*8192}")
        a(f"s_add_u32 s62, s54, {st*8192 + KF}")
        a(f"buffer_load_dwordx4 v1, {WS}, s62 offen sc1 lds")
        a(f"buffer_load_dwordx4 v1, {WS}, s62 offen offset:1024 sc1 lds")
    if part in (None, 1):
        a(f"s_add_u32 m0, s54, {st*8192 + 65536}")
        a(f"s_add_u32 s62, s54, {st*8192 + VF}")
        a(f"buffer_load_dwordx4 v1, {WS}, s62 offen sc1 lds")
        a(f"buffer_load_dwordx4 v1, {WS}, s62 offen offset:1024 sc1 lds")

def wready_poll(a):
    l = a.newlabel("wrq")
    a(f"s_cmp_lg_u32 s{S_W}, 0")
    a(f"s_cbranch_scc1 {l}")
    a("v_lshlrev_b32 v2, 7, v0")
    a("v_add_u32 v3, 128, v0")
    a("v_min_u32 v3, 183, v3")
    a("v_lshlrev_b32 v3, 7, v3")
    a(f"s_mov_b32 s63, {FLG_W}")
    a(f"buffer_load_dword v112, v2, {WS}, s63 offen sc1")
    a(f"s_mov_b32 s63, {FLG_W + 64*128}")
    a(f"buffer_load_dword v113, v2, {WS}, s63 offen sc1")
    a(f"s_mov_b32 s63, {FLG_W}")
    a(f"buffer_load_dword v114, v3, {WS}, s63 offen sc1")
    a.label(l)
def wready_check(a):
    l = a.newlabel("wrc"); dn = a.newlabel("wrd")
    a(f"s_cmp_lg_u32 s{S_W}, 0")
    a(f"s_cbranch_scc1 {l}")
    def test():
        a("s_waitcnt vmcnt(0)")
        a(f"v_cmp_ne_u32 vcc, s{S_NONCE}, v112")
        a(f"v_cmp_ne_u32 s[62:63], s{S_NONCE}, v113")
        a("s_nop 1")
        a("s_or_b64 s[62:63], s[62:63], vcc")
        a(f"v_cmp_ne_u32 vcc, s{S_NONCE}, v114")
        a("s_nop 4")
        a("s_or_b64 vcc, vcc, s[62:63]")
    test()
    a(f"s_cbranch_vccz {dn}")
    l2 = spin_begin(a, "wrp")
    a(f"s_mov_b32 s63, {FLG_W}")
    a(f"buffer_load_dword v112, v2, {WS}, s63 offen sc1")
    a(f"buffer_load_dword v114, v3, {WS}, s63 offen sc1")
    a(f"s_mov_b32 s63, {FLG_W + 64*128}")
    a(f"buffer_load_dword v113, v2, {WS}, s63 offen sc1")
    test()
    spin_end(a, l2, dn, 4)
    a.label(l)
    a("s_barrier")

def local_poll(a):
    a("v_lshlrev_b32 v118, 7, v0")
    a(f"s_lshl_b32 s62, s{S_G}, 11")
    a(f"s_add_u32 s62, s62, {FLG_X}")
    a("s_mov_b64 exec, 0xffff")
    a(f"buffer_load_dwordx2 v[116:117], v118, {WS}, s62 offen sc1")
    a("s_mov_b64 exec, -1")
def local_check(a):
    dn = a.newlabel("lcd")
    a(f"s_lshl_b32 s62, s{S_G}, 11")
    a(f"s_add_u32 s62, s62, {FLG_X}")
    a("s_mov_b64 exec, 0xffff")
    a("s_waitcnt vmcnt(0)")
    a(f"v_cmp_ne_u32 vcc, s{S_NONCE}, v116")
    a("s_nop 4")
    a(f"s_cbranch_vccz {dn}")
    l = spin_begin(a, "lcp")
    a(f"buffer_load_dwordx2 v[116:117], v118, {WS}, s62 offen sc1")
    a("s_waitcnt vmcnt(0)")
    a(f"v_cmp_ne_u32 vcc, s{S_NONCE}, v116")
    spin_end(a, l, dn, 4)
    a("s_getreg_b32 s62, hwreg(HW_REG_XCC_ID, 0, 4)")
    a("v_cmp_ne_u32 vcc, s62, v117")
    a(f"v_cmp_ne_u32 s[62:63], s{S_NONCE}, v116")
    a("s_mov_b64 exec, -1")
    a("s_nop 2")
    a("s_or_b64 vcc, vcc, s[62:63]")
    a("s_cmp_eq_u64 vcc, 0")
    a(f"s_cselect_b32 s{S_LOCAL}, 1, 0")

def x_residual(a):
    mk_srd(a, SRD_A, P_X, 2048 * 1024)
    a("v_and_b32 v2, 15, v0")
    a("v_lshrrev_b32 v3, 4, v0")
    a("v_lshlrev_b32 v2, 10, v2")
    a("v_lshl_add_u32 v2, v3, 3, v2")
    a(f"s_lshl_b32 s62, s{S_TBK}, 15")
    a(f"s_lshl_b32 s63, s{S_HQ}, 8")
    a("s_add_u32 s62, s62, s63")
    a(f"s_lshl_b32 s63, s{S_W}, 5")
    a("s_add_u32 s62, s62, s63")
    a.vm(f"buffer_load_dwordx2 v[{XRES}:{XRES+1}], v2, s[{SRD_A}:{SRD_A+3}], s62 offen", "XR")
    a("s_add_u32 s62, s62, 16384")
    a.vm(f"buffer_load_dwordx2 v[{XRES+2}:{XRES+3}], v2, s[{SRD_A}:{SRD_A+3}], s62 offen", "XR")
XRES = 4

def hh_prefill(a):
    l = a.newlabel("pf")
    a(f"s_cmp_eq_u32 s{S_W}, 7")
    a(f"s_cbranch_scc1 {l}")
    for r in range(4): a(f"v_mov_b32 v{96+r}, -1")
    a("s_mul_i32 s62, s74, 1024")
    a(f"s_lshl_b32 s63, s{S_G}, 2")
    a("s_mul_i32 s63, s63, 114688")
    a("s_add_u32 s62, s62, s63")
    a(f"s_add_u32 s62, s62, {HHF}")
    for tb in range(4):
        a(f"buffer_store_dwordx4 v[96:99], v1, {WS}, s62 offen sc1")
        if tb < 3: a("s_add_u32 s62, s62, 114688")
    a("s_nop 1")
    a.label(l)

def attention(a):
    L_KM = L_SCR + 4096 - 128
    a("v_lshlrev_b32 v1, 4, v0")
    lp = a.newlabel("sa0")
    a(f"s_cmp_lg_u32 s{S_W}, 0")
    a(f"s_cbranch_scc1 {lp}")
    a("v_lshlrev_b32 v3, 7, v0")
    a(f"s_mov_b32 s55, {FLG_A}")
    a(f"buffer_load_dwordx2 v[112:113], v3, {WS}, s55 offen sc1")
    a.label(lp)
    for r in range(4):
        a(f"v_mov_b32 v{A_Q+r}, v{QSAVE+r}")
        a(f"v_mov_b32 v{A_Q2+r}, v{QSAVE+4+r}")
    a("v_mov_b32 v90, 0")
    a("v_mov_b32 v2, 0")
    for r in range(4):
        a(f"v_dot2_f32_bf16 v90, v{A_Q+r}, v{A_Q+r}, v90")
        a(f"v_dot2_f32_bf16 v2, v{A_Q2+r}, v{A_Q2+r}, v2")
    a("s_mov_b32 s70, 0x0000ffff")
    a("s_mov_b32 s71, 0x0000ffff")
    a("s_mov_b32 s62, 0x00110000" if ZROWS else "s_mov_b32 s62, -1"); a("s_mov_b32 s63, s62")
    a("v_mov_b32 v91, 0x3f803f80")
    for r in range(16): a(f"v_cndmask_b32 v{72+r}, 0, v91, s[62:63]")
    xhalf(a, 90, 91, "v_add_f32")
    xhalf(a, 2, 91, "v_add_f32")
    a("v_max_f32 v90, v90, v2")
    dpp_sum16(a, 90, "v_max_f32")
    xrow16(a, 90, 91, "v_max_f32")
    a(f"s_lshl_b32 s61, s{S_W}, 2")
    a(f"s_add_u32 s61, s61, {L_KM + 64}")
    a("v_mov_b32 v91, s61")
    a("s_mov_b64 exec, 1")
    a("ds_write_b32 v91, v90")
    a("s_mov_b64 exec, -1")
    a(f"s_lshr_b32 s61, s{S_W}, 2")
    a("s_lshl_b32 s61, s61, 15")
    a(f"v_add_u32 v{A_VK}, s61, v1")
    a("v_lshrrev_b32 v90, 5, v0")
    a("v_and_b32 v91, 15, v0")
    a("v_lshl_add_u32 v90, v90, 4, v91")
    a("v_lshlrev_b32 v90, 4, v90")
    a("s_add_u32 s61, s61, 65536")
    a(f"v_add_u32 v{A_VV}, s61, v90")
    wave_consts(a)
    a(f"s_lshr_b32 s54, s{S_W}, 2")
    a("s_lshl_b32 s54, s54, 4")
    a(f"s_and_b32 s61, s{S_W}, 3")
    a("s_add_u32 s54, s54, s61")
    a("s_lshl_b32 s54, s54, 11")
    la = a.newlabel("sa")
    a(f"s_cmp_lg_u32 s{S_W}, 0")
    a(f"s_cbranch_scc1 {la}")
    done = a.newlabel("syncA")
    a("s_waitcnt vmcnt(0)")
    a(f"v_cmp_ne_u32 vcc, s{S_NONCE}, v112")
    a("s_nop 4")
    a(f"s_cbranch_vccz {done}")
    l = spin_begin(a, "pollA")
    a(f"buffer_load_dwordx2 v[112:113], v3, {WS}, s55 offen sc1")
    a("s_waitcnt vmcnt(0)")
    a(f"v_cmp_ne_u32 vcc, s{S_NONCE}, v112")
    spin_end(a, l, done, 2)
    dpp_sum16(a, 113, "v_max_f32")
    xrow16(a, 113, 91, "v_max_f32")
    xhalf(a, 113, 91, "v_max_f32")
    a(f"v_mov_b32 v91, {L_KM}")
    a("s_mov_b64 exec, 1")
    a("ds_write_b32 v91, v113")
    a("s_mov_b64 exec, -1")
    a.label(la)
    a("s_waitcnt lgkmcnt(0)")
    a("s_barrier")
    stamp(a)
    kv_dma(a, 0)
    a.c("any row of the workgroup that might leave the safe range sends the whole workgroup to the max-subtracting path")
    a(f"v_mov_b32 v91, {L_KM}")
    a("ds_read_b32 v3, v91")
    a("ds_read_b128 v[112:115], v91 offset:64")
    a("ds_read_b128 v[116:119], v91 offset:80")
    a("s_waitcnt lgkmcnt(0)")
    a("v_max3_f32 v112, v112, v113, v114")
    a("v_max3_f32 v116, v116, v117, v118")
    a("v_max3_f32 v112, v112, v115, v119")
    a("v_max_f32 v112, v112, v116")
    a("v_mul_f32 v90, v112, v3")
    a(f"v_mov_b32 v91, {f32hex(BOUND2)}")
    a("v_cmp_gt_f32 vcc, v90, v91")
    a("s_waitcnt vmcnt(0)")
    a("s_cmp_lg_u64 vcc, 0")
    a("s_cselect_b32 s61, 1, 0")
    a("s_barrier")
    a(f"ds_read_b128 v[{A_K[0]}:{A_K[0]+3}], v{A_VK}")
    a(f"ds_read_b128 v[{A_K[1]}:{A_K[1]+3}], v{A_VK} offset:1024")
    a("s_mov_b64 exec, s[70:71]")
    a(f"ds_read_b128 v[{A_V[0][0]}:{A_V[0][0]+3}], v{A_VV}")
    a(f"ds_read_b128 v[{A_V[1][0]}:{A_V[1][0]+3}], v{A_VV} offset:512")
    a("s_mov_b64 exec, -1")
    a("s_waitcnt lgkmcnt(0)")
    lslow = a.newlabel("slow"); lepi = a.newlabel("attn_epi")
    a("s_cmp_lg_u32 s61, 0")
    a(f"s_cbranch_scc1 {lslow}")
    stamp(a)
    mfma(a, A_S[0], A_K[0], A_Q, None)
    it_pref = [("g", s) for s in range(NG_LATE, 32)] + [("o", s) for s in range(16)]
    NPF0, NPF1 = 36, 62
    a("s_nop 15")
    a.vm_reset()
    def extra_for(t):
        def f():
            if t in (0, 1): kv_dma(a, 1, t)
            if t == 1: wj_setup(a)
            if t in (2, 3): wj_issue(a, t - 2)
            if t in (4, 5): kv_dma(a, 2, t - 4)
            if t in (6, 7): kv_dma(a, 3, t - 6)
            if t == 12: wj_read(a, 8)
            if t == 13: wj_store(a)
            if t == 15: wj_cspart(a)
            if t == 16: wj_csread(a)
            if t == 17: wj_csstore(a)
            if t == 33: wready_poll(a); local_poll(a)
            if t == 36: local_check(a)
            if NPF0 <= t < NPF1:
                k0 = (t - NPF0) * len(it_pref) // (NPF1 - NPF0); k1 = (t + 1 - NPF0) * len(it_pref) // (NPF1 - NPF0)
                for k, s in it_pref[k0:k1]:
                    (ld_wg if k == "g" else ld_wo)(a, s)
            if SENT_D and t == 40: hh_prefill(a)
            if t == 62: x_residual(a)
        return f
    for t in range(64):
        p = t & 15
        if t in (0, 4, 8, 12, 16, 20, 24, 28, 32, 36, 40, 48, 56, 63): stamp(a, "attn")
        if t > 0 and t % 4 == 0 and (t % BAR_EVERY == 0 or t in (12, 16, 24, 36)):
            if t == 12:
                a("s_waitcnt vmcnt(8)")
            if t == 16:
                a("s_waitcnt lgkmcnt(0)")
            if t == 24:
                a("s_waitcnt vmcnt(0)")
            if t == 36:
                wready_check(a)
            else:
                a("s_barrier")
            if t == 24:
                wj_signal(a)
        if PRIO:
            a(f"s_setprio {3 - (t & 3)}")
        if ALTP and t % ALTP == 0:
            hi_first = (t // ALTP) & 1
            l1 = a.newlabel("ap"); l2 = a.newlabel("aq")
            a(f"s_cmp_lt_u32 s{S_W}, 4")
            a(f"s_cbranch_scc1 {l1}")
            a(f"s_setprio {1 - hi_first}")
            a(f"s_branch {l2}")
            a.label(l1)
            a(f"s_setprio {hi_first}")
            a.label(l2)
        attn_tile(a, p, extra_for(t), t)
        if p == 15 and t < 63:
            a(f"v_add_u32 v{A_VK}, 8192, v{A_VK}")
            a(f"v_add_u32 v{A_VV}, 8192, v{A_VV}")
    if PRIO or ALTP: a("s_setprio 0")
    a("s_nop 1")
    mfma(a, A_O2, A_V[1][1], A_P + 4, A_O2)
    a(f"s_branch {lepi}")
    a.label(lslow)
    for st in range(1, 4):
        kv_dma(a, st)
    for r in range(16):
        a(f"v_mov_b32 v{A_O+r}, 0")
        a(f"v_mov_b32 v{A_O2+r}, 0")
    wj_setup(a)
    wj_issue(a)
    wj_read(a, 0)
    a("s_waitcnt lgkmcnt(0)")
    wj_store(a)
    a("s_nop 15")
    wj_cspart(a)
    a("s_waitcnt vmcnt(0) lgkmcnt(0)")
    a("s_barrier")
    wj_csread(a)
    a("s_waitcnt lgkmcnt(0)")
    wj_csstore(a)
    a("s_waitcnt vmcnt(0)")
    a("s_barrier")
    wj_signal(a)
    NEG = [112, 128]
    for h in range(2):
        Qh = [A_Q, A_Q2][h]
        a(f"v_mov_b32 v{2+h}, 0xff800000")
        a(f"v_mov_b32 v90, v{A_VK}")
        a("s_mov_b32 s55, 0")
        l1 = a.newlabel("s1")
        a.label(l1)
        a(f"ds_read_b128 v[{A_K[0]}:{A_K[0]+3}], v90")
        a("s_waitcnt lgkmcnt(0)")
        mfma(a, A_S[0], A_K[0], Qh, None)
        a("s_nop 15")
        for r in range(8):
            a(f"v_max3_f32 v{2+h}, v{A_S[0]+2*r}, v{A_S[0]+2*r+1}, v{2+h}")
        a("v_add_u32 v90, 1024, v90")
        a("s_add_u32 s55, s55, 1")
        a("s_cmp_lt_u32 s55, 32")
        a(f"s_cbranch_scc1 {l1}")
        xhalf(a, 2 + h, 91, "v_max_f32")
    a.c("the other half of the keys belongs to wave w ^ 4: exchange the maxima")
    a(f"s_lshl_b32 s55, s{S_W}, 12")
    a(f"s_add_u32 s55, s55, {L_SCR}")
    a("v_lshlrev_b32 v90, 3, v0")
    a("v_add_u32 v91, s55, v90")
    a("ds_write_b64 v91, v[2:3]")
    a(f"s_xor_b32 s55, s{S_W}, 4")
    a("s_lshl_b32 s55, s55, 12")
    a(f"s_add_u32 s55, s55, {L_SCR}")
    a("v_add_u32 v91, s55, v90")
    a("s_waitcnt lgkmcnt(0)")
    a("s_barrier")
    a("ds_read_b64 v[90:91], v91")
    a("s_waitcnt lgkmcnt(0)")
    a("v_max_f32 v2, v2, v90")
    a("v_max_f32 v3, v3, v91")
    for h in range(2):
        for r in range(16):
            a(f"v_sub_f32 v{NEG[h]+r}, 0, v{2+h}")
    for h in range(2):
        Qh = [A_Q, A_Q2][h]; Oh = [A_O, A_O2][h]
        a(f"v_mov_b32 v90, v{A_VK}")
        a(f"v_mov_b32 v91, v{A_VV}")
        a("s_mov_b32 s55, 0")
        l2 = a.newlabel("s2")
        a.label(l2)
        a(f"ds_read_b128 v[{A_K[0]}:{A_K[0]+3}], v90")
        a("s_mov_b64 exec, s[70:71]")
        a(f"ds_read_b128 v[{A_V[0][0]}:{A_V[0][0]+3}], v91")
        a(f"ds_read_b128 v[{A_V[1][0]}:{A_V[1][0]+3}], v91 offset:512")
        a("s_mov_b64 exec, -1")
        a("s_waitcnt lgkmcnt(0)")
        mfma(a, A_S[0], A_K[0], Qh, NEG[h])
        a("s_nop 15")
        for r in range(16):
            a(f"v_exp_f32 v{A_S[0]+r}, v{A_S[0]+r}")
        a("s_nop 0")
        for k in range(8):
            a(f"v_cvt_pk_bf16_f32 v{A_P+k}, v{A_S[0]+2*k}, v{A_S[0]+2*k+1}")
        a("s_nop 1")
        mfma(a, Oh, A_V[0][0], A_P, Oh)
        mfma(a, Oh, A_V[1][0], A_P + 4, Oh)
        a("v_add_u32 v90, 1024, v90")
        a("v_add_u32 v91, 1024, v91")
        a("s_add_u32 s55, s55, 1")
        a("s_cmp_lt_u32 s55, 32")
        a(f"s_cbranch_scc1 {l2}")
    a("s_nop 15")
    a("s_barrier")
    if SENT_D: hh_prefill(a)
    wready_poll(a)
    local_poll(a)
    wready_check(a)
    local_check(a)
    sv = list(a.vmq)
    for k, s in it_pref:
        (ld_wg if k == "g" else ld_wo)(a, s)
    x_residual(a)
    a.vmq = sv
    a.label(lepi)
    stamp(a)
    a.c("wave kh finishes head 2p + kh: it hands the partial sums of the other head to wave w ^ 4")
    a(f"s_lshl_b32 s60, s{S_W}, 12")
    a(f"s_add_u32 s60, s60, {L_SCR}")
    a("v_add_u32 v90, s60, v1")
    a(f"s_xor_b32 s60, s{S_W}, 4")
    a("s_lshl_b32 s60, s60, 12")
    a(f"s_add_u32 s60, s60, {L_SCR}")
    a("v_add_u32 v91, s60, v1")
    a("s_nop 9")
    lk1 = a.newlabel("kh1"); lk2 = a.newlabel("khj")
    a(f"s_cmp_ge_u32 s{S_W}, 4")
    a(f"s_cbranch_scc1 {lk1}")
    for q in range(3):
        a(f"ds_write_b128 v90, v[{A_O2+4*q}:{A_O2+4*q+3}] offset:{q*1024}")
    a(f"s_branch {lk2}")
    a.label(lk1)
    for q in range(3):
        a(f"ds_write_b128 v90, v[{A_O+4*q}:{A_O+4*q+3}] offset:{q*1024}")
    for r in range(9):
        a(f"v_mov_b32 v{A_O+r}, v{A_O2+r}")
    a.label(lk2)
    a("s_waitcnt lgkmcnt(0)")
    a("s_barrier")
    for q in range(3):
        a(f"ds_read_b128 v[{24+4*q}:{27+4*q}], v91 offset:{q*1024}")
    a("s_waitcnt lgkmcnt(0)")
    for i in range(4):
        a(f"v_pk_add_f32 v[{A_O+2*i}:{A_O+2*i+1}], v[{A_O+2*i}:{A_O+2*i+1}], v[{24+2*i}:{25+2*i}]")
    a(f"v_add_f32 v{A_O+8}, v{A_O+8}, v32")
    a(f"v_rcp_f32 v90, v{A_O+8}")
    a("s_nop 0")
    for r in range(8):
        a(f"v_mul_f32 v{A_O+r}, v{A_O+r}, v90")
    for k in range(4):
        a(f"v_cvt_pk_bf16_f32 v{A_P+k}, v{A_O+2*k}, v{A_O+2*k+1}")
    a.c("OF + (tbk*32 + 8hq + 2p + kh)*1024")
    a(f"s_lshl_b32 s60, s{S_TBK}, 5")
    a(f"s_lshl_b32 s61, s{S_HQ}, 3")
    a("s_add_u32 s60, s60, s61")
    a(f"s_and_b32 s61, s{S_W}, 3")
    a("s_lshl_b32 s61, s61, 1")
    a("s_add_u32 s60, s60, s61")
    a(f"s_lshr_b32 s61, s{S_W}, 2")
    a("s_add_u32 s60, s60, s61")
    a("s_lshl_b32 s60, s60, 10")
    a(f"s_add_u32 s60, s60, {OF}")
    a("s_mov_b32 s54, s60")
    gstore(a, f"buffer_store_dwordx4 v[{A_P}:{A_P+3}], v1, {WS}, s60 offen", "o")
    if "o" in DOUBLE: a(f"buffer_store_dwordx4 v[{A_P}:{A_P+3}], v1, {WS}, s60 offen")

def eflag_base(a, dst):
    a(f"s_lshl_b32 s{dst}, s{S_G}, 11")
    a(f"s_add_u32 s{dst}, s{dst}, {FLG_E}")

def wg_publish(a, base, vt, younger=0):
    stamp(a, "p3")
    a(f"s_waitcnt vmcnt({younger})")
    stamp(a, "p3")
    a("s_barrier")
    l = a.newlabel("pub")
    a(f"s_cmp_lg_u32 s{S_W}, 0")
    a(f"s_cbranch_scc1 {l}")
    a(f"s_lshl_b32 s60, s{S_G}, 4")
    a(f"s_add_u32 s60, s60, s{S_J}")
    a("s_lshl_b32 s60, s60, 7")
    a(f"s_add_u32 s60, s60, {base}")
    set_flag(a, 60, vt, True)
    a.label(l)

def wg_wait(a, base, first_expr, n, vt, vo):
    l = a.newlabel("wt")
    a(f"s_cmp_lg_u32 s{S_W}, 0")
    a(f"s_cbranch_scc1 {l}")
    a(f"s_lshl_b32 s60, s{S_G}, 4")
    if first_expr is not None:
        first_expr()
    a("s_lshl_b32 s60, s60, 7")
    a(f"s_add_u32 s60, s60, {base}")
    if POLL_DELAY: a(f"s_sleep {POLL_DELAY}")
    poll_flags(a, 60, n, vt, vo, sleep=POLL_SLEEP)
    a.label(l)
    a("s_barrier")

def wave_publish(a, base, vt):
    a(f"s_lshl_b32 s60, s{S_G}, 4")
    a(f"s_add_u32 s60, s60, s{S_J}")
    a("s_lshl_b32 s60, s60, 3")
    a(f"s_add_u32 s60, s60, s{S_W}")
    a("s_lshl_b32 s60, s60, 7")
    a(f"s_add_u32 s60, s60, {base}")
    stamp(a, "p3")
    a("s_waitcnt vmcnt(0)")
    stamp(a, "p3")
    set_flag(a, 60, vt)

L3_ST = 131072 + 4096
def mfma16(a, d, A, B, c):
    cs = "0" if c is None else f"v[{c}:{c+3}]"
    a(f"v_mfma_f32_16x16x32_bf16 v[{d}:{d+3}], v[{A}:{A+3}], v[{B}:{B+3}], {cs}")

def p3(a):
    wg_publish(a, FLG_B, 28)
    stamp(a)
    def fe():
        a(f"s_lshl_b32 s61, s{S_TQ}, 2")
        a("s_add_u32 s60, s60, s61")
    wg_wait(a, FLG_B, fe, 4, 28, 30)
    stamp(a)
    a.c("o fragments -> LDS [32 heads][1024] over key tiles 0..31 (dead since the last barriers of the attention loop)")
    a(f"s_lshl_b32 s60, s{S_W}, 12")
    a("s_mov_b32 m0, s60")
    a(f"s_lshl_b32 s61, s{S_TBK}, 15")
    a("s_add_u32 s61, s61, s60")
    a(f"s_add_u32 s61, s61, {OF}")
    for e in range(4):
        a(f"buffer_load_dwordx4 v1, {WS}, s61 offen offset:{e*1024} sc1 lds")
    a.c("operand address: (g>>1)*1024 + ((g&1)*32 + (lane&15))*16")
    a("v_lshrrev_b32 v30, 5, v0")
    a("v_lshlrev_b32 v30, 10, v30")
    a("v_bfe_u32 v31, v0, 4, 1")
    a("v_lshlrev_b32 v31, 5, v31")
    a("v_and_b32 v29, 15, v0")
    a("v_add_u32 v31, v31, v29")
    a("v_lshl_add_u32 v30, v31, 4, v30")
    a("v_and_b32 v2, 31, v0")
    stamp(a, "p3")
    a("s_waitcnt vmcnt(0)")
    stamp(a, "p3")
    a("s_barrier")
    stamp(a, "p3")
    BBF = [[32 + 8 * k, 36 + 8 * k] for k in range(3)]
    a.lgq = []
    def rd(s):
        for th2 in range(2):
            r = BBF[s % 3][th2]
            a.lg(f"ds_read_b128 v[{r}:{r+3}], v30 offset:{s*2048 + th2*256}", s)
    rd(0); rd(1)
    for s in range(16):
        if s + 2 < 16: rd(s + 2)
        a.lg_wait(s)
        for th2 in range(2):
            mfma16(a, 8 + 4 * th2, WO_R + 4 * s, BBF[s % 3][th2], None if s == 0 else 8 + 4 * th2)
    stamp(a, "p3")
    a("s_mov_b32 s61, 0xffff0000")
    for i in range(4):
        a(f"v_lshlrev_b32 v{32+2*i}, 16, v{XRES+i}")
        a(f"v_and_b32 v{33+2*i}, s61, v{XRES+i}")
    a(f"s_lshl_b32 s60, s{S_TBK}, 5")
    a(f"s_lshl_b32 s61, s{S_HQ}, 3")
    a("s_add_u32 s60, s60, s61")
    a(f"s_add_u32 s60, s60, s{S_W}")
    a("s_lshl_b32 s60, s60, 10")
    a(f"s_add_u32 s60, s60, {HF}")
    a("s_nop 1")
    for i in range(4):
        a(f"v_pk_add_f32 v[{8+2*i}:{9+2*i}], v[{8+2*i}:{9+2*i}], v[{32+2*i}:{33+2*i}]")
    for i in range(4):
        a(f"v_cvt_pk_bf16_f32 v{40+i}, v{8+2*i}, v{9+2*i}")
    a("s_nop 1")
    a("v_permlane16_swap_b32 v40, v42")
    a("v_permlane16_swap_b32 v41, v43")
    a("s_nop 1")
    a("s_mov_b32 s55, s60")
    gstore(a, f"buffer_store_dwordx4 v[40:43], v1, {WS}, s60 offen", "h")
    if "h" in LOCAL_DATA:
        for r in range(4): a(f"v_mov_b32 v{12+r}, v{40+r}")
    if "h" in DOUBLE: a(f"buffer_store_dwordx4 v[40:43], v1, {WS}, s60 offen")
    stamp(a, "p3")
    a("s_mov_b32 s61, 0x3f803f80")
    a("v_mov_b32 v44, 0")
    a("v_mov_b32 v45, 0")
    for i in range(4):
        a(f"v_dot2_f32_bf16 v44, v{40+i}, s61, v44")
        a(f"v_dot2_f32_bf16 v45, v{40+i}, v{40+i}, v45")
    a("s_nop 2")
    xhalf(a, 44, 46, "v_add_f32")
    xhalf(a, 45, 46, "v_add_f32")
    a(f"s_lshl_b32 s60, s{S_W}, 8")
    a(f"s_add_u32 s60, s60, {L3_ST}")
    a("v_lshlrev_b32 v46, 3, v2")
    a("v_add_u32 v47, s60, v46")
    a("s_mov_b32 exec_hi, 0")
    a("ds_write_b64 v47, v[44:45]")
    a("s_mov_b64 exec, -1")
    a("s_waitcnt lgkmcnt(0)")
    wg_publish(a, FLG_C, 28)
    a.vm_reset()
    for s in range(NG_LATE):
        ld_wg(a, s)
    stamp(a)

L4_ST = 131072
L4_CS = 131072 + 1024
WD_R = 128
def ld_wd(a, u):
    s, ct = u >> 1, u & 1
    off = ct * 114688 + (s >> 2) * 4096
    a(f"s_add_u32 s75, s76, {off}")
    a.vm(f"buffer_load_dwordx4 v[{WD_R+4*u}:{WD_R+4*u+3}], v1, {WS}, s75 offen offset:{(s&3)*1024} sc1", ("WD", u))

def p4(a):
    a(f"s_and_b32 s77, s{S_J}, 7")
    a("s_mul_i32 s76, s77, 229376")
    a(f"s_mul_i32 s60, s{S_W}, 14336")
    a("s_add_u32 s76, s76, s60")
    a(f"s_add_u32 s76, s76, {WDF}")
    stamp(a, "p4")
    wg_wait(a, FLG_C, None, 16, 28, 5)
    stamp(a); stamp(a, "p4")
    a(f"s_lshl_b32 s62, s{S_G}, 17")
    a(f"s_lshl_b32 s63, s{S_W}, 10")
    a("s_add_u32 s62, s62, s63")
    a(f"s_add_u32 s62, s62, {HF}")
    def dma(st):
        for tb in range(4):
            off = tb * 32768 + st * 8192
            a(f"s_add_u32 m0, s63, {off}")
            a(f"s_add_u32 s64, s62, {off}")
            a.vm(f"buffer_load_dwordx4 v1, {WS}, s64 offen sc1 lds", ("H", st))
    a.vm_reset()
    dma(0)
    if "o" in LOCAL_DATA:
        clean_store(a, A_P, 54, "o")
    lhelp = a.newlabel("help"); ljoin = a.newlabel("p4join")
    a(f"s_cmp_eq_u32 s{S_W}, 7")
    a(f"s_cbranch_scc1 {lhelp}")
    sv = list(a.vmq)
    a("v_add_u32 v2, 65536, v1")
    BB = [[32 + 4 * t for t in range(4)], [48 + 4 * t for t in range(4)]]
    def breads(s):
        for tb in range(4):
            base = "v1" if tb < 2 else "v2"
            a.lg(f"ds_read_b128 v[{BB[s&1][tb]}:{BB[s&1][tb]+3}], {base} offset:{(tb&1)*32768 + s*1024}", s)
    a.lgq = []
    a.vm_wait(("H", 0))
    stamp(a, "p4")
    a("s_barrier")
    stamp(a); stamp(a, "p4")
    breads(0)
    dma(1)
    for s in range(24):
        if (s + 1) % 8 == 0:
            a.vm_wait(("H", (s + 1) // 8))
            a("s_barrier")
        if s + 1 < 24:
            breads(s + 1)
        if PRIO2 and s % 2 == 0: a(f"s_setprio {3 - ((s & 7) >> 1)}")
        a.lg_wait(s)
        for tb in range(4):
            mfma(a, 64 + 16 * tb, WG_R + 4 * s, BB[s & 1][tb], None if s == 0 else 64 + 16 * tb)
        if s == 2: dma(2)
        if s == 6: dma(3)
        if s == 20: clean_store(a, 12, 55, "h")
        if s >= 1:
            ld_wd(a, s - 1)
    a("v_and_b32 v3, 31, v0")
    a("v_lshlrev_b32 v3, 3, v3")
    a(f"v_add_u32 v3, {L4_ST}, v3")
    SL = [32 + 4 * i for i in range(8)]
    seq = [(tb, s) for tb in range(4) for s in range(24, 32)]
    def rd(k):
        tb, s = seq[k]
        base = "v1" if tb < 2 else "v2"
        r = SL[k % 8]
        a.lg(f"ds_read_b128 v[{r}:{r+3}], {base} offset:{(tb&1)*32768 + s*1024}", ("t", k))
    for k in range(4): rd(k)
    for tb in range(4):
        a.lg(f"ds_read_b64 v[{4+2*tb}:{5+2*tb}], v3 offset:{tb*256}", "st")
    a("v_lshrrev_b32 v12, 5, v0")
    a("v_lshlrev_b32 v12, 4, v12")
    a(f"s_lshl_b32 s60, s{S_W}, 7")
    a(f"s_add_u32 s60, s60, {L4_CS}")
    a("v_add_u32 v12, s60, v12")
    for q in range(4):
        a.lg(f"ds_read_b128 v[{16+4*q}:{19+4*q}], v12 offset:{q*32}", "st")
    a("s_mul_i32 s60, s74, 1024")
    a(f"s_lshl_b32 s61, s{S_G}, 2")
    a("s_mul_i32 s61, s61, 114688")
    a("s_add_u32 s60, s60, s61")
    a(f"s_add_u32 s60, s60, {HHF}")
    def epi(tb):
        A = 64 + 16 * tb; st = 4 + 2 * tb; o = 8 + 0
        L = []
        for i in range(8):
            L.append(f"v_pk_fma_f32 v[{A+2*i}:{A+2*i+1}], v[{16+2*i}:{17+2*i}], v[{st}:{st+1}], v[{A+2*i}:{A+2*i+1}] op_sel_hi:[1,0,1]")
        for i in range(4):
            L.append(f"v_pk_mul_f32 v[{A+8+2*i}:{A+9+2*i}], v[{A+8+2*i}:{A+9+2*i}], v[{st}:{st+1}] op_sel:[0,1] op_sel_hi:[1,1]")
        for r in range(8):
            L.append(f"v_max_f32 v{A+r}, 0, v{A+r}")
        for i in range(4):
            L.append(f"v_pk_mul_f32 v[{A+2*i}:{A+2*i+1}], v[{A+2*i}:{A+2*i+1}], v[{A+8+2*i}:{A+9+2*i}]")
        for i in range(4):
            L.append(f"v_cvt_pk_bf16_f32 v{A+8+i}, v{A+2*i}, v{A+2*i+1}")
        L.append(("st", f"buffer_store_dwordx4 v[{A+8}:{A+11}], v1, {WS}, s60 offen"))
        if tb < 3: L.append("s_add_u32 s60, s60, 114688")
        return L
    def emit(items):
        for ins in items:
            if isinstance(ins, tuple): gstore(a, ins[1], "g")
            else: a(ins)
    pend = []
    for k, (tb, s) in enumerate(seq):
        if k + 4 < len(seq): rd(k + 4)
        a.lg_wait(("t", k))
        mfma(a, 64 + 16 * tb, WG_R + 4 * s, SL[k % 8], 64 + 16 * tb)
        if k == 0: ld_wd(a, 23)
        if k % 8 == 2 and tb > 0:
            if tb == 1: a.lg_wait("st")
            pend = epi(tb - 1)
            a("s_nop 3")
        n = (len(pend) + 4) // 5 if (k % 8) < 7 else len(pend)
        if k % 8 >= 2 or tb == 0:
            emit(pend[:5 if (k % 8) < 7 else len(pend)]); pend = pend[5 if (k % 8) < 7 else len(pend):]
    stamp(a); stamp(a, "p4")
    if PRIO2: a("s_setprio 0")
    a("s_nop 9")
    emit(epi(3))
    for u in range(24, 28): ld_wd(a, u)
    stamp(a, "p4")
    a(f"s_branch {ljoin}")
    a.label(lhelp)
    a.vmq = list(sv)
    dma(1); dma(2); dma(3)
    a("v_lshlrev_b32 v3, 2, v0")
    a(f"s_mul_i32 s60, s{S_J}, 896")
    a(f"s_add_u32 s60, s60, {CSP}")
    for kq in range(4):
        for i in range(4):
            a.vm(f"buffer_load_dword v{32+4*kq+i}, v3, {WS}, s60 offen offset:{i*256} sc1", "cs")
        if kq < 3:
            a("s_add_u32 s60, s60, 14336")
    a.vm_wait(("H", 0))
    a("s_barrier")
    a.c("finish this workgroup's row statistics (partials of the 8 waves are in LDS) and publish them")
    a("v_and_b32 v2, 31, v0")
    a("v_lshlrev_b32 v64, 3, v2")
    a(f"v_add_u32 v65, {L3_ST}, v64")
    for ww in range(8):
        a(f"ds_read_b64 v[{66+2*ww}:{67+2*ww}], v65 offset:{ww*256}")
    a("s_waitcnt lgkmcnt(0)")
    for ww in range(1, 8):
        a(f"v_pk_add_f32 v[66:67], v[66:67], v[{66+2*ww}:{67+2*ww}]")
    a("v_lshlrev_b32 v64, 5, v2")
    a(f"s_lshl_b32 s60, s{S_TBK}, 10")
    a(f"s_lshl_b32 s61, s{S_HQ}, 3")
    a("s_add_u32 s60, s60, s61")
    a(f"s_add_u32 s60, s60, {HST}")
    a("s_mov_b32 exec_hi, 0")
    a.vm(f"buffer_store_dwordx2 v[66:67], v64, {WS}, s60 offen sc1", "hst")
    a("s_mov_b64 exec, -1")
    a.vm_wait_all()
    eflag_base(a, 60)
    a(f"s_lshl_b32 s61, s{S_J}, 7")
    a("s_add_u32 s60, s60, s61")
    set_flag(a, 60, 28)
    a("s_barrier")
    a("s_barrier")
    clean_store(a, 12, 55, "h")
    eflag_base(a, 60)
    poll_flags(a, 60, 16, 28, 2)
    a("v_lshlrev_b32 v2, 5, v0")
    a(f"s_lshl_b32 s60, s{S_G}, 12")
    a(f"s_add_u32 s60, s60, {HST}")
    for i in range(2):
        a(f"buffer_load_dwordx4 v[{8+8*i}:{11+8*i}], v2, {WS}, s60 offen offset:{i*2048} sc1")
        a(f"buffer_load_dwordx4 v[{12+8*i}:{15+8*i}], v2, {WS}, s60 offen offset:{i*2048+16} sc1")
    a.vm_wait_all()
    for i in range(2):
        b = 8 + 8 * i
        a(f"v_add_f32 v{b}, v{b}, v{b+2}")
        a(f"v_add_f32 v{b+4}, v{b+4}, v{b+6}")
        a(f"v_add_f32 v{b+1}, v{b+1}, v{b+3}")
        a(f"v_add_f32 v{b+5}, v{b+5}, v{b+7}")
        a(f"v_add_f32 v{b}, v{b}, v{b+4}")
        a(f"v_add_f32 v{b+1}, v{b+1}, v{b+5}")
        a(f"v_mul_f32 v{b}, {f32hex(1.0/512)}, v{b}")
        a(f"v_mul_f32 v{b+2}, v{b}, v{b}")
        a(f"v_mov_b32 v{b+3}, {f32hex(1.0/512)}")
        a(f"v_fma_f32 v{b+1}, v{b+1}, v{b+3}, -v{b+2}")
        a(f"v_max_f32 v{b+1}, 0, v{b+1}")
        a(f"v_add_f32 v{b+1}, {f32hex(1e-5)}, v{b+1}")
        a(f"v_rcp_f32 v{b+1}, v{b+1}")
        a(f"v_sub_f32 v{b}, 0, v{b}")
    a("v_lshlrev_b32 v4, 3, v0")
    a(f"v_add_u32 v4, {L4_ST}, v4")
    a("ds_write_b64 v4, v[8:9]")
    a("ds_write_b64 v4, v[16:17] offset:512")
    for i in range(4):
        a(f"v_add_f32 v{32+i}, v{32+i}, v{36+i}")
        a(f"v_add_f32 v{40+i}, v{40+i}, v{44+i}")
        a(f"v_add_f32 v{32+i}, v{32+i}, v{40+i}")
    a(f"v_add_u32 v3, {L4_CS}, v3")
    for i in range(3):
        a(f"ds_write_b32 v3, v{32+i} offset:{i*256}")
    a("s_mov_b32 exec_hi, 0")
    a("ds_write_b32 v3, v35 offset:768")
    a("s_mov_b64 exec, -1")
    a("s_waitcnt lgkmcnt(0)")
    a("s_barrier")
    for u in range(28):
        ld_wd(a, u)
    a.label(ljoin)
    if not SENT_D:
        wg_publish(a, FLG_D, 28, 4)
    a.vm_reset()
    stamp(a)

def p5(a):
    mk_srd(a, SRD_A, P_OUT, 2048 * 1024)
    a(f"s_lshr_b32 s72, s{S_J}, 3")
    a(f"s_lshl_b32 s61, s{S_G}, 2")
    a("s_lshl_b32 s62, s72, 1")
    a("s_add_u32 s61, s61, s62")
    a(f"s_mul_i32 s62, s{S_W}, 14336")
    a("s_mul_i32 s64, s61, 114688")
    a("s_add_u32 s64, s64, s62")
    a(f"s_add_u32 s64, s64, {HHF}")
    a("s_add_u32 s65, s64, 114688")
    a("v_lshrrev_b32 v2, 3, v0")
    a(f"s_lshl_b32 s62, s{S_W}, 3")
    a("v_add_u32 v2, s62, v2")
    a("v_and_b32 v3, 7, v0")
    a("v_lshrrev_b32 v4, 5, v2")
    a("v_lshlrev_b32 v4, 5, v4")
    a("v_lshrrev_b32 v5, 1, v3")
    a("v_add_u32 v4, v4, v5")
    a("v_lshlrev_b32 v4, 10, v4")
    a("v_and_b32 v5, 1, v3")
    a("v_lshlrev_b32 v5, 5, v5")
    a("v_and_b32 v6, 31, v2")
    a("v_add_u32 v5, v5, v6")
    a("v_lshl_add_u32 v4, v5, 4, v4")
    a("s_lshl_b32 s62, s61, 5")
    a("s_lshl_b32 s63, s77, 2")
    a("s_add_u32 s62, s62, s63")
    a("s_lshl_b32 s62, s62, 10")
    a(f"s_add_u32 s62, s62, {HF}")
    a(f"buffer_load_dwordx4 v[8:11], v4, {WS}, s62 offen sc1")
    stamp(a, "p4")
    if not SENT_D:
        wg_wait(a, FLG_D, None, 16, 28, 5)
    stamp(a); stamp(a, "p4")
    a("s_mov_b32 s62, s64"); a("s_mov_b32 s63, s65")
    retries = []
    BREG = [16, 24, 32, 40, 48, 56, 240, 248]
    ACC = 64
    a.vm_reset()
    def ldB(s):
        if s and (s & 3) == 0:
            a("s_add_u32 s64, s64, 4096"); a("s_add_u32 s65, s65, 4096")
        r = BREG[s % 8]
        a.vm(f"buffer_load_dwordx4 v[{r}:{r+3}], v1, {WS}, s64 offen offset:{(s&3)*1024} sc1", ("B", s))
        a.vm(f"buffer_load_dwordx4 v[{r+4}:{r+7}], v1, {WS}, s65 offen offset:{(s&3)*1024} sc1", ("B", s))
    if P5PRIO:
        l5 = a.newlabel("p5p")
        a(f"s_cmp_lt_u32 s{S_W}, 4")
        a(f"s_cbranch_scc1 {l5}")
        a("s_setprio 1")
        a.label(l5)
    for s in range(8):
        ldB(s)
    def check(r):
        a(f"v_max3_u32 v12, v{r}, v{r+1}, v{r+2}")
        a(f"v_max3_u32 v13, v{r+3}, v{r+4}, v{r+5}")
        a(f"v_max3_u32 v12, v{r+6}, v{r+7}, v12")
        a("v_max_u32 v12, v12, v13")
        a("v_cmp_eq_u32 vcc, -1, v12")
    stamp(a, "p5")
    for s in range(14):
        a.vm_wait(("B", s))
        if s in (0, 7): stamp(a, "p5")
        if SENT_D:
            lr = a.newlabel("rt"); lb = a.newlabel("rb")
            check(BREG[s % 8])
            a("s_nop 1")
            a(f"s_cbranch_vccnz {lr}")
            a.label(lb)
            retries.append((s, lr, lb))
        for ct in range(2):
            for tb in range(2):
                d = ACC + (ct * 2 + tb) * 16
                mfma(a, d, WD_R + (2 * s + ct) * 4, BREG[s % 8] + 4 * tb, None if s == 0 else d)
        if s + 8 < 14:
            ldB(s + 8)
    stamp(a); stamp(a, "p5")
    if PRIO2: a("s_setprio 0")
    a("v_and_b32 v12, 31, v0")
    a("v_lshrrev_b32 v13, 5, v0")
    a("v_lshlrev_b32 v13, 1, v13")
    a("v_and_b32 v14, 7, v12")
    a("v_xor_b32 v13, v13, v14")
    a("v_lshlrev_b32 v12, 8, v12")
    a(f"s_lshl_b32 s62, s{S_W}, 14")
    a("v_add_u32 v12, s62, v12")
    for k, (rg, q) in enumerate([(0, 0), (0, 1), (1, 0), (1, 1)]):
        a(f"v_xor_b32 v{16+k}, {rg*4+q}, v13")
        a(f"v_lshl_add_u32 v{16+k}, v{16+k}, 4, v12")
    if SENT_D:
        lskip = a.newlabel("rskip")
        a(f"s_branch {lskip}")
        for (s_, lr, lb) in retries:
            r = BREG[s_ % 8]
            a.label(lr)
            a(f"s_mov_b32 s79, {SPIN}")
            lp = a.newlabel("rl")
            a.label(lp)
            a("s_sleep 2")
            a(f"s_add_u32 s60, s62, {(s_ >> 2) * 4096}")
            a(f"s_add_u32 s61, s63, {(s_ >> 2) * 4096}")
            a(f"buffer_load_dwordx4 v[{r}:{r+3}], v1, {WS}, s60 offen offset:{(s_&3)*1024} sc1")
            a(f"buffer_load_dwordx4 v[{r+4}:{r+7}], v1, {WS}, s61 offen offset:{(s_&3)*1024} sc1")
            a("s_waitcnt vmcnt(0)")
            check(r)
            a("s_nop 4")
            a(f"s_cbranch_vccz {lb}")
            a("s_sub_u32 s79, s79, 1")
            a("s_cmp_lg_u32 s79, 0")
            a(f"s_cbranch_scc1 {lp}")
            a(f"s_branch {lb}")
        a.label(lskip)
        a("s_barrier")
    a("s_nop 3")
    for ct in range(2):
        for tb in range(2):
            d = ACC + (ct * 2 + tb) * 16
            for k, (rg, q) in enumerate([(0, 0), (0, 1), (1, 0), (1, 1)]):
                r = d + 8 * rg + 4 * q
                a(f"ds_write_b128 v{16+k}, v[{r}:{r+3}] offset:{ct*128 + tb*8192}")
    stamp(a, "p5")
    a("s_waitcnt lgkmcnt(0)")
    stamp(a, "p5")
    a("s_barrier")
    stamp(a, "p5")
    a("v_and_b32 v12, 7, v2")
    a("v_lshlrev_b32 v13, 1, v3")
    a("v_xor_b32 v14, v13, v12")
    a("v_or_b32 v13, 1, v13")
    a("v_xor_b32 v15, v13, v12")
    a("v_lshlrev_b32 v14, 4, v14")
    a("v_lshlrev_b32 v15, 4, v15")
    a("v_lshl_add_u32 v14, v2, 8, v14")
    a("v_lshl_add_u32 v15, v2, 8, v15")
    a("v_add_u32 v12, 65536, v14")
    a("v_add_u32 v13, 65536, v15")
    for src in range(8):
        b0, b1 = ("v14", "v15") if src < 4 else ("v12", "v13")
        a(f"ds_read_b128 v[{16+8*src}:{19+8*src}], {b0} offset:{(src&3)*16384}")
        a(f"ds_read_b128 v[{20+8*src}:{23+8*src}], {b1} offset:{(src&3)*16384}")
        if src == 3: a("s_waitcnt lgkmcnt(4)")
    a("s_mov_b32 s62, 0xffff0000")
    for i in range(4):
        a(f"v_lshlrev_b32 v{80+2*i}, 16, v{8+i}")
        a(f"v_and_b32 v{81+2*i}, s62, v{8+i}")
    a("s_waitcnt lgkmcnt(0)")
    stamp(a, "p5")
    for src in range(1, 8):
        for i in range(4):
            a(f"v_pk_add_f32 v[{16+2*i}:{17+2*i}], v[{16+2*i}:{17+2*i}], v[{16+8*src+2*i}:{17+8*src+2*i}]")
    for i in range(4):
        a(f"v_pk_add_f32 v[{16+2*i}:{17+2*i}], v[{16+2*i}:{17+2*i}], v[{80+2*i}:{81+2*i}]")
    for i in range(4):
        a(f"v_cvt_pk_bf16_f32 v{8+i}, v{16+2*i}, v{17+2*i}")
    a("v_lshlrev_b32 v4, 10, v2")
    a("v_lshl_add_u32 v4, v3, 4, v4")
    a(f"s_lshl_b32 s62, s{S_G}, 17")
    a("s_lshl_b32 s63, s72, 16")
    a("s_add_u32 s62, s62, s63")
    a("s_lshl_b32 s63, s77, 7")
    a("s_add_u32 s62, s62, s63")
    a(f"buffer_store_dwordx4 v[8:11], v4, s[{SRD_A}:{SRD_A+3}], s62 offen {OUT_FLAGS}")

DESCRIPTION = """
One persistent kernel, 256 workgroups of 8 waves (one per CU, all co-resident). 16 workgroups form a group that owns 128 tokens.
  phase 0   LayerNorm(x) of a 32-token block, K/V projection (one workgroup per block, published to everybody), Q projection
            for 8 heads (kept in registers, scaled by log2(e)/4).
  attention K and V of all 2048 keys in LDS; a wave handles two heads on one half of the keys; S^T = K Q^T and O^T += V^T P^T
            with 32x32x16 MFMAs, the row sum comes from an all-ones row of the V operand. exp2 is taken without subtracting a
            maximum only when |q|*max|k| (Cauchy-Schwarz, checked at run time for every row of the workgroup) is at most 40;
            otherwise the whole workgroup takes the path that first computes the true row maximum and subtracts it.
            Meanwhile the weights wo / w_gate / w_up / w_down are re-laid-out into MFMA operand fragments in the workspace
            and the fragments needed next are prefetched into registers.
  P3        h = x + o wo, row statistics of h.     P4  gate/up GEMM on h with LayerNorm folded into the epilogue, ReLU gate.
  P5        out = h + hh w_down (split-K over the waves, reduced through LDS).
Hand-offs between workgroups: write-through (sc1) stores, drained, then a flag line tagged with a per-launch value derived from
what the previous launch left in the workspace; consumers poll with sc1 loads and read the payload with sc1 loads. When all 16
workgroups of a group report the same XCD (checked at run time) the group's flag lines are written with plain stores.
"""

def build():
    a = Asm()
    label = G.NAME + "_kernel"
    a.raw(G.HEADER.rstrip("\n"))
    a.raw("; @launch grid=(256,1,1) block=(512,1,1) lds=163840")
    for ln in DESCRIPTION.strip("\n").split("\n"):
        a.raw("; " + ln)
    a.raw('.amdgcn_target "amdgcn-amd-amdhsa--gfx950"')
    a.raw(".text")
    a.raw(f".globl {label}")
    a.raw(".p2align 8")
    a.raw(f".type {label},@function")
    a.raw(f"{label}:")
    if PROFILE:
        a("s_memtime s[98:99]")
        a("s_memrealtime s[100:101]")
        for k in range(16): a(f"s_mov_b32 s{80+k}, 0")
    G.WS_USED = WS_USED
    G.prologue(a, "L_fin")
    a(f"s_add_u32 s60, s{P_WS}, {NONCE}")
    a(f"s_addc_u32 s61, s{P_WS+1}, 0")
    a(f"s_load_dword s{S_NONCE}, s[60:61], 0")
    phase0(a)
    attention(a)
    p3(a)
    p4(a)
    p5(a)
    lnn = a.newlabel("nn")
    a("s_cmp_lg_u32 s2, 0")
    a(f"s_cbranch_scc1 {lnn}")
    a(f"s_cmp_lg_u32 s{S_W}, 0")
    a(f"s_cbranch_scc1 {lnn}")
    a(f"s_mov_b32 s62, {NONCE}")
    set_flag(a, 62, 28)
    a.label(lnn)
    if PROFILE:
        a(f"s_cmp_lg_u32 s{S_W}, {PROF_WAVE}")
        a("s_cbranch_scc1 L_fin")
        a("s_waitcnt vmcnt(0) lgkmcnt(0)")
        a("s_memtime s[96:97]")
        a("s_memrealtime s[54:55]")
        a("s_waitcnt lgkmcnt(0)")
        for k in range(16):
            a(f"s_sub_u32 s{80+k}, s{80+k}, s98")
            a(f"v_mov_b32 v{k}, s{80+k}")
        a("s_sub_u32 s96, s96, s98")
        a("s_sub_u32 s54, s54, s100")
        a("v_mov_b32 v16, s96")
        a("v_mov_b32 v17, s54")
        a("v_mov_b32 v18, s100")
        a("s_getreg_b32 s62, hwreg(HW_REG_XCC_ID, 0, 4)")
        a(f"s_lshl_b32 s63, s{S_LOCAL}, 8")
        a("s_or_b32 s62, s62, s63")
        a("v_mov_b32 v19, s62")
        a("s_mul_i32 s54, s2, 128")
        a(f"s_add_u32 s54, s54, {PROF}")
        a("v_mov_b32 v20, 0")
        a("s_mov_b64 exec, 1")
        for q in range(5):
            a(f"buffer_store_dwordx4 v[{4*q}:{4*q+3}], v20, {WS}, s54 offen offset:{16*q}")
    a.label("L_fin")
    a("s_endpgm")
    a.raw('.section .rodata,"a"')
    a.raw(".p2align 6")
    G.descriptor(a, label, 256)
    return a.text()

if __name__ == "__main__":
    open(sys.argv[1], "w").write(build())
```

```python
import os, sys
from asmlib import Asm
import gen as G
from gen import (S_W, S_G, S_J, S_TBK, S_HQ, S_TQ, SRD_WS, SRD_A, SRD_B, SRD_C, SRD_D, mk_srd, f32hex,
                 dpp_sum16, xhalf, xrow16, OF, HF, KF, VF, HST, CSP, WOF, WDF, WGF, HHF, QSCALE,
                 P_X, P_WQ, P_WK, P_WV, P_WO, P_WG, P_WU, P_WD, P_OUT, P_DBG, P_WS)
from kernels2 import mfma
WS = f"s[{SRD_WS}:{SRD_WS+3}]"
FLG = 0x1410000
FLG_A, FLG_W, FLG_E, FLG_X = FLG, FLG + 64*128, FLG + 320*128, FLG + 576*128
FLG_B, FLG_C, FLG_D = FLG + 1024*128, FLG + 3072*128, FLG + 5120*128
NONCE = FLG + 7168*128
S_NONCE = 56
PROF = 0x1400000
WS_USED = 0x1500000
SPIN = 400000
SYNCA_SLEEP = int(os.environ.get('SYNCA_SLEEP', '2'))
LOCAL_NT = os.environ.get('LOCAL_NT', '0') == '1'
NOCLEAN = os.environ.get('NOCLEAN', '1') == '1'
P5PRIO = os.environ.get('P5PRIO', '0') == '1'
BAR_EVERY = int(os.environ.get('BAR_EVERY', '8'))
ALTP = int(os.environ.get('ALTP', '0'))
S_LOCAL = 69
LOCAL_OK = os.environ.get('LOCAL_OK', '1') == '1'
LOCAL_DATA = os.environ.get('LOCAL_DATA', '')
PRIO2 = os.environ.get('PRIO2', '1') == '1'
DOUBLE = os.environ.get('DOUBLE', '')
ZROWS = os.environ.get('ZROWS', '1') == '1'
OUT_FLAGS = os.environ.get('OUT_FLAGS', '')
POLL_DELAY = int(os.environ.get('POLL_DELAY', '0'))
SENT_D = os.environ.get('SENT_D', '0') == '1'
FULL_LINE = os.environ.get('FULL_LINE', '1') == '1'
POLL_SLEEP = int(os.environ.get('POLL_SLEEP', '1'))
PROFILE = G.PROFILE
PROF_WAVE = G.PROF_WAVE
PRIO = os.environ.get("PRIO", "0") == "1"
NST = [0]
STAMPSET = os.environ.get("STAMPSET", "main")
def stamp(a, kind="main"):
    if not PROFILE: return
    if kind != STAMPSET: return
    k = NST[0]; NST[0] += 1
    assert k < 16
    a("s_waitcnt lgkmcnt(0)")
    a("s_memtime s[96:97]")
    a("s_waitcnt lgkmcnt(0)")
    a(f"s_mov_b32 s{80+k}, s96")

def spin_begin(a, name):
    l = a.newlabel(name)
    a(f"s_mov_b32 s79, {SPIN}")
    a.label(l)
    return l
def spin_end(a, l, done, sleep=1):
    a("s_nop 4")
    a(f"s_cbranch_vccz {done}")
    a(f"s_sleep {sleep}")
    a("s_sub_u32 s79, s79, 1")
    a("s_cmp_lg_u32 s79, 0")
    a(f"s_cbranch_scc1 {l}")
    a.label(done)

def gstore(a, instr, kind="f"):
    if not LOCAL_OK or (kind != "f" and kind not in LOCAL_DATA):
        a(instr + " sc1"); return
    lf = a.newlabel("gl"); le = a.newlabel("ge")
    a(f"s_cmp_eq_u32 s{S_LOCAL}, 1")
    a(f"s_cbranch_scc1 {lf}")
    a(instr + " sc1")
    a(f"s_branch {le}")
    a.label(lf)
    a(instr + (" nt" if (kind != "f" and LOCAL_NT) else ""))
    a.label(le)

def clean_store(a, reg, sreg, kind):
    if kind not in LOCAL_DATA or NOCLEAN: return
    l = a.newlabel("cl")
    a(f"s_cmp_eq_u32 s{S_LOCAL}, 1")
    a(f"s_cbranch_scc0 {l}")
    a(f"buffer_store_dwordx4 v[{reg}:{reg+3}], v1, {WS}, s{sreg} offen sc1")
    a.label(l)

def poll_flags(a, soff_reg, nlanes, vtmp, voff, sleep=1, shift=7):
    done = a.newlabel("pd")
    a(f"v_lshlrev_b32 v{voff}, {shift}, v0")
    if nlanes < 64:
        a(f"s_mov_b64 exec, {hex((1 << nlanes) - 1)}")
    l = spin_begin(a, "pl")
    a(f"buffer_load_dword v{vtmp}, v{voff}, {WS}, s{soff_reg} offen sc1")
    a("s_waitcnt vmcnt(0)")
    a(f"v_cmp_ne_u32 vcc, s{S_NONCE}, v{vtmp}")
    spin_end(a, l, done, sleep)
    if nlanes < 64:
        a("s_mov_b64 exec, -1")

def set_flag(a, soff_reg, vtmp, fast_ok=False):
    a(f"v_mov_b32 v{vtmp}, s{S_NONCE}")
    if FULL_LINE:
        a(f"v_lshlrev_b32 v{vtmp+1}, 2, v0")
        a("s_mov_b32 exec_hi, 0")
    else:
        a(f"v_mov_b32 v{vtmp+1}, 0")
        a("s_mov_b64 exec, 1")
    if fast_ok:
        gstore(a, f"buffer_store_dword v{vtmp}, v{vtmp+1}, {WS}, s{soff_reg} offen")
    else:
        a(f"buffer_store_dword v{vtmp}, v{vtmp+1}, {WS}, s{soff_reg} offen sc1")
    a("s_mov_b64 exec, -1")

L_XN, L_WQ, L_WK, L_WV = 0, 32768, 131072, 147456
QSAVE = 244

def phase0(a):
    mk_srd(a, SRD_A, P_X, 2048 * 1024)
    mk_srd(a, SRD_B, P_WQ, 512 * 1024)
    a(f"s_lshl_b32 s54, s{S_TBK}, 5")
    a(f"s_lshl_b32 s55, s{S_W}, 2")
    a("s_add_u32 s54, s54, s55")
    a("v_lshrrev_b32 v2, 4, v0")
    a("v_and_b32 v3, 15, v0")
    a("v_add_u32 v4, s54, v2")
    a("v_lshlrev_b32 v4, 10, v4")
    a("v_lshl_add_u32 v4, v3, 4, v4")
    for i in range(4):
        a(f"buffer_load_dwordx4 v[{16+4*i}:{19+4*i}], v4, s[{SRD_A}:{SRD_A+3}], 0 offen offset:{256*i}")
    a("v_lshlrev_b32 v6, 4, v0")
    lskip = a.newlabel("nokv"); lj = a.newlabel("kvj")
    a(f"s_cmp_lg_u32 s{S_HQ}, 0")
    a(f"s_cbranch_scc1 {lskip}")
    mk_srd(a, SRD_C, P_WK, 16384)
    mk_srd(a, SRD_D, P_WV, 16384)
    a(f"s_lshl_b32 s60, s{S_W}, 11")
    for i in range(2):
        a(f"s_add_u32 s61, s60, {i*1024}")
        a(f"s_add_u32 m0, s61, {L_WK}")
        a("s_nop 0")
        a(f"buffer_load_dwordx4 v6, s[{SRD_C}:{SRD_C+3}], s61 offen lds")
        a(f"s_add_u32 m0, s61, {L_WV}")
        a("s_nop 0")
        a(f"buffer_load_dwordx4 v6, s[{SRD_D}:{SRD_D+3}], s61 offen lds")
    a.label(lskip)
    a("v_lshlrev_b32 v5, 2, v2")
    a("v_xor_b32 v5, v3, v5")
    a("v_lshlrev_b32 v5, 4, v5")
    a("v_lshl_add_u32 v5, v2, 10, v5")
    a(f"s_lshl_b32 s55, s{S_HQ}, 8")
    a("v_add_u32 v5, s55, v5")
    a(f"s_lshl_b32 s62, s{S_W}, 12")
    a(f"s_add_u32 s62, s62, {L_WQ}")
    a(f"s_lshl_b32 s63, s{S_W}, 14")
    def wq_dma(q):
        for i in range(4):
            a(f"s_add_u32 m0, s62, {q * 32768 + i * 1024}")
            a(f"s_add_u32 s64, s63, {(q * 128 + 4 * i) * 1024}")
            a(f"buffer_load_dwordx4 v5, s[{SRD_B}:{SRD_B+3}], s64 offen lds")
    wq_dma(0)
    stamp(a, "p0")
    a("s_waitcnt vmcnt(4)")
    stamp(a); stamp(a, "p0")
    b = Asm()
    if True:
        b("s_mov_b32 s60, 0x3f803f80")
        for r in range(4): b(f"v_mov_b32 v{32+r}, 0")
        for i in range(16):
            b(f"v_dot2_f32_bf16 v{32 + (i & 1)}, v{16+i}, s60, v{32 + (i & 1)}")
            b(f"v_dot2_f32_bf16 v{34 + (i & 1)}, v{16+i}, v{16+i}, v{34 + (i & 1)}")
        b("s_mov_b32 s61, 0xffff0000")
        for i in range(4):
            b(f"v_lshlrev_b32 v{64+2*i}, 16, v{16+i}")
            b(f"v_and_b32 v{65+2*i}, s61, v{16+i}")
        b("v_add_f32 v32, v32, v33")
        b("v_add_f32 v34, v34, v35")
        for n, sh in enumerate((8, 4, 2, 1)):
            for i in range(4 + 3*n, 7 + 3*n):
                b(f"v_lshlrev_b32 v{64+2*i}, 16, v{16+i}")
                b(f"v_and_b32 v{65+2*i}, s61, v{16+i}")
            b(f"v_add_f32_dpp v32, v32, v32 row_ror:{sh} row_mask:0xf bank_mask:0xf")
            b(f"v_add_f32_dpp v34, v34, v34 row_ror:{sh} row_mask:0xf bank_mask:0xf")
        b(f"v_mul_f32 v32, {f32hex(1.0/512)}, v32")
        b("v_mul_f32 v33, v32, v32")
        b(f"v_mov_b32 v35, {f32hex(1.0/512)}")
        b("v_fma_f32 v34, v34, v35, -v33")
        b("v_max_f32 v34, 0, v34")
        b(f"v_add_f32 v34, {f32hex(1e-5)}, v34")
        b("v_rsq_f32 v38, v34")
        b.c("XN write addr")
        b(f"s_lshl_b32 s55, s{S_W}, 2")
        b("v_add_u32 v7, s55, v2")
        b("v_mov_b32 v39, v38")
        b("v_mul_f32 v36, v32, v38")
        b("v_sub_f32 v36, 0, v36")
        b("v_mov_b32 v37, v36")
        for i in range(16):
            b(f"v_pk_fma_f32 v[{64+2*i}:{65+2*i}], v[{64+2*i}:{65+2*i}], v[38:39], v[36:37]")
        b("v_and_b32 v8, 7, v3")
        b("v_xor_b32 v7, v7, v8")
        b("v_lshlrev_b32 v7, 4, v7")
        b("v_lshrrev_b32 v8, 1, v3")
        b("v_lshl_add_u32 v7, v8, 10, v7")
        b("v_and_b32 v8, 1, v3")
        b("v_lshl_add_u32 v7, v8, 9, v7")
        for i in range(4):
            for e in range(4):
                b(f"v_cvt_pk_bf16_f32 v{16+4*i+e}, v{64+8*i+2*e}, v{65+8*i+2*e}")
            b(f"ds_write_b128 v7, v[{16+4*i}:{19+4*i}] offset:{L_XN + i*8192}")

    a.L.extend(b.L)
    wq_dma(1); wq_dma(2)
    a("v_lshrrev_b32 v8, 5, v0")
    a("v_and_b32 v9, 31, v0")
    for m in range(4):
        a(f"v_add_u32 v10, {2*m}, v8")
        a("v_xor_b32 v10, v9, v10")
        a("v_lshlrev_b32 v10, 4, v10")
        a(f"v_lshl_add_u32 v{40+m}, v8, 9, v10")
    a("v_lshrrev_b32 v10, 2, v3")
    a("v_and_b32 v11, 3, v3")
    a("v_lshl_add_u32 v12, v8, 3, v10")
    a.c("wq fragment rows 0..15 = head 2p, rows 16..31 = head 2p+1 ; chunk = 4p + 2blk + (cg>>1), swizzled by r4<<2")
    a(f"s_and_b32 s55, s{S_W}, 3")
    a("s_lshl_b32 s55, s55, 2")
    a("v_lshrrev_b32 v13, 1, v11")
    a("v_add_u32 v13, s55, v13")
    a("v_and_b32 v14, 1, v2")
    a("v_lshl_add_u32 v13, v14, 1, v13")
    a("v_lshlrev_b32 v14, 2, v10")
    a("v_xor_b32 v13, v13, v14")
    a("v_lshlrev_b32 v13, 4, v13")
    a("v_lshl_add_u32 v13, v12, 8, v13")
    a("v_and_b32 v14, 1, v11")
    a("v_lshl_add_u32 v13, v14, 3, v13")
    a(f"s_lshr_b32 s55, s{S_W}, 2")
    a("s_lshl_b32 s55, s55, 12")
    a(f"s_add_u32 s55, s55, {L_WQ}")
    a("v_add_u32 v44, s55, v13")
    stamp(a, "p0")
    a("s_waitcnt lgkmcnt(0)")
    a.c("launch tag: a fixed-point-free bijection of the tag the previous launch left (any value works)")
    a(f"s_mul_i32 s{S_NONCE}, s{S_NONCE}, 0x9E3779B1")
    a(f"s_add_u32 s{S_NONCE}, s{S_NONCE}, 0x7F4A7C15")
    a("s_barrier")
    stamp(a); stamp(a, "p0")
    lx = a.newlabel("xid")
    a(f"s_cmp_lg_u32 s{S_W}, 3")
    a(f"s_cbranch_scc1 {lx}")
    a.c("tell the other members of the group which XCD this workgroup runs on")
    a("s_getreg_b32 s55, hwreg(HW_REG_XCC_ID, 0, 4)")
    a(f"v_mov_b32 v50, s{S_NONCE}")
    a("v_mov_b32 v51, s55")
    a("v_lshlrev_b32 v52, 3, v0")
    a(f"s_lshl_b32 s55, s{S_G}, 4")
    a(f"s_add_u32 s55, s55, s{S_J}")
    a("s_lshl_b32 s55, s55, 7")
    a(f"s_add_u32 s55, s55, {FLG_X}")
    a("s_mov_b64 exec, 0xffff")
    a(f"buffer_store_dwordx2 v[50:51], v52, {WS}, s55 offen sc1")
    a("s_mov_b64 exec, -1")
    a.label(lx)
    lkvd = a.newlabel("kvdone"); lkv1 = a.newlabel("kv1"); lkv0 = a.newlabel("kv0")
    a(f"s_cmp_eq_u32 s{S_HQ}, 0")
    a(f"s_cbranch_scc1 {lkv0}")
    wq_dma(3)
    a("s_waitcnt vmcnt(12) lgkmcnt(0)")
    lkv2 = a.newlabel("kv2")
    a(f"s_branch {lkv2}")
    a.label(lkv0)
    a.c("tr addr: blk0 -> WV, blk1 -> WK ; row (64w + 16e + 8khalf + 4rd + r4)*32 + cg*8")
    a("v_lshlrev_b32 v13, 5, v12")
    a("v_lshl_add_u32 v13, v11, 3, v13")
    a(f"s_lshl_b32 s55, s{S_W}, 11")
    a("v_add_u32 v13, s55, v13")
    a("v_and_b32 v14, 1, v2")
    a(f"v_mov_b32 v15, {L_WV}")
    a(f"v_mov_b32 v45, {L_WK}")
    a("v_cmp_eq_u32 vcc, 1, v14")
    a("s_nop 1")
    a("v_cndmask_b32 v15, v15, v45, vcc")
    a("v_add_u32 v13, v13, v15")
    a.c("xn frags for k-steps 4w..4w+3 : s&3 = e")
    a(f"s_lshl_b32 s55, s{S_W}, 12")
    for e in range(4):
        a(f"v_add_u32 v{46+e}, s55, v{40+e}")
    for e in range(4):
        a(f"ds_read_b64_tr_b16 v[{64+4*e}:{65+4*e}], v13 offset:{e*512}")
        a(f"ds_read_b64_tr_b16 v[{66+4*e}:{67+4*e}], v13 offset:{e*512+128}")
        a(f"ds_read_b128 v[{80+4*e}:{83+4*e}], v{46+e} offset:{L_XN + e*1024}")
    for e in range(4):
        a(f"s_waitcnt lgkmcnt({9-3*e})")
        mfma(a, 96, 64 + 4 * e, 80 + 4 * e, None if e == 0 else 96)
    a.c("RED: q=0,1 -> WK + w*2048 + q*1024 ; q=2,3 -> WV + w*2048 + (q-2)*1024  (own, already consumed rows)")
    a(f"s_lshl_b32 s55, s{S_W}, 11")
    a(f"s_add_u32 s55, s55, {L_WK}")
    a("v_add_u32 v14, s55, v6")
    a(f"v_add_u32 v15, {L_WV - L_WK}, v14")
    a("s_nop 10")
    a("ds_write_b128 v14, v[96:99]")
    a("ds_write_b128 v14, v[100:103] offset:1024")
    a("ds_write_b128 v15, v[104:107]")
    a("ds_write_b128 v15, v[108:111] offset:1024")
    a.label(lkv1)
    stamp(a, "p0")
    a("s_waitcnt vmcnt(8) lgkmcnt(0)")
    a.label(lkv2)
    stamp(a, "p0")
    a("s_barrier")
    stamp(a, "p0")
    a(f"s_cmp_lg_u32 s{S_HQ}, 0")
    a(f"s_cbranch_scc1 {lkvd}")
    lv = a.newlabel("kv_v")
    a(f"s_cmp_eq_u32 s{S_W}, 1")
    a(f"s_cbranch_scc1 {lv}")
    a(f"s_cmp_lg_u32 s{S_W}, 0")
    a(f"s_cbranch_scc1 {lkvd}")
    def red8(base):
        a(f"v_add_u32 v14, {base}, v6")
        for ww in range(8):
            a(f"ds_read_b128 v[{64+8*ww}:{67+8*ww}], v14 offset:{ww*2048}")
            a(f"ds_read_b128 v[{68+8*ww}:{71+8*ww}], v14 offset:{ww*2048+1024}")
            if ww == 3: a("s_waitcnt lgkmcnt(4)")
        a("s_waitcnt lgkmcnt(0)")
        for ww in range(1, 8):
            for i in range(4):
                a(f"v_pk_add_f32 v[{64+2*i}:{65+2*i}], v[{64+2*i}:{65+2*i}], v[{64+8*ww+2*i}:{65+8*ww+2*i}]")
        for r in range(4):
            a(f"v_cvt_pk_bf16_f32 v{76+r}, v{64+2*r}, v{65+2*r}")
    red8(L_WV)
    a(f"s_lshl_b32 s55, s{S_TBK}, 10")
    a(f"s_add_u32 s55, s55, {KF}")
    a(f"buffer_store_dwordx4 v[76:79], v6, {WS}, s55 offen sc1")
    a("v_mov_b32 v80, 0")
    for r in range(4):
        a(f"v_dot2_f32_bf16 v80, v{76+r}, v{76+r}, v80")
    a("s_nop 2")
    xhalf(a, 80, 81, "v_add_f32")
    dpp_sum16(a, 80, "v_max_f32")
    xrow16(a, 80, 81, "v_max_f32")
    a(f"v_mov_b32 v{QSAVE+9}, v80")
    a(f"s_branch {lkvd}")
    a.label(lv)
    red8(L_WK)
    a("v_lshlrev_b32 v80, 5, v9")
    a("v_lshl_add_u32 v80, v8, 3, v80")
    a(f"v_add_u32 v80, {L_WK}, v80")
    a("ds_write_b64 v80, v[76:77]")
    a("ds_write_b64 v80, v[78:79] offset:16")
    a("v_lshl_add_u32 v81, v8, 2, v10")
    a("v_lshlrev_b32 v81, 5, v81")
    a("v_and_b32 v82, 1, v11")
    a("v_lshlrev_b32 v82, 1, v82")
    a("v_lshrrev_b32 v83, 1, v11")
    a("v_add_u32 v82, v82, v83")
    a("v_lshl_add_u32 v81, v82, 3, v81")
    a(f"v_add_u32 v81, {L_WK}, v81")
    a("s_waitcnt lgkmcnt(0)")
    for c2 in range(2):
        for rd in range(2):
            d = 84 + 4 * c2 + 2 * rd
            a(f"ds_read_b64_tr_b16 v[{d}:{d+1}], v81 offset:{(16*c2 + 8*rd) * 32}")
    a("v_lshl_add_u32 v82, v8, 4, v3")
    a("v_lshlrev_b32 v82, 4, v82")
    a(f"s_lshl_b32 s55, s{S_TBK}, 10")
    a(f"s_add_u32 s55, s55, {VF}")
    a("s_waitcnt lgkmcnt(0)")
    a("s_mov_b32 exec_lo, 0x0000ffff")
    a("s_mov_b32 exec_hi, 0x0000ffff")
    a(f"buffer_store_dwordx4 v[84:87], v82, {WS}, s55 offen sc1")
    a(f"buffer_store_dwordx4 v[88:91], v82, {WS}, s55 offen offset:512 sc1")
    a("s_mov_b64 exec, -1")
    a.label(lkvd)
    a("v_add_u32 v45, 1024, v44")
    stamp(a, "p0")
    def publish_kv():
        lnf = a.newlabel("noflag")
        a(f"s_cmp_lg_u32 s{S_HQ}, 0")
        a(f"s_cbranch_scc1 {lnf}")
        a(f"s_cmp_lg_u32 s{S_W}, 0")
        a(f"s_cbranch_scc1 {lnf}")
        a(f"s_lshl_b32 s55, s{S_TBK}, 7")
        a(f"s_add_u32 s55, s55, {FLG_A}")
        a("v_lshlrev_b32 v80, 3, v0")
        a(f"v_mov_b32 v{QSAVE+8}, s{S_NONCE}")
        a("s_mov_b64 exec, 0xffff")
        a(f"buffer_store_dwordx2 v[{QSAVE+8}:{QSAVE+9}], v80, {WS}, s55 offen sc1")
        a("s_mov_b64 exec, -1")
        a.label(lnf)
    ACC = 96
    NB = 3; PD = 2
    AB = [112 + 8 * i for i in range(NB)]; BB = [116 + 8 * i for i in range(NB)]
    a.c("x fragment addresses: k-step s = 2u + kh, swizzle index s&3 = (2(u&1) + kh)")
    a(f"s_lshr_b32 s55, s{S_W}, 2")
    a("s_cmp_eq_u32 s55, 0")
    a("s_cselect_b64 vcc, -1, 0")
    a("s_lshl_b32 s55, s55, 10")
    a("v_cndmask_b32 v46, v41, v40, vcc")
    a("v_cndmask_b32 v47, v43, v42, vcc")
    a("v_add_u32 v46, s55, v46")
    a("v_add_u32 v47, s55, v47")
    def issue(u):
        A = AB[u % NB]; B = BB[u % NB]
        a.lg(f"ds_read_b64_tr_b16 v[{A}:{A+1}], v44", u)
        a.lg(f"ds_read_b64_tr_b16 v[{A+2}:{A+3}], v45", u)
        a.lg(f"ds_read_b128 v[{B}:{B+3}], v{46 + (u & 1)} offset:{L_XN + u*2048}", u)
        a("v_add_u32 v44, 8192, v44"); a("v_add_u32 v45, 8192, v45")
    def quarter_wait(q):
        lk = a.newlabel("qk"); le = a.newlabel("qe")
        a(f"s_cmp_eq_u32 s{S_HQ}, 0")
        a(f"s_cbranch_scc1 {lk}")
        a(f"s_waitcnt vmcnt({4 * (3 - q)})")
        a(f"s_branch {le}")
        a.label(lk)
        if q != 2: a("s_waitcnt vmcnt(0)")
        a.label(le)
        a("s_barrier")
    a.lgq = []
    for u in range(PD): issue(u)
    for u in range(16):
        if u in (1, 4, 8, 9, 12, 15) and PROFILE and STAMPSET == "q":
            stamp(a, "q"); a.lgq = []
        if u + PD < 16:
            if u + PD == 4:
                quarter_wait(1)
                stamp(a, "p0"); a.lgq = [] if PROFILE and STAMPSET == "p0" else a.lgq
                publish_kv()
                l3 = a.newlabel("q3b")
                a(f"s_cmp_lg_u32 s{S_HQ}, 0")
                a(f"s_cbranch_scc1 {l3}")
                wq_dma(3)
                a.label(l3)
            if u + PD == 8: quarter_wait(2)
            if u + PD == 12: quarter_wait(3)
            issue(u + PD)
        a.lg_wait(u)
        mfma(a, ACC, AB[u % NB], BB[u % NB], None if u == 0 else ACC)
    stamp(a, "q")
    a.c("add the other half of the k range (wave w ^ 4); exchange through wq slot 0")
    a(f"s_lshl_b32 s55, s{S_W}, 12")
    a(f"s_add_u32 s55, s55, {L_WQ}")
    a("v_add_u32 v14, s55, v6")
    a(f"s_xor_b32 s55, s{S_W}, 4")
    a("s_lshl_b32 s55, s55, 12")
    a(f"s_add_u32 s55, s55, {L_WQ}")
    a("v_add_u32 v15, s55, v6")
    a("s_nop 9")
    for q in range(4):
        a(f"ds_write_b128 v14, v[{ACC+4*q}:{ACC+4*q+3}] offset:{q*1024}")
    a("s_waitcnt lgkmcnt(0)")
    a("s_barrier")
    stamp(a, "q")
    for q in range(4):
        a(f"ds_read_b128 v[{64+4*q}:{67+4*q}], v15 offset:{q*1024}")
    a(f"v_mov_b32 v36, {f32hex(QSCALE)}")
    a("v_mov_b32 v37, v36")
    a("s_waitcnt lgkmcnt(0)")
    for i in range(8):
        a(f"v_pk_add_f32 v[{64+2*i}:{65+2*i}], v[{64+2*i}:{65+2*i}], v[{ACC+2*i}:{ACC+2*i+1}]")
    for i in range(8):
        a(f"v_pk_mul_f32 v[{64+2*i}:{65+2*i}], v[{64+2*i}:{65+2*i}], v[36:37]")
    for r in range(8):
        a(f"v_cvt_pk_bf16_f32 v{QSAVE+r}, v{64+2*r}, v{65+2*r}")
    stamp(a); stamp(a, "p0"); stamp(a, "q")
    a("s_barrier")
    stamp(a, "p0")

L_SCR = 131072
S_JOB = 78
V_WJS, V_WJT, V_WJC = 140, 141, 142
SRD_J1, SRD_J2 = 20, 36
def wj_setup(a):
    a("v_lshrrev_b32 v143, 4, v0")
    a("v_and_b32 v144, 15, v0")
    a("v_lshrrev_b32 v145, 5, v0")
    a("v_lshrrev_b32 v146, 2, v144")
    a("v_and_b32 v147, 3, v144")
    a("v_and_b32 v148, 1, v147")
    a("v_lshlrev_b32 v148, 1, v148")
    a("v_lshrrev_b32 v149, 1, v147")
    a("v_add_u32 v148, v148, v149")
    a("v_lshlrev_b32 v148, 3, v148")
    a("v_and_b32 v149, 1, v143")
    a("v_lshl_add_u32 v150, v145, 3, v146")
    a(f"s_lshl_b32 s57, s{S_W}, 12")
    a(f"s_add_u32 s57, s57, {L_SCR}")
    a(f"s_mov_b32 s{S_JOB}, 0")
    lo = a.newlabel("wjo"); ld = a.newlabel("wjd")
    a("s_cmp_ge_u32 s2, 112")
    a(f"s_cbranch_scc1 {lo}")
    a(f"s_mov_b32 s{S_JOB}, 1")
    a("s_lshr_b32 s60, s2, 2")
    a("s_and_b32 s61, s2, 3")
    a("s_lshl_b32 s62, s61, 3")
    a(f"s_add_u32 s62, s62, s{S_W}")
    mk_srd(a, SRD_J1, P_WG, 512 * 3584)
    mk_srd(a, SRD_J2, P_WU, 512 * 3584)
    a("v_lshrrev_b32 v151, 3, v0")
    a("s_mov_b32 s63, 3584")
    a("v_mul_lo_u32 v151, v151, s63")
    a("v_and_b32 v152, 7, v0")
    a(f"v_lshl_add_u32 v{V_WJS}, v152, 4, v151")
    a("s_mul_i32 s58, s62, 57344")
    a("s_lshl_b32 s63, s60, 7")
    a("s_add_u32 s58, s58, s63")
    a("v_lshlrev_b32 v151, 7, v150")
    a("v_lshl_add_u32 v151, v149, 11, v151")
    a("v_add_u32 v151, v151, v148")
    a(f"v_add_u32 v{V_WJT}, s57, v151")
    a("s_lshl_b32 s59, s60, 7")
    a("s_add_u32 s59, s59, s62")
    a("s_lshl_b32 s59, s59, 10")
    a(f"s_add_u32 s59, s59, {WGF}")
    a("s_mul_i32 s72, s61, 112")
    a("s_lshl_b32 s63, s60, 2")
    a("s_add_u32 s72, s72, s63")
    a("s_lshl_b32 s72, s72, 7")
    a(f"s_add_u32 s72, s72, {CSP}")
    a("v_lshlrev_b32 v151, 2, v0")
    a(f"v_add_u32 v{V_WJC}, s57, v151")
    a(f"s_branch {ld}")
    a.label(lo)
    a("s_cmp_ge_u32 s2, 184")
    a(f"s_cbranch_scc1 {ld}")
    a("s_sub_u32 s60, s2, 112")
    a("s_lshl_b32 s60, s60, 3")
    a(f"s_add_u32 s60, s60, s{S_W}")
    lwd = a.newlabel("wjwd")
    a("s_cmp_ge_u32 s60, 128")
    a(f"s_cbranch_scc1 {lwd}")
    a(f"s_mov_b32 s{S_JOB}, 3")
    mk_srd(a, SRD_J1, P_WO, 512 * 1024)
    a("s_lshr_b32 s61, s60, 3")
    a("s_and_b32 s62, s60, 7")
    a("v_lshrrev_b32 v151, 3, v0")
    a("v_lshlrev_b32 v151, 10, v151")
    a("v_and_b32 v152, 7, v0")
    a(f"v_lshl_add_u32 v{V_WJS}, v152, 4, v151")
    a("s_lshl_b32 s58, s61, 15")
    a("s_lshl_b32 s60, s62, 7")
    a("s_add_u32 s58, s58, s60")
    a("s_mov_b32 s69, 8192")
    a("v_lshl_add_u32 v151, v143, 3, v146")
    a("v_lshlrev_b32 v151, 7, v151")
    a("v_lshl_add_u32 v151, v147, 3, v151")
    a(f"v_add_u32 v{V_WJT}, s57, v151")
    a("s_lshl_b32 s59, s62, 6")
    a("s_add_u32 s59, s59, s61")
    a("s_lshl_b32 s59, s59, 10")
    a(f"s_add_u32 s59, s59, {WOF}")
    a("s_mov_b32 s72, 16384")
    a(f"s_branch {ld}")
    a.label(lwd)
    a(f"s_mov_b32 s{S_JOB}, 2")
    a("s_sub_u32 s60, s60, 128")
    mk_srd(a, SRD_J1, P_WD, 1792 * 1024)
    a("s_lshr_b32 s61, s60, 2")
    a("s_and_b32 s62, s60, 3")
    a("v_lshlrev_b32 v151, 10, v143")
    a(f"v_lshl_add_u32 v{V_WJS}, v144, 4, v151")
    a("s_lshl_b32 s58, s61, 14")
    a("s_lshl_b32 s60, s62, 8")
    a("s_add_u32 s58, s58, s60")
    a("s_mov_b32 s69, 4096")
    a("v_lshlrev_b32 v151, 8, v150")
    a("v_lshl_add_u32 v151, v149, 5, v151")
    a("v_add_u32 v151, v151, v148")
    a(f"v_add_u32 v{V_WJT}, s57, v151")
    a("s_lshl_b32 s59, s62, 2")
    a("s_mul_i32 s59, s59, 112")
    a("s_add_u32 s59, s59, s61")
    a("s_lshl_b32 s59, s59, 10")
    a(f"s_add_u32 s59, s59, {WDF}")
    a(f"s_mov_b32 s72, {112*1024}")
    a.label(ld)

def wj_branch(a, g_code, o_code):
    lo = a.newlabel("jo"); le = a.newlabel("je")
    a(f"s_cmp_eq_u32 s{S_JOB}, 1")
    a(f"s_cbranch_scc0 {lo}")
    if g_code: g_code()
    a(f"s_branch {le}")
    a.label(lo)
    if o_code:
        a(f"s_cmp_eq_u32 s{S_JOB}, 0")
        a(f"s_cbranch_scc1 {le}")
        o_code()
    a.label(le)

def wj_issue(a, part=None):
    def g():
        for i in ([0, 1] if part is None else [part]):
            a(f"s_add_u32 m0, s57, {i*1024}")
            a(f"s_add_u32 s63, s58, {i*8*3584}")
            a(f"buffer_load_dwordx4 v{V_WJS}, s[{SRD_J1}:{SRD_J1+3}], s63 offen lds")
            a(f"s_add_u32 m0, s57, {2048 + i*1024}")
            a("s_nop 0")
            a(f"buffer_load_dwordx4 v{V_WJS}, s[{SRD_J2}:{SRD_J2+3}], s63 offen lds")
    def o():
        for i in (range(4) if part is None else [2 * part, 2 * part + 1]):
            a(f"s_add_u32 m0, s57, {i*1024}")
            a(f"s_mul_i32 s63, s69, {i}")
            a(f"s_add_u32 s63, s63, s58")
            a(f"buffer_load_dwordx4 v{V_WJS}, s[{SRD_J1}:{SRD_J1+3}], s63 offen lds")
    wj_branch(a, g, o)

def wj_read(a, n_younger):
    def rd(st, rdoff):
        def f():
            a(f"s_waitcnt vmcnt({n_younger})")
            for q in range(4):
                d = 112 + 4 * q
                a(f"ds_read_b64_tr_b16 v[{d}:{d+1}], v{V_WJT} offset:{q*st}")
                a(f"ds_read_b64_tr_b16 v[{d+2}:{d+3}], v{V_WJT} offset:{q*st + rdoff}")
        return f
    l2 = a.newlabel("jr2"); le = a.newlabel("jre")
    a(f"s_cmp_eq_u32 s{S_JOB}, 0")
    a(f"s_cbranch_scc1 {le}")
    a(f"s_cmp_eq_u32 s{S_JOB}, 2")
    a(f"s_cbranch_scc1 {l2}")
    rd(32, 512)()
    a(f"s_branch {le}")
    a.label(l2)
    rd(64, 1024)()
    a.label(le)

def wj_store(a):
    def g():
        for r in range(4):
            a(f"v_mov_b32 v{128+r}, 0x3f803f80")
        for q in range(4):
            d = 112 + 4 * q
            a(f"s_add_u32 s63, s59, {q*32768}")
            a(f"buffer_store_dwordx4 v[{d}:{d+3}], v1, {WS}, s63 offen sc1")
        for q in range(4):
            mfma(a, 160 + 16 * q, 128, 112 + 4 * q, None)
    def o():
        a("s_mov_b32 s63, s59")
        for q in range(4):
            d = 112 + 4 * q
            a(f"buffer_store_dwordx4 v[{d}:{d+3}], v1, {WS}, s63 offen sc1")
            if q < 3: a("s_add_u32 s63, s63, s72")
    wj_branch(a, g, o)

def wj_cspart(a):
    def g():
        a("s_mov_b32 exec_hi, 0")
        for q in range(4):
            a(f"ds_write_b32 v{V_WJC}, v{160 + 16 * q} offset:{q*128}")
        a("s_mov_b64 exec, -1")
    wj_branch(a, g, None)

def wj_csread(a):
    def g():
        l = a.newlabel("csr")
        a(f"s_cmp_ge_u32 s{S_W}, 2")
        a(f"s_cbranch_scc1 {l}")
        a(f"s_lshl_b32 s63, s{S_W}, 8")
        a("v_lshlrev_b32 v132, 2, v0")
        a("v_add_u32 v132, s63, v132")
        a(f"v_add_u32 v133, {L_SCR}, v132")
        for ww in range(8):
            a(f"ds_read_b32 v{112+ww}, v133 offset:{ww*4096}")
        a.label(l)
    wj_branch(a, g, None)

def wj_csstore(a):
    def g():
        l = a.newlabel("css")
        a(f"s_cmp_ge_u32 s{S_W}, 2")
        a(f"s_cbranch_scc1 {l}")
        for ww in range(1, 8):
            a(f"v_add_f32 v112, v112, v{112+ww}")
        a(f"buffer_store_dword v112, v132, {WS}, s72 offen sc1")
        a.label(l)
    wj_branch(a, g, None)

def wj_signal(a):
    l = a.newlabel("wsig")
    a(f"s_cmp_eq_u32 s{S_JOB}, 0")
    a(f"s_cbranch_scc1 {l}")
    a(f"s_cmp_lg_u32 s{S_W}, 0")
    a(f"s_cbranch_scc1 {l}")
    a("s_lshl_b32 s63, s2, 7")
    a(f"s_add_u32 s63, s63, {FLG_W}")
    set_flag(a, 63, 112)
    a.label(l)

A_Q, A_O, A_S, A_P = 4, 8, [24, 40], 56
A_K = [64, 68]
A_V = [[72, 76], [80, 84]]
A_VK, A_VV = 88, 89
A_NEG = 96
A_Q2, A_O2 = 92, 96
WO_R = 112
NG_LATE = 12
WG_R = 128
XR = 60
BOUND2 = 1600.0

def attn_tile(a, p, extra=None, t=None):
    h = p & 1; i = p >> 1
    S = A_S[h]; Q = [A_Q, A_Q2]; O = [A_O, A_O2]
    def ex(r): a(f"v_exp_f32 v{S+r}, v{S+r}")
    def cv(k): a(f"v_cvt_pk_bf16_f32 v{A_P+k}, v{S+2*k}, v{S+2*k+1}")
    a("s_waitcnt lgkmcnt(0)")
    if h == 0:
        mfma(a, A_S[1], A_K[i & 1], Q[1], None)
    else:
        mfma(a, A_S[0], A_K[(i + 1) & 1], Q[0], None)
        a(f"ds_read_b128 v[{A_K[i & 1]}:{A_K[i & 1]+3}], v{A_VK} offset:{(i+2)*1024}")
    ex(0); ex(1); ex(2); ex(3)
    cv(0)
    if h == 0:
        if t != 0: mfma(a, O[1], A_V[1][(i - 1) & 1], A_P + 4, O[1])
        nb = (i + 1) & 1
        a("s_mov_b64 exec, s[70:71]")
        a(f"ds_read_b128 v[{A_V[0][nb]}:{A_V[0][nb]+3}], v{A_VV} offset:{(i+1)*1024}")
        a(f"ds_read_b128 v[{A_V[1][nb]}:{A_V[1][nb]+3}], v{A_VV} offset:{(i+1)*1024 + 512}")
        a("s_mov_b64 exec, -1")
    else:
        mfma(a, O[0], A_V[1][i & 1], A_P + 4, O[0])
    if extra: extra()
    ex(4); cv(1); ex(5); ex(6); ex(7); cv(2); ex(8); cv(3)
    ex(9); ex(10); ex(11)
    mfma(a, O[h], A_V[0][i & 1], A_P, None if t in (0, 1) else O[h])
    cv(4); ex(12); cv(5); ex(13); ex(14); ex(15); cv(6)
    cv(7)

def wave_consts(a):
    a.c("WOF + (8cq + w)*16384 -> s68")
    a(f"s_lshl_b32 s68, s{S_HQ}, 3")
    a(f"s_add_u32 s68, s68, s{S_W}")
    a("s_lshl_b32 s68, s68, 14")
    a(f"s_add_u32 s68, s68, {WOF}")
    a.c("WGF + fb*32768 -> s73, fb = 7j + w (waves 0..6; wave 7 uses fb of wave 6, harmless duplicate)")
    a(f"s_min_u32 s73, s{S_W}, 6")
    a(f"s_mul_i32 s74, s{S_J}, 7")
    a("s_add_u32 s74, s74, s73")
    a("s_lshl_b32 s73, s74, 15")
    a(f"s_add_u32 s73, s73, {WGF}")

def ld_wg(a, s, tag="WG"):
    a(f"s_add_u32 s75, s73, {(s >> 2) * 4096}")
    a.vm(f"buffer_load_dwordx4 v[{WG_R+4*s}:{WG_R+4*s+3}], v1, {WS}, s75 offen offset:{(s&3)*1024} sc1", (tag, s))
def ld_wo(a, s):
    a(f"s_add_u32 s75, s68, {(s >> 2) * 4096}")
    a.vm(f"buffer_load_dwordx4 v[{WO_R+4*s}:{WO_R+4*s+3}], v1, {WS}, s75 offen offset:{(s&3)*1024} sc1", ("WO", s))

def prefetch_lists():
    it2 = [("g", s) for s in range(7, 32)]
    it3 = [("o", s) for s in range(16)]
    return it2, it3

def kv_dma(a, st, part=None):
    if part in (None, 0):
        a(f"s_add_u32 m0, s54, {st*8192}")
        a(f"s_add_u32 s62, s54, {st*8192 + KF}")
        a(f"buffer_load_dwordx4 v1, {WS}, s62 offen sc1 lds")
        a(f"buffer_load_dwordx4 v1, {WS}, s62 offen offset:1024 sc1 lds")
    if part in (None, 1):
        a(f"s_add_u32 m0, s54, {st*8192 + 65536}")
        a(f"s_add_u32 s62, s54, {st*8192 + VF}")
        a(f"buffer_load_dwordx4 v1, {WS}, s62 offen sc1 lds")
        a(f"buffer_load_dwordx4 v1, {WS}, s62 offen offset:1024 sc1 lds")

def wready_poll(a):
    l = a.newlabel("wrq")
    a(f"s_cmp_lg_u32 s{S_W}, 0")
    a(f"s_cbranch_scc1 {l}")
    a("v_lshlrev_b32 v2, 7, v0")
    a("v_add_u32 v3, 128, v0")
    a("v_min_u32 v3, 183, v3")
    a("v_lshlrev_b32 v3, 7, v3")
    a(f"s_mov_b32 s63, {FLG_W}")
    a(f"buffer_load_dword v112, v2, {WS}, s63 offen sc1")
    a(f"s_mov_b32 s63, {FLG_W + 64*128}")
    a(f"buffer_load_dword v113, v2, {WS}, s63 offen sc1")
    a(f"s_mov_b32 s63, {FLG_W}")
    a(f"buffer_load_dword v114, v3, {WS}, s63 offen sc1")
    a.label(l)
def wready_check(a):
    l = a.newlabel("wrc"); dn = a.newlabel("wrd")
    a(f"s_cmp_lg_u32 s{S_W}, 0")
    a(f"s_cbranch_scc1 {l}")
    def test():
        a("s_waitcnt vmcnt(0)")
        a(f"v_cmp_ne_u32 vcc, s{S_NONCE}, v112")
        a(f"v_cmp_ne_u32 s[62:63], s{S_NONCE}, v113")
        a("s_nop 1")
        a("s_or_b64 s[62:63], s[62:63], vcc")
        a(f"v_cmp_ne_u32 vcc, s{S_NONCE}, v114")
        a("s_nop 4")
        a("s_or_b64 vcc, vcc, s[62:63]")
    test()
    a(f"s_cbranch_vccz {dn}")
    l2 = spin_begin(a, "wrp")
    a(f"s_mov_b32 s63, {FLG_W}")
    a(f"buffer_load_dword v112, v2, {WS}, s63 offen sc1")
    a(f"buffer_load_dword v114, v3, {WS}, s63 offen sc1")
    a(f"s_mov_b32 s63, {FLG_W + 64*128}")
    a(f"buffer_load_dword v113, v2, {WS}, s63 offen sc1")
    test()
    spin_end(a, l2, dn, 4)
    a.label(l)
    a("s_barrier")

def local_poll(a):
    a("v_lshlrev_b32 v118, 7, v0")
    a(f"s_lshl_b32 s62, s{S_G}, 11")
    a(f"s_add_u32 s62, s62, {FLG_X}")
    a("s_mov_b64 exec, 0xffff")
    a(f"buffer_load_dwordx2 v[116:117], v118, {WS}, s62 offen sc1")
    a("s_mov_b64 exec, -1")
def local_check(a):
    dn = a.newlabel("lcd")
    a(f"s_lshl_b32 s62, s{S_G}, 11")
    a(f"s_add_u32 s62, s62, {FLG_X}")
    a("s_mov_b64 exec, 0xffff")
    a("s_waitcnt vmcnt(0)")
    a(f"v_cmp_ne_u32 vcc, s{S_NONCE}, v116")
    a("s_nop 4")
    a(f"s_cbranch_vccz {dn}")
    l = spin_begin(a, "lcp")
    a(f"buffer_load_dwordx2 v[116:117], v118, {WS}, s62 offen sc1")
    a("s_waitcnt vmcnt(0)")
    a(f"v_cmp_ne_u32 vcc, s{S_NONCE}, v116")
    spin_end(a, l, dn, 4)
    a("s_getreg_b32 s62, hwreg(HW_REG_XCC_ID, 0, 4)")
    a("v_cmp_ne_u32 vcc, s62, v117")
    a(f"v_cmp_ne_u32 s[62:63], s{S_NONCE}, v116")
    a("s_mov_b64 exec, -1")
    a("s_nop 2")
    a("s_or_b64 vcc, vcc, s[62:63]")
    a("s_cmp_eq_u64 vcc, 0")
    a(f"s_cselect_b32 s{S_LOCAL}, 1, 0")

def x_residual(a):
    mk_srd(a, SRD_A, P_X, 2048 * 1024)
    a("v_and_b32 v2, 15, v0")
    a("v_lshrrev_b32 v3, 4, v0")
    a("v_lshlrev_b32 v2, 10, v2")
    a("v_lshl_add_u32 v2, v3, 3, v2")
    a(f"s_lshl_b32 s62, s{S_TBK}, 15")
    a(f"s_lshl_b32 s63, s{S_HQ}, 8")
    a("s_add_u32 s62, s62, s63")
    a(f"s_lshl_b32 s63, s{S_W}, 5")
    a("s_add_u32 s62, s62, s63")
    a.vm(f"buffer_load_dwordx2 v[{XRES}:{XRES+1}], v2, s[{SRD_A}:{SRD_A+3}], s62 offen", "XR")
    a("s_add_u32 s62, s62, 16384")
    a.vm(f"buffer_load_dwordx2 v[{XRES+2}:{XRES+3}], v2, s[{SRD_A}:{SRD_A+3}], s62 offen", "XR")
XRES = 4

def hh_prefill(a):
    l = a.newlabel("pf")
    a(f"s_cmp_eq_u32 s{S_W}, 7")
    a(f"s_cbranch_scc1 {l}")
    for r in range(4): a(f"v_mov_b32 v{96+r}, -1")
    a("s_mul_i32 s62, s74, 1024")
    a(f"s_lshl_b32 s63, s{S_G}, 2")
    a("s_mul_i32 s63, s63, 114688")
    a("s_add_u32 s62, s62, s63")
    a(f"s_add_u32 s62, s62, {HHF}")
    for tb in range(4):
        a(f"buffer_store_dwordx4 v[96:99], v1, {WS}, s62 offen sc1")
        if tb < 3: a("s_add_u32 s62, s62, 114688")
    a("s_nop 1")
    a.label(l)

def attention(a):
    L_KM = L_SCR + 4096 - 128
    a("v_lshlrev_b32 v1, 4, v0")
    lp = a.newlabel("sa0")
    a(f"s_cmp_lg_u32 s{S_W}, 0")
    a(f"s_cbranch_scc1 {lp}")
    a("v_lshlrev_b32 v3, 7, v0")
    a(f"s_mov_b32 s55, {FLG_A}")
    a(f"buffer_load_dwordx2 v[112:113], v3, {WS}, s55 offen sc1")
    a.label(lp)
    for r in range(4):
        a(f"v_mov_b32 v{A_Q+r}, v{QSAVE+r}")
        a(f"v_mov_b32 v{A_Q2+r}, v{QSAVE+4+r}")
    a("v_mov_b32 v90, 0")
    a("v_mov_b32 v2, 0")
    for r in range(4):
        a(f"v_dot2_f32_bf16 v90, v{A_Q+r}, v{A_Q+r}, v90")
        a(f"v_dot2_f32_bf16 v2, v{A_Q2+r}, v{A_Q2+r}, v2")
    a("s_mov_b32 s70, 0x0000ffff")
    a("s_mov_b32 s71, 0x0000ffff")
    a("s_mov_b32 s62, 0x00110000" if ZROWS else "s_mov_b32 s62, -1"); a("s_mov_b32 s63, s62")
    a("v_mov_b32 v91, 0x3f803f80")
    for r in range(16): a(f"v_cndmask_b32 v{72+r}, 0, v91, s[62:63]")
    xhalf(a, 90, 91, "v_add_f32")
    xhalf(a, 2, 91, "v_add_f32")
    a("v_max_f32 v90, v90, v2")
    dpp_sum16(a, 90, "v_max_f32")
    xrow16(a, 90, 91, "v_max_f32")
    a(f"s_lshl_b32 s61, s{S_W}, 2")
    a(f"s_add_u32 s61, s61, {L_KM + 64}")
    a("v_mov_b32 v91, s61")
    a("s_mov_b64 exec, 1")
    a("ds_write_b32 v91, v90")
    a("s_mov_b64 exec, -1")
    a(f"s_lshr_b32 s61, s{S_W}, 2")
    a("s_lshl_b32 s61, s61, 15")
    a(f"v_add_u32 v{A_VK}, s61, v1")
    a("v_lshrrev_b32 v90, 5, v0")
    a("v_and_b32 v91, 15, v0")
    a("v_lshl_add_u32 v90, v90, 4, v91")
    a("v_lshlrev_b32 v90, 4, v90")
    a("s_add_u32 s61, s61, 65536")
    a(f"v_add_u32 v{A_VV}, s61, v90")
    wave_consts(a)
    a(f"s_lshr_b32 s54, s{S_W}, 2")
    a("s_lshl_b32 s54, s54, 4")
    a(f"s_and_b32 s61, s{S_W}, 3")
    a("s_add_u32 s54, s54, s61")
    a("s_lshl_b32 s54, s54, 11")
    la = a.newlabel("sa")
    a(f"s_cmp_lg_u32 s{S_W}, 0")
    a(f"s_cbranch_scc1 {la}")
    done = a.newlabel("syncA")
    a("s_waitcnt vmcnt(0)")
    a(f"v_cmp_ne_u32 vcc, s{S_NONCE}, v112")
    a("s_nop 4")
    a(f"s_cbranch_vccz {done}")
    l = spin_begin(a, "pollA")
    a(f"buffer_load_dwordx2 v[112:113], v3, {WS}, s55 offen sc1")
    a("s_waitcnt vmcnt(0)")
    a(f"v_cmp_ne_u32 vcc, s{S_NONCE}, v112")
    spin_end(a, l, done, SYNCA_SLEEP)
    dpp_sum16(a, 113, "v_max_f32")
    xrow16(a, 113, 91, "v_max_f32")
    xhalf(a, 113, 91, "v_max_f32")
    a(f"v_mov_b32 v91, {L_KM}")
    a("s_mov_b64 exec, 1")
    a("ds_write_b32 v91, v113")
    a("s_mov_b64 exec, -1")
    a.label(la)
    a("s_waitcnt lgkmcnt(0)")
    a("s_barrier")
    stamp(a)
    kv_dma(a, 0)
    a.c("any row of the workgroup that might leave the safe range sends the whole workgroup to the max-subtracting path")
    a(f"v_mov_b32 v91, {L_KM}")
    a("ds_read_b32 v3, v91")
    a("ds_read_b128 v[112:115], v91 offset:64")
    a("ds_read_b128 v[116:119], v91 offset:80")
    a("s_waitcnt lgkmcnt(0)")
    a("v_max3_f32 v112, v112, v113, v114")
    a("v_max3_f32 v116, v116, v117, v118")
    a("v_max3_f32 v112, v112, v115, v119")
    a("v_max_f32 v112, v112, v116")
    a("v_mul_f32 v90, v112, v3")
    a(f"v_mov_b32 v91, {f32hex(BOUND2)}")
    a("v_cmp_gt_f32 vcc, v90, v91")
    a("s_waitcnt vmcnt(0)")
    a("s_cmp_lg_u64 vcc, 0")
    a("s_cselect_b32 s61, 1, 0")
    a("s_barrier")
    a(f"ds_read_b128 v[{A_K[0]}:{A_K[0]+3}], v{A_VK}")
    a(f"ds_read_b128 v[{A_K[1]}:{A_K[1]+3}], v{A_VK} offset:1024")
    a("s_mov_b64 exec, s[70:71]")
    a(f"ds_read_b128 v[{A_V[0][0]}:{A_V[0][0]+3}], v{A_VV}")
    a(f"ds_read_b128 v[{A_V[1][0]}:{A_V[1][0]+3}], v{A_VV} offset:512")
    a("s_mov_b64 exec, -1")
    a("s_waitcnt lgkmcnt(0)")
    lslow = a.newlabel("slow"); lepi = a.newlabel("attn_epi")
    a("s_cmp_lg_u32 s61, 0")
    a(f"s_cbranch_scc1 {lslow}")
    stamp(a)
    mfma(a, A_S[0], A_K[0], A_Q, None)
    it_pref = [("g", s) for s in range(NG_LATE, 32)] + [("o", s) for s in range(16)]
    NPF0, NPF1 = 36, 62
    a("s_nop 15")
    a.vm_reset()
    def extra_for(t):
        def f():
            if t in (0, 1): kv_dma(a, 1, t)
            if t == 1: wj_setup(a)
            if t in (2, 3): wj_issue(a, t - 2)
            if t in (4, 5): kv_dma(a, 2, t - 4)
            if t in (6, 7): kv_dma(a, 3, t - 6)
            if t == 12: wj_read(a, 8)
            if t == 13: wj_store(a)
            if t == 15: wj_cspart(a)
            if t == 16: wj_csread(a)
            if t == 17: wj_csstore(a)
            if t == 33: wready_poll(a); local_poll(a)
            if t == 36: local_check(a)
            if NPF0 <= t < NPF1:
                k0 = (t - NPF0) * len(it_pref) // (NPF1 - NPF0); k1 = (t + 1 - NPF0) * len(it_pref) // (NPF1 - NPF0)
                for k, s in it_pref[k0:k1]:
                    (ld_wg if k == "g" else ld_wo)(a, s)
            if SENT_D and t == 40: hh_prefill(a)
            if t == 62: x_residual(a)
        return f
    for t in range(64):
        p = t & 15
        if t in (0, 4, 8, 12, 16, 20, 24, 28, 32, 36, 40, 48, 56, 63): stamp(a, "attn")
        if t > 0 and t % 4 == 0 and (t % BAR_EVERY == 0 or t in (12, 16, 24, 36)):
            if t == 12:
                a("s_waitcnt vmcnt(8)")
            if t == 16:
                a("s_waitcnt lgkmcnt(0)")
            if t == 24:
                a("s_waitcnt vmcnt(0)")
            if t == 36:
                wready_check(a)
            else:
                a("s_barrier")
            if t == 24:
                wj_signal(a)
        if PRIO:
            a(f"s_setprio {3 - (t & 3)}")
        if ALTP and t % ALTP == 0:
            hi_first = (t // ALTP) & 1
            l1 = a.newlabel("ap"); l2 = a.newlabel("aq")
            a(f"s_cmp_lt_u32 s{S_W}, 4")
            a(f"s_cbranch_scc1 {l1}")
            a(f"s_setprio {1 - hi_first}")
            a(f"s_branch {l2}")
            a.label(l1)
            a(f"s_setprio {hi_first}")
            a.label(l2)
        attn_tile(a, p, extra_for(t), t)
        if p == 15 and t < 63:
            a(f"v_add_u32 v{A_VK}, 8192, v{A_VK}")
            a(f"v_add_u32 v{A_VV}, 8192, v{A_VV}")
    if PRIO or ALTP: a("s_setprio 0")
    a("s_nop 1")
    mfma(a, A_O2, A_V[1][1], A_P + 4, A_O2)
    a(f"s_branch {lepi}")
    a.label(lslow)
    for st in range(1, 4):
        kv_dma(a, st)
    for r in range(16):
        a(f"v_mov_b32 v{A_O+r}, 0")
        a(f"v_mov_b32 v{A_O2+r}, 0")
    wj_setup(a)
    wj_issue(a)
    wj_read(a, 0)
    a("s_waitcnt lgkmcnt(0)")
    wj_store(a)
    a("s_nop 15")
    wj_cspart(a)
    a("s_waitcnt vmcnt(0) lgkmcnt(0)")
    a("s_barrier")
    wj_csread(a)
    a("s_waitcnt lgkmcnt(0)")
    wj_csstore(a)
    a("s_waitcnt vmcnt(0)")
    a("s_barrier")
    wj_signal(a)
    NEG = [112, 128]
    for h in range(2):
        Qh = [A_Q, A_Q2][h]
        a(f"v_mov_b32 v{2+h}, 0xff800000")
        a(f"v_mov_b32 v90, v{A_VK}")
        a("s_mov_b32 s55, 0")
        l1 = a.newlabel("s1")
        a.label(l1)
        a(f"ds_read_b128 v[{A_K[0]}:{A_K[0]+3}], v90")
        a("s_waitcnt lgkmcnt(0)")
        mfma(a, A_S[0], A_K[0], Qh, None)
        a("s_nop 15")
        for r in range(8):
            a(f"v_max3_f32 v{2+h}, v{A_S[0]+2*r}, v{A_S[0]+2*r+1}, v{2+h}")
        a("v_add_u32 v90, 1024, v90")
        a("s_add_u32 s55, s55, 1")
        a("s_cmp_lt_u32 s55, 32")
        a(f"s_cbranch_scc1 {l1}")
        xhalf(a, 2 + h, 91, "v_max_f32")
    a.c("the other half of the keys belongs to wave w ^ 4: exchange the maxima")
    a(f"s_lshl_b32 s55, s{S_W}, 12")
    a(f"s_add_u32 s55, s55, {L_SCR}")
    a("v_lshlrev_b32 v90, 3, v0")
    a("v_add_u32 v91, s55, v90")
    a("ds_write_b64 v91, v[2:3]")
    a(f"s_xor_b32 s55, s{S_W}, 4")
    a("s_lshl_b32 s55, s55, 12")
    a(f"s_add_u32 s55, s55, {L_SCR}")
    a("v_add_u32 v91, s55, v90")
    a("s_waitcnt lgkmcnt(0)")
    a("s_barrier")
    a("ds_read_b64 v[90:91], v91")
    a("s_waitcnt lgkmcnt(0)")
    a("v_max_f32 v2, v2, v90")
    a("v_max_f32 v3, v3, v91")
    for h in range(2):
        for r in range(16):
            a(f"v_sub_f32 v{NEG[h]+r}, 0, v{2+h}")
    for h in range(2):
        Qh = [A_Q, A_Q2][h]; Oh = [A_O, A_O2][h]
        a(f"v_mov_b32 v90, v{A_VK}")
        a(f"v_mov_b32 v91, v{A_VV}")
        a("s_mov_b32 s55, 0")
        l2 = a.newlabel("s2")
        a.label(l2)
        a(f"ds_read_b128 v[{A_K[0]}:{A_K[0]+3}], v90")
        a("s_mov_b64 exec, s[70:71]")
        a(f"ds_read_b128 v[{A_V[0][0]}:{A_V[0][0]+3}], v91")
        a(f"ds_read_b128 v[{A_V[1][0]}:{A_V[1][0]+3}], v91 offset:512")
        a("s_mov_b64 exec, -1")
        a("s_waitcnt lgkmcnt(0)")
        mfma(a, A_S[0], A_K[0], Qh, NEG[h])
        a("s_nop 15")
        for r in range(16):
            a(f"v_exp_f32 v{A_S[0]+r}, v{A_S[0]+r}")
        a("s_nop 0")
        for k in range(8):
            a(f"v_cvt_pk_bf16_f32 v{A_P+k}, v{A_S[0]+2*k}, v{A_S[0]+2*k+1}")
        a("s_nop 1")
        mfma(a, Oh, A_V[0][0], A_P, Oh)
        mfma(a, Oh, A_V[1][0], A_P + 4, Oh)
        a("v_add_u32 v90, 1024, v90")
        a("v_add_u32 v91, 1024, v91")
        a("s_add_u32 s55, s55, 1")
        a("s_cmp_lt_u32 s55, 32")
        a(f"s_cbranch_scc1 {l2}")
    a("s_nop 15")
    a("s_barrier")
    if SENT_D: hh_prefill(a)
    wready_poll(a)
    local_poll(a)
    wready_check(a)
    local_check(a)
    sv = list(a.vmq)
    for k, s in it_pref:
        (ld_wg if k == "g" else ld_wo)(a, s)
    x_residual(a)
    a.vmq = sv
    a.label(lepi)
    stamp(a)
    a.c("wave kh finishes head 2p + kh: it hands the partial sums of the other head to wave w ^ 4")
    a(f"s_lshl_b32 s60, s{S_W}, 12")
    a(f"s_add_u32 s60, s60, {L_SCR}")
    a("v_add_u32 v90, s60, v1")
    a(f"s_xor_b32 s60, s{S_W}, 4")
    a("s_lshl_b32 s60, s60, 12")
    a(f"s_add_u32 s60, s60, {L_SCR}")
    a("v_add_u32 v91, s60, v1")
    a.c("OF + (tbk*32 + 8hq + 2p + kh)*1024")
    a(f"s_lshl_b32 s60, s{S_TBK}, 5")
    a(f"s_lshl_b32 s61, s{S_HQ}, 3")
    a("s_add_u32 s60, s60, s61")
    a(f"s_and_b32 s61, s{S_W}, 3")
    a("s_lshl_b32 s61, s61, 1")
    a("s_add_u32 s60, s60, s61")
    a(f"s_lshr_b32 s61, s{S_W}, 2")
    a("s_add_u32 s60, s60, s61")
    a("s_lshl_b32 s60, s60, 10")
    a(f"s_add_u32 s60, s60, {OF}")
    lk1 = a.newlabel("kh1"); lk2 = a.newlabel("khj")
    a(f"s_cmp_ge_u32 s{S_W}, 4")
    a(f"s_cbranch_scc1 {lk1}")
    for q in range(3):
        a(f"ds_write_b128 v90, v[{A_O2+4*q}:{A_O2+4*q+3}] offset:{q*1024}")
    a(f"s_branch {lk2}")
    a.label(lk1)
    for q in range(3):
        a(f"ds_write_b128 v90, v[{A_O+4*q}:{A_O+4*q+3}] offset:{q*1024}")
    for r in range(9):
        a(f"v_mov_b32 v{A_O+r}, v{A_O2+r}")
    a.label(lk2)
    a("s_waitcnt lgkmcnt(0)")
    a("s_barrier")
    for q in range(3):
        a(f"ds_read_b128 v[{24+4*q}:{27+4*q}], v91 offset:{q*1024}")
    a("s_waitcnt lgkmcnt(0)")
    for i in range(4):
        a(f"v_pk_add_f32 v[{A_O+2*i}:{A_O+2*i+1}], v[{A_O+2*i}:{A_O+2*i+1}], v[{24+2*i}:{25+2*i}]")
    a(f"v_add_f32 v{A_O+8}, v{A_O+8}, v32")
    a(f"v_rcp_f32 v90, v{A_O+8}")
    a("s_nop 0")
    for r in range(8):
        a(f"v_mul_f32 v{A_O+r}, v{A_O+r}, v90")
    for k in range(4):
        a(f"v_cvt_pk_bf16_f32 v{A_P+k}, v{A_O+2*k}, v{A_O+2*k+1}")
    a("s_mov_b32 s54, s60")
    gstore(a, f"buffer_store_dwordx4 v[{A_P}:{A_P+3}], v1, {WS}, s60 offen", "o")
    if "o" in DOUBLE: a(f"buffer_store_dwordx4 v[{A_P}:{A_P+3}], v1, {WS}, s60 offen")

def eflag_base(a, dst):
    a(f"s_lshl_b32 s{dst}, s{S_G}, 11")
    a(f"s_add_u32 s{dst}, s{dst}, {FLG_E}")

def wg_publish(a, base, vt, younger=0):
    a(f"s_lshl_b32 s60, s{S_G}, 4")
    a(f"s_add_u32 s60, s60, s{S_J}")
    a("s_lshl_b32 s60, s60, 7")
    a(f"s_add_u32 s60, s60, {base}")
    a(f"v_mov_b32 v{vt}, s{S_NONCE}")
    a(f"v_lshlrev_b32 v{vt+1}, 2, v0")
    stamp(a, "p3")
    a(f"s_waitcnt vmcnt({younger})")
    stamp(a, "p3")
    a("s_barrier")
    l = a.newlabel("pub")
    a(f"s_cmp_lg_u32 s{S_W}, 0")
    a(f"s_cbranch_scc1 {l}")
    a("s_mov_b32 exec_hi, 0")
    gstore(a, f"buffer_store_dword v{vt}, v{vt+1}, {WS}, s60 offen")
    a("s_mov_b64 exec, -1")
    a.label(l)

def wg_wait(a, base, first_expr, n, vt, vo, poller=0):
    l = a.newlabel("wt")
    a(f"s_cmp_lg_u32 s{S_W}, {poller}")
    a(f"s_cbranch_scc1 {l}")
    a(f"s_lshl_b32 s60, s{S_G}, 4")
    if first_expr is not None:
        first_expr()
    a("s_lshl_b32 s60, s60, 7")
    a(f"s_add_u32 s60, s60, {base}")
    if POLL_DELAY: a(f"s_sleep {POLL_DELAY}")
    poll_flags(a, 60, n, vt, vo, sleep=POLL_SLEEP)
    a.label(l)
    a("s_barrier")

def wave_publish(a, base, vt):
    a(f"s_lshl_b32 s60, s{S_G}, 4")
    a(f"s_add_u32 s60, s60, s{S_J}")
    a("s_lshl_b32 s60, s60, 3")
    a(f"s_add_u32 s60, s60, s{S_W}")
    a("s_lshl_b32 s60, s60, 7")
    a(f"s_add_u32 s60, s60, {base}")
    stamp(a, "p3")
    a("s_waitcnt vmcnt(0)")
    stamp(a, "p3")
    set_flag(a, 60, vt)

L3_ST = 131072 + 4096
def mfma16(a, d, A, B, c):
    cs = "0" if c is None else f"v[{c}:{c+3}]"
    a(f"v_mfma_f32_16x16x32_bf16 v[{d}:{d+3}], v[{A}:{A+3}], v[{B}:{B+3}], {cs}")

def p3(a):
    wg_publish(a, FLG_B, 28)
    stamp(a)
    def fe():
        a(f"s_lshl_b32 s61, s{S_TQ}, 2")
        a("s_add_u32 s60, s60, s61")
    wg_wait(a, FLG_B, fe, 4, 28, 30, poller=1)
    stamp(a)
    a.c("o fragments -> LDS [32 heads][1024] over key tiles 0..31 (dead since the last barriers of the attention loop)")
    a(f"s_lshl_b32 s60, s{S_W}, 12")
    a("s_mov_b32 m0, s60")
    a(f"s_lshl_b32 s61, s{S_TBK}, 15")
    a("s_add_u32 s61, s61, s60")
    a(f"s_add_u32 s61, s61, {OF}")
    for e in range(4):
        a(f"buffer_load_dwordx4 v1, {WS}, s61 offen offset:{e*1024} sc1 lds")
    a.c("operand address: (g>>1)*1024 + ((g&1)*32 + (lane&15))*16")
    a("v_lshrrev_b32 v30, 5, v0")
    a("v_lshlrev_b32 v30, 10, v30")
    a("v_bfe_u32 v31, v0, 4, 1")
    a("v_lshlrev_b32 v31, 5, v31")
    a("v_and_b32 v29, 15, v0")
    a("v_add_u32 v31, v31, v29")
    a("v_lshl_add_u32 v30, v31, 4, v30")
    a("v_and_b32 v2, 31, v0")
    a("s_mov_b32 s61, 0xffff0000")
    for i in range(4):
        a(f"v_lshlrev_b32 v{16+2*i}, 16, v{XRES+i}")
        a(f"v_and_b32 v{17+2*i}, s61, v{XRES+i}")
    a(f"s_lshl_b32 s60, s{S_TBK}, 5")
    a(f"s_lshl_b32 s61, s{S_HQ}, 3")
    a("s_add_u32 s60, s60, s61")
    a(f"s_add_u32 s60, s60, s{S_W}")
    a("s_lshl_b32 s60, s60, 10")
    a(f"s_add_u32 s60, s60, {HF}")
    stamp(a, "p3")
    a("s_waitcnt vmcnt(0)")
    stamp(a, "p3")
    a("s_barrier")
    stamp(a, "p3")
    NB3 = 5
    BBF = [[32 + 8 * k, 36 + 8 * k] for k in range(NB3)]
    a.lgq = []
    def rd(s):
        for th2 in range(2):
            r = BBF[s % NB3][th2]
            a.lg(f"ds_read_b128 v[{r}:{r+3}], v30 offset:{s*2048 + th2*256}", s)
    for s in range(NB3 - 1): rd(s)
    for s in range(16):
        if s + NB3 - 1 < 16: rd(s + NB3 - 1)
        a.lg_wait(s)
        for th2 in range(2):
            mfma16(a, 8 + 4 * th2, WO_R + 4 * s, BBF[s % NB3][th2], None if s == 0 else 8 + 4 * th2)
    stamp(a, "p3")
    a("s_nop 7")
    for i in range(4):
        a(f"v_pk_add_f32 v[{8+2*i}:{9+2*i}], v[{8+2*i}:{9+2*i}], v[{16+2*i}:{17+2*i}]")
    for i in range(4):
        a(f"v_cvt_pk_bf16_f32 v{40+i}, v{8+2*i}, v{9+2*i}")
    a("s_nop 1")
    a("v_permlane16_swap_b32 v40, v42")
    a("v_permlane16_swap_b32 v41, v43")
    a("s_nop 1")
    a("s_mov_b32 s55, s60")
    gstore(a, f"buffer_store_dwordx4 v[40:43], v1, {WS}, s60 offen", "h")
    if "h" in LOCAL_DATA:
        for r in range(4): a(f"v_mov_b32 v{12+r}, v{40+r}")
    if "h" in DOUBLE: a(f"buffer_store_dwordx4 v[40:43], v1, {WS}, s60 offen")
    stamp(a, "p3")
    a("s_mov_b32 s61, 0x3f803f80")
    a("v_mov_b32 v44, 0")
    a("v_mov_b32 v45, 0")
    for i in range(4):
        a(f"v_dot2_f32_bf16 v44, v{40+i}, s61, v44")
        a(f"v_dot2_f32_bf16 v45, v{40+i}, v{40+i}, v45")
    a("s_nop 2")
    xhalf(a, 44, 46, "v_add_f32")
    xhalf(a, 45, 46, "v_add_f32")
    a(f"s_lshl_b32 s60, s{S_W}, 8")
    a(f"s_add_u32 s60, s60, {L3_ST}")
    a("v_lshlrev_b32 v46, 3, v2")
    a("v_add_u32 v47, s60, v46")
    a("s_mov_b32 exec_hi, 0")
    a("ds_write_b64 v47, v[44:45]")
    a("s_mov_b64 exec, -1")
    a("s_waitcnt lgkmcnt(0)")
    wg_publish(a, FLG_C, 28)
    a.vm_reset()
    l7 = a.newlabel("nog")
    a(f"s_cmp_eq_u32 s{S_W}, 7")
    a(f"s_cbranch_scc1 {l7}")
    for s in range(NG_LATE):
        ld_wg(a, s)
    a.label(l7)
    stamp(a)

L4_ST = 131072
L4_CS = 131072 + 1024
WD_R = 128
def ld_wd(a, u):
    s, ct = u >> 1, u & 1
    off = ct * 114688 + (s >> 2) * 4096
    a(f"s_add_u32 s75, s76, {off}")
    a.vm(f"buffer_load_dwordx4 v[{WD_R+4*u}:{WD_R+4*u+3}], v1, {WS}, s75 offen offset:{(s&3)*1024} sc1", ("WD", u))

def p4(a):
    a(f"s_and_b32 s77, s{S_J}, 7")
    a("s_mul_i32 s76, s77, 229376")
    a(f"s_mul_i32 s60, s{S_W}, 14336")
    a("s_add_u32 s76, s76, s60")
    a(f"s_add_u32 s76, s76, {WDF}")
    a(f"s_lshl_b32 s62, s{S_G}, 17")
    a(f"s_lshl_b32 s63, s{S_W}, 10")
    a("s_add_u32 s62, s62, s63")
    a(f"s_add_u32 s62, s62, {HF}")
    stamp(a, "p4")
    wg_wait(a, FLG_C, None, 16, 28, 5, poller=7)
    stamp(a); stamp(a, "p4")
    def dma(st):
        for tb in range(4):
            off = tb * 32768 + st * 8192
            a(f"s_add_u32 m0, s63, {off}")
            a(f"s_add_u32 s64, s62, {off}")
            a.vm(f"buffer_load_dwordx4 v1, {WS}, s64 offen sc1 lds", ("H", st))
    a.vm_reset()
    dma(0)
    if "o" in LOCAL_DATA:
        clean_store(a, A_P, 54, "o")
    lhelp = a.newlabel("help"); ljoin = a.newlabel("p4join")
    a(f"s_cmp_eq_u32 s{S_W}, 7")
    a(f"s_cbranch_scc1 {lhelp}")
    sv = list(a.vmq)
    a("v_add_u32 v2, 65536, v1")
    BB = [[32 + 4 * t for t in range(4)], [48 + 4 * t for t in range(4)]]
    def breads(s):
        for tb in range(4):
            base = "v1" if tb < 2 else "v2"
            a.lg(f"ds_read_b128 v[{BB[s&1][tb]}:{BB[s&1][tb]+3}], {base} offset:{(tb&1)*32768 + s*1024}", s)
    a.lgq = []
    a.vm_wait(("H", 0))
    stamp(a, "p4")
    a("s_barrier")
    stamp(a); stamp(a, "p4")
    breads(0)
    dma(1)
    for s in range(24):
        if (s + 1) % 8 == 0:
            a.vm_wait(("H", (s + 1) // 8))
            a("s_barrier")
        if s + 1 < 24:
            breads(s + 1)
        if PRIO2 and s % 2 == 0: a(f"s_setprio {3 - ((s & 7) >> 1)}")
        a.lg_wait(s)
        for tb in range(4):
            mfma(a, 64 + 16 * tb, WG_R + 4 * s, BB[s & 1][tb], None if s == 0 else 64 + 16 * tb)
        if s == 2: dma(2)
        if s == 6: dma(3)
        if s == 20: clean_store(a, 12, 55, "h")
        if s >= 1:
            ld_wd(a, s - 1)
    a("v_and_b32 v3, 31, v0")
    a("v_lshlrev_b32 v3, 3, v3")
    a(f"v_add_u32 v3, {L4_ST}, v3")
    SL = [32 + 4 * i for i in range(8)]
    seq = [(tb, s) for tb in range(4) for s in range(24, 32)]
    def rd(k):
        tb, s = seq[k]
        base = "v1" if tb < 2 else "v2"
        r = SL[k % 8]
        a.lg(f"ds_read_b128 v[{r}:{r+3}], {base} offset:{(tb&1)*32768 + s*1024}", ("t", k))
    for k in range(4): rd(k)
    for tb in range(4):
        a.lg(f"ds_read_b64 v[{4+2*tb}:{5+2*tb}], v3 offset:{tb*256}", "st")
    a("v_lshrrev_b32 v12, 5, v0")
    a("v_lshlrev_b32 v12, 4, v12")
    a(f"s_lshl_b32 s60, s{S_W}, 7")
    a(f"s_add_u32 s60, s60, {L4_CS}")
    a("v_add_u32 v12, s60, v12")
    for q in range(4):
        a.lg(f"ds_read_b128 v[{16+4*q}:{19+4*q}], v12 offset:{q*32}", "st")
    a("s_mul_i32 s60, s74, 1024")
    a(f"s_lshl_b32 s61, s{S_G}, 2")
    a("s_mul_i32 s61, s61, 114688")
    a("s_add_u32 s60, s60, s61")
    a(f"s_add_u32 s60, s60, {HHF}")
    def epi(tb):
        A = 64 + 16 * tb; st = 4 + 2 * tb; o = 8 + 0
        L = []
        for i in range(8):
            L.append(f"v_pk_fma_f32 v[{A+2*i}:{A+2*i+1}], v[{16+2*i}:{17+2*i}], v[{st}:{st+1}], v[{A+2*i}:{A+2*i+1}] op_sel_hi:[1,0,1]")
        for i in range(4):
            L.append(f"v_pk_mul_f32 v[{A+8+2*i}:{A+9+2*i}], v[{A+8+2*i}:{A+9+2*i}], v[{st}:{st+1}] op_sel:[0,1] op_sel_hi:[1,1]")
        for r in range(8):
            L.append(f"v_max_f32 v{A+r}, 0, v{A+r}")
        for i in range(4):
            L.append(f"v_pk_mul_f32 v[{A+2*i}:{A+2*i+1}], v[{A+2*i}:{A+2*i+1}], v[{A+8+2*i}:{A+9+2*i}]")
        for i in range(4):
            L.append(f"v_cvt_pk_bf16_f32 v{A+8+i}, v{A+2*i}, v{A+2*i+1}")
        L.append(("st", f"buffer_store_dwordx4 v[{A+8}:{A+11}], v1, {WS}, s60 offen"))
        if tb < 3: L.append("s_add_u32 s60, s60, 114688")
        return L
    def emit(items):
        for ins in items:
            if isinstance(ins, tuple): gstore(a, ins[1], "g")
            else: a(ins)
    pend = []
    for k, (tb, s) in enumerate(seq):
        if k + 4 < len(seq): rd(k + 4)
        a.lg_wait(("t", k))
        mfma(a, 64 + 16 * tb, WG_R + 4 * s, SL[k % 8], 64 + 16 * tb)
        if k == 0: ld_wd(a, 23)
        if k % 8 == 2 and tb > 0:
            if tb == 1: a.lg_wait("st")
            pend = epi(tb - 1)
            a("s_nop 3")
        n = (len(pend) + 4) // 5 if (k % 8) < 7 else len(pend)
        if k % 8 >= 2 or tb == 0:
            emit(pend[:5 if (k % 8) < 7 else len(pend)]); pend = pend[5 if (k % 8) < 7 else len(pend):]
    stamp(a); stamp(a, "p4")
    if PRIO2: a("s_setprio 0")
    a("s_nop 9")
    emit(epi(3))
    for u in range(24, 28): ld_wd(a, u)
    stamp(a, "p4")
    a(f"s_branch {ljoin}")
    a.label(lhelp)
    a.vmq = list(sv)
    dma(1); dma(2); dma(3)
    a("v_lshlrev_b32 v3, 2, v0")
    a(f"s_mul_i32 s60, s{S_J}, 896")
    a(f"s_add_u32 s60, s60, {CSP}")
    for kq in range(4):
        for i in range(4):
            a.vm(f"buffer_load_dword v{32+4*kq+i}, v3, {WS}, s60 offen offset:{i*256} sc1", "cs")
        if kq < 3:
            a("s_add_u32 s60, s60, 14336")
    a.vm_wait(("H", 0))
    a("s_barrier")
    a.c("finish this workgroup's row statistics (partials of the 8 waves are in LDS) and publish them")
    a("v_and_b32 v2, 31, v0")
    a("v_lshlrev_b32 v64, 3, v2")
    a(f"v_add_u32 v65, {L3_ST}, v64")
    for ww in range(8):
        a(f"ds_read_b64 v[{66+2*ww}:{67+2*ww}], v65 offset:{ww*256}")
    a("s_waitcnt lgkmcnt(0)")
    for ww in range(1, 8):
        a(f"v_pk_add_f32 v[66:67], v[66:67], v[{66+2*ww}:{67+2*ww}]")
    a("v_lshlrev_b32 v64, 5, v2")
    a(f"s_lshl_b32 s60, s{S_TBK}, 10")
    a(f"s_lshl_b32 s61, s{S_HQ}, 3")
    a("s_add_u32 s60, s60, s61")
    a(f"s_add_u32 s60, s60, {HST}")
    a("s_mov_b32 exec_hi, 0")
    a.vm(f"buffer_store_dwordx2 v[66:67], v64, {WS}, s60 offen sc1", "hst")
    a("s_mov_b64 exec, -1")
    a.vm_wait_all()
    eflag_base(a, 60)
    a(f"s_lshl_b32 s61, s{S_J}, 7")
    a("s_add_u32 s60, s60, s61")
    set_flag(a, 60, 28)
    a("s_barrier")
    a("s_barrier")
    clean_store(a, 12, 55, "h")
    eflag_base(a, 60)
    poll_flags(a, 60, 16, 28, 2)
    a("v_lshlrev_b32 v2, 5, v0")
    a(f"s_lshl_b32 s60, s{S_G}, 12")
    a(f"s_add_u32 s60, s60, {HST}")
    for i in range(2):
        a(f"buffer_load_dwordx4 v[{8+8*i}:{11+8*i}], v2, {WS}, s60 offen offset:{i*2048} sc1")
        a(f"buffer_load_dwordx4 v[{12+8*i}:{15+8*i}], v2, {WS}, s60 offen offset:{i*2048+16} sc1")
    a.vm_wait_all()
    for i in range(2):
        b = 8 + 8 * i
        a(f"v_add_f32 v{b}, v{b}, v{b+2}")
        a(f"v_add_f32 v{b+4}, v{b+4}, v{b+6}")
        a(f"v_add_f32 v{b+1}, v{b+1}, v{b+3}")
        a(f"v_add_f32 v{b+5}, v{b+5}, v{b+7}")
        a(f"v_add_f32 v{b}, v{b}, v{b+4}")
        a(f"v_add_f32 v{b+1}, v{b+1}, v{b+5}")
        a(f"v_mul_f32 v{b}, {f32hex(1.0/512)}, v{b}")
        a(f"v_mul_f32 v{b+2}, v{b}, v{b}")
        a(f"v_mov_b32 v{b+3}, {f32hex(1.0/512)}")
        a(f"v_fma_f32 v{b+1}, v{b+1}, v{b+3}, -v{b+2}")
        a(f"v_max_f32 v{b+1}, 0, v{b+1}")
        a(f"v_add_f32 v{b+1}, {f32hex(1e-5)}, v{b+1}")
        a(f"v_rcp_f32 v{b+1}, v{b+1}")
        a(f"v_sub_f32 v{b}, 0, v{b}")
    a("v_lshlrev_b32 v4, 3, v0")
    a(f"v_add_u32 v4, {L4_ST}, v4")
    a("ds_write_b64 v4, v[8:9]")
    a("ds_write_b64 v4, v[16:17] offset:512")
    for i in range(4):
        a(f"v_add_f32 v{32+i}, v{32+i}, v{36+i}")
        a(f"v_add_f32 v{40+i}, v{40+i}, v{44+i}")
        a(f"v_add_f32 v{32+i}, v{32+i}, v{40+i}")
    a(f"v_add_u32 v3, {L4_CS}, v3")
    for i in range(3):
        a(f"ds_write_b32 v3, v{32+i} offset:{i*256}")
    a("s_mov_b32 exec_hi, 0")
    a("ds_write_b32 v3, v35 offset:768")
    a("s_mov_b64 exec, -1")
    a("s_waitcnt lgkmcnt(0)")
    a("s_barrier")
    for u in range(28):
        ld_wd(a, u)
    a.label(ljoin)
    if not SENT_D:
        wg_publish(a, FLG_D, 28, 4)
    a.vm_reset()
    stamp(a)

def p5(a):
    mk_srd(a, SRD_A, P_OUT, 2048 * 1024)
    a(f"s_lshr_b32 s72, s{S_J}, 3")
    a(f"s_lshl_b32 s61, s{S_G}, 2")
    a("s_lshl_b32 s62, s72, 1")
    a("s_add_u32 s61, s61, s62")
    a(f"s_mul_i32 s62, s{S_W}, 14336")
    a("s_mul_i32 s64, s61, 114688")
    a("s_add_u32 s64, s64, s62")
    a(f"s_add_u32 s64, s64, {HHF}")
    a("s_add_u32 s65, s64, 114688")
    a("v_lshrrev_b32 v2, 3, v0")
    a(f"s_lshl_b32 s62, s{S_W}, 3")
    a("v_add_u32 v2, s62, v2")
    a("v_and_b32 v3, 7, v0")
    a("v_lshrrev_b32 v4, 5, v2")
    a("v_lshlrev_b32 v4, 5, v4")
    a("v_lshrrev_b32 v5, 1, v3")
    a("v_add_u32 v4, v4, v5")
    a("v_lshlrev_b32 v4, 10, v4")
    a("v_and_b32 v5, 1, v3")
    a("v_lshlrev_b32 v5, 5, v5")
    a("v_and_b32 v6, 31, v2")
    a("v_add_u32 v5, v5, v6")
    a("v_lshl_add_u32 v4, v5, 4, v4")
    a("s_lshl_b32 s62, s61, 5")
    a("s_lshl_b32 s63, s77, 2")
    a("s_add_u32 s62, s62, s63")
    a("s_lshl_b32 s62, s62, 10")
    a(f"s_add_u32 s62, s62, {HF}")
    a("s_mov_b32 s59, s62")
    a("v_mov_b32 v7, v4")
    a.c("reduction write addresses v12..15 ; read addresses v4,v5 (+65536: v6,v81 later) ; output address v3")
    a("v_and_b32 v16, 31, v0")
    a("v_lshrrev_b32 v17, 5, v0")
    a("v_lshlrev_b32 v17, 1, v17")
    a("v_and_b32 v18, 7, v16")
    a("v_xor_b32 v17, v17, v18")
    a("v_lshlrev_b32 v16, 8, v16")
    a(f"s_lshl_b32 s62, s{S_W}, 14")
    a("v_add_u32 v16, s62, v16")
    for k, (rg, q) in enumerate([(0, 0), (0, 1), (1, 0), (1, 1)]):
        a(f"v_xor_b32 v{12+k}, {rg*4+q}, v17")
        a(f"v_lshl_add_u32 v{12+k}, v{12+k}, 4, v16")
    a("v_and_b32 v16, 7, v2")
    a("v_lshlrev_b32 v17, 1, v3")
    a("v_xor_b32 v4, v17, v16")
    a("v_or_b32 v17, 1, v17")
    a("v_xor_b32 v5, v17, v16")
    a("v_lshlrev_b32 v4, 4, v4")
    a("v_lshlrev_b32 v5, 4, v5")
    a("v_lshl_add_u32 v4, v2, 8, v4")
    a("v_lshl_add_u32 v5, v2, 8, v5")
    a("v_lshlrev_b32 v16, 10, v2")
    a("v_lshl_add_u32 v3, v3, 4, v16")
    a(f"s_lshl_b32 s57, s{S_G}, 17")
    a("s_lshl_b32 s63, s72, 16")
    a("s_add_u32 s57, s57, s63")
    a("s_lshl_b32 s63, s77, 7")
    a("s_add_u32 s57, s57, s63")
    stamp(a, "p4")
    if not SENT_D:
        wg_wait(a, FLG_D, None, 16, 28, 29, poller=7)
    stamp(a); stamp(a, "p4")
    a(f"buffer_load_dwordx4 v[8:11], v7, {WS}, s59 offen sc1")
    a("s_mov_b32 s62, s64"); a("s_mov_b32 s63, s65")
    retries = []
    BREG = [16, 24, 32, 40, 48, 56, 240, 248]
    ACC = 64
    a.vm_reset()
    def ldB(s):
        if s and (s & 3) == 0:
            a("s_add_u32 s64, s64, 4096"); a("s_add_u32 s65, s65, 4096")
        r = BREG[s % 8]
        a.vm(f"buffer_load_dwordx4 v[{r}:{r+3}], v1, {WS}, s64 offen offset:{(s&3)*1024} sc1", ("B", s))
        a.vm(f"buffer_load_dwordx4 v[{r+4}:{r+7}], v1, {WS}, s65 offen offset:{(s&3)*1024} sc1", ("B", s))
    if P5PRIO:
        l5 = a.newlabel("p5p")
        a(f"s_cmp_lt_u32 s{S_W}, 4")
        a(f"s_cbranch_scc1 {l5}")
        a("s_setprio 1")
        a.label(l5)
    for s in range(8):
        ldB(s)
    def check(r):
        a(f"v_max3_u32 v12, v{r}, v{r+1}, v{r+2}")
        a(f"v_max3_u32 v13, v{r+3}, v{r+4}, v{r+5}")
        a(f"v_max3_u32 v12, v{r+6}, v{r+7}, v12")
        a("v_max_u32 v12, v12, v13")
        a("v_cmp_eq_u32 vcc, -1, v12")
    stamp(a, "p5")
    for s in range(14):
        a.vm_wait(("B", s))
        if s in (0, 7): stamp(a, "p5")
        if SENT_D:
            lr = a.newlabel("rt"); lb = a.newlabel("rb")
            check(BREG[s % 8])
            a("s_nop 1")
            a(f"s_cbranch_vccnz {lr}")
            a.label(lb)
            retries.append((s, lr, lb))
        for ct in range(2):
            for tb in range(2):
                d = ACC + (ct * 2 + tb) * 16
                mfma(a, d, WD_R + (2 * s + ct) * 4, BREG[s % 8] + 4 * tb, None if s == 0 else d)
        if s + 8 < 14:
            ldB(s + 8)
    stamp(a); stamp(a, "p5")
    if PRIO2: a("s_setprio 0")
    if SENT_D:
        lskip = a.newlabel("rskip")
        a(f"s_branch {lskip}")
        for (s_, lr, lb) in retries:
            r = BREG[s_ % 8]
            a.label(lr)
            a(f"s_mov_b32 s79, {SPIN}")
            lp = a.newlabel("rl")
            a.label(lp)
            a("s_sleep 2")
            a(f"s_add_u32 s60, s62, {(s_ >> 2) * 4096}")
            a(f"s_add_u32 s61, s63, {(s_ >> 2) * 4096}")
            a(f"buffer_load_dwordx4 v[{r}:{r+3}], v1, {WS}, s60 offen offset:{(s_&3)*1024} sc1")
            a(f"buffer_load_dwordx4 v[{r+4}:{r+7}], v1, {WS}, s61 offen offset:{(s_&3)*1024} sc1")
            a("s_waitcnt vmcnt(0)")
            check(r)
            a("s_nop 4")
            a(f"s_cbranch_vccz {lb}")
            a("s_sub_u32 s79, s79, 1")
            a("s_cmp_lg_u32 s79, 0")
            a(f"s_cbranch_scc1 {lp}")
            a(f"s_branch {lb}")
        a.label(lskip)
        a("s_barrier")
    a("s_nop 8")
    for ct in range(2):
        for tb in range(2):
            d = ACC + (ct * 2 + tb) * 16
            for k, (rg, q) in enumerate([(0, 0), (0, 1), (1, 0), (1, 1)]):
                r = d + 8 * rg + 4 * q
                a(f"ds_write_b128 v{12+k}, v[{r}:{r+3}] offset:{ct*128 + tb*8192}")
    stamp(a, "p5")
    a("s_waitcnt lgkmcnt(0)")
    stamp(a, "p5")
    a("s_barrier")
    stamp(a, "p5")
    a("v_add_u32 v6, 65536, v4")
    a("v_add_u32 v7, 65536, v5")
    for src in range(8):
        b0, b1 = ("v4", "v5") if src < 4 else ("v6", "v7")
        a(f"ds_read_b128 v[{16+8*src}:{19+8*src}], {b0} offset:{(src&3)*16384}")
        a(f"ds_read_b128 v[{20+8*src}:{23+8*src}], {b1} offset:{(src&3)*16384}")
        if src == 3: a("s_waitcnt lgkmcnt(4)")
    a("s_mov_b32 s62, 0xffff0000")
    for i in range(4):
        a(f"v_lshlrev_b32 v{80+2*i}, 16, v{8+i}")
        a(f"v_and_b32 v{81+2*i}, s62, v{8+i}")
    a("s_waitcnt lgkmcnt(0)")
    stamp(a, "p5")
    for src in range(1, 8):
        for i in range(4):
            a(f"v_pk_add_f32 v[{16+2*i}:{17+2*i}], v[{16+2*i}:{17+2*i}], v[{16+8*src+2*i}:{17+8*src+2*i}]")
    for i in range(4):
        a(f"v_pk_add_f32 v[{16+2*i}:{17+2*i}], v[{16+2*i}:{17+2*i}], v[{80+2*i}:{81+2*i}]")
    for i in range(4):
        a(f"v_cvt_pk_bf16_f32 v{8+i}, v{16+2*i}, v{17+2*i}")
    a(f"buffer_store_dwordx4 v[8:11], v3, s[{SRD_A}:{SRD_A+3}], s57 offen {OUT_FLAGS}")

DESCRIPTION = """
One persistent kernel, 256 workgroups of 8 waves (one per CU, all co-resident). 16 workgroups form a group that owns 128 tokens.
  phase 0   LayerNorm(x) of a 32-token block, K/V projection (one workgroup per block, published to everybody), Q projection
            for 8 heads (kept in registers, scaled by log2(e)/4).
  attention K and V of all 2048 keys in LDS; a wave handles two heads on one half of the keys; S^T = K Q^T and O^T += V^T P^T
            with 32x32x16 MFMAs, the row sum comes from an all-ones row of the V operand. exp2 is taken without subtracting a
            maximum only when |q|*max|k| (Cauchy-Schwarz, checked at run time for every row of the workgroup) is at most 40;
            otherwise the whole workgroup takes the path that first computes the true row maximum and subtracts it.
            Meanwhile the weights wo / w_gate / w_up / w_down are re-laid-out into MFMA operand fragments in the workspace
            and the fragments needed next are prefetched into registers.
  P3        h = x + o wo, row statistics of h.     P4  gate/up GEMM on h with LayerNorm folded into the epilogue, ReLU gate.
  P5        out = h + hh w_down (split-K over the waves, reduced through LDS).
Hand-offs between workgroups: write-through (sc1) stores, drained, then a flag line tagged with a per-launch value derived from
what the previous launch left in the workspace; consumers poll with sc1 loads and read the payload with sc1 loads. When all 16
workgroups of a group report the same XCD (checked at run time) the group's flag lines are written with plain stores.
"""

def build():
    a = Asm()
    label = G.NAME + "_kernel"
    a.raw(G.HEADER.rstrip("\n"))
    a.raw("; @launch grid=(256,1,1) block=(512,1,1) lds=163840")
    for ln in DESCRIPTION.strip("\n").split("\n"):
        a.raw("; " + ln)
    a.raw('.amdgcn_target "amdgcn-amd-amdhsa--gfx950"')
    a.raw(".text")
    a.raw(f".globl {label}")
    a.raw(".p2align 8")
    a.raw(f".type {label},@function")
    a.raw(f"{label}:")
    if PROFILE:
        a("s_memtime s[98:99]")
        a("s_memrealtime s[100:101]")
        for k in range(16): a(f"s_mov_b32 s{80+k}, 0")
    G.WS_USED = WS_USED
    G.prologue(a, "L_fin")
    a(f"s_add_u32 s60, s{P_WS}, {NONCE}")
    a(f"s_addc_u32 s61, s{P_WS+1}, 0")
    a(f"s_load_dword s{S_NONCE}, s[60:61], 0")
    phase0(a)
    attention(a)
    p3(a)
    p4(a)
    p5(a)
    lnn = a.newlabel("nn")
    a("s_cmp_lg_u32 s2, 0")
    a(f"s_cbranch_scc1 {lnn}")
    a(f"s_cmp_lg_u32 s{S_W}, 0")
    a(f"s_cbranch_scc1 {lnn}")
    a(f"s_mov_b32 s62, {NONCE}")
    set_flag(a, 62, 28)
    a.label(lnn)
    if PROFILE:
        a(f"s_cmp_lg_u32 s{S_W}, {PROF_WAVE}")
        a("s_cbranch_scc1 L_fin")
        a("s_waitcnt vmcnt(0) lgkmcnt(0)")
        a("s_memtime s[96:97]")
        a("s_memrealtime s[54:55]")
        a("s_waitcnt lgkmcnt(0)")
        for k in range(16):
            a(f"s_sub_u32 s{80+k}, s{80+k}, s98")
            a(f"v_mov_b32 v{k}, s{80+k}")
        a("s_sub_u32 s96, s96, s98")
        a("s_sub_u32 s54, s54, s100")
        a("v_mov_b32 v16, s96")
        a("v_mov_b32 v17, s54")
        a("v_mov_b32 v18, s100")
        a("s_getreg_b32 s62, hwreg(HW_REG_XCC_ID, 0, 4)")
        a(f"s_lshl_b32 s63, s{S_LOCAL}, 8")
        a("s_or_b32 s62, s62, s63")
        a("v_mov_b32 v19, s62")
        a("s_mul_i32 s54, s2, 128")
        a(f"s_add_u32 s54, s54, {PROF}")
        a("v_mov_b32 v20, 0")
        a("s_mov_b64 exec, 1")
        for q in range(5):
            a(f"buffer_store_dwordx4 v[{4*q}:{4*q+3}], v20, {WS}, s54 offen offset:{16*q}")
    a.label("L_fin")
    a("s_endpgm")
    a.raw('.section .rodata,"a"')
    a.raw(".p2align 6")
    G.descriptor(a, label, 256)
    return a.text()

if __name__ == "__main__":
    open(sys.argv[1], "w").write(build())
```

```python
import os, sys
from asmlib import Asm
import gen as G
from gen import (S_W, S_G, S_J, S_TBK, S_HQ, S_TQ, SRD_WS, SRD_A, SRD_B, SRD_C, SRD_D, mk_srd, f32hex,
                 dpp_sum16, xhalf, xrow16, OF, HF, KF, VF, HST, CSP, WOF, WDF, WGF, HHF, QSCALE,
                 P_X, P_WQ, P_WK, P_WV, P_WO, P_WG, P_WU, P_WD, P_OUT, P_DBG, P_WS)
from kernels2 import mfma
WS = f"s[{SRD_WS}:{SRD_WS+3}]"
FLG = 0x1410000
FLG_A, FLG_W, FLG_E, FLG_X = FLG, FLG + 64*128, FLG + 320*128, FLG + 576*128
FLG_B, FLG_C, FLG_D = FLG + 1024*128, FLG + 3072*128, FLG + 5120*128
NONCE = FLG + 7168*128
S_NONCE = 56
PROF = 0x1400000
WS_USED = 0x1500000
SPIN = 400000
PRETOUCH = int(os.environ.get('PRETOUCH', '0'))
EARLYQ = int(os.environ.get('EARLYQ', '0'))
SYNCA_SLEEP = int(os.environ.get('SYNCA_SLEEP', '2'))
LOCAL_NT = os.environ.get('LOCAL_NT', '0') == '1'
NOCLEAN = os.environ.get('NOCLEAN', '1') == '1'
P5PRIO = os.environ.get('P5PRIO', '0') == '1'
BAR_EVERY = int(os.environ.get('BAR_EVERY', '8'))
ALTP = int(os.environ.get('ALTP', '0'))
S_LOCAL = 69
LOCAL_OK = os.environ.get('LOCAL_OK', '1') == '1'
LOCAL_DATA = os.environ.get('LOCAL_DATA', '')
PRIO2 = os.environ.get('PRIO2', '1') == '1'
DOUBLE = os.environ.get('DOUBLE', '')
ZROWS = os.environ.get('ZROWS', '1') == '1'
OUT_FLAGS = os.environ.get('OUT_FLAGS', '')
POLL_DELAY = int(os.environ.get('POLL_DELAY', '0'))
SENT_D = os.environ.get('SENT_D', '0') == '1'
FULL_LINE = os.environ.get('FULL_LINE', '1') == '1'
POLL_SLEEP = int(os.environ.get('POLL_SLEEP', '1'))
PROFILE = G.PROFILE
PROF_WAVE = G.PROF_WAVE
PRIO = os.environ.get("PRIO", "0") == "1"
NST = [0]
STAMPSET = os.environ.get("STAMPSET", "main")
def stamp(a, kind="main"):
    if not PROFILE: return
    if kind != STAMPSET: return
    k = NST[0]; NST[0] += 1
    assert k < 16
    a("s_waitcnt lgkmcnt(0)")
    a("s_memtime s[96:97]")
    a("s_waitcnt lgkmcnt(0)")
    a(f"s_mov_b32 s{80+k}, s96")

def spin_begin(a, name):
    l = a.newlabel(name)
    a(f"s_mov_b32 s79, {SPIN}")
    a.label(l)
    return l
def spin_end(a, l, done, sleep=1):
    a("s_nop 4")
    a(f"s_cbranch_vccz {done}")
    a(f"s_sleep {sleep}")
    a("s_sub_u32 s79, s79, 1")
    a("s_cmp_lg_u32 s79, 0")
    a(f"s_cbranch_scc1 {l}")
    a.label(done)

def gstore(a, instr, kind="f"):
    if not LOCAL_OK or (kind != "f" and kind not in LOCAL_DATA):
        a(instr + " sc1"); return
    lf = a.newlabel("gl"); le = a.newlabel("ge")
    a(f"s_cmp_eq_u32 s{S_LOCAL}, 1")
    a(f"s_cbranch_scc1 {lf}")
    a(instr + " sc1")
    a(f"s_branch {le}")
    a.label(lf)
    a(instr + (" nt" if (kind != "f" and LOCAL_NT) else ""))
    a.label(le)

def clean_store(a, reg, sreg, kind):
    if kind not in LOCAL_DATA or NOCLEAN: return
    l = a.newlabel("cl")
    a(f"s_cmp_eq_u32 s{S_LOCAL}, 1")
    a(f"s_cbranch_scc0 {l}")
    a(f"buffer_store_dwordx4 v[{reg}:{reg+3}], v1, {WS}, s{sreg} offen sc1")
    a.label(l)

def poll_flags(a, soff_reg, nlanes, vtmp, voff, sleep=1, shift=7):
    done = a.newlabel("pd")
    a(f"v_lshlrev_b32 v{voff}, {shift}, v0")
    if nlanes < 64:
        a(f"s_mov_b64 exec, {hex((1 << nlanes) - 1)}")
    l = spin_begin(a, "pl")
    a(f"buffer_load_dword v{vtmp}, v{voff}, {WS}, s{soff_reg} offen sc1")
    a("s_waitcnt vmcnt(0)")
    a(f"v_cmp_ne_u32 vcc, s{S_NONCE}, v{vtmp}")
    spin_end(a, l, done, sleep)
    if nlanes < 64:
        a("s_mov_b64 exec, -1")

def set_flag(a, soff_reg, vtmp, fast_ok=False):
    a(f"v_mov_b32 v{vtmp}, s{S_NONCE}")
    if FULL_LINE:
        a(f"v_lshlrev_b32 v{vtmp+1}, 2, v0")
        a("s_mov_b32 exec_hi, 0")
    else:
        a(f"v_mov_b32 v{vtmp+1}, 0")
        a("s_mov_b64 exec, 1")
    if fast_ok:
        gstore(a, f"buffer_store_dword v{vtmp}, v{vtmp+1}, {WS}, s{soff_reg} offen")
    else:
        a(f"buffer_store_dword v{vtmp}, v{vtmp+1}, {WS}, s{soff_reg} offen sc1")
    a("s_mov_b64 exec, -1")

L_XN, L_WQ, L_WK, L_WV = 0, 32768, 131072, 147456
QSAVE = 244

def phase0(a):
    mk_srd(a, SRD_A, P_X, 2048 * 1024)
    mk_srd(a, SRD_B, P_WQ, 512 * 1024)
    a(f"s_lshl_b32 s54, s{S_TBK}, 5")
    a(f"s_lshl_b32 s55, s{S_W}, 2")
    a("s_add_u32 s54, s54, s55")
    a("v_lshrrev_b32 v2, 4, v0")
    a("v_and_b32 v3, 15, v0")
    a("v_add_u32 v4, s54, v2")
    a("v_lshlrev_b32 v4, 10, v4")
    a("v_lshl_add_u32 v4, v3, 4, v4")
    for i in range(4):
        a(f"buffer_load_dwordx4 v[{16+4*i}:{19+4*i}], v4, s[{SRD_A}:{SRD_A+3}], 0 offen offset:{256*i}")
    a("v_lshlrev_b32 v6, 4, v0")
    if PRETOUCH & 1:
        a.c("touch an unused line of the page that holds K/V so that its translation is resident when they are stored")
        a("s_mov_b32 s60, 0x620000")
        a(f"buffer_load_dword v60, v6, {WS}, s60 offen")
    lskip = a.newlabel("nokv"); lj = a.newlabel("kvj")
    a(f"s_cmp_lg_u32 s{S_HQ}, 0")
    a(f"s_cbranch_scc1 {lskip}")
    mk_srd(a, SRD_C, P_WK, 16384)
    mk_srd(a, SRD_D, P_WV, 16384)
    a(f"s_lshl_b32 s60, s{S_W}, 11")
    for i in range(2):
        a(f"s_add_u32 s61, s60, {i*1024}")
        a(f"s_add_u32 m0, s61, {L_WK}")
        a("s_nop 0")
        a(f"buffer_load_dwordx4 v6, s[{SRD_C}:{SRD_C+3}], s61 offen lds")
        a(f"s_add_u32 m0, s61, {L_WV}")
        a("s_nop 0")
        a(f"buffer_load_dwordx4 v6, s[{SRD_D}:{SRD_D+3}], s61 offen lds")
    a.label(lskip)
    a("v_lshlrev_b32 v5, 2, v2")
    a("v_xor_b32 v5, v3, v5")
    a("v_lshlrev_b32 v5, 4, v5")
    a("v_lshl_add_u32 v5, v2, 10, v5")
    a(f"s_lshl_b32 s55, s{S_HQ}, 8")
    a("v_add_u32 v5, s55, v5")
    a(f"s_lshl_b32 s62, s{S_W}, 12")
    a(f"s_add_u32 s62, s62, {L_WQ}")
    a(f"s_lshl_b32 s63, s{S_W}, 14")
    def wq_dma(q):
        for i in range(4):
            a(f"s_add_u32 m0, s62, {q * 32768 + i * 1024}")
            a(f"s_add_u32 s64, s63, {(q * 128 + 4 * i) * 1024}")
            a(f"buffer_load_dwordx4 v5, s[{SRD_B}:{SRD_B+3}], s64 offen lds")
    if EARLYQ == 2:
        a("s_barrier")
        wq_dma(0); wq_dma(1); wq_dma(2)
        lq = a.newlabel("eq"); lq2 = a.newlabel("eq2")
        a(f"s_cmp_eq_u32 s{S_HQ}, 0")
        a(f"s_cbranch_scc1 {lq}")
        wq_dma(3)
        a("s_waitcnt vmcnt(16)")
        a(f"s_branch {lq2}")
        a.label(lq)
        a("s_waitcnt vmcnt(12)")
        a.label(lq2)
        stamp(a, "p0")
    else:
        wq_dma(0)
        if EARLYQ: wq_dma(1)
        stamp(a, "p0")
        a(f"s_waitcnt vmcnt({8 if EARLYQ else 4})")
    stamp(a); stamp(a, "p0")
    b = Asm()
    if True:
        b("s_mov_b32 s60, 0x3f803f80")
        for r in range(4): b(f"v_mov_b32 v{32+r}, 0")
        for i in range(16):
            b(f"v_dot2_f32_bf16 v{32 + (i & 1)}, v{16+i}, s60, v{32 + (i & 1)}")
            b(f"v_dot2_f32_bf16 v{34 + (i & 1)}, v{16+i}, v{16+i}, v{34 + (i & 1)}")
        b("s_mov_b32 s61, 0xffff0000")
        for i in range(4):
            b(f"v_lshlrev_b32 v{64+2*i}, 16, v{16+i}")
            b(f"v_and_b32 v{65+2*i}, s61, v{16+i}")
        b("v_add_f32 v32, v32, v33")
        b("v_add_f32 v34, v34, v35")
        for n, sh in enumerate((8, 4, 2, 1)):
            for i in range(4 + 3*n, 7 + 3*n):
                b(f"v_lshlrev_b32 v{64+2*i}, 16, v{16+i}")
                b(f"v_and_b32 v{65+2*i}, s61, v{16+i}")
            b(f"v_add_f32_dpp v32, v32, v32 row_ror:{sh} row_mask:0xf bank_mask:0xf")
            b(f"v_add_f32_dpp v34, v34, v34 row_ror:{sh} row_mask:0xf bank_mask:0xf")
        b(f"v_mul_f32 v32, {f32hex(1.0/512)}, v32")
        b("v_mul_f32 v33, v32, v32")
        b(f"v_mov_b32 v35, {f32hex(1.0/512)}")
        b("v_fma_f32 v34, v34, v35, -v33")
        b("v_max_f32 v34, 0, v34")
        b(f"v_add_f32 v34, {f32hex(1e-5)}, v34")
        b("v_rsq_f32 v38, v34")
        b.c("XN write addr")
        b(f"s_lshl_b32 s55, s{S_W}, 2")
        b("v_add_u32 v7, s55, v2")
        b("v_mov_b32 v39, v38")
        b("v_mul_f32 v36, v32, v38")
        b("v_sub_f32 v36, 0, v36")
        b("v_mov_b32 v37, v36")
        for i in range(16):
            b(f"v_pk_fma_f32 v[{64+2*i}:{65+2*i}], v[{64+2*i}:{65+2*i}], v[38:39], v[36:37]")
        b("v_and_b32 v8, 7, v3")
        b("v_xor_b32 v7, v7, v8")
        b("v_lshlrev_b32 v7, 4, v7")
        b("v_lshrrev_b32 v8, 1, v3")
        b("v_lshl_add_u32 v7, v8, 10, v7")
        b("v_and_b32 v8, 1, v3")
        b("v_lshl_add_u32 v7, v8, 9, v7")
        for i in range(4):
            for e in range(4):
                b(f"v_cvt_pk_bf16_f32 v{16+4*i+e}, v{64+8*i+2*e}, v{65+8*i+2*e}")
            b(f"ds_write_b128 v7, v[{16+4*i}:{19+4*i}] offset:{L_XN + i*8192}")

    a.L.extend(b.L)
    if EARLYQ == 0: wq_dma(1)
    if EARLYQ != 2: wq_dma(2)
    a("v_lshrrev_b32 v8, 5, v0")
    a("v_and_b32 v9, 31, v0")
    for m in range(4):
        a(f"v_add_u32 v10, {2*m}, v8")
        a("v_xor_b32 v10, v9, v10")
        a("v_lshlrev_b32 v10, 4, v10")
        a(f"v_lshl_add_u32 v{40+m}, v8, 9, v10")
    a("v_lshrrev_b32 v10, 2, v3")
    a("v_and_b32 v11, 3, v3")
    a("v_lshl_add_u32 v12, v8, 3, v10")
    a.c("wq fragment rows 0..15 = head 2p, rows 16..31 = head 2p+1 ; chunk = 4p + 2blk + (cg>>1), swizzled by r4<<2")
    a(f"s_and_b32 s55, s{S_W}, 3")
    a("s_lshl_b32 s55, s55, 2")
    a("v_lshrrev_b32 v13, 1, v11")
    a("v_add_u32 v13, s55, v13")
    a("v_and_b32 v14, 1, v2")
    a("v_lshl_add_u32 v13, v14, 1, v13")
    a("v_lshlrev_b32 v14, 2, v10")
    a("v_xor_b32 v13, v13, v14")
    a("v_lshlrev_b32 v13, 4, v13")
    a("v_lshl_add_u32 v13, v12, 8, v13")
    a("v_and_b32 v14, 1, v11")
    a("v_lshl_add_u32 v13, v14, 3, v13")
    a(f"s_lshr_b32 s55, s{S_W}, 2")
    a("s_lshl_b32 s55, s55, 12")
    a(f"s_add_u32 s55, s55, {L_WQ}")
    a("v_add_u32 v44, s55, v13")
    stamp(a, "p0")
    a("s_waitcnt lgkmcnt(0)")
    a.c("launch tag: a fixed-point-free bijection of the tag the previous launch left (any value works)")
    a(f"s_mul_i32 s{S_NONCE}, s{S_NONCE}, 0x9E3779B1")
    a(f"s_add_u32 s{S_NONCE}, s{S_NONCE}, 0x7F4A7C15")
    a("s_barrier")
    stamp(a); stamp(a, "p0")
    lx = a.newlabel("xid")
    a(f"s_cmp_lg_u32 s{S_W}, 3")
    a(f"s_cbranch_scc1 {lx}")
    a.c("tell the other members of the group which XCD this workgroup runs on")
    a("s_getreg_b32 s55, hwreg(HW_REG_XCC_ID, 0, 4)")
    a(f"v_mov_b32 v50, s{S_NONCE}")
    a("v_mov_b32 v51, s55")
    a("v_lshlrev_b32 v52, 3, v0")
    a(f"s_lshl_b32 s55, s{S_G}, 4")
    a(f"s_add_u32 s55, s55, s{S_J}")
    a("s_lshl_b32 s55, s55, 7")
    a(f"s_add_u32 s55, s55, {FLG_X}")
    a("s_mov_b64 exec, 0xffff")
    a(f"buffer_store_dwordx2 v[50:51], v52, {WS}, s55 offen sc1")
    a("s_mov_b64 exec, -1")
    a.label(lx)
    lkvd = a.newlabel("kvdone"); lkv1 = a.newlabel("kv1"); lkv0 = a.newlabel("kv0")
    a(f"s_cmp_eq_u32 s{S_HQ}, 0")
    a(f"s_cbranch_scc1 {lkv0}")
    if EARLYQ != 2: wq_dma(3)
    a("s_waitcnt vmcnt(12) lgkmcnt(0)")
    lkv2 = a.newlabel("kv2")
    a(f"s_branch {lkv2}")
    a.label(lkv0)
    a.c("tr addr: blk0 -> WV, blk1 -> WK ; row (64w + 16e + 8khalf + 4rd + r4)*32 + cg*8")
    a("v_lshlrev_b32 v13, 5, v12")
    a("v_lshl_add_u32 v13, v11, 3, v13")
    a(f"s_lshl_b32 s55, s{S_W}, 11")
    a("v_add_u32 v13, s55, v13")
    a("v_and_b32 v14, 1, v2")
    a(f"v_mov_b32 v15, {L_WV}")
    a(f"v_mov_b32 v45, {L_WK}")
    a("v_cmp_eq_u32 vcc, 1, v14")
    a("s_nop 1")
    a("v_cndmask_b32 v15, v15, v45, vcc")
    a("v_add_u32 v13, v13, v15")
    a.c("xn frags for k-steps 4w..4w+3 : s&3 = e")
    a(f"s_lshl_b32 s55, s{S_W}, 12")
    for e in range(4):
        a(f"v_add_u32 v{46+e}, s55, v{40+e}")
    for e in range(4):
        a(f"ds_read_b64_tr_b16 v[{64+4*e}:{65+4*e}], v13 offset:{e*512}")
        a(f"ds_read_b64_tr_b16 v[{66+4*e}:{67+4*e}], v13 offset:{e*512+128}")
        a(f"ds_read_b128 v[{80+4*e}:{83+4*e}], v{46+e} offset:{L_XN + e*1024}")
    for e in range(4):
        a(f"s_waitcnt lgkmcnt({9-3*e})")
        mfma(a, 96, 64 + 4 * e, 80 + 4 * e, None if e == 0 else 96)
    a.c("RED: q=0,1 -> WK + w*2048 + q*1024 ; q=2,3 -> WV + w*2048 + (q-2)*1024  (own, already consumed rows)")
    a(f"s_lshl_b32 s55, s{S_W}, 11")
    a(f"s_add_u32 s55, s55, {L_WK}")
    a("v_add_u32 v14, s55, v6")
    a(f"v_add_u32 v15, {L_WV - L_WK}, v14")
    a("s_nop 10")
    a("ds_write_b128 v14, v[96:99]")
    a("ds_write_b128 v14, v[100:103] offset:1024")
    a("ds_write_b128 v15, v[104:107]")
    a("ds_write_b128 v15, v[108:111] offset:1024")
    a.label(lkv1)
    stamp(a, "p0")
    a("s_waitcnt vmcnt(8) lgkmcnt(0)")
    a.label(lkv2)
    stamp(a, "p0")
    a("s_barrier")
    stamp(a, "p0")
    a(f"s_cmp_lg_u32 s{S_HQ}, 0")
    a(f"s_cbranch_scc1 {lkvd}")
    lv = a.newlabel("kv_v")
    a(f"s_cmp_eq_u32 s{S_W}, 1")
    a(f"s_cbranch_scc1 {lv}")
    a(f"s_cmp_lg_u32 s{S_W}, 0")
    a(f"s_cbranch_scc1 {lkvd}")
    def red8(base):
        a(f"v_add_u32 v14, {base}, v6")
        for ww in range(8):
            a(f"ds_read_b128 v[{64+8*ww}:{67+8*ww}], v14 offset:{ww*2048}")
            a(f"ds_read_b128 v[{68+8*ww}:{71+8*ww}], v14 offset:{ww*2048+1024}")
            if ww == 3: a("s_waitcnt lgkmcnt(4)")
        a("s_waitcnt lgkmcnt(0)")
        for ww in range(1, 8):
            for i in range(4):
                a(f"v_pk_add_f32 v[{64+2*i}:{65+2*i}], v[{64+2*i}:{65+2*i}], v[{64+8*ww+2*i}:{65+8*ww+2*i}]")
        for r in range(4):
            a(f"v_cvt_pk_bf16_f32 v{76+r}, v{64+2*r}, v{65+2*r}")
    red8(L_WV)
    a(f"s_lshl_b32 s55, s{S_TBK}, 10")
    a(f"s_add_u32 s55, s55, {KF}")
    a(f"buffer_store_dwordx4 v[76:79], v6, {WS}, s55 offen sc1")
    a("v_mov_b32 v80, 0")
    for r in range(4):
        a(f"v_dot2_f32_bf16 v80, v{76+r}, v{76+r}, v80")
    a("s_nop 2")
    xhalf(a, 80, 81, "v_add_f32")
    dpp_sum16(a, 80, "v_max_f32")
    xrow16(a, 80, 81, "v_max_f32")
    a(f"v_mov_b32 v{QSAVE+9}, v80")
    a(f"s_branch {lkvd}")
    a.label(lv)
    red8(L_WK)
    a("v_lshlrev_b32 v80, 5, v9")
    a("v_lshl_add_u32 v80, v8, 3, v80")
    a(f"v_add_u32 v80, {L_WK}, v80")
    a("ds_write_b64 v80, v[76:77]")
    a("ds_write_b64 v80, v[78:79] offset:16")
    a("v_lshl_add_u32 v81, v8, 2, v10")
    a("v_lshlrev_b32 v81, 5, v81")
    a("v_and_b32 v82, 1, v11")
    a("v_lshlrev_b32 v82, 1, v82")
    a("v_lshrrev_b32 v83, 1, v11")
    a("v_add_u32 v82, v82, v83")
    a("v_lshl_add_u32 v81, v82, 3, v81")
    a(f"v_add_u32 v81, {L_WK}, v81")
    a("s_waitcnt lgkmcnt(0)")
    for c2 in range(2):
        for rd in range(2):
            d = 84 + 4 * c2 + 2 * rd
            a(f"ds_read_b64_tr_b16 v[{d}:{d+1}], v81 offset:{(16*c2 + 8*rd) * 32}")
    a("v_lshl_add_u32 v82, v8, 4, v3")
    a("v_lshlrev_b32 v82, 4, v82")
    a(f"s_lshl_b32 s55, s{S_TBK}, 10")
    a(f"s_add_u32 s55, s55, {VF}")
    a("s_waitcnt lgkmcnt(0)")
    a("s_mov_b32 exec_lo, 0x0000ffff")
    a("s_mov_b32 exec_hi, 0x0000ffff")
    a(f"buffer_store_dwordx4 v[84:87], v82, {WS}, s55 offen sc1")
    a(f"buffer_store_dwordx4 v[88:91], v82, {WS}, s55 offen offset:512 sc1")
    a("s_mov_b64 exec, -1")
    a.label(lkvd)
    a("v_add_u32 v45, 1024, v44")
    stamp(a, "p0")
    def publish_kv():
        lnf = a.newlabel("noflag")
        a(f"s_cmp_lg_u32 s{S_HQ}, 0")
        a(f"s_cbranch_scc1 {lnf}")
        a(f"s_cmp_lg_u32 s{S_W}, 0")
        a(f"s_cbranch_scc1 {lnf}")
        a(f"s_lshl_b32 s55, s{S_TBK}, 7")
        a(f"s_add_u32 s55, s55, {FLG_A}")
        a("v_lshlrev_b32 v80, 3, v0")
        a(f"v_mov_b32 v{QSAVE+8}, s{S_NONCE}")
        a("s_mov_b64 exec, 0xffff")
        a(f"buffer_store_dwordx2 v[{QSAVE+8}:{QSAVE+9}], v80, {WS}, s55 offen sc1")
        a("s_mov_b64 exec, -1")
        a.label(lnf)
    ACC = 96
    NB = 3; PD = 2
    AB = [112 + 8 * i for i in range(NB)]; BB = [116 + 8 * i for i in range(NB)]
    a.c("x fragment addresses: k-step s = 2u + kh, swizzle index s&3 = (2(u&1) + kh)")
    a(f"s_lshr_b32 s55, s{S_W}, 2")
    a("s_cmp_eq_u32 s55, 0")
    a("s_cselect_b64 vcc, -1, 0")
    a("s_lshl_b32 s55, s55, 10")
    a("v_cndmask_b32 v46, v41, v40, vcc")
    a("v_cndmask_b32 v47, v43, v42, vcc")
    a("v_add_u32 v46, s55, v46")
    a("v_add_u32 v47, s55, v47")
    def issue(u):
        A = AB[u % NB]; B = BB[u % NB]
        a.lg(f"ds_read_b64_tr_b16 v[{A}:{A+1}], v44", u)
        a.lg(f"ds_read_b64_tr_b16 v[{A+2}:{A+3}], v45", u)
        a.lg(f"ds_read_b128 v[{B}:{B+3}], v{46 + (u & 1)} offset:{L_XN + u*2048}", u)
        a("v_add_u32 v44, 8192, v44"); a("v_add_u32 v45, 8192, v45")
    def quarter_wait(q):
        lk = a.newlabel("qk"); le = a.newlabel("qe")
        a(f"s_cmp_eq_u32 s{S_HQ}, 0")
        a(f"s_cbranch_scc1 {lk}")
        a(f"s_waitcnt vmcnt({4 * (3 - q)})")
        a(f"s_branch {le}")
        a.label(lk)
        if q != 2: a("s_waitcnt vmcnt(0)")
        a.label(le)
        a("s_barrier")
    a.lgq = []
    for u in range(PD): issue(u)
    for u in range(16):
        if u in (1, 4, 8, 9, 12, 15) and PROFILE and STAMPSET == "q":
            stamp(a, "q"); a.lgq = []
        if u + PD < 16:
            if u + PD == 4:
                quarter_wait(1)
                stamp(a, "p0"); a.lgq = [] if PROFILE and STAMPSET == "p0" else a.lgq
                publish_kv()
                l3 = a.newlabel("q3b")
                a(f"s_cmp_lg_u32 s{S_HQ}, 0")
                a(f"s_cbranch_scc1 {l3}")
                wq_dma(3)
                a.label(l3)
            if u + PD == 8: quarter_wait(2)
            if u + PD == 12: quarter_wait(3)
            issue(u + PD)
        a.lg_wait(u)
        mfma(a, ACC, AB[u % NB], BB[u % NB], None if u == 0 else ACC)
    stamp(a, "q")
    a.c("add the other half of the k range (wave w ^ 4); exchange through wq slot 0")
    a(f"s_lshl_b32 s55, s{S_W}, 12")
    a(f"s_add_u32 s55, s55, {L_WQ}")
    a("v_add_u32 v14, s55, v6")
    a(f"s_xor_b32 s55, s{S_W}, 4")
    a("s_lshl_b32 s55, s55, 12")
    a(f"s_add_u32 s55, s55, {L_WQ}")
    a("v_add_u32 v15, s55, v6")
    a("s_nop 9")
    for q in range(4):
        a(f"ds_write_b128 v14, v[{ACC+4*q}:{ACC+4*q+3}] offset:{q*1024}")
    a("s_waitcnt lgkmcnt(0)")
    a("s_barrier")
    stamp(a, "q")
    for q in range(4):
        a(f"ds_read_b128 v[{64+4*q}:{67+4*q}], v15 offset:{q*1024}")
    a(f"v_mov_b32 v36, {f32hex(QSCALE)}")
    a("v_mov_b32 v37, v36")
    a("s_waitcnt lgkmcnt(0)")
    for i in range(8):
        a(f"v_pk_add_f32 v[{64+2*i}:{65+2*i}], v[{64+2*i}:{65+2*i}], v[{ACC+2*i}:{ACC+2*i+1}]")
    for i in range(8):
        a(f"v_pk_mul_f32 v[{64+2*i}:{65+2*i}], v[{64+2*i}:{65+2*i}], v[36:37]")
    for r in range(8):
        a(f"v_cvt_pk_bf16_f32 v{QSAVE+r}, v{64+2*r}, v{65+2*r}")
    stamp(a); stamp(a, "p0"); stamp(a, "q")
    a("s_barrier")
    stamp(a, "p0")

L_SCR = 131072
S_JOB = 78
V_WJS, V_WJT, V_WJC = 140, 141, 142
SRD_J1, SRD_J2 = 20, 36
def wj_setup(a):
    a("v_lshrrev_b32 v143, 4, v0")
    a("v_and_b32 v144, 15, v0")
    a("v_lshrrev_b32 v145, 5, v0")
    a("v_lshrrev_b32 v146, 2, v144")
    a("v_and_b32 v147, 3, v144")
    a("v_and_b32 v148, 1, v147")
    a("v_lshlrev_b32 v148, 1, v148")
    a("v_lshrrev_b32 v149, 1, v147")
    a("v_add_u32 v148, v148, v149")
    a("v_lshlrev_b32 v148, 3, v148")
    a("v_and_b32 v149, 1, v143")
    a("v_lshl_add_u32 v150, v145, 3, v146")
    a(f"s_lshl_b32 s57, s{S_W}, 12")
    a(f"s_add_u32 s57, s57, {L_SCR}")
    a(f"s_mov_b32 s{S_JOB}, 0")
    lo = a.newlabel("wjo"); ld = a.newlabel("wjd")
    a("s_cmp_ge_u32 s2, 112")
    a(f"s_cbranch_scc1 {lo}")
    a(f"s_mov_b32 s{S_JOB}, 1")
    a("s_lshr_b32 s60, s2, 2")
    a("s_and_b32 s61, s2, 3")
    a("s_lshl_b32 s62, s61, 3")
    a(f"s_add_u32 s62, s62, s{S_W}")
    mk_srd(a, SRD_J1, P_WG, 512 * 3584)
    mk_srd(a, SRD_J2, P_WU, 512 * 3584)
    a("v_lshrrev_b32 v151, 3, v0")
    a("s_mov_b32 s63, 3584")
    a("v_mul_lo_u32 v151, v151, s63")
    a("v_and_b32 v152, 7, v0")
    a(f"v_lshl_add_u32 v{V_WJS}, v152, 4, v151")
    a("s_mul_i32 s58, s62, 57344")
    a("s_lshl_b32 s63, s60, 7")
    a("s_add_u32 s58, s58, s63")
    a("v_lshlrev_b32 v151, 7, v150")
    a("v_lshl_add_u32 v151, v149, 11, v151")
    a("v_add_u32 v151, v151, v148")
    a(f"v_add_u32 v{V_WJT}, s57, v151")
    a("s_lshl_b32 s59, s60, 7")
    a("s_add_u32 s59, s59, s62")
    a("s_lshl_b32 s59, s59, 10")
    a(f"s_add_u32 s59, s59, {WGF}")
    a("s_mul_i32 s72, s61, 112")
    a("s_lshl_b32 s63, s60, 2")
    a("s_add_u32 s72, s72, s63")
    a("s_lshl_b32 s72, s72, 7")
    a(f"s_add_u32 s72, s72, {CSP}")
    a("v_lshlrev_b32 v151, 2, v0")
    a(f"v_add_u32 v{V_WJC}, s57, v151")
    a(f"s_branch {ld}")
    a.label(lo)
    a("s_cmp_ge_u32 s2, 184")
    a(f"s_cbranch_scc1 {ld}")
    a("s_sub_u32 s60, s2, 112")
    a("s_lshl_b32 s60, s60, 3")
    a(f"s_add_u32 s60, s60, s{S_W}")
    lwd = a.newlabel("wjwd")
    a("s_cmp_ge_u32 s60, 128")
    a(f"s_cbranch_scc1 {lwd}")
    a(f"s_mov_b32 s{S_JOB}, 3")
    mk_srd(a, SRD_J1, P_WO, 512 * 1024)
    a("s_lshr_b32 s61, s60, 3")
    a("s_and_b32 s62, s60, 7")
    a("v_lshrrev_b32 v151, 3, v0")
    a("v_lshlrev_b32 v151, 10, v151")
    a("v_and_b32 v152, 7, v0")
    a(f"v_lshl_add_u32 v{V_WJS}, v152, 4, v151")
    a("s_lshl_b32 s58, s61, 15")
    a("s_lshl_b32 s60, s62, 7")
    a("s_add_u32 s58, s58, s60")
    a("s_mov_b32 s69, 8192")
    a("v_lshl_add_u32 v151, v143, 3, v146")
    a("v_lshlrev_b32 v151, 7, v151")
    a("v_lshl_add_u32 v151, v147, 3, v151")
    a(f"v_add_u32 v{V_WJT}, s57, v151")
    a("s_lshl_b32 s59, s62, 6")
    a("s_add_u32 s59, s59, s61")
    a("s_lshl_b32 s59, s59, 10")
    a(f"s_add_u32 s59, s59, {WOF}")
    a("s_mov_b32 s72, 16384")
    a(f"s_branch {ld}")
    a.label(lwd)
    a(f"s_mov_b32 s{S_JOB}, 2")
    a("s_sub_u32 s60, s60, 128")
    mk_srd(a, SRD_J1, P_WD, 1792 * 1024)
    a("s_lshr_b32 s61, s60, 2")
    a("s_and_b32 s62, s60, 3")
    a("v_lshlrev_b32 v151, 10, v143")
    a(f"v_lshl_add_u32 v{V_WJS}, v144, 4, v151")
    a("s_lshl_b32 s58, s61, 14")
    a("s_lshl_b32 s60, s62, 8")
    a("s_add_u32 s58, s58, s60")
    a("s_mov_b32 s69, 4096")
    a("v_lshlrev_b32 v151, 8, v150")
    a("v_lshl_add_u32 v151, v149, 5, v151")
    a("v_add_u32 v151, v151, v148")
    a(f"v_add_u32 v{V_WJT}, s57, v151")
    a("s_lshl_b32 s59, s62, 2")
    a("s_mul_i32 s59, s59, 112")
    a("s_add_u32 s59, s59, s61")
    a("s_lshl_b32 s59, s59, 10")
    a(f"s_add_u32 s59, s59, {WDF}")
    a(f"s_mov_b32 s72, {112*1024}")
    a.label(ld)

def wj_branch(a, g_code, o_code):
    lo = a.newlabel("jo"); le = a.newlabel("je")
    a(f"s_cmp_eq_u32 s{S_JOB}, 1")
    a(f"s_cbranch_scc0 {lo}")
    if g_code: g_code()
    a(f"s_branch {le}")
    a.label(lo)
    if o_code:
        a(f"s_cmp_eq_u32 s{S_JOB}, 0")
        a(f"s_cbranch_scc1 {le}")
        o_code()
    a.label(le)

def wj_issue(a, part=None):
    def g():
        for i in ([0, 1] if part is None else [part]):
            a(f"s_add_u32 m0, s57, {i*1024}")
            a(f"s_add_u32 s63, s58, {i*8*3584}")
            a(f"buffer_load_dwordx4 v{V_WJS}, s[{SRD_J1}:{SRD_J1+3}], s63 offen lds")
            a(f"s_add_u32 m0, s57, {2048 + i*1024}")
            a("s_nop 0")
            a(f"buffer_load_dwordx4 v{V_WJS}, s[{SRD_J2}:{SRD_J2+3}], s63 offen lds")
    def o():
        for i in (range(4) if part is None else [2 * part, 2 * part + 1]):
            a(f"s_add_u32 m0, s57, {i*1024}")
            a(f"s_mul_i32 s63, s69, {i}")
            a(f"s_add_u32 s63, s63, s58")
            a(f"buffer_load_dwordx4 v{V_WJS}, s[{SRD_J1}:{SRD_J1+3}], s63 offen lds")
    wj_branch(a, g, o)

def wj_read(a, n_younger):
    def rd(st, rdoff):
        def f():
            a(f"s_waitcnt vmcnt({n_younger})")
            for q in range(4):
                d = 112 + 4 * q
                a(f"ds_read_b64_tr_b16 v[{d}:{d+1}], v{V_WJT} offset:{q*st}")
                a(f"ds_read_b64_tr_b16 v[{d+2}:{d+3}], v{V_WJT} offset:{q*st + rdoff}")
        return f
    l2 = a.newlabel("jr2"); le = a.newlabel("jre")
    a(f"s_cmp_eq_u32 s{S_JOB}, 0")
    a(f"s_cbranch_scc1 {le}")
    a(f"s_cmp_eq_u32 s{S_JOB}, 2")
    a(f"s_cbranch_scc1 {l2}")
    rd(32, 512)()
    a(f"s_branch {le}")
    a.label(l2)
    rd(64, 1024)()
    a.label(le)

def wj_store(a):
    def g():
        for r in range(4):
            a(f"v_mov_b32 v{128+r}, 0x3f803f80")
        for q in range(4):
            d = 112 + 4 * q
            a(f"s_add_u32 s63, s59, {q*32768}")
            a(f"buffer_store_dwordx4 v[{d}:{d+3}], v1, {WS}, s63 offen sc1")
        for q in range(4):
            mfma(a, 160 + 16 * q, 128, 112 + 4 * q, None)
    def o():
        a("s_mov_b32 s63, s59")
        for q in range(4):
            d = 112 + 4 * q
            a(f"buffer_store_dwordx4 v[{d}:{d+3}], v1, {WS}, s63 offen sc1")
            if q < 3: a("s_add_u32 s63, s63, s72")
    wj_branch(a, g, o)

def wj_cspart(a):
    def g():
        a("s_mov_b32 exec_hi, 0")
        for q in range(4):
            a(f"ds_write_b32 v{V_WJC}, v{160 + 16 * q} offset:{q*128}")
        a("s_mov_b64 exec, -1")
    wj_branch(a, g, None)

def wj_csread(a):
    def g():
        l = a.newlabel("csr")
        a(f"s_cmp_ge_u32 s{S_W}, 2")
        a(f"s_cbranch_scc1 {l}")
        a(f"s_lshl_b32 s63, s{S_W}, 8")
        a("v_lshlrev_b32 v132, 2, v0")
        a("v_add_u32 v132, s63, v132")
        a(f"v_add_u32 v133, {L_SCR}, v132")
        for ww in range(8):
            a(f"ds_read_b32 v{112+ww}, v133 offset:{ww*4096}")
        a.label(l)
    wj_branch(a, g, None)

def wj_csstore(a):
    def g():
        l = a.newlabel("css")
        a(f"s_cmp_ge_u32 s{S_W}, 2")
        a(f"s_cbranch_scc1 {l}")
        for ww in range(1, 8):
            a(f"v_add_f32 v112, v112, v{112+ww}")
        a(f"buffer_store_dword v112, v132, {WS}, s72 offen sc1")
        a.label(l)
    wj_branch(a, g, None)

def wj_signal(a):
    l = a.newlabel("wsig")
    a(f"s_cmp_eq_u32 s{S_JOB}, 0")
    a(f"s_cbranch_scc1 {l}")
    a(f"s_cmp_lg_u32 s{S_W}, 0")
    a(f"s_cbranch_scc1 {l}")
    a("s_lshl_b32 s63, s2, 7")
    a(f"s_add_u32 s63, s63, {FLG_W}")
    set_flag(a, 63, 112)
    a.label(l)

A_Q, A_O, A_S, A_P = 4, 8, [24, 40], 56
A_K = [64, 68]
A_V = [[72, 76], [80, 84]]
A_VK, A_VV = 88, 89
A_NEG = 96
A_Q2, A_O2 = 92, 96
WO_R = 112
NG_LATE = 12
WG_R = 128
XR = 60
BOUND2 = 1600.0

def attn_tile(a, p, extra=None, t=None):
    h = p & 1; i = p >> 1
    S = A_S[h]; Q = [A_Q, A_Q2]; O = [A_O, A_O2]
    def ex(r): a(f"v_exp_f32 v{S+r}, v{S+r}")
    def cv(k): a(f"v_cvt_pk_bf16_f32 v{A_P+k}, v{S+2*k}, v{S+2*k+1}")
    a("s_waitcnt lgkmcnt(0)")
    if h == 0:
        mfma(a, A_S[1], A_K[i & 1], Q[1], None)
    else:
        mfma(a, A_S[0], A_K[(i + 1) & 1], Q[0], None)
        a(f"ds_read_b128 v[{A_K[i & 1]}:{A_K[i & 1]+3}], v{A_VK} offset:{(i+2)*1024}")
    ex(0); ex(1); ex(2); ex(3)
    cv(0)
    if h == 0:
        if t != 0: mfma(a, O[1], A_V[1][(i - 1) & 1], A_P + 4, O[1])
        nb = (i + 1) & 1
        a("s_mov_b64 exec, s[70:71]")
        a(f"ds_read_b128 v[{A_V[0][nb]}:{A_V[0][nb]+3}], v{A_VV} offset:{(i+1)*1024}")
        a(f"ds_read_b128 v[{A_V[1][nb]}:{A_V[1][nb]+3}], v{A_VV} offset:{(i+1)*1024 + 512}")
        a("s_mov_b64 exec, -1")
    else:
        mfma(a, O[0], A_V[1][i & 1], A_P + 4, O[0])
    if extra: extra()
    ex(4); cv(1); ex(5); ex(6); ex(7); cv(2); ex(8); cv(3)
    ex(9); ex(10); ex(11)
    mfma(a, O[h], A_V[0][i & 1], A_P, None if t in (0, 1) else O[h])
    cv(4); ex(12); cv(5); ex(13); ex(14); ex(15); cv(6)
    cv(7)

def wave_consts(a):
    a.c("WOF + (8cq + w)*16384 -> s68")
    a(f"s_lshl_b32 s68, s{S_HQ}, 3")
    a(f"s_add_u32 s68, s68, s{S_W}")
    a("s_lshl_b32 s68, s68, 14")
    a(f"s_add_u32 s68, s68, {WOF}")
    a.c("WGF + fb*32768 -> s73, fb = 7j + w (waves 0..6; wave 7 uses fb of wave 6, harmless duplicate)")
    a(f"s_min_u32 s73, s{S_W}, 6")
    a(f"s_mul_i32 s74, s{S_J}, 7")
    a("s_add_u32 s74, s74, s73")
    a("s_lshl_b32 s73, s74, 15")
    a(f"s_add_u32 s73, s73, {WGF}")

def ld_wg(a, s, tag="WG"):
    a(f"s_add_u32 s75, s73, {(s >> 2) * 4096}")
    a.vm(f"buffer_load_dwordx4 v[{WG_R+4*s}:{WG_R+4*s+3}], v1, {WS}, s75 offen offset:{(s&3)*1024} sc1", (tag, s))
def ld_wo(a, s):
    a(f"s_add_u32 s75, s68, {(s >> 2) * 4096}")
    a.vm(f"buffer_load_dwordx4 v[{WO_R+4*s}:{WO_R+4*s+3}], v1, {WS}, s75 offen offset:{(s&3)*1024} sc1", ("WO", s))

def prefetch_lists():
    it2 = [("g", s) for s in range(7, 32)]
    it3 = [("o", s) for s in range(16)]
    return it2, it3

def kv_dma(a, st, part=None):
    if part in (None, 0):
        a(f"s_add_u32 m0, s54, {st*8192}")
        a(f"s_add_u32 s62, s54, {st*8192 + KF}")
        a(f"buffer_load_dwordx4 v1, {WS}, s62 offen sc1 lds")
        a(f"buffer_load_dwordx4 v1, {WS}, s62 offen offset:1024 sc1 lds")
    if part in (None, 1):
        a(f"s_add_u32 m0, s54, {st*8192 + 65536}")
        a(f"s_add_u32 s62, s54, {st*8192 + VF}")
        a(f"buffer_load_dwordx4 v1, {WS}, s62 offen sc1 lds")
        a(f"buffer_load_dwordx4 v1, {WS}, s62 offen offset:1024 sc1 lds")

def wready_poll(a):
    l = a.newlabel("wrq")
    a(f"s_cmp_lg_u32 s{S_W}, 0")
    a(f"s_cbranch_scc1 {l}")
    a("v_lshlrev_b32 v2, 7, v0")
    a("v_add_u32 v3, 128, v0")
    a("v_min_u32 v3, 183, v3")
    a("v_lshlrev_b32 v3, 7, v3")
    a(f"s_mov_b32 s63, {FLG_W}")
    a(f"buffer_load_dword v112, v2, {WS}, s63 offen sc1")
    a(f"s_mov_b32 s63, {FLG_W + 64*128}")
    a(f"buffer_load_dword v113, v2, {WS}, s63 offen sc1")
    a(f"s_mov_b32 s63, {FLG_W}")
    a(f"buffer_load_dword v114, v3, {WS}, s63 offen sc1")
    a.label(l)
def wready_check(a):
    l = a.newlabel("wrc"); dn = a.newlabel("wrd")
    a(f"s_cmp_lg_u32 s{S_W}, 0")
    a(f"s_cbranch_scc1 {l}")
    def test():
        a("s_waitcnt vmcnt(0)")
        a(f"v_cmp_ne_u32 vcc, s{S_NONCE}, v112")
        a(f"v_cmp_ne_u32 s[62:63], s{S_NONCE}, v113")
        a("s_nop 1")
        a("s_or_b64 s[62:63], s[62:63], vcc")
        a(f"v_cmp_ne_u32 vcc, s{S_NONCE}, v114")
        a("s_nop 4")
        a("s_or_b64 vcc, vcc, s[62:63]")
    test()
    a(f"s_cbranch_vccz {dn}")
    l2 = spin_begin(a, "wrp")
    a(f"s_mov_b32 s63, {FLG_W}")
    a(f"buffer_load_dword v112, v2, {WS}, s63 offen sc1")
    a(f"buffer_load_dword v114, v3, {WS}, s63 offen sc1")
    a(f"s_mov_b32 s63, {FLG_W + 64*128}")
    a(f"buffer_load_dword v113, v2, {WS}, s63 offen sc1")
    test()
    spin_end(a, l2, dn, 4)
    a.label(l)
    a("s_barrier")

def local_poll(a):
    a("v_lshlrev_b32 v118, 7, v0")
    a(f"s_lshl_b32 s62, s{S_G}, 11")
    a(f"s_add_u32 s62, s62, {FLG_X}")
    a("s_mov_b64 exec, 0xffff")
    a(f"buffer_load_dwordx2 v[116:117], v118, {WS}, s62 offen sc1")
    a("s_mov_b64 exec, -1")
def local_check(a):
    dn = a.newlabel("lcd")
    a(f"s_lshl_b32 s62, s{S_G}, 11")
    a(f"s_add_u32 s62, s62, {FLG_X}")
    a("s_mov_b64 exec, 0xffff")
    a("s_waitcnt vmcnt(0)")
    a(f"v_cmp_ne_u32 vcc, s{S_NONCE}, v116")
    a("s_nop 4")
    a(f"s_cbranch_vccz {dn}")
    l = spin_begin(a, "lcp")
    a(f"buffer_load_dwordx2 v[116:117], v118, {WS}, s62 offen sc1")
    a("s_waitcnt vmcnt(0)")
    a(f"v_cmp_ne_u32 vcc, s{S_NONCE}, v116")
    spin_end(a, l, dn, 4)
    a("s_getreg_b32 s62, hwreg(HW_REG_XCC_ID, 0, 4)")
    a("v_cmp_ne_u32 vcc, s62, v117")
    a(f"v_cmp_ne_u32 s[62:63], s{S_NONCE}, v116")
    a("s_mov_b64 exec, -1")
    a("s_nop 2")
    a("s_or_b64 vcc, vcc, s[62:63]")
    a("s_cmp_eq_u64 vcc, 0")
    a(f"s_cselect_b32 s{S_LOCAL}, 1, 0")

def x_residual(a):
    mk_srd(a, SRD_A, P_X, 2048 * 1024)
    a("v_and_b32 v2, 15, v0")
    a("v_lshrrev_b32 v3, 4, v0")
    a("v_lshlrev_b32 v2, 10, v2")
    a("v_lshl_add_u32 v2, v3, 3, v2")
    a(f"s_lshl_b32 s62, s{S_TBK}, 15")
    a(f"s_lshl_b32 s63, s{S_HQ}, 8")
    a("s_add_u32 s62, s62, s63")
    a(f"s_lshl_b32 s63, s{S_W}, 5")
    a("s_add_u32 s62, s62, s63")
    a.vm(f"buffer_load_dwordx2 v[{XRES}:{XRES+1}], v2, s[{SRD_A}:{SRD_A+3}], s62 offen", "XR")
    a("s_add_u32 s62, s62, 16384")
    a.vm(f"buffer_load_dwordx2 v[{XRES+2}:{XRES+3}], v2, s[{SRD_A}:{SRD_A+3}], s62 offen", "XR")
XRES = 4

def hh_prefill(a):
    l = a.newlabel("pf")
    a(f"s_cmp_eq_u32 s{S_W}, 7")
    a(f"s_cbranch_scc1 {l}")
    for r in range(4): a(f"v_mov_b32 v{96+r}, -1")
    a("s_mul_i32 s62, s74, 1024")
    a(f"s_lshl_b32 s63, s{S_G}, 2")
    a("s_mul_i32 s63, s63, 114688")
    a("s_add_u32 s62, s62, s63")
    a(f"s_add_u32 s62, s62, {HHF}")
    for tb in range(4):
        a(f"buffer_store_dwordx4 v[96:99], v1, {WS}, s62 offen sc1")
        if tb < 3: a("s_add_u32 s62, s62, 114688")
    a("s_nop 1")
    a.label(l)

def attention(a):
    L_KM = L_SCR + 4096 - 128
    a("v_lshlrev_b32 v1, 4, v0")
    lp = a.newlabel("sa0")
    a(f"s_cmp_lg_u32 s{S_W}, 0")
    a(f"s_cbranch_scc1 {lp}")
    a("v_lshlrev_b32 v3, 7, v0")
    a(f"s_mov_b32 s55, {FLG_A}")
    a(f"buffer_load_dwordx2 v[112:113], v3, {WS}, s55 offen sc1")
    a.label(lp)
    for r in range(4):
        a(f"v_mov_b32 v{A_Q+r}, v{QSAVE+r}")
        a(f"v_mov_b32 v{A_Q2+r}, v{QSAVE+4+r}")
    a("v_mov_b32 v90, 0")
    a("v_mov_b32 v2, 0")
    for r in range(4):
        a(f"v_dot2_f32_bf16 v90, v{A_Q+r}, v{A_Q+r}, v90")
        a(f"v_dot2_f32_bf16 v2, v{A_Q2+r}, v{A_Q2+r}, v2")
    a("s_mov_b32 s70, 0x0000ffff")
    a("s_mov_b32 s71, 0x0000ffff")
    a("s_mov_b32 s62, 0x00110000" if ZROWS else "s_mov_b32 s62, -1"); a("s_mov_b32 s63, s62")
    a("v_mov_b32 v91, 0x3f803f80")
    for r in range(16): a(f"v_cndmask_b32 v{72+r}, 0, v91, s[62:63]")
    xhalf(a, 90, 91, "v_add_f32")
    xhalf(a, 2, 91, "v_add_f32")
    a("v_max_f32 v90, v90, v2")
    dpp_sum16(a, 90, "v_max_f32")
    xrow16(a, 90, 91, "v_max_f32")
    a(f"s_lshl_b32 s61, s{S_W}, 2")
    a(f"s_add_u32 s61, s61, {L_KM + 64}")
    a("v_mov_b32 v91, s61")
    a("s_mov_b64 exec, 1")
    a("ds_write_b32 v91, v90")
    a("s_mov_b64 exec, -1")
    a(f"s_lshr_b32 s61, s{S_W}, 2")
    a("s_lshl_b32 s61, s61, 15")
    a(f"v_add_u32 v{A_VK}, s61, v1")
    a("v_lshrrev_b32 v90, 5, v0")
    a("v_and_b32 v91, 15, v0")
    a("v_lshl_add_u32 v90, v90, 4, v91")
    a("v_lshlrev_b32 v90, 4, v90")
    a("s_add_u32 s61, s61, 65536")
    a(f"v_add_u32 v{A_VV}, s61, v90")
    wave_consts(a)
    a(f"s_lshr_b32 s54, s{S_W}, 2")
    a("s_lshl_b32 s54, s54, 4")
    a(f"s_and_b32 s61, s{S_W}, 3")
    a("s_add_u32 s54, s54, s61")
    a("s_lshl_b32 s54, s54, 11")
    la = a.newlabel("sa")
    a(f"s_cmp_lg_u32 s{S_W}, 0")
    a(f"s_cbranch_scc1 {la}")
    done = a.newlabel("syncA")
    a("s_waitcnt vmcnt(0)")
    a(f"v_cmp_ne_u32 vcc, s{S_NONCE}, v112")
    a("s_nop 4")
    a(f"s_cbranch_vccz {done}")
    l = spin_begin(a, "pollA")
    a(f"buffer_load_dwordx2 v[112:113], v3, {WS}, s55 offen sc1")
    a("s_waitcnt vmcnt(0)")
    a(f"v_cmp_ne_u32 vcc, s{S_NONCE}, v112")
    spin_end(a, l, done, SYNCA_SLEEP)
    dpp_sum16(a, 113, "v_max_f32")
    xrow16(a, 113, 91, "v_max_f32")
    xhalf(a, 113, 91, "v_max_f32")
    a(f"v_mov_b32 v91, {L_KM}")
    a("s_mov_b64 exec, 1")
    a("ds_write_b32 v91, v113")
    a("s_mov_b64 exec, -1")
    a.label(la)
    a("s_waitcnt lgkmcnt(0)")
    a("s_barrier")
    stamp(a)
    kv_dma(a, 0)
    a.c("any row of the workgroup that might leave the safe range sends the whole workgroup to the max-subtracting path")
    a(f"v_mov_b32 v91, {L_KM}")
    a("ds_read_b32 v3, v91")
    a("ds_read_b128 v[112:115], v91 offset:64")
    a("ds_read_b128 v[116:119], v91 offset:80")
    a("s_waitcnt lgkmcnt(0)")
    a("v_max3_f32 v112, v112, v113, v114")
    a("v_max3_f32 v116, v116, v117, v118")
    a("v_max3_f32 v112, v112, v115, v119")
    a("v_max_f32 v112, v112, v116")
    a("v_mul_f32 v90, v112, v3")
    a(f"v_mov_b32 v91, {f32hex(BOUND2)}")
    a("v_cmp_gt_f32 vcc, v90, v91")
    a("s_waitcnt vmcnt(0)")
    a("s_cmp_lg_u64 vcc, 0")
    a("s_cselect_b32 s61, 1, 0")
    a("s_barrier")
    a(f"ds_read_b128 v[{A_K[0]}:{A_K[0]+3}], v{A_VK}")
    a(f"ds_read_b128 v[{A_K[1]}:{A_K[1]+3}], v{A_VK} offset:1024")
    a("s_mov_b64 exec, s[70:71]")
    a(f"ds_read_b128 v[{A_V[0][0]}:{A_V[0][0]+3}], v{A_VV}")
    a(f"ds_read_b128 v[{A_V[1][0]}:{A_V[1][0]+3}], v{A_VV} offset:512")
    a("s_mov_b64 exec, -1")
    a("s_waitcnt lgkmcnt(0)")
    lslow = a.newlabel("slow"); lepi = a.newlabel("attn_epi")
    a("s_cmp_lg_u32 s61, 0")
    a(f"s_cbranch_scc1 {lslow}")
    stamp(a)
    mfma(a, A_S[0], A_K[0], A_Q, None)
    it_pref = [("g", s) for s in range(NG_LATE, 32)] + [("o", s) for s in range(16)]
    NPF0, NPF1 = 36, 62
    a("s_nop 15")
    a.vm_reset()
    def extra_for(t):
        def f():
            if t in (0, 1): kv_dma(a, 1, t)
            if t == 1: wj_setup(a)
            if t in (2, 3): wj_issue(a, t - 2)
            if t in (4, 5): kv_dma(a, 2, t - 4)
            if t in (6, 7): kv_dma(a, 3, t - 6)
            if t == 12: wj_read(a, 8)
            if t == 13: wj_store(a)
            if t == 15: wj_cspart(a)
            if t == 16: wj_csread(a)
            if t == 17: wj_csstore(a)
            if t == 33: wready_poll(a); local_poll(a)
            if t == 36: local_check(a)
            if NPF0 <= t < NPF1:
                k0 = (t - NPF0) * len(it_pref) // (NPF1 - NPF0); k1 = (t + 1 - NPF0) * len(it_pref) // (NPF1 - NPF0)
                for k, s in it_pref[k0:k1]:
                    (ld_wg if k == "g" else ld_wo)(a, s)
            if SENT_D and t == 40: hh_prefill(a)
            if t == 20 and PRETOUCH & 2:
                mk_srd(a, SRD_A, P_OUT, 2048 * 1024)
                a(f"s_lshl_b32 s62, s{S_G}, 17")
                a(f"buffer_load_dword v120, v1, s[{SRD_A}:{SRD_A+3}], s62 offen")
            if t == 62: x_residual(a)
        return f
    for t in range(64):
        p = t & 15
        if t in (0, 4, 8, 12, 16, 20, 24, 28, 32, 36, 40, 48, 56, 63): stamp(a, "attn")
        if t > 0 and t % 4 == 0 and (t % BAR_EVERY == 0 or t in (12, 16, 24, 36)):
            if t == 12:
                a("s_waitcnt vmcnt(8)")
            if t == 16:
                a("s_waitcnt lgkmcnt(0)")
            if t == 24:
                a("s_waitcnt vmcnt(0)")
            if t == 36:
                wready_check(a)
            else:
                a("s_barrier")
            if t == 24:
                wj_signal(a)
        if PRIO:
            a(f"s_setprio {3 - (t & 3)}")
        if ALTP and t % ALTP == 0:
            hi_first = (t // ALTP) & 1
            l1 = a.newlabel("ap"); l2 = a.newlabel("aq")
            a(f"s_cmp_lt_u32 s{S_W}, 4")
            a(f"s_cbranch_scc1 {l1}")
            a(f"s_setprio {1 - hi_first}")
            a(f"s_branch {l2}")
            a.label(l1)
            a(f"s_setprio {hi_first}")
            a.label(l2)
        attn_tile(a, p, extra_for(t), t)
        if p == 15 and t < 63:
            a(f"v_add_u32 v{A_VK}, 8192, v{A_VK}")
            a(f"v_add_u32 v{A_VV}, 8192, v{A_VV}")
    if PRIO or ALTP: a("s_setprio 0")
    a("s_nop 1")
    mfma(a, A_O2, A_V[1][1], A_P + 4, A_O2)
    a(f"s_branch {lepi}")
    a.label(lslow)
    for st in range(1, 4):
        kv_dma(a, st)
    for r in range(16):
        a(f"v_mov_b32 v{A_O+r}, 0")
        a(f"v_mov_b32 v{A_O2+r}, 0")
    wj_setup(a)
    wj_issue(a)
    wj_read(a, 0)
    a("s_waitcnt lgkmcnt(0)")
    wj_store(a)
    a("s_nop 15")
    wj_cspart(a)
    a("s_waitcnt vmcnt(0) lgkmcnt(0)")
    a("s_barrier")
    wj_csread(a)
    a("s_waitcnt lgkmcnt(0)")
    wj_csstore(a)
    a("s_waitcnt vmcnt(0)")
    a("s_barrier")
    wj_signal(a)
    NEG = [112, 128]
    for h in range(2):
        Qh = [A_Q, A_Q2][h]
        a(f"v_mov_b32 v{2+h}, 0xff800000")
        a(f"v_mov_b32 v90, v{A_VK}")
        a("s_mov_b32 s55, 0")
        l1 = a.newlabel("s1")
        a.label(l1)
        a(f"ds_read_b128 v[{A_K[0]}:{A_K[0]+3}], v90")
        a("s_waitcnt lgkmcnt(0)")
        mfma(a, A_S[0], A_K[0], Qh, None)
        a("s_nop 15")
        for r in range(8):
            a(f"v_max3_f32 v{2+h}, v{A_S[0]+2*r}, v{A_S[0]+2*r+1}, v{2+h}")
        a("v_add_u32 v90, 1024, v90")
        a("s_add_u32 s55, s55, 1")
        a("s_cmp_lt_u32 s55, 32")
        a(f"s_cbranch_scc1 {l1}")
        xhalf(a, 2 + h, 91, "v_max_f32")
    a.c("the other half of the keys belongs to wave w ^ 4: exchange the maxima")
    a(f"s_lshl_b32 s55, s{S_W}, 12")
    a(f"s_add_u32 s55, s55, {L_SCR}")
    a("v_lshlrev_b32 v90, 3, v0")
    a("v_add_u32 v91, s55, v90")
    a("ds_write_b64 v91, v[2:3]")
    a(f"s_xor_b32 s55, s{S_W}, 4")
    a("s_lshl_b32 s55, s55, 12")
    a(f"s_add_u32 s55, s55, {L_SCR}")
    a("v_add_u32 v91, s55, v90")
    a("s_waitcnt lgkmcnt(0)")
    a("s_barrier")
    a("ds_read_b64 v[90:91], v91")
    a("s_waitcnt lgkmcnt(0)")
    a("v_max_f32 v2, v2, v90")
    a("v_max_f32 v3, v3, v91")
    for h in range(2):
        for r in range(16):
            a(f"v_sub_f32 v{NEG[h]+r}, 0, v{2+h}")
    for h in range(2):
        Qh = [A_Q, A_Q2][h]; Oh = [A_O, A_O2][h]
        a(f"v_mov_b32 v90, v{A_VK}")
        a(f"v_mov_b32 v91, v{A_VV}")
        a("s_mov_b32 s55, 0")
        l2 = a.newlabel("s2")
        a.label(l2)
        a(f"ds_read_b128 v[{A_K[0]}:{A_K[0]+3}], v90")
        a("s_mov_b64 exec, s[70:71]")
        a(f"ds_read_b128 v[{A_V[0][0]}:{A_V[0][0]+3}], v91")
        a(f"ds_read_b128 v[{A_V[1][0]}:{A_V[1][0]+3}], v91 offset:512")
        a("s_mov_b64 exec, -1")
        a("s_waitcnt lgkmcnt(0)")
        mfma(a, A_S[0], A_K[0], Qh, NEG[h])
        a("s_nop 15")
        for r in range(16):
            a(f"v_exp_f32 v{A_S[0]+r}, v{A_S[0]+r}")
        a("s_nop 0")
        for k in range(8):
            a(f"v_cvt_pk_bf16_f32 v{A_P+k}, v{A_S[0]+2*k}, v{A_S[0]+2*k+1}")
        a("s_nop 1")
        mfma(a, Oh, A_V[0][0], A_P, Oh)
        mfma(a, Oh, A_V[1][0], A_P + 4, Oh)
        a("v_add_u32 v90, 1024, v90")
        a("v_add_u32 v91, 1024, v91")
        a("s_add_u32 s55, s55, 1")
        a("s_cmp_lt_u32 s55, 32")
        a(f"s_cbranch_scc1 {l2}")
    a("s_nop 15")
    a("s_barrier")
    if SENT_D: hh_prefill(a)
    wready_poll(a)
    local_poll(a)
    wready_check(a)
    local_check(a)
    sv = list(a.vmq)
    for k, s in it_pref:
        (ld_wg if k == "g" else ld_wo)(a, s)
    x_residual(a)
    a.vmq = sv
    a.label(lepi)
    stamp(a)
    a.c("wave kh finishes head 2p + kh: it hands the partial sums of the other head to wave w ^ 4")
    a(f"s_lshl_b32 s60, s{S_W}, 12")
    a(f"s_add_u32 s60, s60, {L_SCR}")
    a("v_add_u32 v90, s60, v1")
    a(f"s_xor_b32 s60, s{S_W}, 4")
    a("s_lshl_b32 s60, s60, 12")
    a(f"s_add_u32 s60, s60, {L_SCR}")
    a("v_add_u32 v91, s60, v1")
    a.c("OF + (tbk*32 + 8hq + 2p + kh)*1024")
    a(f"s_lshl_b32 s60, s{S_TBK}, 5")
    a(f"s_lshl_b32 s61, s{S_HQ}, 3")
    a("s_add_u32 s60, s60, s61")
    a(f"s_and_b32 s61, s{S_W}, 3")
    a("s_lshl_b32 s61, s61, 1")
    a("s_add_u32 s60, s60, s61")
    a(f"s_lshr_b32 s61, s{S_W}, 2")
    a("s_add_u32 s60, s60, s61")
    a("s_lshl_b32 s60, s60, 10")
    a(f"s_add_u32 s60, s60, {OF}")
    lk1 = a.newlabel("kh1"); lk2 = a.newlabel("khj")
    a(f"s_cmp_ge_u32 s{S_W}, 4")
    a(f"s_cbranch_scc1 {lk1}")
    for q in range(3):
        a(f"ds_write_b128 v90, v[{A_O2+4*q}:{A_O2+4*q+3}] offset:{q*1024}")
    a(f"s_branch {lk2}")
    a.label(lk1)
    for q in range(3):
        a(f"ds_write_b128 v90, v[{A_O+4*q}:{A_O+4*q+3}] offset:{q*1024}")
    for r in range(9):
        a(f"v_mov_b32 v{A_O+r}, v{A_O2+r}")
    a.label(lk2)
    a("s_waitcnt lgkmcnt(0)")
    a("s_barrier")
    for q in range(3):
        a(f"ds_read_b128 v[{24+4*q}:{27+4*q}], v91 offset:{q*1024}")
    a("s_waitcnt lgkmcnt(0)")
    for i in range(4):
        a(f"v_pk_add_f32 v[{A_O+2*i}:{A_O+2*i+1}], v[{A_O+2*i}:{A_O+2*i+1}], v[{24+2*i}:{25+2*i}]")
    a(f"v_add_f32 v{A_O+8}, v{A_O+8}, v32")
    a(f"v_rcp_f32 v90, v{A_O+8}")
    a("s_nop 0")
    for r in range(8):
        a(f"v_mul_f32 v{A_O+r}, v{A_O+r}, v90")
    for k in range(4):
        a(f"v_cvt_pk_bf16_f32 v{A_P+k}, v{A_O+2*k}, v{A_O+2*k+1}")
    a("s_mov_b32 s54, s60")
    gstore(a, f"buffer_store_dwordx4 v[{A_P}:{A_P+3}], v1, {WS}, s60 offen", "o")
    if "o" in DOUBLE: a(f"buffer_store_dwordx4 v[{A_P}:{A_P+3}], v1, {WS}, s60 offen")

def eflag_base(a, dst):
    a(f"s_lshl_b32 s{dst}, s{S_G}, 11")
    a(f"s_add_u32 s{dst}, s{dst}, {FLG_E}")

def wg_publish(a, base, vt, younger=0):
    a(f"s_lshl_b32 s60, s{S_G}, 4")
    a(f"s_add_u32 s60, s60, s{S_J}")
    a("s_lshl_b32 s60, s60, 7")
    a(f"s_add_u32 s60, s60, {base}")
    a(f"v_mov_b32 v{vt}, s{S_NONCE}")
    a(f"v_lshlrev_b32 v{vt+1}, 2, v0")
    stamp(a, "p3")
    a(f"s_waitcnt vmcnt({younger})")
    stamp(a, "p3")
    a("s_barrier")
    l = a.newlabel("pub")
    a(f"s_cmp_lg_u32 s{S_W}, 0")
    a(f"s_cbranch_scc1 {l}")
    a("s_mov_b32 exec_hi, 0")
    gstore(a, f"buffer_store_dword v{vt}, v{vt+1}, {WS}, s60 offen")
    a("s_mov_b64 exec, -1")
    a.label(l)

def wg_wait(a, base, first_expr, n, vt, vo, poller=0):
    l = a.newlabel("wt")
    a(f"s_cmp_lg_u32 s{S_W}, {poller}")
    a(f"s_cbranch_scc1 {l}")
    a(f"s_lshl_b32 s60, s{S_G}, 4")
    if first_expr is not None:
        first_expr()
    a("s_lshl_b32 s60, s60, 7")
    a(f"s_add_u32 s60, s60, {base}")
    if POLL_DELAY: a(f"s_sleep {POLL_DELAY}")
    poll_flags(a, 60, n, vt, vo, sleep=POLL_SLEEP)
    a.label(l)
    a("s_barrier")

def wave_publish(a, base, vt):
    a(f"s_lshl_b32 s60, s{S_G}, 4")
    a(f"s_add_u32 s60, s60, s{S_J}")
    a("s_lshl_b32 s60, s60, 3")
    a(f"s_add_u32 s60, s60, s{S_W}")
    a("s_lshl_b32 s60, s60, 7")
    a(f"s_add_u32 s60, s60, {base}")
    stamp(a, "p3")
    a("s_waitcnt vmcnt(0)")
    stamp(a, "p3")
    set_flag(a, 60, vt)

L3_ST = 131072 + 4096
def mfma16(a, d, A, B, c):
    cs = "0" if c is None else f"v[{c}:{c+3}]"
    a(f"v_mfma_f32_16x16x32_bf16 v[{d}:{d+3}], v[{A}:{A+3}], v[{B}:{B+3}], {cs}")

def p3(a):
    wg_publish(a, FLG_B, 28)
    stamp(a)
    def fe():
        a(f"s_lshl_b32 s61, s{S_TQ}, 2")
        a("s_add_u32 s60, s60, s61")
    wg_wait(a, FLG_B, fe, 4, 28, 30, poller=1)
    stamp(a)
    a.c("o fragments -> LDS [32 heads][1024] over key tiles 0..31 (dead since the last barriers of the attention loop)")
    a(f"s_lshl_b32 s60, s{S_W}, 12")
    a("s_mov_b32 m0, s60")
    a(f"s_lshl_b32 s61, s{S_TBK}, 15")
    a("s_add_u32 s61, s61, s60")
    a(f"s_add_u32 s61, s61, {OF}")
    for e in range(4):
        a(f"buffer_load_dwordx4 v1, {WS}, s61 offen offset:{e*1024} sc1 lds")
    a.c("operand address: (g>>1)*1024 + ((g&1)*32 + (lane&15))*16")
    a("v_lshrrev_b32 v30, 5, v0")
    a("v_lshlrev_b32 v30, 10, v30")
    a("v_bfe_u32 v31, v0, 4, 1")
    a("v_lshlrev_b32 v31, 5, v31")
    a("v_and_b32 v29, 15, v0")
    a("v_add_u32 v31, v31, v29")
    a("v_lshl_add_u32 v30, v31, 4, v30")
    a("v_and_b32 v2, 31, v0")
    a("s_mov_b32 s61, 0xffff0000")
    for i in range(4):
        a(f"v_lshlrev_b32 v{16+2*i}, 16, v{XRES+i}")
        a(f"v_and_b32 v{17+2*i}, s61, v{XRES+i}")
    a(f"s_lshl_b32 s60, s{S_TBK}, 5")
    a(f"s_lshl_b32 s61, s{S_HQ}, 3")
    a("s_add_u32 s60, s60, s61")
    a(f"s_add_u32 s60, s60, s{S_W}")
    a("s_lshl_b32 s60, s60, 10")
    a(f"s_add_u32 s60, s60, {HF}")
    stamp(a, "p3")
    a("s_waitcnt vmcnt(0)")
    stamp(a, "p3")
    a("s_barrier")
    stamp(a, "p3")
    NB3 = 5
    BBF = [[32 + 8 * k, 36 + 8 * k] for k in range(NB3)]
    a.lgq = []
    def rd(s):
        for th2 in range(2):
            r = BBF[s % NB3][th2]
            a.lg(f"ds_read_b128 v[{r}:{r+3}], v30 offset:{s*2048 + th2*256}", s)
    for s in range(NB3 - 1): rd(s)
    for s in range(16):
        if s + NB3 - 1 < 16: rd(s + NB3 - 1)
        a.lg_wait(s)
        for th2 in range(2):
            mfma16(a, 8 + 4 * th2, WO_R + 4 * s, BBF[s % NB3][th2], None if s == 0 else 8 + 4 * th2)
    stamp(a, "p3")
    a("s_nop 7")
    for i in range(4):
        a(f"v_pk_add_f32 v[{8+2*i}:{9+2*i}], v[{8+2*i}:{9+2*i}], v[{16+2*i}:{17+2*i}]")
    for i in range(4):
        a(f"v_cvt_pk_bf16_f32 v{40+i}, v{8+2*i}, v{9+2*i}")
    a("s_nop 1")
    a("v_permlane16_swap_b32 v40, v42")
    a("v_permlane16_swap_b32 v41, v43")
    a("s_nop 1")
    a("s_mov_b32 s55, s60")
    gstore(a, f"buffer_store_dwordx4 v[40:43], v1, {WS}, s60 offen", "h")
    if "h" in LOCAL_DATA:
        for r in range(4): a(f"v_mov_b32 v{12+r}, v{40+r}")
    if "h" in DOUBLE: a(f"buffer_store_dwordx4 v[40:43], v1, {WS}, s60 offen")
    stamp(a, "p3")
    a("s_mov_b32 s61, 0x3f803f80")
    a("v_mov_b32 v44, 0")
    a("v_mov_b32 v45, 0")
    for i in range(4):
        a(f"v_dot2_f32_bf16 v44, v{40+i}, s61, v44")
        a(f"v_dot2_f32_bf16 v45, v{40+i}, v{40+i}, v45")
    a("s_nop 2")
    xhalf(a, 44, 46, "v_add_f32")
    xhalf(a, 45, 46, "v_add_f32")
    a(f"s_lshl_b32 s60, s{S_W}, 8")
    a(f"s_add_u32 s60, s60, {L3_ST}")
    a("v_lshlrev_b32 v46, 3, v2")
    a("v_add_u32 v47, s60, v46")
    a("s_mov_b32 exec_hi, 0")
    a("ds_write_b64 v47, v[44:45]")
    a("s_mov_b64 exec, -1")
    a("s_waitcnt lgkmcnt(0)")
    wg_publish(a, FLG_C, 28)
    a.vm_reset()
    l7 = a.newlabel("nog")
    a(f"s_cmp_eq_u32 s{S_W}, 7")
    a(f"s_cbranch_scc1 {l7}")
    for s in range(NG_LATE):
        ld_wg(a, s)
    a.label(l7)
    stamp(a)

L4_ST = 131072
L4_CS = 131072 + 1024
WD_R = 128
def ld_wd(a, u):
    s, ct = u >> 1, u & 1
    off = ct * 114688 + (s >> 2) * 4096
    a(f"s_add_u32 s75, s76, {off}")
    a.vm(f"buffer_load_dwordx4 v[{WD_R+4*u}:{WD_R+4*u+3}], v1, {WS}, s75 offen offset:{(s&3)*1024} sc1", ("WD", u))

def p4(a):
    a(f"s_and_b32 s77, s{S_J}, 7")
    a("s_mul_i32 s76, s77, 229376")
    a(f"s_mul_i32 s60, s{S_W}, 14336")
    a("s_add_u32 s76, s76, s60")
    a(f"s_add_u32 s76, s76, {WDF}")
    a(f"s_lshl_b32 s62, s{S_G}, 17")
    a(f"s_lshl_b32 s63, s{S_W}, 10")
    a("s_add_u32 s62, s62, s63")
    a(f"s_add_u32 s62, s62, {HF}")
    stamp(a, "p4")
    wg_wait(a, FLG_C, None, 16, 28, 5, poller=7)
    stamp(a); stamp(a, "p4")
    def dma(st):
        for tb in range(4):
            off = tb * 32768 + st * 8192
            a(f"s_add_u32 m0, s63, {off}")
            a(f"s_add_u32 s64, s62, {off}")
            a.vm(f"buffer_load_dwordx4 v1, {WS}, s64 offen sc1 lds", ("H", st))
    a.vm_reset()
    dma(0)
    if "o" in LOCAL_DATA:
        clean_store(a, A_P, 54, "o")
    lhelp = a.newlabel("help"); ljoin = a.newlabel("p4join")
    a(f"s_cmp_eq_u32 s{S_W}, 7")
    a(f"s_cbranch_scc1 {lhelp}")
    sv = list(a.vmq)
    a("v_add_u32 v2, 65536, v1")
    BB = [[32 + 4 * t for t in range(4)], [48 + 4 * t for t in range(4)]]
    def breads(s):
        for tb in range(4):
            base = "v1" if tb < 2 else "v2"
            a.lg(f"ds_read_b128 v[{BB[s&1][tb]}:{BB[s&1][tb]+3}], {base} offset:{(tb&1)*32768 + s*1024}", s)
    a.lgq = []
    a.vm_wait(("H", 0))
    stamp(a, "p4")
    a("s_barrier")
    stamp(a); stamp(a, "p4")
    breads(0)
    dma(1)
    for s in range(24):
        if (s + 1) % 8 == 0:
            a.vm_wait(("H", (s + 1) // 8))
            a("s_barrier")
        if s + 1 < 24:
            breads(s + 1)
        if PRIO2 and s % 2 == 0: a(f"s_setprio {3 - ((s & 7) >> 1)}")
        a.lg_wait(s)
        for tb in range(4):
            mfma(a, 64 + 16 * tb, WG_R + 4 * s, BB[s & 1][tb], None if s == 0 else 64 + 16 * tb)
        if s == 2: dma(2)
        if s == 6: dma(3)
        if s == 20: clean_store(a, 12, 55, "h")
        if s >= 1:
            ld_wd(a, s - 1)
    a("v_and_b32 v3, 31, v0")
    a("v_lshlrev_b32 v3, 3, v3")
    a(f"v_add_u32 v3, {L4_ST}, v3")
    SL = [32 + 4 * i for i in range(8)]
    seq = [(tb, s) for tb in range(4) for s in range(24, 32)]
    def rd(k):
        tb, s = seq[k]
        base = "v1" if tb < 2 else "v2"
        r = SL[k % 8]
        a.lg(f"ds_read_b128 v[{r}:{r+3}], {base} offset:{(tb&1)*32768 + s*1024}", ("t", k))
    for k in range(4): rd(k)
    for tb in range(4):
        a.lg(f"ds_read_b64 v[{4+2*tb}:{5+2*tb}], v3 offset:{tb*256}", "st")
    a("v_lshrrev_b32 v12, 5, v0")
    a("v_lshlrev_b32 v12, 4, v12")
    a(f"s_lshl_b32 s60, s{S_W}, 7")
    a(f"s_add_u32 s60, s60, {L4_CS}")
    a("v_add_u32 v12, s60, v12")
    for q in range(4):
        a.lg(f"ds_read_b128 v[{16+4*q}:{19+4*q}], v12 offset:{q*32}", "st")
    a("s_mul_i32 s60, s74, 1024")
    a(f"s_lshl_b32 s61, s{S_G}, 2")
    a("s_mul_i32 s61, s61, 114688")
    a("s_add_u32 s60, s60, s61")
    a(f"s_add_u32 s60, s60, {HHF}")
    def epi(tb):
        A = 64 + 16 * tb; st = 4 + 2 * tb; o = 8 + 0
        L = []
        for i in range(8):
            L.append(f"v_pk_fma_f32 v[{A+2*i}:{A+2*i+1}], v[{16+2*i}:{17+2*i}], v[{st}:{st+1}], v[{A+2*i}:{A+2*i+1}] op_sel_hi:[1,0,1]")
        for i in range(4):
            L.append(f"v_pk_mul_f32 v[{A+8+2*i}:{A+9+2*i}], v[{A+8+2*i}:{A+9+2*i}], v[{st}:{st+1}] op_sel:[0,1] op_sel_hi:[1,1]")
        for r in range(8):
            L.append(f"v_max_f32 v{A+r}, 0, v{A+r}")
        for i in range(4):
            L.append(f"v_pk_mul_f32 v[{A+2*i}:{A+2*i+1}], v[{A+2*i}:{A+2*i+1}], v[{A+8+2*i}:{A+9+2*i}]")
        for i in range(4):
            L.append(f"v_cvt_pk_bf16_f32 v{A+8+i}, v{A+2*i}, v{A+2*i+1}")
        L.append(("st", f"buffer_store_dwordx4 v[{A+8}:{A+11}], v1, {WS}, s60 offen"))
        if tb < 3: L.append("s_add_u32 s60, s60, 114688")
        return L
    def emit(items):
        for ins in items:
            if isinstance(ins, tuple): gstore(a, ins[1], "g")
            else: a(ins)
    pend = []
    for k, (tb, s) in enumerate(seq):
        if k + 4 < len(seq): rd(k + 4)
        a.lg_wait(("t", k))
        mfma(a, 64 + 16 * tb, WG_R + 4 * s, SL[k % 8], 64 + 16 * tb)
        if k == 0: ld_wd(a, 23)
        if k % 8 == 2 and tb > 0:
            if tb == 1: a.lg_wait("st")
            pend = epi(tb - 1)
            a("s_nop 3")
        n = (len(pend) + 4) // 5 if (k % 8) < 7 else len(pend)
        if k % 8 >= 2 or tb == 0:
            emit(pend[:5 if (k % 8) < 7 else len(pend)]); pend = pend[5 if (k % 8) < 7 else len(pend):]
    stamp(a); stamp(a, "p4")
    if PRIO2: a("s_setprio 0")
    a("s_nop 9")
    emit(epi(3))
    for u in range(24, 28): ld_wd(a, u)
    stamp(a, "p4")
    a(f"s_branch {ljoin}")
    a.label(lhelp)
    a.vmq = list(sv)
    dma(1); dma(2); dma(3)
    a("v_lshlrev_b32 v3, 2, v0")
    a(f"s_mul_i32 s60, s{S_J}, 896")
    a(f"s_add_u32 s60, s60, {CSP}")
    for kq in range(4):
        for i in range(4):
            a.vm(f"buffer_load_dword v{32+4*kq+i}, v3, {WS}, s60 offen offset:{i*256} sc1", "cs")
        if kq < 3:
            a("s_add_u32 s60, s60, 14336")
    a.vm_wait(("H", 0))
    a("s_barrier")
    a.c("finish this workgroup's row statistics (partials of the 8 waves are in LDS) and publish them")
    a("v_and_b32 v2, 31, v0")
    a("v_lshlrev_b32 v64, 3, v2")
    a(f"v_add_u32 v65, {L3_ST}, v64")
    for ww in range(8):
        a(f"ds_read_b64 v[{66+2*ww}:{67+2*ww}], v65 offset:{ww*256}")
    a("s_waitcnt lgkmcnt(0)")
    for ww in range(1, 8):
        a(f"v_pk_add_f32 v[66:67], v[66:67], v[{66+2*ww}:{67+2*ww}]")
    a("v_lshlrev_b32 v64, 5, v2")
    a(f"s_lshl_b32 s60, s{S_TBK}, 10")
    a(f"s_lshl_b32 s61, s{S_HQ}, 3")
    a("s_add_u32 s60, s60, s61")
    a(f"s_add_u32 s60, s60, {HST}")
    a("s_mov_b32 exec_hi, 0")
    a.vm(f"buffer_store_dwordx2 v[66:67], v64, {WS}, s60 offen sc1", "hst")
    a("s_mov_b64 exec, -1")
    a.vm_wait_all()
    eflag_base(a, 60)
    a(f"s_lshl_b32 s61, s{S_J}, 7")
    a("s_add_u32 s60, s60, s61")
    set_flag(a, 60, 28)
    a("s_barrier")
    a("s_barrier")
    clean_store(a, 12, 55, "h")
    eflag_base(a, 60)
    poll_flags(a, 60, 16, 28, 2)
    a("v_lshlrev_b32 v2, 5, v0")
    a(f"s_lshl_b32 s60, s{S_G}, 12")
    a(f"s_add_u32 s60, s60, {HST}")
    for i in range(2):
        a(f"buffer_load_dwordx4 v[{8+8*i}:{11+8*i}], v2, {WS}, s60 offen offset:{i*2048} sc1")
        a(f"buffer_load_dwordx4 v[{12+8*i}:{15+8*i}], v2, {WS}, s60 offen offset:{i*2048+16} sc1")
    a.vm_wait_all()
    for i in range(2):
        b = 8 + 8 * i
        a(f"v_add_f32 v{b}, v{b}, v{b+2}")
        a(f"v_add_f32 v{b+4}, v{b+4}, v{b+6}")
        a(f"v_add_f32 v{b+1}, v{b+1}, v{b+3}")
        a(f"v_add_f32 v{b+5}, v{b+5}, v{b+7}")
        a(f"v_add_f32 v{b}, v{b}, v{b+4}")
        a(f"v_add_f32 v{b+1}, v{b+1}, v{b+5}")
        a(f"v_mul_f32 v{b}, {f32hex(1.0/512)}, v{b}")
        a(f"v_mul_f32 v{b+2}, v{b}, v{b}")
        a(f"v_mov_b32 v{b+3}, {f32hex(1.0/512)}")
        a(f"v_fma_f32 v{b+1}, v{b+1}, v{b+3}, -v{b+2}")
        a(f"v_max_f32 v{b+1}, 0, v{b+1}")
        a(f"v_add_f32 v{b+1}, {f32hex(1e-5)}, v{b+1}")
        a(f"v_rcp_f32 v{b+1}, v{b+1}")
        a(f"v_sub_f32 v{b}, 0, v{b}")
    a("v_lshlrev_b32 v4, 3, v0")
    a(f"v_add_u32 v4, {L4_ST}, v4")
    a("ds_write_b64 v4, v[8:9]")
    a("ds_write_b64 v4, v[16:17] offset:512")
    for i in range(4):
        a(f"v_add_f32 v{32+i}, v{32+i}, v{36+i}")
        a(f"v_add_f32 v{40+i}, v{40+i}, v{44+i}")
        a(f"v_add_f32 v{32+i}, v{32+i}, v{40+i}")
    a(f"v_add_u32 v3, {L4_CS}, v3")
    for i in range(3):
        a(f"ds_write_b32 v3, v{32+i} offset:{i*256}")
    a("s_mov_b32 exec_hi, 0")
    a("ds_write_b32 v3, v35 offset:768")
    a("s_mov_b64 exec, -1")
    a("s_waitcnt lgkmcnt(0)")
    a("s_barrier")
    for u in range(28):
        ld_wd(a, u)
    a.label(ljoin)
    if not SENT_D:
        wg_publish(a, FLG_D, 28, 4)
    a.vm_reset()
    stamp(a)

def p5(a):
    mk_srd(a, SRD_A, P_OUT, 2048 * 1024)
    a(f"s_lshr_b32 s72, s{S_J}, 3")
    a(f"s_lshl_b32 s61, s{S_G}, 2")
    a("s_lshl_b32 s62, s72, 1")
    a("s_add_u32 s61, s61, s62")
    a(f"s_mul_i32 s62, s{S_W}, 14336")
    a("s_mul_i32 s64, s61, 114688")
    a("s_add_u32 s64, s64, s62")
    a(f"s_add_u32 s64, s64, {HHF}")
    a("s_add_u32 s65, s64, 114688")
    a("v_lshrrev_b32 v2, 3, v0")
    a(f"s_lshl_b32 s62, s{S_W}, 3")
    a("v_add_u32 v2, s62, v2")
    a("v_and_b32 v3, 7, v0")
    a("v_lshrrev_b32 v4, 5, v2")
    a("v_lshlrev_b32 v4, 5, v4")
    a("v_lshrrev_b32 v5, 1, v3")
    a("v_add_u32 v4, v4, v5")
    a("v_lshlrev_b32 v4, 10, v4")
    a("v_and_b32 v5, 1, v3")
    a("v_lshlrev_b32 v5, 5, v5")
    a("v_and_b32 v6, 31, v2")
    a("v_add_u32 v5, v5, v6")
    a("v_lshl_add_u32 v4, v5, 4, v4")
    a("s_lshl_b32 s62, s61, 5")
    a("s_lshl_b32 s63, s77, 2")
    a("s_add_u32 s62, s62, s63")
    a("s_lshl_b32 s62, s62, 10")
    a(f"s_add_u32 s62, s62, {HF}")
    a("s_mov_b32 s59, s62")
    a("v_mov_b32 v7, v4")
    a.c("reduction write addresses v12..15 ; read addresses v4,v5 (+65536: v6,v81 later) ; output address v3")
    a("v_and_b32 v16, 31, v0")
    a("v_lshrrev_b32 v17, 5, v0")
    a("v_lshlrev_b32 v17, 1, v17")
    a("v_and_b32 v18, 7, v16")
    a("v_xor_b32 v17, v17, v18")
    a("v_lshlrev_b32 v16, 8, v16")
    a(f"s_lshl_b32 s62, s{S_W}, 14")
    a("v_add_u32 v16, s62, v16")
    for k, (rg, q) in enumerate([(0, 0), (0, 1), (1, 0), (1, 1)]):
        a(f"v_xor_b32 v{12+k}, {rg*4+q}, v17")
        a(f"v_lshl_add_u32 v{12+k}, v{12+k}, 4, v16")
    a("v_and_b32 v16, 7, v2")
    a("v_lshlrev_b32 v17, 1, v3")
    a("v_xor_b32 v4, v17, v16")
    a("v_or_b32 v17, 1, v17")
    a("v_xor_b32 v5, v17, v16")
    a("v_lshlrev_b32 v4, 4, v4")
    a("v_lshlrev_b32 v5, 4, v5")
    a("v_lshl_add_u32 v4, v2, 8, v4")
    a("v_lshl_add_u32 v5, v2, 8, v5")
    a("v_lshlrev_b32 v16, 10, v2")
    a("v_lshl_add_u32 v3, v3, 4, v16")
    a(f"s_lshl_b32 s57, s{S_G}, 17")
    a("s_lshl_b32 s63, s72, 16")
    a("s_add_u32 s57, s57, s63")
    a("s_lshl_b32 s63, s77, 7")
    a("s_add_u32 s57, s57, s63")
    stamp(a, "p4")
    if not SENT_D:
        wg_wait(a, FLG_D, None, 16, 28, 29, poller=7)
    stamp(a); stamp(a, "p4")
    a(f"buffer_load_dwordx4 v[8:11], v7, {WS}, s59 offen sc1")
    a("s_mov_b32 s62, s64"); a("s_mov_b32 s63, s65")
    retries = []
    BREG = [16, 24, 32, 40, 48, 56, 240, 248]
    ACC = 64
    a.vm_reset()
    def ldB(s):
        if s and (s & 3) == 0:
            a("s_add_u32 s64, s64, 4096"); a("s_add_u32 s65, s65, 4096")
        r = BREG[s % 8]
        a.vm(f"buffer_load_dwordx4 v[{r}:{r+3}], v1, {WS}, s64 offen offset:{(s&3)*1024} sc1", ("B", s))
        a.vm(f"buffer_load_dwordx4 v[{r+4}:{r+7}], v1, {WS}, s65 offen offset:{(s&3)*1024} sc1", ("B", s))
    if P5PRIO:
        l5 = a.newlabel("p5p")
        a(f"s_cmp_lt_u32 s{S_W}, 4")
        a(f"s_cbranch_scc1 {l5}")
        a("s_setprio 1")
        a.label(l5)
    for s in range(8):
        ldB(s)
    def check(r):
        a(f"v_max3_u32 v12, v{r}, v{r+1}, v{r+2}")
        a(f"v_max3_u32 v13, v{r+3}, v{r+4}, v{r+5}")
        a(f"v_max3_u32 v12, v{r+6}, v{r+7}, v12")
        a("v_max_u32 v12, v12, v13")
        a("v_cmp_eq_u32 vcc, -1, v12")
    stamp(a, "p5")
    for s in range(14):
        a.vm_wait(("B", s))
        if s in (0, 7): stamp(a, "p5")
        if SENT_D:
            lr = a.newlabel("rt"); lb = a.newlabel("rb")
            check(BREG[s % 8])
            a("s_nop 1")
            a(f"s_cbranch_vccnz {lr}")
            a.label(lb)
            retries.append((s, lr, lb))
        for ct in range(2):
            for tb in range(2):
                d = ACC + (ct * 2 + tb) * 16
                mfma(a, d, WD_R + (2 * s + ct) * 4, BREG[s % 8] + 4 * tb, None if s == 0 else d)
        if s + 8 < 14:
            ldB(s + 8)
    stamp(a); stamp(a, "p5")
    if PRIO2: a("s_setprio 0")
    if SENT_D:
        lskip = a.newlabel("rskip")
        a(f"s_branch {lskip}")
        for (s_, lr, lb) in retries:
            r = BREG[s_ % 8]
            a.label(lr)
            a(f"s_mov_b32 s79, {SPIN}")
            lp = a.newlabel("rl")
            a.label(lp)
            a("s_sleep 2")
            a(f"s_add_u32 s60, s62, {(s_ >> 2) * 4096}")
            a(f"s_add_u32 s61, s63, {(s_ >> 2) * 4096}")
            a(f"buffer_load_dwordx4 v[{r}:{r+3}], v1, {WS}, s60 offen offset:{(s_&3)*1024} sc1")
            a(f"buffer_load_dwordx4 v[{r+4}:{r+7}], v1, {WS}, s61 offen offset:{(s_&3)*1024} sc1")
            a("s_waitcnt vmcnt(0)")
            check(r)
            a("s_nop 4")
            a(f"s_cbranch_vccz {lb}")
            a("s_sub_u32 s79, s79, 1")
            a("s_cmp_lg_u32 s79, 0")
            a(f"s_cbranch_scc1 {lp}")
            a(f"s_branch {lb}")
        a.label(lskip)
        a("s_barrier")
    a("s_nop 8")
    for ct in range(2):
        for tb in range(2):
            d = ACC + (ct * 2 + tb) * 16
            for k, (rg, q) in enumerate([(0, 0), (0, 1), (1, 0), (1, 1)]):
                r = d + 8 * rg + 4 * q
                a(f"ds_write_b128 v{12+k}, v[{r}:{r+3}] offset:{ct*128 + tb*8192}")
    stamp(a, "p5")
    a("s_waitcnt lgkmcnt(0)")
    stamp(a, "p5")
    a("s_barrier")
    stamp(a, "p5")
    a("v_add_u32 v6, 65536, v4")
    a("v_add_u32 v7, 65536, v5")
    for src in range(8):
        b0, b1 = ("v4", "v5") if src < 4 else ("v6", "v7")
        a(f"ds_read_b128 v[{16+8*src}:{19+8*src}], {b0} offset:{(src&3)*16384}")
        a(f"ds_read_b128 v[{20+8*src}:{23+8*src}], {b1} offset:{(src&3)*16384}")
        if src == 3: a("s_waitcnt lgkmcnt(4)")
    a("s_mov_b32 s62, 0xffff0000")
    for i in range(4):
        a(f"v_lshlrev_b32 v{80+2*i}, 16, v{8+i}")
        a(f"v_and_b32 v{81+2*i}, s62, v{8+i}")
    a("s_waitcnt lgkmcnt(0)")
    stamp(a, "p5")
    for src in range(1, 8):
        for i in range(4):
            a(f"v_pk_add_f32 v[{16+2*i}:{17+2*i}], v[{16+2*i}:{17+2*i}], v[{16+8*src+2*i}:{17+8*src+2*i}]")
    for i in range(4):
        a(f"v_pk_add_f32 v[{16+2*i}:{17+2*i}], v[{16+2*i}:{17+2*i}], v[{80+2*i}:{81+2*i}]")
    for i in range(4):
        a(f"v_cvt_pk_bf16_f32 v{8+i}, v{16+2*i}, v{17+2*i}")
    a(f"buffer_store_dwordx4 v[8:11], v3, s[{SRD_A}:{SRD_A+3}], s57 offen {OUT_FLAGS}")

DESCRIPTION = """
One persistent kernel, 256 workgroups of 8 waves (one per CU, all co-resident). 16 workgroups form a group that owns 128 tokens.
  phase 0   LayerNorm(x) of a 32-token block, K/V projection (one workgroup per block, published to everybody), Q projection
            for 8 heads (kept in registers, scaled by log2(e)/4).
  attention K and V of all 2048 keys in LDS; a wave handles two heads on one half of the keys; S^T = K Q^T and O^T += V^T P^T
            with 32x32x16 MFMAs, the row sum comes from an all-ones row of the V operand. exp2 is taken without subtracting a
            maximum only when |q|*max|k| (Cauchy-Schwarz, checked at run time for every row of the workgroup) is at most 40;
            otherwise the whole workgroup takes the path that first computes the true row maximum and subtracts it.
            Meanwhile the weights wo / w_gate / w_up / w_down are re-laid-out into MFMA operand fragments in the workspace
            and the fragments needed next are prefetched into registers.
  P3        h = x + o wo, row statistics of h.     P4  gate/up GEMM on h with LayerNorm folded into the epilogue, ReLU gate.
  P5        out = h + hh w_down (split-K over the waves, reduced through LDS).
Hand-offs between workgroups: write-through (sc1) stores, drained, then a flag line tagged with a per-launch value derived from
what the previous launch left in the workspace; consumers poll with sc1 loads and read the payload with sc1 loads. When all 16
workgroups of a group report the same XCD (checked at run time) the group's flag lines are written with plain stores.
"""

def build():
    a = Asm()
    label = G.NAME + "_kernel"
    a.raw(G.HEADER.rstrip("\n"))
    a.raw("; @launch grid=(256,1,1) block=(512,1,1) lds=163840")
    for ln in DESCRIPTION.strip("\n").split("\n"):
        a.raw("; " + ln)
    a.raw('.amdgcn_target "amdgcn-amd-amdhsa--gfx950"')
    a.raw(".text")
    a.raw(f".globl {label}")
    a.raw(".p2align 8")
    a.raw(f".type {label},@function")
    a.raw(f"{label}:")
    if PROFILE:
        a("s_memtime s[98:99]")
        a("s_memrealtime s[100:101]")
        for k in range(16): a(f"s_mov_b32 s{80+k}, 0")
    G.WS_USED = WS_USED
    G.prologue(a, "L_fin")
    a(f"s_add_u32 s60, s{P_WS}, {NONCE}")
    a(f"s_addc_u32 s61, s{P_WS+1}, 0")
    a(f"s_load_dword s{S_NONCE}, s[60:61], 0")
    phase0(a)
    attention(a)
    p3(a)
    p4(a)
    p5(a)
    lnn = a.newlabel("nn")
    a("s_cmp_lg_u32 s2, 0")
    a(f"s_cbranch_scc1 {lnn}")
    a(f"s_cmp_lg_u32 s{S_W}, 0")
    a(f"s_cbranch_scc1 {lnn}")
    a(f"s_mov_b32 s62, {NONCE}")
    set_flag(a, 62, 28)
    a.label(lnn)
    if PROFILE:
        a(f"s_cmp_lg_u32 s{S_W}, {PROF_WAVE}")
        a("s_cbranch_scc1 L_fin")
        a("s_waitcnt vmcnt(0) lgkmcnt(0)")
        a("s_memtime s[96:97]")
        a("s_memrealtime s[54:55]")
        a("s_waitcnt lgkmcnt(0)")
        for k in range(16):
            a(f"s_sub_u32 s{80+k}, s{80+k}, s98")
            a(f"v_mov_b32 v{k}, s{80+k}")
        a("s_sub_u32 s96, s96, s98")
        a("s_sub_u32 s54, s54, s100")
        a("v_mov_b32 v16, s96")
        a("v_mov_b32 v17, s54")
        a("v_mov_b32 v18, s100")
        a("s_getreg_b32 s62, hwreg(HW_REG_XCC_ID, 0, 4)")
        a(f"s_lshl_b32 s63, s{S_LOCAL}, 8")
        a("s_or_b32 s62, s62, s63")
        a("v_mov_b32 v19, s62")
        a("s_mul_i32 s54, s2, 128")
        a(f"s_add_u32 s54, s54, {PROF}")
        a("v_mov_b32 v20, 0")
        a("s_mov_b64 exec, 1")
        for q in range(5):
            a(f"buffer_store_dwordx4 v[{4*q}:{4*q+3}], v20, {WS}, s54 offen offset:{16*q}")
    a.label("L_fin")
    a("s_endpgm")
    a.raw('.section .rodata,"a"')
    a.raw(".p2align 6")
    G.descriptor(a, label, 256)
    return a.text()

if __name__ == "__main__":
    open(sys.argv[1], "w").write(build())
```

```python
import os, sys
from asmlib import Asm
import gen as G
from gen import (S_W, S_G, S_J, S_TBK, S_HQ, S_TQ, SRD_WS, SRD_A, SRD_B, SRD_C, SRD_D, mk_srd, f32hex,
                 dpp_sum16, xhalf, xrow16, OF, HF, KF, VF, HST, CSP, WOF, WDF, WGF, HHF, QSCALE,
                 P_X, P_WQ, P_WK, P_WV, P_WO, P_WG, P_WU, P_WD, P_OUT, P_DBG, P_WS)
from kernels2 import mfma
OF   = 0x100000
KF   = 0x300000; VF = 0x310000; HST = 0x330000; CSP = 0x340000; WOF = 0x380000
HF   = 0x500000
WDF  = 0x710000
WGF  = 0x900000
HHF  = 0xD00000
HH_G = 0x80000
G.OF, G.KF, G.VF, G.HST, G.CSP, G.WOF, G.HF, G.WDF, G.WGF, G.HHF = OF, KF, VF, HST, CSP, WOF, HF, WDF, WGF, HHF
WS = f"s[{SRD_WS}:{SRD_WS+3}]"
FLG = 0x1610000
FLG_A, FLG_W, FLG_E, FLG_X = FLG, FLG + 64*128, FLG + 320*128, FLG + 576*128
FLG_B, FLG_C, FLG_D = FLG + 1024*128, FLG + 3072*128, FLG + 5120*128
NONCE = FLG + 7168*128
S_NONCE = 56
PROF = 0x1600000
WS_USED = 0x1700000
SPIN = 400000
PRETOUCH = int(os.environ.get('PRETOUCH', '1'))
EARLYQ = int(os.environ.get('EARLYQ', '0'))
SYNCA_SLEEP = int(os.environ.get('SYNCA_SLEEP', '2'))
LOCAL_NT = os.environ.get('LOCAL_NT', '0') == '1'
NOCLEAN = os.environ.get('NOCLEAN', '1') == '1'
P5PRIO = os.environ.get('P5PRIO', '0') == '1'
BAR_EVERY = int(os.environ.get('BAR_EVERY', '8'))
ALTP = int(os.environ.get('ALTP', '0'))
S_LOCAL = 69
LOCAL_OK = os.environ.get('LOCAL_OK', '1') == '1'
LOCAL_DATA = os.environ.get('LOCAL_DATA', '')
PRIO2 = os.environ.get('PRIO2', '1') == '1'
DOUBLE = os.environ.get('DOUBLE', '')
ZROWS = os.environ.get('ZROWS', '1') == '1'
OUT_FLAGS = os.environ.get('OUT_FLAGS', '')
POLL_DELAY = int(os.environ.get('POLL_DELAY', '0'))
SENT_D = os.environ.get('SENT_D', '0') == '1'
FULL_LINE = os.environ.get('FULL_LINE', '1') == '1'
POLL_SLEEP = int(os.environ.get('POLL_SLEEP', '1'))
PROFILE = G.PROFILE
PROF_WAVE = G.PROF_WAVE
PRIO = os.environ.get("PRIO", "0") == "1"
NST = [0]
STAMPSET = os.environ.get("STAMPSET", "main")
def stamp(a, kind="main"):
    if not PROFILE: return
    if kind != STAMPSET: return
    k = NST[0]; NST[0] += 1
    assert k < 16
    a("s_waitcnt lgkmcnt(0)")
    a("s_memtime s[96:97]")
    a("s_waitcnt lgkmcnt(0)")
    a(f"s_mov_b32 s{80+k}, s96")

def spin_begin(a, name):
    l = a.newlabel(name)
    a(f"s_mov_b32 s79, {SPIN}")
    a.label(l)
    return l
def spin_end(a, l, done, sleep=1):
    a("s_nop 4")
    a(f"s_cbranch_vccz {done}")
    a(f"s_sleep {sleep}")
    a("s_sub_u32 s79, s79, 1")
    a("s_cmp_lg_u32 s79, 0")
    a(f"s_cbranch_scc1 {l}")
    a.label(done)

def gstore(a, instr, kind="f"):
    if not LOCAL_OK or (kind != "f" and kind not in LOCAL_DATA):
        a(instr + " sc1"); return
    lf = a.newlabel("gl"); le = a.newlabel("ge")
    a(f"s_cmp_eq_u32 s{S_LOCAL}, 1")
    a(f"s_cbranch_scc1 {lf}")
    a(instr + " sc1")
    a(f"s_branch {le}")
    a.label(lf)
    a(instr + (" nt" if (kind != "f" and LOCAL_NT) else ""))
    a.label(le)

def clean_store(a, reg, sreg, kind):
    if kind not in LOCAL_DATA or NOCLEAN: return
    l = a.newlabel("cl")
    a(f"s_cmp_eq_u32 s{S_LOCAL}, 1")
    a(f"s_cbranch_scc0 {l}")
    a(f"buffer_store_dwordx4 v[{reg}:{reg+3}], v1, {WS}, s{sreg} offen sc1")
    a.label(l)

def poll_flags(a, soff_reg, nlanes, vtmp, voff, sleep=1, shift=7):
    done = a.newlabel("pd")
    a(f"v_lshlrev_b32 v{voff}, {shift}, v0")
    if nlanes < 64:
        a(f"s_mov_b64 exec, {hex((1 << nlanes) - 1)}")
    l = spin_begin(a, "pl")
    a(f"buffer_load_dword v{vtmp}, v{voff}, {WS}, s{soff_reg} offen sc1")
    a("s_waitcnt vmcnt(0)")
    a(f"v_cmp_ne_u32 vcc, s{S_NONCE}, v{vtmp}")
    spin_end(a, l, done, sleep)
    if nlanes < 64:
        a("s_mov_b64 exec, -1")

def set_flag(a, soff_reg, vtmp, fast_ok=False):
    a(f"v_mov_b32 v{vtmp}, s{S_NONCE}")
    if FULL_LINE:
        a(f"v_lshlrev_b32 v{vtmp+1}, 2, v0")
        a("s_mov_b32 exec_hi, 0")
    else:
        a(f"v_mov_b32 v{vtmp+1}, 0")
        a("s_mov_b64 exec, 1")
    if fast_ok:
        gstore(a, f"buffer_store_dword v{vtmp}, v{vtmp+1}, {WS}, s{soff_reg} offen")
    else:
        a(f"buffer_store_dword v{vtmp}, v{vtmp+1}, {WS}, s{soff_reg} offen sc1")
    a("s_mov_b64 exec, -1")

L_XN, L_WQ, L_WK, L_WV = 0, 32768, 131072, 147456
QSAVE = 244

def phase0(a):
    mk_srd(a, SRD_A, P_X, 2048 * 1024)
    mk_srd(a, SRD_B, P_WQ, 512 * 1024)
    a(f"s_lshl_b32 s54, s{S_TBK}, 5")
    a(f"s_lshl_b32 s55, s{S_W}, 2")
    a("s_add_u32 s54, s54, s55")
    a("v_lshrrev_b32 v2, 4, v0")
    a("v_and_b32 v3, 15, v0")
    a("v_add_u32 v4, s54, v2")
    a("v_lshlrev_b32 v4, 10, v4")
    a("v_lshl_add_u32 v4, v3, 4, v4")
    for i in range(4):
        a(f"buffer_load_dwordx4 v[{16+4*i}:{19+4*i}], v4, s[{SRD_A}:{SRD_A+3}], 0 offen offset:{256*i}")
    a("v_lshlrev_b32 v6, 4, v0")
    if PRETOUCH & 1:
        a.c("touch an unused line of the page that holds K/V so that its translation is resident when they are stored")
        a("s_mov_b32 s60, 0x320000")
        a(f"buffer_load_dword v60, v6, {WS}, s60 offen")
        if PRETOUCH & 8:
            a(f"s_mov_b32 s60, {hex(FLG - 0x8000)}")
            a(f"buffer_load_dword v61, v6, {WS}, s60 offen")
    lskip = a.newlabel("nokv"); lj = a.newlabel("kvj")
    a(f"s_cmp_lg_u32 s{S_HQ}, 0")
    a(f"s_cbranch_scc1 {lskip}")
    mk_srd(a, SRD_C, P_WK, 16384)
    mk_srd(a, SRD_D, P_WV, 16384)
    a(f"s_lshl_b32 s60, s{S_W}, 11")
    for i in range(2):
        a(f"s_add_u32 s61, s60, {i*1024}")
        a(f"s_add_u32 m0, s61, {L_WK}")
        a("s_nop 0")
        a(f"buffer_load_dwordx4 v6, s[{SRD_C}:{SRD_C+3}], s61 offen lds")
        a(f"s_add_u32 m0, s61, {L_WV}")
        a("s_nop 0")
        a(f"buffer_load_dwordx4 v6, s[{SRD_D}:{SRD_D+3}], s61 offen lds")
    a.label(lskip)
    a("v_lshlrev_b32 v5, 2, v2")
    a("v_xor_b32 v5, v3, v5")
    a("v_lshlrev_b32 v5, 4, v5")
    a("v_lshl_add_u32 v5, v2, 10, v5")
    a(f"s_lshl_b32 s55, s{S_HQ}, 8")
    a("v_add_u32 v5, s55, v5")
    a(f"s_lshl_b32 s62, s{S_W}, 12")
    a(f"s_add_u32 s62, s62, {L_WQ}")
    a(f"s_lshl_b32 s63, s{S_W}, 14")
    def wq_dma(q):
        for i in range(4):
            a(f"s_add_u32 m0, s62, {q * 32768 + i * 1024}")
            a(f"s_add_u32 s64, s63, {(q * 128 + 4 * i) * 1024}")
            a(f"buffer_load_dwordx4 v5, s[{SRD_B}:{SRD_B+3}], s64 offen lds")
    if EARLYQ == 2:
        a("s_barrier")
        wq_dma(0); wq_dma(1); wq_dma(2)
        lq = a.newlabel("eq"); lq2 = a.newlabel("eq2")
        a(f"s_cmp_eq_u32 s{S_HQ}, 0")
        a(f"s_cbranch_scc1 {lq}")
        wq_dma(3)
        a("s_waitcnt vmcnt(16)")
        a(f"s_branch {lq2}")
        a.label(lq)
        a("s_waitcnt vmcnt(12)")
        a.label(lq2)
        stamp(a, "p0")
    else:
        wq_dma(0)
        if EARLYQ: wq_dma(1)
        stamp(a, "p0")
        a(f"s_waitcnt vmcnt({8 if EARLYQ else 4})")
    stamp(a); stamp(a, "p0")
    b = Asm()
    if True:
        b("s_mov_b32 s60, 0x3f803f80")
        for r in range(4): b(f"v_mov_b32 v{32+r}, 0")
        for i in range(16):
            b(f"v_dot2_f32_bf16 v{32 + (i & 1)}, v{16+i}, s60, v{32 + (i & 1)}")
            b(f"v_dot2_f32_bf16 v{34 + (i & 1)}, v{16+i}, v{16+i}, v{34 + (i & 1)}")
        b("s_mov_b32 s61, 0xffff0000")
        for i in range(4):
            b(f"v_lshlrev_b32 v{64+2*i}, 16, v{16+i}")
            b(f"v_and_b32 v{65+2*i}, s61, v{16+i}")
        b("v_add_f32 v32, v32, v33")
        b("v_add_f32 v34, v34, v35")
        for n, sh in enumerate((8, 4, 2, 1)):
            for i in range(4 + 3*n, 7 + 3*n):
                b(f"v_lshlrev_b32 v{64+2*i}, 16, v{16+i}")
                b(f"v_and_b32 v{65+2*i}, s61, v{16+i}")
            b(f"v_add_f32_dpp v32, v32, v32 row_ror:{sh} row_mask:0xf bank_mask:0xf")
            b(f"v_add_f32_dpp v34, v34, v34 row_ror:{sh} row_mask:0xf bank_mask:0xf")
        b(f"v_mul_f32 v32, {f32hex(1.0/512)}, v32")
        b("v_mul_f32 v33, v32, v32")
        b(f"v_mov_b32 v35, {f32hex(1.0/512)}")
        b("v_fma_f32 v34, v34, v35, -v33")
        b("v_max_f32 v34, 0, v34")
        b(f"v_add_f32 v34, {f32hex(1e-5)}, v34")
        b("v_rsq_f32 v38, v34")
        b.c("XN write addr")
        b(f"s_lshl_b32 s55, s{S_W}, 2")
        b("v_add_u32 v7, s55, v2")
        b("v_mov_b32 v39, v38")
        b("v_mul_f32 v36, v32, v38")
        b("v_sub_f32 v36, 0, v36")
        b("v_mov_b32 v37, v36")
        for i in range(16):
            b(f"v_pk_fma_f32 v[{64+2*i}:{65+2*i}], v[{64+2*i}:{65+2*i}], v[38:39], v[36:37]")
        b("v_and_b32 v8, 7, v3")
        b("v_xor_b32 v7, v7, v8")
        b("v_lshlrev_b32 v7, 4, v7")
        b("v_lshrrev_b32 v8, 1, v3")
        b("v_lshl_add_u32 v7, v8, 10, v7")
        b("v_and_b32 v8, 1, v3")
        b("v_lshl_add_u32 v7, v8, 9, v7")
        for i in range(4):
            for e in range(4):
                b(f"v_cvt_pk_bf16_f32 v{16+4*i+e}, v{64+8*i+2*e}, v{65+8*i+2*e}")
            b(f"ds_write_b128 v7, v[{16+4*i}:{19+4*i}] offset:{L_XN + i*8192}")

    a.L.extend(b.L)
    if EARLYQ == 0: wq_dma(1)
    if EARLYQ != 2: wq_dma(2)
    a("v_lshrrev_b32 v8, 5, v0")
    a("v_and_b32 v9, 31, v0")
    for m in range(4):
        a(f"v_add_u32 v10, {2*m}, v8")
        a("v_xor_b32 v10, v9, v10")
        a("v_lshlrev_b32 v10, 4, v10")
        a(f"v_lshl_add_u32 v{40+m}, v8, 9, v10")
    a("v_lshrrev_b32 v10, 2, v3")
    a("v_and_b32 v11, 3, v3")
    a("v_lshl_add_u32 v12, v8, 3, v10")
    a.c("wq fragment rows 0..15 = head 2p, rows 16..31 = head 2p+1 ; chunk = 4p + 2blk + (cg>>1), swizzled by r4<<2")
    a(f"s_and_b32 s55, s{S_W}, 3")
    a("s_lshl_b32 s55, s55, 2")
    a("v_lshrrev_b32 v13, 1, v11")
    a("v_add_u32 v13, s55, v13")
    a("v_and_b32 v14, 1, v2")
    a("v_lshl_add_u32 v13, v14, 1, v13")
    a("v_lshlrev_b32 v14, 2, v10")
    a("v_xor_b32 v13, v13, v14")
    a("v_lshlrev_b32 v13, 4, v13")
    a("v_lshl_add_u32 v13, v12, 8, v13")
    a("v_and_b32 v14, 1, v11")
    a("v_lshl_add_u32 v13, v14, 3, v13")
    a(f"s_lshr_b32 s55, s{S_W}, 2")
    a("s_lshl_b32 s55, s55, 12")
    a(f"s_add_u32 s55, s55, {L_WQ}")
    a("v_add_u32 v44, s55, v13")
    stamp(a, "p0")
    a("s_waitcnt lgkmcnt(0)")
    a.c("launch tag: a fixed-point-free bijection of the tag the previous launch left (any value works)")
    a(f"s_mul_i32 s{S_NONCE}, s{S_NONCE}, 0x9E3779B1")
    a(f"s_add_u32 s{S_NONCE}, s{S_NONCE}, 0x7F4A7C15")
    a("s_barrier")
    stamp(a); stamp(a, "p0")
    lx = a.newlabel("xid")
    a(f"s_cmp_lg_u32 s{S_W}, 3")
    a(f"s_cbranch_scc1 {lx}")
    a.c("tell the other members of the group which XCD this workgroup runs on")
    a("s_getreg_b32 s55, hwreg(HW_REG_XCC_ID, 0, 4)")
    a(f"v_mov_b32 v50, s{S_NONCE}")
    a("v_mov_b32 v51, s55")
    a("v_lshlrev_b32 v52, 3, v0")
    a(f"s_lshl_b32 s55, s{S_G}, 4")
    a(f"s_add_u32 s55, s55, s{S_J}")
    a("s_lshl_b32 s55, s55, 7")
    a(f"s_add_u32 s55, s55, {FLG_X}")
    a("s_mov_b64 exec, 0xffff")
    a(f"buffer_store_dwordx2 v[50:51], v52, {WS}, s55 offen sc1")
    a("s_mov_b64 exec, -1")
    a.label(lx)
    lkvd = a.newlabel("kvdone"); lkv1 = a.newlabel("kv1"); lkv0 = a.newlabel("kv0")
    a(f"s_cmp_eq_u32 s{S_HQ}, 0")
    a(f"s_cbranch_scc1 {lkv0}")
    if EARLYQ != 2: wq_dma(3)
    a("s_waitcnt vmcnt(12) lgkmcnt(0)")
    lkv2 = a.newlabel("kv2")
    a(f"s_branch {lkv2}")
    a.label(lkv0)
    a.c("tr addr: blk0 -> WV, blk1 -> WK ; row (64w + 16e + 8khalf + 4rd + r4)*32 + cg*8")
    a("v_lshlrev_b32 v13, 5, v12")
    a("v_lshl_add_u32 v13, v11, 3, v13")
    a(f"s_lshl_b32 s55, s{S_W}, 11")
    a("v_add_u32 v13, s55, v13")
    a("v_and_b32 v14, 1, v2")
    a(f"v_mov_b32 v15, {L_WV}")
    a(f"v_mov_b32 v45, {L_WK}")
    a("v_cmp_eq_u32 vcc, 1, v14")
    a("s_nop 1")
    a("v_cndmask_b32 v15, v15, v45, vcc")
    a("v_add_u32 v13, v13, v15")
    a.c("xn frags for k-steps 4w..4w+3 : s&3 = e")
    a(f"s_lshl_b32 s55, s{S_W}, 12")
    for e in range(4):
        a(f"v_add_u32 v{46+e}, s55, v{40+e}")
    for e in range(4):
        a(f"ds_read_b64_tr_b16 v[{64+4*e}:{65+4*e}], v13 offset:{e*512}")
        a(f"ds_read_b64_tr_b16 v[{66+4*e}:{67+4*e}], v13 offset:{e*512+128}")
        a(f"ds_read_b128 v[{80+4*e}:{83+4*e}], v{46+e} offset:{L_XN + e*1024}")
    for e in range(4):
        a(f"s_waitcnt lgkmcnt({9-3*e})")
        mfma(a, 96, 64 + 4 * e, 80 + 4 * e, None if e == 0 else 96)
    a.c("RED: q=0,1 -> WK + w*2048 + q*1024 ; q=2,3 -> WV + w*2048 + (q-2)*1024  (own, already consumed rows)")
    a(f"s_lshl_b32 s55, s{S_W}, 11")
    a(f"s_add_u32 s55, s55, {L_WK}")
    a("v_add_u32 v14, s55, v6")
    a(f"v_add_u32 v15, {L_WV - L_WK}, v14")
    a("s_nop 10")
    a("ds_write_b128 v14, v[96:99]")
    a("ds_write_b128 v14, v[100:103] offset:1024")
    a("ds_write_b128 v15, v[104:107]")
    a("ds_write_b128 v15, v[108:111] offset:1024")
    a.label(lkv1)
    stamp(a, "p0")
    a("s_waitcnt vmcnt(8) lgkmcnt(0)")
    a.label(lkv2)
    stamp(a, "p0")
    a("s_barrier")
    stamp(a, "p0")
    a(f"s_cmp_lg_u32 s{S_HQ}, 0")
    a(f"s_cbranch_scc1 {lkvd}")
    lv = a.newlabel("kv_v")
    a(f"s_cmp_eq_u32 s{S_W}, 1")
    a(f"s_cbranch_scc1 {lv}")
    a(f"s_cmp_lg_u32 s{S_W}, 0")
    a(f"s_cbranch_scc1 {lkvd}")
    def red8(base):
        a(f"v_add_u32 v14, {base}, v6")
        for ww in range(8):
            a(f"ds_read_b128 v[{64+8*ww}:{67+8*ww}], v14 offset:{ww*2048}")
            a(f"ds_read_b128 v[{68+8*ww}:{71+8*ww}], v14 offset:{ww*2048+1024}")
            if ww == 3: a("s_waitcnt lgkmcnt(4)")
        a("s_waitcnt lgkmcnt(0)")
        for ww in range(1, 8):
            for i in range(4):
                a(f"v_pk_add_f32 v[{64+2*i}:{65+2*i}], v[{64+2*i}:{65+2*i}], v[{64+8*ww+2*i}:{65+8*ww+2*i}]")
        for r in range(4):
            a(f"v_cvt_pk_bf16_f32 v{76+r}, v{64+2*r}, v{65+2*r}")
    red8(L_WV)
    a(f"s_lshl_b32 s55, s{S_TBK}, 10")
    a(f"s_add_u32 s55, s55, {KF}")
    a(f"buffer_store_dwordx4 v[76:79], v6, {WS}, s55 offen sc1")
    a("v_mov_b32 v80, 0")
    for r in range(4):
        a(f"v_dot2_f32_bf16 v80, v{76+r}, v{76+r}, v80")
    a("s_nop 2")
    xhalf(a, 80, 81, "v_add_f32")
    dpp_sum16(a, 80, "v_max_f32")
    xrow16(a, 80, 81, "v_max_f32")
    a(f"v_mov_b32 v{QSAVE+9}, v80")
    a(f"s_branch {lkvd}")
    a.label(lv)
    red8(L_WK)
    a("v_lshlrev_b32 v80, 5, v9")
    a("v_lshl_add_u32 v80, v8, 3, v80")
    a(f"v_add_u32 v80, {L_WK}, v80")
    a("ds_write_b64 v80, v[76:77]")
    a("ds_write_b64 v80, v[78:79] offset:16")
    a("v_lshl_add_u32 v81, v8, 2, v10")
    a("v_lshlrev_b32 v81, 5, v81")
    a("v_and_b32 v82, 1, v11")
    a("v_lshlrev_b32 v82, 1, v82")
    a("v_lshrrev_b32 v83, 1, v11")
    a("v_add_u32 v82, v82, v83")
    a("v_lshl_add_u32 v81, v82, 3, v81")
    a(f"v_add_u32 v81, {L_WK}, v81")
    a("s_waitcnt lgkmcnt(0)")
    for c2 in range(2):
        for rd in range(2):
            d = 84 + 4 * c2 + 2 * rd
            a(f"ds_read_b64_tr_b16 v[{d}:{d+1}], v81 offset:{(16*c2 + 8*rd) * 32}")
    a("v_lshl_add_u32 v82, v8, 4, v3")
    a("v_lshlrev_b32 v82, 4, v82")
    a(f"s_lshl_b32 s55, s{S_TBK}, 10")
    a(f"s_add_u32 s55, s55, {VF}")
    a("s_waitcnt lgkmcnt(0)")
    a("s_mov_b32 exec_lo, 0x0000ffff")
    a("s_mov_b32 exec_hi, 0x0000ffff")
    a(f"buffer_store_dwordx4 v[84:87], v82, {WS}, s55 offen sc1")
    a(f"buffer_store_dwordx4 v[88:91], v82, {WS}, s55 offen offset:512 sc1")
    a("s_mov_b64 exec, -1")
    a.label(lkvd)
    a("v_add_u32 v45, 1024, v44")
    stamp(a, "p0")
    def publish_kv():
        lnf = a.newlabel("noflag")
        a(f"s_cmp_lg_u32 s{S_HQ}, 0")
        a(f"s_cbranch_scc1 {lnf}")
        a(f"s_cmp_lg_u32 s{S_W}, 0")
        a(f"s_cbranch_scc1 {lnf}")
        a(f"s_lshl_b32 s55, s{S_TBK}, 7")
        a(f"s_add_u32 s55, s55, {FLG_A}")
        a("v_lshlrev_b32 v80, 3, v0")
        a(f"v_mov_b32 v{QSAVE+8}, s{S_NONCE}")
        a("s_mov_b64 exec, 0xffff")
        a(f"buffer_store_dwordx2 v[{QSAVE+8}:{QSAVE+9}], v80, {WS}, s55 offen sc1")
        a("s_mov_b64 exec, -1")
        a.label(lnf)
    ACC = 96
    NB = 3; PD = 2
    AB = [112 + 8 * i for i in range(NB)]; BB = [116 + 8 * i for i in range(NB)]
    a.c("x fragment addresses: k-step s = 2u + kh, swizzle index s&3 = (2(u&1) + kh)")
    a(f"s_lshr_b32 s55, s{S_W}, 2")
    a("s_cmp_eq_u32 s55, 0")
    a("s_cselect_b64 vcc, -1, 0")
    a("s_lshl_b32 s55, s55, 10")
    a("v_cndmask_b32 v46, v41, v40, vcc")
    a("v_cndmask_b32 v47, v43, v42, vcc")
    a("v_add_u32 v46, s55, v46")
    a("v_add_u32 v47, s55, v47")
    def issue(u):
        A = AB[u % NB]; B = BB[u % NB]
        a.lg(f"ds_read_b64_tr_b16 v[{A}:{A+1}], v44", u)
        a.lg(f"ds_read_b64_tr_b16 v[{A+2}:{A+3}], v45", u)
        a.lg(f"ds_read_b128 v[{B}:{B+3}], v{46 + (u & 1)} offset:{L_XN + u*2048}", u)
        a("v_add_u32 v44, 8192, v44"); a("v_add_u32 v45, 8192, v45")
    def quarter_wait(q):
        lk = a.newlabel("qk"); le = a.newlabel("qe")
        a(f"s_cmp_eq_u32 s{S_HQ}, 0")
        a(f"s_cbranch_scc1 {lk}")
        a(f"s_waitcnt vmcnt({4 * (3 - q)})")
        a(f"s_branch {le}")
        a.label(lk)
        if q != 2: a("s_waitcnt vmcnt(0)")
        a.label(le)
        a("s_barrier")
    a.lgq = []
    for u in range(PD): issue(u)
    for u in range(16):
        if u in (1, 4, 8, 9, 12, 15) and PROFILE and STAMPSET == "q":
            stamp(a, "q"); a.lgq = []
        if u + PD < 16:
            if u + PD == 4:
                quarter_wait(1)
                stamp(a, "p0"); a.lgq = [] if PROFILE and STAMPSET == "p0" else a.lgq
                publish_kv()
                l3 = a.newlabel("q3b")
                a(f"s_cmp_lg_u32 s{S_HQ}, 0")
                a(f"s_cbranch_scc1 {l3}")
                wq_dma(3)
                a.label(l3)
            if u + PD == 8: quarter_wait(2)
            if u + PD == 12: quarter_wait(3)
            issue(u + PD)
        a.lg_wait(u)
        mfma(a, ACC, AB[u % NB], BB[u % NB], None if u == 0 else ACC)
    stamp(a, "q")
    a.c("add the other half of the k range (wave w ^ 4); exchange through wq slot 0")
    a(f"s_lshl_b32 s55, s{S_W}, 12")
    a(f"s_add_u32 s55, s55, {L_WQ}")
    a("v_add_u32 v14, s55, v6")
    a(f"s_xor_b32 s55, s{S_W}, 4")
    a("s_lshl_b32 s55, s55, 12")
    a(f"s_add_u32 s55, s55, {L_WQ}")
    a("v_add_u32 v15, s55, v6")
    a("s_nop 9")
    for q in range(4):
        a(f"ds_write_b128 v14, v[{ACC+4*q}:{ACC+4*q+3}] offset:{q*1024}")
    a("s_waitcnt lgkmcnt(0)")
    a("s_barrier")
    stamp(a, "q")
    for q in range(4):
        a(f"ds_read_b128 v[{64+4*q}:{67+4*q}], v15 offset:{q*1024}")
    a(f"v_mov_b32 v36, {f32hex(QSCALE)}")
    a("v_mov_b32 v37, v36")
    a("s_waitcnt lgkmcnt(0)")
    for i in range(8):
        a(f"v_pk_add_f32 v[{64+2*i}:{65+2*i}], v[{64+2*i}:{65+2*i}], v[{ACC+2*i}:{ACC+2*i+1}]")
    for i in range(8):
        a(f"v_pk_mul_f32 v[{64+2*i}:{65+2*i}], v[{64+2*i}:{65+2*i}], v[36:37]")
    for r in range(8):
        a(f"v_cvt_pk_bf16_f32 v{QSAVE+r}, v{64+2*r}, v{65+2*r}")
    stamp(a); stamp(a, "p0"); stamp(a, "q")
    a("s_barrier")
    stamp(a, "p0")

L_SCR = 131072
S_JOB = 78
V_WJS, V_WJT, V_WJC = 140, 141, 142
SRD_J1, SRD_J2 = 20, 36
def wj_setup(a):
    a("v_lshrrev_b32 v143, 4, v0")
    a("v_and_b32 v144, 15, v0")
    a("v_lshrrev_b32 v145, 5, v0")
    a("v_lshrrev_b32 v146, 2, v144")
    a("v_and_b32 v147, 3, v144")
    a("v_and_b32 v148, 1, v147")
    a("v_lshlrev_b32 v148, 1, v148")
    a("v_lshrrev_b32 v149, 1, v147")
    a("v_add_u32 v148, v148, v149")
    a("v_lshlrev_b32 v148, 3, v148")
    a("v_and_b32 v149, 1, v143")
    a("v_lshl_add_u32 v150, v145, 3, v146")
    a(f"s_lshl_b32 s57, s{S_W}, 12")
    a(f"s_add_u32 s57, s57, {L_SCR}")
    a(f"s_mov_b32 s{S_JOB}, 0")
    lo = a.newlabel("wjo"); ld = a.newlabel("wjd")
    a("s_cmp_ge_u32 s2, 112")
    a(f"s_cbranch_scc1 {lo}")
    a(f"s_mov_b32 s{S_JOB}, 1")
    a("s_lshr_b32 s60, s2, 2")
    a("s_and_b32 s61, s2, 3")
    a("s_lshl_b32 s62, s61, 3")
    a(f"s_add_u32 s62, s62, s{S_W}")
    mk_srd(a, SRD_J1, P_WG, 512 * 3584)
    mk_srd(a, SRD_J2, P_WU, 512 * 3584)
    a("v_lshrrev_b32 v151, 3, v0")
    a("s_mov_b32 s63, 3584")
    a("v_mul_lo_u32 v151, v151, s63")
    a("v_and_b32 v152, 7, v0")
    a(f"v_lshl_add_u32 v{V_WJS}, v152, 4, v151")
    a("s_mul_i32 s58, s62, 57344")
    a("s_lshl_b32 s63, s60, 7")
    a("s_add_u32 s58, s58, s63")
    a("v_lshlrev_b32 v151, 7, v150")
    a("v_lshl_add_u32 v151, v149, 11, v151")
    a("v_add_u32 v151, v151, v148")
    a(f"v_add_u32 v{V_WJT}, s57, v151")
    a("s_lshl_b32 s59, s60, 7")
    a("s_add_u32 s59, s59, s62")
    a("s_lshl_b32 s59, s59, 10")
    a(f"s_add_u32 s59, s59, {WGF}")
    a("s_mul_i32 s72, s61, 112")
    a("s_lshl_b32 s63, s60, 2")
    a("s_add_u32 s72, s72, s63")
    a("s_lshl_b32 s72, s72, 7")
    a(f"s_add_u32 s72, s72, {CSP}")
    a("v_lshlrev_b32 v151, 2, v0")
    a(f"v_add_u32 v{V_WJC}, s57, v151")
    a(f"s_branch {ld}")
    a.label(lo)
    a("s_cmp_ge_u32 s2, 184")
    a(f"s_cbranch_scc1 {ld}")
    a("s_sub_u32 s60, s2, 112")
    a("s_lshl_b32 s60, s60, 3")
    a(f"s_add_u32 s60, s60, s{S_W}")
    lwd = a.newlabel("wjwd")
    a("s_cmp_ge_u32 s60, 128")
    a(f"s_cbranch_scc1 {lwd}")
    a(f"s_mov_b32 s{S_JOB}, 3")
    mk_srd(a, SRD_J1, P_WO, 512 * 1024)
    a("s_lshr_b32 s61, s60, 3")
    a("s_and_b32 s62, s60, 7")
    a("v_lshrrev_b32 v151, 3, v0")
    a("v_lshlrev_b32 v151, 10, v151")
    a("v_and_b32 v152, 7, v0")
    a(f"v_lshl_add_u32 v{V_WJS}, v152, 4, v151")
    a("s_lshl_b32 s58, s61, 15")
    a("s_lshl_b32 s60, s62, 7")
    a("s_add_u32 s58, s58, s60")
    a("s_mov_b32 s69, 8192")
    a("v_lshl_add_u32 v151, v143, 3, v146")
    a("v_lshlrev_b32 v151, 7, v151")
    a("v_lshl_add_u32 v151, v147, 3, v151")
    a(f"v_add_u32 v{V_WJT}, s57, v151")
    a("s_lshl_b32 s59, s62, 6")
    a("s_add_u32 s59, s59, s61")
    a("s_lshl_b32 s59, s59, 10")
    a(f"s_add_u32 s59, s59, {WOF}")
    a("s_mov_b32 s72, 16384")
    a(f"s_branch {ld}")
    a.label(lwd)
    a(f"s_mov_b32 s{S_JOB}, 2")
    a("s_sub_u32 s60, s60, 128")
    mk_srd(a, SRD_J1, P_WD, 1792 * 1024)
    a("s_lshr_b32 s61, s60, 2")
    a("s_and_b32 s62, s60, 3")
    a("v_lshlrev_b32 v151, 10, v143")
    a(f"v_lshl_add_u32 v{V_WJS}, v144, 4, v151")
    a("s_lshl_b32 s58, s61, 14")
    a("s_lshl_b32 s60, s62, 8")
    a("s_add_u32 s58, s58, s60")
    a("s_mov_b32 s69, 4096")
    a("v_lshlrev_b32 v151, 8, v150")
    a("v_lshl_add_u32 v151, v149, 5, v151")
    a("v_add_u32 v151, v151, v148")
    a(f"v_add_u32 v{V_WJT}, s57, v151")
    a("s_lshl_b32 s59, s62, 2")
    a("s_mul_i32 s59, s59, 112")
    a("s_add_u32 s59, s59, s61")
    a("s_lshl_b32 s59, s59, 10")
    a(f"s_add_u32 s59, s59, {WDF}")
    a(f"s_mov_b32 s72, {112*1024}")
    a.label(ld)

def wj_branch(a, g_code, o_code):
    lo = a.newlabel("jo"); le = a.newlabel("je")
    a(f"s_cmp_eq_u32 s{S_JOB}, 1")
    a(f"s_cbranch_scc0 {lo}")
    if g_code: g_code()
    a(f"s_branch {le}")
    a.label(lo)
    if o_code:
        a(f"s_cmp_eq_u32 s{S_JOB}, 0")
        a(f"s_cbranch_scc1 {le}")
        o_code()
    a.label(le)

def wj_issue(a, part=None):
    def g():
        for i in ([0, 1] if part is None else [part]):
            a(f"s_add_u32 m0, s57, {i*1024}")
            a(f"s_add_u32 s63, s58, {i*8*3584}")
            a(f"buffer_load_dwordx4 v{V_WJS}, s[{SRD_J1}:{SRD_J1+3}], s63 offen lds")
            a(f"s_add_u32 m0, s57, {2048 + i*1024}")
            a("s_nop 0")
            a(f"buffer_load_dwordx4 v{V_WJS}, s[{SRD_J2}:{SRD_J2+3}], s63 offen lds")
    def o():
        for i in (range(4) if part is None else [2 * part, 2 * part + 1]):
            a(f"s_add_u32 m0, s57, {i*1024}")
            a(f"s_mul_i32 s63, s69, {i}")
            a(f"s_add_u32 s63, s63, s58")
            a(f"buffer_load_dwordx4 v{V_WJS}, s[{SRD_J1}:{SRD_J1+3}], s63 offen lds")
    wj_branch(a, g, o)

def wj_read(a, n_younger):
    def rd(st, rdoff):
        def f():
            a(f"s_waitcnt vmcnt({n_younger})")
            for q in range(4):
                d = 112 + 4 * q
                a(f"ds_read_b64_tr_b16 v[{d}:{d+1}], v{V_WJT} offset:{q*st}")
                a(f"ds_read_b64_tr_b16 v[{d+2}:{d+3}], v{V_WJT} offset:{q*st + rdoff}")
        return f
    l2 = a.newlabel("jr2"); le = a.newlabel("jre")
    a(f"s_cmp_eq_u32 s{S_JOB}, 0")
    a(f"s_cbranch_scc1 {le}")
    a(f"s_cmp_eq_u32 s{S_JOB}, 2")
    a(f"s_cbranch_scc1 {l2}")
    rd(32, 512)()
    a(f"s_branch {le}")
    a.label(l2)
    rd(64, 1024)()
    a.label(le)

def wj_store(a):
    def g():
        for r in range(4):
            a(f"v_mov_b32 v{128+r}, 0x3f803f80")
        for q in range(4):
            d = 112 + 4 * q
            a(f"s_add_u32 s63, s59, {q*32768}")
            a(f"buffer_store_dwordx4 v[{d}:{d+3}], v1, {WS}, s63 offen sc1")
        for q in range(4):
            mfma(a, 160 + 16 * q, 128, 112 + 4 * q, None)
    def o():
        a("s_mov_b32 s63, s59")
        for q in range(4):
            d = 112 + 4 * q
            a(f"buffer_store_dwordx4 v[{d}:{d+3}], v1, {WS}, s63 offen sc1")
            if q < 3: a("s_add_u32 s63, s63, s72")
    wj_branch(a, g, o)

def wj_cspart(a):
    def g():
        a("s_mov_b32 exec_hi, 0")
        for q in range(4):
            a(f"ds_write_b32 v{V_WJC}, v{160 + 16 * q} offset:{q*128}")
        a("s_mov_b64 exec, -1")
    wj_branch(a, g, None)

def wj_csread(a):
    def g():
        l = a.newlabel("csr")
        a(f"s_cmp_ge_u32 s{S_W}, 2")
        a(f"s_cbranch_scc1 {l}")
        a(f"s_lshl_b32 s63, s{S_W}, 8")
        a("v_lshlrev_b32 v132, 2, v0")
        a("v_add_u32 v132, s63, v132")
        a(f"v_add_u32 v133, {L_SCR}, v132")
        for ww in range(8):
            a(f"ds_read_b32 v{112+ww}, v133 offset:{ww*4096}")
        a.label(l)
    wj_branch(a, g, None)

def wj_csstore(a):
    def g():
        l = a.newlabel("css")
        a(f"s_cmp_ge_u32 s{S_W}, 2")
        a(f"s_cbranch_scc1 {l}")
        for ww in range(1, 8):
            a(f"v_add_f32 v112, v112, v{112+ww}")
        a(f"buffer_store_dword v112, v132, {WS}, s72 offen sc1")
        a.label(l)
    wj_branch(a, g, None)

def wj_signal(a):
    l = a.newlabel("wsig")
    a(f"s_cmp_eq_u32 s{S_JOB}, 0")
    a(f"s_cbranch_scc1 {l}")
    a(f"s_cmp_lg_u32 s{S_W}, 0")
    a(f"s_cbranch_scc1 {l}")
    a("s_lshl_b32 s63, s2, 7")
    a(f"s_add_u32 s63, s63, {FLG_W}")
    set_flag(a, 63, 112)
    a.label(l)

A_Q, A_O, A_S, A_P = 4, 8, [24, 40], 56
A_K = [64, 68]
A_V = [[72, 76], [80, 84]]
A_VK, A_VV = 88, 89
A_NEG = 96
A_Q2, A_O2 = 92, 96
WO_R = 112
NG_LATE = 12
WG_R = 128
XR = 60
BOUND2 = 1600.0

def attn_tile(a, p, extra=None, t=None):
    h = p & 1; i = p >> 1
    S = A_S[h]; Q = [A_Q, A_Q2]; O = [A_O, A_O2]
    def ex(r): a(f"v_exp_f32 v{S+r}, v{S+r}")
    def cv(k): a(f"v_cvt_pk_bf16_f32 v{A_P+k}, v{S+2*k}, v{S+2*k+1}")
    a("s_waitcnt lgkmcnt(0)")
    if h == 0:
        mfma(a, A_S[1], A_K[i & 1], Q[1], None)
    else:
        mfma(a, A_S[0], A_K[(i + 1) & 1], Q[0], None)
        a(f"ds_read_b128 v[{A_K[i & 1]}:{A_K[i & 1]+3}], v{A_VK} offset:{(i+2)*1024}")
    ex(0); ex(1); ex(2); ex(3)
    cv(0)
    if h == 0:
        if t != 0: mfma(a, O[1], A_V[1][(i - 1) & 1], A_P + 4, O[1])
        nb = (i + 1) & 1
        a("s_mov_b64 exec, s[70:71]")
        a(f"ds_read_b128 v[{A_V[0][nb]}:{A_V[0][nb]+3}], v{A_VV} offset:{(i+1)*1024}")
        a(f"ds_read_b128 v[{A_V[1][nb]}:{A_V[1][nb]+3}], v{A_VV} offset:{(i+1)*1024 + 512}")
        a("s_mov_b64 exec, -1")
    else:
        mfma(a, O[0], A_V[1][i & 1], A_P + 4, O[0])
    if extra: extra()
    ex(4); cv(1); ex(5); ex(6); ex(7); cv(2); ex(8); cv(3)
    ex(9); ex(10); ex(11)
    mfma(a, O[h], A_V[0][i & 1], A_P, None if t in (0, 1) else O[h])
    cv(4); ex(12); cv(5); ex(13); ex(14); ex(15); cv(6)
    cv(7)

def wave_consts(a):
    a.c("WOF + (8cq + w)*16384 -> s68")
    a(f"s_lshl_b32 s68, s{S_HQ}, 3")
    a(f"s_add_u32 s68, s68, s{S_W}")
    a("s_lshl_b32 s68, s68, 14")
    a(f"s_add_u32 s68, s68, {WOF}")
    a.c("WGF + fb*32768 -> s73, fb = 7j + w (waves 0..6; wave 7 uses fb of wave 6, harmless duplicate)")
    a(f"s_min_u32 s73, s{S_W}, 6")
    a(f"s_mul_i32 s74, s{S_J}, 7")
    a("s_add_u32 s74, s74, s73")
    a("s_lshl_b32 s73, s74, 15")
    a(f"s_add_u32 s73, s73, {WGF}")

def ld_wg(a, s, tag="WG"):
    a(f"s_add_u32 s75, s73, {(s >> 2) * 4096}")
    a.vm(f"buffer_load_dwordx4 v[{WG_R+4*s}:{WG_R+4*s+3}], v1, {WS}, s75 offen offset:{(s&3)*1024} sc1", (tag, s))
def ld_wo(a, s):
    a(f"s_add_u32 s75, s68, {(s >> 2) * 4096}")
    a.vm(f"buffer_load_dwordx4 v[{WO_R+4*s}:{WO_R+4*s+3}], v1, {WS}, s75 offen offset:{(s&3)*1024} sc1", ("WO", s))

def prefetch_lists():
    it2 = [("g", s) for s in range(7, 32)]
    it3 = [("o", s) for s in range(16)]
    return it2, it3

def kv_dma(a, st, part=None):
    if part in (None, 0):
        a(f"s_add_u32 m0, s54, {st*8192}")
        a(f"s_add_u32 s62, s54, {st*8192 + KF}")
        a(f"buffer_load_dwordx4 v1, {WS}, s62 offen sc1 lds")
        a(f"buffer_load_dwordx4 v1, {WS}, s62 offen offset:1024 sc1 lds")
    if part in (None, 1):
        a(f"s_add_u32 m0, s54, {st*8192 + 65536}")
        a(f"s_add_u32 s62, s54, {st*8192 + VF}")
        a(f"buffer_load_dwordx4 v1, {WS}, s62 offen sc1 lds")
        a(f"buffer_load_dwordx4 v1, {WS}, s62 offen offset:1024 sc1 lds")

def wready_poll(a):
    l = a.newlabel("wrq")
    a(f"s_cmp_lg_u32 s{S_W}, 0")
    a(f"s_cbranch_scc1 {l}")
    a("v_lshlrev_b32 v2, 7, v0")
    a("v_add_u32 v3, 128, v0")
    a("v_min_u32 v3, 183, v3")
    a("v_lshlrev_b32 v3, 7, v3")
    a(f"s_mov_b32 s63, {FLG_W}")
    a(f"buffer_load_dword v112, v2, {WS}, s63 offen sc1")
    a(f"s_mov_b32 s63, {FLG_W + 64*128}")
    a(f"buffer_load_dword v113, v2, {WS}, s63 offen sc1")
    a(f"s_mov_b32 s63, {FLG_W}")
    a(f"buffer_load_dword v114, v3, {WS}, s63 offen sc1")
    a.label(l)
def wready_check(a):
    l = a.newlabel("wrc"); dn = a.newlabel("wrd")
    a(f"s_cmp_lg_u32 s{S_W}, 0")
    a(f"s_cbranch_scc1 {l}")
    def test():
        a("s_waitcnt vmcnt(0)")
        a(f"v_cmp_ne_u32 vcc, s{S_NONCE}, v112")
        a(f"v_cmp_ne_u32 s[62:63], s{S_NONCE}, v113")
        a("s_nop 1")
        a("s_or_b64 s[62:63], s[62:63], vcc")
        a(f"v_cmp_ne_u32 vcc, s{S_NONCE}, v114")
        a("s_nop 4")
        a("s_or_b64 vcc, vcc, s[62:63]")
    test()
    a(f"s_cbranch_vccz {dn}")
    l2 = spin_begin(a, "wrp")
    a(f"s_mov_b32 s63, {FLG_W}")
    a(f"buffer_load_dword v112, v2, {WS}, s63 offen sc1")
    a(f"buffer_load_dword v114, v3, {WS}, s63 offen sc1")
    a(f"s_mov_b32 s63, {FLG_W + 64*128}")
    a(f"buffer_load_dword v113, v2, {WS}, s63 offen sc1")
    test()
    spin_end(a, l2, dn, 4)
    a.label(l)
    a("s_barrier")

def local_poll(a):
    a("v_lshlrev_b32 v118, 7, v0")
    a(f"s_lshl_b32 s62, s{S_G}, 11")
    a(f"s_add_u32 s62, s62, {FLG_X}")
    a("s_mov_b64 exec, 0xffff")
    a(f"buffer_load_dwordx2 v[116:117], v118, {WS}, s62 offen sc1")
    a("s_mov_b64 exec, -1")
def local_check(a):
    dn = a.newlabel("lcd")
    a(f"s_lshl_b32 s62, s{S_G}, 11")
    a(f"s_add_u32 s62, s62, {FLG_X}")
    a("s_mov_b64 exec, 0xffff")
    a("s_waitcnt vmcnt(0)")
    a(f"v_cmp_ne_u32 vcc, s{S_NONCE}, v116")
    a("s_nop 4")
    a(f"s_cbranch_vccz {dn}")
    l = spin_begin(a, "lcp")
    a(f"buffer_load_dwordx2 v[116:117], v118, {WS}, s62 offen sc1")
    a("s_waitcnt vmcnt(0)")
    a(f"v_cmp_ne_u32 vcc, s{S_NONCE}, v116")
    spin_end(a, l, dn, 4)
    a("s_getreg_b32 s62, hwreg(HW_REG_XCC_ID, 0, 4)")
    a("v_cmp_ne_u32 vcc, s62, v117")
    a(f"v_cmp_ne_u32 s[62:63], s{S_NONCE}, v116")
    a("s_mov_b64 exec, -1")
    a("s_nop 2")
    a("s_or_b64 vcc, vcc, s[62:63]")
    a("s_cmp_eq_u64 vcc, 0")
    a(f"s_cselect_b32 s{S_LOCAL}, 1, 0")

def x_residual(a):
    mk_srd(a, SRD_A, P_X, 2048 * 1024)
    a("v_and_b32 v2, 15, v0")
    a("v_lshrrev_b32 v3, 4, v0")
    a("v_lshlrev_b32 v2, 10, v2")
    a("v_lshl_add_u32 v2, v3, 3, v2")
    a(f"s_lshl_b32 s62, s{S_TBK}, 15")
    a(f"s_lshl_b32 s63, s{S_HQ}, 8")
    a("s_add_u32 s62, s62, s63")
    a(f"s_lshl_b32 s63, s{S_W}, 5")
    a("s_add_u32 s62, s62, s63")
    a.vm(f"buffer_load_dwordx2 v[{XRES}:{XRES+1}], v2, s[{SRD_A}:{SRD_A+3}], s62 offen", "XR")
    a("s_add_u32 s62, s62, 16384")
    a.vm(f"buffer_load_dwordx2 v[{XRES+2}:{XRES+3}], v2, s[{SRD_A}:{SRD_A+3}], s62 offen", "XR")
XRES = 4

def hh_prefill(a):
    l = a.newlabel("pf")
    a(f"s_cmp_eq_u32 s{S_W}, 7")
    a(f"s_cbranch_scc1 {l}")
    for r in range(4): a(f"v_mov_b32 v{96+r}, -1")
    a("s_mul_i32 s62, s74, 1024")
    a(f"s_lshl_b32 s63, s{S_G}, 19")
    a("s_add_u32 s62, s62, s63")
    a(f"s_add_u32 s62, s62, {HHF}")
    for tb in range(4):
        a(f"buffer_store_dwordx4 v[96:99], v1, {WS}, s62 offen sc1")
        if tb < 3: a("s_add_u32 s62, s62, 114688")
    a("s_nop 1")
    a.label(l)

def attention(a):
    L_KM = L_SCR + 4096 - 128
    a("v_lshlrev_b32 v1, 4, v0")
    lp = a.newlabel("sa0")
    a(f"s_cmp_lg_u32 s{S_W}, 0")
    a(f"s_cbranch_scc1 {lp}")
    a("v_lshlrev_b32 v3, 7, v0")
    a(f"s_mov_b32 s55, {FLG_A}")
    a(f"buffer_load_dwordx2 v[112:113], v3, {WS}, s55 offen sc1")
    a.label(lp)
    for r in range(4):
        a(f"v_mov_b32 v{A_Q+r}, v{QSAVE+r}")
        a(f"v_mov_b32 v{A_Q2+r}, v{QSAVE+4+r}")
    a("v_mov_b32 v90, 0")
    a("v_mov_b32 v2, 0")
    for r in range(4):
        a(f"v_dot2_f32_bf16 v90, v{A_Q+r}, v{A_Q+r}, v90")
        a(f"v_dot2_f32_bf16 v2, v{A_Q2+r}, v{A_Q2+r}, v2")
    a("s_mov_b32 s70, 0x0000ffff")
    a("s_mov_b32 s71, 0x0000ffff")
    a("s_mov_b32 s62, 0x00110000" if ZROWS else "s_mov_b32 s62, -1"); a("s_mov_b32 s63, s62")
    a("v_mov_b32 v91, 0x3f803f80")
    for r in range(16): a(f"v_cndmask_b32 v{72+r}, 0, v91, s[62:63]")
    xhalf(a, 90, 91, "v_add_f32")
    xhalf(a, 2, 91, "v_add_f32")
    a("v_max_f32 v90, v90, v2")
    dpp_sum16(a, 90, "v_max_f32")
    xrow16(a, 90, 91, "v_max_f32")
    a(f"s_lshl_b32 s61, s{S_W}, 2")
    a(f"s_add_u32 s61, s61, {L_KM + 64}")
    a("v_mov_b32 v91, s61")
    a("s_mov_b64 exec, 1")
    a("ds_write_b32 v91, v90")
    a("s_mov_b64 exec, -1")
    a(f"s_lshr_b32 s61, s{S_W}, 2")
    a("s_lshl_b32 s61, s61, 15")
    a(f"v_add_u32 v{A_VK}, s61, v1")
    a("v_lshrrev_b32 v90, 5, v0")
    a("v_and_b32 v91, 15, v0")
    a("v_lshl_add_u32 v90, v90, 4, v91")
    a("v_lshlrev_b32 v90, 4, v90")
    a("s_add_u32 s61, s61, 65536")
    a(f"v_add_u32 v{A_VV}, s61, v90")
    wave_consts(a)
    a(f"s_lshr_b32 s54, s{S_W}, 2")
    a("s_lshl_b32 s54, s54, 4")
    a(f"s_and_b32 s61, s{S_W}, 3")
    a("s_add_u32 s54, s54, s61")
    a("s_lshl_b32 s54, s54, 11")
    la = a.newlabel("sa")
    a(f"s_cmp_lg_u32 s{S_W}, 0")
    a(f"s_cbranch_scc1 {la}")
    done = a.newlabel("syncA")
    a("s_waitcnt vmcnt(0)")
    a(f"v_cmp_ne_u32 vcc, s{S_NONCE}, v112")
    a("s_nop 4")
    a(f"s_cbranch_vccz {done}")
    l = spin_begin(a, "pollA")
    a(f"buffer_load_dwordx2 v[112:113], v3, {WS}, s55 offen sc1")
    a("s_waitcnt vmcnt(0)")
    a(f"v_cmp_ne_u32 vcc, s{S_NONCE}, v112")
    spin_end(a, l, done, SYNCA_SLEEP)
    dpp_sum16(a, 113, "v_max_f32")
    xrow16(a, 113, 91, "v_max_f32")
    xhalf(a, 113, 91, "v_max_f32")
    a(f"v_mov_b32 v91, {L_KM}")
    a("s_mov_b64 exec, 1")
    a("ds_write_b32 v91, v113")
    a("s_mov_b64 exec, -1")
    a.label(la)
    a("s_waitcnt lgkmcnt(0)")
    a("s_barrier")
    stamp(a)
    kv_dma(a, 0)
    a.c("any row of the workgroup that might leave the safe range sends the whole workgroup to the max-subtracting path")
    a(f"v_mov_b32 v91, {L_KM}")
    a("ds_read_b32 v3, v91")
    a("ds_read_b128 v[112:115], v91 offset:64")
    a("ds_read_b128 v[116:119], v91 offset:80")
    a("s_waitcnt lgkmcnt(0)")
    a("v_max3_f32 v112, v112, v113, v114")
    a("v_max3_f32 v116, v116, v117, v118")
    a("v_max3_f32 v112, v112, v115, v119")
    a("v_max_f32 v112, v112, v116")
    a("v_mul_f32 v90, v112, v3")
    a(f"v_mov_b32 v91, {f32hex(BOUND2)}")
    a("v_cmp_gt_f32 vcc, v90, v91")
    a("s_waitcnt vmcnt(0)")
    a("s_cmp_lg_u64 vcc, 0")
    a("s_cselect_b32 s61, 1, 0")
    a("s_barrier")
    a(f"ds_read_b128 v[{A_K[0]}:{A_K[0]+3}], v{A_VK}")
    a(f"ds_read_b128 v[{A_K[1]}:{A_K[1]+3}], v{A_VK} offset:1024")
    a("s_mov_b64 exec, s[70:71]")
    a(f"ds_read_b128 v[{A_V[0][0]}:{A_V[0][0]+3}], v{A_VV}")
    a(f"ds_read_b128 v[{A_V[1][0]}:{A_V[1][0]+3}], v{A_VV} offset:512")
    a("s_mov_b64 exec, -1")
    a("s_waitcnt lgkmcnt(0)")
    lslow = a.newlabel("slow"); lepi = a.newlabel("attn_epi")
    a("s_cmp_lg_u32 s61, 0")
    a(f"s_cbranch_scc1 {lslow}")
    stamp(a)
    mfma(a, A_S[0], A_K[0], A_Q, None)
    it_pref = [("g", s) for s in range(NG_LATE, 32)] + [("o", s) for s in range(16)]
    NPF0, NPF1 = 36, 62
    a("s_nop 15")
    a.vm_reset()
    def extra_for(t):
        def f():
            if t in (0, 1): kv_dma(a, 1, t)
            if t == 1: wj_setup(a)
            if t in (2, 3): wj_issue(a, t - 2)
            if t in (4, 5): kv_dma(a, 2, t - 4)
            if t in (6, 7): kv_dma(a, 3, t - 6)
            if t == 12: wj_read(a, 8)
            if t == 13: wj_store(a)
            if t == 15: wj_cspart(a)
            if t == 16: wj_csread(a)
            if t == 17: wj_csstore(a)
            if t == 33: wready_poll(a); local_poll(a)
            if t == 36: local_check(a)
            if NPF0 <= t < NPF1:
                k0 = (t - NPF0) * len(it_pref) // (NPF1 - NPF0); k1 = (t + 1 - NPF0) * len(it_pref) // (NPF1 - NPF0)
                for k, s in it_pref[k0:k1]:
                    (ld_wg if k == "g" else ld_wo)(a, s)
            if SENT_D and t == 40: hh_prefill(a)
            if t == 18 and PRETOUCH & 4:
                lt = a.newlabel("pt")
                a(f"s_cmp_lg_u32 s{S_W}, 5")
                a(f"s_cbranch_scc1 {lt}")
                a.c("read unused lines of the pages that the later hand-offs write, to have their translations resident")
                for k, off in enumerate((0x000000, 0x400000, 0x700000)):
                    a(f"s_mov_b32 s62, {hex(off)}")
                    a(f"buffer_load_dword v{121+k}, v1, {WS}, s62 offen")
                a(f"s_lshl_b32 s62, s{S_G}, 19")
                a(f"s_add_u32 s62, s62, {HHF + 458752}")
                a(f"buffer_load_dword v124, v1, {WS}, s62 offen")
                a.label(lt)
            if t == 20 and PRETOUCH & 2:
                mk_srd(a, SRD_A, P_OUT, 2048 * 1024)
                a(f"s_lshl_b32 s62, s{S_G}, 17")
                a(f"buffer_load_dword v120, v1, s[{SRD_A}:{SRD_A+3}], s62 offen")
            if t == 62: x_residual(a)
        return f
    for t in range(64):
        p = t & 15
        if t in (0, 4, 8, 12, 16, 20, 24, 28, 32, 36, 40, 48, 56, 63): stamp(a, "attn")
        if t > 0 and t % 4 == 0 and (t % BAR_EVERY == 0 or t in (12, 16, 24, 36)):
            if t == 12:
                a("s_waitcnt vmcnt(8)")
            if t == 16:
                a("s_waitcnt lgkmcnt(0)")
            if t == 24:
                a("s_waitcnt vmcnt(0)")
            if t == 36:
                wready_check(a)
            else:
                a("s_barrier")
            if t == 24:
                wj_signal(a)
        if PRIO:
            a(f"s_setprio {3 - (t & 3)}")
        if ALTP and t % ALTP == 0:
            hi_first = (t // ALTP) & 1
            l1 = a.newlabel("ap"); l2 = a.newlabel("aq")
            a(f"s_cmp_lt_u32 s{S_W}, 4")
            a(f"s_cbranch_scc1 {l1}")
            a(f"s_setprio {1 - hi_first}")
            a(f"s_branch {l2}")
            a.label(l1)
            a(f"s_setprio {hi_first}")
            a.label(l2)
        attn_tile(a, p, extra_for(t), t)
        if p == 15 and t < 63:
            a(f"v_add_u32 v{A_VK}, 8192, v{A_VK}")
            a(f"v_add_u32 v{A_VV}, 8192, v{A_VV}")
    if PRIO or ALTP: a("s_setprio 0")
    a("s_nop 1")
    mfma(a, A_O2, A_V[1][1], A_P + 4, A_O2)
    a(f"s_branch {lepi}")
    a.label(lslow)
    for st in range(1, 4):
        kv_dma(a, st)
    for r in range(16):
        a(f"v_mov_b32 v{A_O+r}, 0")
        a(f"v_mov_b32 v{A_O2+r}, 0")
    wj_setup(a)
    wj_issue(a)
    wj_read(a, 0)
    a("s_waitcnt lgkmcnt(0)")
    wj_store(a)
    a("s_nop 15")
    wj_cspart(a)
    a("s_waitcnt vmcnt(0) lgkmcnt(0)")
    a("s_barrier")
    wj_csread(a)
    a("s_waitcnt lgkmcnt(0)")
    wj_csstore(a)
    a("s_waitcnt vmcnt(0)")
    a("s_barrier")
    wj_signal(a)
    NEG = [112, 128]
    for h in range(2):
        Qh = [A_Q, A_Q2][h]
        a(f"v_mov_b32 v{2+h}, 0xff800000")
        a(f"v_mov_b32 v90, v{A_VK}")
        a("s_mov_b32 s55, 0")
        l1 = a.newlabel("s1")
        a.label(l1)
        a(f"ds_read_b128 v[{A_K[0]}:{A_K[0]+3}], v90")
        a("s_waitcnt lgkmcnt(0)")
        mfma(a, A_S[0], A_K[0], Qh, None)
        a("s_nop 15")
        for r in range(8):
            a(f"v_max3_f32 v{2+h}, v{A_S[0]+2*r}, v{A_S[0]+2*r+1}, v{2+h}")
        a("v_add_u32 v90, 1024, v90")
        a("s_add_u32 s55, s55, 1")
        a("s_cmp_lt_u32 s55, 32")
        a(f"s_cbranch_scc1 {l1}")
        xhalf(a, 2 + h, 91, "v_max_f32")
    a.c("the other half of the keys belongs to wave w ^ 4: exchange the maxima")
    a(f"s_lshl_b32 s55, s{S_W}, 12")
    a(f"s_add_u32 s55, s55, {L_SCR}")
    a("v_lshlrev_b32 v90, 3, v0")
    a("v_add_u32 v91, s55, v90")
    a("ds_write_b64 v91, v[2:3]")
    a(f"s_xor_b32 s55, s{S_W}, 4")
    a("s_lshl_b32 s55, s55, 12")
    a(f"s_add_u32 s55, s55, {L_SCR}")
    a("v_add_u32 v91, s55, v90")
    a("s_waitcnt lgkmcnt(0)")
    a("s_barrier")
    a("ds_read_b64 v[90:91], v91")
    a("s_waitcnt lgkmcnt(0)")
    a("v_max_f32 v2, v2, v90")
    a("v_max_f32 v3, v3, v91")
    for h in range(2):
        for r in range(16):
            a(f"v_sub_f32 v{NEG[h]+r}, 0, v{2+h}")
    for h in range(2):
        Qh = [A_Q, A_Q2][h]; Oh = [A_O, A_O2][h]
        a(f"v_mov_b32 v90, v{A_VK}")
        a(f"v_mov_b32 v91, v{A_VV}")
        a("s_mov_b32 s55, 0")
        l2 = a.newlabel("s2")
        a.label(l2)
        a(f"ds_read_b128 v[{A_K[0]}:{A_K[0]+3}], v90")
        a("s_mov_b64 exec, s[70:71]")
        a(f"ds_read_b128 v[{A_V[0][0]}:{A_V[0][0]+3}], v91")
        a(f"ds_read_b128 v[{A_V[1][0]}:{A_V[1][0]+3}], v91 offset:512")
        a("s_mov_b64 exec, -1")
        a("s_waitcnt lgkmcnt(0)")
        mfma(a, A_S[0], A_K[0], Qh, NEG[h])
        a("s_nop 15")
        for r in range(16):
            a(f"v_exp_f32 v{A_S[0]+r}, v{A_S[0]+r}")
        a("s_nop 0")
        for k in range(8):
            a(f"v_cvt_pk_bf16_f32 v{A_P+k}, v{A_S[0]+2*k}, v{A_S[0]+2*k+1}")
        a("s_nop 1")
        mfma(a, Oh, A_V[0][0], A_P, Oh)
        mfma(a, Oh, A_V[1][0], A_P + 4, Oh)
        a("v_add_u32 v90, 1024, v90")
        a("v_add_u32 v91, 1024, v91")
        a("s_add_u32 s55, s55, 1")
        a("s_cmp_lt_u32 s55, 32")
        a(f"s_cbranch_scc1 {l2}")
    a("s_nop 15")
    a("s_barrier")
    if SENT_D: hh_prefill(a)
    wready_poll(a)
    local_poll(a)
    wready_check(a)
    local_check(a)
    sv = list(a.vmq)
    for k, s in it_pref:
        (ld_wg if k == "g" else ld_wo)(a, s)
    x_residual(a)
    a.vmq = sv
    a.label(lepi)
    stamp(a)
    a.c("wave kh finishes head 2p + kh: it hands the partial sums of the other head to wave w ^ 4")
    a(f"s_lshl_b32 s60, s{S_W}, 12")
    a(f"s_add_u32 s60, s60, {L_SCR}")
    a("v_add_u32 v90, s60, v1")
    a(f"s_xor_b32 s60, s{S_W}, 4")
    a("s_lshl_b32 s60, s60, 12")
    a(f"s_add_u32 s60, s60, {L_SCR}")
    a("v_add_u32 v91, s60, v1")
    a.c("OF + (tbk*32 + 8hq + 2p + kh)*1024")
    a(f"s_lshl_b32 s60, s{S_TBK}, 5")
    a(f"s_lshl_b32 s61, s{S_HQ}, 3")
    a("s_add_u32 s60, s60, s61")
    a(f"s_and_b32 s61, s{S_W}, 3")
    a("s_lshl_b32 s61, s61, 1")
    a("s_add_u32 s60, s60, s61")
    a(f"s_lshr_b32 s61, s{S_W}, 2")
    a("s_add_u32 s60, s60, s61")
    a("s_lshl_b32 s60, s60, 10")
    a(f"s_add_u32 s60, s60, {OF}")
    lk1 = a.newlabel("kh1"); lk2 = a.newlabel("khj")
    a(f"s_cmp_ge_u32 s{S_W}, 4")
    a(f"s_cbranch_scc1 {lk1}")
    for q in range(3):
        a(f"ds_write_b128 v90, v[{A_O2+4*q}:{A_O2+4*q+3}] offset:{q*1024}")
    a(f"s_branch {lk2}")
    a.label(lk1)
    for q in range(3):
        a(f"ds_write_b128 v90, v[{A_O+4*q}:{A_O+4*q+3}] offset:{q*1024}")
    for r in range(9):
        a(f"v_mov_b32 v{A_O+r}, v{A_O2+r}")
    a.label(lk2)
    a("s_waitcnt lgkmcnt(0)")
    a("s_barrier")
    for q in range(3):
        a(f"ds_read_b128 v[{24+4*q}:{27+4*q}], v91 offset:{q*1024}")
    a("s_waitcnt lgkmcnt(0)")
    for i in range(4):
        a(f"v_pk_add_f32 v[{A_O+2*i}:{A_O+2*i+1}], v[{A_O+2*i}:{A_O+2*i+1}], v[{24+2*i}:{25+2*i}]")
    a(f"v_add_f32 v{A_O+8}, v{A_O+8}, v32")
    a(f"v_rcp_f32 v90, v{A_O+8}")
    a("s_nop 0")
    for r in range(8):
        a(f"v_mul_f32 v{A_O+r}, v{A_O+r}, v90")
    for k in range(4):
        a(f"v_cvt_pk_bf16_f32 v{A_P+k}, v{A_O+2*k}, v{A_O+2*k+1}")
    a("s_mov_b32 s54, s60")
    gstore(a, f"buffer_store_dwordx4 v[{A_P}:{A_P+3}], v1, {WS}, s60 offen", "o")
    if "o" in DOUBLE: a(f"buffer_store_dwordx4 v[{A_P}:{A_P+3}], v1, {WS}, s60 offen")

def eflag_base(a, dst):
    a(f"s_lshl_b32 s{dst}, s{S_G}, 11")
    a(f"s_add_u32 s{dst}, s{dst}, {FLG_E}")

def wg_publish(a, base, vt, younger=0):
    a(f"s_lshl_b32 s60, s{S_G}, 4")
    a(f"s_add_u32 s60, s60, s{S_J}")
    a("s_lshl_b32 s60, s60, 7")
    a(f"s_add_u32 s60, s60, {base}")
    a(f"v_mov_b32 v{vt}, s{S_NONCE}")
    a(f"v_lshlrev_b32 v{vt+1}, 2, v0")
    stamp(a, "p3")
    a(f"s_waitcnt vmcnt({younger})")
    stamp(a, "p3")
    a("s_barrier")
    l = a.newlabel("pub")
    a(f"s_cmp_lg_u32 s{S_W}, 0")
    a(f"s_cbranch_scc1 {l}")
    a("s_mov_b32 exec_hi, 0")
    gstore(a, f"buffer_store_dword v{vt}, v{vt+1}, {WS}, s60 offen")
    a("s_mov_b64 exec, -1")
    a.label(l)

def wg_wait(a, base, first_expr, n, vt, vo, poller=0):
    l = a.newlabel("wt")
    a(f"s_cmp_lg_u32 s{S_W}, {poller}")
    a(f"s_cbranch_scc1 {l}")
    a(f"s_lshl_b32 s60, s{S_G}, 4")
    if first_expr is not None:
        first_expr()
    a("s_lshl_b32 s60, s60, 7")
    a(f"s_add_u32 s60, s60, {base}")
    if POLL_DELAY: a(f"s_sleep {POLL_DELAY}")
    poll_flags(a, 60, n, vt, vo, sleep=POLL_SLEEP)
    a.label(l)
    a("s_barrier")

def wave_publish(a, base, vt):
    a(f"s_lshl_b32 s60, s{S_G}, 4")
    a(f"s_add_u32 s60, s60, s{S_J}")
    a("s_lshl_b32 s60, s60, 3")
    a(f"s_add_u32 s60, s60, s{S_W}")
    a("s_lshl_b32 s60, s60, 7")
    a(f"s_add_u32 s60, s60, {base}")
    stamp(a, "p3")
    a("s_waitcnt vmcnt(0)")
    stamp(a, "p3")
    set_flag(a, 60, vt)

L3_ST = 131072 + 4096
def mfma16(a, d, A, B, c):
    cs = "0" if c is None else f"v[{c}:{c+3}]"
    a(f"v_mfma_f32_16x16x32_bf16 v[{d}:{d+3}], v[{A}:{A+3}], v[{B}:{B+3}], {cs}")

def p3(a):
    wg_publish(a, FLG_B, 28)
    stamp(a)
    def fe():
        a(f"s_lshl_b32 s61, s{S_TQ}, 2")
        a("s_add_u32 s60, s60, s61")
    wg_wait(a, FLG_B, fe, 4, 28, 30, poller=1)
    stamp(a)
    a.c("o fragments -> LDS [32 heads][1024] over key tiles 0..31 (dead since the last barriers of the attention loop)")
    a(f"s_lshl_b32 s60, s{S_W}, 12")
    a("s_mov_b32 m0, s60")
    a(f"s_lshl_b32 s61, s{S_TBK}, 15")
    a("s_add_u32 s61, s61, s60")
    a(f"s_add_u32 s61, s61, {OF}")
    for e in range(4):
        a(f"buffer_load_dwordx4 v1, {WS}, s61 offen offset:{e*1024} sc1 lds")
    a.c("operand address: (g>>1)*1024 + ((g&1)*32 + (lane&15))*16")
    a("v_lshrrev_b32 v30, 5, v0")
    a("v_lshlrev_b32 v30, 10, v30")
    a("v_bfe_u32 v31, v0, 4, 1")
    a("v_lshlrev_b32 v31, 5, v31")
    a("v_and_b32 v29, 15, v0")
    a("v_add_u32 v31, v31, v29")
    a("v_lshl_add_u32 v30, v31, 4, v30")
    a("v_and_b32 v2, 31, v0")
    a("s_mov_b32 s61, 0xffff0000")
    for i in range(4):
        a(f"v_lshlrev_b32 v{16+2*i}, 16, v{XRES+i}")
        a(f"v_and_b32 v{17+2*i}, s61, v{XRES+i}")
    a(f"s_lshl_b32 s60, s{S_TBK}, 5")
    a(f"s_lshl_b32 s61, s{S_HQ}, 3")
    a("s_add_u32 s60, s60, s61")
    a(f"s_add_u32 s60, s60, s{S_W}")
    a("s_lshl_b32 s60, s60, 10")
    a(f"s_add_u32 s60, s60, {HF}")
    stamp(a, "p3")
    a("s_waitcnt vmcnt(0)")
    stamp(a, "p3")
    a("s_barrier")
    stamp(a, "p3")
    NB3 = 5
    BBF = [[32 + 8 * k, 36 + 8 * k] for k in range(NB3)]
    a.lgq = []
    def rd(s):
        for th2 in range(2):
            r = BBF[s % NB3][th2]
            a.lg(f"ds_read_b128 v[{r}:{r+3}], v30 offset:{s*2048 + th2*256}", s)
    for s in range(NB3 - 1): rd(s)
    for s in range(16):
        if s + NB3 - 1 < 16: rd(s + NB3 - 1)
        a.lg_wait(s)
        for th2 in range(2):
            mfma16(a, 8 + 4 * th2, WO_R + 4 * s, BBF[s % NB3][th2], None if s == 0 else 8 + 4 * th2)
    stamp(a, "p3")
    a("s_nop 7")
    for i in range(4):
        a(f"v_pk_add_f32 v[{8+2*i}:{9+2*i}], v[{8+2*i}:{9+2*i}], v[{16+2*i}:{17+2*i}]")
    for i in range(4):
        a(f"v_cvt_pk_bf16_f32 v{40+i}, v{8+2*i}, v{9+2*i}")
    a("s_nop 1")
    a("v_permlane16_swap_b32 v40, v42")
    a("v_permlane16_swap_b32 v41, v43")
    a("s_nop 1")
    a("s_mov_b32 s55, s60")
    gstore(a, f"buffer_store_dwordx4 v[40:43], v1, {WS}, s60 offen", "h")
    if "h" in LOCAL_DATA:
        for r in range(4): a(f"v_mov_b32 v{12+r}, v{40+r}")
    if "h" in DOUBLE: a(f"buffer_store_dwordx4 v[40:43], v1, {WS}, s60 offen")
    stamp(a, "p3")
    a("s_mov_b32 s61, 0x3f803f80")
    a("v_mov_b32 v44, 0")
    a("v_mov_b32 v45, 0")
    for i in range(4):
        a(f"v_dot2_f32_bf16 v44, v{40+i}, s61, v44")
        a(f"v_dot2_f32_bf16 v45, v{40+i}, v{40+i}, v45")
    a("s_nop 2")
    xhalf(a, 44, 46, "v_add_f32")
    xhalf(a, 45, 46, "v_add_f32")
    a(f"s_lshl_b32 s60, s{S_W}, 8")
    a(f"s_add_u32 s60, s60, {L3_ST}")
    a("v_lshlrev_b32 v46, 3, v2")
    a("v_add_u32 v47, s60, v46")
    a("s_mov_b32 exec_hi, 0")
    a("ds_write_b64 v47, v[44:45]")
    a("s_mov_b64 exec, -1")
    a("s_waitcnt lgkmcnt(0)")
    wg_publish(a, FLG_C, 28)
    a.vm_reset()
    l7 = a.newlabel("nog")
    a(f"s_cmp_eq_u32 s{S_W}, 7")
    a(f"s_cbranch_scc1 {l7}")
    for s in range(NG_LATE):
        ld_wg(a, s)
    a.label(l7)
    stamp(a)

L4_ST = 131072
L4_CS = 131072 + 1024
WD_R = 128
def ld_wd(a, u):
    s, ct = u >> 1, u & 1
    off = ct * 114688 + (s >> 2) * 4096
    a(f"s_add_u32 s75, s76, {off}")
    a.vm(f"buffer_load_dwordx4 v[{WD_R+4*u}:{WD_R+4*u+3}], v1, {WS}, s75 offen offset:{(s&3)*1024} sc1", ("WD", u))

def p4(a):
    a(f"s_and_b32 s77, s{S_J}, 7")
    a("s_mul_i32 s76, s77, 229376")
    a(f"s_mul_i32 s60, s{S_W}, 14336")
    a("s_add_u32 s76, s76, s60")
    a(f"s_add_u32 s76, s76, {WDF}")
    a(f"s_lshl_b32 s62, s{S_G}, 17")
    a(f"s_lshl_b32 s63, s{S_W}, 10")
    a("s_add_u32 s62, s62, s63")
    a(f"s_add_u32 s62, s62, {HF}")
    stamp(a, "p4")
    wg_wait(a, FLG_C, None, 16, 28, 5, poller=7)
    stamp(a); stamp(a, "p4")
    def dma(st):
        for tb in range(4):
            off = tb * 32768 + st * 8192
            a(f"s_add_u32 m0, s63, {off}")
            a(f"s_add_u32 s64, s62, {off}")
            a.vm(f"buffer_load_dwordx4 v1, {WS}, s64 offen sc1 lds", ("H", st))
    a.vm_reset()
    dma(0)
    if "o" in LOCAL_DATA:
        clean_store(a, A_P, 54, "o")
    lhelp = a.newlabel("help"); ljoin = a.newlabel("p4join")
    a(f"s_cmp_eq_u32 s{S_W}, 7")
    a(f"s_cbranch_scc1 {lhelp}")
    sv = list(a.vmq)
    a("v_add_u32 v2, 65536, v1")
    BB = [[32 + 4 * t for t in range(4)], [48 + 4 * t for t in range(4)]]
    def breads(s):
        for tb in range(4):
            base = "v1" if tb < 2 else "v2"
            a.lg(f"ds_read_b128 v[{BB[s&1][tb]}:{BB[s&1][tb]+3}], {base} offset:{(tb&1)*32768 + s*1024}", s)
    a.lgq = []
    a.vm_wait(("H", 0))
    stamp(a, "p4")
    a("s_barrier")
    stamp(a); stamp(a, "p4")
    breads(0)
    dma(1)
    for s in range(24):
        if (s + 1) % 8 == 0:
            a.vm_wait(("H", (s + 1) // 8))
            a("s_barrier")
        if s + 1 < 24:
            breads(s + 1)
        if PRIO2 and s % 2 == 0: a(f"s_setprio {3 - ((s & 7) >> 1)}")
        a.lg_wait(s)
        for tb in range(4):
            mfma(a, 64 + 16 * tb, WG_R + 4 * s, BB[s & 1][tb], None if s == 0 else 64 + 16 * tb)
        if s == 2: dma(2)
        if s == 6: dma(3)
        if s == 20: clean_store(a, 12, 55, "h")
        if s >= 1:
            ld_wd(a, s - 1)
    a("v_and_b32 v3, 31, v0")
    a("v_lshlrev_b32 v3, 3, v3")
    a(f"v_add_u32 v3, {L4_ST}, v3")
    SL = [32 + 4 * i for i in range(8)]
    seq = [(tb, s) for tb in range(4) for s in range(24, 32)]
    def rd(k):
        tb, s = seq[k]
        base = "v1" if tb < 2 else "v2"
        r = SL[k % 8]
        a.lg(f"ds_read_b128 v[{r}:{r+3}], {base} offset:{(tb&1)*32768 + s*1024}", ("t", k))
    for k in range(4): rd(k)
    for tb in range(4):
        a.lg(f"ds_read_b64 v[{4+2*tb}:{5+2*tb}], v3 offset:{tb*256}", "st")
    a("v_lshrrev_b32 v12, 5, v0")
    a("v_lshlrev_b32 v12, 4, v12")
    a(f"s_lshl_b32 s60, s{S_W}, 7")
    a(f"s_add_u32 s60, s60, {L4_CS}")
    a("v_add_u32 v12, s60, v12")
    for q in range(4):
        a.lg(f"ds_read_b128 v[{16+4*q}:{19+4*q}], v12 offset:{q*32}", "st")
    a("s_mul_i32 s60, s74, 1024")
    a(f"s_lshl_b32 s61, s{S_G}, 19")
    a("s_add_u32 s60, s60, s61")
    a(f"s_add_u32 s60, s60, {HHF}")
    def epi(tb):
        A = 64 + 16 * tb; st = 4 + 2 * tb; o = 8 + 0
        L = []
        for i in range(8):
            L.append(f"v_pk_fma_f32 v[{A+2*i}:{A+2*i+1}], v[{16+2*i}:{17+2*i}], v[{st}:{st+1}], v[{A+2*i}:{A+2*i+1}] op_sel_hi:[1,0,1]")
        for i in range(4):
            L.append(f"v_pk_mul_f32 v[{A+8+2*i}:{A+9+2*i}], v[{A+8+2*i}:{A+9+2*i}], v[{st}:{st+1}] op_sel:[0,1] op_sel_hi:[1,1]")
        for r in range(8):
            L.append(f"v_max_f32 v{A+r}, 0, v{A+r}")
        for i in range(4):
            L.append(f"v_pk_mul_f32 v[{A+2*i}:{A+2*i+1}], v[{A+2*i}:{A+2*i+1}], v[{A+8+2*i}:{A+9+2*i}]")
        for i in range(4):
            L.append(f"v_cvt_pk_bf16_f32 v{A+8+i}, v{A+2*i}, v{A+2*i+1}")
        L.append(("st", f"buffer_store_dwordx4 v[{A+8}:{A+11}], v1, {WS}, s60 offen"))
        if tb < 3: L.append("s_add_u32 s60, s60, 114688")
        return L
    def emit(items):
        for ins in items:
            if isinstance(ins, tuple): gstore(a, ins[1], "g")
            else: a(ins)
    pend = []
    for k, (tb, s) in enumerate(seq):
        if k + 4 < len(seq): rd(k + 4)
        a.lg_wait(("t", k))
        mfma(a, 64 + 16 * tb, WG_R + 4 * s, SL[k % 8], 64 + 16 * tb)
        if k == 0: ld_wd(a, 23)
        if k % 8 == 2 and tb > 0:
            if tb == 1: a.lg_wait("st")
            pend = epi(tb - 1)
            a("s_nop 3")
        n = (len(pend) + 4) // 5 if (k % 8) < 7 else len(pend)
        if k % 8 >= 2 or tb == 0:
            emit(pend[:5 if (k % 8) < 7 else len(pend)]); pend = pend[5 if (k % 8) < 7 else len(pend):]
    stamp(a); stamp(a, "p4")
    if PRIO2: a("s_setprio 0")
    a("s_nop 9")
    emit(epi(3))
    for u in range(24, 28): ld_wd(a, u)
    stamp(a, "p4")
    a(f"s_branch {ljoin}")
    a.label(lhelp)
    a.vmq = list(sv)
    dma(1); dma(2); dma(3)
    a("v_lshlrev_b32 v3, 2, v0")
    a(f"s_mul_i32 s60, s{S_J}, 896")
    a(f"s_add_u32 s60, s60, {CSP}")
    for kq in range(4):
        for i in range(4):
            a.vm(f"buffer_load_dword v{32+4*kq+i}, v3, {WS}, s60 offen offset:{i*256} sc1", "cs")
        if kq < 3:
            a("s_add_u32 s60, s60, 14336")
    a.vm_wait(("H", 0))
    a("s_barrier")
    a.c("finish this workgroup's row statistics (partials of the 8 waves are in LDS) and publish them")
    a("v_and_b32 v2, 31, v0")
    a("v_lshlrev_b32 v64, 3, v2")
    a(f"v_add_u32 v65, {L3_ST}, v64")
    for ww in range(8):
        a(f"ds_read_b64 v[{66+2*ww}:{67+2*ww}], v65 offset:{ww*256}")
    a("s_waitcnt lgkmcnt(0)")
    for ww in range(1, 8):
        a(f"v_pk_add_f32 v[66:67], v[66:67], v[{66+2*ww}:{67+2*ww}]")
    a("v_lshlrev_b32 v64, 5, v2")
    a(f"s_lshl_b32 s60, s{S_TBK}, 10")
    a(f"s_lshl_b32 s61, s{S_HQ}, 3")
    a("s_add_u32 s60, s60, s61")
    a(f"s_add_u32 s60, s60, {HST}")
    a("s_mov_b32 exec_hi, 0")
    a.vm(f"buffer_store_dwordx2 v[66:67], v64, {WS}, s60 offen sc1", "hst")
    a("s_mov_b64 exec, -1")
    a.vm_wait_all()
    eflag_base(a, 60)
    a(f"s_lshl_b32 s61, s{S_J}, 7")
    a("s_add_u32 s60, s60, s61")
    set_flag(a, 60, 28)
    a("s_barrier")
    a("s_barrier")
    clean_store(a, 12, 55, "h")
    eflag_base(a, 60)
    poll_flags(a, 60, 16, 28, 2)
    a("v_lshlrev_b32 v2, 5, v0")
    a(f"s_lshl_b32 s60, s{S_G}, 12")
    a(f"s_add_u32 s60, s60, {HST}")
    for i in range(2):
        a(f"buffer_load_dwordx4 v[{8+8*i}:{11+8*i}], v2, {WS}, s60 offen offset:{i*2048} sc1")
        a(f"buffer_load_dwordx4 v[{12+8*i}:{15+8*i}], v2, {WS}, s60 offen offset:{i*2048+16} sc1")
    a.vm_wait_all()
    for i in range(2):
        b = 8 + 8 * i
        a(f"v_add_f32 v{b}, v{b}, v{b+2}")
        a(f"v_add_f32 v{b+4}, v{b+4}, v{b+6}")
        a(f"v_add_f32 v{b+1}, v{b+1}, v{b+3}")
        a(f"v_add_f32 v{b+5}, v{b+5}, v{b+7}")
        a(f"v_add_f32 v{b}, v{b}, v{b+4}")
        a(f"v_add_f32 v{b+1}, v{b+1}, v{b+5}")
        a(f"v_mul_f32 v{b}, {f32hex(1.0/512)}, v{b}")
        a(f"v_mul_f32 v{b+2}, v{b}, v{b}")
        a(f"v_mov_b32 v{b+3}, {f32hex(1.0/512)}")
        a(f"v_fma_f32 v{b+1}, v{b+1}, v{b+3}, -v{b+2}")
        a(f"v_max_f32 v{b+1}, 0, v{b+1}")
        a(f"v_add_f32 v{b+1}, {f32hex(1e-5)}, v{b+1}")
        a(f"v_rcp_f32 v{b+1}, v{b+1}")
        a(f"v_sub_f32 v{b}, 0, v{b}")
    a("v_lshlrev_b32 v4, 3, v0")
    a(f"v_add_u32 v4, {L4_ST}, v4")
    a("ds_write_b64 v4, v[8:9]")
    a("ds_write_b64 v4, v[16:17] offset:512")
    for i in range(4):
        a(f"v_add_f32 v{32+i}, v{32+i}, v{36+i}")
        a(f"v_add_f32 v{40+i}, v{40+i}, v{44+i}")
        a(f"v_add_f32 v{32+i}, v{32+i}, v{40+i}")
    a(f"v_add_u32 v3, {L4_CS}, v3")
    for i in range(3):
        a(f"ds_write_b32 v3, v{32+i} offset:{i*256}")
    a("s_mov_b32 exec_hi, 0")
    a("ds_write_b32 v3, v35 offset:768")
    a("s_mov_b64 exec, -1")
    a("s_waitcnt lgkmcnt(0)")
    a("s_barrier")
    for u in range(28):
        ld_wd(a, u)
    a.label(ljoin)
    if not SENT_D:
        wg_publish(a, FLG_D, 28, 4)
    a.vm_reset()
    stamp(a)

def p5(a):
    mk_srd(a, SRD_A, P_OUT, 2048 * 1024)
    a(f"s_lshr_b32 s72, s{S_J}, 3")
    a(f"s_lshl_b32 s61, s{S_G}, 2")
    a("s_lshl_b32 s62, s72, 1")
    a("s_add_u32 s61, s61, s62")
    a(f"s_mul_i32 s62, s{S_W}, 14336")
    a("s_mul_i32 s64, s72, 229376")
    a(f"s_lshl_b32 s63, s{S_G}, 19")
    a("s_add_u32 s64, s64, s63")
    a("s_add_u32 s64, s64, s62")
    a(f"s_add_u32 s64, s64, {HHF}")
    a("s_add_u32 s65, s64, 114688")
    a("v_lshrrev_b32 v2, 3, v0")
    a(f"s_lshl_b32 s62, s{S_W}, 3")
    a("v_add_u32 v2, s62, v2")
    a("v_and_b32 v3, 7, v0")
    a("v_lshrrev_b32 v4, 5, v2")
    a("v_lshlrev_b32 v4, 5, v4")
    a("v_lshrrev_b32 v5, 1, v3")
    a("v_add_u32 v4, v4, v5")
    a("v_lshlrev_b32 v4, 10, v4")
    a("v_and_b32 v5, 1, v3")
    a("v_lshlrev_b32 v5, 5, v5")
    a("v_and_b32 v6, 31, v2")
    a("v_add_u32 v5, v5, v6")
    a("v_lshl_add_u32 v4, v5, 4, v4")
    a("s_lshl_b32 s62, s61, 5")
    a("s_lshl_b32 s63, s77, 2")
    a("s_add_u32 s62, s62, s63")
    a("s_lshl_b32 s62, s62, 10")
    a(f"s_add_u32 s62, s62, {HF}")
    a("s_mov_b32 s59, s62")
    a("v_mov_b32 v7, v4")
    a.c("reduction write addresses v12..15 ; read addresses v4,v5 (+65536: v6,v81 later) ; output address v3")
    a("v_and_b32 v16, 31, v0")
    a("v_lshrrev_b32 v17, 5, v0")
    a("v_lshlrev_b32 v17, 1, v17")
    a("v_and_b32 v18, 7, v16")
    a("v_xor_b32 v17, v17, v18")
    a("v_lshlrev_b32 v16, 8, v16")
    a(f"s_lshl_b32 s62, s{S_W}, 14")
    a("v_add_u32 v16, s62, v16")
    for k, (rg, q) in enumerate([(0, 0), (0, 1), (1, 0), (1, 1)]):
        a(f"v_xor_b32 v{12+k}, {rg*4+q}, v17")
        a(f"v_lshl_add_u32 v{12+k}, v{12+k}, 4, v16")
    a("v_and_b32 v16, 7, v2")
    a("v_lshlrev_b32 v17, 1, v3")
    a("v_xor_b32 v4, v17, v16")
    a("v_or_b32 v17, 1, v17")
    a("v_xor_b32 v5, v17, v16")
    a("v_lshlrev_b32 v4, 4, v4")
    a("v_lshlrev_b32 v5, 4, v5")
    a("v_lshl_add_u32 v4, v2, 8, v4")
    a("v_lshl_add_u32 v5, v2, 8, v5")
    a("v_lshlrev_b32 v16, 10, v2")
    a("v_lshl_add_u32 v3, v3, 4, v16")
    a(f"s_lshl_b32 s57, s{S_G}, 17")
    a("s_lshl_b32 s63, s72, 16")
    a("s_add_u32 s57, s57, s63")
    a("s_lshl_b32 s63, s77, 7")
    a("s_add_u32 s57, s57, s63")
    stamp(a, "p4")
    if not SENT_D:
        wg_wait(a, FLG_D, None, 16, 28, 29, poller=7)
    stamp(a); stamp(a, "p4")
    a(f"buffer_load_dwordx4 v[8:11], v7, {WS}, s59 offen sc1")
    a("s_mov_b32 s62, s64"); a("s_mov_b32 s63, s65")
    retries = []
    BREG = [16, 24, 32, 40, 48, 56, 240, 248]
    ACC = 64
    a.vm_reset()
    def ldB(s):
        if s and (s & 3) == 0:
            a("s_add_u32 s64, s64, 4096"); a("s_add_u32 s65, s65, 4096")
        r = BREG[s % 8]
        a.vm(f"buffer_load_dwordx4 v[{r}:{r+3}], v1, {WS}, s64 offen offset:{(s&3)*1024} sc1", ("B", s))
        a.vm(f"buffer_load_dwordx4 v[{r+4}:{r+7}], v1, {WS}, s65 offen offset:{(s&3)*1024} sc1", ("B", s))
    if P5PRIO:
        l5 = a.newlabel("p5p")
        a(f"s_cmp_lt_u32 s{S_W}, 4")
        a(f"s_cbranch_scc1 {l5}")
        a("s_setprio 1")
        a.label(l5)
    for s in range(8):
        ldB(s)
    def check(r):
        a(f"v_max3_u32 v12, v{r}, v{r+1}, v{r+2}")
        a(f"v_max3_u32 v13, v{r+3}, v{r+4}, v{r+5}")
        a(f"v_max3_u32 v12, v{r+6}, v{r+7}, v12")
        a("v_max_u32 v12, v12, v13")
        a("v_cmp_eq_u32 vcc, -1, v12")
    stamp(a, "p5")
    for s in range(14):
        a.vm_wait(("B", s))
        if s in (0, 7): stamp(a, "p5")
        if SENT_D:
            lr = a.newlabel("rt"); lb = a.newlabel("rb")
            check(BREG[s % 8])
            a("s_nop 1")
            a(f"s_cbranch_vccnz {lr}")
            a.label(lb)
            retries.append((s, lr, lb))
        for ct in range(2):
            for tb in range(2):
                d = ACC + (ct * 2 + tb) * 16
                mfma(a, d, WD_R + (2 * s + ct) * 4, BREG[s % 8] + 4 * tb, None if s == 0 else d)
        if s + 8 < 14:
            ldB(s + 8)
    stamp(a); stamp(a, "p5")
    if PRIO2: a("s_setprio 0")
    if SENT_D:
        lskip = a.newlabel("rskip")
        a(f"s_branch {lskip}")
        for (s_, lr, lb) in retries:
            r = BREG[s_ % 8]
            a.label(lr)
            a(f"s_mov_b32 s79, {SPIN}")
            lp = a.newlabel("rl")
            a.label(lp)
            a("s_sleep 2")
            a(f"s_add_u32 s60, s62, {(s_ >> 2) * 4096}")
            a(f"s_add_u32 s61, s63, {(s_ >> 2) * 4096}")
            a(f"buffer_load_dwordx4 v[{r}:{r+3}], v1, {WS}, s60 offen offset:{(s_&3)*1024} sc1")
            a(f"buffer_load_dwordx4 v[{r+4}:{r+7}], v1, {WS}, s61 offen offset:{(s_&3)*1024} sc1")
            a("s_waitcnt vmcnt(0)")
            check(r)
            a("s_nop 4")
            a(f"s_cbranch_vccz {lb}")
            a("s_sub_u32 s79, s79, 1")
            a("s_cmp_lg_u32 s79, 0")
            a(f"s_cbranch_scc1 {lp}")
            a(f"s_branch {lb}")
        a.label(lskip)
        a("s_barrier")
    a("s_nop 8")
    for ct in range(2):
        for tb in range(2):
            d = ACC + (ct * 2 + tb) * 16
            for k, (rg, q) in enumerate([(0, 0), (0, 1), (1, 0), (1, 1)]):
                r = d + 8 * rg + 4 * q
                a(f"ds_write_b128 v{12+k}, v[{r}:{r+3}] offset:{ct*128 + tb*8192}")
    stamp(a, "p5")
    a("s_waitcnt lgkmcnt(0)")
    stamp(a, "p5")
    a("s_barrier")
    stamp(a, "p5")
    a("v_add_u32 v6, 65536, v4")
    a("v_add_u32 v7, 65536, v5")
    for src in range(8):
        b0, b1 = ("v4", "v5") if src < 4 else ("v6", "v7")
        a(f"ds_read_b128 v[{16+8*src}:{19+8*src}], {b0} offset:{(src&3)*16384}")
        a(f"ds_read_b128 v[{20+8*src}:{23+8*src}], {b1} offset:{(src&3)*16384}")
        if src == 3: a("s_waitcnt lgkmcnt(4)")
    a("s_mov_b32 s62, 0xffff0000")
    for i in range(4):
        a(f"v_lshlrev_b32 v{80+2*i}, 16, v{8+i}")
        a(f"v_and_b32 v{81+2*i}, s62, v{8+i}")
    a("s_waitcnt lgkmcnt(0)")
    stamp(a, "p5")
    for src in range(1, 8):
        for i in range(4):
            a(f"v_pk_add_f32 v[{16+2*i}:{17+2*i}], v[{16+2*i}:{17+2*i}], v[{16+8*src+2*i}:{17+8*src+2*i}]")
    for i in range(4):
        a(f"v_pk_add_f32 v[{16+2*i}:{17+2*i}], v[{16+2*i}:{17+2*i}], v[{80+2*i}:{81+2*i}]")
    for i in range(4):
        a(f"v_cvt_pk_bf16_f32 v{8+i}, v{16+2*i}, v{17+2*i}")
    a(f"buffer_store_dwordx4 v[8:11], v3, s[{SRD_A}:{SRD_A+3}], s57 offen {OUT_FLAGS}")

DESCRIPTION = """
One persistent kernel, 256 workgroups of 8 waves (one per CU, all co-resident). 16 workgroups form a group that owns 128 tokens.
  phase 0   LayerNorm(x) of a 32-token block, K/V projection (one workgroup per block, published to everybody), Q projection
            for 8 heads (kept in registers, scaled by log2(e)/4).
  attention K and V of all 2048 keys in LDS; a wave handles two heads on one half of the keys; S^T = K Q^T and O^T += V^T P^T
            with 32x32x16 MFMAs, the row sum comes from an all-ones row of the V operand. exp2 is taken without subtracting a
            maximum only when |q|*max|k| (Cauchy-Schwarz, checked at run time for every row of the workgroup) is at most 40;
            otherwise the whole workgroup takes the path that first computes the true row maximum and subtracts it.
            Meanwhile the weights wo / w_gate / w_up / w_down are re-laid-out into MFMA operand fragments in the workspace
            and the fragments needed next are prefetched into registers.
  P3        h = x + o wo, row statistics of h.     P4  gate/up GEMM on h with LayerNorm folded into the epilogue, ReLU gate.
  P5        out = h + hh w_down (split-K over the waves, reduced through LDS).
Hand-offs between workgroups: write-through (sc1) stores, drained, then a flag line tagged with a per-launch value derived from
what the previous launch left in the workspace; consumers poll with sc1 loads and read the payload with sc1 loads. When all 16
workgroups of a group report the same XCD (checked at run time) the group's flag lines are written with plain stores.
"""

def build():
    a = Asm()
    label = G.NAME + "_kernel"
    a.raw(G.HEADER.rstrip("\n"))
    a.raw("; @launch grid=(256,1,1) block=(512,1,1) lds=163840")
    for ln in DESCRIPTION.strip("\n").split("\n"):
        a.raw("; " + ln)
    a.raw('.amdgcn_target "amdgcn-amd-amdhsa--gfx950"')
    a.raw(".text")
    a.raw(f".globl {label}")
    a.raw(".p2align 8")
    a.raw(f".type {label},@function")
    a.raw(f"{label}:")
    if PROFILE:
        a("s_memtime s[98:99]")
        a("s_memrealtime s[100:101]")
        for k in range(16): a(f"s_mov_b32 s{80+k}, 0")
    G.WS_USED = WS_USED
    G.prologue(a, "L_fin")
    a(f"s_add_u32 s60, s{P_WS}, {NONCE}")
    a(f"s_addc_u32 s61, s{P_WS+1}, 0")
    a(f"s_load_dword s{S_NONCE}, s[60:61], 0")
    phase0(a)
    attention(a)
    p3(a)
    p4(a)
    p5(a)
    lnn = a.newlabel("nn")
    a("s_cmp_lg_u32 s2, 0")
    a(f"s_cbranch_scc1 {lnn}")
    a(f"s_cmp_lg_u32 s{S_W}, 0")
    a(f"s_cbranch_scc1 {lnn}")
    a(f"s_mov_b32 s62, {NONCE}")
    set_flag(a, 62, 28)
    a.label(lnn)
    if PROFILE:
        a(f"s_cmp_lg_u32 s{S_W}, {PROF_WAVE}")
        a("s_cbranch_scc1 L_fin")
        a("s_waitcnt vmcnt(0) lgkmcnt(0)")
        a("s_memtime s[96:97]")
        a("s_memrealtime s[54:55]")
        a("s_waitcnt lgkmcnt(0)")
        for k in range(16):
            a(f"s_sub_u32 s{80+k}, s{80+k}, s98")
            a(f"v_mov_b32 v{k}, s{80+k}")
        a("s_sub_u32 s96, s96, s98")
        a("s_sub_u32 s54, s54, s100")
        a("v_mov_b32 v16, s96")
        a("v_mov_b32 v17, s54")
        a("v_mov_b32 v18, s100")
        a("s_getreg_b32 s62, hwreg(HW_REG_XCC_ID, 0, 4)")
        a(f"s_lshl_b32 s63, s{S_LOCAL}, 8")
        a("s_or_b32 s62, s62, s63")
        a("v_mov_b32 v19, s62")
        a("s_mul_i32 s54, s2, 128")
        a(f"s_add_u32 s54, s54, {PROF}")
        a("v_mov_b32 v20, 0")
        a("s_mov_b64 exec, 1")
        for q in range(5):
            a(f"buffer_store_dwordx4 v[{4*q}:{4*q+3}], v20, {WS}, s54 offen offset:{16*q}")
    a.label("L_fin")
    a("s_endpgm")
    a.raw('.section .rodata,"a"')
    a.raw(".p2align 6")
    G.descriptor(a, label, 256)
    return a.text()

if __name__ == "__main__":
    open(sys.argv[1], "w").write(build())
```
